```python
import torch

def _softmax(x, axis=-1):
    return torch.softmax(x, dim=axis)
def _gelu(x):
    return torch.nn.functional.gelu(x, approximate="tanh")
def _silu(x):
    return torch.nn.functional.silu(x)
def _sigmoid(x):
    return torch.sigmoid(x)
def _layernorm(x, axis=-1, eps=1e-5):
    m = x.mean(dim=axis, keepdim=True)
    v = x.var(dim=axis, keepdim=True, unbiased=False)
    return (x - m) / torch.sqrt(v + eps)
def _scatter_add(tgt, idx, src, axis=0):
    return tgt.clone().index_add_(axis, idx, src)
def _segment_sum(src, seg, n):
    out = torch.zeros((n,) + src.shape[1:], dtype=src.dtype)
    return out.index_add_(0, seg, src)
def _pad(x, pw):
    flat = tuple(v for pair in reversed(pw) for v in pair)
    return torch.nn.functional.pad(x, flat)

kernel_name = 'recurrent_scan__gqa_block_cached__glu_gated_glu__decode'

def setup_inputs():

    _w = (lambda a: (lambda t: t.to(torch.bfloat16) if t.is_floating_point() else t)(torch.as_tensor(a)))
    def _A_setup():
        B, Sq, D = 1, 1, 576
        Hq, Hkv, Sk, Dh = 32, 16, 65536, 128
        assert Hq % Hkv == 0, (Hq, Hkv)
        return {
            "x": _w((lambda *s: torch.randn(*s, dtype=torch.bfloat16) * 0.05)(B, Sq, D)),
            "k_cache": _w((lambda *s: torch.randn(*s, dtype=torch.bfloat16) * 1.6)(B, Hkv, Sk, Dh)),
            "v_cache": _w((lambda *s: torch.randn(*s, dtype=torch.bfloat16) * 0.8)(B, Hkv, Sk, Dh)),
            "wq": _w((lambda *s: torch.randn(*s, dtype=torch.bfloat16) * 1.6)(D, Hq * Dh) * (D ** -0.5)),
            "wo": _w((lambda *s: torch.randn(*s, dtype=torch.bfloat16) * 0.8)(Hq * Dh, D) * ((Hq * Dh) ** -0.5)),
        }
    _A_in = _A_setup()

    def _B_setup():
        B, S, D, F = 1, 1, 576, 4608
        return {
            "x": _w((lambda *s: torch.randn(*s, dtype=torch.bfloat16) * 0.05)(B, S, D)),
            "w_gate": _w((lambda *s: torch.randn(*s, dtype=torch.bfloat16) * 0.8)(D, F)),
            "w_up": _w((lambda *s: torch.randn(*s, dtype=torch.bfloat16) * 0.2)(D, F)),
            "w_down": _w((lambda *s: torch.randn(*s, dtype=torch.bfloat16) * 0.2)(F, D)),
        }
    _B_in = _B_setup()

    return {
        "A_x": _A_in["x"],
        "A_k_cache": _A_in["k_cache"],
        "A_v_cache": _A_in["v_cache"],
        "A_wq": _A_in["wq"],
        "A_wo": _A_in["wo"],
        "B_x": _B_in["x"],
        "B_w_gate": _B_in["w_gate"],
        "B_w_up": _B_in["w_up"],
        "B_w_down": _B_in["w_down"],
    }

def reference(A_x, A_k_cache, A_v_cache, A_wq, A_wo, B_x, B_w_gate, B_w_up, B_w_down):
    def _A_ref(x, k_cache, v_cache, wq, wo):
        B, Sq, D = x.shape
        Hq, Dh = 32, 128
        Hkv = k_cache.shape[1]
        rep = Hq // Hkv
        q = (lambda x, *d: x.permute(*d))((x @ wq).reshape(B, Sq, Hq, Dh), 0, 2, 1, 3)
        k = (lambda x, n, axis: torch.repeat_interleave(x, n, dim=axis))(k_cache, rep, axis=1)
        v = (lambda x, n, axis: torch.repeat_interleave(x, n, dim=axis))(v_cache, rep, axis=1)
        scores = torch.einsum("bhqd,bhkd->bhqk", q, k) * (Dh ** -0.5)
        p = _softmax(scores, axis=-1)
        o = torch.einsum("bhqk,bhkd->bhqd", p, v)
        return (lambda x, *d: x.permute(*d))(o, 0, 2, 1, 3).reshape(B, Sq, Hq * Dh) @ wo

    def _B_ref(x, w_gate, w_up, w_down):
        g = torch.einsum("bsd,df->bsf", x, w_gate)
        u = torch.einsum("bsd,df->bsf", x, w_up)
        h = _sigmoid(g) * u
        return torch.einsum("bsf,fd->bsd", h, w_down)

    x = A_x
    xn = _layernorm(x, axis=-1)
    s = _A_ref(xn, A_k_cache, A_v_cache, A_wq, A_wo)
    g = _silu(_B_ref(xn, B_w_gate, B_w_up, B_w_down))
    return x + s * g
```

```python
import sys, os
sys.path.insert(0, os.path.dirname(os.path.abspath(__file__)))
import hazard

NAME = "recurrent_scan__gqa_block_cached__glu_gated_glu__decode"
HEADER = open(os.path.join(os.path.dirname(os.path.abspath(__file__)), "header.txt")).read()

WS_QP, WS_P, WS_ML, WS_Y, WS_F, WS_CNT, WS_DIAG = 0x0, 0x20000, 0x60000, 0x64000, 0x70000, 0x80000, 0x100000
L_FULL, L_DONE, L_QFLAG, L_Q, L_MO, L_MML, L_Y, RING0 = 0, 512, 528, 1024, 2048, 6144, 8192, 12288
LOG2E = 0x3FB8AA3B
SCALE = 0x3DB504F3
VALID = "0xff00ff00", "0x00ff00ff"

DEF = dict(F=19, NS=18, FW=6, SN=(264, 263), pol="nt", wpol="nt", diag=False, hmap="div", sleep=1, spin=0x200000)

def build(**kw):
    P = dict(DEF); P.update(kw)
    F, NS, FW, pol, wpol, diag = P["F"], P["NS"], P["FW"], P["pol"], P["wpol"], P["diag"]
    L = []
    def A(s):
        for x in s.strip("\n").split("\n"):
            L.append(x.strip())
    sW, sH, sI, sC = "s28", "s29", "s30", "s31"
    rK, rV, rWS, rX, rWQ, rWO, rWG, rWU, rWD, rOUT = ("s[32:35]", "s[36:39]", "s[40:43]", "s[44:47]", "s[48:51]",
                                                    "s[52:55]", "s[56:59]", "s[60:63]", "s[64:67]", "s[68:71]")
    def srd(r, ptr, n):
        b = int(r[2:r.index(":")])
        A(f"s_mov_b64 s[{b}:{b+1}], s[{ptr}:{ptr+1}]\ns_mov_b32 s{b+2}, {n}\ns_mov_b32 s{b+3}, 0x20000")
    def vr(b, n=4): return f"v[{b}:{b+n-1}]"
    M, KA, VA, VZ, Vm, VmL, Vl, VDA = 8, 12, 16, 17, 18, 19, 20, 21
    O, Q, K, V, S, PP, B, AD, WO, X, RG, DQ = 24, 28, 44, 60, 76, 80, 84, 100, 108, 140, 152, 224
    VPL = 105
    nstamp = [0]
    def stamp(k):
        if diag:
            A(f"s_memrealtime s[{84+2*k}:{85+2*k}]\ns_waitcnt lgkmcnt(0)")
    def dump_stamps():
        if diag:
            A(f"s_mul_i32 s76, s2, 5\ns_add_u32 s76, s76, {sW}\ns_lshl_b32 s76, s76, 5\ns_add_u32 s76, s76, {WS_DIAG}")
            A("s_mov_b64 exec, 1\nv_mov_b32 v1, s76")
            for k in range(8):
                A(f"v_mov_b32 v2, s{84+2*k}\nglobal_store_dword v1, v2, s[26:27] offset:{4*k}")
            A("s_mov_b64 exec, -1")
    def spin(lbl):
        A(f"s_sub_u32 s3, s3, 1\ns_cbranch_scc0 {lbl}\ns_endpgm")
    def wave_sum(v, t):
        for r in (8, 4, 2, 1):
            A(f"s_nop 1\nv_add_f32_dpp v{v}, v{v}, v{v} row_ror:{r} row_mask:0xf bank_mask:0xf")
        for op in ("v_permlane16_swap_b32", "v_permlane32_swap_b32"):
            A(f"v_mov_b32 v{t}, v{v}\ns_nop 1\n{op} v{t}, v{v}\nv_add_f32 v{v}, v{v}, v{t}")
    def rbf(d, s):
        A(f"v_cvt_pk_bf16_f32 v{d}, v{s}, v{s}\nv_and_b32 v{d}, 0xffff0000, v{d}")
    def bbuild(src, t, b):
        A(f"v_mov_b32_dpp v7, v{src} row_newbcast:{t} row_mask:0xf bank_mask:0x3\ns_nop 1")
        A(f"v_mov_b32_dpp v7, v{src} row_newbcast:{8+t} row_mask:0xf bank_mask:0xc")
        for v in range(4):
            A(f"v_and_b32 v{b+v}, v7, v{M+v}")
    def mfma(d, a, b, c=None):
        A(f"v_mfma_f32_16x16x32_bf16 {vr(d)}, {vr(a)}, {vr(b)}, {vr(d) if c is None else c}")
    def exec_valid():
        A(f"s_mov_b32 exec_lo, {VALID[1]}\ns_mov_b32 exec_hi, {VALID[0]}")

    A(f"{NAME}_kernel:")
    A("s_cmp_ge_u32 s2, 256\ns_cbranch_scc1 L_end")
    A("s_load_dwordx16 s[4:19], s[0:1], 0\ns_load_dwordx8 s[20:27], s[0:1], 64")
    if diag:
        for k in range(8): A(f"s_mov_b32 s{84+2*k}, 0")
    A("v_lshrrev_b32 v1, 6, v0\nv_and_b32 v0, 63, v0")
    A(f"v_readfirstlane_b32 {sW}, v1")
    if P["hmap"] == "div":
        A(f"s_lshr_b32 {sH}, s2, 4\ns_and_b32 {sI}, s2, 15")
    else:
        A(f"s_and_b32 {sH}, s2, 7\ns_lshl_b32 {sH}, {sH}, 1\ns_bfe_u32 s76, s2, 0x10003\ns_or_b32 {sH}, {sH}, s76\ns_lshr_b32 {sI}, s2, 4")
    A(f"v_mov_b32 v{VZ}, 0\ns_mov_b32 s3, {P['spin']}")
    A(f"s_sub_u32 {sC}, {sW}, 1")
    A(f"s_cmp_lg_u32 {sW}, 0\ns_cbranch_scc1 L_cons_pre")
    dt, j0 = (7 + F) // 8, (7 + F) % 8
    A("s_setprio 3")
    A("v_lshlrev_b32 v6, 3, v0")
    A(f"v_mov_b32 v2, {-dt}\nv_bfrev_b32 v3, -2")
    A(f"ds_write_b64 v6, v[2:3] offset:{L_FULL}")
    A(f"v_lshlrev_b32 v1, 2, v0\nds_write_b32 v1, v{VZ} offset:{L_DONE}")
    A("v_lshrrev_b32 v1, 4, v0\nv_and_b32 v4, 15, v0")
    for j in range(4):
        A(f"v_add_u32 v5, {4*j}, v1\nv_xor_b32 v5, v5, v4\nv_lshlrev_b32 v5, 4, v5\nv_lshl_add_u32 v{KA+j}, v1, 8, v5")
    A(f"v_lshlrev_b32 v{VA}, 4, v0")
    sn0, sn1 = P["SN"]
    A(f"s_movk_i32 s78, {sn0}\ns_bitcmp1_b32 {sH}, 0\ns_cselect_b32 s78, {sn1}, s78")
    A(f"s_sub_u32 s76, {sI}, 1\ns_mov_b32 s77, {15*4096}")
    A(f"s_cmp_lg_u32 {sI}, 0\ns_cbranch_scc1 L_ld_sched")
    A("s_mul_i32 s76, s78, 15\ns_sub_u32 s78, 4096, s76\ns_movk_i32 s77, 0x1000")
    A("L_ld_sched:")
    A(f"s_lshl_b32 s76, s76, 12\ns_lshl_b32 s79, {sH}, 24\ns_add_u32 s76, s76, s79")
    A("s_waitcnt lgkmcnt(0)")
    srd(rK, 6, 0x10000000); srd(rV, 8, 0x10000000)
    stamp(0)
    A(f"s_cmp_eq_u32 {sI}, 0\ns_cbranch_scc1 L_ln_loads")
    A("s_barrier")
    A("L_stream:")
    A(f"v_lshlrev_b32 v6, 3, v0\nv_mov_b32 v2, {-dt}\nv_bfrev_b32 v3, -2")
    A(f"s_mov_b32 s79, 0\ns_mov_b32 s80, {RING0}\ns_mov_b32 s81, {1-NS}")
    A(f"ds_read_b128 v[8:11], v{VZ} offset:{L_DONE}")
    A("L_ld_loop:")
    A("s_waitcnt lgkmcnt(0)\nv_min3_u32 v4, v8, v9, v10\nv_min_u32 v4, v4, v11")
    A("s_mov_b32 m0, s80\nv_readfirstlane_b32 s82, v4")
    A(f"ds_read_b128 v[8:11], v{VZ} offset:{L_DONE}")
    A("s_cmp_lt_i32 s82, s81\ns_cbranch_scc1 L_ld_full")
    for j in range(8):
        if j == 4: A("s_add_u32 m0, s80, 0x1000")
        A(f"s_waitcnt vmcnt({F-1})")
        if j < 4: A(f"buffer_load_dwordx4 v{KA+j}, {rK}, s76 offen offset:{j*1024} {pol} lds")
        else: A(f"buffer_load_dwordx4 v{VA}, {rV}, s76 offen offset:{(j-4)*1024} {pol} lds")
        if j == j0:
            A(f"v_add_u32 v2, 1, v2\nds_write_b64 v6, v[2:3] offset:{L_FULL}")
    A("s_add_u32 s76, s76, s77\ns_add_u32 s80, s80, 0x2000")
    A(f"s_cmp_eq_u32 s80, {RING0 + NS*8192}\ns_cselect_b32 s80, {RING0}, s80")
    A("s_add_u32 s81, s81, 1\ns_add_u32 s79, s79, 1\ns_cmp_lt_u32 s79, s78\ns_cbranch_scc1 L_ld_loop")
    stamp(1)
    A("v_mov_b32 v3, s78")
    for r in range(dt - 1, -1, -1):
        A(f"s_waitcnt vmcnt({8*r})\nv_add_u32 v2, 1, v2\nds_write_b64 v6, v[2:3] offset:{L_FULL}")
    stamp(2)
    dump_stamps()
    A("s_endpgm")
    A("L_ld_full:")
    spin("L_ld_loop")

    A("L_cons_pre:")
    A("s_waitcnt lgkmcnt(0)")
    stamp(0)
    A(f"s_cmp_eq_u32 {sI}, 0\ns_cbranch_scc1 L_ln_loads")
    A(f"s_cmp_lg_u32 {sC}, 0\ns_cbranch_scc1 L_pre_wo")
    A("L_ln_loads:")
    srd(rX, 4, 1152)
    A(f"s_and_b32 s82, {sI}, 3\ns_mul_i32 s82, s82, 144")
    A("v_and_b32 v1, 7, v0\nv_lshrrev_b32 v4, 3, v0\nv_lshl_add_u32 v5, v1, 3, v4\nv_add_u32 v5, s82, v5")
    for k in range(9):
        A(f"v_add_u32 v6, {64*k}, v5\nv_subrev_u32 v7, 576, v6\nv_min_u32 v6, v6, v7\nv_lshlrev_b32 v6, 1, v6")
        A(f"buffer_load_ushort v{X+k}, v6, {rX}, 0 offen")
    A(f"s_cmp_lg_u32 {sC}, 0\ns_cbranch_scc1 L_pre_done")
    srd(rWQ, 10, 576 * 8192)
    A("v_lshlrev_b32 v5, 4, v1\nv_lshl_add_u32 v5, v4, 13, v5")
    A(f"s_lshl_b32 s82, s82, 13\ns_lshl_b32 s83, {sH}, 9\ns_add_u32 s82, s82, s83")
    A(f"s_lshr_b32 s83, {sI}, 2\ns_lshl_b32 s83, s83, 7\ns_add_u32 s82, s82, s83")
    for p in range(18):
        A(f"buffer_load_dwordx4 {vr(RG+4*p)}, v5, {rWQ}, s82 offen {wpol}")
        if p < 17: A("s_add_u32 s82, s82, 0x10000")
    srd(rWS, 26, 0x200000)
    A("v_mov_b32 v24, -1\nv_mov_b32 v25, -1\nv_mov_b32 v26, -1\nv_mov_b32 v27, -1")
    A("v_lshrrev_b32 v5, 4, v0\nv_and_b32 v6, 15, v0\nv_lshlrev_b32 v6, 4, v6\nv_lshl_add_u32 v5, v5, 12, v6")
    A(f"s_lshl_b32 s82, {sH}, 14\ns_lshl_b32 s83, {sI}, 8\ns_add_u32 s82, s82, s83\ns_add_u32 s82, s82, {WS_P}")
    A(f"buffer_store_dwordx4 v[24:27], v5, {rWS}, s82 offen sc1")
    A("s_mov_b64 exec, 1")
    A(f"s_lshl_b32 s82, {sH}, 10\ns_lshl_b32 s83, {sI}, 6\ns_add_u32 s82, s82, s83\ns_add_u32 s82, s82, {WS_ML}")
    A(f"buffer_store_dwordx4 v[24:27], v6, {rWS}, s82 offen sc1")
    A("s_mov_b64 exec, 0xffff")
    A(f"s_cmp_eq_u32 {sI}, 0\ns_cbranch_scc1 L_clr_f")
    A(f"s_cmp_gt_u32 {sI}, 9\ns_cbranch_scc1 L_clr_done")
    A(f"s_lshl_b32 s82, {sI}, 12\ns_lshl_b32 s83, {sH}, 8\ns_add_u32 s82, s82, s83\ns_add_u32 s82, s82, {WS_Y - 4096}")
    A(f"buffer_store_dwordx4 v[24:27], v6, {rWS}, s82 offen sc1")
    A("s_branch L_clr_done")
    A("L_clr_f:")
    A(f"s_lshl_b32 s82, {sH}, 8\ns_add_u32 s82, s82, {WS_F + 8*4096}")
    A(f"buffer_store_dwordx4 v[24:27], v6, {rWS}, s82 offen sc1")
    A("s_mov_b64 exec, -1")
    A("s_sub_u32 s82, s82, 0x4000")
    A(f"buffer_store_dwordx4 v[24:27], v5, {rWS}, s82 offen sc1")
    A("s_sub_u32 s82, s82, 0x4000")
    A(f"buffer_store_dwordx4 v[24:27], v5, {rWS}, s82 offen sc1")
    A("L_clr_done:")
    A("s_mov_b64 exec, -1\ns_branch L_pre_done")
    def wo_loads(skip):
        A(f"s_sub_u32 s82, {sI}, 1\ns_cmp_gt_u32 s82, 8\ns_cbranch_scc1 {skip}")
        srd(rWO, 12, 4096 * 1152)
        A("v_lshrrev_b32 v4, 5, v0\nv_lshlrev_b32 v4, 7, v4\nv_bfe_u32 v5, v0, 3, 2\nv_lshl_add_u32 v4, v5, 1, v4")
        A("v_mul_u32_u24 v4, 0x480, v4\nv_and_b32 v5, 7, v0\nv_lshl_add_u32 v4, v5, 4, v4")
        A(f"s_lshl_b32 s82, s82, 7\ns_lshl_b32 s83, {sH}, 3\ns_add_u32 s83, s83, {sC}\ns_mul_i32 s83, s83, {32*1152}\ns_add_u32 s82, s82, s83")
        for t in range(8):
            if t & 3: A(f"s_add_u32 s83, s82, {8*(t&3)*1152}")
            A(f"buffer_load_dwordx4 {vr(WO+4*t)}, v4, {rWO}, {'s83' if t & 3 else 's82'} offen offset:{(t>>2)*1152} {wpol}")
    A("L_pre_wo:")
    wo_loads("L_pre_done")
    A("L_pre_done:")
    A("s_barrier")
    A("v_and_b32 v1, 1, v0\nv_lshlrev_b32 v1, 4, v1\nv_mov_b32 v4, 0xffff\nv_lshlrev_b32 v4, v1, v4\nv_bfe_u32 v5, v0, 1, 2")
    for v in range(4):
        A(f"v_cmp_eq_u32 vcc, {v}, v5\ns_nop 1\nv_cndmask_b32 v{M+v}, 0, v4, vcc")
    A(f"v_bfe_u32 v4, v0, 4, 1\nv_and_b32 v5, 7, v0\nv_lshl_add_u32 v4, v4, 3, v5\nv_lshlrev_b32 v{VPL}, 4, v4")
    A(f"s_cmp_eq_u32 {sI}, 0\ns_cbranch_scc1 L_ln")
    A(f"s_cmp_lg_u32 {sC}, 0\ns_cbranch_scc1 L_cons_main")
    A("L_ln:")
    A(f"s_cmp_eq_u32 {sC}, 0\ns_cbranch_scc1 L_ln_c0\ns_waitcnt vmcnt(0)\nL_ln_c0:")
    A("s_waitcnt vmcnt(20)")
    for k in range(9): A(f"v_lshlrev_b32 v{X+k}, 16, v{X+k}")
    A(f"v_add_f32 v1, v{X}, v{X+1}")
    for k in range(2, 9): A(f"v_add_f32 v1, v1, v{X+k}")
    wave_sum(1, 2)
    A("s_mov_b32 s82, 0x3ae38e39\ns_mov_b32 s83, 0x44100000")
    def div576(v):
        A(f"v_mul_f32 v2, s82, v{v}\nv_fma_f32 v3, -v2, s83, v{v}\nv_fma_f32 v{v}, v3, s82, v2")
    div576(1)
    A(f"v_sub_f32 v2, v{X}, v1\nv_mul_f32 v4, v2, v2")
    for k in range(1, 9): A(f"v_sub_f32 v2, v{X+k}, v1\nv_fmac_f32 v4, v2, v2")
    wave_sum(4, 2)
    div576(4)
    rbf(1, 1); rbf(4, 4)
    A("v_add_f32 v4, 0x3727c5ac, v4"); rbf(4, 4)
    A("v_sqrt_f32 v5, v4\ns_nop 0\nv_rcp_f32 v6, v5\nv_fma_f32 v3, -v5, v5, v4\nv_mul_f32 v6, 0.5, v6\nv_fma_f32 v5, v3, v6, v5")
    rbf(5, 5)
    A("v_rcp_f32 v6, v5")
    for k in range(9):
        A(f"v_sub_f32 v2, v{X+k}, v1"); rbf(2, 2)
        A(f"v_mul_f32 v3, v2, v6\nv_fma_f32 v4, -v3, v5, v2\nv_fma_f32 v3, v4, v6, v3\nv_cvt_pk_bf16_f32 v{X+k}, v3, v3")
    A(f"s_cmp_lg_u32 {sC}, 0\ns_cbranch_scc1 L_ffn")
    A("s_nop 0")
    nst_max = 5 + 8
    for p in range(18):
        bbuild(X + p // 8, p % 8, B + 4 * (p & 1))
        A(f"s_waitcnt vmcnt({17 - p + 2})\ns_nop 0")
        mfma(DQ, RG + 4 * p, B + 4 * (p & 1), "0" if p == 0 else None)
    A(f"v_lshrrev_b32 v4, 5, v0\nv_lshl_add_u32 v4, v4, 10, v{VPL}")
    A(f"s_lshl_b32 s82, {sH}, 13\ns_and_b32 s83, {sI}, 3\ns_lshl_b32 s83, s83, 11\ns_add_u32 s82, s82, s83")
    A(f"s_lshr_b32 s83, {sI}, 2\ns_lshl_b32 s83, s83, 8\ns_add_u32 s82, s82, s83")
    exec_valid()
    A(f"buffer_store_dwordx4 {vr(DQ)}, v4, {rWS}, s82 offen sc1")
    A(f"s_mov_b64 exec, 1\ns_lshl_b32 s82, {sH}, 4\nv_mov_b32 v4, s82\nv_mov_b32 v5, 1")
    A("s_waitcnt vmcnt(0)")
    A("global_atomic_add v4, v5, s[24:25] sc1")
    A("s_mov_b64 exec, -1")
    stamp(1)
    A(f"s_cmp_lg_u32 {sI}, 0\ns_cbranch_scc1 L_qgather")
    A("L_ffn:")
    ACC, DG, DU = 28, 64, 68
    for i in range(36): A(f"v_mov_b32 v{ACC+i}, 0")
    A(f"s_min_u32 s72, {sC}, 4")
    A(f"s_and_b32 s73, {sH}, 1\ns_lshr_b32 s74, s72, 2\ns_and_b32 s74, s74, s73\ns_cbranch_scc1 L_ffn_out")
    A(f"s_mul_i32 s73, s73, 5\ns_lshr_b32 s74, {sH}, 1\ns_mul_i32 s74, s74, 9\ns_add_u32 s73, s73, s74\ns_add_u32 s73, s73, s72")
    srd(rWG, 16, 576 * 9216); srd(rWU, 18, 576 * 9216); srd(rWD, 20, 4608 * 1152)
    A("v_lshrrev_b32 v4, 3, v0\nv_and_b32 v5, 7, v0\nv_lshlrev_b32 v5, 4, v5")
    A("v_mul_u32_u24 v2, 0x2400, v4\nv_add_u32 v2, v2, v5\nv_mul_u32_u24 v3, 0x480, v4\nv_add_u32 v3, v3, v5")
    for i in range(8): A(f"v_mov_b32 v{DG+i}, 0")
    A("s_lshl_b32 s74, s73, 7")
    assert FW % 2 == 0
    def gu_load(n):
        A(f"buffer_load_dwordx4 {vr(RG+4*(n%16))}, v2, {rWU if n & 1 else rWG}, s74 offen {wpol}")
        if n & 1: A(f"s_add_u32 s74, s74, {8*9216}")
    for n in range(FW): gu_load(n)
    A("s_mov_b32 s75, 0\nL_ffn_gu:")
    for t in range(8):
        bbuild(X, t, B + 4 * (t & 1))
        for m in range(2):
            n = 2 * t + m
            A(f"s_waitcnt vmcnt({FW-1})")
            gu_load(n + FW)
            mfma(DU if m else DG, RG + 4 * n, B + 4 * (t & 1))
    for k in range(8): A(f"v_mov_b32 v{X+k}, v{X+k+1}")
    A("s_add_u32 s75, s75, 1\ns_cmp_lt_u32 s75, 9\ns_cbranch_scc1 L_ffn_gu")
    A(f"s_mul_i32 s74, s73, {64*1152}")
    def wd_load(n):
        t, ct = divmod(n, 9)
        A(f"buffer_load_dwordx4 {vr(RG+4*(n%16))}, v3, {rWD}, s74 offen offset:{ct*128} {wpol}")
        if ct == 8: A(f"s_add_u32 s74, s74, {8*1152}")
    A("s_waitcnt vmcnt(0)")
    for n in range(FW): wd_load(n)
    A(f"s_lshl_b32 s75, s72, 10\ns_add_u32 s75, s75, {RING0 + 32768}")
    A(f"v_lshrrev_b32 v4, 5, v0\nv_lshl_add_u32 v4, v4, 8, v{VPL}\nv_add_u32 v4, s75, v4")
    exec_valid()
    A(f"ds_write_b128 v4, {vr(DG)}\nds_write_b128 v4, {vr(DU)} offset:512\ns_mov_b64 exec, -1")
    A("v_bfe_u32 v4, v0, 2, 1\nv_lshrrev_b32 v5, 3, v0\nv_lshl_add_u32 v4, v4, 3, v5\nv_and_b32 v5, 3, v0\nv_lshl_add_u32 v4, v4, 2, v5")
    A("v_lshlrev_b32 v4, 2, v4\nv_add_u32 v4, s75, v4\ns_waitcnt lgkmcnt(0)")
    A("ds_read_b32 v64, v4\nds_read_b32 v65, v4 offset:256\nds_read_b32 v66, v4 offset:512\nds_read_b32 v67, v4 offset:768")
    A("s_waitcnt lgkmcnt(0)\nv_add_f32 v64, v64, v65\nv_add_f32 v66, v66, v67")
    rbf(64, 64); rbf(66, 66)
    A(f"v_mul_f32 v64, {hex(LOG2E ^ 0x80000000)}, v64\nv_exp_f32 v64, v64\ns_nop 0\nv_add_f32 v64, 1.0, v64\nv_rcp_f32 v64, v64\ns_nop 0")
    rbf(64, 64)
    A(f"v_mul_f32 v64, v64, v66\nv_cvt_pk_bf16_f32 v{X}, v64, v64\ns_nop 1")
    for n in range(72):
        t, ct = divmod(n, 9)
        if ct == 0: bbuild(X, t, B + 4 * (t & 1))
        A(f"s_waitcnt vmcnt({min(FW-1, 71-n)})")
        if n + FW < 72: wd_load(n + FW)
        else: A("s_nop 0")
        mfma(ACC + 4 * ct, RG + 4 * (n % 16), B + 4 * (t & 1))
    A("L_ffn_out:")
    A(f"s_mul_i32 s75, s72, 4608\ns_add_u32 s75, s75, {RING0}")
    A(f"v_lshrrev_b32 v4, 5, v0\nv_mul_u32_u24 v4, 0x900, v4\nv_add3_u32 v4, v4, v{VPL}, s75\ns_nop 4")
    exec_valid()
    for ct in range(9): A(f"ds_write_b128 v4, {vr(ACC+4*ct)} offset:{ct*256}")
    A("s_mov_b64 exec, -1\ns_waitcnt lgkmcnt(0)\ns_barrier")
    A("s_cmp_gt_u32 s72, 2\ns_cbranch_scc1 L_ffn_done")
    A("s_lshl_b32 s75, s72, 6\nv_add_u32 v4, s75, v0\nv_cmp_gt_u32 vcc, 0x90, v4\ns_and_saveexec_b64 s[82:83], vcc")
    A(f"v_lshlrev_b32 v5, 4, v4\nv_add_u32 v5, {RING0}, v5")
    for s_ in range(10): A(f"ds_read_b128 {vr(ACC+4*s_)}, v5 offset:{s_*2304}")
    srd(rWS, 26, 0x200000)
    A(f"v_lshrrev_b32 v5, 4, v4\nv_and_b32 v4, 15, v4\nv_lshlrev_b32 v4, 4, v4\nv_lshl_add_u32 v4, v5, 12, v4")
    A(f"s_lshl_b32 s75, {sH}, 8\ns_add_u32 s75, s75, {WS_F}\ns_waitcnt lgkmcnt(0)")
    for s_ in range(1, 10):
        for i in range(4): A(f"v_add_f32 v{ACC+i}, v{ACC+i}, v{ACC+4*s_+i}")
    for i in range(4): A(f"v_min_u32 v{ACC+i}, -2, v{ACC+i}")
    A(f"buffer_store_dwordx4 {vr(ACC)}, v4, {rWS}, s75 offen sc1")
    A("s_mov_b64 exec, -1")
    A("L_ffn_done:")
    A("s_barrier")
    stamp(3)
    A(f"s_cmp_eq_u32 {sW}, 0\ns_cbranch_scc1 L_stream")
    A(f"s_cmp_lg_u32 {sC}, 0\ns_cbranch_scc1 L_cons_main")
    A("L_qgather:")
    A(f"s_lshl_b32 s82, {sH}, 4\nv_mov_b32 v4, s82\ns_mov_b64 exec, 1")
    A("L_qpoll:\nglobal_load_dword v5, v4, s[24:25] sc1\ns_waitcnt vmcnt(0)\nv_readfirstlane_b32 s83, v5")
    A("s_cmp_ge_u32 s83, 16\ns_cbranch_scc1 L_qready\ns_sleep 2")
    spin("L_qpoll")
    A("L_qready:\ns_mov_b64 exec, -1")
    stamp(2)
    A(f"v_lshlrev_b32 v4, 4, v0\ns_lshl_b32 s82, {sH}, 13\ns_add_u32 s83, s82, 0x1000")
    for p in range(8):
        A(f"buffer_load_dwordx4 {vr(RG+4*p)}, v4, {rWS}, {'s83' if p >= 4 else 's82'} offen offset:{(p&3)*1024} sc1")
    A("v_lshrrev_b32 v4, 3, v0\nv_and_b32 v5, 7, v0\nv_lshl_add_u32 v4, v4, 5, v5\nv_lshlrev_b32 v4, 1, v4")
    for p in range(1, 8):
        A(f"s_waitcnt vmcnt({7-p})")
        for i in range(4): A(f"v_add_f32 v{RG+i}, v{RG+i}, v{RG+4*p+i}")
    A(f"v_cvt_pk_bf16_f32 v{RG}, v{RG}, v{RG+1}\nv_cvt_pk_bf16_f32 v{RG+2}, v{RG+2}, v{RG+3}")
    A(f"ds_write_b16 v4, v{RG} offset:{L_Q}\nds_write_b16_d16_hi v4, v{RG} offset:{L_Q+16}")
    A(f"ds_write_b16 v4, v{RG+2} offset:{L_Q+32}\nds_write_b16_d16_hi v4, v{RG+2} offset:{L_Q+48}")
    A(f"v_mov_b32 v5, 1\ns_waitcnt lgkmcnt(0)\nds_write_b32 v{VZ}, v5 offset:{L_QFLAG}")
    wo_loads("L_cons_main")
    A("L_cons_main:")
    A("v_and_b32 v1, 15, v0\nv_lshrrev_b32 v4, 4, v0\nv_xor_b32 v5, v1, v4\nv_lshlrev_b32 v5, 4, v5")
    A(f"v_lshl_add_u32 v{KA}, v1, 8, v5")
    for ks in range(1, 4): A(f"v_xor_b32 v{KA+ks}, {64*ks}, v{KA}")
    A(f"v_lshlrev_b32 v5, 4, v1\nv_lshl_add_u32 v{VA}, v4, 10, v5")
    A(f"v_mov_b32 v{Vm}, 0xff800000\nv_mov_b32 v{VmL}, 0xff800000\nv_mov_b32 v{Vl}, 0")
    for i in range(4): A(f"v_mov_b32 v{O+i}, 0")
    A(f"s_lshl_b32 s82, {sC}, 2\nv_mov_b32 v{VDA}, s82")
    A("v_bfe_u32 v5, v0, 3, 1\nv_lshlrev_b32 v5, 8, v5\nv_lshl_add_u32 v5, v4, 4, v5")
    A(f"s_mov_b32 s72, {hex(SCALE)}\ns_mov_b32 s73, {hex(LOG2E)}\ns_mov_b32 s74, 0xffff0000")
    A(f"s_mov_b32 s76, {sC}\ns_lshl_b32 s77, {sC}, 13\ns_add_u32 s77, s77, {RING0}\ns_mov_b32 s78, 0")
    A(f"L_qwait:\nds_read_b32 v1, v{VZ} offset:{L_QFLAG}\ns_waitcnt lgkmcnt(0)\nv_readfirstlane_b32 s79, v1")
    A("s_cmp_lg_u32 s79, 0\ns_cbranch_scc1 L_qgo\ns_sleep 1")
    spin("L_qwait")
    A("L_qgo:")
    for ks in range(4): A(f"ds_read_b128 {vr(Q+4*ks)}, v5 offset:{L_Q + 64*ks}")
    A("s_waitcnt lgkmcnt(0)")
    stamp(4)
    A("L_c_top:\ns_cmp_lt_i32 s76, s78\ns_cbranch_scc1 L_c_go")
    A(f"L_c_poll:\nds_read_b64 v[22:23], v{VZ} offset:{L_FULL}\ns_waitcnt lgkmcnt(0)")
    A("v_readfirstlane_b32 s78, v22\nv_readfirstlane_b32 s79, v23")
    A("s_cmp_lt_i32 s76, s78\ns_cbranch_scc1 L_c_go\ns_cmp_ge_i32 s76, s79\ns_cbranch_scc1 L_c_exit")
    if P["sleep"]: A(f"s_sleep {P['sleep']}")
    spin("L_c_poll")
    A("L_c_go:")
    for ks in range(4):
        A(f"v_add_u32 v{AD+ks}, s77, v{KA+ks}\nds_read_b128 {vr(K+4*ks)}, v{AD+ks}")
    A(f"v_add_u32 v{AD+4}, s77, v{VA}")
    for r in range(4): A(f"ds_read_b128 {vr(V+4*r)}, v{AD+4} offset:{4096 + 256*r}")
    A("s_add_u32 s76, s76, 1\nv_mov_b32 v22, s76")
    for ks in range(4):
        A(f"s_waitcnt lgkmcnt({7-ks})")
        mfma(S, K + 4 * ks, Q + 4 * ks, "0" if ks == 0 else None)
    A(f"s_add_u32 s76, s76, 3\ns_add_u32 s77, s77, 0x8000\ns_sub_u32 s79, s77, {NS*8192}")
    A(f"s_cmp_ge_u32 s77, {RING0 + NS*8192}\ns_cselect_b32 s77, s79, s77")
    A(f"s_waitcnt lgkmcnt(0)\nds_write_b32 v{VDA}, v22 offset:{L_DONE}\ns_nop 0")
    for rep in range(2):
        A(f"v_cvt_pk_bf16_f32 v{PP}, v{S}, v{S+1}\nv_cvt_pk_bf16_f32 v{PP+1}, v{S+2}, v{S+3}")
        A(f"v_lshlrev_b32 v{S}, 16, v{PP}\nv_and_b32 v{S+1}, s74, v{PP}\nv_lshlrev_b32 v{S+2}, 16, v{PP+1}\nv_and_b32 v{S+3}, s74, v{PP+1}")
        if rep == 0:
            for i in range(4): A(f"v_mul_f32 v{S+i}, s72, v{S+i}")
    A(f"v_max3_f32 v22, v{S}, v{S+1}, v{S+2}\nv_max_f32 v22, v22, v{S+3}")
    A(f"v_cmp_gt_f32 vcc, v22, v{Vm}\ns_cbranch_vccnz L_c_rescale\nL_c_cont:")
    for i in range(4): A(f"v_fma_f32 v{PP+i}, v{S+i}, s73, -v{VmL}")
    for i in range(4): A(f"v_exp_f32 v{PP+i}, v{PP+i}")
    for i in range(4):
        A(f"v_cvt_pk_bf16_f32 v22, v{PP+i}, v{PP+i}")
        for v in range(4): A(f"v_and_b32 v{B+4*i+v}, v22, v{M+v}")
        A(f"v_add_f32 v{Vl}, v{Vl}, v{PP+i}")
        if i > 0: mfma(O, V + 4 * (i - 1), B + 4 * (i - 1))
    A("s_nop 0")
    mfma(O, V + 12, B + 12)
    A("s_branch L_c_top")
    A("L_c_rescale:")
    for op in ("v_permlane16_swap_b32", "v_permlane32_swap_b32"):
        A(f"v_mov_b32 v23, v22\ns_nop 1\n{op} v23, v22\nv_max_f32 v22, v22, v23")
    A(f"v_max_f32 v{Vm}, v{Vm}, v22\nv_mul_f32 v22, s73, v{Vm}\nv_sub_f32 v23, v{VmL}, v22\nv_exp_f32 v23, v23\nv_mov_b32 v{VmL}, v22")
    A(f"v_mul_f32 v{Vl}, v{Vl}, v23")
    for i in range(4): A(f"v_mul_f32 v{O+i}, v{O+i}, v23")
    A("s_branch L_c_cont")
    A("L_c_exit:")
    stamp(5)
    for op in ("v_permlane16_swap_b32", "v_permlane32_swap_b32"):
        A(f"v_mov_b32 v23, v{Vl}\ns_nop 1\n{op} v23, v{Vl}\nv_add_f32 v{Vl}, v{Vl}, v23")
    A(f"s_lshl_b32 s82, {sC}, 10\nv_lshl_add_u32 v4, v0, 4, s82\nds_write_b128 v4, {vr(O)} offset:{L_MO}")
    A(f"s_lshl_b32 s82, {sC}, 9\nv_lshl_add_u32 v4, v0, 3, s82\nv_mov_b32 v22, v{VmL}\nv_mov_b32 v23, v{Vl}\nds_write_b64 v4, v[22:23] offset:{L_MML}")
    srd(rWS, 26, 0x200000)
    A(f"s_lshl_b32 s82, {sC}, 8\nv_lshl_add_u32 v4, v0, 2, s82\nv_lshrrev_b32 v5, 5, v0\nv_lshlrev_b32 v5, 6, v5")
    A(f"v_lshlrev_b32 v6, 2, v0")
    A(f"s_lshl_b32 s76, {sH}, 14\ns_lshl_b32 s83, {sC}, 12\ns_add_u32 s76, s76, s83\ns_add_u32 s76, s76, {WS_P}")
    A(f"s_lshl_b32 s83, {sI}, 8\ns_add_u32 s82, s76, s83")
    A(f"s_lshl_b32 s77, {sH}, 10\ns_add_u32 s77, s77, {WS_ML}\ns_lshl_b32 s83, {sI}, 6\ns_add_u32 s83, s83, s77")
    A("s_waitcnt lgkmcnt(0)\ns_barrier")
    for c in range(4): A(f"ds_read_b64 v[{K+2*c}:{K+2*c+1}], v5 offset:{L_MML + 512*c}")
    for c in range(4): A(f"ds_read_b32 v{K+8+c}, v4 offset:{L_MO + 1024*c}")
    A(f"s_waitcnt lgkmcnt(4)\nv_max3_f32 v22, v{K}, v{K+2}, v{K+4}\nv_max_f32 v22, v22, v{K+6}")
    for c in range(4): A(f"v_sub_f32 v{K+2*c}, v{K+2*c}, v22")
    for c in range(4): A(f"v_exp_f32 v{K+2*c}, v{K+2*c}")
    A(f"s_waitcnt lgkmcnt(0)\nv_mul_f32 v1, v{K}, v{K+8}\nv_mul_f32 v23, v{K}, v{K+1}")
    for c in range(1, 4): A(f"v_fmac_f32 v1, v{K+2*c}, v{K+8+c}\nv_fmac_f32 v23, v{K+2*c}, v{K+2*c+1}")
    A("v_min_u32 v1, -2, v1\nv_min_u32 v22, -2, v22\nv_min_u32 v23, -2, v23")
    A(f"buffer_store_dword v1, v6, {rWS}, s82 offen sc1")
    A(f"s_cmp_lg_u32 {sC}, 0\ns_cbranch_scc1 L_e_l1")
    A("v_lshrrev_b32 v5, 3, v5\ns_mov_b32 exec_lo, 1\ns_mov_b32 exec_hi, 1")
    A(f"buffer_store_dwordx2 v[22:23], v5, {rWS}, s83 offen sc1\ns_mov_b64 exec, -1")
    A("L_e_l1:")
    stamp(6)
    A(f"s_sub_u32 s78, {sI}, 1\ns_cmp_gt_u32 s78, 8\ns_cbranch_scc1 L_e_fin")
    A("v_and_b32 v4, 15, v0\nv_lshlrev_b32 v4, 6, v4\nv_lshrrev_b32 v5, 5, v0\nv_lshl_add_u32 v4, v5, 3, v4")
    A("L_l1_poll:")
    A(f"buffer_load_dwordx2 v[22:23], v4, {rWS}, s77 offen sc1")
    for p in range(16): A(f"buffer_load_dword v{K+p}, v6, {rWS}, s76 offen offset:{256*p} sc1")
    A("s_waitcnt vmcnt(14)\n" + f"v_max3_u32 v1, v22, v23, v{K}\nv_max_u32 v1, v1, v{K+1}")
    for p in range(2, 16, 2): A(f"s_waitcnt vmcnt({14-p})\nv_max3_u32 v1, v1, v{K+p}, v{K+p+1}")
    A("v_cmp_eq_u32 vcc, -1, v1\ns_cbranch_vccz L_l1_ok")
    spin("L_l1_poll")
    A("L_l1_ok:")
    A("v_mov_b32 v1, v22")
    for r in (8, 4, 2, 1): A(f"s_nop 1\nv_max_f32_dpp v1, v1, v1 row_ror:{r} row_mask:0xf bank_mask:0xf")
    A("v_sub_f32 v22, v22, v1\nv_exp_f32 v22, v22\ns_nop 0\nv_mul_f32 v23, v22, v23")
    for r in (8, 4, 2, 1): A(f"s_nop 1\nv_add_f32_dpp v23, v23, v23 row_ror:{r} row_mask:0xf bank_mask:0xf")
    A("v_rcp_f32 v23, v23\nv_mov_b32 v1, 0\nv_mul_f32 v22, v22, v23\nv_mov_b32 v2, 0\nv_mov_b32 v3, 0\nv_mov_b32 v5, 0")
    acc = (1, 2, 3, 5)
    for p in range(16): A(f"v_fmac_f32_dpp v{acc[p&3]}, v22, v{K+p} row_newbcast:{p} row_mask:0xf bank_mask:0xf")
    A("v_add_f32 v1, v1, v2\nv_add_f32 v3, v3, v5\nv_add_f32 v1, v1, v3\nv_cvt_pk_bf16_f32 v1, v1, v1\ns_nop 1")
    for t in range(8): A(f"v_mov_b32_dpp v{V+t}, v1 row_newbcast:{t} row_mask:0xf bank_mask:0x3")
    for t in range(8): A(f"v_mov_b32_dpp v{V+t}, v1 row_newbcast:{8+t} row_mask:0xf bank_mask:0xc")
    for t in range(8):
        for v in range(4): A(f"v_and_b32 v{B+4*(t&3)+v}, v{V+t}, v{M+v}")
        if t > 0: mfma(S, WO + 4 * (t - 1), B + 4 * ((t - 1) & 3), "0" if t == 1 else None)
    A("s_nop 0")
    mfma(S, WO + 28, B + 12)
    A(f"s_lshl_b32 s82, {sC}, 9\nv_lshrrev_b32 v4, 5, v0\nv_lshl_add_u32 v4, v4, 8, v{VPL}\nv_add_u32 v4, s82, v4")
    exec_valid()
    A(f"s_lshl_b32 s82, s78, 12\ns_lshl_b32 s83, {sH}, 8\ns_add_u32 s82, s82, s83\ns_add_u32 s82, s82, {WS_Y}")
    A(f"ds_write_b128 v4, {vr(S)} offset:{L_Y}\ns_mov_b64 exec, -1\ns_waitcnt lgkmcnt(0)\ns_barrier")
    A(f"s_cmp_lg_u32 {sC}, 0\ns_cbranch_scc1 L_e_done")
    for i in range(8): A(f"ds_read_b32 v{K+i}, v6 offset:{L_Y + 256*i}")
    for i in range(1, 8): A(f"s_waitcnt lgkmcnt({7-i})\nv_add_f32 v{K}, v{K}, v{K+i}")
    A(f"v_min_u32 v{K}, -2, v{K}\nbuffer_store_dword v{K}, v6, {rWS}, s82 offen sc1")
    A("s_branch L_e_done")
    A("L_e_fin:")
    A(f"s_cmp_lg_u32 {sI}, 10\ns_cbranch_scc1 L_e_done\ns_cmp_gt_u32 {sH}, 8\ns_cbranch_scc1 L_e_done\ns_cmp_lg_u32 {sC}, 0\ns_cbranch_scc1 L_e_done")
    srd(rX, 4, 1152); srd(rOUT, 22, 1152)
    A("v_lshrrev_b32 v4, 5, v0\nv_and_b32 v5, 3, v0\nv_lshl_add_u32 v4, v4, 2, v5\nv_bfe_u32 v5, v0, 2, 3\nv_lshl_add_u32 v4, v4, 3, v5")
    A(f"v_lshlrev_b32 v2, 1, v4\ns_lshl_b32 s79, {sH}, 7")
    A(f"buffer_load_ushort v3, v2, {rX}, s79 offen")
    A("v_and_b32 v4, 15, v0\nv_lshlrev_b32 v4, 4, v4")
    A("L_f_cnt:\nglobal_load_dword v5, v4, s[24:25] sc1\ns_waitcnt vmcnt(0)\nv_cmp_gt_u32 vcc, 16, v5\ns_cbranch_vccz L_f_cnt_ok")
    spin("L_f_cnt")
    A("L_f_cnt_ok:")
    A(f"s_lshl_b32 s82, {sH}, 12\ns_add_u32 s83, s82, {WS_Y}\ns_add_u32 s82, s82, {WS_F}")
    def gather_sum(lbl, so, dst):
        A(f"{lbl}:")
        for p in range(16): A(f"buffer_load_dword v{K+p}, v6, {rWS}, {so} offen offset:{256*p} sc1")
        A(f"s_waitcnt vmcnt(14)\nv_max_u32 v1, v{K}, v{K+1}\nv_add_f32 v{dst}, v{K}, v{K+1}")
        for p in range(2, 16, 2):
            A(f"s_waitcnt vmcnt({14-p})\nv_max3_u32 v1, v1, v{K+p}, v{K+p+1}\nv_add_f32 v{dst}, v{dst}, v{K+p}\nv_add_f32 v{dst}, v{dst}, v{K+p+1}")
        A(f"v_cmp_eq_u32 vcc, -1, v1\ns_cbranch_vccz {lbl}_ok")
        spin(lbl)
        A(f"{lbl}_ok:")
    gather_sum("L_f_ffn", "s82", 22)
    rbf(22, 22)
    A(f"v_mul_f32 v5, {hex(LOG2E ^ 0x80000000)}, v22\nv_exp_f32 v5, v5\ns_nop 0\nv_add_f32 v5, 1.0, v5\nv_rcp_f32 v5, v5\ns_nop 0\nv_mul_f32 v22, v22, v5")
    rbf(22, 22)
    A("v_lshlrev_b32 v3, 16, v3")
    gather_sum("L_f_att", "s83", 23)
    rbf(23, 23)
    A("v_mul_f32 v23, v23, v22"); rbf(23, 23)
    A(f"v_add_f32 v23, v23, v3\nv_cvt_pk_bf16_f32 v23, v23, v23\nbuffer_store_short v23, v2, {rOUT}, s79 offen")
    A("L_e_done:")
    stamp(7)
    dump_stamps()
    A("L_end:\ns_endpgm")

    errs = hazard.check(L)
    if errs:
        print("\n".join(errs)); raise SystemExit("hazards found")
    lds = RING0 + NS * 8192
    body = "\n".join(x if x.endswith(":") else "    " + x for x in L)
    head = HEADER.replace("@LAUNCH@", f"; @launch grid=(256,1,1) block=(320,1,1) lds={lds}")
    tail = f"""
.section .rodata,"a"
.p2align 6
.amdhsa_kernel {NAME}_kernel
  .amdhsa_next_free_vgpr 228
  .amdhsa_next_free_sgpr 102
  .amdhsa_accum_offset 228
  .amdhsa_group_segment_fixed_size 0
  .amdhsa_kernarg_size 96
  .amdhsa_user_sgpr_count 2
  .amdhsa_user_sgpr_kernarg_segment_ptr 1
  .amdhsa_system_sgpr_workgroup_id_x 1
  .amdhsa_float_denorm_mode_32 3
.end_amdhsa_kernel
"""
    return head + body + tail, lds

if __name__ == "__main__":
    out = sys.argv[1]
    kw = eval("dict(" + (sys.argv[2] if len(sys.argv) > 2 else "") + ")")
    txt, lds = build(**kw)
    open(out, "w").write(txt)
```

```python
import re
TRANS = ("v_exp_f32", "v_log_f32", "v_rcp_f32", "v_rsq_f32", "v_sqrt_f32", "v_sin_f32", "v_cos_f32")

def regs(tok):
    tok = tok.strip().lstrip("-")
    if tok.startswith("abs("): tok = tok[4:-1]
    m = re.fullmatch(r"([vas])(\d+)", tok)
    if m: return {(m.group(1), int(m.group(2)))}
    m = re.fullmatch(r"([vas])\[(\d+):(\d+)\]", tok)
    if m: return {(m.group(1), i) for i in range(int(m.group(2)), int(m.group(3)) + 1)}
    if tok in ("vcc", "vcc_lo", "vcc_hi"): return {("s", "vcc")}
    if tok in ("exec", "exec_lo", "exec_hi"): return {("s", "exec")}
    if tok == "m0": return {("s", "m0")}
    return set()

class I:
    def __init__(s, text):
        s.text = text
        p = text.split(None, 1)
        s.op = p[0]
        rest = p[1] if len(p) > 1 else ""
        toks = [t.strip() for t in rest.split(",")]
        last = toks[-1].split() if toks and toks[-1] else []
        s.mods = " ".join(last[1:])
        if last: toks[-1] = last[0]
        s.toks = [t for t in toks if t]
        op = s.op
        s.valu = op.startswith("v_") and not op.startswith("v_mfma")
        s.mfma = op.startswith("v_mfma")
        s.vmem = op.startswith(("buffer_", "global_"))
        s.ds = op.startswith("ds_")
        s.salu = op.startswith("s_")
        s.dpp = "_dpp" in op or "row_" in s.mods or "quad_perm" in rest
        s.perml = op.startswith("v_permlane")
        s.trans = op.startswith(TRANS)
        s.rdln = op.startswith(("v_readfirstlane", "v_readlane"))
        s.ldsdma = s.vmem and (" lds" in " " + s.mods or "load_lds" in op)
        s.w = set(); s.r = set(); s.c = set(); s.stdata = set()
        T = s.toks
        if s.mfma:
            s.w = regs(T[0]); s.r = regs(T[1]) | regs(T[2]); s.c = regs(T[3])
        elif s.valu:
            s.w = regs(T[0]); srcs = T[1:]
            if "_co_" in op or op.startswith("v_div_scale"): s.w |= regs(T[1]); srcs = T[2:]
            for t in srcs: s.r |= regs(t)
            if op.startswith(("v_fmac", "v_dot2c")) or s.dpp or "sdwa" in op: s.r |= regs(T[0])
            if s.perml: s.w |= regs(T[1]); s.r |= regs(T[0])
            if op.startswith("v_cndmask") and len(T) == 3: s.r |= {("s", "vcc")}
        elif s.vmem:
            store = "store" in op or ("atomic" in op and "sc0" not in s.mods)
            if s.ldsdma:
                for t in T: s.r |= regs(t)
            elif op.startswith("buffer_"):
                if store:
                    for t in T: s.r |= regs(t)
                    s.stdata = regs(T[0])
                else:
                    s.w = regs(T[0])
                    for t in T[1:]: s.r |= regs(t)
                    if "atomic" in op: s.r |= regs(T[0])
            else:
                if store:
                    for t in T: s.r |= regs(t)
                    s.stdata = regs(T[1])
                else:
                    s.w = regs(T[0])
                    for t in T[1:]: s.r |= regs(t)
            if not ("x3" in op or "x4" in op): s.stdata = set()
        elif s.ds:
            if op.startswith(("ds_write", "ds_add_u32", "ds_add_f32")):
                for t in T: s.r |= regs(t)
            else:
                s.w = regs(T[0])
                for t in T[1:]: s.r |= regs(t)
        elif s.salu:
            if op.startswith(("s_cmp", "s_cbranch", "s_branch", "s_waitcnt", "s_nop", "s_barrier", "s_sleep", "s_endpgm", "s_setprio", "s_bitcmp")):
                for t in T: s.r |= regs(t)
            else:
                s.w = regs(T[0])
                for t in T[1:]: s.r |= regs(t)
                if "saveexec" in op: s.w |= {("s", "exec")}
        s.states = 1
        if op == "s_nop": s.states = int(T[0], 0) + 1

def need(a, b):
    n = 0; why = ""
    def up(k, w):
        nonlocal n, why
        if k > n: n, why = k, w
    vw = {x for x in a.w if x[0] in "va"}; sw = {x for x in a.w if x[0] == "s"}
    if a.valu:
        if b.mfma and vw & (b.r | b.c): up(2, "valu->mfma")
        if b.valu and b.dpp and vw & b.r: up(2, "valu->dpp")
        if b.perml and vw & b.r: up(2, "valu->permlane")
        if b.rdln and vw & b.r: up(1, "valu->readlane")
        if a.trans and b.valu and not b.trans and vw & b.r: up(1, "trans->valu")
        if a.trans and (b.mfma or b.ds or b.vmem) and vw & (b.r | b.c): up(2, "trans->other")
        if sw and b.valu and sw & b.r: up(2, "valu sgpr->valu")
        if sw and b.vmem and sw & b.r: up(5, "valu sgpr->vmem")
        if ("sdwa" in a.op or "op_sel" in a.mods) and b.valu and vw & (b.r | b.w): up(1, "sdwa->valu")
        if ("s", "exec") in sw and (b.mfma or b.rdln or b.perml): up(4, "valu exec")
        if ("s", "exec") in sw and b.dpp: up(5, "valu exec->dpp")
    if a.mfma:
        if b.mfma:
            if a.w & b.r: up(8, "mfma->mfma AB")
            if a.w & b.c and a.w != b.c: up(6, "mfma->mfma C overlap")
        elif (b.valu or b.vmem or b.ds) and a.w & (b.r | b.w): up(8, "mfma->valu/mem")
        if b.valu and a.c & b.w: up(3, "mfma C WAR")
    if a.salu and ("s", "m0") in a.w and b.ldsdma: up(1, "m0->ldsdma")
    if a.stdata and (b.valu or b.mfma) and a.stdata & b.w: up(2, "store WAR")
    if a.stdata and (b.vmem or b.ds) and a.stdata & b.w: up(1, "store WAR")
    return n, why

def check(lines):
    ins = []; labels = {}
    for ln in lines:
        t = ln.split(";")[0].strip()
        if not t or t.startswith("."): continue
        if t.endswith(":"):
            labels[t[:-1]] = len(ins); continue
        ins.append(I(t))
    errs = set()
    def walk(i, a, dist, seen):
        while i < len(ins) and dist < 8:
            b = ins[i]
            n, why = need(a, b)
            if n > dist: errs.add(f"{why}: need {n} have {dist}: [{a.text}] -> [{b.text}]")
            if b.op == "s_endpgm": return
            dist += b.states
            if b.op.startswith(("s_cbranch", "s_branch")):
                tgt = labels.get(b.toks[0])
                if tgt is not None and (tgt, dist) not in seen:
                    seen.add((tgt, dist)); walk(tgt, a, dist, seen)
                if b.op == "s_branch": return
            i += 1
    for i, a in enumerate(ins):
        if a.valu or a.mfma or a.stdata or (a.salu and ("s", "m0") in a.w):
            walk(i + 1, a, 0, set())
    return sorted(errs)
```

```python
import sys, os
sys.path.insert(0, os.path.dirname(os.path.abspath(__file__)))
import hazard

NAME = "recurrent_scan__gqa_block_cached__glu_gated_glu__decode"
HEADER = open(os.path.join(os.path.dirname(os.path.abspath(__file__)), "header.txt")).read()

WS_QP, WS_P, WS_ML, WS_Y, WS_F, WS_CNT, WS_EPOCH, WS_DIAG = 0x0, 0x20000, 0x60000, 0x68000, 0x80000, 0x98000, 0x9c000, 0x100000
L_FULL, L_DONE, L_QFLAG, L_QUE, L_Q, L_MO, L_MML, L_Y, RING0 = 0, 512, 528, 640, 1024, 2048, 6144, 8192, 12288
LOG2E = 0x3FB8AA3B
SCALE = 0x3DB504F3
VALID = "0xff00ff00", "0x00ff00ff"
NW = 6

DEF = dict(F=19, NS=18, FW=6, SN=(264, 263), pol="nt", wpol="nt", diag=False, hmap="div", sleep=1, spin=0x200000,
           dyn=True, S=240, SA=4, AH=6, chunk=1, wo="exit", hrot=0, spread=True, ways=15, pmul=1)

def build(**kw):
    P = dict(DEF); P.update(kw)
    F, NS, FW, pol, wpol, diag, dyn = P["F"], P["NS"], P["FW"], P["pol"], P["wpol"], P["diag"], P["dyn"]
    L = []
    def A(s):
        for x in s.strip("\n").split("\n"):
            L.append(x.strip())
    sW, sH, sI, sC, sT = "s28", "s29", "s30", "s31", "s100"
    rK, rV, rWS, rX, rWQ, rWO, rWG, rWU, rWD, rOUT = ("s[32:35]", "s[36:39]", "s[40:43]", "s[44:47]", "s[48:51]",
                                                    "s[52:55]", "s[56:59]", "s[60:63]", "s[64:67]", "s[68:71]")
    def srd(r, ptr, n):
        b = int(r[2:r.index(":")])
        A(f"s_mov_b64 s[{b}:{b+1}], s[{ptr}:{ptr+1}]\ns_mov_b32 s{b+2}, {n}\ns_mov_b32 s{b+3}, 0x20000")
    def vr(b, n=4): return f"v[{b}:{b+n-1}]"
    M, KA, VA, VZ, Vm, VmL, Vl, VDA = 8, 12, 16, 17, 18, 19, 20, 21
    O, Q, K, V, S, PP, B, AD, WO, X, XR, RG, DQ = 24, 28, 44, 60, 76, 80, 84, 100, 108, 140, 149, 152, 224
    VPL = 105
    def stamp(k, set_=1):
        if diag and (diag == set_ or k in (0, 1, 2, 4)):
            A(f"s_memrealtime s[{84+2*k}:{85+2*k}]\ns_waitcnt lgkmcnt(0)")
    def dump_stamps():
        if diag:
            A(f"s_mul_i32 s76, s2, {NW}\ns_add_u32 s76, s76, {sW}\ns_lshl_b32 s76, s76, 5\ns_add_u32 s76, s76, {WS_DIAG}")
            A("s_mov_b64 exec, 1\nv_mov_b32 v1, s76")
            for k in range(8):
                A(f"v_mov_b32 v2, s{84+2*k}\nglobal_store_dword v1, v2, s[26:27] offset:{4*k}")
            A("s_mov_b64 exec, -1")
    def spin(lbl):
        A(f"s_sub_u32 s3, s3, 1\ns_cbranch_scc0 {lbl}\ns_endpgm")
    def wave_sum(v, t):
        for r in (8, 4, 2, 1):
            A(f"s_nop 1\nv_add_f32_dpp v{v}, v{v}, v{v} row_ror:{r} row_mask:0xf bank_mask:0xf")
        for op in ("v_permlane16_swap_b32", "v_permlane32_swap_b32"):
            A(f"v_mov_b32 v{t}, v{v}\ns_nop 1\n{op} v{t}, v{v}\nv_add_f32 v{v}, v{v}, v{t}")
    def rbf(d, s):
        A(f"v_cvt_pk_bf16_f32 v{d}, v{s}, v{s}\nv_and_b32 v{d}, 0xffff0000, v{d}")
    def bbuild(src, t, b):
        A(f"v_mov_b32_dpp v7, v{src} row_newbcast:{t} row_mask:0xf bank_mask:0x3\ns_nop 1")
        A(f"v_mov_b32_dpp v7, v{src} row_newbcast:{8+t} row_mask:0xf bank_mask:0xc")
        for v in range(4):
            A(f"v_and_b32 v{b+v}, v7, v{M+v}")
    def mfma(d, a, b, c=None):
        A(f"v_mfma_f32_16x16x32_bf16 {vr(d)}, {vr(a)}, {vr(b)}, {vr(d) if c is None else c}")
    def exec_valid():
        A(f"s_mov_b32 exec_lo, {VALID[1]}\ns_mov_b32 exec_hi, {VALID[0]}")
    def tagchk(acc, regs):
        for r in regs: A(f"v_bitop3_b32 v{acc}, v{acc}, v{r}, v6 bitop3:0xf6")

    A(f"{NAME}_kernel:")
    A("s_cmp_ge_u32 s2, 256\ns_cbranch_scc1 L_end")
    A("s_load_dwordx16 s[4:19], s[0:1], 0\ns_load_dwordx8 s[20:27], s[0:1], 64")
    if diag:
        for k in range(8): A(f"s_mov_b32 s{84+2*k}, 0")
    A("v_lshrrev_b32 v1, 6, v0\nv_and_b32 v0, 63, v0")
    A(f"v_readfirstlane_b32 {sW}, v1")
    if P["hmap"] == "div":
        A(f"s_lshr_b32 {sH}, s2, 4\ns_and_b32 {sI}, s2, 15")
    else:
        A(f"s_and_b32 {sH}, s2, 7\ns_lshl_b32 {sH}, {sH}, 1\ns_bfe_u32 s76, s2, 0x10003\ns_or_b32 {sH}, {sH}, s76\ns_lshr_b32 {sI}, s2, 4")
    A(f"v_mov_b32 v{VZ}, 0\ns_mov_b32 s3, {P['spin']}")
    A(f"s_sub_u32 {sC}, {sW}, 1")
    A(f"s_cmp_lg_u32 {sW}, 0\ns_cbranch_scc1 L_other")
    dt, j0 = (7 + F) // 8, (7 + F) % 8
    ch = P["chunk"]
    assert ch == 0 or all(x % ch == 0 for x in ((P["S"],) if dyn else P["SN"]))
    assert P["AH"] >= 3 and P["SA"] > 2
    A("s_setprio 3")
    A("v_lshrrev_b32 v1, 4, v0\nv_and_b32 v4, 15, v0")
    sp = 3072 if P["spread"] else 0
    LV = 20
    for j in range(4):
        A(f"v_add_u32 v5, {4*j}, v1\nv_xor_b32 v5, v5, v4\nv_lshlrev_b32 v5, 4, v5\nv_lshl_add_u32 v{KA+j}, v1, 8, v5")
        if j and sp: A(f"v_add_u32 v{KA+j}, {sp*j}, v{KA+j}")
    A(f"v_lshlrev_b32 v{LV}, 4, v0")
    for j in range(1, 4): A(f"v_add_u32 v{LV+j}, {sp*j}, v{LV}")
    A("v_lshlrev_b32 v6, 3, v0")
    A(f"v_mov_b32 v2, {-dt}\nv_bfrev_b32 v3, -2")
    A(f"ds_write_b64 v6, v[2:3] offset:{L_FULL}")
    A(f"v_lshlrev_b32 v1, 2, v0\nds_write_b32 v1, v{VZ} offset:{L_DONE}")
    A(f"ds_read_b128 v[8:11], v{VZ} offset:{L_DONE}")
    if dyn:
        A(f"s_movk_i32 s78, {P['S']}")
    else:
        A(f"s_movk_i32 s78, {P['SN'][0]}\ns_bitcmp1_b32 {sH}, 0\ns_cselect_b32 s78, {P['SN'][1]}, s78")
    ways = P["ways"]
    if ways == 16:
        assert dyn and ch
        A(f"s_mul_i32 s76, {sI}, {ch}\ns_movk_i32 s77, {15*ch+1}")
        A(f"s_cmp_eq_u32 {sI}, 0\ns_cselect_b32 s78, {P['SA']}, s78")
    else:
        if ch:
            A(f"s_sub_u32 s76, {sI}, 1\ns_mul_i32 s76, s76, {ch}\ns_movk_i32 s77, {14*ch+1}")
        else:
            A(f"s_sub_u32 s76, {sI}, 1\ns_mul_i32 s76, s76, s78\ns_mov_b32 s77, 1")
        A(f"s_cmp_lg_u32 {sI}, 0\ns_cbranch_scc1 L_ld_sched")
        A("s_mul_i32 s76, s78, 15\ns_mov_b32 s77, 1")
        A(f"s_movk_i32 s78, {P['SA']}" if dyn else "s_sub_u32 s78, 4096, s76")
        A("L_ld_sched:")
    A(f"s_mul_i32 s71, {sH}, {P['hrot']}\ns_add_u32 s76, s76, s71\ns_lshl_b32 s72, {sH}, 24")
    A(f"s_mov_b32 s79, 0\ns_mov_b32 s80, {RING0}\ns_mov_b32 s81, {1-NS}")
    A("s_waitcnt lgkmcnt(0)")
    srd(rK, 6, 0x10000000); srd(rV, 8, 0x10000000)
    stamp(0)
    def tile_loads():
        if P["spread"]:
            A("s_and_b32 s75, s76, 0xffc\ns_lshl_b32 s75, s75, 12\ns_or_b32 s75, s75, s72\ns_and_b32 s83, s76, 3\ns_lshl_b32 s83, s83, 10\ns_or_b32 s75, s75, s83")
        else:
            A("s_and_b32 s75, s76, 0xfff\ns_lshl_b32 s75, s75, 12\ns_or_b32 s75, s75, s72")
        for j in range(8):
            if j == 4: A("s_add_u32 m0, s80, 0x1000")
            A(f"s_waitcnt vmcnt({F-1})")
            if j < 4: A(f"buffer_load_dwordx4 v{KA+j}, {rK}, s75 offen offset:{j*1024} {pol} lds")
            else: A(f"buffer_load_dwordx4 v{LV+j-4}, {rV}, s75 offen offset:{(j-4)*1024} {pol} lds")
            if j == j0:
                A(f"v_add_u32 v2, 1, v2\nds_write_b64 v6, v[2:3] offset:{L_FULL}")
        A("s_add_u32 s80, s80, 0x2000")
        A(f"s_cmp_eq_u32 s80, {RING0 + NS*8192}\ns_cselect_b32 s80, {RING0}, s80")
        A("s_add_u32 s81, s81, 1\ns_add_u32 s79, s79, 1")
    A("L_ld_loop:")
    A("s_waitcnt lgkmcnt(0)\nv_min3_u32 v4, v8, v9, v10\nv_min_u32 v4, v4, v11")
    A("s_mov_b32 m0, s80\nv_readfirstlane_b32 s82, v4")
    A(f"ds_read_b128 v[8:11], v{VZ} offset:{L_DONE}")
    A("s_cmp_lt_i32 s82, s81\ns_cbranch_scc1 L_ld_full")
    tile_loads()
    if ch > 1:
        A(f"s_and_b32 s83, s79, {ch-1}\ns_cselect_b32 s83, 1, s77\ns_add_u32 s76, s76, s83")
    else:
        A("s_add_u32 s76, s76, s77")
    A("s_cmp_eq_u32 s79, 2\ns_cbranch_scc1 L_ld_bar")
    A("s_cmp_lt_u32 s79, s78\ns_cbranch_scc1 L_ld_loop")
    if dyn:
        def que_read(n):
            A(f"s_and_b32 s83, {n}, 31\ns_lshl_b32 s83, s83, 2\nv_mov_b32 v5, s83\nds_read_b32 v7, v5 offset:{L_QUE}")
        stamp(3)
        A("L_ld_dre:")
        que_read("s79")
        A("L_ld_dyn:")
        A("s_waitcnt lgkmcnt(0)\nv_min3_u32 v4, v8, v9, v10\nv_min_u32 v4, v4, v11\nv_readfirstlane_b32 s73, v7")
        A("s_mov_b32 m0, s80\nv_readfirstlane_b32 s82, v4")
        A(f"ds_read_b128 v[8:11], v{VZ} offset:{L_DONE}")
        A("s_add_u32 s74, s79, 1\ns_lshr_b32 s75, s73, 16\ns_cmp_lg_u32 s75, s74\ns_cbranch_scc1 L_ld_dfull")
        A("s_cmp_lt_i32 s82, s81\ns_cbranch_scc1 L_ld_dfull")
        A("s_and_b32 s73, s73, 0xffff\ns_cmp_ge_u32 s73, 0x1000\ns_cbranch_scc1 L_ld_drain")
        A("s_add_u32 s76, s73, s71")
        que_read("s74")
        tile_loads()
        A("s_branch L_ld_dyn")
    A("L_ld_drain:")
    stamp(1)
    A("v_mov_b32 v3, s79")
    for r in range(dt - 1, -1, -1):
        A(f"s_waitcnt vmcnt({8*r})\nv_add_u32 v2, 1, v2\nds_write_b64 v6, v[2:3] offset:{L_FULL}")
    stamp(2)
    if diag: A(f"s_mov_b32 s94, s79\ns_sub_u32 s96, {P['spin']}, s3")
    dump_stamps()
    A("s_endpgm")
    A("L_ld_full:")
    spin("L_ld_loop")
    if dyn:
        A("L_ld_dfull:")
        spin("L_ld_dre")
    A("L_ld_bar:\ns_waitcnt lgkmcnt(0)\ns_barrier")
    A(f"s_cmp_lg_u32 {sI}, 0\ns_cbranch_scc1 L_ld_loop\ns_barrier\ns_barrier\ns_branch L_ld_loop")

    A("L_other:")
    A("s_waitcnt lgkmcnt(0)")
    A(f"s_load_dword {sT}, s[26:27], {WS_EPOCH}")
    stamp(0)
    A(f"s_cmp_eq_u32 {sW}, 5\ns_cbranch_scc1 L_xload")
    if P["wo"] == "early":
        A(f"s_cmp_lg_u32 {sI}, 0\ns_cbranch_scc1 L_pre_wo")
    else:
        A(f"s_cmp_lg_u32 {sI}, 0\ns_cbranch_scc1 L_pre_done")
    A("L_xload:")
    srd(rX, 4, 1152)
    A("v_and_b32 v1, 7, v0\nv_lshrrev_b32 v4, 3, v0\nv_lshl_add_u32 v5, v1, 3, v4\nv_lshlrev_b32 v5, 1, v5")
    for k in range(9): A(f"buffer_load_ushort v{X+k}, v5, {rX}, 0 offen offset:{128*k}")
    A(f"s_cmp_lg_u32 {sW}, 5\ns_cbranch_scc1 L_pre_done")
    A(f"s_and_b32 s82, {sI}, 3\ns_mul_i32 s82, s82, 288")
    for k in range(3): A(f"buffer_load_ushort v{XR+k}, v5, {rX}, s82 offen offset:{128*k}")
    srd(rWQ, 10, 576 * 8192)
    A("v_lshlrev_b32 v5, 4, v1\nv_lshl_add_u32 v5, v4, 13, v5")
    A(f"s_lshl_b32 s82, s82, 12\ns_lshl_b32 s83, {sH}, 9\ns_add_u32 s82, s82, s83")
    A(f"s_lshr_b32 s83, {sI}, 2\ns_lshl_b32 s83, s83, 7\ns_add_u32 s82, s82, s83")
    for p in range(18):
        A(f"buffer_load_dwordx4 {vr(RG+4*p)}, v5, {rWQ}, s82 offen {wpol}")
        if p < 17: A("s_add_u32 s82, s82, 0x10000")
    srd(rWS, 26, 0x200000)
    A("v_mov_b32 v24, -1\nv_mov_b32 v25, -1\nv_mov_b32 v26, -1\nv_mov_b32 v27, -1")
    A("v_lshrrev_b32 v5, 4, v0\nv_and_b32 v6, 15, v0\nv_lshlrev_b32 v6, 4, v6\nv_lshl_add_u32 v5, v5, 12, v6")
    A(f"s_lshl_b32 s82, {sH}, 14\ns_lshl_b32 s83, {sI}, 8\ns_add_u32 s82, s82, s83\ns_add_u32 s82, s82, {WS_P}")
    A(f"buffer_store_dwordx4 v[24:27], v5, {rWS}, s82 offen sc1")
    A("s_mov_b64 exec, 1")
    A(f"s_lshl_b32 s82, {sH}, 10\ns_lshl_b32 s83, {sI}, 6\ns_add_u32 s82, s82, s83\ns_add_u32 s82, s82, {WS_ML}")
    A(f"buffer_store_dwordx4 v[24:27], v6, {rWS}, s82 offen sc1")
    if dyn:
        A(f"s_cmp_lg_u32 {sI}, 0\ns_cbranch_scc1 L_clr_done")
        A(f"s_lshl_b32 s82, {sH}, 8\ns_add_u32 s82, s82, {WS_CNT}\nbuffer_store_dword v{VZ}, v6, {rWS}, s82 offen sc1")
        A("L_clr_done:")
    A("s_mov_b64 exec, -1")
    def wo_loads(skip):
        A(f"s_sub_u32 s82, {sI}, 1\ns_cmp_gt_u32 s82, 8\ns_cbranch_scc1 {skip}")
        srd(rWO, 12, 4096 * 1152)
        A("v_lshrrev_b32 v4, 5, v0\nv_lshlrev_b32 v4, 7, v4\nv_bfe_u32 v5, v0, 3, 2\nv_lshl_add_u32 v4, v5, 1, v4")
        A("v_mul_u32_u24 v4, 0x480, v4\nv_and_b32 v5, 7, v0\nv_lshl_add_u32 v4, v5, 4, v4")
        A(f"s_lshl_b32 s82, s82, 7\ns_lshl_b32 s83, {sH}, 3\ns_add_u32 s83, s83, {sC}\ns_mul_i32 s83, s83, {32*1152}\ns_add_u32 s82, s82, s83")
        for t in range(8):
            if t & 3: A(f"s_add_u32 s83, s82, {8*(t&3)*1152}")
            A(f"buffer_load_dwordx4 {vr(WO+4*t)}, v4, {rWO}, {'s83' if t & 3 else 's82'} offen offset:{(t>>2)*1152} {wpol}")
    if P["wo"] == "early":
        A("s_branch L_pre_done\nL_pre_wo:")
        wo_loads("L_pre_done")
    A("L_pre_done:")
    A("s_barrier")
    A("v_and_b32 v1, 1, v0\nv_lshlrev_b32 v1, 4, v1\nv_mov_b32 v4, 0xffff\nv_lshlrev_b32 v4, v1, v4\nv_bfe_u32 v5, v0, 1, 2")
    for v in range(4):
        A(f"v_cmp_eq_u32 vcc, {v}, v5\ns_nop 1\nv_cndmask_b32 v{M+v}, 0, v4, vcc")
    A(f"v_bfe_u32 v4, v0, 4, 1\nv_and_b32 v5, 7, v0\nv_lshl_add_u32 v4, v4, 3, v5\nv_lshlrev_b32 v{VPL}, 4, v4")
    A(f"s_cmp_eq_u32 {sW}, 5\ns_cbranch_scc1 L_ln")
    A(f"s_cmp_lg_u32 {sI}, 0\ns_cbranch_scc1 L_cons_main\ns_waitcnt vmcnt(0)")
    A("L_ln:")
    stamp(3, 2)
    A("s_waitcnt vmcnt(23)")
    stamp(5, 2)
    for k in range(9): A(f"v_lshlrev_b32 v{X+k}, 16, v{X+k}")
    A(f"v_add_f32 v1, v{X}, v{X+1}")
    for k in range(2, 9): A(f"v_add_f32 v1, v1, v{X+k}")
    wave_sum(1, 2)
    A("s_mov_b32 s82, 0x3ae38e39\ns_mov_b32 s83, 0x44100000")
    def div576(v):
        A(f"v_mul_f32 v2, s82, v{v}\nv_fma_f32 v3, -v2, s83, v{v}\nv_fma_f32 v{v}, v3, s82, v2")
    div576(1)
    A(f"v_sub_f32 v2, v{X}, v1\nv_mul_f32 v4, v2, v2")
    for k in range(1, 9): A(f"v_sub_f32 v2, v{X+k}, v1\nv_fmac_f32 v4, v2, v2")
    wave_sum(4, 2)
    div576(4)
    rbf(1, 1); rbf(4, 4)
    A("v_add_f32 v4, 0x3727c5ac, v4"); rbf(4, 4)
    A("v_sqrt_f32 v5, v4\ns_nop 0\nv_rcp_f32 v6, v5\nv_fma_f32 v3, -v5, v5, v4\nv_mul_f32 v6, 0.5, v6\nv_fma_f32 v5, v3, v6, v5")
    rbf(5, 5)
    A("v_rcp_f32 v6, v5")
    def norm(r):
        A(f"v_sub_f32 v2, v{r}, v1"); rbf(2, 2)
        A(f"v_mul_f32 v3, v2, v6\nv_fma_f32 v4, -v3, v5, v2\nv_fma_f32 v3, v4, v6, v3\nv_cvt_pk_bf16_f32 v{r}, v3, v3")
    A(f"s_cmp_lg_u32 {sI}, 0\ns_cbranch_scc1 L_ln_xr")
    for k in range(9): norm(X + k)
    A(f"s_cmp_lg_u32 {sW}, 5\ns_cbranch_scc1 L_ffn")
    A("L_ln_xr:\ns_waitcnt vmcnt(20)")
    for k in range(3):
        A(f"v_lshlrev_b32 v{XR+k}, 16, v{XR+k}"); norm(XR + k)
    A("s_nop 0")
    stamp(6, 2)
    for p in range(18):
        bbuild(XR + p // 8, p % 8, B + 4 * (p & 1))
        A(f"s_waitcnt vmcnt({17 - p + 2})\ns_nop 0")
        mfma(DQ, RG + 4 * p, B + 4 * (p & 1), "0" if p == 0 else None)
    A(f"s_lshl_b32 s82, {sH}, 13\ns_and_b32 s83, {sI}, 3\ns_lshl_b32 s83, s83, 11\ns_add_u32 s82, s82, s83")
    A(f"s_lshr_b32 s83, {sI}, 2\ns_lshl_b32 s83, s83, 8\ns_add_u32 s82, s82, s83")
    A(f"s_waitcnt lgkmcnt(0)\ns_add_u32 {sT}, {sT}, 0x9e3779b9\nv_mov_b32 v{K+1}, {sT}")
    for i in range(4): A(f"v_mov_b32_dpp v{V+i}, v{DQ+i} row_ror:8 row_mask:0xf bank_mask:0xf")
    A(f"v_mov_b32 v{K+3}, {sT}\nv_mov_b32 v{K+5}, {sT}")
    for i in range(4): A(f"v_permlane32_swap_b32 v{V+i}, v{V+4+i}")
    for i in range(4): A(f"v_add_f32 v{K+2*i}, v{DQ+i}, v{V+4+i}")
    A(f"v_mov_b32 v{K+7}, {sT}")
    stamp(7, 2)
    A("s_mov_b64 exec, 0x00ff00ff\ns_waitcnt vmcnt(0)")
    A(f"buffer_store_dwordx4 {vr(K)}, v{VPL}, {rWS}, s82 offen sc1")
    A(f"buffer_store_dwordx4 {vr(K+4)}, v{VPL}, {rWS}, s82 offen offset:1024 sc1")
    A("s_mov_b64 exec, -1")
    stamp(1)
    A(f"s_cmp_eq_u32 {sI}, 0\ns_cbranch_scc1 L_ffn")
    A("L_qgather:")
    A(f"v_lshlrev_b32 v4, 4, v0\ns_lshl_b32 s82, {sH}, 13\ns_add_u32 s83, s82, 0x1000\nv_mov_b32 v6, {sT}")
    A("L_qpoll:")
    for p in range(8):
        A(f"buffer_load_dwordx4 {vr(RG+4*p)}, v4, {rWS}, {'s83' if p >= 4 else 's82'} offen offset:{(p&3)*1024} sc1")
    A("v_mov_b32 v1, 0")
    for p in range(8):
        A(f"s_waitcnt vmcnt({7-p})")
        tagchk(1, (RG + 4 * p + 1, RG + 4 * p + 3))
    A("v_cmp_ne_u32 vcc, 0, v1\ns_cbranch_vccz L_qready\ns_sleep 1")
    spin("L_qpoll")
    A("L_qready:")
    stamp(2)
    for i in (0, 2, 4, 6):
        A(f"v_add_f32 v{RG+i}, v{RG+i}, v{RG+8+i}\nv_add_f32 v{RG+16+i}, v{RG+16+i}, v{RG+24+i}")
    for i in (0, 2, 4, 6): A(f"v_add_f32 v{RG+i}, v{RG+i}, v{RG+16+i}")
    A("v_lshrrev_b32 v4, 3, v0\nv_and_b32 v5, 7, v0\nv_lshl_add_u32 v4, v4, 5, v5\nv_lshlrev_b32 v4, 1, v4")
    A(f"v_cvt_pk_bf16_f32 v{RG}, v{RG}, v{RG+2}\nv_cvt_pk_bf16_f32 v{RG+4}, v{RG+4}, v{RG+6}")
    A(f"ds_write_b16 v4, v{RG} offset:{L_Q}\nds_write_b16_d16_hi v4, v{RG} offset:{L_Q+16}")
    A(f"ds_write_b16 v4, v{RG+4} offset:{L_Q+32}\nds_write_b16_d16_hi v4, v{RG+4} offset:{L_Q+48}")
    A(f"v_mov_b32 v5, 1\ns_waitcnt lgkmcnt(0)\nds_write_b32 v{VZ}, v5 offset:{L_QFLAG}")
    if dyn:
        npool = 4096 - 15 * P["S"] - P["SA"]
        def to_tile():
            if ways == 16:
                na = P["S"] - P["SA"]; lc = ch.bit_length() - 1
                A(f"s_add_u32 s81, s80, {P['SA']}\ns_lshr_b32 s82, s81, {lc}\ns_lshl_b32 s82, s82, {lc+4}\ns_and_b32 s81, s81, {ch-1}\ns_or_b32 s81, s81, s82")
                A(f"s_add_u32 s82, s80, {16*P['S'] - na}\ns_cmp_lt_u32 s80, {na}\ns_cselect_b32 s80, s81, s82")
            else:
                if P["pmul"] > 1:
                    import math
                    assert math.gcd(P["pmul"], npool) == 1
                    A(f"s_mul_i32 s80, s80, {P['pmul']}\ns_mul_hi_u32 s81, s80, {(1 << 32) // npool + 1}\ns_mul_i32 s81, s81, {npool}\ns_sub_u32 s80, s80, s81")
                A(f"s_add_u32 s80, s80, {4096 - npool}")
        ahead = dt + P["AH"]
        A(f"s_movk_i32 s76, {P['S']}\ns_cmp_eq_u32 {sI}, 0\ns_cselect_b32 s76, {P['SA']}, s76\ns_add_u32 s77, s76, 4")
        A(f"s_lshl_b32 s78, {sH}, 8\ns_add_u32 s78, s78, {WS_CNT}\nv_mov_b32 v4, s78\nv_mov_b32 v5, 1\ns_mov_b64 exec, 1")
        def que_write(val):
            A(f"s_and_b32 s82, s79, 31\ns_lshl_b32 s82, s82, 2\ns_add_u32 s79, s79, 1\ns_lshl_b32 s83, s79, 16\ns_or_b32 s83, s83, {val}")
            A(f"v_mov_b32 v1, s82\nv_mov_b32 v2, s83\nds_write_b32 v1, v2 offset:{L_QUE}")
        A("s_mov_b32 s79, s76")
        for k in range(4):
            A(f"L_cl_{k}:\nds_read_b32 v1, v{VZ} offset:{L_FULL}\ns_waitcnt lgkmcnt(0)\nv_readfirstlane_b32 s78, v1")
            A(f"s_add_u32 s78, s78, {ahead}\ns_cmp_le_i32 s76, s78\ns_cbranch_scc1 L_cl_go{k}\ns_sleep 2")
            spin(f"L_cl_{k}")
            A(f"L_cl_go{k}:\nglobal_atomic_add v{20+k}, v4, v5, s[26:27] sc0 sc1")
            A(f"s_add_u32 s76, s76, 1\ns_cmp_lt_u32 s76, s77\ns_cbranch_scc1 L_cl_{(k+1)%4}")
            A(f"s_waitcnt vmcnt(3)\nv_readfirstlane_b32 s80, v{20+(k+1)%4}")
            A(f"s_cmp_ge_u32 s80, {npool}\ns_cbranch_scc1 L_cl_end{k}")
            to_tile()
            que_write("s80")
        A("s_branch L_cl_0")
        for k in range(4):
            A(f"L_cl_end{k}:\ns_waitcnt vmcnt(0)")
            for i in range(3): A(f"v_mov_b32 v{24+i}, v{20+(k+2+i)%4}")
            if k < 3: A("s_branch L_cl_fin")
        A("L_cl_fin:")
        for i in range(3):
            A(f"s_nop 0\nv_readfirstlane_b32 s80, v{24+i}\ns_cmp_ge_u32 s80, {npool}\ns_cbranch_scc1 L_cl_x{i}")
            to_tile()
            que_write("s80")
            A(f"L_cl_x{i}:")
        que_write("0xffff")
        A("s_mov_b64 exec, -1")
    A(f"s_cmp_lg_u32 {sI}, 10\ns_cbranch_scc1 L_e_done\ns_cmp_gt_u32 {sH}, 8\ns_cbranch_scc1 L_e_done")
    srd(rOUT, 22, 1152)
    A("v_lshrrev_b32 v4, 5, v0\nv_and_b32 v5, 3, v0\nv_lshl_add_u32 v4, v4, 2, v5\nv_bfe_u32 v5, v0, 2, 3\nv_lshl_add_u32 v4, v4, 3, v5")
    A(f"v_lshlrev_b32 v2, 1, v4\ns_lshl_b32 s79, {sH}, 7")
    A(f"buffer_load_ushort v3, v2, {rX}, s79 offen")
    A(f"v_lshlrev_b32 v4, 3, v0\ns_lshl_b32 s82, {sH}, 13")
    def gather_sum(lbl, base, dst, slp):
        A(f"s_add_u32 s80, s82, {base}\ns_add_u32 s81, s82, {base + 4096}")
        A(f"{lbl}:")
        for p in range(16): A(f"buffer_load_dwordx2 {vr(RG+2*p, 2)}, v4, {rWS}, {'s81' if p >= 8 else 's80'} offen offset:{512*(p&7)} sc1")
        A("v_mov_b32 v1, 0")
        for p in range(0, 16, 2):
            A(f"s_waitcnt vmcnt({14-p})")
            tagchk(1, (RG + 2 * p + 1, RG + 2 * p + 3))
            if p == 0: A(f"v_add_f32 v{dst}, v{RG}, v{RG+2}")
            else: A(f"v_add_f32 v{dst}, v{dst}, v{RG+2*p}\nv_add_f32 v{dst}, v{dst}, v{RG+2*p+2}")
        A(f"v_cmp_ne_u32 vcc, 0, v1\ns_cbranch_vccz {lbl}_ok")
        if slp: A(f"s_sleep {slp}")
        spin(lbl)
        A(f"{lbl}_ok:")
    gather_sum("L_f_ffn", WS_F, 22, 16)
    rbf(22, 22)
    A(f"v_mul_f32 v5, {hex(LOG2E ^ 0x80000000)}, v22\nv_exp_f32 v5, v5\ns_nop 0\nv_add_f32 v5, 1.0, v5\nv_rcp_f32 v5, v5\ns_nop 0\nv_mul_f32 v22, v22, v5")
    rbf(22, 22)
    A("v_lshlrev_b32 v3, 16, v3")
    A(f"L_f_wait:\nds_read_b64 v[24:25], v{VZ} offset:{L_FULL}\ns_waitcnt lgkmcnt(0)\nv_cmp_ge_i32 vcc, v24, v25\ns_cbranch_vccnz L_f_go\ns_sleep 4")
    spin("L_f_wait")
    A("L_f_go:")
    gather_sum("L_f_att", WS_Y, 23, P.get("fsleep", 0))
    rbf(23, 23)
    A("v_mul_f32 v23, v23, v22"); rbf(23, 23)
    A(f"v_add_f32 v23, v23, v3\nv_cvt_pk_bf16_f32 v23, v23, v23\nbuffer_store_short v23, v2, {rOUT}, s79 offen")
    A(f"s_cmp_lg_u32 {sH}, 0\ns_cbranch_scc1 L_e_done")
    A(f"s_mov_b64 exec, 1\nv_mov_b32 v4, {WS_EPOCH}\nglobal_store_dword v4, v6, s[26:27] sc1\ns_mov_b64 exec, -1\ns_branch L_e_done")

    A("L_cons_main:")
    A("v_and_b32 v1, 15, v0\nv_lshrrev_b32 v4, 4, v0\nv_xor_b32 v5, v1, v4\nv_lshlrev_b32 v5, 4, v5")
    A(f"v_lshl_add_u32 v{KA}, v1, 8, v5")
    for ks in range(1, 4): A(f"v_xor_b32 v{KA+ks}, {64*ks}, v{KA}")
    A(f"v_lshlrev_b32 v5, 4, v1\nv_lshl_add_u32 v{VA}, v4, 10, v5")
    A(f"v_mov_b32 v{Vm}, 0xff800000\nv_mov_b32 v{VmL}, 0xff800000\nv_mov_b32 v{Vl}, 0")
    for i in range(4): A(f"v_mov_b32 v{O+i}, 0")
    A(f"s_lshl_b32 s82, {sC}, 2\nv_mov_b32 v{VDA}, s82")
    A("v_bfe_u32 v5, v0, 3, 1\nv_lshlrev_b32 v5, 8, v5\nv_lshl_add_u32 v5, v4, 4, v5")
    A(f"s_mov_b32 s72, {hex(SCALE)}\ns_mov_b32 s73, {hex(LOG2E)}\ns_mov_b32 s74, 0xffff0000")
    A(f"s_mov_b32 s76, {sC}\ns_lshl_b32 s77, {sC}, 13\ns_add_u32 s77, s77, {RING0}\ns_mov_b32 s78, 0")
    A(f"L_qwait:\nds_read_b32 v1, v{VZ} offset:{L_QFLAG}\ns_waitcnt lgkmcnt(0)\nv_readfirstlane_b32 s79, v1")
    A("s_cmp_lg_u32 s79, 0\ns_cbranch_scc1 L_qgo\ns_sleep 1")
    spin("L_qwait")
    A("L_qgo:")
    for ks in range(4): A(f"ds_read_b128 {vr(Q+4*ks)}, v5 offset:{L_Q + 64*ks}")
    A("s_waitcnt lgkmcnt(0)")
    stamp(4)
    A("L_c_top:\ns_cmp_lt_i32 s76, s78\ns_cbranch_scc1 L_c_go")
    A(f"L_c_poll:\nds_read_b64 v[22:23], v{VZ} offset:{L_FULL}\ns_waitcnt lgkmcnt(0)")
    A("v_readfirstlane_b32 s78, v22\nv_readfirstlane_b32 s79, v23")
    A("s_cmp_lt_i32 s76, s78\ns_cbranch_scc1 L_c_go\ns_cmp_ge_i32 s76, s79\ns_cbranch_scc1 L_c_exit")
    if P["sleep"]: A(f"s_sleep {P['sleep']}")
    spin("L_c_poll")
    A("L_c_go:")
    for ks in range(4):
        A(f"v_add_u32 v{AD+ks}, s77, v{KA+ks}\nds_read_b128 {vr(K+4*ks)}, v{AD+ks}")
    A(f"v_add_u32 v{AD+4}, s77, v{VA}")
    for r in range(4): A(f"ds_read_b128 {vr(V+4*r)}, v{AD+4} offset:{4096 + 256*r}")
    A("s_add_u32 s76, s76, 1\nv_mov_b32 v22, s76")
    for ks in range(4):
        A(f"s_waitcnt lgkmcnt({7-ks})")
        mfma(S, K + 4 * ks, Q + 4 * ks, "0" if ks == 0 else None)
    A(f"s_add_u32 s76, s76, 3\ns_add_u32 s77, s77, 0x8000\ns_sub_u32 s79, s77, {NS*8192}")
    A(f"s_cmp_ge_u32 s77, {RING0 + NS*8192}\ns_cselect_b32 s77, s79, s77")
    A(f"s_waitcnt lgkmcnt(0)\nds_write_b32 v{VDA}, v22 offset:{L_DONE}\ns_nop 0")
    for rep in range(2):
        A(f"v_cvt_pk_bf16_f32 v{PP}, v{S}, v{S+1}\nv_cvt_pk_bf16_f32 v{PP+1}, v{S+2}, v{S+3}")
        A(f"v_lshlrev_b32 v{S}, 16, v{PP}\nv_and_b32 v{S+1}, s74, v{PP}\nv_lshlrev_b32 v{S+2}, 16, v{PP+1}\nv_and_b32 v{S+3}, s74, v{PP+1}")
        if rep == 0:
            for i in range(4): A(f"v_mul_f32 v{S+i}, s72, v{S+i}")
    A(f"v_max3_f32 v22, v{S}, v{S+1}, v{S+2}\nv_max_f32 v22, v22, v{S+3}")
    A(f"v_cmp_gt_f32 vcc, v22, v{Vm}\ns_cbranch_vccnz L_c_rescale\nL_c_cont:")
    for i in range(4): A(f"v_fma_f32 v{PP+i}, v{S+i}, s73, -v{VmL}")
    for i in range(4): A(f"v_exp_f32 v{PP+i}, v{PP+i}")
    for i in range(4):
        A(f"v_cvt_pk_bf16_f32 v22, v{PP+i}, v{PP+i}")
        for v in range(4): A(f"v_and_b32 v{B+4*i+v}, v22, v{M+v}")
        A(f"v_add_f32 v{Vl}, v{Vl}, v{PP+i}")
        if i > 0: mfma(O, V + 4 * (i - 1), B + 4 * (i - 1))
    A("s_nop 0")
    mfma(O, V + 12, B + 12)
    A("s_branch L_c_top")
    A("L_c_rescale:")
    for op in ("v_permlane16_swap_b32", "v_permlane32_swap_b32"):
        A(f"v_mov_b32 v23, v22\ns_nop 1\n{op} v23, v22\nv_max_f32 v22, v22, v23")
    A(f"v_max_f32 v{Vm}, v{Vm}, v22\nv_mul_f32 v22, s73, v{Vm}\nv_sub_f32 v23, v{VmL}, v22\nv_exp_f32 v23, v23\nv_mov_b32 v{VmL}, v22")
    A(f"v_mul_f32 v{Vl}, v{Vl}, v23")
    for i in range(4): A(f"v_mul_f32 v{O+i}, v{O+i}, v23")
    A("s_branch L_c_cont")
    A("L_c_exit:")
    stamp(5)
    if P["wo"] == "exit":
        wo_loads("L_e_merge")
        A("L_e_merge:")
    for op in ("v_permlane16_swap_b32", "v_permlane32_swap_b32"):
        A(f"v_mov_b32 v23, v{Vl}\ns_nop 1\n{op} v23, v{Vl}\nv_add_f32 v{Vl}, v{Vl}, v23")
    A(f"s_lshl_b32 s82, {sC}, 10\nv_lshl_add_u32 v4, v0, 4, s82\nds_write_b128 v4, {vr(O)} offset:{L_MO}")
    A(f"s_lshl_b32 s82, {sC}, 9\nv_lshl_add_u32 v4, v0, 3, s82\nv_mov_b32 v22, v{VmL}\nv_mov_b32 v23, v{Vl}\nds_write_b64 v4, v[22:23] offset:{L_MML}")
    A(f"v_mov_b32 v1, 1\ns_waitcnt lgkmcnt(0)\ns_mov_b64 exec, 1\nds_add_u32 v{VZ}, v1 offset:{L_QFLAG+4}\ns_mov_b64 exec, -1")
    srd(rWS, 26, 0x200000)
    A(f"s_lshl_b32 s82, {sC}, 8\nv_lshl_add_u32 v4, v0, 2, s82\nv_lshrrev_b32 v5, 5, v0\nv_lshlrev_b32 v5, 6, v5")
    A(f"v_lshlrev_b32 v6, 2, v0")
    A(f"s_lshl_b32 s76, {sH}, 14\ns_lshl_b32 s83, {sC}, 12\ns_add_u32 s76, s76, s83\ns_add_u32 s76, s76, {WS_P}")
    A(f"s_lshl_b32 s83, {sI}, 8\ns_add_u32 s82, s76, s83")
    A(f"s_lshl_b32 s77, {sH}, 10\ns_add_u32 s77, s77, {WS_ML}\ns_lshl_b32 s83, {sI}, 6\ns_add_u32 s83, s83, s77")
    def lds_join(lbl, off):
        A(f"{lbl}:\nds_read_b32 v1, v{VZ} offset:{off}\ns_waitcnt lgkmcnt(0)\nv_cmp_eq_u32 vcc, 4, v1\ns_cbranch_vccnz {lbl}_ok")
        spin(lbl)
        A(f"{lbl}_ok:")
    lds_join("L_e_j1", L_QFLAG + 4)
    for c in range(4): A(f"ds_read_b64 v[{K+2*c}:{K+2*c+1}], v5 offset:{L_MML + 512*c}")
    for c in range(4): A(f"ds_read_b32 v{K+8+c}, v4 offset:{L_MO + 1024*c}")
    A(f"s_waitcnt lgkmcnt(4)\nv_max3_f32 v22, v{K}, v{K+2}, v{K+4}\nv_max_f32 v22, v22, v{K+6}")
    for c in range(4): A(f"v_sub_f32 v{K+2*c}, v{K+2*c}, v22")
    for c in range(4): A(f"v_exp_f32 v{K+2*c}, v{K+2*c}")
    A(f"s_waitcnt lgkmcnt(0)\nv_mul_f32 v1, v{K}, v{K+8}\nv_mul_f32 v23, v{K}, v{K+1}")
    for c in range(1, 4): A(f"v_fmac_f32 v1, v{K+2*c}, v{K+8+c}\nv_fmac_f32 v23, v{K+2*c}, v{K+2*c+1}")
    A("v_min_u32 v1, -2, v1\nv_min_u32 v22, -2, v22\nv_min_u32 v23, -2, v23")
    A(f"buffer_store_dword v1, v6, {rWS}, s82 offen sc1")
    A(f"s_cmp_lg_u32 {sC}, 0\ns_cbranch_scc1 L_e_l1")
    A("v_lshrrev_b32 v5, 3, v5\ns_mov_b32 exec_lo, 1\ns_mov_b32 exec_hi, 1")
    A(f"buffer_store_dwordx2 v[22:23], v5, {rWS}, s83 offen sc1\ns_mov_b64 exec, -1")
    A("L_e_l1:")
    stamp(6)
    A(f"s_sub_u32 s78, {sI}, 1\ns_cmp_gt_u32 s78, 8\ns_cbranch_scc1 L_e_done")
    A("v_and_b32 v4, 15, v0\nv_lshlrev_b32 v4, 6, v4\nv_lshrrev_b32 v5, 5, v0\nv_lshl_add_u32 v4, v5, 3, v4")
    A("L_l1_poll:")
    A(f"buffer_load_dwordx2 v[22:23], v4, {rWS}, s77 offen sc1")
    for p in range(16): A(f"buffer_load_dword v{K+p}, v6, {rWS}, s76 offen offset:{256*p} sc1")
    A("s_waitcnt vmcnt(14)\n" + f"v_max3_u32 v1, v22, v23, v{K}\nv_max_u32 v1, v1, v{K+1}")
    for p in range(2, 16, 2): A(f"s_waitcnt vmcnt({14-p})\nv_max3_u32 v1, v1, v{K+p}, v{K+p+1}")
    A("v_cmp_eq_u32 vcc, -1, v1\ns_cbranch_vccz L_l1_ok")
    spin("L_l1_poll")
    A("L_l1_ok:")
    A("v_mov_b32 v1, v22")
    for r in (8, 4, 2, 1): A(f"s_nop 1\nv_max_f32_dpp v1, v1, v1 row_ror:{r} row_mask:0xf bank_mask:0xf")
    A("v_sub_f32 v22, v22, v1\nv_exp_f32 v22, v22\ns_nop 0\nv_mul_f32 v23, v22, v23")
    for r in (8, 4, 2, 1): A(f"s_nop 1\nv_add_f32_dpp v23, v23, v23 row_ror:{r} row_mask:0xf bank_mask:0xf")
    A("v_rcp_f32 v23, v23\nv_mov_b32 v1, 0\nv_mul_f32 v22, v22, v23\nv_mov_b32 v2, 0\nv_mov_b32 v3, 0\nv_mov_b32 v5, 0")
    acc = (1, 2, 3, 5)
    for p in range(16): A(f"v_fmac_f32_dpp v{acc[p&3]}, v22, v{K+p} row_newbcast:{p} row_mask:0xf bank_mask:0xf")
    A("v_add_f32 v1, v1, v2\nv_add_f32 v3, v3, v5\nv_add_f32 v1, v1, v3\nv_cvt_pk_bf16_f32 v1, v1, v1\ns_nop 1")
    for t in range(8): A(f"v_mov_b32_dpp v{V+t}, v1 row_newbcast:{t} row_mask:0xf bank_mask:0x3")
    for t in range(8): A(f"v_mov_b32_dpp v{V+t}, v1 row_newbcast:{8+t} row_mask:0xf bank_mask:0xc")
    for t in range(8):
        for v in range(4): A(f"v_and_b32 v{B+4*(t&3)+v}, v{V+t}, v{M+v}")
        if t > 0: mfma(S, WO + 4 * (t - 1), B + 4 * ((t - 1) & 3), "0" if t == 1 else None)
    A("s_nop 0")
    mfma(S, WO + 28, B + 12)
    A(f"s_lshl_b32 s82, {sC}, 9\nv_lshrrev_b32 v4, 5, v0\nv_lshl_add_u32 v4, v4, 8, v{VPL}\nv_add_u32 v4, s82, v4\nv_mov_b32 v1, 1")
    exec_valid()
    A(f"s_lshl_b32 s82, s78, 13\ns_lshl_b32 s83, {sH}, 9\ns_add_u32 s82, s82, s83\ns_add_u32 s82, s82, {WS_Y}")
    A(f"ds_write_b128 v4, {vr(S)} offset:{L_Y}\ns_mov_b64 exec, 1\ns_waitcnt lgkmcnt(0)")
    A(f"ds_add_u32 v{VZ}, v1 offset:{L_QFLAG+8}\ns_mov_b64 exec, -1")
    A(f"s_cmp_lg_u32 {sC}, 0\ns_cbranch_scc1 L_e_done")
    A(f"s_add_u32 {sT}, {sT}, 0x9e3779b9\nv_mov_b32 v23, {sT}\nv_lshlrev_b32 v4, 3, v0")
    lds_join("L_e_j2", L_QFLAG + 8)
    for i in range(8): A(f"ds_read_b32 v{K+i}, v6 offset:{L_Y + 256*i}")
    A(f"s_waitcnt lgkmcnt(6)\nv_add_f32 v22, v{K}, v{K+1}")
    for i in range(2, 8): A(f"s_waitcnt lgkmcnt({7-i})\nv_add_f32 v22, v22, v{K+i}")
    A(f"buffer_store_dwordx2 v[22:23], v4, {rWS}, s82 offen sc1")
    A("L_e_done:")
    stamp(7)
    dump_stamps()
    A("L_end:\ns_endpgm")

    A("L_ffn:")
    ACC, DG, DU = 28, 64, 68
    FS = RING0 + 16384
    for i in range(36): A(f"v_mov_b32 v{ACC+i}, 0")
    A(f"s_and_b32 s73, {sH}, 1\ns_lshr_b32 s74, {sC}, 2\ns_and_b32 s74, s74, s73\ns_cbranch_scc1 L_ffn_out")
    A(f"s_mul_i32 s73, s73, 5\ns_lshr_b32 s74, {sH}, 1\ns_mul_i32 s74, s74, 9\ns_add_u32 s73, s73, s74\ns_add_u32 s73, s73, {sC}")
    srd(rWG, 16, 576 * 9216); srd(rWU, 18, 576 * 9216); srd(rWD, 20, 4608 * 1152)
    A("v_lshrrev_b32 v4, 3, v0\nv_and_b32 v5, 7, v0\nv_lshlrev_b32 v5, 4, v5")
    A("v_mul_u32_u24 v2, 0x2400, v4\nv_add_u32 v2, v2, v5\nv_mul_u32_u24 v3, 0x480, v4\nv_add_u32 v3, v3, v5")
    for i in range(8): A(f"v_mov_b32 v{DG+i}, 0")
    A("s_lshl_b32 s74, s73, 7")
    assert FW % 2 == 0
    def gu_load(n):
        A(f"buffer_load_dwordx4 {vr(RG+4*(n%16))}, v2, {rWU if n & 1 else rWG}, s74 offen {wpol}")
        if n & 1: A(f"s_add_u32 s74, s74, {8*9216}")
    for n in range(FW): gu_load(n)
    A("s_mov_b32 s75, 0\nL_ffn_gu:")
    for t in range(8):
        bbuild(X, t, B + 4 * (t & 1))
        for m in range(2):
            n = 2 * t + m
            A(f"s_waitcnt vmcnt({FW-1})")
            gu_load(n + FW)
            mfma(DU if m else DG, RG + 4 * n, B + 4 * (t & 1))
    for k in range(8): A(f"v_mov_b32 v{X+k}, v{X+k+1}")
    A("s_add_u32 s75, s75, 1\ns_cmp_lt_u32 s75, 9\ns_cbranch_scc1 L_ffn_gu")
    A(f"s_mul_i32 s74, s73, {64*1152}")
    def wd_load(n):
        t, ct = divmod(n, 9)
        A(f"buffer_load_dwordx4 {vr(RG+4*(n%16))}, v3, {rWD}, s74 offen offset:{ct*128} {wpol}")
        if ct == 8: A(f"s_add_u32 s74, s74, {8*1152}")
    A("s_waitcnt vmcnt(0)")
    for n in range(FW): wd_load(n)
    A(f"s_lshl_b32 s75, {sC}, 10\ns_add_u32 s75, s75, {FS + 32768}")
    A(f"v_lshrrev_b32 v4, 5, v0\nv_lshl_add_u32 v4, v4, 8, v{VPL}\nv_add_u32 v4, s75, v4")
    exec_valid()
    A(f"ds_write_b128 v4, {vr(DG)}\nds_write_b128 v4, {vr(DU)} offset:512\ns_mov_b64 exec, -1")
    A("v_bfe_u32 v4, v0, 2, 1\nv_lshrrev_b32 v5, 3, v0\nv_lshl_add_u32 v4, v4, 3, v5\nv_and_b32 v5, 3, v0\nv_lshl_add_u32 v4, v4, 2, v5")
    A("v_lshlrev_b32 v4, 2, v4\nv_add_u32 v4, s75, v4\ns_waitcnt lgkmcnt(0)")
    A("ds_read_b32 v64, v4\nds_read_b32 v65, v4 offset:256\nds_read_b32 v66, v4 offset:512\nds_read_b32 v67, v4 offset:768")
    A("s_waitcnt lgkmcnt(0)\nv_add_f32 v64, v64, v65\nv_add_f32 v66, v66, v67")
    rbf(64, 64); rbf(66, 66)
    A(f"v_mul_f32 v64, {hex(LOG2E ^ 0x80000000)}, v64\nv_exp_f32 v64, v64\ns_nop 0\nv_add_f32 v64, 1.0, v64\nv_rcp_f32 v64, v64\ns_nop 0")
    rbf(64, 64)
    A(f"v_mul_f32 v64, v64, v66\nv_cvt_pk_bf16_f32 v{X}, v64, v64\ns_nop 1")
    for n in range(72):
        t, ct = divmod(n, 9)
        if ct == 0: bbuild(X, t, B + 4 * (t & 1))
        A(f"s_waitcnt vmcnt({min(FW-1, 71-n)})")
        if n + FW < 72: wd_load(n + FW)
        else: A("s_nop 0")
        mfma(ACC + 4 * ct, RG + 4 * (n % 16), B + 4 * (t & 1))
    A("L_ffn_out:")
    A(f"s_mul_i32 s75, {sC}, 4608\ns_add_u32 s75, s75, {FS}")
    A(f"v_lshrrev_b32 v4, 5, v0\nv_mul_u32_u24 v4, 0x900, v4\nv_add3_u32 v4, v4, v{VPL}, s75\ns_nop 4")
    exec_valid()
    for ct in range(9): A(f"ds_write_b128 v4, {vr(ACC+4*ct)} offset:{ct*256}")
    A("s_mov_b64 exec, -1\ns_waitcnt lgkmcnt(0)\ns_barrier")
    A(f"s_cmp_gt_u32 {sC}, 2\ns_cbranch_scc1 L_ffn_done")
    A(f"s_lshl_b32 s75, {sC}, 6\nv_add_u32 v4, s75, v0\nv_cmp_gt_u32 vcc, 0x90, v4\ns_and_saveexec_b64 s[82:83], vcc")
    A(f"v_lshlrev_b32 v5, 4, v4\nv_add_u32 v5, {FS}, v5")
    for s_ in range(10): A(f"ds_read_b128 {vr(ACC+4*s_)}, v5 offset:{s_*2304}")
    srd(rWS, 26, 0x200000)
    A(f"v_lshrrev_b32 v5, 4, v4\nv_and_b32 v4, 15, v4\nv_lshlrev_b32 v4, 5, v4\nv_lshl_add_u32 v4, v5, 13, v4")
    A(f"s_lshl_b32 s75, {sH}, 9\ns_add_u32 s75, s75, {WS_F}\ns_waitcnt lgkmcnt(0)\ns_add_u32 s74, {sT}, 0x9e3779b9")
    for s_ in range(1, 10):
        for i in range(4): A(f"v_add_f32 v{ACC+i}, v{ACC+i}, v{ACC+4*s_+i}")
    for i in range(4): A(f"v_mov_b32 v{ACC+8+2*i}, v{ACC+i}\nv_mov_b32 v{ACC+9+2*i}, s74")
    A(f"buffer_store_dwordx4 {vr(ACC+8)}, v4, {rWS}, s75 offen sc1")
    A(f"buffer_store_dwordx4 {vr(ACC+12)}, v4, {rWS}, s75 offen offset:16 sc1")
    A("s_mov_b64 exec, -1")
    A("L_ffn_done:")
    A("s_barrier")
    stamp(3)
    A(f"s_cmp_eq_u32 {sW}, 5\ns_cbranch_scc1 L_qgather\ns_branch L_cons_main")

    errs = hazard.check(L)
    if errs:
        print("\n".join(errs)); raise SystemExit("hazards found")
    lds = RING0 + NS * 8192
    body = "\n".join(x if x.endswith(":") else "    " + x for x in L)
    head = HEADER.replace("@LAUNCH@", f"; @launch grid=(256,1,1) block=({64*NW},1,1) lds={lds}")
    tail = f"""
.section .rodata,"a"
.p2align 6
.amdhsa_kernel {NAME}_kernel
  .amdhsa_next_free_vgpr 228
  .amdhsa_next_free_sgpr 102
  .amdhsa_accum_offset 228
  .amdhsa_group_segment_fixed_size 0
  .amdhsa_kernarg_size 96
  .amdhsa_user_sgpr_count 2
  .amdhsa_user_sgpr_kernarg_segment_ptr 1
  .amdhsa_system_sgpr_workgroup_id_x 1
  .amdhsa_float_denorm_mode_32 3
.end_amdhsa_kernel
"""
    return head + body + tail, lds

if __name__ == "__main__":
    out = sys.argv[1]
    kw = eval("dict(" + (sys.argv[2] if len(sys.argv) > 2 else "") + ")")
    txt, lds = build(**kw)
    open(out, "w").write(txt)
```

```python
import sys, os
sys.path.insert(0, os.path.dirname(os.path.abspath(__file__)))
import hazard

NAME = "recurrent_scan__gqa_block_cached__glu_gated_glu__decode"
HEADER = open(os.path.join(os.path.dirname(os.path.abspath(__file__)), "header.txt")).read()

WS_QP, WS_P, WS_ML, WS_Y, WS_F, WS_CNT, WS_EPOCH, WS_DIAG = 0x0, 0x20000, 0x60000, 0x68000, 0x80000, 0x98000, 0x9c000, 0x100000
L_FULL, L_DONE, L_QFLAG, L_QUE, L_Q, L_MO, L_MML, L_Y, RING0 = 0, 512, 528, 640, 1024, 2048, 6144, 8192, 12288
LOG2E = 0x3FB8AA3B
SCALE = 0x3DB504F3
VALID = "0xff00ff00", "0x00ff00ff"
NW = 6

DEF = dict(F=19, NS=18, FW=6, SN=(264, 263), pol="nt", wpol="nt", diag=False, hmap="div", sleep=1, spin=0x200000,
           dyn=True, S=240, SA=4, AH=6, chunk=1, wo="exit", hrot=0, spread=True, ways=15, pmul=1, dbgt=False)

def build(**kw):
    P = dict(DEF); P.update(kw)
    F, NS, FW, pol, wpol, diag, dyn = P["F"], P["NS"], P["FW"], P["pol"], P["wpol"], P["diag"], P["dyn"]
    L = []
    def A(s):
        for x in s.strip("\n").split("\n"):
            L.append(x.strip())
    sW, sH, sI, sC, sT = "s28", "s29", "s30", "s31", "s100"
    rK, rV, rWS, rX, rWQ, rWO, rWG, rWU, rWD, rOUT = ("s[32:35]", "s[36:39]", "s[40:43]", "s[44:47]", "s[48:51]",
                                                    "s[52:55]", "s[56:59]", "s[60:63]", "s[64:67]", "s[68:71]")
    def srd(r, ptr, n):
        b = int(r[2:r.index(":")])
        A(f"s_mov_b64 s[{b}:{b+1}], s[{ptr}:{ptr+1}]\ns_mov_b32 s{b+2}, {n}\ns_mov_b32 s{b+3}, 0x20000")
    def vr(b, n=4): return f"v[{b}:{b+n-1}]"
    M, KA, VA, VZ, Vm, VmL, Vl, VDA = 8, 12, 16, 17, 18, 19, 20, 21
    O, Q, K, V, S, PP, B, AD, WO, X, XR, RG, DQ = 24, 28, 44, 60, 76, 80, 84, 100, 108, 140, 149, 152, 224
    VPL = 105
    def stamp(k, set_=1):
        if diag and (diag == set_ or k in (0, 1, 2, 4)):
            A(f"s_memrealtime s[{84+2*k}:{85+2*k}]\ns_waitcnt lgkmcnt(0)")
    def dump_stamps():
        if diag:
            A(f"s_mul_i32 s76, s2, {NW}\ns_add_u32 s76, s76, {sW}\ns_lshl_b32 s76, s76, 5\ns_add_u32 s76, s76, {WS_DIAG}")
            A("s_mov_b64 exec, 1\nv_mov_b32 v1, s76")
            for k in range(8):
                A(f"v_mov_b32 v2, s{84+2*k}\nglobal_store_dword v1, v2, s[26:27] offset:{4*k}")
            A("s_mov_b64 exec, -1")
    def dbg_time(slot, inv=False):
        if P["dbgt"]:
            A("s_memrealtime s[98:99]\ns_waitcnt lgkmcnt(0)")
            if inv: A("s_not_b32 s98, s98")
            A(f"s_mov_b64 exec, 1\nv_mov_b32 v106, {4*slot}\nv_mov_b32 v107, s98\nglobal_atomic_umax v106, v107, s[24:25] sc1\ns_mov_b64 exec, -1")
    def spin(lbl):
        A(f"s_sub_u32 s3, s3, 1\ns_cbranch_scc0 {lbl}\ns_endpgm")
    def wave_sum(v, t):
        for r in (8, 4, 2, 1):
            A(f"s_nop 1\nv_add_f32_dpp v{v}, v{v}, v{v} row_ror:{r} row_mask:0xf bank_mask:0xf")
        for op in ("v_permlane16_swap_b32", "v_permlane32_swap_b32"):
            A(f"v_mov_b32 v{t}, v{v}\ns_nop 1\n{op} v{t}, v{v}\nv_add_f32 v{v}, v{v}, v{t}")
    def rbf(d, s):
        A(f"v_cvt_pk_bf16_f32 v{d}, v{s}, v{s}\nv_and_b32 v{d}, 0xffff0000, v{d}")
    def bbuild(src, t, b):
        A(f"v_mov_b32_dpp v7, v{src} row_newbcast:{t} row_mask:0xf bank_mask:0x3\ns_nop 1")
        A(f"v_mov_b32_dpp v7, v{src} row_newbcast:{8+t} row_mask:0xf bank_mask:0xc")
        for v in range(4):
            A(f"v_and_b32 v{b+v}, v7, v{M+v}")
    def mfma(d, a, b, c=None):
        A(f"v_mfma_f32_16x16x32_bf16 {vr(d)}, {vr(a)}, {vr(b)}, {vr(d) if c is None else c}")
    def exec_valid():
        A(f"s_mov_b32 exec_lo, {VALID[1]}\ns_mov_b32 exec_hi, {VALID[0]}")
    def tagchk(acc, regs):
        for r in regs: A(f"v_bitop3_b32 v{acc}, v{acc}, v{r}, v6 bitop3:0xf6")

    A(f"{NAME}_kernel:")
    A("s_cmp_ge_u32 s2, 256\ns_cbranch_scc1 L_end")
    A("s_load_dwordx16 s[4:19], s[0:1], 0\ns_load_dwordx8 s[20:27], s[0:1], 64")
    if diag:
        for k in range(8): A(f"s_mov_b32 s{84+2*k}, 0")
    A("v_lshrrev_b32 v1, 6, v0\nv_and_b32 v0, 63, v0")
    A(f"v_readfirstlane_b32 {sW}, v1")
    if P["hmap"] == "div":
        A(f"s_lshr_b32 {sH}, s2, 4\ns_and_b32 {sI}, s2, 15")
    else:
        A(f"s_and_b32 {sH}, s2, 7\ns_lshl_b32 {sH}, {sH}, 1\ns_bfe_u32 s76, s2, 0x10003\ns_or_b32 {sH}, {sH}, s76\ns_lshr_b32 {sI}, s2, 4")
    A(f"v_mov_b32 v{VZ}, 0\ns_mov_b32 s3, {P['spin']}")
    A(f"s_sub_u32 {sC}, {sW}, 1")
    A(f"s_cmp_lg_u32 {sW}, 0\ns_cbranch_scc1 L_other")
    dt, j0 = (7 + F) // 8, (7 + F) % 8
    ch = P["chunk"]
    assert ch == 0 or all(x % ch == 0 for x in ((P["S"],) if dyn else P["SN"]))
    assert P["AH"] >= 3 and P["SA"] > 2
    A("s_setprio 3")
    A("v_lshrrev_b32 v1, 4, v0\nv_and_b32 v4, 15, v0")
    sp = 3072 if P["spread"] else 0
    LV = 20
    for j in range(4):
        A(f"v_add_u32 v5, {4*j}, v1\nv_xor_b32 v5, v5, v4\nv_lshlrev_b32 v5, 4, v5\nv_lshl_add_u32 v{KA+j}, v1, 8, v5")
        if j and sp: A(f"v_add_u32 v{KA+j}, {sp*j}, v{KA+j}")
    A(f"v_lshlrev_b32 v{LV}, 4, v0")
    for j in range(1, 4): A(f"v_add_u32 v{LV+j}, {sp*j}, v{LV}")
    A("v_lshlrev_b32 v6, 3, v0")
    A(f"v_mov_b32 v2, {-dt}\nv_bfrev_b32 v3, -2")
    A(f"ds_write_b64 v6, v[2:3] offset:{L_FULL}")
    A(f"v_lshlrev_b32 v1, 2, v0\nds_write_b32 v1, v{VZ} offset:{L_DONE}")
    A(f"ds_read_b128 v[8:11], v{VZ} offset:{L_DONE}")
    if dyn:
        A(f"s_movk_i32 s78, {P['S']}")
    else:
        A(f"s_movk_i32 s78, {P['SN'][0]}\ns_bitcmp1_b32 {sH}, 0\ns_cselect_b32 s78, {P['SN'][1]}, s78")
    ways = P["ways"]
    if ways == 16:
        assert dyn and ch
        A(f"s_mul_i32 s76, {sI}, {ch}\ns_movk_i32 s77, {15*ch+1}")
        A(f"s_cmp_eq_u32 {sI}, 0\ns_cselect_b32 s78, {P['SA']}, s78")
    else:
        if ch:
            A(f"s_sub_u32 s76, {sI}, 1\ns_mul_i32 s76, s76, {ch}\ns_movk_i32 s77, {14*ch+1}")
        else:
            A(f"s_sub_u32 s76, {sI}, 1\ns_mul_i32 s76, s76, s78\ns_mov_b32 s77, 1")
        A(f"s_cmp_lg_u32 {sI}, 0\ns_cbranch_scc1 L_ld_sched")
        A("s_mul_i32 s76, s78, 15\ns_mov_b32 s77, 1")
        A(f"s_movk_i32 s78, {P['SA']}" if dyn else "s_sub_u32 s78, 4096, s76")
        A("L_ld_sched:")
    A(f"s_mul_i32 s71, {sH}, {P['hrot']}\ns_add_u32 s76, s76, s71\ns_lshl_b32 s72, {sH}, 24")
    A(f"s_mov_b32 s79, 0\ns_mov_b32 s80, {RING0}\ns_mov_b32 s81, {1-NS}")
    A("s_waitcnt lgkmcnt(0)")
    srd(rK, 6, 0x10000000); srd(rV, 8, 0x10000000)
    stamp(0)
    def tile_loads():
        if P["spread"]:
            A("s_and_b32 s75, s76, 0xffc\ns_lshl_b32 s75, s75, 12\ns_or_b32 s75, s75, s72\ns_and_b32 s83, s76, 3\ns_lshl_b32 s83, s83, 10\ns_or_b32 s75, s75, s83")
        else:
            A("s_and_b32 s75, s76, 0xfff\ns_lshl_b32 s75, s75, 12\ns_or_b32 s75, s75, s72")
        for j in range(8):
            if j == 4: A("s_add_u32 m0, s80, 0x1000")
            A(f"s_waitcnt vmcnt({F-1})")
            if j < 4: A(f"buffer_load_dwordx4 v{KA+j}, {rK}, s75 offen offset:{j*1024} {pol} lds")
            else: A(f"buffer_load_dwordx4 v{LV+j-4}, {rV}, s75 offen offset:{(j-4)*1024} {pol} lds")
            if j == j0:
                A(f"v_add_u32 v2, 1, v2\nds_write_b64 v6, v[2:3] offset:{L_FULL}")
        A("s_add_u32 s80, s80, 0x2000")
        A(f"s_cmp_eq_u32 s80, {RING0 + NS*8192}\ns_cselect_b32 s80, {RING0}, s80")
        A("s_add_u32 s81, s81, 1\ns_add_u32 s79, s79, 1")
    A("L_ld_loop:")
    A("s_waitcnt lgkmcnt(0)\nv_min3_u32 v4, v8, v9, v10\nv_min_u32 v4, v4, v11")
    A("s_mov_b32 m0, s80\nv_readfirstlane_b32 s82, v4")
    A(f"ds_read_b128 v[8:11], v{VZ} offset:{L_DONE}")
    A("s_cmp_lt_i32 s82, s81\ns_cbranch_scc1 L_ld_full")
    tile_loads()
    if ch > 1:
        A(f"s_and_b32 s83, s79, {ch-1}\ns_cselect_b32 s83, 1, s77\ns_add_u32 s76, s76, s83")
    else:
        A("s_add_u32 s76, s76, s77")
    A("s_cmp_eq_u32 s79, 2\ns_cbranch_scc1 L_ld_bar")
    A("s_cmp_lt_u32 s79, s78\ns_cbranch_scc1 L_ld_loop")
    if dyn:
        def que_read(n):
            A(f"s_and_b32 s83, {n}, 31\ns_lshl_b32 s83, s83, 2\nv_mov_b32 v5, s83\nds_read_b32 v7, v5 offset:{L_QUE}")
        stamp(3)
        A("L_ld_dre:")
        que_read("s79")
        A("L_ld_dyn:")
        A("s_waitcnt lgkmcnt(0)\nv_min3_u32 v4, v8, v9, v10\nv_min_u32 v4, v4, v11\nv_readfirstlane_b32 s73, v7")
        A("s_mov_b32 m0, s80\nv_readfirstlane_b32 s82, v4")
        A(f"ds_read_b128 v[8:11], v{VZ} offset:{L_DONE}")
        A("s_add_u32 s74, s79, 1\ns_lshr_b32 s75, s73, 16\ns_cmp_lg_u32 s75, s74\ns_cbranch_scc1 L_ld_dfull")
        A("s_cmp_lt_i32 s82, s81\ns_cbranch_scc1 L_ld_dfull")
        A("s_and_b32 s73, s73, 0xffff\ns_cmp_ge_u32 s73, 0x1000\ns_cbranch_scc1 L_ld_drain")
        A("s_add_u32 s76, s73, s71")
        que_read("s74")
        tile_loads()
        A("s_branch L_ld_dyn")
    A("L_ld_drain:")
    stamp(1)
    A("v_mov_b32 v3, s79")
    for r in range(dt - 1, -1, -1):
        A(f"s_waitcnt vmcnt({8*r})\nv_add_u32 v2, 1, v2\nds_write_b64 v6, v[2:3] offset:{L_FULL}")
    stamp(2)
    dbg_time(2)
    if diag: A(f"s_mov_b32 s94, s79\ns_sub_u32 s96, {P['spin']}, s3")
    dump_stamps()
    A("s_endpgm")
    A("L_ld_full:")
    spin("L_ld_loop")
    if dyn:
        A("L_ld_dfull:")
        spin("L_ld_dre")
    A("L_ld_bar:\ns_waitcnt lgkmcnt(0)\ns_barrier")
    A(f"s_cmp_lg_u32 {sI}, 0\ns_cbranch_scc1 L_ld_loop\ns_barrier\ns_barrier\ns_branch L_ld_loop")

    A("L_other:")
    A("s_waitcnt lgkmcnt(0)")
    srd(rX, 4, 1152); srd(rWS, 26, 0x200000)
    if P["dbgt"]:
        A(f"s_cmp_lg_u32 {sW}, 4\ns_cbranch_scc1 L_dbg0")
        dbg_time(0, True)
        A("L_dbg0:")
    A(f"s_load_dword {sT}, s[26:27], {WS_EPOCH}")
    stamp(0)
    A(f"s_cmp_eq_u32 {sW}, 5\ns_cbranch_scc1 L_xload")
    if P["wo"] == "early":
        A(f"s_cmp_lg_u32 {sI}, 0\ns_cbranch_scc1 L_pre_wo")
    else:
        A(f"s_cmp_lg_u32 {sI}, 0\ns_cbranch_scc1 L_pre_done")
    A("L_xload:")
    A("v_and_b32 v1, 7, v0\nv_lshrrev_b32 v4, 3, v0\nv_lshl_add_u32 v5, v1, 3, v4\nv_lshlrev_b32 v5, 1, v5")
    for k in range(9): A(f"buffer_load_ushort v{X+k}, v5, {rX}, 0 offen offset:{128*k}")
    A(f"s_cmp_lg_u32 {sW}, 5\ns_cbranch_scc1 L_pre_done")
    A(f"s_and_b32 s82, {sI}, 3\ns_mul_i32 s82, s82, 288")
    for k in range(3): A(f"buffer_load_ushort v{XR+k}, v5, {rX}, s82 offen offset:{128*k}")
    srd(rWQ, 10, 576 * 8192)
    A("v_lshlrev_b32 v5, 4, v1\nv_lshl_add_u32 v5, v4, 13, v5")
    A(f"s_lshl_b32 s82, s82, 12\ns_lshl_b32 s83, {sH}, 9\ns_add_u32 s82, s82, s83")
    A(f"s_lshr_b32 s83, {sI}, 2\ns_lshl_b32 s83, s83, 7\ns_add_u32 s82, s82, s83")
    for p in range(18):
        A(f"buffer_load_dwordx4 {vr(RG+4*p)}, v5, {rWQ}, s82 offen {wpol}")
        if p < 17: A("s_add_u32 s82, s82, 0x10000")
    A("v_mov_b32 v24, -1\nv_mov_b32 v25, -1\nv_mov_b32 v26, -1\nv_mov_b32 v27, -1")
    A("v_lshrrev_b32 v5, 4, v0\nv_and_b32 v6, 15, v0\nv_lshlrev_b32 v6, 4, v6\nv_lshl_add_u32 v5, v5, 12, v6")
    A(f"s_lshl_b32 s82, {sH}, 14\ns_lshl_b32 s83, {sI}, 8\ns_add_u32 s82, s82, s83\ns_add_u32 s82, s82, {WS_P}")
    A(f"buffer_store_dwordx4 v[24:27], v5, {rWS}, s82 offen sc1")
    A("s_mov_b64 exec, 1")
    A(f"s_lshl_b32 s82, {sH}, 10\ns_lshl_b32 s83, {sI}, 6\ns_add_u32 s82, s82, s83\ns_add_u32 s82, s82, {WS_ML}")
    A(f"buffer_store_dwordx4 v[24:27], v6, {rWS}, s82 offen sc1")
    if dyn:
        A(f"s_cmp_lg_u32 {sI}, 0\ns_cbranch_scc1 L_clr_done")
        A(f"s_lshl_b32 s82, {sH}, 8\ns_add_u32 s82, s82, {WS_CNT}\nbuffer_store_dword v{VZ}, v6, {rWS}, s82 offen sc1")
        A("L_clr_done:")
    A("s_mov_b64 exec, -1")
    def wo_loads(skip):
        A(f"s_sub_u32 s82, {sI}, 1\ns_cmp_gt_u32 s82, 8\ns_cbranch_scc1 {skip}")
        srd(rWO, 12, 4096 * 1152)
        A("v_lshrrev_b32 v4, 5, v0\nv_lshlrev_b32 v4, 7, v4\nv_bfe_u32 v5, v0, 3, 2\nv_lshl_add_u32 v4, v5, 1, v4")
        A("v_mul_u32_u24 v4, 0x480, v4\nv_and_b32 v5, 7, v0\nv_lshl_add_u32 v4, v5, 4, v4")
        A(f"s_lshl_b32 s82, s82, 7\ns_lshl_b32 s83, {sH}, 3\ns_add_u32 s83, s83, {sC}\ns_mul_i32 s83, s83, {32*1152}\ns_add_u32 s82, s82, s83")
        for t in range(8):
            if t & 3: A(f"s_add_u32 s83, s82, {8*(t&3)*1152}")
            A(f"buffer_load_dwordx4 {vr(WO+4*t)}, v4, {rWO}, {'s83' if t & 3 else 's82'} offen offset:{(t>>2)*1152} {wpol}")
    if P["wo"] == "early":
        A("s_branch L_pre_done\nL_pre_wo:")
        wo_loads("L_pre_done")
    A("L_pre_done:")
    A("s_barrier")
    A("v_and_b32 v1, 1, v0\nv_lshlrev_b32 v1, 4, v1\nv_mov_b32 v4, 0xffff\nv_lshlrev_b32 v4, v1, v4\nv_bfe_u32 v5, v0, 1, 2")
    for v in range(4):
        A(f"v_cmp_eq_u32 vcc, {v}, v5\ns_nop 1\nv_cndmask_b32 v{M+v}, 0, v4, vcc")
    A(f"v_bfe_u32 v4, v0, 4, 1\nv_and_b32 v5, 7, v0\nv_lshl_add_u32 v4, v4, 3, v5\nv_lshlrev_b32 v{VPL}, 4, v4")
    A(f"s_cmp_eq_u32 {sW}, 5\ns_cbranch_scc1 L_ln")
    A(f"s_cmp_lg_u32 {sI}, 0\ns_cbranch_scc1 L_cons_main\ns_waitcnt vmcnt(0)")
    A("L_ln:")
    stamp(3, 2)
    A("s_waitcnt vmcnt(23)")
    stamp(5, 2)
    for k in range(9): A(f"v_lshlrev_b32 v{X+k}, 16, v{X+k}")
    A(f"v_add_f32 v1, v{X}, v{X+1}")
    for k in range(2, 9): A(f"v_add_f32 v1, v1, v{X+k}")
    wave_sum(1, 2)
    A("s_mov_b32 s82, 0x3ae38e39\ns_mov_b32 s83, 0x44100000")
    def div576(v):
        A(f"v_mul_f32 v2, s82, v{v}\nv_fma_f32 v3, -v2, s83, v{v}\nv_fma_f32 v{v}, v3, s82, v2")
    div576(1)
    A(f"v_sub_f32 v2, v{X}, v1\nv_mul_f32 v4, v2, v2")
    for k in range(1, 9): A(f"v_sub_f32 v2, v{X+k}, v1\nv_fmac_f32 v4, v2, v2")
    wave_sum(4, 2)
    div576(4)
    rbf(1, 1); rbf(4, 4)
    A("v_add_f32 v4, 0x3727c5ac, v4"); rbf(4, 4)
    A("v_sqrt_f32 v5, v4\ns_nop 0\nv_rcp_f32 v6, v5\nv_fma_f32 v3, -v5, v5, v4\nv_mul_f32 v6, 0.5, v6\nv_fma_f32 v5, v3, v6, v5")
    rbf(5, 5)
    A("v_rcp_f32 v6, v5")
    def norm(r):
        A(f"v_sub_f32 v2, v{r}, v1"); rbf(2, 2)
        A(f"v_mul_f32 v3, v2, v6\nv_fma_f32 v4, -v3, v5, v2\nv_fma_f32 v3, v4, v6, v3\nv_cvt_pk_bf16_f32 v{r}, v3, v3")
    A(f"s_cmp_lg_u32 {sI}, 0\ns_cbranch_scc1 L_ln_xr")
    for k in range(9): norm(X + k)
    A(f"s_cmp_lg_u32 {sW}, 5\ns_cbranch_scc1 L_ffn")
    A("L_ln_xr:\ns_waitcnt vmcnt(20)")
    for k in range(3):
        A(f"v_lshlrev_b32 v{XR+k}, 16, v{XR+k}"); norm(XR + k)
    A("s_nop 0")
    stamp(6, 2)
    for p in range(18):
        bbuild(XR + p // 8, p % 8, B + 4 * (p & 1))
        A(f"s_waitcnt vmcnt({17 - p + 2})\ns_nop 0")
        mfma(DQ, RG + 4 * p, B + 4 * (p & 1), "0" if p == 0 else None)
    A(f"s_lshl_b32 s82, {sH}, 13\ns_and_b32 s83, {sI}, 3\ns_lshl_b32 s83, s83, 11\ns_add_u32 s82, s82, s83")
    A(f"s_lshr_b32 s83, {sI}, 2\ns_lshl_b32 s83, s83, 8\ns_add_u32 s82, s82, s83")
    A(f"s_waitcnt lgkmcnt(0)\ns_add_u32 {sT}, {sT}, 0x9e3779b9\nv_mov_b32 v{K+1}, {sT}")
    for i in range(4): A(f"v_mov_b32_dpp v{V+i}, v{DQ+i} row_ror:8 row_mask:0xf bank_mask:0xf")
    A(f"v_mov_b32 v{K+3}, {sT}\nv_mov_b32 v{K+5}, {sT}")
    for i in range(4): A(f"v_permlane32_swap_b32 v{V+i}, v{V+4+i}")
    for i in range(4): A(f"v_add_f32 v{K+2*i}, v{DQ+i}, v{V+4+i}")
    A(f"v_mov_b32 v{K+7}, {sT}")
    stamp(7, 2)
    A("s_mov_b64 exec, 0x00ff00ff\ns_waitcnt vmcnt(0)")
    A(f"buffer_store_dwordx4 {vr(K)}, v{VPL}, {rWS}, s82 offen sc1")
    A(f"buffer_store_dwordx4 {vr(K+4)}, v{VPL}, {rWS}, s82 offen offset:1024 sc1")
    A("s_mov_b64 exec, -1")
    stamp(1)
    A(f"s_cmp_eq_u32 {sI}, 0\ns_cbranch_scc1 L_ffn")
    A("L_qgather:")
    A(f"v_lshlrev_b32 v4, 4, v0\ns_lshl_b32 s82, {sH}, 13\ns_add_u32 s83, s82, 0x1000\nv_mov_b32 v6, {sT}")
    A("L_qpoll:")
    for p in range(8):
        A(f"buffer_load_dwordx4 {vr(RG+4*p)}, v4, {rWS}, {'s83' if p >= 4 else 's82'} offen offset:{(p&3)*1024} sc1")
    A("v_mov_b32 v1, 0")
    for p in range(8):
        A(f"s_waitcnt vmcnt({7-p})")
        tagchk(1, (RG + 4 * p + 1, RG + 4 * p + 3))
    A("v_cmp_ne_u32 vcc, 0, v1\ns_cbranch_vccz L_qready\ns_sleep 1")
    spin("L_qpoll")
    A("L_qready:")
    stamp(2)
    for i in (0, 2, 4, 6):
        A(f"v_add_f32 v{RG+i}, v{RG+i}, v{RG+8+i}\nv_add_f32 v{RG+16+i}, v{RG+16+i}, v{RG+24+i}")
    for i in (0, 2, 4, 6): A(f"v_add_f32 v{RG+i}, v{RG+i}, v{RG+16+i}")
    A("v_lshrrev_b32 v4, 3, v0\nv_and_b32 v5, 7, v0\nv_lshl_add_u32 v4, v4, 5, v5\nv_lshlrev_b32 v4, 1, v4")
    A(f"v_cvt_pk_bf16_f32 v{RG}, v{RG}, v{RG+2}\nv_cvt_pk_bf16_f32 v{RG+4}, v{RG+4}, v{RG+6}")
    A(f"ds_write_b16 v4, v{RG} offset:{L_Q}\nds_write_b16_d16_hi v4, v{RG} offset:{L_Q+16}")
    A(f"ds_write_b16 v4, v{RG+4} offset:{L_Q+32}\nds_write_b16_d16_hi v4, v{RG+4} offset:{L_Q+48}")
    A(f"v_mov_b32 v5, 1\ns_waitcnt lgkmcnt(0)\nds_write_b32 v{VZ}, v5 offset:{L_QFLAG}")
    if dyn:
        npool = 4096 - 15 * P["S"] - P["SA"]
        def to_tile():
            if ways == 16:
                na = P["S"] - P["SA"]; lc = ch.bit_length() - 1
                A(f"s_add_u32 s81, s80, {P['SA']}\ns_lshr_b32 s82, s81, {lc}\ns_lshl_b32 s82, s82, {lc+4}\ns_and_b32 s81, s81, {ch-1}\ns_or_b32 s81, s81, s82")
                A(f"s_add_u32 s82, s80, {16*P['S'] - na}\ns_cmp_lt_u32 s80, {na}\ns_cselect_b32 s80, s81, s82")
            else:
                if P["pmul"] > 1:
                    import math
                    assert math.gcd(P["pmul"], npool) == 1
                    A(f"s_mul_i32 s80, s80, {P['pmul']}\ns_mul_hi_u32 s81, s80, {(1 << 32) // npool + 1}\ns_mul_i32 s81, s81, {npool}\ns_sub_u32 s80, s80, s81")
                A(f"s_add_u32 s80, s80, {4096 - npool}")
        ahead = dt + P["AH"]
        A(f"s_movk_i32 s76, {P['S']}\ns_cmp_eq_u32 {sI}, 0\ns_cselect_b32 s76, {P['SA']}, s76\ns_add_u32 s77, s76, 4")
        A(f"s_lshl_b32 s78, {sH}, 8\ns_add_u32 s78, s78, {WS_CNT}\nv_mov_b32 v4, s78\nv_mov_b32 v5, 1\ns_mov_b64 exec, 1")
        def que_write(val):
            A(f"s_and_b32 s82, s79, 31\ns_lshl_b32 s82, s82, 2\ns_add_u32 s79, s79, 1\ns_lshl_b32 s83, s79, 16\ns_or_b32 s83, s83, {val}")
            A(f"v_mov_b32 v1, s82\nv_mov_b32 v2, s83\nds_write_b32 v1, v2 offset:{L_QUE}")
        A("s_mov_b32 s79, s76")
        for k in range(4):
            A(f"L_cl_{k}:\nds_read_b32 v1, v{VZ} offset:{L_FULL}\ns_waitcnt lgkmcnt(0)\nv_readfirstlane_b32 s78, v1")
            A(f"s_add_u32 s78, s78, {ahead}\ns_cmp_le_i32 s76, s78\ns_cbranch_scc1 L_cl_go{k}\ns_sleep 2")
            spin(f"L_cl_{k}")
            A(f"L_cl_go{k}:\nglobal_atomic_add v{20+k}, v4, v5, s[26:27] sc0 sc1")
            A(f"s_add_u32 s76, s76, 1\ns_cmp_lt_u32 s76, s77\ns_cbranch_scc1 L_cl_{(k+1)%4}")
            A(f"s_waitcnt vmcnt(3)\nv_readfirstlane_b32 s80, v{20+(k+1)%4}")
            A(f"s_cmp_ge_u32 s80, {npool}\ns_cbranch_scc1 L_cl_end{k}")
            to_tile()
            que_write("s80")
        A("s_branch L_cl_0")
        for k in range(4):
            A(f"L_cl_end{k}:\ns_waitcnt vmcnt(0)")
            for i in range(3): A(f"v_mov_b32 v{24+i}, v{20+(k+2+i)%4}")
            if k < 3: A("s_branch L_cl_fin")
        A("L_cl_fin:")
        for i in range(3):
            A(f"s_nop 0\nv_readfirstlane_b32 s80, v{24+i}\ns_cmp_ge_u32 s80, {npool}\ns_cbranch_scc1 L_cl_x{i}")
            to_tile()
            que_write("s80")
            A(f"L_cl_x{i}:")
        que_write("0xffff")
        A("s_mov_b64 exec, -1")
    A(f"s_cmp_lg_u32 {sI}, 10\ns_cbranch_scc1 L_e_done\ns_cmp_gt_u32 {sH}, 8\ns_cbranch_scc1 L_e_done")
    srd(rOUT, 22, 1152)
    A("v_lshrrev_b32 v4, 5, v0\nv_and_b32 v5, 3, v0\nv_lshl_add_u32 v4, v4, 2, v5\nv_bfe_u32 v5, v0, 2, 3\nv_lshl_add_u32 v4, v4, 3, v5")
    A(f"v_lshlrev_b32 v2, 1, v4\ns_lshl_b32 s79, {sH}, 7")
    A(f"buffer_load_ushort v3, v2, {rX}, s79 offen")
    A(f"v_lshlrev_b32 v4, 3, v0\ns_lshl_b32 s82, {sH}, 13")
    def gather_sum(lbl, base, dst, slp):
        A(f"s_add_u32 s80, s82, {base}\ns_add_u32 s81, s82, {base + 4096}")
        A(f"{lbl}:")
        for p in range(16): A(f"buffer_load_dwordx2 {vr(RG+2*p, 2)}, v4, {rWS}, {'s81' if p >= 8 else 's80'} offen offset:{512*(p&7)} sc1")
        A("v_mov_b32 v1, 0")
        for p in range(0, 16, 2):
            A(f"s_waitcnt vmcnt({14-p})")
            tagchk(1, (RG + 2 * p + 1, RG + 2 * p + 3))
            if p == 0: A(f"v_add_f32 v{dst}, v{RG}, v{RG+2}")
            else: A(f"v_add_f32 v{dst}, v{dst}, v{RG+2*p}\nv_add_f32 v{dst}, v{dst}, v{RG+2*p+2}")
        A(f"v_cmp_ne_u32 vcc, 0, v1\ns_cbranch_vccz {lbl}_ok")
        if slp: A(f"s_sleep {slp}")
        spin(lbl)
        A(f"{lbl}_ok:")
    gather_sum("L_f_ffn", WS_F, 22, 16)
    rbf(22, 22)
    A(f"v_mul_f32 v5, {hex(LOG2E ^ 0x80000000)}, v22\nv_exp_f32 v5, v5\ns_nop 0\nv_add_f32 v5, 1.0, v5\nv_rcp_f32 v5, v5\ns_nop 0\nv_mul_f32 v22, v22, v5")
    rbf(22, 22)
    A("v_lshlrev_b32 v3, 16, v3")
    A(f"L_f_wait:\nds_read_b64 v[24:25], v{VZ} offset:{L_FULL}\ns_waitcnt lgkmcnt(0)\nv_cmp_ge_i32 vcc, v24, v25\ns_cbranch_vccnz L_f_go\ns_sleep 4")
    spin("L_f_wait")
    A("L_f_go:")
    gather_sum("L_f_att", WS_Y, 23, P.get("fsleep", 0))
    rbf(23, 23)
    A("v_mul_f32 v23, v23, v22"); rbf(23, 23)
    A(f"v_add_f32 v23, v23, v3\nv_cvt_pk_bf16_f32 v23, v23, v23\nbuffer_store_short v23, v2, {rOUT}, s79 offen")
    dbg_time(1)
    A(f"s_cmp_lg_u32 {sH}, 0\ns_cbranch_scc1 L_e_done")
    A(f"s_mov_b64 exec, 1\nv_mov_b32 v4, {WS_EPOCH}\nglobal_store_dword v4, v6, s[26:27] sc1\ns_mov_b64 exec, -1\ns_branch L_e_done")

    A("L_cons_main:")
    A("v_and_b32 v1, 15, v0\nv_lshrrev_b32 v4, 4, v0\nv_xor_b32 v5, v1, v4\nv_lshlrev_b32 v5, 4, v5")
    A(f"v_lshl_add_u32 v{KA}, v1, 8, v5")
    for ks in range(1, 4): A(f"v_xor_b32 v{KA+ks}, {64*ks}, v{KA}")
    A(f"v_lshlrev_b32 v5, 4, v1\nv_lshl_add_u32 v{VA}, v4, 10, v5")
    A(f"v_mov_b32 v{Vm}, 0xff800000\nv_mov_b32 v{VmL}, 0xff800000\nv_mov_b32 v{Vl}, 0")
    for i in range(4): A(f"v_mov_b32 v{O+i}, 0")
    A(f"s_lshl_b32 s82, {sC}, 2\nv_mov_b32 v{VDA}, s82")
    A("v_bfe_u32 v5, v0, 3, 1\nv_lshlrev_b32 v5, 8, v5\nv_lshl_add_u32 v5, v4, 4, v5")
    A(f"s_mov_b32 s72, {hex(SCALE)}\ns_mov_b32 s73, {hex(LOG2E)}\ns_mov_b32 s74, 0xffff0000")
    A(f"s_mov_b32 s76, {sC}\ns_lshl_b32 s77, {sC}, 13\ns_add_u32 s77, s77, {RING0}\ns_mov_b32 s78, 0")
    A(f"L_qwait:\nds_read_b32 v1, v{VZ} offset:{L_QFLAG}\ns_waitcnt lgkmcnt(0)\nv_readfirstlane_b32 s79, v1")
    A("s_cmp_lg_u32 s79, 0\ns_cbranch_scc1 L_qgo\ns_sleep 1")
    spin("L_qwait")
    A("L_qgo:")
    for ks in range(4): A(f"ds_read_b128 {vr(Q+4*ks)}, v5 offset:{L_Q + 64*ks}")
    A("s_waitcnt lgkmcnt(0)")
    stamp(4)
    A("L_c_top:\ns_cmp_lt_i32 s76, s78\ns_cbranch_scc1 L_c_go")
    A(f"L_c_poll:\nds_read_b64 v[22:23], v{VZ} offset:{L_FULL}\ns_waitcnt lgkmcnt(0)")
    A("v_readfirstlane_b32 s78, v22\nv_readfirstlane_b32 s79, v23")
    A("s_cmp_lt_i32 s76, s78\ns_cbranch_scc1 L_c_go\ns_cmp_ge_i32 s76, s79\ns_cbranch_scc1 L_c_exit")
    if P["sleep"]: A(f"s_sleep {P['sleep']}")
    spin("L_c_poll")
    A("L_c_go:")
    for ks in range(4):
        A(f"v_add_u32 v{AD+ks}, s77, v{KA+ks}\nds_read_b128 {vr(K+4*ks)}, v{AD+ks}")
    A(f"v_add_u32 v{AD+4}, s77, v{VA}")
    for r in range(4): A(f"ds_read_b128 {vr(V+4*r)}, v{AD+4} offset:{4096 + 256*r}")
    A("s_add_u32 s76, s76, 1\nv_mov_b32 v22, s76")
    for ks in range(4):
        A(f"s_waitcnt lgkmcnt({7-ks})")
        mfma(S, K + 4 * ks, Q + 4 * ks, "0" if ks == 0 else None)
    A(f"s_add_u32 s76, s76, 3\ns_add_u32 s77, s77, 0x8000\ns_sub_u32 s79, s77, {NS*8192}")
    A(f"s_cmp_ge_u32 s77, {RING0 + NS*8192}\ns_cselect_b32 s77, s79, s77")
    A(f"s_waitcnt lgkmcnt(0)\nds_write_b32 v{VDA}, v22 offset:{L_DONE}\ns_nop 0")
    for rep in range(2):
        A(f"v_cvt_pk_bf16_f32 v{PP}, v{S}, v{S+1}\nv_cvt_pk_bf16_f32 v{PP+1}, v{S+2}, v{S+3}")
        A(f"v_lshlrev_b32 v{S}, 16, v{PP}\nv_and_b32 v{S+1}, s74, v{PP}\nv_lshlrev_b32 v{S+2}, 16, v{PP+1}\nv_and_b32 v{S+3}, s74, v{PP+1}")
        if rep == 0:
            for i in range(4): A(f"v_mul_f32 v{S+i}, s72, v{S+i}")
    A(f"v_max3_f32 v22, v{S}, v{S+1}, v{S+2}\nv_max_f32 v22, v22, v{S+3}")
    A(f"v_cmp_gt_f32 vcc, v22, v{Vm}\ns_cbranch_vccnz L_c_rescale\nL_c_cont:")
    for i in range(4): A(f"v_fma_f32 v{PP+i}, v{S+i}, s73, -v{VmL}")
    for i in range(4): A(f"v_exp_f32 v{PP+i}, v{PP+i}")
    for i in range(4):
        A(f"v_cvt_pk_bf16_f32 v22, v{PP+i}, v{PP+i}")
        for v in range(4): A(f"v_and_b32 v{B+4*i+v}, v22, v{M+v}")
        A(f"v_add_f32 v{Vl}, v{Vl}, v{PP+i}")
        if i > 0: mfma(O, V + 4 * (i - 1), B + 4 * (i - 1))
    A("s_nop 0")
    mfma(O, V + 12, B + 12)
    A("s_branch L_c_top")
    A("L_c_rescale:")
    for op in ("v_permlane16_swap_b32", "v_permlane32_swap_b32"):
        A(f"v_mov_b32 v23, v22\ns_nop 1\n{op} v23, v22\nv_max_f32 v22, v22, v23")
    A(f"v_max_f32 v{Vm}, v{Vm}, v22\nv_mul_f32 v22, s73, v{Vm}\nv_sub_f32 v23, v{VmL}, v22\nv_exp_f32 v23, v23\nv_mov_b32 v{VmL}, v22")
    A(f"v_mul_f32 v{Vl}, v{Vl}, v23")
    for i in range(4): A(f"v_mul_f32 v{O+i}, v{O+i}, v23")
    A("s_branch L_c_cont")
    A("L_c_exit:")
    stamp(5)
    if P["wo"] == "exit":
        wo_loads("L_e_merge")
        A("L_e_merge:")
    for op in ("v_permlane16_swap_b32", "v_permlane32_swap_b32"):
        A(f"v_mov_b32 v23, v{Vl}\ns_nop 1\n{op} v23, v{Vl}\nv_add_f32 v{Vl}, v{Vl}, v23")
    A(f"s_lshl_b32 s82, {sC}, 10\nv_lshl_add_u32 v4, v0, 4, s82\nds_write_b128 v4, {vr(O)} offset:{L_MO}")
    A(f"s_lshl_b32 s82, {sC}, 9\nv_lshl_add_u32 v4, v0, 3, s82\nv_mov_b32 v22, v{VmL}\nv_mov_b32 v23, v{Vl}\nds_write_b64 v4, v[22:23] offset:{L_MML}")
    A(f"v_mov_b32 v1, 1\ns_waitcnt lgkmcnt(0)\ns_mov_b64 exec, 1\nds_add_u32 v{VZ}, v1 offset:{L_QFLAG+4}\ns_mov_b64 exec, -1")
    A(f"s_lshl_b32 s82, {sC}, 8\nv_lshl_add_u32 v4, v0, 2, s82\nv_lshrrev_b32 v5, 5, v0\nv_lshlrev_b32 v5, 6, v5")
    A(f"v_lshlrev_b32 v6, 2, v0")
    A(f"s_lshl_b32 s76, {sH}, 14\ns_lshl_b32 s83, {sC}, 12\ns_add_u32 s76, s76, s83\ns_add_u32 s76, s76, {WS_P}")
    A(f"s_lshl_b32 s83, {sI}, 8\ns_add_u32 s82, s76, s83")
    A(f"s_lshl_b32 s77, {sH}, 10\ns_add_u32 s77, s77, {WS_ML}\ns_lshl_b32 s83, {sI}, 6\ns_add_u32 s83, s83, s77")
    def lds_join(lbl, off):
        A(f"{lbl}:\nds_read_b32 v1, v{VZ} offset:{off}\ns_waitcnt lgkmcnt(0)\nv_cmp_eq_u32 vcc, 4, v1\ns_cbranch_vccnz {lbl}_ok")
        spin(lbl)
        A(f"{lbl}_ok:")
    lds_join("L_e_j1", L_QFLAG + 4)
    for c in range(4): A(f"ds_read_b64 v[{K+2*c}:{K+2*c+1}], v5 offset:{L_MML + 512*c}")
    for c in range(4): A(f"ds_read_b32 v{K+8+c}, v4 offset:{L_MO + 1024*c}")
    A(f"s_waitcnt lgkmcnt(4)\nv_max3_f32 v22, v{K}, v{K+2}, v{K+4}\nv_max_f32 v22, v22, v{K+6}")
    for c in range(4): A(f"v_sub_f32 v{K+2*c}, v{K+2*c}, v22")
    for c in range(4): A(f"v_exp_f32 v{K+2*c}, v{K+2*c}")
    A(f"s_waitcnt lgkmcnt(0)\nv_mul_f32 v1, v{K}, v{K+8}\nv_mul_f32 v23, v{K}, v{K+1}")
    for c in range(1, 4): A(f"v_fmac_f32 v1, v{K+2*c}, v{K+8+c}\nv_fmac_f32 v23, v{K+2*c}, v{K+2*c+1}")
    A("v_min_u32 v1, -2, v1\nv_min_u32 v22, -2, v22\nv_min_u32 v23, -2, v23")
    A(f"buffer_store_dword v1, v6, {rWS}, s82 offen sc1")
    A(f"s_cmp_lg_u32 {sC}, 0\ns_cbranch_scc1 L_e_l1")
    A("v_lshrrev_b32 v5, 3, v5\ns_mov_b32 exec_lo, 1\ns_mov_b32 exec_hi, 1")
    A(f"buffer_store_dwordx2 v[22:23], v5, {rWS}, s83 offen sc1\ns_mov_b64 exec, -1")
    A("L_e_l1:")
    stamp(6)
    A(f"s_sub_u32 s78, {sI}, 1\ns_cmp_gt_u32 s78, 8\ns_cbranch_scc1 L_e_done")
    A("v_and_b32 v4, 15, v0\nv_lshlrev_b32 v4, 6, v4\nv_lshrrev_b32 v5, 5, v0\nv_lshl_add_u32 v4, v5, 3, v4")
    A("L_l1_poll:")
    A(f"buffer_load_dwordx2 v[22:23], v4, {rWS}, s77 offen sc1")
    for p in range(16): A(f"buffer_load_dword v{K+p}, v6, {rWS}, s76 offen offset:{256*p} sc1")
    A("s_waitcnt vmcnt(14)\n" + f"v_max3_u32 v1, v22, v23, v{K}\nv_max_u32 v1, v1, v{K+1}")
    for p in range(2, 16, 2): A(f"s_waitcnt vmcnt({14-p})\nv_max3_u32 v1, v1, v{K+p}, v{K+p+1}")
    A("v_cmp_eq_u32 vcc, -1, v1\ns_cbranch_vccz L_l1_ok")
    spin("L_l1_poll")
    A("L_l1_ok:")
    A("v_mov_b32 v1, v22")
    for r in (8, 4, 2, 1): A(f"s_nop 1\nv_max_f32_dpp v1, v1, v1 row_ror:{r} row_mask:0xf bank_mask:0xf")
    A("v_sub_f32 v22, v22, v1\nv_exp_f32 v22, v22\ns_nop 0\nv_mul_f32 v23, v22, v23")
    for r in (8, 4, 2, 1): A(f"s_nop 1\nv_add_f32_dpp v23, v23, v23 row_ror:{r} row_mask:0xf bank_mask:0xf")
    A("v_rcp_f32 v23, v23\nv_mov_b32 v1, 0\nv_mul_f32 v22, v22, v23\nv_mov_b32 v2, 0\nv_mov_b32 v3, 0\nv_mov_b32 v5, 0")
    acc = (1, 2, 3, 5)
    for p in range(16): A(f"v_fmac_f32_dpp v{acc[p&3]}, v22, v{K+p} row_newbcast:{p} row_mask:0xf bank_mask:0xf")
    A("v_add_f32 v1, v1, v2\nv_add_f32 v3, v3, v5\nv_add_f32 v1, v1, v3\nv_cvt_pk_bf16_f32 v1, v1, v1\ns_nop 1")
    for t in range(8): A(f"v_mov_b32_dpp v{V+t}, v1 row_newbcast:{t} row_mask:0xf bank_mask:0x3")
    for t in range(8): A(f"v_mov_b32_dpp v{V+t}, v1 row_newbcast:{8+t} row_mask:0xf bank_mask:0xc")
    for t in range(8):
        for v in range(4): A(f"v_and_b32 v{B+4*(t&3)+v}, v{V+t}, v{M+v}")
        if t > 0: mfma(S, WO + 4 * (t - 1), B + 4 * ((t - 1) & 3), "0" if t == 1 else None)
    A("s_nop 0")
    mfma(S, WO + 28, B + 12)
    A(f"s_lshl_b32 s82, {sC}, 9\nv_lshrrev_b32 v4, 5, v0\nv_lshl_add_u32 v4, v4, 8, v{VPL}\nv_add_u32 v4, s82, v4\nv_mov_b32 v1, 1")
    exec_valid()
    A(f"s_lshl_b32 s82, s78, 13\ns_lshl_b32 s83, {sH}, 9\ns_add_u32 s82, s82, s83\ns_add_u32 s82, s82, {WS_Y}")
    A(f"ds_write_b128 v4, {vr(S)} offset:{L_Y}\ns_mov_b64 exec, 1\ns_waitcnt lgkmcnt(0)")
    A(f"ds_add_u32 v{VZ}, v1 offset:{L_QFLAG+8}\ns_mov_b64 exec, -1")
    A(f"s_cmp_lg_u32 {sC}, 0\ns_cbranch_scc1 L_e_done")
    A(f"s_add_u32 {sT}, {sT}, 0x9e3779b9\nv_mov_b32 v23, {sT}\nv_lshlrev_b32 v4, 3, v0")
    lds_join("L_e_j2", L_QFLAG + 8)
    for i in range(8): A(f"ds_read_b32 v{K+i}, v6 offset:{L_Y + 256*i}")
    A(f"s_waitcnt lgkmcnt(6)\nv_add_f32 v22, v{K}, v{K+1}")
    for i in range(2, 8): A(f"s_waitcnt lgkmcnt({7-i})\nv_add_f32 v22, v22, v{K+i}")
    A(f"buffer_store_dwordx2 v[22:23], v4, {rWS}, s82 offen sc1")
    A("L_e_done:")
    stamp(7)
    dump_stamps()
    A("L_end:\ns_endpgm")

    A("L_ffn:")
    ACC, DG, DU = 28, 64, 68
    FS = RING0 + 16384
    for i in range(36): A(f"v_mov_b32 v{ACC+i}, 0")
    A(f"s_and_b32 s73, {sH}, 1\ns_lshr_b32 s74, {sC}, 2\ns_and_b32 s74, s74, s73\ns_cbranch_scc1 L_ffn_out")
    A(f"s_mul_i32 s73, s73, 5\ns_lshr_b32 s74, {sH}, 1\ns_mul_i32 s74, s74, 9\ns_add_u32 s73, s73, s74\ns_add_u32 s73, s73, {sC}")
    srd(rWG, 16, 576 * 9216); srd(rWU, 18, 576 * 9216); srd(rWD, 20, 4608 * 1152)
    A("v_lshrrev_b32 v4, 3, v0\nv_and_b32 v5, 7, v0\nv_lshlrev_b32 v5, 4, v5")
    A("v_mul_u32_u24 v2, 0x2400, v4\nv_add_u32 v2, v2, v5\nv_mul_u32_u24 v3, 0x480, v4\nv_add_u32 v3, v3, v5")
    for i in range(8): A(f"v_mov_b32 v{DG+i}, 0")
    A("s_lshl_b32 s74, s73, 7")
    assert FW % 2 == 0
    def gu_load(n):
        A(f"buffer_load_dwordx4 {vr(RG+4*(n%16))}, v2, {rWU if n & 1 else rWG}, s74 offen {wpol}")
        if n & 1: A(f"s_add_u32 s74, s74, {8*9216}")
    for n in range(FW): gu_load(n)
    A("s_mov_b32 s75, 0\nL_ffn_gu:")
    for t in range(8):
        bbuild(X, t, B + 4 * (t & 1))
        for m in range(2):
            n = 2 * t + m
            A(f"s_waitcnt vmcnt({FW-1})")
            gu_load(n + FW)
            mfma(DU if m else DG, RG + 4 * n, B + 4 * (t & 1))
    for k in range(8): A(f"v_mov_b32 v{X+k}, v{X+k+1}")
    A("s_add_u32 s75, s75, 1\ns_cmp_lt_u32 s75, 9\ns_cbranch_scc1 L_ffn_gu")
    A(f"s_mul_i32 s74, s73, {64*1152}")
    def wd_load(n):
        t, ct = divmod(n, 9)
        A(f"buffer_load_dwordx4 {vr(RG+4*(n%16))}, v3, {rWD}, s74 offen offset:{ct*128} {wpol}")
        if ct == 8: A(f"s_add_u32 s74, s74, {8*1152}")
    A("s_waitcnt vmcnt(0)")
    for n in range(FW): wd_load(n)
    A(f"s_lshl_b32 s75, {sC}, 10\ns_add_u32 s75, s75, {FS + 32768}")
    A(f"v_lshrrev_b32 v4, 5, v0\nv_lshl_add_u32 v4, v4, 8, v{VPL}\nv_add_u32 v4, s75, v4")
    exec_valid()
    A(f"ds_write_b128 v4, {vr(DG)}\nds_write_b128 v4, {vr(DU)} offset:512\ns_mov_b64 exec, -1")
    A("v_bfe_u32 v4, v0, 2, 1\nv_lshrrev_b32 v5, 3, v0\nv_lshl_add_u32 v4, v4, 3, v5\nv_and_b32 v5, 3, v0\nv_lshl_add_u32 v4, v4, 2, v5")
    A("v_lshlrev_b32 v4, 2, v4\nv_add_u32 v4, s75, v4\ns_waitcnt lgkmcnt(0)")
    A("ds_read_b32 v64, v4\nds_read_b32 v65, v4 offset:256\nds_read_b32 v66, v4 offset:512\nds_read_b32 v67, v4 offset:768")
    A("s_waitcnt lgkmcnt(0)\nv_add_f32 v64, v64, v65\nv_add_f32 v66, v66, v67")
    rbf(64, 64); rbf(66, 66)
    A(f"v_mul_f32 v64, {hex(LOG2E ^ 0x80000000)}, v64\nv_exp_f32 v64, v64\ns_nop 0\nv_add_f32 v64, 1.0, v64\nv_rcp_f32 v64, v64\ns_nop 0")
    rbf(64, 64)
    A(f"v_mul_f32 v64, v64, v66\nv_cvt_pk_bf16_f32 v{X}, v64, v64\ns_nop 1")
    for n in range(72):
        t, ct = divmod(n, 9)
        if ct == 0: bbuild(X, t, B + 4 * (t & 1))
        A(f"s_waitcnt vmcnt({min(FW-1, 71-n)})")
        if n + FW < 72: wd_load(n + FW)
        else: A("s_nop 0")
        mfma(ACC + 4 * ct, RG + 4 * (n % 16), B + 4 * (t & 1))
    A("L_ffn_out:")
    A(f"s_mul_i32 s75, {sC}, 4608\ns_add_u32 s75, s75, {FS}")
    A(f"v_lshrrev_b32 v4, 5, v0\nv_mul_u32_u24 v4, 0x900, v4\nv_add3_u32 v4, v4, v{VPL}, s75\ns_nop 4")
    exec_valid()
    for ct in range(9): A(f"ds_write_b128 v4, {vr(ACC+4*ct)} offset:{ct*256}")
    A("s_mov_b64 exec, -1\ns_waitcnt lgkmcnt(0)\ns_barrier")
    A(f"s_cmp_gt_u32 {sC}, 2\ns_cbranch_scc1 L_ffn_done")
    A(f"s_lshl_b32 s75, {sC}, 6\nv_add_u32 v4, s75, v0\nv_cmp_gt_u32 vcc, 0x90, v4\ns_and_saveexec_b64 s[82:83], vcc")
    A(f"v_lshlrev_b32 v5, 4, v4\nv_add_u32 v5, {FS}, v5")
    for s_ in range(10): A(f"ds_read_b128 {vr(ACC+4*s_)}, v5 offset:{s_*2304}")
    A(f"v_lshrrev_b32 v5, 4, v4\nv_and_b32 v4, 15, v4\nv_lshlrev_b32 v4, 5, v4\nv_lshl_add_u32 v4, v5, 13, v4")
    A(f"s_lshl_b32 s75, {sH}, 9\ns_add_u32 s75, s75, {WS_F}\ns_waitcnt lgkmcnt(0)\ns_add_u32 s74, {sT}, 0x9e3779b9")
    for s_ in range(1, 10):
        for i in range(4): A(f"v_add_f32 v{ACC+i}, v{ACC+i}, v{ACC+4*s_+i}")
    for i in range(4): A(f"v_mov_b32 v{ACC+8+2*i}, v{ACC+i}\nv_mov_b32 v{ACC+9+2*i}, s74")
    A(f"buffer_store_dwordx4 {vr(ACC+8)}, v4, {rWS}, s75 offen sc1")
    A(f"buffer_store_dwordx4 {vr(ACC+12)}, v4, {rWS}, s75 offen offset:16 sc1")
    A("s_mov_b64 exec, -1")
    A("L_ffn_done:")
    A("s_barrier")
    stamp(3)
    A(f"s_cmp_eq_u32 {sW}, 5\ns_cbranch_scc1 L_qgather\ns_branch L_cons_main")

    errs = hazard.check(L)
    if errs:
        print("\n".join(errs)); raise SystemExit("hazards found")
    lds = RING0 + NS * 8192
    body = "\n".join(x if x.endswith(":") else "    " + x for x in L)
    head = HEADER.replace("@LAUNCH@", f"; @launch grid=(256,1,1) block=({64*NW},1,1) lds={lds}")
    tail = f"""
.section .rodata,"a"
.p2align 6
.amdhsa_kernel {NAME}_kernel
  .amdhsa_next_free_vgpr 228
  .amdhsa_next_free_sgpr 102
  .amdhsa_accum_offset 228
  .amdhsa_group_segment_fixed_size 0
  .amdhsa_kernarg_size 96
  .amdhsa_user_sgpr_count 2
  .amdhsa_user_sgpr_kernarg_segment_ptr 1
  .amdhsa_system_sgpr_workgroup_id_x 1
  .amdhsa_float_denorm_mode_32 3
.end_amdhsa_kernel
"""
    return head + body + tail, lds

if __name__ == "__main__":
    out = sys.argv[1]
    kw = eval("dict(" + (sys.argv[2] if len(sys.argv) > 2 else "") + ")")
    txt, lds = build(**kw)
    open(out, "w").write(txt)
    import subprocess
    r = subprocess.run([sys.executable, "cdna_unwritten_srd_check.py", out], capture_output=True, text=True)
    print(r.stdout.strip()[:1500])
```

```python
import sys, os
sys.path.insert(0, os.path.dirname(os.path.abspath(__file__)))
import hazard

NAME = "recurrent_scan__gqa_block_cached__glu_gated_glu__decode"
HEADER = open(os.path.join(os.path.dirname(os.path.abspath(__file__)), "header.txt")).read()

WS_QP, WS_P, WS_ML, WS_Y, WS_F, WS_CNT, WS_EPOCH, WS_DIAG = 0x0, 0x20000, 0x60000, 0x70000, 0x84000, 0x98000, 0x9c000, 0x100000
L_FULL, L_DONE, L_QFLAG, L_QUE, L_Q, L_MO, L_MML, L_Y, RING0 = 0, 512, 528, 640, 1024, 2048, 6144, 8192, 12288
LOG2E = 0x3FB8AA3B
SCALE = 0x3DB504F3
VALID = "0xff00ff00", "0x00ff00ff"
NW = 6

DEF = dict(F=20, NS=18, FW=6, SN=(264, 263), pol="nt", wpol="nt", diag=False, hmap="div", sleep=1, spin=0x200000,
           dyn=True, S=256, SA=140, AH=6, chunk=1, wo="exit", hrot=0, spread=True, ways=15, pmul=1, dbgt=False, apol="sc0 nt", cstride=256, Fx=None, cc=1, inc=False, psleep=0, qinc=True, qdelay=7, womid=200, Fh=None, fpipe=True, gate=True)

def build(**kw):
    P = dict(DEF); P.update(kw)
    F, NS, FW, pol, wpol, diag, dyn = P["F"], P["NS"], P["FW"], P["pol"], P["wpol"], P["diag"], P["dyn"]
    L = []
    def A(s):
        for x in s.strip("\n").split("\n"):
            L.append(x.strip())
    sW, sH, sI, sC, sT = "s28", "s29", "s30", "s31", "s100"
    rK, rV, rWS, rX, rWQ, rWO, rWG, rWU, rWD, rOUT = ("s[32:35]", "s[36:39]", "s[40:43]", "s[44:47]", "s[48:51]",
                                                    "s[52:55]", "s[56:59]", "s[60:63]", "s[64:67]", "s[68:71]")
    def srd(r, ptr, n):
        b = int(r[2:r.index(":")])
        A(f"s_mov_b64 s[{b}:{b+1}], s[{ptr}:{ptr+1}]\ns_mov_b32 s{b+2}, {n}\ns_mov_b32 s{b+3}, 0x20000")
    def vr(b, n=4): return f"v[{b}:{b+n-1}]"
    M, KA, VA, VZ, Vm, VmL, Vl, VDA = 8, 12, 16, 17, 18, 19, 20, 21
    O, Q, K, V, S, PP, B, AD, WO, X, XR, RG, DQ = 24, 28, 44, 60, 76, 80, 84, 100, 108, 140, 149, 152, 224
    VPL = 105
    def stamp(k, set_=1):
        if diag and (diag == set_ or k in (0, 1, 2, 4)) and not (diag == 3 and k == 4):
            A(f"s_memrealtime s[{84+2*k}:{85+2*k}]\ns_waitcnt lgkmcnt(0)")
    def dump_stamps():
        if diag:
            A(f"s_mul_i32 s76, s2, {NW}\ns_add_u32 s76, s76, {sW}\ns_lshl_b32 s76, s76, 5\ns_add_u32 s76, s76, {WS_DIAG}")
            A("s_mov_b64 exec, 1\nv_mov_b32 v1, s76")
            for k in range(8):
                A(f"v_mov_b32 v2, s{84+2*k}\nglobal_store_dword v1, v2, s[26:27] offset:{4*k}")
            A("s_mov_b64 exec, -1")
    def dbg_time(slot, inv=False):
        if P["dbgt"]:
            A("s_memrealtime s[98:99]\ns_waitcnt lgkmcnt(0)")
            if inv: A("s_not_b32 s98, s98")
            A(f"s_mov_b64 exec, 1\nv_mov_b32 v225, {4*slot}\nv_mov_b32 v226, s98\nglobal_atomic_umax v225, v226, s[24:25] sc1\ns_mov_b64 exec, -1")
    def spin(lbl):
        A(f"s_sub_u32 s3, s3, 1\ns_cbranch_scc0 {lbl}\ns_endpgm")
    def wave_sum(v, t):
        for r in (8, 4, 2, 1):
            A(f"s_nop 1\nv_add_f32_dpp v{v}, v{v}, v{v} row_ror:{r} row_mask:0xf bank_mask:0xf")
        for op in ("v_permlane16_swap_b32", "v_permlane32_swap_b32"):
            A(f"v_mov_b32 v{t}, v{v}\ns_nop 1\n{op} v{t}, v{v}\nv_add_f32 v{v}, v{v}, v{t}")
    def rbf(d, s):
        A(f"v_cvt_pk_bf16_f32 v{d}, v{s}, v{s}\nv_and_b32 v{d}, 0xffff0000, v{d}")
    def bbuild(src, t, b):
        A(f"v_mov_b32_dpp v7, v{src} row_newbcast:{t} row_mask:0xf bank_mask:0x3\ns_nop 1")
        A(f"v_mov_b32_dpp v7, v{src} row_newbcast:{8+t} row_mask:0xf bank_mask:0xc")
        for v in range(4):
            A(f"v_and_b32 v{b+v}, v7, v{M+v}")
    def mfma(d, a, b, c=None):
        A(f"v_mfma_f32_16x16x32_bf16 {vr(d)}, {vr(a)}, {vr(b)}, {vr(d) if c is None else c}")
    def exec_valid():
        A(f"s_mov_b32 exec_lo, {VALID[1]}\ns_mov_b32 exec_hi, {VALID[0]}")
    def tagchk(acc, regs):
        for r in regs: A(f"v_bitop3_b32 v{acc}, v{acc}, v{r}, v6 bitop3:0xf6")

    A(f"{NAME}_kernel:")
    if diag == 6: A("s_memrealtime s[90:91]")
    A("s_cmp_ge_u32 s2, 256\ns_cbranch_scc1 L_end")
    A("s_load_dwordx16 s[4:19], s[0:1], 0\ns_load_dwordx8 s[20:27], s[0:1], 64")
    if diag and diag != 6:
        for k in range(8): A(f"s_mov_b32 s{84+2*k}, 0")
    A("v_lshrrev_b32 v1, 6, v0\nv_and_b32 v0, 63, v0")
    A(f"v_readfirstlane_b32 {sW}, v1")
    if P["hmap"] == "div":
        A(f"s_lshr_b32 {sH}, s2, 4\ns_and_b32 {sI}, s2, 15")
    else:
        A(f"s_and_b32 {sH}, s2, 7\ns_lshl_b32 {sH}, {sH}, 1\ns_bfe_u32 s76, s2, 0x10003\ns_or_b32 {sH}, {sH}, s76\ns_lshr_b32 {sI}, s2, 4")
    A(f"v_mov_b32 v{VZ}, 0\ns_mov_b32 s3, {P['spin']}")
    A(f"s_sub_u32 {sC}, {sW}, 1")
    A(f"s_cmp_lg_u32 {sW}, 0\ns_cbranch_scc1 L_other")
    Fx = P["Fx"] or (list(P["Fh"]) * 4 if P["Fh"] else [F] * 8)
    import math
    dt = (7 + math.ceil(max(Fx + [F]))) // 8
    ch = P["chunk"]
    assert ch == 0 or all(x % ch == 0 for x in ((P["S"],) if dyn else P["SN"]))
    assert P["SA"] > 2
    A("s_setprio 3")
    A("v_lshrrev_b32 v1, 4, v0\nv_and_b32 v4, 15, v0")
    sp = 3072 if P["spread"] else 0
    LV = 20
    for j in range(4):
        A(f"v_add_u32 v5, {4*j}, v1\nv_xor_b32 v5, v5, v4\nv_lshlrev_b32 v5, 4, v5\nv_lshl_add_u32 v{KA+j}, v1, 8, v5")
        if j and sp: A(f"v_add_u32 v{KA+j}, {sp*j}, v{KA+j}")
    A(f"v_lshlrev_b32 v{LV}, 4, v0")
    for j in range(1, 4): A(f"v_add_u32 v{LV+j}, {sp*j}, v{LV}")
    A("v_lshlrev_b32 v6, 3, v0")
    A(f"v_mov_b32 v2, {-dt}\nv_bfrev_b32 v3, -2")
    A(f"ds_write_b64 v6, v[2:3] offset:{L_FULL}")
    A(f"v_lshlrev_b32 v1, 2, v0\nds_write_b32 v1, v{VZ} offset:{L_DONE}")
    A(f"ds_read_b128 v[8:11], v{VZ} offset:{L_DONE}")
    if dyn:
        A(f"s_movk_i32 s78, {P['S']}")
    else:
        A(f"s_movk_i32 s78, {P['SN'][0]}\ns_bitcmp1_b32 {sH}, 0\ns_cselect_b32 s78, {P['SN'][1]}, s78")
    ways = P["ways"]
    if ways == 16:
        assert dyn and ch
        A(f"s_mul_i32 s76, {sI}, {ch}\ns_movk_i32 s77, {15*ch+1}")
        A(f"s_cmp_eq_u32 {sI}, 0\ns_cselect_b32 s78, {P['SA']}, s78")
    else:
        if ch:
            A(f"s_sub_u32 s76, {sI}, 1\ns_mul_i32 s76, s76, {ch}\ns_movk_i32 s77, {14*ch+1}")
        else:
            A(f"s_sub_u32 s76, {sI}, 1\ns_mul_i32 s76, s76, s78\ns_mov_b32 s77, 1")
        A(f"s_cmp_lg_u32 {sI}, 0\ns_cbranch_scc1 L_ld_sched")
        A("s_mul_i32 s76, s78, 15\ns_mov_b32 s77, 1")
        A(f"s_movk_i32 s78, {P['SA']}" if dyn else "s_sub_u32 s78, 4096, s76")
        A("L_ld_sched:")
    A(f"s_mul_i32 s71, {sH}, {P['hrot']}\ns_add_u32 s76, s76, s71\ns_lshl_b32 s72, {sH}, 24")
    A(f"s_mov_b32 s79, 0\ns_mov_b32 s80, {RING0}\ns_mov_b32 s81, {1-NS}")
    A("s_waitcnt lgkmcnt(0)")
    srd(rK, 6, 0x10000000); srd(rV, 8, 0x10000000)
    stamp(0)
    def waits(f):
        e = round(f * 8); lo, k = divmod(e, 8)
        return [lo + ((j + 1) * k // 8 - j * k // 8) for j in range(8)]
    def tile_loads(f):
        if P["spread"]:
            A("s_and_b32 s75, s76, 0xffc\ns_lshl_b32 s75, s75, 12\ns_or_b32 s75, s75, s72\ns_and_b32 s83, s76, 3\ns_lshl_b32 s83, s83, 10\ns_or_b32 s75, s75, s83")
        else:
            A("s_and_b32 s75, s76, 0xfff\ns_lshl_b32 s75, s75, 12\ns_or_b32 s75, s75, s72")
        w = waits(f)
        jp = min(j for j in range(8) if j - w[j] >= 7 - 8 * dt)
        for j in range(8):
            if j == 4: A("s_add_u32 m0, s80, 0x1000")
            A(f"s_waitcnt vmcnt({w[j]-1})")
            if j < 4: A(f"buffer_load_dwordx4 v{KA+j}, {rK}, s75 offen offset:{j*1024} {pol} lds")
            else: A(f"buffer_load_dwordx4 v{LV+j-4}, {rV}, s75 offen offset:{(j-4)*1024} {pol} lds")
            if j == jp:
                A(f"v_add_u32 v2, 1, v2\nds_write_b64 v6, v[2:3] offset:{L_FULL}")
        A("s_add_u32 s80, s80, 0x2000")
        A(f"s_cmp_eq_u32 s80, {RING0 + NS*8192}\ns_cselect_b32 s80, {RING0}, s80")
        A("s_add_u32 s81, s81, 1\ns_add_u32 s79, s79, 1")
    fvals = sorted(set(Fx))
    if len(fvals) > 1:
        if P["Fh"]: A(f"s_and_b32 s70, {sH}, 1\ns_lshl_b32 s70, s70, 2")
        else: A("s_getreg_b32 s70, hwreg(HW_REG_XCC_ID, 0, 3)\ns_lshl_b32 s70, s70, 2")
        A(f"s_lshr_b32 s70, {sum(fvals.index(f) << (4*x) for x, f in enumerate(Fx))}, s70\ns_and_b32 s70, s70, 15")
    A("L_ld_pick:")
    for i in range(1, len(fvals)):
        A(f"s_cmp_eq_u32 s70, {i}\ns_cbranch_scc1 L_ld_loop{i}")
    for i, f in enumerate(fvals):
        A(f"L_ld_loop{i}:")
        A("s_waitcnt lgkmcnt(0)\nv_min3_u32 v4, v8, v9, v10\nv_min_u32 v4, v4, v11")
        A("s_mov_b32 m0, s80\nv_readfirstlane_b32 s82, v4")
        A(f"ds_read_b128 v[8:11], v{VZ} offset:{L_DONE}")
        A("s_cmp_lt_i32 s82, s81\ns_cbranch_scc1 L_ld_full")
        if diag == 4:
            for k, n in ((3, 3), (4, 10), (5, 17), (6, 18), (7, 40)):
                A(f"s_cmp_lg_u32 s79, {n}\ns_cbranch_scc1 L_d4_{i}_{k}\ns_memrealtime s[{84+2*k}:{85+2*k}]\nL_d4_{i}_{k}:")
        tile_loads(f)
        if ch > 1:
            A(f"s_and_b32 s83, s79, {ch-1}\ns_cselect_b32 s83, 1, s77\ns_add_u32 s76, s76, s83")
        else:
            A("s_add_u32 s76, s76, s77")
        A("s_cmp_eq_u32 s79, 2\ns_cbranch_scc1 L_ld_bar")
        A(f"s_cmp_lt_u32 s79, s78\ns_cbranch_scc1 L_ld_loop{i}")
        if i + 1 < len(fvals): A("s_branch L_ld_send")
    A("L_ld_send:")
    if dyn:
        def que_read(n):
            A(f"s_and_b32 s83, {n}, 31\ns_lshl_b32 s83, s83, 2\nv_mov_b32 v5, s83\nds_read_b32 v7, v5 offset:{L_QUE}")
        stamp(3)
        A("L_ld_dre:")
        que_read("s79")
        A("L_ld_dyn:")
        A("s_waitcnt lgkmcnt(0)\nv_min3_u32 v4, v8, v9, v10\nv_min_u32 v4, v4, v11\nv_readfirstlane_b32 s73, v7")
        A("s_mov_b32 m0, s80\nv_readfirstlane_b32 s82, v4")
        A(f"ds_read_b128 v[8:11], v{VZ} offset:{L_DONE}")
        A("s_add_u32 s74, s79, 1\ns_lshr_b32 s75, s73, 16\ns_cmp_lg_u32 s75, s74\ns_cbranch_scc1 L_ld_dfull")
        A("s_cmp_lt_i32 s82, s81\ns_cbranch_scc1 L_ld_dfull")
        A("s_and_b32 s73, s73, 0xffff\ns_cmp_ge_u32 s73, 0x1000\ns_cbranch_scc1 L_ld_drain")
        A("s_add_u32 s76, s73, s71")
        que_read("s74")
        tile_loads(F)
        A("s_branch L_ld_dyn")
    A("L_ld_drain:")
    stamp(1)
    A("v_mov_b32 v3, s79")
    for r in range(dt - 1, -1, -1):
        A(f"s_waitcnt vmcnt({8*r})\nv_add_u32 v2, 1, v2\nds_write_b64 v6, v[2:3] offset:{L_FULL}")
    stamp(2)
    dbg_time(2)
    if diag and diag not in (4, 6): A(f"s_mov_b32 s94, s79\ns_sub_u32 s96, {P['spin']}, s3")
    dump_stamps()
    A("s_endpgm")
    A("L_ld_full:")
    spin("L_ld_pick")
    if dyn:
        A("L_ld_dfull:")
        spin("L_ld_dre")
    A("L_ld_bar:")
    stamp(5, 6)
    A("s_waitcnt lgkmcnt(0)\ns_barrier")
    stamp(6, 6)
    A(f"s_cmp_lg_u32 {sI}, 0\ns_cbranch_scc1 L_ld_pick\ns_barrier\ns_barrier\ns_branch L_ld_pick")

    A("L_other:")
    A("s_waitcnt lgkmcnt(0)")
    srd(rX, 4, 1152); srd(rWS, 26, 0x200000)
    if P["dbgt"]:
        A(f"s_cmp_lg_u32 {sW}, 4\ns_cbranch_scc1 L_dbg0")
        dbg_time(0, True)
        A("L_dbg0:")
    A(f"s_load_dword {sT}, s[26:27], {WS_EPOCH}")
    stamp(0)
    A(f"s_cmp_eq_u32 {sW}, 5\ns_cbranch_scc1 L_xload")
    A(f"s_cmp_lg_u32 {sI}, 0\ns_cbranch_scc1 L_pre_done")
    A("L_xload:")
    A("v_and_b32 v1, 7, v0\nv_lshrrev_b32 v4, 3, v0\nv_lshl_add_u32 v5, v1, 3, v4\nv_lshlrev_b32 v5, 1, v5")
    for k in range(9): A(f"buffer_load_ushort v{X+k}, v5, {rX}, 0 offen offset:{128*k}")
    A(f"s_cmp_lg_u32 {sW}, 5\ns_cbranch_scc1 L_pre_done")
    A(f"s_and_b32 s82, {sI}, 3\ns_mul_i32 s82, s82, 288")
    for k in range(3): A(f"buffer_load_ushort v{XR+k}, v5, {rX}, s82 offen offset:{128*k}")
    srd(rWQ, 10, 576 * 8192)
    A("v_lshlrev_b32 v5, 4, v1\nv_lshl_add_u32 v5, v4, 13, v5")
    A(f"s_lshl_b32 s82, s82, 12\ns_lshl_b32 s83, {sH}, 9\ns_add_u32 s82, s82, s83")
    A(f"s_lshr_b32 s83, {sI}, 2\ns_lshl_b32 s83, s83, 7\ns_add_u32 s82, s82, s83")
    for p in range(18):
        A(f"buffer_load_dwordx4 {vr(RG+4*p)}, v5, {rWQ}, s82 offen {wpol}")
        if p < 17: A("s_add_u32 s82, s82, 0x10000")
    A("v_mov_b32 v24, -1\nv_mov_b32 v25, -1\nv_mov_b32 v26, -1\nv_mov_b32 v27, -1")
    A("v_lshrrev_b32 v5, 4, v0\nv_and_b32 v6, 15, v0\nv_lshlrev_b32 v6, 4, v6\nv_lshl_add_u32 v5, v5, 12, v6")
    A(f"s_lshl_b32 s82, {sH}, 14\ns_lshl_b32 s83, {sI}, 8\ns_add_u32 s82, s82, s83\ns_add_u32 s82, s82, {WS_P}")
    A(f"buffer_store_dwordx4 v[24:27], v5, {rWS}, s82 offen sc1")
    A("s_mov_b64 exec, 15\nv_lshlrev_b32 v5, 10, v0")
    A(f"s_lshl_b32 s82, {sH}, 12\ns_lshl_b32 s83, {sI}, 6\ns_add_u32 s82, s82, s83\ns_add_u32 s82, s82, {WS_ML}")
    A(f"buffer_store_dwordx4 v[24:27], v5, {rWS}, s82 offen sc1\ns_mov_b64 exec, 1")
    if dyn:
        A(f"s_cmp_lg_u32 {sI}, 0\ns_cbranch_scc1 L_clr_done")
        A(f"s_mul_i32 s82, {sH}, {P['cstride']}\ns_add_u32 s82, s82, {WS_CNT}\nbuffer_store_dword v{VZ}, v6, {rWS}, s82 offen sc1")
        A("L_clr_done:")
    A("s_mov_b64 exec, -1")
    VWO = 104 + 2
    def wo_prep():
        srd(rWO, 12, 4096 * 1152)
        A(f"s_sub_u32 s82, {sI}, 1\ns_cmp_gt_u32 s82, 8\ns_cselect_b32 s54, 0, s54")
        A("v_lshrrev_b32 v2, 5, v0\nv_lshlrev_b32 v2, 7, v2\nv_bfe_u32 v3, v0, 3, 2\nv_lshl_add_u32 v2, v3, 1, v2")
        A(f"v_mul_u32_u24 v2, 0x480, v2\nv_and_b32 v3, 7, v0\nv_lshl_add_u32 v{VWO}, v3, 4, v2")
        A(f"s_lshl_b32 s82, s82, 7\ns_lshl_b32 s83, {sH}, 3\ns_add_u32 s83, s83, {sC}\ns_mul_i32 s83, s83, {32*1152}\ns_add_u32 s48, s82, s83")
        for t in range(1, 4): A(f"s_add_u32 s{48+t}, s48, {8*t*1152}")
    def wo_loads():
        for t in range(8):
            A(f"buffer_load_dwordx4 {vr(WO+4*t)}, v{VWO}, {rWO}, s{48+(t&3)} offen offset:{(t>>2)*1152} {wpol}")
    A("L_pre_done:")
    A("s_barrier")
    A("v_and_b32 v1, 1, v0\nv_lshlrev_b32 v1, 4, v1\nv_mov_b32 v4, 0xffff\nv_lshlrev_b32 v4, v1, v4\nv_bfe_u32 v5, v0, 1, 2")
    for v in range(4):
        A(f"v_cmp_eq_u32 vcc, {v}, v5\ns_nop 1\nv_cndmask_b32 v{M+v}, 0, v4, vcc")
    A(f"v_bfe_u32 v4, v0, 4, 1\nv_and_b32 v5, 7, v0\nv_lshl_add_u32 v4, v4, 3, v5\nv_lshlrev_b32 v{VPL}, 4, v4")
    A(f"s_cmp_eq_u32 {sW}, 5\ns_cbranch_scc1 L_ln")
    A(f"s_cmp_lg_u32 {sI}, 0\ns_cbranch_scc1 L_cons_main\ns_waitcnt vmcnt(0)")
    A("L_ln:")
    stamp(3, 2)
    A("s_waitcnt vmcnt(23)")
    stamp(5, 2)
    for k in range(9): A(f"v_lshlrev_b32 v{X+k}, 16, v{X+k}")
    A(f"v_add_f32 v1, v{X}, v{X+1}")
    for k in range(2, 9): A(f"v_add_f32 v1, v1, v{X+k}")
    wave_sum(1, 2)
    A("s_mov_b32 s82, 0x3ae38e39\ns_mov_b32 s83, 0x44100000")
    def div576(v):
        A(f"v_mul_f32 v2, s82, v{v}\nv_fma_f32 v3, -v2, s83, v{v}\nv_fma_f32 v{v}, v3, s82, v2")
    div576(1)
    A(f"v_sub_f32 v2, v{X}, v1\nv_mul_f32 v4, v2, v2")
    for k in range(1, 9): A(f"v_sub_f32 v2, v{X+k}, v1\nv_fmac_f32 v4, v2, v2")
    wave_sum(4, 2)
    div576(4)
    rbf(1, 1); rbf(4, 4)
    A("v_add_f32 v4, 0x3727c5ac, v4"); rbf(4, 4)
    A("v_sqrt_f32 v5, v4\ns_nop 0\nv_rcp_f32 v6, v5\nv_fma_f32 v3, -v5, v5, v4\nv_mul_f32 v6, 0.5, v6\nv_fma_f32 v5, v3, v6, v5")
    rbf(5, 5)
    A("v_rcp_f32 v6, v5")
    def norm(r):
        A(f"v_sub_f32 v2, v{r}, v1"); rbf(2, 2)
        A(f"v_mul_f32 v3, v2, v6\nv_fma_f32 v4, -v3, v5, v2\nv_fma_f32 v3, v4, v6, v3\nv_cvt_pk_bf16_f32 v{r}, v3, v3")
    A(f"s_cmp_lg_u32 {sI}, 0\ns_cbranch_scc1 L_ln_xr")
    for k in range(9): norm(X + k)
    A(f"s_cmp_lg_u32 {sW}, 5\ns_cbranch_scc1 L_ffn")
    A("L_ln_xr:\ns_waitcnt vmcnt(20)")
    for k in range(3):
        A(f"v_lshlrev_b32 v{XR+k}, 16, v{XR+k}"); norm(XR + k)
    A("s_nop 0")
    stamp(6, 2)
    for p in range(18):
        bbuild(XR + p // 8, p % 8, B + 4 * (p & 1))
        A(f"s_waitcnt vmcnt({17 - p + 2})\ns_nop 0")
        mfma(DQ, RG + 4 * p, B + 4 * (p & 1), "0" if p == 0 else None)
    A(f"s_lshl_b32 s82, {sH}, 13\ns_and_b32 s83, {sI}, 3\ns_lshl_b32 s83, s83, 11\ns_add_u32 s82, s82, s83")
    A(f"s_lshr_b32 s83, {sI}, 2\ns_lshl_b32 s83, s83, 8\ns_add_u32 s82, s82, s83")
    A(f"s_waitcnt lgkmcnt(0)\ns_add_u32 {sT}, {sT}, 0x9e3779b9\nv_mov_b32 v{K+1}, {sT}")
    for i in range(4): A(f"v_mov_b32_dpp v{V+i}, v{DQ+i} row_ror:8 row_mask:0xf bank_mask:0xf")
    A(f"v_mov_b32 v{K+3}, {sT}\nv_mov_b32 v{K+5}, {sT}")
    for i in range(4): A(f"v_permlane32_swap_b32 v{V+i}, v{V+4+i}")
    for i in range(4): A(f"v_add_f32 v{K+2*i}, v{DQ+i}, v{V+4+i}")
    A(f"v_mov_b32 v{K+7}, {sT}")
    stamp(7, 2)
    A("s_mov_b64 exec, 0x00ff00ff\ns_waitcnt vmcnt(0)")
    A(f"buffer_store_dwordx4 {vr(K)}, v{VPL}, {rWS}, s82 offen sc1")
    A(f"buffer_store_dwordx4 {vr(K+4)}, v{VPL}, {rWS}, s82 offen offset:1024 sc1")
    A("s_mov_b64 exec, -1")
    stamp(1)
    A(f"s_cmp_eq_u32 {sI}, 0\ns_cbranch_scc1 L_ffn")
    A("L_qgather:")
    A(f"v_lshlrev_b32 v4, 4, v0\ns_lshl_b32 s82, {sH}, 13\ns_add_u32 s83, s82, 0x1000\nv_mov_b32 v6, {sT}")
    if P["qdelay"] is not None:
        A(f"L_qdel:\nds_read_b32 v1, v{VZ} offset:{L_FULL}\ns_waitcnt lgkmcnt(0)\nv_cmp_le_i32 vcc, {P['qdelay']}, v1\ns_cbranch_vccnz L_qdel_ok")
        A(f"s_cmp_eq_u32 {sI}, 0\ns_cbranch_scc1 L_qdel_ok\ns_sleep 2")
        spin("L_qdel")
        A("L_qdel_ok:")
    if P["qinc"]:
        for p in range(8): A(f"s_mov_b64 s[{48+2*p}:{49+2*p}], -1")
        A("L_qpoll:")
        for p in range(8):
            A(f"s_mov_b64 exec, s[{48+2*p}:{49+2*p}]\ns_cbranch_execz L_q_s{p}")
            A(f"buffer_load_dwordx4 {vr(RG+4*p)}, v4, {rWS}, {'s83' if p >= 4 else 's82'} offen offset:{(p&3)*1024} sc1\nL_q_s{p}:")
        A("s_waitcnt vmcnt(0)\ns_mov_b64 s[64:65], 0")
        for p in range(8):
            A(f"s_mov_b64 exec, s[{48+2*p}:{49+2*p}]\nv_bitop3_b32 v1, v{RG+4*p+1}, v{RG+4*p+3}, v6 bitop3:0x7e\nv_cmp_ne_u32 s[{48+2*p}:{49+2*p}], 0, v1")
            A(f"s_or_b64 s[64:65], s[64:65], s[{48+2*p}:{49+2*p}]")
        A("s_mov_b64 exec, -1\ns_cbranch_scc0 L_qready\ns_sleep 1")
        spin("L_qpoll")
    else:
        A("L_qpoll:")
        for p in range(8):
            A(f"buffer_load_dwordx4 {vr(RG+4*p)}, v4, {rWS}, {'s83' if p >= 4 else 's82'} offen offset:{(p&3)*1024} sc1")
        A("v_mov_b32 v1, 0")
        for p in range(8):
            A(f"s_waitcnt vmcnt({7-p})")
            tagchk(1, (RG + 4 * p + 1, RG + 4 * p + 3))
        A("v_cmp_ne_u32 vcc, 0, v1\ns_cbranch_vccz L_qready\ns_sleep 1")
        spin("L_qpoll")
    A("L_qready:")
    stamp(2)
    for i in (0, 2, 4, 6):
        A(f"v_add_f32 v{RG+i}, v{RG+i}, v{RG+8+i}\nv_add_f32 v{RG+16+i}, v{RG+16+i}, v{RG+24+i}")
    for i in (0, 2, 4, 6): A(f"v_add_f32 v{RG+i}, v{RG+i}, v{RG+16+i}")
    A("v_lshrrev_b32 v4, 3, v0\nv_and_b32 v5, 7, v0\nv_lshl_add_u32 v4, v4, 5, v5\nv_lshlrev_b32 v4, 1, v4")
    A(f"v_cvt_pk_bf16_f32 v{RG}, v{RG}, v{RG+2}\nv_cvt_pk_bf16_f32 v{RG+4}, v{RG+4}, v{RG+6}")
    A(f"ds_write_b16 v4, v{RG} offset:{L_Q}\nds_write_b16_d16_hi v4, v{RG} offset:{L_Q+16}")
    A(f"ds_write_b16 v4, v{RG+4} offset:{L_Q+32}\nds_write_b16_d16_hi v4, v{RG+4} offset:{L_Q+48}")
    A(f"v_mov_b32 v5, 1\ns_waitcnt lgkmcnt(0)\nds_write_b32 v{VZ}, v5 offset:{L_QFLAG}")
    if dyn:
        npool = 4096 - 15 * P["S"] - P["SA"]
        def to_tile():
            if ways == 16:
                na = P["S"] - P["SA"]; lc = ch.bit_length() - 1
                A(f"s_add_u32 s81, s80, {P['SA']}\ns_lshr_b32 s82, s81, {lc}\ns_lshl_b32 s82, s82, {lc+4}\ns_and_b32 s81, s81, {ch-1}\ns_or_b32 s81, s81, s82")
                A(f"s_add_u32 s82, s80, {16*P['S'] - na}\ns_cmp_lt_u32 s80, {na}\ns_cselect_b32 s80, s81, s82")
            else:
                if P["pmul"] > 1:
                    import math
                    assert math.gcd(P["pmul"], npool) == 1
                    A(f"s_mul_i32 s80, s80, {P['pmul']}\ns_mul_hi_u32 s81, s80, {(1 << 32) // npool + 1}\ns_mul_i32 s81, s81, {npool}\ns_sub_u32 s80, s80, s81")
                A(f"s_add_u32 s80, s80, {4096 - npool}")
        ahead = dt + P["AH"]
        cc = P["cc"]; CD = {1: 4, 2: 2}.get(cc, 1)
        assert npool % cc == 0 and (cc == 1 or (ways == 15 and P["pmul"] == 1)) and P["AH"] >= (CD - 1) * cc
        A(f"s_movk_i32 s76, {P['S']}\ns_cmp_eq_u32 {sI}, 0\ns_cselect_b32 s76, {P['SA']}, s76\ns_add_u32 s77, s76, {CD*cc}")
        A(f"s_mul_i32 s78, {sH}, {P['cstride']}\ns_add_u32 s78, s78, {WS_CNT}\nv_mov_b32 v4, s78\nv_mov_b32 v5, {cc}\ns_mov_b64 exec, 1")
        def que_write(val):
            A(f"s_and_b32 s82, s79, 31\ns_lshl_b32 s82, s82, 2\ns_add_u32 s79, s79, 1\ns_lshl_b32 s83, s79, 16\ns_or_b32 s83, s83, {val}")
            A(f"v_mov_b32 v1, s82\nv_mov_b32 v2, s83\nds_write_b32 v1, v2 offset:{L_QUE}")
        A("s_mov_b32 s79, s76")
        def put():
            to_tile()
            for i in range(cc):
                if i: A("s_add_u32 s80, s80, 1")
                que_write("s80")
        for k in range(CD):
            A(f"L_cl_{k}:\nds_read_b32 v1, v{VZ} offset:{L_FULL}\ns_waitcnt lgkmcnt(0)\nv_readfirstlane_b32 s78, v1")
            A(f"s_add_u32 s78, s78, {ahead}\ns_cmp_le_i32 s76, s78\ns_cbranch_scc1 L_cl_go{k}\ns_sleep 2")
            spin(f"L_cl_{k}")
            A(f"L_cl_go{k}:\nglobal_atomic_add v{20+k}, v4, v5, s[26:27] {P['apol']}")
            A(f"s_add_u32 s76, s76, {cc}\ns_cmp_lt_u32 s76, s77\ns_cbranch_scc1 L_cl_{(k+1)%CD}")
            A(f"s_waitcnt vmcnt({CD-1})\nv_readfirstlane_b32 s80, v{20+(k+1)%CD}")
            A(f"s_cmp_ge_u32 s80, {npool}\ns_cbranch_scc1 L_cl_end{k}")
            put()
        A("s_branch L_cl_0")
        for k in range(CD):
            A(f"L_cl_end{k}:\ns_waitcnt vmcnt(0)")
            for i in range(CD - 1): A(f"v_mov_b32 v{24+i}, v{20+(k+2+i)%CD}")
            if k < CD - 1: A("s_branch L_cl_fin")
        A("L_cl_fin:")
        for i in range(CD - 1):
            A(f"s_nop 0\nv_readfirstlane_b32 s80, v{24+i}\ns_cmp_ge_u32 s80, {npool}\ns_cbranch_scc1 L_cl_x{i}")
            put()
            A(f"L_cl_x{i}:")
        que_write("0xffff")
        A("s_mov_b64 exec, -1")
    A(f"s_cmp_lg_u32 {sI}, 10\ns_cbranch_scc1 L_e_done\ns_cmp_gt_u32 {sH}, 8\ns_cbranch_scc1 L_e_done")
    srd(rOUT, 22, 1152)
    A("v_lshrrev_b32 v4, 5, v0\nv_and_b32 v5, 3, v0\nv_lshl_add_u32 v4, v4, 2, v5\nv_bfe_u32 v5, v0, 2, 3\nv_lshl_add_u32 v4, v4, 3, v5")
    A(f"v_lshlrev_b32 v2, 1, v4\ns_lshl_b32 s79, {sH}, 7")
    A(f"buffer_load_ushort v3, v2, {rX}, s79 offen")
    A(f"v_lshlrev_b32 v4, 3, v0\ns_lshl_b32 s82, {sH}, 13")
    def gather_sum(lbl, base, dst, slp):
        A(f"s_add_u32 s80, s82, {base}\ns_add_u32 s81, s82, {base + 4096}")
        A(f"{lbl}:")
        for p in range(16): A(f"buffer_load_dwordx2 {vr(RG+2*p, 2)}, v4, {rWS}, {'s81' if p >= 8 else 's80'} offen offset:{512*(p&7)} sc1")
        A("v_mov_b32 v1, 0")
        for p in range(0, 16, 2):
            A(f"s_waitcnt vmcnt({14-p})")
            tagchk(1, (RG + 2 * p + 1, RG + 2 * p + 3))
            if p == 0: A(f"v_add_f32 v{dst}, v{RG}, v{RG+2}")
            else: A(f"v_add_f32 v{dst}, v{dst}, v{RG+2*p}\nv_add_f32 v{dst}, v{dst}, v{RG+2*p+2}")
        A(f"v_cmp_ne_u32 vcc, 0, v1\ns_cbranch_vccz {lbl}_ok")
        if slp: A(f"s_sleep {slp}")
        spin(lbl)
        A(f"{lbl}_ok:")
    gather_sum("L_f_ffn", WS_F, 22, 16)
    rbf(22, 22)
    A(f"v_mul_f32 v5, {hex(LOG2E ^ 0x80000000)}, v22\nv_exp_f32 v5, v5\ns_nop 0\nv_add_f32 v5, 1.0, v5\nv_rcp_f32 v5, v5\ns_nop 0\nv_mul_f32 v22, v22, v5")
    rbf(22, 22)
    A("v_lshlrev_b32 v3, 16, v3")
    A(f"L_f_wait:\nds_read_b64 v[24:25], v{VZ} offset:{L_FULL}\ns_waitcnt lgkmcnt(0)\nv_cmp_ge_i32 vcc, v24, v25\ns_cbranch_vccnz L_f_go\ns_sleep 4")
    spin("L_f_wait")
    A("L_f_go:")
    if P["fpipe"]:
        A(f"s_add_u32 s80, s82, {WS_Y}\ns_add_u32 s81, s82, {WS_Y + 4096}")
        def issue(b):
            for p in range(16): A(f"buffer_load_dwordx2 {vr(b+2*p, 2)}, v4, {rWS}, {'s81' if p >= 8 else 's80'} offen offset:{512*(p&7)} sc1")
        def check(b):
            A("v_mov_b32 v1, 0")
            for p in range(0, 16, 2):
                A(f"s_waitcnt vmcnt({30-p})")
                tagchk(1, (b + 2 * p + 1, b + 2 * p + 3))
                if p == 0: A(f"v_add_f32 v23, v{b}, v{b+2}")
                else: A(f"v_add_f32 v23, v23, v{b+2*p}\nv_add_f32 v23, v23, v{b+2*p+2}")
            A("v_cmp_ne_u32 vcc, 0, v1\ns_cbranch_vccz L_f_att_ok")
        issue(RG)
        A("s_sleep 4\nL_f_att:")
        issue(RG + 32); check(RG); issue(RG); check(RG + 32)
        spin("L_f_att")
        A("L_f_att_ok:")
    else:
        gather_sum("L_f_att", WS_Y, 23, P.get("fsleep", 0))
    rbf(23, 23)
    A("v_mul_f32 v23, v23, v22"); rbf(23, 23)
    A(f"v_add_f32 v23, v23, v3\nv_cvt_pk_bf16_f32 v23, v23, v23\nbuffer_store_short v23, v2, {rOUT}, s79 offen")
    dbg_time(1)
    A(f"s_cmp_lg_u32 {sH}, 0\ns_cbranch_scc1 L_e_done")
    A(f"s_mov_b64 exec, 1\nv_mov_b32 v4, {WS_EPOCH}\nglobal_store_dword v4, v6, s[26:27] sc1\ns_mov_b64 exec, -1\ns_branch L_e_done")

    A("L_cons_main:")
    A("v_and_b32 v1, 15, v0\nv_lshrrev_b32 v4, 4, v0\nv_xor_b32 v5, v1, v4\nv_lshlrev_b32 v5, 4, v5")
    A(f"v_lshl_add_u32 v{KA}, v1, 8, v5")
    for ks in range(1, 4): A(f"v_xor_b32 v{KA+ks}, {64*ks}, v{KA}")
    A(f"v_lshlrev_b32 v5, 4, v1\nv_lshl_add_u32 v{VA}, v4, 10, v5")
    A(f"v_mov_b32 v{Vm}, 0xff800000\nv_mov_b32 v{VmL}, 0xff800000\nv_mov_b32 v{Vl}, 0")
    for i in range(4): A(f"v_mov_b32 v{O+i}, 0")
    A(f"s_lshl_b32 s82, {sC}, 2\nv_mov_b32 v{VDA}, s82")
    if diag == 3: A("v_mov_b32 v225, 0\nv_mov_b32 v226, 0")
    A("v_bfe_u32 v5, v0, 3, 1\nv_lshlrev_b32 v5, 8, v5\nv_lshl_add_u32 v5, v4, 4, v5")
    A(f"s_mov_b32 s72, {hex(SCALE)}\ns_mov_b32 s73, {hex(LOG2E)}\ns_mov_b32 s74, 0xffff0000")
    A(f"s_mov_b32 s76, {sC}\ns_lshl_b32 s77, {sC}, 13\ns_add_u32 s77, s77, {RING0}\ns_mov_b32 s78, 0")
    wo_prep()
    A("s_brev_b32 s75, -2")
    A(f"L_qwait:\nds_read_b32 v1, v{VZ} offset:{L_QFLAG}\ns_waitcnt lgkmcnt(0)\nv_readfirstlane_b32 s79, v1")
    A("s_cmp_lg_u32 s79, 0\ns_cbranch_scc1 L_qgo\ns_sleep 1")
    spin("L_qwait")
    A("L_qgo:")
    for ks in range(4): A(f"ds_read_b128 {vr(Q+4*ks)}, v5 offset:{L_Q + 64*ks}")
    A("s_waitcnt lgkmcnt(0)")
    stamp(4)
    A("L_c_top:\ns_cmp_lt_i32 s76, s78\ns_cbranch_scc1 L_c_go\ns_cmp_ge_i32 s76, s75\ns_cbranch_scc1 L_c_exit")
    A(f"L_c_poll:\nds_read_b64 v[22:23], v{VZ} offset:{L_FULL}\ns_waitcnt lgkmcnt(0)")
    A("v_readfirstlane_b32 s78, v22\nv_readfirstlane_b32 s75, v23")
    A("s_cmp_lt_i32 s76, s78\ns_cbranch_scc1 L_c_go\ns_cmp_ge_i32 s76, s75\ns_cbranch_scc1 L_c_exit")
    if P["sleep"]: A(f"s_sleep {P['sleep']}")
    spin("L_c_poll")
    A("L_c_go:")
    if diag == 3:
        A("s_memrealtime s[84:85]\ns_lshr_b32 s86, s76, 2\ns_waitcnt lgkmcnt(0)\ns_and_b32 m0, s86, 63\ns_cmp_lt_u32 s86, 64\ns_cbranch_scc0 L_tr_hi")
        A("v_writelane_b32 v225, s84, m0\ns_branch L_tr_done\nL_tr_hi:\nv_writelane_b32 v226, s84, m0\nL_tr_done:")
    for ks in range(4):
        A(f"v_add_u32 v{AD+ks}, s77, v{KA+ks}\nds_read_b128 {vr(K+4*ks)}, v{AD+ks}")
    A(f"v_add_u32 v{AD+4}, s77, v{VA}")
    for r in range(4): A(f"ds_read_b128 {vr(V+4*r)}, v{AD+4} offset:{4096 + 256*r}")
    A("s_add_u32 s76, s76, 1\nv_mov_b32 v22, s76")
    for ks in range(4):
        A(f"s_waitcnt lgkmcnt({7-ks})")
        mfma(S, K + 4 * ks, Q + 4 * ks, "0" if ks == 0 else None)
    A(f"s_add_u32 s76, s76, 3\ns_add_u32 s77, s77, 0x8000\ns_sub_u32 s79, s77, {NS*8192}")
    A(f"s_cmp_ge_u32 s77, {RING0 + NS*8192}\ns_cselect_b32 s77, s79, s77")
    A(f"s_waitcnt lgkmcnt(0)\nds_write_b32 v{VDA}, v22 offset:{L_DONE}\ns_nop 0")
    for rep in range(2):
        A(f"v_cvt_pk_bf16_f32 v{PP}, v{S}, v{S+1}\nv_cvt_pk_bf16_f32 v{PP+1}, v{S+2}, v{S+3}")
        A(f"v_lshlrev_b32 v{S}, 16, v{PP}\nv_and_b32 v{S+1}, s74, v{PP}\nv_lshlrev_b32 v{S+2}, 16, v{PP+1}\nv_and_b32 v{S+3}, s74, v{PP+1}")
        if rep == 0:
            for i in range(4): A(f"v_mul_f32 v{S+i}, s72, v{S+i}")
    A(f"v_max3_f32 v22, v{S}, v{S+1}, v{S+2}\nv_max_f32 v22, v22, v{S+3}")
    A(f"v_cmp_gt_f32 vcc, v22, v{Vm}\ns_cbranch_vccnz L_c_rescale\nL_c_cont:")
    for i in range(4): A(f"v_fma_f32 v{PP+i}, v{S+i}, s73, -v{VmL}")
    for i in range(4): A(f"v_exp_f32 v{PP+i}, v{PP+i}")
    for i in range(4):
        A(f"v_cvt_pk_bf16_f32 v22, v{PP+i}, v{PP+i}")
        for v in range(4): A(f"v_and_b32 v{B+4*i+v}, v22, v{M+v}")
        A(f"v_add_f32 v{Vl}, v{Vl}, v{PP+i}")
        if i > 0: mfma(O, V + 4 * (i - 1), B + 4 * (i - 1))
    A("s_nop 0")
    mfma(O, V + 12, B + 12)
    if P["wo"] == "mid":
        A(f"s_lshr_b32 s79, s76, 2\ns_cmp_lg_u32 s79, {P['womid']//4}\ns_cbranch_scc1 L_c_top")
        wo_loads()
    A("s_branch L_c_top")
    A("L_c_rescale:")
    for op in ("v_permlane16_swap_b32", "v_permlane32_swap_b32"):
        A(f"v_mov_b32 v23, v22\ns_nop 1\n{op} v23, v22\nv_max_f32 v22, v22, v23")
    A(f"v_max_f32 v{Vm}, v{Vm}, v22\nv_mul_f32 v22, s73, v{Vm}\nv_sub_f32 v23, v{VmL}, v22\nv_exp_f32 v23, v23\nv_mov_b32 v{VmL}, v22")
    A(f"v_mul_f32 v{Vl}, v{Vl}, v23")
    for i in range(4): A(f"v_mul_f32 v{O+i}, v{O+i}, v23")
    A("s_branch L_c_cont")
    A("L_c_exit:")
    if diag == 3:
        A(f"s_lshl_b32 s84, s2, 2\ns_add_u32 s84, s84, {sC}\ns_lshl_b32 s84, s84, 9\ns_add_u32 s84, s84, {WS_DIAG + 0x20000}\nv_lshlrev_b32 v1, 2, v0")
        A(f"buffer_store_dword v225, v1, {rWS}, s84 offen\nbuffer_store_dword v226, v1, {rWS}, s84 offen offset:256")
    stamp(5)
    if P["wo"] == "exit": wo_loads()
    for op in ("v_permlane16_swap_b32", "v_permlane32_swap_b32"):
        A(f"v_mov_b32 v23, v{Vl}\ns_nop 1\n{op} v23, v{Vl}\nv_add_f32 v{Vl}, v{Vl}, v23")
    A(f"s_lshl_b32 s82, {sC}, 10\nv_lshlrev_b32 v5, 4, v0\nv_add_u32 v4, s82, v5\nds_write_b128 v4, {vr(O)} offset:{L_MO}")
    A(f"s_lshl_b32 s82, {sC}, 9\nv_lshlrev_b32 v6, 3, v0\nv_add_u32 v4, s82, v6\nv_mov_b32 v22, v{VmL}\nv_mov_b32 v23, v{Vl}\nds_write_b64 v4, v[22:23] offset:{L_MML}")
    A(f"v_mov_b32 v1, 1\ns_mov_b64 exec, 1\nds_add_rtn_u32 v1, v{VZ}, v1 offset:{L_QFLAG+4}\ns_mov_b64 exec, -1")
    for c in range(4): A(f"ds_read_b64 v[{K+2*c}:{K+2*c+1}], v6 offset:{L_MML + 512*c}")
    for c in range(4): A(f"ds_read_b128 {vr(V+4*c)}, v5 offset:{L_MO + 1024*c}")
    A(f"s_lshl_b32 s76, {sH}, 14\ns_add_u32 s76, s76, {WS_P}\ns_lshl_b32 s83, {sI}, 8\ns_add_u32 s82, s76, s83")
    A(f"s_lshl_b32 s83, {sC}, 12\ns_add_u32 s76, s76, s83")
    A(f"s_lshl_b32 s77, {sH}, 12\ns_add_u32 s77, s77, {WS_ML}\ns_lshl_b32 s83, {sI}, 6\ns_add_u32 s83, s83, s77")
    A(f"s_lshl_b32 s78, {sC}, 10\ns_add_u32 s77, s77, s78")
    A("v_and_b32 v4, 0xf0, v5\nv_lshrrev_b32 v5, 4, v0\nv_lshl_add_u32 v4, v5, 12, v4\nv_and_b32 v6, 8, v0\nv_lshl_add_u32 v2, v5, 10, v6\nv_lshlrev_b32 v6, 2, v0")
    A("s_waitcnt lgkmcnt(8)\nv_readfirstlane_b32 s78, v1\ns_cmp_lg_u32 s78, 3\ns_cbranch_scc1 L_e_wait")
    A(f"s_waitcnt lgkmcnt(4)\nv_max3_f32 v22, v{K}, v{K+2}, v{K+4}\nv_max_f32 v22, v22, v{K+6}")
    for c in range(4): A(f"v_sub_f32 v{K+2*c}, v{K+2*c}, v22")
    for c in range(4): A(f"v_exp_f32 v{K+2*c}, v{K+2*c}")
    A(f"s_waitcnt lgkmcnt(3)")
    for i in range(4): A(f"v_mul_f32 v{O+i}, v{K}, v{V+i}")
    for c in range(1, 4):
        A(f"s_waitcnt lgkmcnt({3-c})")
        for i in range(4): A(f"v_fmac_f32 v{O+i}, v{K+2*c}, v{V+4*c+i}")
    for i in range(4): A(f"v_min_u32 v{O+i}, -2, v{O+i}")
    A(f"buffer_store_dwordx4 {vr(O)}, v4, {rWS}, s82 offen sc1")
    A(f"v_mul_f32 v23, v{K}, v{K+1}")
    for c in range(1, 4): A(f"v_fmac_f32 v23, v{K+2*c}, v{K+2*c+1}")
    A("v_min_u32 v22, -2, v22\nv_min_u32 v23, -2, v23\ns_mov_b32 exec_lo, 0x01010101\ns_mov_b32 exec_hi, 0x01010101")
    A(f"buffer_store_dwordx2 v[22:23], v2, {rWS}, s83 offen sc1\ns_mov_b64 exec, -1")
    if P["gate"]:
        A(f"v_mov_b32 v1, 1\nds_write_b32 v{VZ}, v1 offset:{L_QFLAG+12}\ns_branch L_e_l1")
        A(f"L_e_wait:\nds_read_b32 v1, v{VZ} offset:{L_QFLAG+12}\ns_waitcnt lgkmcnt(0)\nv_cmp_ne_u32 vcc, 0, v1\ns_cbranch_vccnz L_e_l1")
        spin("L_e_wait")
    else:
        A("L_e_wait:")
    A("L_e_l1:\ns_waitcnt lgkmcnt(0)")
    stamp(6); stamp(6, 5)
    A(f"s_sub_u32 s78, {sI}, 1\ns_cmp_gt_u32 s78, 8\ns_cbranch_scc1 L_e_done")
    A("v_and_b32 v4, 15, v0\nv_lshlrev_b32 v4, 6, v4\nv_lshrrev_b32 v5, 5, v0\nv_lshl_add_u32 v4, v5, 3, v4")
    if P["inc"]:
        A("s_mov_b32 s79, 0xffff\nL_l1_poll:")
        A(f"buffer_load_dwordx2 v[22:23], v4, {rWS}, s77 offen sc1")
        for p in range(16):
            A(f"s_bitcmp1_b32 s79, {p}\ns_cselect_b64 exec, -1, 0\nbuffer_load_dword v{K+p}, v6, {rWS}, s76 offen offset:{256*p} sc1")
        A("s_mov_b64 exec, -1\ns_waitcnt vmcnt(0)\nv_max_u32 v1, v22, v23\nv_cmp_eq_u32 vcc, -1, v1")
        A(f"v_max3_u32 v1, v{K}, v{K+1}, v{K+2}")
        for p in range(3, 15, 2): A(f"v_max3_u32 v1, v1, v{K+p}, v{K+p+1}")
        A(f"v_max_u32 v1, v1, v{K+15}\ns_or_b32 s79, vcc_lo, vcc_hi\ns_cbranch_scc1 L_l1_miss")
        A("v_cmp_eq_u32 vcc, -1, v1\ns_cbranch_vccz L_l1_ok\ns_mov_b32 s79, 0xffff\nL_l1_miss:")
        if P["psleep"]: A(f"s_sleep {P['psleep']}")
        spin("L_l1_poll")
    else:
        A("L_l1_poll:")
        A(f"buffer_load_dwordx2 v[22:23], v4, {rWS}, s77 offen sc1")
        for p in range(16): A(f"buffer_load_dword v{K+p}, v6, {rWS}, s76 offen offset:{256*p} sc1")
        A("s_waitcnt vmcnt(14)\n" + f"v_max3_u32 v1, v22, v23, v{K}\nv_max_u32 v1, v1, v{K+1}")
        for p in range(2, 16, 2): A(f"s_waitcnt vmcnt({14-p})\nv_max3_u32 v1, v1, v{K+p}, v{K+p+1}")
        A("v_cmp_eq_u32 vcc, -1, v1\ns_cbranch_vccz L_l1_ok")
        spin("L_l1_poll")
    A("L_l1_ok:")
    stamp(3, 5)
    A("v_mov_b32 v1, v22")
    for r in (8, 4, 2, 1): A(f"s_nop 1\nv_max_f32_dpp v1, v1, v1 row_ror:{r} row_mask:0xf bank_mask:0xf")
    A("v_sub_f32 v22, v22, v1\nv_exp_f32 v22, v22\ns_nop 0\nv_mul_f32 v23, v22, v23")
    for r in (8, 4, 2, 1): A(f"s_nop 1\nv_add_f32_dpp v23, v23, v23 row_ror:{r} row_mask:0xf bank_mask:0xf")
    A("v_rcp_f32 v23, v23\nv_mov_b32 v1, 0\nv_mul_f32 v22, v22, v23\nv_mov_b32 v2, 0\nv_mov_b32 v3, 0\nv_mov_b32 v5, 0")
    acc = (1, 2, 3, 5)
    for p in range(16): A(f"v_fmac_f32_dpp v{acc[p&3]}, v22, v{K+p} row_newbcast:{p} row_mask:0xf bank_mask:0xf")
    A("v_add_f32 v1, v1, v2\nv_add_f32 v3, v3, v5\nv_add_f32 v1, v1, v3\nv_cvt_pk_bf16_f32 v1, v1, v1\ns_nop 1")
    for t in range(8): A(f"v_mov_b32_dpp v{V+t}, v1 row_newbcast:{t} row_mask:0xf bank_mask:0x3")
    for t in range(8): A(f"v_mov_b32_dpp v{V+t}, v1 row_newbcast:{8+t} row_mask:0xf bank_mask:0xc")
    for t in range(8):
        for v in range(4): A(f"v_and_b32 v{B+4*(t&3)+v}, v{V+t}, v{M+v}")
        if t > 0: mfma(S, WO + 4 * (t - 1), B + 4 * ((t - 1) & 3), "0" if t == 1 else None)
    A("s_nop 0")
    mfma(S, WO + 28, B + 12)
    stamp(5, 5)
    A(f"s_lshl_b32 s82, {sC}, 9\nv_lshrrev_b32 v4, 5, v0\nv_lshl_add_u32 v4, v4, 8, v{VPL}\nv_add_u32 v4, s82, v4\nv_mov_b32 v1, 1")
    exec_valid()
    A(f"s_lshl_b32 s82, s78, 13\ns_lshl_b32 s83, {sH}, 9\ns_add_u32 s82, s82, s83\ns_add_u32 s82, s82, {WS_Y}")
    A(f"ds_write_b128 v4, {vr(S)} offset:{L_Y}\ns_mov_b64 exec, 1")
    A(f"ds_add_rtn_u32 v1, v{VZ}, v1 offset:{L_QFLAG+8}\ns_mov_b64 exec, -1")
    for i in range(8): A(f"ds_read_b32 v{K+i}, v6 offset:{L_Y + 256*i}")
    A(f"s_add_u32 {sT}, {sT}, 0x9e3779b9\nv_mov_b32 v23, {sT}\nv_lshlrev_b32 v4, 3, v0")
    A("s_waitcnt lgkmcnt(8)\nv_readfirstlane_b32 s78, v1\ns_cmp_lg_u32 s78, 3\ns_cbranch_scc1 L_e_done")
    A(f"s_waitcnt lgkmcnt(4)\nv_add_f32 v{K}, v{K}, v{K+1}\nv_add_f32 v{K+2}, v{K+2}, v{K+3}")
    A(f"s_waitcnt lgkmcnt(0)\nv_add_f32 v{K+4}, v{K+4}, v{K+5}\nv_add_f32 v{K+6}, v{K+6}, v{K+7}")
    A(f"v_add_f32 v{K}, v{K}, v{K+2}\nv_add_f32 v{K+4}, v{K+4}, v{K+6}\nv_add_f32 v22, v{K}, v{K+4}")
    A(f"buffer_store_dwordx2 v[22:23], v4, {rWS}, s82 offen sc1")
    A("L_e_done:")
    stamp(7); stamp(7, 5)
    dump_stamps()
    A("L_end:\ns_endpgm")

    A("L_ffn:")
    ACC, DG, DU = 28, 64, 68
    FS = RING0 + 16384
    for i in range(36): A(f"v_mov_b32 v{ACC+i}, 0")
    A(f"s_and_b32 s73, {sH}, 1\ns_lshr_b32 s74, {sC}, 2\ns_and_b32 s74, s74, s73\ns_cbranch_scc1 L_ffn_out")
    A(f"s_mul_i32 s73, s73, 5\ns_lshr_b32 s74, {sH}, 1\ns_mul_i32 s74, s74, 9\ns_add_u32 s73, s73, s74\ns_add_u32 s73, s73, {sC}")
    srd(rWG, 16, 576 * 9216); srd(rWU, 18, 576 * 9216); srd(rWD, 20, 4608 * 1152)
    A("v_lshrrev_b32 v4, 3, v0\nv_and_b32 v5, 7, v0\nv_lshlrev_b32 v5, 4, v5")
    A("v_mul_u32_u24 v2, 0x2400, v4\nv_add_u32 v2, v2, v5\nv_mul_u32_u24 v3, 0x480, v4\nv_add_u32 v3, v3, v5")
    for i in range(8): A(f"v_mov_b32 v{DG+i}, 0")
    A("s_lshl_b32 s74, s73, 7")
    assert FW % 2 == 0
    def gu_load(n):
        A(f"buffer_load_dwordx4 {vr(RG+4*(n%16))}, v2, {rWU if n & 1 else rWG}, s74 offen {wpol}")
        if n & 1: A(f"s_add_u32 s74, s74, {8*9216}")
    for n in range(FW): gu_load(n)
    A("s_mov_b32 s75, 0\nL_ffn_gu:")
    for t in range(8):
        bbuild(X, t, B + 4 * (t & 1))
        for m in range(2):
            n = 2 * t + m
            A(f"s_waitcnt vmcnt({FW-1})")
            gu_load(n + FW)
            mfma(DU if m else DG, RG + 4 * n, B + 4 * (t & 1))
    for k in range(8): A(f"v_mov_b32 v{X+k}, v{X+k+1}")
    A("s_add_u32 s75, s75, 1\ns_cmp_lt_u32 s75, 9\ns_cbranch_scc1 L_ffn_gu")
    A(f"s_mul_i32 s74, s73, {64*1152}")
    def wd_load(n):
        t, ct = divmod(n, 9)
        A(f"buffer_load_dwordx4 {vr(RG+4*(n%16))}, v3, {rWD}, s74 offen offset:{ct*128} {wpol}")
        if ct == 8: A(f"s_add_u32 s74, s74, {8*1152}")
    A("s_waitcnt vmcnt(0)")
    for n in range(FW): wd_load(n)
    A(f"s_lshl_b32 s75, {sC}, 10\ns_add_u32 s75, s75, {FS + 32768}")
    A(f"v_lshrrev_b32 v4, 5, v0\nv_lshl_add_u32 v4, v4, 8, v{VPL}\nv_add_u32 v4, s75, v4")
    exec_valid()
    A(f"ds_write_b128 v4, {vr(DG)}\nds_write_b128 v4, {vr(DU)} offset:512\ns_mov_b64 exec, -1")
    A("v_bfe_u32 v4, v0, 2, 1\nv_lshrrev_b32 v5, 3, v0\nv_lshl_add_u32 v4, v4, 3, v5\nv_and_b32 v5, 3, v0\nv_lshl_add_u32 v4, v4, 2, v5")
    A("v_lshlrev_b32 v4, 2, v4\nv_add_u32 v4, s75, v4\ns_waitcnt lgkmcnt(0)")
    A("ds_read_b32 v64, v4\nds_read_b32 v65, v4 offset:256\nds_read_b32 v66, v4 offset:512\nds_read_b32 v67, v4 offset:768")
    A("s_waitcnt lgkmcnt(0)\nv_add_f32 v64, v64, v65\nv_add_f32 v66, v66, v67")
    rbf(64, 64); rbf(66, 66)
    A(f"v_mul_f32 v64, {hex(LOG2E ^ 0x80000000)}, v64\nv_exp_f32 v64, v64\ns_nop 0\nv_add_f32 v64, 1.0, v64\nv_rcp_f32 v64, v64\ns_nop 0")
    rbf(64, 64)
    A(f"v_mul_f32 v64, v64, v66\nv_cvt_pk_bf16_f32 v{X}, v64, v64\ns_nop 1")
    for n in range(72):
        t, ct = divmod(n, 9)
        if ct == 0: bbuild(X, t, B + 4 * (t & 1))
        A(f"s_waitcnt vmcnt({min(FW-1, 71-n)})")
        if n + FW < 72: wd_load(n + FW)
        else: A("s_nop 0")
        mfma(ACC + 4 * ct, RG + 4 * (n % 16), B + 4 * (t & 1))
    A("L_ffn_out:")
    A(f"s_mul_i32 s75, {sC}, 4608\ns_add_u32 s75, s75, {FS}")
    A(f"v_lshrrev_b32 v4, 5, v0\nv_mul_u32_u24 v4, 0x900, v4\nv_add3_u32 v4, v4, v{VPL}, s75\ns_nop 4")
    exec_valid()
    for ct in range(9): A(f"ds_write_b128 v4, {vr(ACC+4*ct)} offset:{ct*256}")
    A("s_mov_b64 exec, -1\ns_waitcnt lgkmcnt(0)\ns_barrier")
    A(f"s_cmp_gt_u32 {sC}, 2\ns_cbranch_scc1 L_ffn_done")
    A(f"s_lshl_b32 s75, {sC}, 6\nv_add_u32 v4, s75, v0\nv_cmp_gt_u32 vcc, 0x90, v4\ns_and_saveexec_b64 s[82:83], vcc")
    A(f"v_lshlrev_b32 v5, 4, v4\nv_add_u32 v5, {FS}, v5")
    for s_ in range(10): A(f"ds_read_b128 {vr(ACC+4*s_)}, v5 offset:{s_*2304}")
    A(f"v_lshrrev_b32 v5, 4, v4\nv_and_b32 v4, 15, v4\nv_lshlrev_b32 v4, 5, v4\nv_lshl_add_u32 v4, v5, 13, v4")
    A(f"s_lshl_b32 s75, {sH}, 9\ns_add_u32 s75, s75, {WS_F}\ns_waitcnt lgkmcnt(0)\ns_add_u32 s74, {sT}, 0x9e3779b9")
    for s_ in range(1, 10):
        for i in range(4): A(f"v_add_f32 v{ACC+i}, v{ACC+i}, v{ACC+4*s_+i}")
    for i in range(4): A(f"v_mov_b32 v{ACC+8+2*i}, v{ACC+i}\nv_mov_b32 v{ACC+9+2*i}, s74")
    A(f"buffer_store_dwordx4 {vr(ACC+8)}, v4, {rWS}, s75 offen sc1")
    A(f"buffer_store_dwordx4 {vr(ACC+12)}, v4, {rWS}, s75 offen offset:16 sc1")
    A("s_mov_b64 exec, -1")
    A("L_ffn_done:")
    A("s_barrier")
    stamp(3)
    A(f"s_cmp_eq_u32 {sW}, 5\ns_cbranch_scc1 L_qgather\ns_branch L_cons_main")

    errs = hazard.check(L)
    if errs:
        print("\n".join(errs)); raise SystemExit("hazards found")
    lds = RING0 + NS * 8192
    body = "\n".join(x if x.endswith(":") else "    " + x for x in L)
    head = HEADER.replace("@LAUNCH@", f"; @launch grid=(256,1,1) block=({64*NW},1,1) lds={lds}")
    tail = f"""
.section .rodata,"a"
.p2align 6
.amdhsa_kernel {NAME}_kernel
  .amdhsa_next_free_vgpr 228
  .amdhsa_next_free_sgpr 102
  .amdhsa_accum_offset 228
  .amdhsa_group_segment_fixed_size 0
  .amdhsa_kernarg_size 96
  .amdhsa_user_sgpr_count 2
  .amdhsa_user_sgpr_kernarg_segment_ptr 1
  .amdhsa_system_sgpr_workgroup_id_x 1
  .amdhsa_float_denorm_mode_32 3
.end_amdhsa_kernel
"""
    return head + body + tail, lds

if __name__ == "__main__":
    out = sys.argv[1]
    kw = eval("dict(" + (sys.argv[2] if len(sys.argv) > 2 else "") + ")")
    txt, lds = build(**kw)
    open(out, "w").write(txt)
    import subprocess
    r = subprocess.run([sys.executable, "cdna_unwritten_srd_check.py", out], capture_output=True, text=True)
    print(r.stdout.strip()[:1500])
```

```python
import sys, os
sys.path.insert(0, os.path.dirname(os.path.abspath(__file__)))
import hazard

NAME = "recurrent_scan__gqa_block_cached__glu_gated_glu__decode"
HEADER = open(os.path.join(os.path.dirname(os.path.abspath(__file__)), "header.txt")).read()

WS_QP, WS_P, WS_ML, WS_Y, WS_F, WS_CNT, WS_EPOCH, WS_DIAG = 0x0, 0x20000, 0x60000, 0x70000, 0x84000, 0x98000, 0x9c000, 0x100000
L_FULL, L_DONE, L_QFLAG, L_QUE, L_Q, L_MO, L_MML, L_Y, RING0 = 0, 1024, 1040, 1152, 1536, 2048, 6144, 8192, 12288
LOG2E = 0x3FB8AA3B
SCALE = 0x3DB504F3
VALID = "0xff00ff00", "0x00ff00ff"
NW = 6

DEF = dict(F=21, NS=18, FW=6, SN=(264, 263), pol="nt", wpol="nt", diag=False, hmap="div", sleep=0, spin=0x200000,
           dyn=True, S=248, SA=124, AH=5, chunk=1, wo="exit", hrot=0, spread=True, ways=15, pmul=1, dbgt=False, apol="sc0", cstride=256, Fx=None, cc=1, inc=False, psleep=0, qinc=True, qdelay=7, womid=200, Fh=None, fpipe=True, gate=True, N1=None, N4=128, AHA=8, fake=0, Fd=24, pre="load", l1pipe=1, vlate=False)

def build(**kw):
    P = dict(DEF); P.update(kw)
    F, NS, FW, pol, wpol, diag, dyn = P["F"], P["NS"], P["FW"], P["pol"], P["wpol"], P["diag"], P["dyn"]
    L = []
    def A(s):
        for x in s.strip("\n").split("\n"):
            L.append(x.strip())
    sW, sH, sI, sC, sT = "s28", "s29", "s30", "s31", "s100"
    rK, rV, rWS, rX, rWQ, rWO, rWG, rWU, rWD, rOUT = ("s[32:35]", "s[36:39]", "s[40:43]", "s[44:47]", "s[48:51]",
                                                    "s[52:55]", "s[56:59]", "s[60:63]", "s[64:67]", "s[68:71]")
    def srd(r, ptr, n):
        b = int(r[2:r.index(":")])
        A(f"s_mov_b64 s[{b}:{b+1}], s[{ptr}:{ptr+1}]\ns_mov_b32 s{b+2}, {n}\ns_mov_b32 s{b+3}, 0x20000")
    def vr(b, n=4): return f"v[{b}:{b+n-1}]"
    M, KA, VA, VZ, Vm, VmL, Vl, VDA = 8, 12, 16, 17, 18, 19, 20, 21
    O, Q, K, V, S, PP, B, AD, WO, X, XR, RG, DQ = 24, 28, 44, 60, 76, 80, 84, 100, 108, 140, 149, 152, 224
    VPL = 105
    def stamp(k, set_=1):
        if diag and (diag == set_ or k in (0, 1, 2, 4)) and not (diag == 3 and k == 4):
            A(f"s_memrealtime s[{84+2*k}:{85+2*k}]\ns_waitcnt lgkmcnt(0)")
    def dump_stamps():
        if diag:
            A(f"s_mul_i32 s76, s2, {NW}\ns_add_u32 s76, s76, {sW}\ns_lshl_b32 s76, s76, 5\ns_add_u32 s76, s76, {WS_DIAG}")
            A("s_mov_b64 exec, 1\nv_mov_b32 v1, s76")
            for k in range(8):
                A(f"v_mov_b32 v2, s{84+2*k}\nglobal_store_dword v1, v2, s[26:27] offset:{4*k}")
            A("s_mov_b64 exec, -1")
    def dbg_time(slot, inv=False):
        if P["dbgt"]:
            A("s_memrealtime s[98:99]\ns_waitcnt lgkmcnt(0)")
            if inv: A("s_not_b32 s98, s98")
            A(f"s_mov_b64 exec, 1\nv_mov_b32 v225, {4*slot}\nv_mov_b32 v226, s98\nglobal_atomic_umax v225, v226, s[24:25] sc1\ns_mov_b64 exec, -1")
    def spin(lbl):
        A(f"s_sub_u32 s3, s3, 1\ns_cbranch_scc0 {lbl}\ns_endpgm")
    def wave_sum(v, t):
        for r in (8, 4, 2, 1):
            A(f"s_nop 1\nv_add_f32_dpp v{v}, v{v}, v{v} row_ror:{r} row_mask:0xf bank_mask:0xf")
        for op in ("v_permlane16_swap_b32", "v_permlane32_swap_b32"):
            A(f"v_mov_b32 v{t}, v{v}\ns_nop 1\n{op} v{t}, v{v}\nv_add_f32 v{v}, v{v}, v{t}")
    def rbf(d, s):
        A(f"v_cvt_pk_bf16_f32 v{d}, 0, v{s}")
    def bbuild(src, t, b):
        A(f"v_mov_b32_dpp v7, v{src} row_newbcast:{t} row_mask:0xf bank_mask:0x3\ns_nop 1")
        A(f"v_mov_b32_dpp v7, v{src} row_newbcast:{8+t} row_mask:0xf bank_mask:0xc")
        for v in range(4):
            A(f"v_and_b32 v{b+v}, v7, v{M+v}")
    def mfma(d, a, b, c=None):
        A(f"v_mfma_f32_16x16x32_bf16 {vr(d)}, {vr(a)}, {vr(b)}, {vr(d) if c is None else c}")
    def exec_valid():
        A(f"s_mov_b32 exec_lo, {VALID[1]}\ns_mov_b32 exec_hi, {VALID[0]}")
    VT, VFF = 107, 103
    def tagchk(acc, regs, first=False):
        regs = list(regs)
        if first:
            A(f"v_bitop3_b32 v{acc}, v{regs[0]}, v{regs[1]}, v{VT} bitop3:0x7e"); regs = regs[2:]
        for r in regs: A(f"v_bitop3_b32 v{acc}, v{acc}, v{r}, v{VT} bitop3:0xf6")
    def tagtest(acc, dst="vcc"):
        A(f"v_and_b32 v{acc}, 0xff, v{acc}\nv_cmp_ne_u32 {dst}, 0, v{acc}")
    def tagput(r):
        A(f"v_perm_b32 v{r}, v{r}, v{VT}, s101")
    def tagprep():
        A(f"s_add_u32 s82, {sT}, 0x9e3779b9\nv_mov_b32 v{VT}, s82\ns_mov_b32 s101, 0x07060500")

    A(f"{NAME}_kernel:")
    if diag == 6: A("s_memrealtime s[90:91]")
    A("s_cmp_ge_u32 s2, 256\ns_cbranch_scc1 L_end")
    A("s_load_dwordx16 s[4:19], s[0:1], 0\ns_load_dwordx8 s[20:27], s[0:1], 64")
    if diag and diag != 6:
        for k in range(8): A(f"s_mov_b32 s{84+2*k}, 0")
    A("v_lshrrev_b32 v1, 6, v0\nv_and_b32 v0, 63, v0")
    A(f"v_readfirstlane_b32 {sW}, v1")
    if P["hmap"] == "div":
        A(f"s_lshr_b32 {sH}, s2, 4\ns_and_b32 {sI}, s2, 15")
    else:
        A(f"s_and_b32 {sH}, s2, 7\ns_lshl_b32 {sH}, {sH}, 1\ns_bfe_u32 s76, s2, 0x10003\ns_or_b32 {sH}, {sH}, s76\ns_lshr_b32 {sI}, s2, 4")
    A(f"v_mov_b32 v{VZ}, 0\ns_mov_b32 s3, {P['spin']}")
    A(f"s_sub_u32 {sC}, {sW}, 1")
    A(f"s_cmp_lg_u32 {sW}, 0\ns_cbranch_scc1 L_other")
    Fx = P["Fx"] or (list(P["Fh"]) * 4 if P["Fh"] else [F] * 8)
    import math
    dt = (7 + math.ceil(max(Fx + [F, P["Fd"] or F]))) // 8
    ch = P["chunk"]
    assert ch == 0 or all(x % ch == 0 for x in ((P["S"],) if dyn else P["SN"]))
    assert P["SA"] > 2
    A("s_setprio 3")
    A("v_lshrrev_b32 v1, 4, v0\nv_and_b32 v4, 15, v0")
    sp = 3072 if P["spread"] else 0
    LV = 20
    for j in range(4):
        A(f"v_add_u32 v5, {4*j}, v1\nv_xor_b32 v5, v5, v4\nv_lshlrev_b32 v5, 4, v5\nv_lshl_add_u32 v{KA+j}, v1, 8, v5")
        if j and sp: A(f"v_add_u32 v{KA+j}, {sp*j}, v{KA+j}")
    A(f"v_lshlrev_b32 v{LV}, 4, v0")
    for j in range(1, 4): A(f"v_add_u32 v{LV+j}, {sp*j}, v{LV}")
    A("v_lshlrev_b32 v6, 4, v0")
    A(f"v_mov_b32 v24, {-dt}\nv_bfrev_b32 v25, -2\nv_mov_b32 v26, {-dt}")
    A(f"ds_write_b96 v6, v[24:26] offset:{L_FULL}")
    A(f"v_lshlrev_b32 v1, 2, v0\nds_write_b32 v1, v{VZ} offset:{L_DONE}")
    A(f"ds_read_b128 v[8:11], v{VZ} offset:{L_DONE}")
    if dyn:
        A(f"s_movk_i32 s78, {P['S']}")
    else:
        A(f"s_movk_i32 s78, {P['SN'][0]}\ns_bitcmp1_b32 {sH}, 0\ns_cselect_b32 s78, {P['SN'][1]}, s78")
    ways = P["ways"]
    if ways == 16:
        assert dyn and ch
        A(f"s_mul_i32 s76, {sI}, {ch}\ns_movk_i32 s77, {15*ch+1}")
        A(f"s_cmp_eq_u32 {sI}, 0\ns_cselect_b32 s78, {P['SA']}, s78")
    else:
        if ch:
            A(f"s_sub_u32 s76, {sI}, 1\ns_mul_i32 s76, s76, {ch}\ns_movk_i32 s77, {14*ch+1}")
        else:
            A(f"s_sub_u32 s76, {sI}, 1\ns_mul_i32 s76, s76, s78\ns_mov_b32 s77, 1")
        A(f"s_cmp_lg_u32 {sI}, 0\ns_cbranch_scc1 L_ld_sched")
        A("s_mul_i32 s76, s78, 15\ns_mov_b32 s77, 1")
        A(f"s_movk_i32 s78, {P['SA']}" if dyn else "s_sub_u32 s78, 4096, s76")
        A("L_ld_sched:")
    A(f"s_mul_i32 s71, {sH}, {P['hrot']}\ns_add_u32 s76, s76, s71\ns_lshl_b32 s72, {sH}, 24")
    A(f"s_mov_b32 s79, 0\ns_mov_b32 s80, {RING0}\ns_mov_b32 s81, {1-NS}")
    A("s_waitcnt lgkmcnt(0)")
    srd(rK, 6, 0x10000000); srd(rV, 8, 0x10000000)
    stamp(0)
    def waits(f):
        e = round(f * 8); lo, k = divmod(e, 8)
        return [lo + ((j + 1) * k // 8 - j * k // 8) for j in range(8)]
    def tile_loads(f, bar=None):
        if P["spread"]:
            A("s_and_b32 s75, s76, 0xffc\ns_lshl_b32 s75, s75, 12\ns_or_b32 s75, s75, s72\ns_and_b32 s83, s76, 3\ns_lshl_b32 s83, s83, 10\ns_or_b32 s75, s75, s83")
        else:
            A("s_and_b32 s75, s76, 0xfff\ns_lshl_b32 s75, s75, 12\ns_or_b32 s75, s75, s72")
        w = waits(f)
        jp = min(j for j in range(8) if j - w[j] >= 7 - 8 * dt)
        for j in range(8):
            if j == 4: A("s_add_u32 m0, s80, 0x1000")
            if bar is not None and j == min(int(f) - 16, 7):
                A(f"s_cmp_eq_u32 s79, 2\ns_cbranch_scc1 L_ld_bar{bar}\nL_ld_barx{bar}:")
            A(f"s_waitcnt vmcnt({w[j]-1})")
            if j < 4: A(f"buffer_load_dwordx4 v{KA+j}, {rK}, s75 offen offset:{j*1024} {pol} lds")
            else: A(f"buffer_load_dwordx4 v{LV+j-4}, {rV}, s75 offen offset:{(j-4)*1024} {pol} lds")
            if j == jp:
                A(f"v_add_u32 v24, 1, v24\nv_add_u32 v26, 1, v26\nds_write_b96 v6, v[24:26] offset:{L_FULL}")
        A("s_add_u32 s80, s80, 0x2000")
        A(f"s_cmp_eq_u32 s80, {RING0 + NS*8192}\ns_cselect_b32 s80, {RING0}, s80")
        A("s_add_u32 s81, s81, 1\ns_add_u32 s79, s79, 1")
    fvals = sorted(set(Fx))
    if len(fvals) > 1:
        if P["Fh"]: A(f"s_and_b32 s70, {sH}, 1\ns_lshl_b32 s70, s70, 2")
        else: A("s_getreg_b32 s70, hwreg(HW_REG_XCC_ID, 0, 3)\ns_lshl_b32 s70, s70, 2")
        A(f"s_lshr_b32 s70, {sum(fvals.index(f) << (4*x) for x, f in enumerate(Fx))}, s70\ns_and_b32 s70, s70, 15")
    A("L_ld_pick:")
    for i in range(1, len(fvals)):
        A(f"s_cmp_eq_u32 s70, {i}\ns_cbranch_scc1 L_ld_loop{i}")
    for i, f in enumerate(fvals):
        A(f"L_ld_loop{i}:")
        A("s_waitcnt lgkmcnt(0)\nv_min3_u32 v4, v8, v9, v10\nv_min_u32 v4, v4, v11")
        A("s_mov_b32 m0, s80\nv_readfirstlane_b32 s82, v4")
        A(f"ds_read_b128 v[8:11], v{VZ} offset:{L_DONE}")
        A("s_cmp_lt_i32 s82, s81\ns_cbranch_scc1 L_ld_full")
        if diag == 4:
            for k, n in ((3, 3), (4, 10), (5, 17), (6, 18), (7, 40)):
                A(f"s_cmp_lg_u32 s79, {n}\ns_cbranch_scc1 L_d4_{i}_{k}\ns_memrealtime s[{84+2*k}:{85+2*k}]\nL_d4_{i}_{k}:")
        tile_loads(f, i)
        if ch > 1:
            A(f"s_and_b32 s83, s79, {ch-1}\ns_cselect_b32 s83, 1, s77\ns_add_u32 s76, s76, s83")
        else:
            A("s_add_u32 s76, s76, s77")
        A(f"s_cmp_lt_u32 s79, s78\ns_cbranch_scc1 L_ld_loop{i}")
        if i + 1 < len(fvals): A("s_branch L_ld_send")
    A("L_ld_send:")
    if dyn:
        def que_read(n):
            A(f"s_and_b32 s83, {n}, 31\ns_lshl_b32 s83, s83, 2\nv_mov_b32 v5, s83\nds_read_b32 v7, v5 offset:{L_QUE}")
        stamp(3)
        A("L_ld_dre:")
        que_read("s79")
        A("L_ld_dyn:")
        A("s_waitcnt lgkmcnt(0)\nv_min3_u32 v4, v8, v9, v10\nv_min_u32 v4, v4, v11\nv_readfirstlane_b32 s73, v7")
        A("s_mov_b32 m0, s80\nv_readfirstlane_b32 s82, v4")
        A(f"ds_read_b128 v[8:11], v{VZ} offset:{L_DONE}")
        A("s_add_u32 s74, s79, 1\ns_lshr_b32 s75, s73, 16\ns_cmp_lg_u32 s75, s74\ns_cbranch_scc1 L_ld_dfull")
        A("s_cmp_lt_i32 s82, s81\ns_cbranch_scc1 L_ld_dfull")
        A("s_and_b32 s73, s73, 0xffff\ns_cmp_ge_u32 s73, 0x1000\ns_cbranch_scc1 L_ld_drain")
        A("s_add_u32 s76, s73, s71")
        que_read("s74")
        tile_loads(P["Fd"] or F)
        A("s_branch L_ld_dyn")
    A("L_ld_drain:")
    stamp(1)
    A("v_mov_b32 v25, s79")
    for r in range(dt - 1, -1, -1):
        A(f"s_waitcnt vmcnt({8*r+4})\nv_add_u32 v26, 1, v26\nds_write_b96 v6, v[24:26] offset:{L_FULL}")
        A(f"s_waitcnt vmcnt({8*r})\nv_add_u32 v24, 1, v24\nds_write_b96 v6, v[24:26] offset:{L_FULL}")
    stamp(2)
    dbg_time(2)
    if diag and diag not in (4, 6): A(f"s_mov_b32 s94, s79\ns_sub_u32 s96, {P['spin']}, s3")
    dump_stamps()
    A("s_endpgm")
    A("L_ld_full:")
    spin("L_ld_pick")
    if dyn:
        A("L_ld_dfull:")
        spin("L_ld_dre")
    for i in range(len(fvals)):
        A(f"L_ld_bar{i}:")
        stamp(5, 6)
        A("s_waitcnt lgkmcnt(0)\ns_barrier")
        stamp(6, 6)
        A(f"s_cmp_lg_u32 {sI}, 0\ns_cbranch_scc1 L_ld_barx{i}\ns_barrier\ns_barrier\ns_branch L_ld_barx{i}")

    A("L_other:")
    A("s_waitcnt lgkmcnt(0)")
    srd(rX, 4, 1152); srd(rWS, 26, 0x200000)
    if P["dbgt"]:
        A(f"s_cmp_lg_u32 {sW}, 4\ns_cbranch_scc1 L_dbg0")
        dbg_time(0, True)
        A("L_dbg0:")
    A(f"s_load_dword {sT}, s[26:27], {WS_EPOCH}")
    stamp(0)
    A(f"s_cmp_eq_u32 {sW}, 5\ns_cbranch_scc1 L_xload")
    A(f"s_cmp_lg_u32 {sI}, 0\ns_cbranch_scc1 L_pre_done")
    A("L_xload:")
    A("v_and_b32 v1, 7, v0\nv_lshrrev_b32 v4, 3, v0\nv_lshl_add_u32 v5, v1, 3, v4\nv_lshlrev_b32 v5, 1, v5")
    for k in range(9): A(f"buffer_load_ushort v{X+k}, v5, {rX}, 0 offen offset:{128*k}")
    A(f"s_cmp_lg_u32 {sW}, 5\ns_cbranch_scc1 L_pre_done")
    A(f"s_and_b32 s82, {sI}, 3\ns_mul_i32 s82, s82, 288")
    for k in range(3): A(f"buffer_load_ushort v{XR+k}, v5, {rX}, s82 offen offset:{128*k}")
    srd(rWQ, 10, 576 * 8192)
    A("v_lshlrev_b32 v5, 4, v1\nv_lshl_add_u32 v5, v4, 13, v5")
    A(f"s_lshl_b32 s82, s82, 12\ns_lshl_b32 s83, {sH}, 9\ns_add_u32 s82, s82, s83")
    A(f"s_lshr_b32 s83, {sI}, 2\ns_lshl_b32 s83, s83, 7\ns_add_u32 s82, s82, s83")
    for p in range(18):
        A(f"buffer_load_dwordx4 {vr(RG+4*p)}, v5, {rWQ}, s82 offen {wpol}")
        if p < 17: A("s_add_u32 s82, s82, 0x10000")
    if dyn:
        A(f"s_cmp_lg_u32 {sI}, 0\ns_cbranch_scc1 L_pre_done\ns_mov_b64 exec, 1")
        A(f"s_mul_i32 s82, {sH}, {P['cstride']}\ns_add_u32 s82, s82, {WS_CNT}\nbuffer_store_dword v{VZ}, v{VZ}, {rWS}, s82 offen sc1")
        A("s_mov_b64 exec, -1")
    VWO = 104 + 2
    def wo_prep():
        srd(rWO, 12, 4096 * 1152)
        A(f"s_sub_u32 s82, {sI}, 1\ns_cmp_gt_u32 s82, 8\ns_cselect_b32 s54, 0, s54")
        A("v_lshrrev_b32 v2, 5, v0\nv_lshlrev_b32 v2, 7, v2\nv_bfe_u32 v3, v0, 3, 2\nv_lshl_add_u32 v2, v3, 1, v2")
        A(f"v_mul_u32_u24 v2, 0x480, v2\nv_and_b32 v3, 7, v0\nv_lshl_add_u32 v{VWO}, v3, 4, v2")
        A(f"s_lshl_b32 s82, s82, 7\ns_lshl_b32 s83, {sH}, 3\ns_add_u32 s83, s83, {sC}\ns_mul_i32 s83, s83, {32*1152}\ns_add_u32 s48, s82, s83")
        for t in range(1, 4): A(f"s_add_u32 s{48+t}, s48, {8*t*1152}")
    def wo_loads():
        for t in range(8):
            A(f"buffer_load_dwordx4 {vr(WO+4*t)}, v{VWO}, {rWO}, s{48+(t&3)} offen offset:{(t>>2)*1152} {wpol}")
    A("L_pre_done:")
    A("s_barrier")
    A("v_and_b32 v1, 1, v0\nv_lshlrev_b32 v1, 4, v1\nv_mov_b32 v4, 0xffff\nv_lshlrev_b32 v4, v1, v4\nv_bfe_u32 v5, v0, 1, 2")
    for v in range(4):
        A(f"v_cmp_eq_u32 vcc, {v}, v5\ns_nop 1\nv_cndmask_b32 v{M+v}, 0, v4, vcc")
    A(f"v_bfe_u32 v4, v0, 4, 1\nv_and_b32 v5, 7, v0\nv_lshl_add_u32 v4, v4, 3, v5\nv_lshlrev_b32 v{VPL}, 4, v4")
    A(f"s_cmp_eq_u32 {sW}, 5\ns_cbranch_scc1 L_ln")
    A(f"s_cmp_lg_u32 {sI}, 0\ns_cbranch_scc1 L_cons_main\ns_waitcnt vmcnt(0)")
    A("L_ln:")
    stamp(3, 2)
    A("s_waitcnt vmcnt(21)")
    stamp(5, 2)
    for k in range(9): A(f"v_lshlrev_b32 v{X+k}, 16, v{X+k}")
    A(f"v_add_f32 v1, v{X}, v{X+1}")
    for k in range(2, 9): A(f"v_add_f32 v1, v1, v{X+k}")
    wave_sum(1, 2)
    A("s_mov_b32 s82, 0x3ae38e39\ns_mov_b32 s83, 0x44100000")
    def div576(v):
        A(f"v_mul_f32 v2, s82, v{v}\nv_fma_f32 v3, -v2, s83, v{v}\nv_fma_f32 v{v}, v3, s82, v2")
    div576(1)
    A(f"v_sub_f32 v2, v{X}, v1\nv_mul_f32 v4, v2, v2")
    for k in range(1, 9): A(f"v_sub_f32 v2, v{X+k}, v1\nv_fmac_f32 v4, v2, v2")
    wave_sum(4, 2)
    div576(4)
    rbf(1, 1); rbf(4, 4)
    A("v_add_f32 v4, 0x3727c5ac, v4"); rbf(4, 4)
    A("v_sqrt_f32 v5, v4\ns_nop 0\nv_rcp_f32 v6, v5\nv_fma_f32 v3, -v5, v5, v4\nv_mul_f32 v6, 0.5, v6\nv_fma_f32 v5, v3, v6, v5")
    rbf(5, 5)
    A("v_rcp_f32 v6, v5")
    def norm(r):
        A(f"v_sub_f32 v2, v{r}, v1"); rbf(2, 2)
        A(f"v_mul_f32 v3, v2, v6\nv_fma_f32 v4, -v3, v5, v2\nv_fma_f32 v3, v4, v6, v3\nv_cvt_pk_bf16_f32 v{r}, v3, v3")
    A(f"s_cmp_lg_u32 {sI}, 0\ns_cbranch_scc1 L_ln_xr")
    for k in range(9): norm(X + k)
    A(f"s_cmp_lg_u32 {sW}, 5\ns_cbranch_scc1 L_ffn")
    A("L_ln_xr:\ns_waitcnt vmcnt(18)")
    for k in range(3):
        A(f"v_lshlrev_b32 v{XR+k}, 16, v{XR+k}"); norm(XR + k)
    A("s_nop 0")
    stamp(6, 2)
    for p in range(18):
        bbuild(XR + p // 8, p % 8, B + 4 * (p & 1))
        A(f"s_waitcnt vmcnt({17 - p})\ns_nop 0")
        mfma(DQ, RG + 4 * p, B + 4 * (p & 1), "0" if p == 0 else None)
    A("s_waitcnt lgkmcnt(0)")
    tagprep()
    A(f"s_lshl_b32 s82, {sH}, 12\ns_and_b32 s83, {sI}, 3\ns_lshl_b32 s83, s83, 10\ns_add_u32 s82, s82, s83")
    A(f"s_lshr_b32 s83, {sI}, 2\ns_lshl_b32 s83, s83, 8\ns_add_u32 s82, s82, s83")
    for i in range(4): A(f"v_mov_b32_dpp v{V+i}, v{DQ+i} row_ror:8 row_mask:0xf bank_mask:0xf")
    A("s_nop 0")
    for i in range(4): A(f"v_permlane32_swap_b32 v{V+i}, v{V+4+i}")
    for i in range(4): A(f"v_add_f32 v{K+i}, v{DQ+i}, v{V+4+i}")
    for i in range(4): A(f"v_bfi_b32 v{K+i}, 15, v{VT}, v{K+i}")
    stamp(7, 2)
    A("s_mov_b64 exec, 0x00ff00ff\ns_waitcnt vmcnt(0)")
    A(f"buffer_store_dwordx4 {vr(K)}, v{VPL}, {rWS}, s82 offen sc1")
    A("s_mov_b64 exec, -1")
    stamp(1)
    A(f"s_cmp_eq_u32 {sI}, 0\ns_cbranch_scc1 L_ffn")
    A("L_qgather:")
    A(f"v_lshlrev_b32 v4, 4, v0\ns_lshl_b32 s82, {sH}, 12")
    if P["qdelay"] is not None:
        A(f"L_qdel:\nds_read_b32 v1, v{VZ} offset:{L_FULL}\ns_waitcnt lgkmcnt(0)\nv_cmp_le_i32 vcc, {P['qdelay']}, v1\ns_cbranch_vccnz L_qdel_ok")
        A(f"s_cmp_eq_u32 {sI}, 0\ns_cbranch_scc1 L_qdel_ok\ns_sleep 2")
        spin("L_qdel")
        A("L_qdel_ok:")
    A("L_qpoll:")
    for p in range(4): A(f"buffer_load_dwordx4 {vr(RG+4*p)}, v4, {rWS}, s82 offen offset:{p*1024} sc1")
    for p in range(4):
        A(f"s_waitcnt vmcnt({3-p})")
        tagchk(1, range(RG + 4 * p, RG + 4 * p + 4), p == 0)
    A("v_and_b32 v1, 15, v1\nv_cmp_ne_u32 vcc, 0, v1")
    A("s_cbranch_vccz L_qready\ns_sleep 2")
    spin("L_qpoll")
    A("L_qready:")
    stamp(2)
    for i in range(4): A(f"v_add_f32 v{RG+i}, v{RG+i}, v{RG+4+i}\nv_add_f32 v{RG+8+i}, v{RG+8+i}, v{RG+12+i}")
    for i in range(4): A(f"v_add_f32 v{RG+i}, v{RG+i}, v{RG+8+i}")
    A("v_lshrrev_b32 v4, 3, v0\nv_and_b32 v5, 7, v0\nv_lshl_add_u32 v4, v4, 5, v5\nv_lshlrev_b32 v4, 1, v4")
    A(f"v_cvt_pk_bf16_f32 v{RG}, v{RG}, v{RG+1}\nv_cvt_pk_bf16_f32 v{RG+4}, v{RG+2}, v{RG+3}")
    A(f"ds_write_b16 v4, v{RG} offset:{L_Q}\nds_write_b16_d16_hi v4, v{RG} offset:{L_Q+16}")
    A(f"ds_write_b16 v4, v{RG+4} offset:{L_Q+32}\nds_write_b16_d16_hi v4, v{RG+4} offset:{L_Q+48}")
    A(f"v_mov_b32 v5, 1\ns_waitcnt lgkmcnt(0)\nds_write_b32 v{VZ}, v5 offset:{L_QFLAG}")
    if P["pre"]:
        A("v_lshrrev_b32 v5, 4, v0\nv_and_b32 v6, 15, v0\nv_lshlrev_b32 v6, 4, v6\nv_lshl_add_u32 v5, v5, 12, v6")
        A(f"s_lshl_b32 s82, {sH}, 14\ns_lshl_b32 s83, {sI}, 8\ns_add_u32 s82, s82, s83\ns_add_u32 s82, s82, {WS_P}")
        A(f"s_lshl_b32 s80, {sH}, 12\ns_lshl_b32 s83, {sI}, 6\ns_add_u32 s80, s80, s83\ns_add_u32 s80, s80, {WS_ML}")
        A(f"s_lshl_b32 s81, {sI}, 12\ns_lshl_b32 s83, {sH}, 8\ns_add_u32 s81, s81, s83\ns_add_u32 s81, s81, {WS_Y - 4096}")
        A("v_lshlrev_b32 v4, 10, v0")
        if P["pre"] == "clear":
            for i in range(4): A(f"v_not_b32 v{24+i}, v{VT}")
            A(f"buffer_store_dwordx4 v[24:27], v5, {rWS}, s82 offen sc1\ns_mov_b64 exec, 15\nbuffer_store_dwordx4 v[24:27], v4, {rWS}, s80 offen sc1")
        else:
            pp = P["pre"][4:]
            A(f"buffer_load_dwordx4 v[24:27], v5, {rWS}, s82 offen {pp}\ns_mov_b64 exec, 15\nbuffer_load_dwordx4 v[28:31], v4, {rWS}, s80 offen {pp}")
            A(f"s_mov_b64 exec, 0xffff\nbuffer_load_dwordx4 v[32:35], v6, {rWS}, s81 offen {pp}")
        A("s_mov_b64 exec, -1\ns_waitcnt vmcnt(0)")
    if dyn:
        npool = 4096 - 15 * P["S"] - P["SA"]
        def to_tile():
            if ways == 16:
                na = P["S"] - P["SA"]; lc = ch.bit_length() - 1
                A(f"s_add_u32 s81, s80, {P['SA']}\ns_lshr_b32 s82, s81, {lc}\ns_lshl_b32 s82, s82, {lc+4}\ns_and_b32 s81, s81, {ch-1}\ns_or_b32 s81, s81, s82")
                A(f"s_add_u32 s82, s80, {16*P['S'] - na}\ns_cmp_lt_u32 s80, {na}\ns_cselect_b32 s80, s81, s82")
            else:
                if P["pmul"] > 1:
                    import math
                    assert math.gcd(P["pmul"], npool) == 1
                    A(f"s_mul_i32 s80, s80, {P['pmul']}\ns_mul_hi_u32 s81, s80, {(1 << 32) // npool + 1}\ns_mul_i32 s81, s81, {npool}\ns_sub_u32 s80, s80, s81")
                A(f"s_add_u32 s80, s80, {4096 - npool}")
        ahead = dt + P["AH"]
        cc = P["cc"]; CD = {1: 4, 2: 2}.get(cc, 1)
        assert npool % cc == 0 and (cc == 1 or (ways == 15 and P["pmul"] == 1)) and P["AH"] >= (CD - 1) * cc
        A(f"s_movk_i32 s76, {P['S']}\ns_cmp_eq_u32 {sI}, 0\ns_cselect_b32 s76, {P['SA']}, s76\ns_add_u32 s77, s76, {CD*cc}")
        A(f"s_mul_i32 s78, {sH}, {P['cstride']}\ns_add_u32 s78, s78, {WS_CNT}\nv_mov_b32 v4, s78\nv_mov_b32 v5, {cc}\ns_mov_b64 exec, 1")
        def que_write(val):
            A(f"s_and_b32 s82, s79, 31\ns_lshl_b32 s82, s82, 2\ns_add_u32 s79, s79, 1\ns_lshl_b32 s83, s79, 16\ns_or_b32 s83, s83, {val}")
            A(f"v_mov_b32 v1, s82\nv_mov_b32 v2, s83\nds_write_b32 v1, v2 offset:{L_QUE}")
        A("s_mov_b32 s79, s76")
        if P["fake"]:
            per = npool // 16
            A(f"s_mov_b32 s80, {sI}\ns_add_u32 s80, s80, {4096 - npool}\ns_add_u32 s77, s79, {per}")
            A(f"L_fk:\nds_read_b32 v1, v{VZ} offset:{L_FULL}\ns_waitcnt lgkmcnt(0)\nv_readfirstlane_b32 s78, v1")
            A(f"s_add_u32 s78, s78, {ahead}\ns_cmp_le_i32 s79, s78\ns_cbranch_scc1 L_fk_go\ns_sleep 2")
            spin("L_fk")
            A("L_fk_go:")
            if P["fake"] == 2: A(f"global_atomic_add v20, v4, v5, s[26:27] {P['apol']}")
            if P["fake"] in (3, 6): A(f"s_lshl_b32 s81, s2, 8\ns_add_u32 s81, s81, 0xc0000\nv_mov_b32 v4, s81")
            if P["fake"] in (3, 4): A(f"global_store_dword v4, v5, s[26:27] {P.get('spol', 'sc1')}")
            if P["fake"] == 5: A(f"global_load_dword v20, v4, s[26:27] sc1")
            if P["fake"] == 6: A(f"global_atomic_add v20, v4, v5, s[26:27] {P['apol']}")
            que_write("s80")
            A("s_add_u32 s80, s80, 16\ns_cmp_lt_u32 s79, s77\ns_cbranch_scc1 L_fk\ns_branch L_cl_x2")
        if P["N1"] is not None:
            n1, n4 = P["N1"], P["N4"]; n8 = npool - n1 - n4
            assert cc == 1 and ways == 15 and P["pmul"] == 1 and n8 >= 0 and n8 % 8 == 0 and n4 % 4 == 0
            c8 = n8 // 8; c4 = c8 + n4 // 4; base = 4096 - npool
            A(f"L_ca:\nds_read_b32 v1, v{VZ} offset:{L_FULL}\ns_waitcnt lgkmcnt(0)\nv_readfirstlane_b32 s78, v1")
            A(f"s_add_u32 s78, s78, {dt + P['AHA']}\ns_cmp_le_i32 s79, s78\ns_cbranch_scc1 L_ca_go\ns_sleep 2")
            spin("L_ca")
            A(f"L_ca_go:\nglobal_atomic_add v20, v4, v5, s[26:27] {P['apol']}\ns_waitcnt vmcnt(0)\nv_readfirstlane_b32 s78, v20")
            A(f"s_cmp_ge_u32 s78, {c4}\ns_cbranch_scc1 L_ca_one")
            A(f"s_lshl_b32 s80, s78, 3\ns_lshl_b32 s81, s78, 2\ns_add_u32 s81, s81, {n8 - 4*c8}")
            A(f"s_cmp_lt_u32 s78, {c8}\ns_cselect_b32 s80, s80, s81\ns_cselect_b32 s81, 8, 4\ns_add_u32 s80, s80, {base}\nL_ca_put:")
            que_write("s80")
            A("s_add_u32 s80, s80, 1\ns_sub_u32 s81, s81, 1\ns_cbranch_scc1 L_ca\ns_cmp_lg_u32 s81, 0\ns_cbranch_scc1 L_ca_put\ns_branch L_ca")
            A(f"L_ca_one:\ns_cmp_ge_u32 s78, {c4 + n1}\ns_cbranch_scc1 L_cl_x2\ns_add_u32 s80, s78, {4096 - n1 - c4}")
            que_write("s80")
            A("s_mov_b32 s76, s79\ns_add_u32 s77, s76, 4")
            npool = c4 + n1
            def to_tile(): A(f"s_add_u32 s80, s80, {4096 - npool}")
        def put():
            to_tile()
            for i in range(cc):
                if i: A("s_add_u32 s80, s80, 1")
                que_write("s80")
        for k in range(CD):
            A(f"L_cl_{k}:\nds_read_b32 v1, v{VZ} offset:{L_FULL}\ns_waitcnt lgkmcnt(0)\nv_readfirstlane_b32 s78, v1")
            A(f"s_add_u32 s78, s78, {ahead}\ns_cmp_le_i32 s76, s78\ns_cbranch_scc1 L_cl_go{k}\ns_sleep 2")
            spin(f"L_cl_{k}")
            A(f"L_cl_go{k}:\nglobal_atomic_add v{20+k}, v4, v5, s[26:27] {P['apol']}")
            A(f"s_add_u32 s76, s76, {cc}\ns_cmp_lt_u32 s76, s77\ns_cbranch_scc1 L_cl_{(k+1)%CD}")
            A(f"s_waitcnt vmcnt({CD-1})\nv_readfirstlane_b32 s80, v{20+(k+1)%CD}")
            A(f"s_cmp_ge_u32 s80, {npool}\ns_cbranch_scc1 L_cl_end{k}")
            put()
        A("s_branch L_cl_0")
        for k in range(CD):
            A(f"L_cl_end{k}:\ns_waitcnt vmcnt(0)")
            for i in range(CD - 1): A(f"v_mov_b32 v{24+i}, v{20+(k+2+i)%CD}")
            if k < CD - 1: A("s_branch L_cl_fin")
        A("L_cl_fin:")
        for i in range(CD - 1):
            A(f"s_nop 0\nv_readfirstlane_b32 s80, v{24+i}\ns_cmp_ge_u32 s80, {npool}\ns_cbranch_scc1 L_cl_x{i}")
            put()
            A(f"L_cl_x{i}:")
        que_write("0xffff")
        A("s_mov_b64 exec, -1")
    A(f"s_cmp_lg_u32 {sI}, 10\ns_cbranch_scc1 L_e_done\ns_cmp_gt_u32 {sH}, 8\ns_cbranch_scc1 L_e_done")
    srd(rOUT, 22, 1152)
    A("v_lshrrev_b32 v4, 5, v0\nv_and_b32 v5, 3, v0\nv_lshl_add_u32 v4, v4, 2, v5\nv_bfe_u32 v5, v0, 2, 3\nv_lshl_add_u32 v4, v4, 3, v5")
    A(f"v_lshlrev_b32 v2, 1, v4\ns_lshl_b32 s79, {sH}, 7")
    A(f"buffer_load_ushort v3, v2, {rX}, s79 offen")
    A(f"v_lshlrev_b32 v4, 2, v0\ns_lshl_b32 s82, {sH}, 12")
    def issue(b):
        for p in range(16): A(f"buffer_load_dword v{b+p}, v4, {rWS}, s80 offen offset:{256*p} sc1")
    def check(b, dst, behind, ok):
        for p in range(0, 16, 2):
            A(f"s_waitcnt vmcnt({behind+14-p})")
            tagchk(1, (b + p, b + p + 1), p == 0)
            if p == 0: A(f"v_add_f32 v{dst}, v{b}, v{b+1}")
            else: A(f"v_add_f32 v{dst}, v{dst}, v{b+p}\nv_add_f32 v{dst}, v{dst}, v{b+p+1}")
        tagtest(1)
        A(f"s_cbranch_vccz {ok}")
    def gather_sum(lbl, base, dst, slp):
        A(f"s_add_u32 s80, s82, {base}\n{lbl}:")
        issue(RG); check(RG, dst, 0, lbl + "_ok")
        if slp: A(f"s_sleep {slp}")
        spin(lbl)
        A(f"{lbl}_ok:")
    gather_sum("L_f_ffn", WS_F, 22, 16)
    rbf(22, 22)
    A(f"v_mul_f32 v5, {hex(LOG2E ^ 0x80000000)}, v22\nv_exp_f32 v5, v5\ns_nop 0\nv_add_f32 v5, 1.0, v5\nv_rcp_f32 v5, v5\ns_nop 0\nv_mul_f32 v22, v22, v5")
    rbf(22, 22)
    A("v_lshlrev_b32 v3, 16, v3")
    A(f"L_f_wait:\nds_read_b64 v[24:25], v{VZ} offset:{L_FULL}\ns_waitcnt lgkmcnt(0)\nv_cmp_ge_i32 vcc, v24, v25\ns_cbranch_vccnz L_f_go\ns_sleep 4")
    spin("L_f_wait")
    A("L_f_go:")
    if P["fpipe"]:
        A(f"s_add_u32 s80, s82, {WS_Y}")
        issue(RG)
        A("s_sleep 4\nL_f_att:")
        issue(RG + 16); check(RG, 23, 16, "L_f_att_ok"); issue(RG); check(RG + 16, 23, 16, "L_f_att_ok")
        spin("L_f_att")
        A("L_f_att_ok:")
    else:
        gather_sum("L_f_att", WS_Y, 23, P.get("fsleep", 0))
    rbf(23, 23)
    A("v_mul_f32 v23, v23, v22"); rbf(23, 23)
    A(f"v_add_f32 v23, v23, v3\nv_cvt_pk_bf16_f32 v23, v23, v23\nbuffer_store_short v23, v2, {rOUT}, s79 offen")
    dbg_time(1)
    A(f"s_cmp_lg_u32 {sH}, 0\ns_cbranch_scc1 L_e_done")
    A(f"s_mov_b64 exec, 1\nv_mov_b32 v4, {WS_EPOCH}\nglobal_store_dword v4, v{VT}, s[26:27] sc1\ns_mov_b64 exec, -1\ns_branch L_e_done")

    A("L_cons_main:")
    A("v_and_b32 v1, 15, v0\nv_lshrrev_b32 v4, 4, v0\nv_xor_b32 v5, v1, v4\nv_lshlrev_b32 v5, 4, v5")
    A(f"v_lshl_add_u32 v{KA}, v1, 8, v5")
    for ks in range(1, 4): A(f"v_xor_b32 v{KA+ks}, {64*ks}, v{KA}")
    A(f"v_lshlrev_b32 v5, 4, v1\nv_lshl_add_u32 v{VA}, v4, 10, v5")
    A(f"v_mov_b32 v{Vm}, 0xff800000\nv_mov_b32 v{VmL}, 0xff800000\nv_mov_b32 v{Vl}, 0")
    for i in range(4): A(f"v_mov_b32 v{O+i}, 0")
    A(f"s_lshl_b32 s82, {sC}, 2\nv_mov_b32 v{VDA}, s82")
    if diag == 3: A("v_mov_b32 v225, 0\nv_mov_b32 v226, 0")
    A("v_bfe_u32 v5, v0, 3, 1\nv_lshlrev_b32 v5, 8, v5\nv_lshl_add_u32 v5, v4, 4, v5")
    A(f"s_mov_b32 s72, {hex(SCALE)}\ns_mov_b32 s73, {hex(LOG2E)}\ns_mov_b32 s74, 0")
    A(f"s_mov_b32 s76, {sC}\ns_lshl_b32 s77, {sC}, 13\ns_add_u32 s77, s77, {RING0}\ns_mov_b32 s78, 0")
    wo_prep()
    A("s_brev_b32 s75, -2")
    A(f"L_qwait:\nds_read_b32 v1, v{VZ} offset:{L_QFLAG}\ns_waitcnt lgkmcnt(0)\nv_readfirstlane_b32 s79, v1")
    A("s_cmp_lg_u32 s79, 0\ns_cbranch_scc1 L_qgo\ns_sleep 1")
    spin("L_qwait")
    A("L_qgo:")
    tagprep()
    for ks in range(4): A(f"ds_read_b128 {vr(Q+4*ks)}, v5 offset:{L_Q + 64*ks}")
    A("s_waitcnt lgkmcnt(0)")
    stamp(4)
    A("L_c_top:\ns_cmp_lt_i32 s76, s74\ns_cbranch_scc1 L_c_go\ns_cmp_ge_i32 s76, s75\ns_cbranch_scc1 L_c_exit")
    A(f"L_c_poll:\nds_read_b96 v[{S}:{S+2}], v{VZ} offset:{L_FULL}\ns_waitcnt lgkmcnt(0)")
    A(f"v_readfirstlane_b32 s74, v{S+2}\nv_readfirstlane_b32 s75, v{S+1}\nv_readfirstlane_b32 s78, v{S}")
    A("s_cmp_lt_i32 s76, s74\ns_cbranch_scc1 L_c_go\ns_cmp_ge_i32 s76, s75\ns_cbranch_scc1 L_c_exit")
    if P["sleep"]: A(f"s_sleep {P['sleep']}")
    spin("L_c_poll")
    A("L_c_vwait:")
    A(f"ds_read_b32 v22, v{VZ} offset:{L_FULL}\ns_waitcnt lgkmcnt(0)\nv_readfirstlane_b32 s78, v22\ns_cmp_lt_i32 s76, s78\ns_cbranch_scc1 L_c_v")
    spin("L_c_vwait")
    if P["vlate"]:
        A("L_c_v:")
        for r in range(4): A(f"ds_read_b128 {vr(V+4*r)}, v{AD+4} offset:{4096 + 256*r}")
        A("s_branch L_c_pv\nL_c_nov:\ns_nop 2\ns_branch L_c_sm")
    A("L_c_go:")
    if diag == 3:
        A("s_memrealtime s[84:85]\ns_lshr_b32 s86, s76, 2\ns_waitcnt lgkmcnt(0)\ns_and_b32 m0, s86, 63\ns_cmp_lt_u32 s86, 64\ns_cbranch_scc0 L_tr_hi")
        A("v_writelane_b32 v225, s84, m0\ns_branch L_tr_done\nL_tr_hi:\nv_writelane_b32 v226, s84, m0\nL_tr_done:")
    for ks in range(4):
        A(f"v_add_u32 v{AD+ks}, s77, v{KA+ks}\nds_read_b128 {vr(K+4*ks)}, v{AD+ks}")
    A(f"v_add_u32 v{AD+4}, s77, v{VA}")
    A(f"s_add_u32 s77, s77, 0x8000\ns_sub_u32 s79, s77, {NS*8192}")
    A(f"s_cmp_ge_u32 s77, {RING0 + NS*8192}\ns_cselect_b32 s77, s79, s77")
    for ks in range(4):
        A(f"s_waitcnt lgkmcnt({3-ks})")
        mfma(S, K + 4 * ks, Q + 4 * ks, "0" if ks == 0 else None)
    def vreads():
        for r in range(4): A(f"ds_read_b128 {vr(V+4*r)}, v{AD+4} offset:{4096 + 256*r}")
    if P["vlate"]:
        A("s_add_u32 s79, s76, 1\ns_cmp_lt_i32 s76, s78\ns_cbranch_scc0 L_c_nov")
        vreads()
        A(f"L_c_sm:\nv_mov_b32 v{AD}, s79")
    else:
        A("s_cmp_lt_i32 s76, s78\ns_cbranch_scc0 L_c_vwait\nL_c_v:")
        vreads()
        A(f"s_add_u32 s76, s76, 1\nv_mov_b32 v{AD}, s76\ns_add_u32 s76, s76, 3")
    for i in range(4): A(f"v_cvt_pk_bf16_f32 v{S+i}, 0, v{S+i}")
    for i in range(4): A(f"v_mul_f32 v{S+i}, s72, v{S+i}")
    for i in range(4): A(f"v_cvt_pk_bf16_f32 v{S+i}, 0, v{S+i}")
    A(f"v_max3_f32 v22, v{S}, v{S+1}, v{S+2}\nv_max_f32 v22, v22, v{S+3}")
    A(f"v_cmp_gt_f32 vcc, v22, v{Vm}\ns_cbranch_vccnz L_c_rescale\nL_c_cont:")
    for i in range(4): A(f"v_fma_f32 v{PP+i}, v{S+i}, s73, -v{VmL}")
    for i in range(4): A(f"v_exp_f32 v{PP+i}, v{PP+i}")
    if P["vlate"]: A("s_cmp_lt_i32 s76, s78\ns_cbranch_scc0 L_c_vwait\nL_c_pv:\ns_add_u32 s76, s76, 4")
    A(f"s_waitcnt lgkmcnt(0)\nds_write_b32 v{VDA}, v{AD} offset:{L_DONE}")
    for i in range(4):
        A(f"v_cvt_pk_bf16_f32 v22, v{PP+i}, v{PP+i}")
        for v in range(4): A(f"v_and_b32 v{B+4*i+v}, v22, v{M+v}")
        A(f"v_add_f32 v{Vl}, v{Vl}, v{PP+i}")
        if i > 0: mfma(O, V + 4 * (i - 1), B + 4 * (i - 1))
    A("s_nop 0")
    mfma(O, V + 12, B + 12)
    if P["wo"] == "mid":
        A(f"s_lshr_b32 s79, s76, 2\ns_cmp_lg_u32 s79, {P['womid']//4}\ns_cbranch_scc1 L_c_top")
        wo_loads()
    A("s_branch L_c_top")
    A("L_c_rescale:")
    for op in ("v_permlane16_swap_b32", "v_permlane32_swap_b32"):
        A(f"v_mov_b32 v23, v22\ns_nop 1\n{op} v23, v22\nv_max_f32 v22, v22, v23")
    A(f"v_max_f32 v{Vm}, v{Vm}, v22\nv_mul_f32 v22, s73, v{Vm}\nv_sub_f32 v23, v{VmL}, v22\nv_exp_f32 v23, v23\nv_mov_b32 v{VmL}, v22")
    A(f"v_mul_f32 v{Vl}, v{Vl}, v23")
    for i in range(4): A(f"v_mul_f32 v{O+i}, v{O+i}, v23")
    A("s_branch L_c_cont")
    A("L_c_exit:")
    if diag == 3:
        A(f"s_lshl_b32 s84, s2, 2\ns_add_u32 s84, s84, {sC}\ns_lshl_b32 s84, s84, 9\ns_add_u32 s84, s84, {WS_DIAG + 0x20000}\nv_lshlrev_b32 v1, 2, v0")
        A(f"buffer_store_dword v225, v1, {rWS}, s84 offen\nbuffer_store_dword v226, v1, {rWS}, s84 offen offset:256")
    stamp(5)
    if P["wo"] == "exit": wo_loads()
    for op in ("v_permlane16_swap_b32", "v_permlane32_swap_b32"):
        A(f"v_mov_b32 v23, v{Vl}\ns_nop 1\n{op} v23, v{Vl}\nv_add_f32 v{Vl}, v{Vl}, v23")
    A(f"s_lshl_b32 s82, {sC}, 10\nv_lshlrev_b32 v5, 4, v0\nv_add_u32 v4, s82, v5\nds_write_b128 v4, {vr(O)} offset:{L_MO}")
    A(f"s_lshl_b32 s82, {sC}, 9\nv_lshlrev_b32 v6, 3, v0\nv_add_u32 v4, s82, v6\nv_mov_b32 v22, v{VmL}\nv_mov_b32 v23, v{Vl}\nds_write_b64 v4, v[22:23] offset:{L_MML}")
    A(f"v_mov_b32 v1, 1\ns_mov_b64 exec, 1\nds_add_rtn_u32 v1, v{VZ}, v1 offset:{L_QFLAG+4}\ns_mov_b64 exec, -1")
    for c in range(4): A(f"ds_read_b64 v[{K+2*c}:{K+2*c+1}], v6 offset:{L_MML + 512*c}")
    for c in range(4): A(f"ds_read_b128 {vr(V+4*c)}, v5 offset:{L_MO + 1024*c}")
    A(f"s_lshl_b32 s76, {sH}, 14\ns_add_u32 s76, s76, {WS_P}\ns_lshl_b32 s83, {sI}, 8\ns_add_u32 s82, s76, s83")
    A(f"s_lshl_b32 s83, {sC}, 12\ns_add_u32 s76, s76, s83")
    A(f"s_lshl_b32 s77, {sH}, 12\ns_add_u32 s77, s77, {WS_ML}\ns_lshl_b32 s83, {sI}, 6\ns_add_u32 s83, s83, s77")
    A(f"s_lshl_b32 s78, {sC}, 10\ns_add_u32 s77, s77, s78")
    A("v_and_b32 v4, 0xf0, v5\nv_lshrrev_b32 v5, 4, v0\nv_lshl_add_u32 v4, v5, 12, v4\nv_and_b32 v6, 8, v0\nv_lshl_add_u32 v2, v5, 10, v6\nv_lshlrev_b32 v6, 2, v0")
    A("s_waitcnt lgkmcnt(8)\nv_readfirstlane_b32 s78, v1\ns_cmp_lg_u32 s78, 3\ns_cbranch_scc1 L_e_wait")
    A(f"s_waitcnt lgkmcnt(4)\nv_max3_f32 v22, v{K}, v{K+2}, v{K+4}\nv_max_f32 v22, v22, v{K+6}")
    for c in range(4): A(f"v_sub_f32 v{K+2*c}, v{K+2*c}, v22")
    for c in range(4): A(f"v_exp_f32 v{K+2*c}, v{K+2*c}")
    A(f"s_waitcnt lgkmcnt(3)")
    for i in range(4): A(f"v_mul_f32 v{O+i}, v{K}, v{V+i}")
    for c in range(1, 4):
        A(f"s_waitcnt lgkmcnt({3-c})")
        for i in range(4): A(f"v_fmac_f32 v{O+i}, v{K+2*c}, v{V+4*c+i}")
    for i in range(4): tagput(O + i)
    A(f"buffer_store_dwordx4 {vr(O)}, v4, {rWS}, s82 offen sc1")
    A(f"v_mul_f32 v23, v{K}, v{K+1}")
    for c in range(1, 4): A(f"v_fmac_f32 v23, v{K+2*c}, v{K+2*c+1}")
    tagput(22); tagput(23)
    A("s_mov_b32 exec_lo, 0x01010101\ns_mov_b32 exec_hi, 0x01010101")
    A(f"buffer_store_dwordx2 v[22:23], v2, {rWS}, s83 offen sc1\ns_mov_b64 exec, -1")
    if P["gate"]:
        A(f"v_mov_b32 v1, 1\nds_write_b32 v{VZ}, v1 offset:{L_QFLAG+12}\ns_branch L_e_l1")
        A(f"L_e_wait:\nds_read_b32 v1, v{VZ} offset:{L_QFLAG+12}\ns_waitcnt lgkmcnt(0)\nv_cmp_ne_u32 vcc, 0, v1\ns_cbranch_vccnz L_e_l1")
        spin("L_e_wait")
    else:
        A("L_e_wait:")
    A("L_e_l1:\ns_waitcnt lgkmcnt(0)")
    stamp(6); stamp(6, 5)
    A(f"s_sub_u32 s78, {sI}, 1\ns_cmp_gt_u32 s78, 8\ns_cbranch_scc1 L_e_done")
    A("v_and_b32 v4, 15, v0\nv_lshlrev_b32 v4, 6, v4\nv_lshrrev_b32 v5, 5, v0\nv_lshl_add_u32 v4, v5, 3, v4")
    acc = (S, S + 1, S + 2, S + 3)
    def l1_issue(b, ml):
        A(f"buffer_load_dwordx2 {vr(ml, 2)}, v4, {rWS}, s77 offen sc1")
        for p in range(16): A(f"buffer_load_dword v{b+p}, v6, {rWS}, s76 offen offset:{256*p} sc1")
    def l1_check(b, ml, behind):
        A(f"s_waitcnt vmcnt({behind+16})\nv_mov_b32 v7, v{ml}")
        tagchk(1, (ml, ml + 1), True)
        for i, r in enumerate((8, 4, 2, 1)):
            A(f"v_mov_b32 v{acc[i]}, 0" + ("" if i == 0 else "\ns_nop 0"))
            A(f"v_max_f32_dpp v7, v7, v7 row_ror:{r} row_mask:0xf bank_mask:0xf")
        A(f"v_sub_f32 v22, v{ml}, v7\nv_exp_f32 v22, v22\ns_nop 0\nv_mul_f32 v23, v22, v{ml+1}")
        for p in range(0, 16, 2):
            A(f"s_waitcnt vmcnt({behind+14-p})")
            tagchk(1, (b + p, b + p + 1))
            if p < 8: A(f"v_add_f32_dpp v23, v23, v23 row_ror:{8 >> (p // 2)} row_mask:0xf bank_mask:0xf")
            if p == 8: A("v_rcp_f32 v23, v23")
            for x in (p, p + 1): A(f"v_fmac_f32_dpp v{acc[x&3]}, v22, v{b+x} row_newbcast:{x} row_mask:0xf bank_mask:0xf")
        tagtest(1)
        A(f"v_add_f32 v2, v{S}, v{S+1}\nv_add_f32 v3, v{S+2}, v{S+3}\ns_cbranch_vccz L_l1_ok")
    if P["l1pipe"]:
        l1_issue(RG, RG + 32)
        A(f"s_sleep {P['l1pipe']}\nL_l1_poll:")
        l1_issue(RG + 16, RG + 34); l1_check(RG, RG + 32, 17); l1_issue(RG, RG + 32); l1_check(RG + 16, RG + 34, 17)
    else:
        A("L_l1_poll:")
        l1_issue(RG, RG + 32); l1_check(RG, RG + 32, 0)
    if P["psleep"]: A(f"s_sleep {P['psleep']}")
    spin("L_l1_poll")
    A("L_l1_ok:")
    stamp(3, 5)
    A("v_add_f32 v1, v2, v3\nv_mul_f32 v1, v1, v23\nv_cvt_pk_bf16_f32 v1, v1, v1\ns_nop 1")
    for t in range(8): A(f"v_mov_b32_dpp v{V+t}, v1 row_newbcast:{t} row_mask:0xf bank_mask:0x3")
    for t in range(8): A(f"v_mov_b32_dpp v{V+t}, v1 row_newbcast:{8+t} row_mask:0xf bank_mask:0xc")
    for t in range(8):
        for v in range(4): A(f"v_and_b32 v{B+4*(t&3)+v}, v{V+t}, v{M+v}")
        if t > 0: mfma(S, WO + 4 * (t - 1), B + 4 * ((t - 1) & 3), "0" if t == 1 else None)
    A("s_nop 0")
    mfma(S, WO + 28, B + 12)
    stamp(5, 5)
    A(f"s_lshl_b32 s82, {sC}, 9\nv_lshrrev_b32 v4, 5, v0\nv_lshl_add_u32 v4, v4, 8, v{VPL}\nv_add_u32 v4, s82, v4\nv_mov_b32 v1, 1")
    exec_valid()
    A(f"s_lshl_b32 s82, s78, 12\ns_lshl_b32 s83, {sH}, 8\ns_add_u32 s82, s82, s83\ns_add_u32 s82, s82, {WS_Y}")
    A(f"ds_write_b128 v4, {vr(S)} offset:{L_Y}\ns_mov_b64 exec, 1")
    A(f"ds_add_rtn_u32 v1, v{VZ}, v1 offset:{L_QFLAG+8}\ns_mov_b64 exec, -1")
    for i in range(8): A(f"ds_read_b32 v{K+i}, v6 offset:{L_Y + 256*i}")
    A("s_waitcnt lgkmcnt(8)\nv_readfirstlane_b32 s78, v1\ns_cmp_lg_u32 s78, 3\ns_cbranch_scc1 L_e_done")
    A(f"s_waitcnt lgkmcnt(4)\nv_add_f32 v{K}, v{K}, v{K+1}\nv_add_f32 v{K+2}, v{K+2}, v{K+3}")
    A(f"s_waitcnt lgkmcnt(0)\nv_add_f32 v{K+4}, v{K+4}, v{K+5}\nv_add_f32 v{K+6}, v{K+6}, v{K+7}")
    A(f"v_add_f32 v{K}, v{K}, v{K+2}\nv_add_f32 v{K+4}, v{K+4}, v{K+6}\nv_add_f32 v22, v{K}, v{K+4}")
    tagput(22)
    A(f"buffer_store_dword v22, v6, {rWS}, s82 offen sc1")
    A("L_e_done:")
    stamp(7); stamp(7, 5)
    dump_stamps()
    A("L_end:\ns_endpgm")

    A("L_ffn:")
    ACC, DG, DU = 28, 64, 68
    FS = RING0 + 24576
    for i in range(36): A(f"v_mov_b32 v{ACC+i}, 0")
    A(f"s_and_b32 s73, {sH}, 1\ns_lshr_b32 s74, {sC}, 2\ns_and_b32 s74, s74, s73\ns_cbranch_scc1 L_ffn_out")
    A(f"s_mul_i32 s73, s73, 5\ns_lshr_b32 s74, {sH}, 1\ns_mul_i32 s74, s74, 9\ns_add_u32 s73, s73, s74\ns_add_u32 s73, s73, {sC}")
    srd(rWG, 16, 576 * 9216); srd(rWU, 18, 576 * 9216); srd(rWD, 20, 4608 * 1152)
    A("v_lshrrev_b32 v4, 3, v0\nv_and_b32 v5, 7, v0\nv_lshlrev_b32 v5, 4, v5")
    A("v_mul_u32_u24 v2, 0x2400, v4\nv_add_u32 v2, v2, v5\nv_mul_u32_u24 v3, 0x480, v4\nv_add_u32 v3, v3, v5")
    for i in range(8): A(f"v_mov_b32 v{DG+i}, 0")
    A("s_lshl_b32 s74, s73, 7")
    assert FW % 2 == 0
    def gu_load(n):
        A(f"buffer_load_dwordx4 {vr(RG+4*(n%16))}, v2, {rWU if n & 1 else rWG}, s74 offen {wpol}")
        if n & 1: A(f"s_add_u32 s74, s74, {8*9216}")
    for n in range(FW): gu_load(n)
    A("s_mov_b32 s75, 0\nL_ffn_gu:")
    for t in range(8):
        bbuild(X, t, B + 4 * (t & 1))
        for m in range(2):
            n = 2 * t + m
            A(f"s_waitcnt vmcnt({FW-1})")
            gu_load(n + FW)
            mfma(DU if m else DG, RG + 4 * n, B + 4 * (t & 1))
    for k in range(8): A(f"v_mov_b32 v{X+k}, v{X+k+1}")
    A("s_add_u32 s75, s75, 1\ns_cmp_lt_u32 s75, 9\ns_cbranch_scc1 L_ffn_gu")
    A(f"s_mul_i32 s74, s73, {64*1152}")
    def wd_load(n):
        t, ct = divmod(n, 9)
        A(f"buffer_load_dwordx4 {vr(RG+4*(n%16))}, v3, {rWD}, s74 offen offset:{ct*128} {wpol}")
        if ct == 8: A(f"s_add_u32 s74, s74, {8*1152}")
    A("s_waitcnt vmcnt(0)")
    for n in range(FW): wd_load(n)
    A(f"s_lshl_b32 s75, {sC}, 10\ns_add_u32 s75, s75, {FS + 32768}")
    A(f"v_lshrrev_b32 v4, 5, v0\nv_lshl_add_u32 v4, v4, 8, v{VPL}\nv_add_u32 v4, s75, v4")
    exec_valid()
    A(f"ds_write_b128 v4, {vr(DG)}\nds_write_b128 v4, {vr(DU)} offset:512\ns_mov_b64 exec, -1")
    A("v_bfe_u32 v4, v0, 2, 1\nv_lshrrev_b32 v5, 3, v0\nv_lshl_add_u32 v4, v4, 3, v5\nv_and_b32 v5, 3, v0\nv_lshl_add_u32 v4, v4, 2, v5")
    A("v_lshlrev_b32 v4, 2, v4\nv_add_u32 v4, s75, v4\ns_waitcnt lgkmcnt(0)")
    A("ds_read_b32 v64, v4\nds_read_b32 v65, v4 offset:256\nds_read_b32 v66, v4 offset:512\nds_read_b32 v67, v4 offset:768")
    A("s_waitcnt lgkmcnt(0)\nv_add_f32 v64, v64, v65\nv_add_f32 v66, v66, v67")
    rbf(64, 64); rbf(66, 66)
    A(f"v_mul_f32 v64, {hex(LOG2E ^ 0x80000000)}, v64\nv_exp_f32 v64, v64\ns_nop 0\nv_add_f32 v64, 1.0, v64\nv_rcp_f32 v64, v64\ns_nop 0")
    rbf(64, 64)
    A(f"v_mul_f32 v64, v64, v66\nv_cvt_pk_bf16_f32 v{X}, v64, v64\ns_nop 1")
    for n in range(72):
        t, ct = divmod(n, 9)
        if ct == 0: bbuild(X, t, B + 4 * (t & 1))
        A(f"s_waitcnt vmcnt({min(FW-1, 71-n)})")
        if n + FW < 72: wd_load(n + FW)
        else: A("s_nop 0")
        mfma(ACC + 4 * ct, RG + 4 * (n % 16), B + 4 * (t & 1))
    A("L_ffn_out:")
    A(f"s_mul_i32 s75, {sC}, 4608\ns_add_u32 s75, s75, {FS}")
    A(f"v_lshrrev_b32 v4, 5, v0\nv_mul_u32_u24 v4, 0x900, v4\nv_add3_u32 v4, v4, v{VPL}, s75\ns_nop 4")
    exec_valid()
    for ct in range(9): A(f"ds_write_b128 v4, {vr(ACC+4*ct)} offset:{ct*256}")
    A("s_mov_b64 exec, -1\ns_waitcnt lgkmcnt(0)\ns_barrier")
    A(f"s_cmp_gt_u32 {sC}, 2\ns_cbranch_scc1 L_ffn_done")
    A(f"s_lshl_b32 s75, {sC}, 6\nv_add_u32 v4, s75, v0\nv_cmp_gt_u32 vcc, 0x90, v4\ns_and_saveexec_b64 s[82:83], vcc")
    A(f"v_lshlrev_b32 v5, 4, v4\nv_add_u32 v5, {FS}, v5")
    for s_ in range(10): A(f"ds_read_b128 {vr(ACC+4*s_)}, v5 offset:{s_*2304}")
    A(f"v_lshrrev_b32 v5, 4, v4\nv_and_b32 v4, 15, v4\nv_lshlrev_b32 v4, 4, v4\nv_lshl_add_u32 v4, v5, 12, v4")
    A(f"s_lshl_b32 s75, {sH}, 8\ns_add_u32 s75, s75, {WS_F}\ns_waitcnt lgkmcnt(0)")
    tagprep()
    for s_ in range(1, 10):
        for i in range(4): A(f"v_add_f32 v{ACC+i}, v{ACC+i}, v{ACC+4*s_+i}")
    for i in range(4): tagput(ACC + i)
    A(f"buffer_store_dwordx4 {vr(ACC)}, v4, {rWS}, s75 offen sc1")
    A("s_mov_b64 exec, -1")
    A("L_ffn_done:")
    A("s_barrier")
    stamp(3)
    A(f"s_cmp_eq_u32 {sW}, 5\ns_cbranch_scc1 L_qgather\ns_branch L_cons_main")

    errs = hazard.check(L)
    if errs:
        print("\n".join(errs)); raise SystemExit("hazards found")
    lds = RING0 + NS * 8192
    body = "\n".join(x if x.endswith(":") else "    " + x for x in L)
    head = HEADER.replace("@LAUNCH@", f"; @launch grid=(256,1,1) block=({64*NW},1,1) lds={lds}")
    tail = f"""
.section .rodata,"a"
.p2align 6
.amdhsa_kernel {NAME}_kernel
  .amdhsa_next_free_vgpr 228
  .amdhsa_next_free_sgpr 102
  .amdhsa_accum_offset 228
  .amdhsa_group_segment_fixed_size 0
  .amdhsa_kernarg_size 96
  .amdhsa_user_sgpr_count 2
  .amdhsa_user_sgpr_kernarg_segment_ptr 1
  .amdhsa_system_sgpr_workgroup_id_x 1
  .amdhsa_float_denorm_mode_32 3
.end_amdhsa_kernel
"""
    return head + body + tail, lds

if __name__ == "__main__":
    out = sys.argv[1]
    kw = eval("dict(" + (sys.argv[2] if len(sys.argv) > 2 else "") + ")")
    txt, lds = build(**kw)
    open(out, "w").write(txt)
    import subprocess
    r = subprocess.run([sys.executable, "cdna_unwritten_srd_check.py", out], capture_output=True, text=True)
    print(r.stdout.strip()[:1500])
```

```python
import sys, os
sys.path.insert(0, os.path.dirname(os.path.abspath(__file__)))
import hazard

NAME = "recurrent_scan__gqa_block_cached__glu_gated_glu__decode"
HEADER = open(os.path.join(os.path.dirname(os.path.abspath(__file__)), "header.txt")).read()

WS_QP, WS_P, WS_ML, WS_Y, WS_F, WS_CNT, WS_EPOCH, WS_DIAG = 0x0, 0x20000, 0x60000, 0x70000, 0x84000, 0x98000, 0x9c000, 0x100000
L_FULL, L_DONE, L_QFLAG, L_QUE, L_Q, L_MO, L_MML, L_Y, RING0 = 0, 1024, 1040, 1152, 1536, 2048, 6144, 8192, 12288
LOG2E = 0x3FB8AA3B
SCALE = 0x3DB504F3
VALID = "0xff00ff00", "0x00ff00ff"
NW = 6

DEF = dict(F=21, NS=18, FW=6, SN=(264, 263), pol="nt", wpol="nt", diag=False, hmap="div", sleep=0, spin=0x200000,
           dyn=True, S=244, SA=116, AH=5, chunk=1, wo="exit", hrot=0, spread=True, ways=15, pmul=1, dbgt=False, apol="sc0", cstride=256, Fx=None, cc=1, inc=False, psleep=0, qinc=True, qdelay=7, womid=200, Fh=None, fpipe=True, gate=True, segs=((8, 14), (8, 8)), once=False, AHA=8, fake=0, Fd=24, pre="load", l1pipe=0, vlate=False, cpf=1, cpf2=0, solo=0, early=1, hl="sc1", hs="sc1", direct=1, own=(10, 12, 14, 15), pcs=(13, 20), E=8, R=240, gap=28)

def build(**kw):
    P = dict(DEF); P.update(kw)
    F, NS, FW, pol, wpol, diag, dyn = P["F"], P["NS"], P["FW"], P["pol"], P["wpol"], P["diag"], P["dyn"]
    L = []
    def A(s):
        for x in s.strip("\n").split("\n"):
            L.append(x.strip())
    sW, sH, sI, sC, sT = "s28", "s29", "s30", "s31", "s100"
    rK, rV, rWS, rX, rWQ, rWO, rWG, rWU, rWD, rOUT = ("s[32:35]", "s[36:39]", "s[40:43]", "s[44:47]", "s[48:51]",
                                                    "s[52:55]", "s[56:59]", "s[60:63]", "s[64:67]", "s[68:71]")
    def srd(r, ptr, n):
        b = int(r[2:r.index(":")])
        A(f"s_mov_b64 s[{b}:{b+1}], s[{ptr}:{ptr+1}]\ns_mov_b32 s{b+2}, {n}\ns_mov_b32 s{b+3}, 0x20000")
    def vr(b, n=4): return f"v[{b}:{b+n-1}]"
    M, KA, VA, VZ, Vm, VmL, Vl, VDA = 8, 12, 16, 17, 18, 19, 20, 21
    O, Q, K, V, S, PP, B, AD, WO, X, XR, RG, DQ = 24, 28, 44, 60, 76, 80, 84, 100, 108, 140, 149, 152, 224
    VPL = 105
    def stamp(k, set_=1):
        if diag and (diag == set_ or (k in (0, 1, 2, 4) and set_ == 1)) and not (diag == 3 and k == 4):
            A(f"s_memrealtime s[{84+2*k}:{85+2*k}]\ns_waitcnt lgkmcnt(0)")
    def dump_stamps():
        if diag:
            A(f"s_mul_i32 s76, s2, {NW}\ns_add_u32 s76, s76, {sW}\ns_lshl_b32 s76, s76, 5\ns_add_u32 s76, s76, {WS_DIAG}")
            A("s_mov_b64 exec, 1\nv_mov_b32 v1, s76")
            for k in range(8):
                A(f"v_mov_b32 v2, s{84+2*k}\nglobal_store_dword v1, v2, s[26:27] offset:{4*k}")
            A("s_mov_b64 exec, -1")
    def dbg_time(slot, inv=False):
        if P["dbgt"]:
            A("s_memrealtime s[98:99]\ns_waitcnt lgkmcnt(0)")
            if inv: A("s_not_b32 s98, s98")
            A(f"s_mov_b64 exec, 1\nv_mov_b32 v225, {4*slot}\nv_mov_b32 v226, s98\nglobal_atomic_umax v225, v226, s[24:25] sc1\ns_mov_b64 exec, -1")
    npf = [0]
    def code_prefetch(r):
        npf[0] += 1
        A(f"s_getpc_b64 s[64:65]\nL_pc{npf[0]}:\ns_sub_u32 s64, s64, L_pc{npf[0]}-{NAME}_kernel\ns_subb_u32 s65, s65, 0")
        A(f"v_lshlrev_b32 v{r}, 7, v0\nv_add_u32 v{r+1}, 0x2000, v{r}\nv_min_u32 v{r+1}, L_code_end-{NAME}_kernel-4, v{r+1}")
        A(f"global_load_dword v{r+2}, v{r}, s[64:65]\nglobal_load_dword v{r+3}, v{r+1}, s[64:65]")
    def spin(lbl):
        A(f"s_sub_u32 s3, s3, 1\ns_cbranch_scc0 {lbl}\ns_endpgm")
    def wave_sum(v, t):
        for r in (8, 4, 2, 1):
            A(f"s_nop 1\nv_add_f32_dpp v{v}, v{v}, v{v} row_ror:{r} row_mask:0xf bank_mask:0xf")
        for op in ("v_permlane16_swap_b32", "v_permlane32_swap_b32"):
            A(f"v_mov_b32 v{t}, v{v}\ns_nop 1\n{op} v{t}, v{v}\nv_add_f32 v{v}, v{v}, v{t}")
    def rbf(d, s):
        A(f"v_cvt_pk_bf16_f32 v{d}, 0, v{s}")
    def bbuild(src, t, b):
        A(f"v_mov_b32_dpp v7, v{src} row_newbcast:{t} row_mask:0xf bank_mask:0x3\ns_nop 1")
        A(f"v_mov_b32_dpp v7, v{src} row_newbcast:{8+t} row_mask:0xf bank_mask:0xc")
        for v in range(4):
            A(f"v_and_b32 v{b+v}, v7, v{M+v}")
    def mfma(d, a, b, c=None):
        A(f"v_mfma_f32_16x16x32_bf16 {vr(d)}, {vr(a)}, {vr(b)}, {vr(d) if c is None else c}")
    def exec_valid():
        A(f"s_mov_b32 exec_lo, {VALID[1]}\ns_mov_b32 exec_hi, {VALID[0]}")
    VT, VFF = 107, 103
    def tagchk(acc, regs, first=False):
        regs = list(regs)
        if first:
            A(f"v_bitop3_b32 v{acc}, v{regs[0]}, v{regs[1]}, v{VT} bitop3:0x7e"); regs = regs[2:]
        for r in regs: A(f"v_bitop3_b32 v{acc}, v{acc}, v{r}, v{VT} bitop3:0xf6")
    def tagtest(acc, dst="vcc"):
        A(f"v_and_b32 v{acc}, 0xff, v{acc}\nv_cmp_ne_u32 {dst}, 0, v{acc}")
    def tagput(r):
        A(f"v_perm_b32 v{r}, v{r}, v{VT}, s101")
    def tagprep():
        A(f"s_add_u32 s82, {sT}, 0x9e3779b9\nv_mov_b32 v{VT}, s82\ns_mov_b32 s101, 0x07060500")

    A(f"{NAME}_kernel:")
    if diag == 6: A("s_memrealtime s[90:91]")
    A("s_cmp_ge_u32 s2, 256\ns_cbranch_scc1 L_end")
    A("s_load_dwordx16 s[4:19], s[0:1], 0\ns_load_dwordx8 s[20:27], s[0:1], 64")
    if diag and diag != 6:
        for k in range(8): A(f"s_mov_b32 s{84+2*k}, 0")
    A("v_lshrrev_b32 v1, 6, v0\nv_and_b32 v0, 63, v0")
    A(f"v_readfirstlane_b32 {sW}, v1")
    if P["hmap"] == "div":
        A(f"s_lshr_b32 {sH}, s2, 4\ns_and_b32 {sI}, s2, 15")
    else:
        A(f"s_and_b32 {sH}, s2, 7\ns_lshl_b32 {sH}, {sH}, 1\ns_bfe_u32 s76, s2, 0x10003\ns_or_b32 {sH}, {sH}, s76\ns_lshr_b32 {sI}, s2, 4")
    A(f"v_mov_b32 v{VZ}, 0\ns_mov_b32 s3, {P['spin']}")
    A(f"s_sub_u32 {sC}, {sW}, 1")
    A(f"s_cmp_lg_u32 {sW}, 0\ns_cbranch_scc1 L_other")
    Fx = P["Fx"] or (list(P["Fh"]) * 4 if P["Fh"] else [F] * 8)
    import math
    dt = (7 + math.ceil(max(Fx + [F, P["Fd"] or F]))) // 8
    ch = P["chunk"]
    assert ch == 0 or all(x % ch == 0 for x in ((P["S"],) if dyn else P["SN"]))
    assert P["SA"] > 2
    A("s_setprio 3")
    own = P["own"]
    if own:
        assert dyn
        pb = P["pcs"]; rest = [b for b in range(10, 24) if b not in own and b not in pb]
        RM = sum(1 << b for b in rest)
        dep = lambda v, bs: sum(((v >> i) & 1) << b for i, b in enumerate(bs))
        piece = sorted(dep(k, pb) for k in range(4))
        P["S"] = P["R"] + P["E"]; P["SA"] = P["R"] - 15 * P["E"]
        assert 3 + P["gap"] * P["E"] <= P["S"]
        def sdep(dst, src, bs, tmp):
            i = 0; first = True
            while i < len(bs):
                k = i
                while k + 1 < len(bs) and bs[k + 1] == bs[k] + 1: k += 1
                A(f"s_and_b32 {tmp}, {src}, {((1 << (k - i + 1)) - 1) << i}\ns_lshl_b32 {dst if first else tmp}, {tmp}, {bs[i] - i}")
                if not first: A(f"s_or_b32 {dst}, {dst}, {tmp}")
                first = False; i = k + 1
    else:
        piece = [(4096 if P["spread"] else 1024) * k for k in range(4)]
    LV = 20
    A(f"v_lshrrev_b32 v1, 4, v0\nv_xor_b32 v4, v1, v0\nv_and_b32 v4, 15, v4\nv_lshl_add_u32 v4, v1, 4, v4\nv_lshlrev_b32 v{KA}, 4, v4")
    A(f"v_lshlrev_b32 v{LV}, 4, v0")
    for j in range(1, 4): A(f"v_xor_b32 v{KA+j}, {64*j + piece[j] - 1024*j}, v{KA}\nv_or_b32 v{LV+j}, {piece[j] - 1024*j}, v{LV}")
    A(f"v_mov_b32 v6, v{LV}")
    A(f"v_mov_b32 v24, {-dt}\nv_bfrev_b32 v25, -2\nv_mov_b32 v26, {-dt}")
    A(f"ds_write_b96 v6, v[24:26] offset:{L_FULL}")
    A(f"v_lshlrev_b32 v1, 2, v0\nds_write_b32 v1, v{VZ} offset:{L_DONE}")
    A(f"ds_read_b128 v[8:11], v{VZ} offset:{L_DONE}")
    if dyn:
        A(f"s_movk_i32 s78, {P['S']}")
    else:
        A(f"s_movk_i32 s78, {P['SN'][0]}\ns_bitcmp1_b32 {sH}, 0\ns_cselect_b32 s78, {P['SN'][1]}, s78")
    ways = P["ways"]
    if own:
        sdep("s72", sI, own, "s82")
        A(f"s_lshl_b32 s69, {sH}, 24\ns_or_b32 s72, s72, s69\ns_mov_b32 s76, 0\ns_mov_b32 s71, {P['gap'] - 1}")
        A(f"s_sub_u32 s83, {sI}, 1\ns_mul_i32 s83, s83, {P['E']}")
        sdep("s77", "s83", rest, "s82")
        A(f"s_cmp_lg_u32 {sI}, 0\ns_cbranch_scc1 L_ld_sched")
        A(f"s_mov_b32 s76, {dep(15 * P['E'], rest)}\ns_movk_i32 s78, {P['SA']}\ns_movk_i32 s71, 0x7fff\nL_ld_sched:")
    elif ways == 16:
        assert dyn and ch
        A(f"s_mul_i32 s76, {sI}, {ch}\ns_movk_i32 s77, {15*ch+1}")
        A(f"s_cmp_eq_u32 {sI}, 0\ns_cselect_b32 s78, {P['SA']}, s78")
    else:
        if ch:
            A(f"s_sub_u32 s76, {sI}, 1\ns_mul_i32 s76, s76, {ch}\ns_movk_i32 s77, {14*ch+1}")
        else:
            A(f"s_sub_u32 s76, {sI}, 1\ns_mul_i32 s76, s76, s78\ns_mov_b32 s77, 1")
        A(f"s_cmp_lg_u32 {sI}, 0\ns_cbranch_scc1 L_ld_sched")
        A("s_mul_i32 s76, s78, 15\ns_mov_b32 s77, 1")
        A(f"s_movk_i32 s78, {P['SA']}" if dyn else "s_sub_u32 s78, 4096, s76")
        A("L_ld_sched:")
    if not own: A(f"s_mul_i32 s71, {sH}, {P['hrot']}\ns_add_u32 s76, s76, s71\ns_lshl_b32 s72, {sH}, 24")
    A(f"s_mov_b32 s79, 0\ns_mov_b32 s80, {RING0}\ns_mov_b32 s81, {1-NS}")
    A("s_waitcnt lgkmcnt(0)")
    srd(rK, 6, 0x10000000); srd(rV, 8, 0x10000000)
    stamp(0)
    def waits(f):
        e = round(f * 8); lo, k = divmod(e, 8)
        return [lo + ((j + 1) * k // 8 - j * k // 8) for j in range(8)]
    def tile_loads(f, bar=None):
        if own:
            if bar is not None:
                A(f"s_sub_u32 s71, s71, 1\ns_cbranch_scc1 L_ld_x{bar}")
                A(f"s_or_b32 s75, s76, s72\ns_or_b32 s76, s76, {~RM & 0xffffffff}\ns_add_u32 s76, s76, 1\ns_and_b32 s76, s76, {RM}\nL_ld_xr{bar}:")
        elif P["spread"]:
            A("s_and_b32 s75, s76, 0xffc\ns_lshl_b32 s75, s75, 12\ns_or_b32 s75, s75, s72\ns_and_b32 s83, s76, 3\ns_lshl_b32 s83, s83, 10\ns_or_b32 s75, s75, s83")
        else:
            A("s_and_b32 s75, s76, 0xfff\ns_lshl_b32 s75, s75, 12\ns_or_b32 s75, s75, s72")
        w = waits(f)
        jp = min(j for j in range(8) if j - w[j] >= 7 - 8 * dt)
        for j in range(8):
            if j == 4: A("s_add_u32 m0, s80, 0x1000")
            if bar is not None and j == min(int(f) - 16, 7):
                A(f"s_cmp_eq_u32 s79, 2\ns_cbranch_scc1 L_ld_bar{bar}\nL_ld_barx{bar}:")
            A(f"s_waitcnt vmcnt({w[j]-1})")
            if j < 4: A(f"buffer_load_dwordx4 v{KA+j}, {rK}, s75 offen offset:{j*1024} {pol} lds")
            else: A(f"buffer_load_dwordx4 v{LV+j-4}, {rV}, s75 offen offset:{(j-4)*1024} {pol} lds")
            if j == jp:
                A(f"v_add_u32 v24, 1, v24\nv_add_u32 v26, 1, v26\nds_write_b96 v6, v[24:26] offset:{L_FULL}")
        A("s_add_u32 s80, s80, 0x2000")
        A(f"s_cmp_eq_u32 s80, {RING0 + NS*8192}\ns_cselect_b32 s80, {RING0}, s80")
        A("s_add_u32 s81, s81, 1\ns_add_u32 s79, s79, 1")
    fvals = sorted(set(Fx))
    if len(fvals) > 1:
        if P["Fh"]: A(f"s_and_b32 s70, {sH}, 1\ns_lshl_b32 s70, s70, 2")
        else: A("s_getreg_b32 s70, hwreg(HW_REG_XCC_ID, 0, 3)\ns_lshl_b32 s70, s70, 2")
        A(f"s_lshr_b32 s70, {sum(fvals.index(f) << (4*x) for x, f in enumerate(Fx))}, s70\ns_and_b32 s70, s70, 15")
    A("L_ld_pick:")
    for i in range(1, len(fvals)):
        A(f"s_cmp_eq_u32 s70, {i}\ns_cbranch_scc1 L_ld_loop{i}")
    for i, f in enumerate(fvals):
        A(f"L_ld_loop{i}:")
        A("s_waitcnt lgkmcnt(0)\nv_min3_u32 v4, v8, v9, v10\nv_min_u32 v4, v4, v11")
        A("s_mov_b32 m0, s80\nv_readfirstlane_b32 s82, v4")
        A(f"ds_read_b128 v[8:11], v{VZ} offset:{L_DONE}")
        A("s_cmp_lt_i32 s82, s81\ns_cbranch_scc1 L_ld_full")
        if diag == 4:
            for k, n in ((3, 3), (4, 10), (5, 17), (6, 18), (7, 40)):
                A(f"s_cmp_lg_u32 s79, {n}\ns_cbranch_scc1 L_d4_{i}_{k}\ns_memrealtime s[{84+2*k}:{85+2*k}]\nL_d4_{i}_{k}:")
        tile_loads(f, i)
        if own:
            pass
        elif ch > 1:
            A(f"s_and_b32 s83, s79, {ch-1}\ns_cselect_b32 s83, 1, s77\ns_add_u32 s76, s76, s83")
        else:
            A("s_add_u32 s76, s76, s77")
        A(f"s_cmp_lt_u32 s79, s78\ns_cbranch_scc1 L_ld_loop{i}")
        if i + 1 < len(fvals): A("s_branch L_ld_send")
    A("L_ld_send:")
    if dyn:
        def que_read(n):
            A(f"s_and_b32 s83, {n}, 31\ns_lshl_b32 s83, s83, 2\nv_mov_b32 v5, s83\nds_read_b32 v7, v5 offset:{L_QUE}")
        stamp(3)
        A("L_ld_dre:")
        que_read("s79")
        A("L_ld_dyn:")
        A("s_waitcnt lgkmcnt(0)\nv_min3_u32 v4, v8, v9, v10\nv_min_u32 v4, v4, v11\nv_readfirstlane_b32 s73, v7")
        A("s_mov_b32 m0, s80\nv_readfirstlane_b32 s82, v4")
        A(f"ds_read_b128 v[8:11], v{VZ} offset:{L_DONE}")
        A("s_add_u32 s74, s79, 1\ns_lshr_b32 s75, s73, 16\ns_cmp_lg_u32 s75, s74\ns_cbranch_scc1 L_ld_dfull")
        A("s_cmp_lt_i32 s82, s81\ns_cbranch_scc1 L_ld_dfull")
        A("s_and_b32 s73, s73, 0xffff\ns_cmp_ge_u32 s73, 0x4000\ns_cbranch_scc1 L_ld_drain")
        A("s_lshl_b32 s75, s73, 10\ns_or_b32 s75, s75, s69" if own else "s_add_u32 s76, s73, s71")
        que_read("s74")
        tile_loads(P["Fd"] or F)
        A("s_branch L_ld_dyn")
    A("L_ld_drain:")
    stamp(1)
    A("v_mov_b32 v25, s79")
    for r in range(dt - 1, -1, -1):
        A(f"s_waitcnt vmcnt({8*r+4})\nv_add_u32 v26, 1, v26\nds_write_b96 v6, v[24:26] offset:{L_FULL}")
        A(f"s_waitcnt vmcnt({8*r})\nv_add_u32 v24, 1, v24\nds_write_b96 v6, v[24:26] offset:{L_FULL}")
    stamp(2)
    dbg_time(2)
    if diag and diag not in (4, 6): A(f"s_mov_b32 s94, s79\ns_sub_u32 s96, {P['spin']}, s3")
    dump_stamps()
    A("s_endpgm")
    A("L_ld_full:")
    spin("L_ld_pick")
    if dyn:
        A("L_ld_dfull:")
        spin("L_ld_dre")
    if own:
        for i in range(len(fvals)):
            A(f"L_ld_x{i}:\ns_or_b32 s75, s77, s69\ns_or_b32 s77, s77, {~RM & 0xffffffff}\ns_add_u32 s77, s77, 1\ns_and_b32 s77, s77, {RM}")
            A(f"s_cmp_lt_u32 s79, {P['gap'] * P['E'] - 1}\ns_cselect_b32 s71, {P['gap'] - 1}, 0x7fff\ns_branch L_ld_xr{i}")
    for i in range(len(fvals)):
        A(f"L_ld_bar{i}:")
        stamp(5, 6)
        A("s_waitcnt lgkmcnt(0)\ns_barrier")
        stamp(6, 6)
        A(f"s_cmp_lg_u32 {sI}, 0\ns_cbranch_scc1 L_ld_barx{i}\ns_barrier\ns_barrier\ns_branch L_ld_barx{i}")

    A("L_other:")
    if P["cpf"]:
        A(f"s_cmp_lg_u32 {sW}, 4\ns_cbranch_scc1 L_nopf")
        code_prefetch(220)
        A("L_nopf:")
    A("s_waitcnt lgkmcnt(0)")
    srd(rX, 4, 1152); srd(rWS, 26, 0x200000)
    if P["dbgt"]:
        A(f"s_cmp_lg_u32 {sW}, 4\ns_cbranch_scc1 L_dbg0")
        dbg_time(0, True)
        A("L_dbg0:")
    A(f"s_load_dword {sT}, s[26:27], {WS_EPOCH}")
    stamp(0)
    A(f"s_cmp_eq_u32 {sW}, 5\ns_cbranch_scc1 L_xload")
    A(f"s_cmp_lg_u32 {sI}, 0\ns_cbranch_scc1 L_pre_done")
    A("L_xload:")
    A("v_and_b32 v1, 7, v0\nv_lshrrev_b32 v4, 3, v0\nv_lshl_add_u32 v5, v1, 3, v4\nv_lshlrev_b32 v5, 1, v5")
    for k in range(9): A(f"buffer_load_ushort v{X+k}, v5, {rX}, 0 offen offset:{128*k}")
    A(f"s_cmp_lg_u32 {sW}, 5\ns_cbranch_scc1 L_pre_done")
    A(f"s_and_b32 s82, {sI}, 3\ns_mul_i32 s82, s82, 288")
    for k in range(3): A(f"buffer_load_ushort v{XR+k}, v5, {rX}, s82 offen offset:{128*k}")
    srd(rWQ, 10, 576 * 8192)
    A("v_lshlrev_b32 v5, 4, v1\nv_lshl_add_u32 v5, v4, 13, v5")
    A(f"s_lshl_b32 s82, s82, 12\ns_lshl_b32 s83, {sH}, 9\ns_add_u32 s82, s82, s83")
    A(f"s_lshr_b32 s83, {sI}, 2\ns_lshl_b32 s83, s83, 7\ns_add_u32 s82, s82, s83")
    for p in range(18):
        A(f"buffer_load_dwordx4 {vr(RG+4*p)}, v5, {rWQ}, s82 offen {wpol}")
        if p < 17: A("s_add_u32 s82, s82, 0x10000")
    if dyn:
        A(f"s_cmp_lg_u32 {sI}, 0\ns_cbranch_scc1 L_pre_done\ns_mov_b64 exec, 1")
        A(f"s_mul_i32 s82, {sH}, {P['cstride']}\ns_add_u32 s82, s82, {WS_CNT}\nbuffer_store_dword v{VZ}, v{VZ}, {rWS}, s82 offen sc1")
        A("s_mov_b64 exec, -1")
    VWO = 104 + 2
    def wo_prep():
        srd(rWO, 12, 4096 * 1152)
        A(f"s_sub_u32 s82, {sI}, 1\ns_cmp_gt_u32 s82, 8\ns_cselect_b32 s54, 0, s54")
        A("v_lshrrev_b32 v2, 5, v0\nv_lshlrev_b32 v2, 7, v2\nv_bfe_u32 v3, v0, 3, 2\nv_lshl_add_u32 v2, v3, 1, v2")
        A(f"v_mul_u32_u24 v2, 0x480, v2\nv_and_b32 v3, 7, v0\nv_lshl_add_u32 v{VWO}, v3, 4, v2")
        A(f"s_lshl_b32 s82, s82, 7\ns_lshl_b32 s83, {sH}, 3\ns_add_u32 s83, s83, {sC}\ns_mul_i32 s83, s83, {32*1152}\ns_add_u32 s48, s82, s83")
        for t in range(1, 4): A(f"s_add_u32 s{48+t}, s48, {8*t*1152}")
    def wo_loads():
        for t in range(8):
            A(f"buffer_load_dwordx4 {vr(WO+4*t)}, v{VWO}, {rWO}, s{48+(t&3)} offen offset:{(t>>2)*1152} {wpol}")
    A("L_pre_done:")
    A("s_barrier")
    A("v_and_b32 v1, 1, v0\nv_lshlrev_b32 v1, 4, v1\nv_mov_b32 v4, 0xffff\nv_lshlrev_b32 v4, v1, v4\nv_bfe_u32 v5, v0, 1, 2")
    for v in range(4):
        A(f"v_cmp_eq_u32 vcc, {v}, v5\ns_nop 1\nv_cndmask_b32 v{M+v}, 0, v4, vcc")
    A(f"v_bfe_u32 v4, v0, 4, 1\nv_and_b32 v5, 7, v0\nv_lshl_add_u32 v4, v4, 3, v5\nv_lshlrev_b32 v{VPL}, 4, v4")
    A(f"s_cmp_eq_u32 {sW}, 5\ns_cbranch_scc1 L_ln")
    A(f"s_cmp_lg_u32 {sI}, 0\ns_cbranch_scc1 L_cons_main\ns_waitcnt vmcnt(0)")
    A("L_ln:")
    stamp(3, 2)
    A("s_waitcnt vmcnt(21)")
    stamp(5, 2)
    for k in range(9): A(f"v_lshlrev_b32 v{X+k}, 16, v{X+k}")
    A(f"v_add_f32 v1, v{X}, v{X+1}")
    for k in range(2, 9): A(f"v_add_f32 v1, v1, v{X+k}")
    wave_sum(1, 2)
    A("s_mov_b32 s82, 0x3ae38e39\ns_mov_b32 s83, 0x44100000")
    def div576(v):
        A(f"v_mul_f32 v2, s82, v{v}\nv_fma_f32 v3, -v2, s83, v{v}\nv_fma_f32 v{v}, v3, s82, v2")
    div576(1)
    A(f"v_sub_f32 v2, v{X}, v1\nv_mul_f32 v4, v2, v2")
    for k in range(1, 9): A(f"v_sub_f32 v2, v{X+k}, v1\nv_fmac_f32 v4, v2, v2")
    wave_sum(4, 2)
    div576(4)
    rbf(1, 1); rbf(4, 4)
    A("v_add_f32 v4, 0x3727c5ac, v4"); rbf(4, 4)
    A("v_sqrt_f32 v5, v4\ns_nop 0\nv_rcp_f32 v6, v5\nv_fma_f32 v3, -v5, v5, v4\nv_mul_f32 v6, 0.5, v6\nv_fma_f32 v5, v3, v6, v5")
    rbf(5, 5)
    A("v_rcp_f32 v6, v5")
    def norm(r):
        A(f"v_sub_f32 v2, v{r}, v1"); rbf(2, 2)
        A(f"v_mul_f32 v3, v2, v6\nv_fma_f32 v4, -v3, v5, v2\nv_fma_f32 v3, v4, v6, v3\nv_cvt_pk_bf16_f32 v{r}, v3, v3")
    A(f"s_cmp_lg_u32 {sI}, 0\ns_cbranch_scc1 L_ln_xr")
    for k in range(9): norm(X + k)
    A(f"s_cmp_lg_u32 {sW}, 5\ns_cbranch_scc1 L_ffn")
    A("L_ln_xr:\ns_waitcnt vmcnt(18)")
    for k in range(3):
        A(f"v_lshlrev_b32 v{XR+k}, 16, v{XR+k}"); norm(XR + k)
    A("s_nop 0")
    stamp(6, 2)
    for p in range(18):
        bbuild(XR + p // 8, p % 8, B + 4 * (p & 1))
        A(f"s_waitcnt vmcnt({17 - p})\ns_nop 0")
        mfma(DQ, RG + 4 * p, B + 4 * (p & 1), "0" if p == 0 else None)
    A("s_waitcnt lgkmcnt(0)")
    tagprep()
    A(f"s_lshl_b32 s82, {sH}, 12\ns_and_b32 s83, {sI}, 3\ns_lshl_b32 s83, s83, 10\ns_add_u32 s82, s82, s83")
    A(f"s_lshr_b32 s83, {sI}, 2\ns_lshl_b32 s83, s83, 8\ns_add_u32 s82, s82, s83")
    for i in range(4): A(f"v_mov_b32_dpp v{V+i}, v{DQ+i} row_ror:8 row_mask:0xf bank_mask:0xf")
    A("s_nop 0")
    for i in range(4): A(f"v_permlane32_swap_b32 v{V+i}, v{V+4+i}")
    for i in range(4): A(f"v_add_f32 v{K+i}, v{DQ+i}, v{V+4+i}")
    for i in range(4): A(f"v_bfi_b32 v{K+i}, 15, v{VT}, v{K+i}")
    stamp(7, 2)
    A("s_mov_b64 exec, 0x00ff00ff\ns_waitcnt vmcnt(0)")
    A(f"buffer_store_dwordx4 {vr(K)}, v{VPL}, {rWS}, s82 offen sc1")
    A("s_mov_b64 exec, -1")
    stamp(1)
    A(f"s_cmp_eq_u32 {sI}, 0\ns_cbranch_scc1 L_ffn")
    A("L_qgather:")
    A(f"v_lshlrev_b32 v4, 4, v0\ns_lshl_b32 s82, {sH}, 12")
    if P["qdelay"] is not None:
        A(f"L_qdel:\nds_read_b32 v1, v{VZ} offset:{L_FULL}\ns_waitcnt lgkmcnt(0)\nv_cmp_le_i32 vcc, {P['qdelay']}, v1\ns_cbranch_vccnz L_qdel_ok")
        A(f"s_cmp_eq_u32 {sI}, 0\ns_cbranch_scc1 L_qdel_ok\ns_sleep 2")
        spin("L_qdel")
        A("L_qdel_ok:")
    A("L_qpoll:")
    for p in range(4): A(f"buffer_load_dwordx4 {vr(RG+4*p)}, v4, {rWS}, s82 offen offset:{p*1024} sc1")
    for p in range(4):
        A(f"s_waitcnt vmcnt({3-p})")
        tagchk(1, range(RG + 4 * p, RG + 4 * p + 4), p == 0)
    A("v_and_b32 v1, 15, v1\nv_cmp_ne_u32 vcc, 0, v1")
    A("s_cbranch_vccz L_qready\ns_sleep 2")
    spin("L_qpoll")
    A("L_qready:")
    stamp(2)
    for i in range(4): A(f"v_add_f32 v{RG+i}, v{RG+i}, v{RG+4+i}\nv_add_f32 v{RG+8+i}, v{RG+8+i}, v{RG+12+i}")
    for i in range(4): A(f"v_add_f32 v{RG+i}, v{RG+i}, v{RG+8+i}")
    A("v_lshrrev_b32 v4, 3, v0\nv_and_b32 v5, 7, v0\nv_lshl_add_u32 v4, v4, 5, v5\nv_lshlrev_b32 v4, 1, v4")
    A(f"v_cvt_pk_bf16_f32 v{RG}, v{RG}, v{RG+1}\nv_cvt_pk_bf16_f32 v{RG+4}, v{RG+2}, v{RG+3}")
    A(f"ds_write_b16 v4, v{RG} offset:{L_Q}\nds_write_b16_d16_hi v4, v{RG} offset:{L_Q+16}")
    A(f"ds_write_b16 v4, v{RG+4} offset:{L_Q+32}\nds_write_b16_d16_hi v4, v{RG+4} offset:{L_Q+48}")
    A(f"v_mov_b32 v5, 1\ns_waitcnt lgkmcnt(0)\nds_write_b32 v{VZ}, v5 offset:{L_QFLAG}")
    if P["pre"]:
        A("v_lshrrev_b32 v5, 4, v0\nv_and_b32 v6, 15, v0\nv_lshlrev_b32 v6, 4, v6\nv_lshl_add_u32 v5, v5, 12, v6")
        A(f"s_lshl_b32 s82, {sH}, 14\ns_lshl_b32 s83, {sI}, 8\ns_add_u32 s82, s82, s83\ns_add_u32 s82, s82, {WS_P}")
        A(f"s_lshl_b32 s80, {sH}, 12\ns_lshl_b32 s83, {sI}, 6\ns_add_u32 s80, s80, s83\ns_add_u32 s80, s80, {WS_ML}")
        A(f"s_lshl_b32 s81, {sI}, 12\ns_lshl_b32 s83, {sH}, 8\ns_add_u32 s81, s81, s83\ns_add_u32 s81, s81, {WS_Y - 4096}")
        A("v_lshlrev_b32 v4, 10, v0")
        if P["pre"] == "clear":
            for i in range(4): A(f"v_not_b32 v{24+i}, v{VT}")
            A(f"buffer_store_dwordx4 v[24:27], v5, {rWS}, s82 offen sc1\ns_mov_b64 exec, 15\nbuffer_store_dwordx4 v[24:27], v4, {rWS}, s80 offen sc1")
        else:
            pp = P["pre"][4:]
            A(f"buffer_load_dwordx4 v[24:27], v5, {rWS}, s82 offen {pp}\ns_mov_b64 exec, 15\nbuffer_load_dwordx4 v[28:31], v4, {rWS}, s80 offen {pp}")
            A(f"s_mov_b64 exec, 0xffff\nbuffer_load_dwordx4 v[32:35], v6, {rWS}, s81 offen {pp}")
        A("s_mov_b64 exec, -1\ns_waitcnt vmcnt(0)")
    if dyn:
        npool = 4096 - 15 * P["S"] - P["SA"]
        def to_tile():
            if ways == 16:
                na = P["S"] - P["SA"]; lc = ch.bit_length() - 1
                A(f"s_add_u32 s81, s80, {P['SA']}\ns_lshr_b32 s82, s81, {lc}\ns_lshl_b32 s82, s82, {lc+4}\ns_and_b32 s81, s81, {ch-1}\ns_or_b32 s81, s81, s82")
                A(f"s_add_u32 s82, s80, {16*P['S'] - na}\ns_cmp_lt_u32 s80, {na}\ns_cselect_b32 s80, s81, s82")
            else:
                if P["pmul"] > 1:
                    import math
                    assert math.gcd(P["pmul"], npool) == 1
                    A(f"s_mul_i32 s80, s80, {P['pmul']}\ns_mul_hi_u32 s81, s80, {(1 << 32) // npool + 1}\ns_mul_i32 s81, s81, {npool}\ns_sub_u32 s80, s80, s81")
                A(f"s_add_u32 s80, s80, {4096 - npool}")
        ahead = dt + P["AH"]
        cc = P["cc"]; CD = {1: 4, 2: 2}.get(cc, 1)
        assert npool % cc == 0 and (cc == 1 or (ways == 15 and P["pmul"] == 1)) and P["AH"] >= (CD - 1) * cc
        A(f"s_movk_i32 s76, {P['S']}\ns_cmp_eq_u32 {sI}, 0\ns_cselect_b32 s76, {P['SA']}, s76\ns_add_u32 s77, s76, {CD*cc}")
        A(f"s_mul_i32 s78, {sH}, {P['cstride']}\ns_add_u32 s78, s78, {WS_CNT}\nv_mov_b32 v4, s78\nv_mov_b32 v5, {cc}\ns_mov_b64 exec, 1")
        def que_write(val):
            if own and val == "s80":
                A("s_lshr_b32 s73, s80, 4")
                sdep("s74", "s73", [b - 10 for b in rest], "s75")
                sdep("s73", "s80", [b - 10 for b in own], "s75")
                A("s_or_b32 s74, s74, s73"); val = "s74"
            A(f"s_and_b32 s82, s79, 31\ns_lshl_b32 s82, s82, 2\ns_add_u32 s79, s79, 1\ns_lshl_b32 s83, s79, 16\ns_or_b32 s83, s83, {val}")
            A(f"v_mov_b32 v1, s82\nv_mov_b32 v2, s83\nds_write_b32 v1, v2 offset:{L_QUE}")
        A("s_mov_b32 s79, s76")
        if P["cpf2"]:
            A(f"L_pf2:\nds_read_b32 v1, v{VZ} offset:{L_FULL}\ns_waitcnt lgkmcnt(0)\nv_readfirstlane_b32 s78, v1")
            A(f"s_add_u32 s78, s78, {ahead + 8}\ns_cmp_le_i32 s76, s78\ns_cbranch_scc1 L_pf2_go\ns_sleep 8")
            spin("L_pf2")
            A("L_pf2_go:\ns_mov_b64 exec, -1")
            code_prefetch(220)
            A("s_mov_b64 exec, 1\ns_waitcnt vmcnt(0)")
        if P["fake"]:
            per = npool // 16
            A(f"s_mov_b32 s80, {sI}\ns_add_u32 s80, s80, {4096 - npool}\ns_add_u32 s77, s79, {per}")
            A(f"L_fk:\nds_read_b32 v1, v{VZ} offset:{L_FULL}\ns_waitcnt lgkmcnt(0)\nv_readfirstlane_b32 s78, v1")
            A(f"s_add_u32 s78, s78, {ahead}\ns_cmp_le_i32 s79, s78\ns_cbranch_scc1 L_fk_go\ns_sleep 2")
            spin("L_fk")
            A("L_fk_go:")
            if P["fake"] == 2: A(f"global_atomic_add v20, v4, v5, s[26:27] {P['apol']}")
            if P["fake"] in (3, 6): A(f"s_lshl_b32 s81, s2, 8\ns_add_u32 s81, s81, 0xc0000\nv_mov_b32 v4, s81")
            if P["fake"] in (3, 4): A(f"global_store_dword v4, v5, s[26:27] {P.get('spol', 'sc1')}")
            if P["fake"] == 5: A(f"global_load_dword v20, v4, s[26:27] sc1")
            if P["fake"] == 6: A(f"global_atomic_add v20, v4, v5, s[26:27] {P['apol']}")
            que_write("s80")
            A("s_add_u32 s80, s80, 16\ns_cmp_lt_u32 s79, s77\ns_cbranch_scc1 L_fk\ns_branch L_cl_x2")
        if P["segs"]:
            assert cc == 1 and ways == 15 and P["pmul"] == 1
            base = 4096 - npool; c0 = 0; t0 = base; chain = []
            for cnt, sz in P["segs"]:
                chain.append((c0, t0, sz)); c0 += cnt; t0 += cnt * sz
            n1 = 4096 - t0
            assert n1 > 0
            A(f"L_ca:\nds_read_b32 v1, v{VZ} offset:{L_FULL}\ns_waitcnt lgkmcnt(0)\nv_readfirstlane_b32 s78, v1")
            A(f"s_add_u32 s78, s78, {dt + P['AHA']}\ns_cmp_le_i32 s79, s78\ns_cbranch_scc1 L_ca_go\ns_sleep 2")
            spin("L_ca")
            A(f"L_ca_go:\nglobal_atomic_add v20, v4, v5, s[26:27] {P['apol']}\ns_waitcnt vmcnt(0)\nv_readfirstlane_b32 s78, v20")
            A(f"s_cmp_ge_u32 s78, {c0}\ns_cbranch_scc1 L_ca_one")
            for i, (c, t, sz) in enumerate(chain):
                if i == 0: A(f"s_movk_i32 s80, {t - c*sz}\ns_mov_b32 s81, {sz}")
                else: A(f"s_cmp_ge_u32 s78, {c}\ns_cselect_b32 s80, {t - c*sz}, s80\ns_cselect_b32 s81, {sz}, s81")
            A("s_mul_i32 s78, s78, s81\ns_add_u32 s80, s80, s78\nL_ca_put:")
            que_write("s80")
            A("s_add_u32 s80, s80, 1\ns_sub_u32 s81, s81, 1\ns_cmp_lg_u32 s81, 0\ns_cbranch_scc1 L_ca_put\ns_branch L_ca")
            A(f"L_ca_one:\ns_cmp_ge_u32 s78, {c0 + n1}\ns_cbranch_scc1 L_cl_x2\ns_add_u32 s80, s78, {t0 - c0}")
            que_write("s80")
            A("s_mov_b32 s76, s79\ns_add_u32 s77, s76, 4")
            npool = c0 + n1
            def to_tile(): A(f"s_add_u32 s80, s80, {4096 - npool}")
        def put():
            to_tile()
            for i in range(cc):
                if i: A("s_add_u32 s80, s80, 1")
                que_write("s80")
        for k in range(CD):
            A(f"L_cl_{k}:\nds_read_b32 v1, v{VZ} offset:{L_FULL}\ns_waitcnt lgkmcnt(0)\nv_readfirstlane_b32 s78, v1")
            A(f"s_add_u32 s78, s78, {ahead}\ns_cmp_le_i32 s76, s78\ns_cbranch_scc1 L_cl_go{k}\ns_sleep 2")
            spin(f"L_cl_{k}")
            A(f"L_cl_go{k}:\nglobal_atomic_add v{20+k}, v4, v5, s[26:27] {P['apol']}")
            A(f"s_add_u32 s76, s76, {cc}\ns_cmp_lt_u32 s76, s77\ns_cbranch_scc1 L_cl_{(k+1)%CD}")
            A(f"s_waitcnt vmcnt({CD-1})\nv_readfirstlane_b32 s80, v{20+(k+1)%CD}")
            A(f"s_cmp_ge_u32 s80, {npool}\ns_cbranch_scc1 L_cl_x2")
            put()
        A("s_branch L_cl_0")
        A("L_cl_x2:")
        que_write("0xffff")
        A("s_mov_b64 exec, -1")
    A(f"s_cmp_lg_u32 {sI}, 10\ns_cbranch_scc1 L_e_done\ns_cmp_gt_u32 {sH}, 8\ns_cbranch_scc1 L_e_done")
    srd(rOUT, 22, 1152)
    A("v_lshrrev_b32 v4, 5, v0\nv_and_b32 v5, 3, v0\nv_lshl_add_u32 v4, v4, 2, v5\nv_bfe_u32 v5, v0, 2, 3\nv_lshl_add_u32 v4, v4, 3, v5")
    A(f"v_lshlrev_b32 v2, 1, v4\ns_lshl_b32 s79, {sH}, 7")
    A(f"buffer_load_ushort v3, v2, {rX}, s79 offen")
    A(f"v_lshlrev_b32 v4, 2, v0\ns_lshl_b32 s82, {sH}, 12")
    def issue(b):
        for p in range(16): A(f"buffer_load_dword v{b+p}, v4, {rWS}, s80 offen offset:{256*p} {P['hl']}")
    def check(b, dst, behind, ok):
        for p in range(0, 16, 2):
            A(f"s_waitcnt vmcnt({behind+14-p})")
            tagchk(1, (b + p, b + p + 1), p == 0)
            if p == 0: A(f"v_add_f32 v{dst}, v{b}, v{b+1}")
            else: A(f"v_add_f32 v{dst}, v{dst}, v{b+p}\nv_add_f32 v{dst}, v{dst}, v{b+p+1}")
        tagtest(1)
        A(f"s_cbranch_vccz {ok}")
    def gather_sum(lbl, base, dst, slp):
        A(f"s_add_u32 s80, s82, {base}\n{lbl}:")
        issue(RG); check(RG, dst, 0, lbl + "_ok")
        if slp: A(f"s_sleep {slp}")
        spin(lbl)
        A(f"{lbl}_ok:")
    gather_sum("L_f_ffn", WS_F, 22, 16)
    rbf(22, 22)
    A(f"v_mul_f32 v5, {hex(LOG2E ^ 0x80000000)}, v22\nv_exp_f32 v5, v5\ns_nop 0\nv_add_f32 v5, 1.0, v5\nv_rcp_f32 v5, v5\ns_nop 0\nv_mul_f32 v22, v22, v5")
    rbf(22, 22)
    A("v_lshlrev_b32 v3, 16, v3")
    A(f"L_f_wait:\nds_read_b64 v[24:25], v{VZ} offset:{L_FULL}\ns_waitcnt lgkmcnt(0)\nv_cmp_ge_i32 vcc, v24, v25\ns_cbranch_vccnz L_f_go\ns_sleep 4")
    spin("L_f_wait")
    A("L_f_go:")
    if P["fpipe"]:
        A(f"s_add_u32 s80, s82, {WS_Y}")
        issue(RG)
        A("s_sleep 4\nL_f_att:")
        issue(RG + 16); check(RG, 23, 16, "L_f_att_ok"); issue(RG); check(RG + 16, 23, 16, "L_f_att_ok")
        spin("L_f_att")
        A("L_f_att_ok:")
    else:
        gather_sum("L_f_att", WS_Y, 23, P.get("fsleep", 0))
    rbf(23, 23)
    A("v_mul_f32 v23, v23, v22"); rbf(23, 23)
    A(f"v_add_f32 v23, v23, v3\nv_cvt_pk_bf16_f32 v23, v23, v23\nbuffer_store_short v23, v2, {rOUT}, s79 offen")
    dbg_time(1)
    A(f"s_cmp_lg_u32 {sH}, 0\ns_cbranch_scc1 L_e_done")
    A(f"s_mov_b64 exec, 1\nv_mov_b32 v4, {WS_EPOCH}\nglobal_store_dword v4, v{VT}, s[26:27] sc1\ns_mov_b64 exec, -1\ns_branch L_e_done")

    A("L_cons_main:")
    A("v_and_b32 v1, 15, v0\nv_lshrrev_b32 v4, 4, v0\nv_xor_b32 v5, v1, v4\nv_lshlrev_b32 v5, 4, v5")
    A(f"v_lshl_add_u32 v{KA}, v1, 8, v5")
    for ks in range(1, 4): A(f"v_xor_b32 v{KA+ks}, {64*ks}, v{KA}")
    A(f"v_lshlrev_b32 v5, 4, v1\nv_lshl_add_u32 v{VA}, v4, 10, v5")
    A(f"v_mov_b32 v{Vm}, 0xff800000\nv_mov_b32 v{VmL}, 0xff800000\nv_mov_b32 v{Vl}, 0")
    for i in range(4): A(f"v_mov_b32 v{O+i}, 0")
    A(f"s_lshl_b32 s82, {sC}, 2\nv_mov_b32 v{VDA}, s82")
    if diag == 3: A("v_mov_b32 v225, 0\nv_mov_b32 v226, 0")
    A("v_bfe_u32 v5, v0, 3, 1\nv_lshlrev_b32 v5, 8, v5\nv_lshl_add_u32 v5, v4, 4, v5")
    A(f"s_mov_b32 s72, {hex(SCALE)}\ns_mov_b32 s73, {hex(LOG2E)}\ns_mov_b32 s74, 0")
    A(f"s_mov_b32 s76, {sC}\ns_lshl_b32 s77, {sC}, 13\ns_add_u32 s77, s77, {RING0}\ns_mov_b32 s78, 0")
    wo_prep()
    MA, MRG = X, RG
    if P["direct"]:
        assert not P["vlate"] and P["gate"]
        for i in range(1, 4):
            A(f"s_add_u32 s82, {sC}, {i}\ns_and_b32 s82, s82, 3\ns_lshl_b32 s83, s82, 9\ns_lshl_b32 s82, s82, 10")
            A(f"v_lshl_add_u32 v{MA+2*i-2}, v0, 3, s83\nv_lshl_add_u32 v{MA+2*i-1}, v0, 4, s82")
        A(f"v_lshrrev_b32 v2, 4, v0\nv_and_b32 v3, 15, v0\nv_lshlrev_b32 v3, 4, v3\nv_lshl_add_u32 v{MA+6}, v2, 12, v3")
        A(f"v_and_b32 v3, 8, v0\nv_lshl_add_u32 v{MA+7}, v2, 10, v3")
        A(f"s_lshl_b32 s56, {sH}, 14\ns_add_u32 s56, s56, {WS_P}\ns_lshl_b32 s83, {sI}, 8\ns_add_u32 s58, s56, s83")
        A(f"s_lshl_b32 s83, {sC}, 12\ns_add_u32 s56, s56, s83")
        A(f"s_lshl_b32 s57, {sH}, 12\ns_add_u32 s57, s57, {WS_ML}\ns_lshl_b32 s83, {sI}, 6\ns_add_u32 s59, s83, s57")
        A(f"s_lshl_b32 s83, {sC}, 10\ns_add_u32 s57, s57, s83\ns_mov_b32 s70, -1")
    def merge_reads():
        A(f"ds_read_b32 v{MRG+18}, v{VZ} offset:{L_QFLAG+4}")
        for i in range(3): A(f"ds_read_b64 {vr(MRG+12+2*i, 2)}, v{MA+2*i} offset:{L_MML}")
        for i in range(3): A(f"ds_read_b128 {vr(MRG+4*i)}, v{MA+2*i+1} offset:{L_MO}")
    A("s_brev_b32 s75, -2\ns_mov_b32 s71, s75")
    A(f"L_qwait:\nds_read_b32 v1, v{VZ} offset:{L_QFLAG}\ns_waitcnt lgkmcnt(0)\nv_readfirstlane_b32 s79, v1")
    A("s_cmp_lg_u32 s79, 0\ns_cbranch_scc1 L_qgo\ns_sleep 1")
    spin("L_qwait")
    A("L_qgo:")
    tagprep()
    for ks in range(4): A(f"ds_read_b128 {vr(Q+4*ks)}, v5 offset:{L_Q + 64*ks}")
    A("s_waitcnt lgkmcnt(0)")
    stamp(4)
    A("L_c_top:\ns_cmp_lt_i32 s76, s74\ns_cbranch_scc1 L_c_go\ns_cmp_ge_i32 s76, s75\ns_cbranch_scc1 L_c_exit")
    A(f"L_c_poll:\nds_read_b96 v[{S}:{S+2}], v{VZ} offset:{L_FULL}\ns_waitcnt lgkmcnt(0)")
    A(f"v_readfirstlane_b32 s74, v{S+2}\nv_readfirstlane_b32 s75, v{S+1}\nv_readfirstlane_b32 s78, v{S}")
    if P["direct"]: A("s_add_u32 s70, s75, 3")
    if P["wo"] == "late": A("s_cmp_lt_i32 s75, s71\ns_cbranch_scc1 L_c_wo\nL_c_wox:")
    A("s_cmp_lt_i32 s76, s74\ns_cbranch_scc1 L_c_go\ns_cmp_ge_i32 s76, s75\ns_cbranch_scc1 L_c_exit")
    if P["sleep"]: A(f"s_sleep {P['sleep']}")
    spin("L_c_poll")
    if P["wo"] == "late":
        A("L_c_wo:\ns_mov_b32 s71, 0")
        wo_loads()
        A("s_branch L_c_wox")
    A("L_c_vwait:")
    A(f"ds_read_b32 v22, v{VZ} offset:{L_FULL}\ns_waitcnt lgkmcnt(0)\nv_readfirstlane_b32 s78, v22\ns_cmp_lt_i32 s76, s78\ns_cbranch_scc1 L_c_v")
    spin("L_c_vwait")
    if P["vlate"]:
        A("L_c_v:")
        for r in range(4): A(f"ds_read_b128 {vr(V+4*r)}, v{AD+4} offset:{4096 + 256*r}")
        A("s_branch L_c_pv\nL_c_nov:\ns_nop 2\ns_branch L_c_sm")
    A("L_c_go:")
    stamp(3, 7)
    if diag == 3:
        A("s_memrealtime s[84:85]\ns_lshr_b32 s86, s76, 2\ns_waitcnt lgkmcnt(0)\ns_and_b32 m0, s86, 63\ns_cmp_lt_u32 s86, 64\ns_cbranch_scc0 L_tr_hi")
        A("v_writelane_b32 v225, s84, m0\ns_branch L_tr_done\nL_tr_hi:\nv_writelane_b32 v226, s84, m0\nL_tr_done:")
    for ks in range(4):
        A(f"v_add_u32 v{AD+ks}, s77, v{KA+ks}\nds_read_b128 {vr(K+4*ks)}, v{AD+ks}")
    A(f"v_add_u32 v{AD+4}, s77, v{VA}")
    A(f"s_add_u32 s77, s77, 0x8000\ns_sub_u32 s79, s77, {NS*8192}")
    A(f"s_cmp_ge_u32 s77, {RING0 + NS*8192}\ns_cselect_b32 s77, s79, s77")
    for ks in range(4):
        A(f"s_waitcnt lgkmcnt({3-ks})")
        mfma(S, K + 4 * ks, Q + 4 * ks, "0" if ks == 0 else None)
    def vreads():
        for r in range(4): A(f"ds_read_b128 {vr(V+4*r)}, v{AD+4} offset:{4096 + 256*r}")
    if P["vlate"]:
        A("s_add_u32 s79, s76, 1\ns_cmp_lt_i32 s76, s78\ns_cbranch_scc0 L_c_nov")
        vreads()
        A(f"L_c_sm:\nv_mov_b32 v{AD}, s79")
    else:
        A("s_cmp_lt_i32 s76, s78\ns_cbranch_scc0 L_c_vwait\nL_c_v:")
        vreads()
        A(f"s_add_u32 s76, s76, 1\nv_mov_b32 v{AD}, s76\ns_add_u32 s76, s76, 3")
    for i in range(4): A(f"v_cvt_pk_bf16_f32 v{S+i}, 0, v{S+i}")
    for i in range(4): A(f"v_mul_f32 v{S+i}, s72, v{S+i}")
    for i in range(4): A(f"v_cvt_pk_bf16_f32 v{S+i}, 0, v{S+i}")
    A(f"v_max3_f32 v22, v{S}, v{S+1}, v{S+2}\nv_max_f32 v22, v22, v{S+3}")
    A(f"v_cmp_gt_f32 vcc, v22, v{Vm}\ns_cbranch_vccnz L_c_rescale\nL_c_cont:")
    for i in range(4): A(f"v_fma_f32 v{PP+i}, v{S+i}, s73, -v{VmL}")
    for i in range(4): A(f"v_exp_f32 v{PP+i}, v{PP+i}")
    stamp(1, 7)
    if P["vlate"]: A("s_cmp_lt_i32 s76, s78\ns_cbranch_scc0 L_c_vwait\nL_c_pv:\ns_add_u32 s76, s76, 4")
    A(f"s_waitcnt lgkmcnt(0)\nds_write_b32 v{VDA}, v{AD} offset:{L_DONE}")
    if P["direct"]:
        A("s_cmp_lg_u32 s76, s70\ns_cbranch_scc1 L_c_pvb")
        merge_reads()
        A("L_c_pvb:")
    for i in range(4):
        A(f"v_cvt_pk_bf16_f32 v22, v{PP+i}, v{PP+i}")
        for v in range(4): A(f"v_and_b32 v{B+4*i+v}, v22, v{M+v}")
        A(f"v_add_f32 v{Vl}, v{Vl}, v{PP+i}")
        if i > 0: mfma(O, V + 4 * (i - 1), B + 4 * (i - 1))
    A("s_nop 0")
    mfma(O, V + 12, B + 12)
    if P["wo"] == "mid":
        A(f"s_lshr_b32 s79, s76, 2\ns_cmp_lg_u32 s79, {P['womid']//4}\ns_cbranch_scc1 L_c_top")
        wo_loads()
    A("s_branch L_c_top")
    A("L_c_rescale:")
    for op in ("v_permlane16_swap_b32", "v_permlane32_swap_b32"):
        A(f"v_mov_b32 v23, v22\ns_nop 1\n{op} v23, v22\nv_max_f32 v22, v22, v23")
    A(f"v_max_f32 v{Vm}, v{Vm}, v22\nv_mul_f32 v22, s73, v{Vm}\nv_sub_f32 v23, v{VmL}, v22\nv_exp_f32 v23, v23\nv_mov_b32 v{VmL}, v22")
    A(f"v_mul_f32 v{Vl}, v{Vl}, v23")
    for i in range(4): A(f"v_mul_f32 v{O+i}, v{O+i}, v23")
    A("s_branch L_c_cont")
    A("L_c_exit:")
    stamp(5, 7)
    if diag == 3:
        A(f"s_lshl_b32 s84, s2, 2\ns_add_u32 s84, s84, {sC}\ns_lshl_b32 s84, s84, 9\ns_add_u32 s84, s84, {WS_DIAG + 0x20000}\nv_lshlrev_b32 v1, 2, v0")
        A(f"buffer_store_dword v225, v1, {rWS}, s84 offen\nbuffer_store_dword v226, v1, {rWS}, s84 offen offset:256")
    stamp(5)
    if P["direct"]:
        for op in ("v_permlane16_swap_b32", "v_permlane32_swap_b32"):
            A(f"v_mov_b32 v23, v{Vl}\ns_nop 1\n{op} v23, v{Vl}\nv_add_f32 v{Vl}, v{Vl}, v23")
        A("s_cmp_eq_u32 s76, s70\ns_cbranch_scc1 L_e_dir")
        A(f"s_lshl_b32 s82, {sC}, 10\nv_lshl_add_u32 v4, v0, 4, s82\nds_write_b128 v4, {vr(O)} offset:{L_MO}")
        A(f"s_lshl_b32 s82, {sC}, 9\nv_lshl_add_u32 v4, v0, 3, s82\nv_mov_b32 v22, v{VmL}\nv_mov_b32 v23, v{Vl}\nds_write_b64 v4, v[22:23] offset:{L_MML}")
        A(f"v_mov_b32 v1, 1\ns_mov_b64 exec, 1\nds_add_u32 v{VZ}, v1 offset:{L_QFLAG+4}\ns_mov_b64 exec, -1")
        if P["wo"] == "exit": wo_loads()
        A(f"L_e_wait:\nds_read_b32 v1, v{VZ} offset:{L_QFLAG+12}\ns_waitcnt lgkmcnt(0)\nv_cmp_ne_u32 vcc, 0, v1\ns_cbranch_vccnz L_e_l1p")
        spin("L_e_wait")
        A("L_e_re:")
        merge_reads()
        A(f"L_e_dir:\ns_waitcnt lgkmcnt(3)\nv_cmp_ne_u32 vcc, 3, v{MRG+18}\nv_max3_f32 v22, v{MRG+12}, v{MRG+14}, v{MRG+16}\ns_cbranch_vccz L_e_go")
        spin("L_e_re")
        A(f"L_e_go:\nv_max_f32 v22, v22, v{VmL}")
        stamp(2, 7)
        A(f"v_sub_f32 v{VmL}, v{VmL}, v22")
        for c in range(3): A(f"v_sub_f32 v{MRG+12+2*c}, v{MRG+12+2*c}, v22")
        A(f"v_exp_f32 v{VmL}, v{VmL}")
        for c in range(3): A(f"v_exp_f32 v{MRG+12+2*c}, v{MRG+12+2*c}")
        for i in range(4): A(f"v_mul_f32 v{O+i}, v{VmL}, v{O+i}")
        A("s_waitcnt lgkmcnt(0)")
        for c in range(3):
            for i in range(4): A(f"v_fmac_f32 v{O+i}, v{MRG+12+2*c}, v{MRG+4*c+i}")
        for i in range(4): tagput(O + i)
        A(f"buffer_store_dwordx4 {vr(O)}, v{MA+6}, {rWS}, s58 offen {P['hs']}")
        A(f"v_mul_f32 v23, v{VmL}, v{Vl}")
        for c in range(3): A(f"v_fmac_f32 v23, v{MRG+12+2*c}, v{MRG+13+2*c}")
        tagput(22); tagput(23)
        A("s_mov_b32 exec_lo, 0x01010101\ns_mov_b32 exec_hi, 0x01010101")
        A(f"buffer_store_dwordx2 v[22:23], v{MA+7}, {rWS}, s59 offen {P['hs']}\ns_mov_b64 exec, -1")
        stamp(6, 7)
        A(f"v_mov_b32 v1, 1\nds_write_b32 v{VZ}, v1 offset:{L_QFLAG+12}")
        if P["wo"] == "exit": wo_loads()
        A("L_e_l1p:\ns_mov_b32 s76, s56\ns_mov_b32 s77, s57\nv_lshlrev_b32 v6, 2, v0")
    else:
        if P["wo"] == "exit": wo_loads()
        for op in ("v_permlane16_swap_b32", "v_permlane32_swap_b32"):
            A(f"v_mov_b32 v23, v{Vl}\ns_nop 1\n{op} v23, v{Vl}\nv_add_f32 v{Vl}, v{Vl}, v23")
        A(f"s_lshl_b32 s82, {sC}, 10\nv_lshlrev_b32 v5, 4, v0\nv_add_u32 v4, s82, v5\nds_write_b128 v4, {vr(O)} offset:{L_MO}")
        A(f"s_lshl_b32 s82, {sC}, 9\nv_lshlrev_b32 v6, 3, v0\nv_add_u32 v4, s82, v6\nv_mov_b32 v22, v{VmL}\nv_mov_b32 v23, v{Vl}\nds_write_b64 v4, v[22:23] offset:{L_MML}")
        A(f"v_mov_b32 v1, 1\ns_mov_b64 exec, 1\nds_add_rtn_u32 v1, v{VZ}, v1 offset:{L_QFLAG+4}\ns_mov_b64 exec, -1")
        for c in range(4): A(f"ds_read_b64 v[{K+2*c}:{K+2*c+1}], v6 offset:{L_MML + 512*c}")
        for c in range(4): A(f"ds_read_b128 {vr(V+4*c)}, v5 offset:{L_MO + 1024*c}")
        A(f"s_lshl_b32 s76, {sH}, 14\ns_add_u32 s76, s76, {WS_P}\ns_lshl_b32 s83, {sI}, 8\ns_add_u32 s82, s76, s83")
        A(f"s_lshl_b32 s83, {sC}, 12\ns_add_u32 s76, s76, s83")
        A(f"s_lshl_b32 s77, {sH}, 12\ns_add_u32 s77, s77, {WS_ML}\ns_lshl_b32 s83, {sI}, 6\ns_add_u32 s83, s83, s77")
        A(f"s_lshl_b32 s78, {sC}, 10\ns_add_u32 s77, s77, s78")
        A("v_and_b32 v4, 0xf0, v5\nv_lshrrev_b32 v5, 4, v0\nv_lshl_add_u32 v4, v5, 12, v4\nv_and_b32 v6, 8, v0\nv_lshl_add_u32 v2, v5, 10, v6\nv_lshlrev_b32 v6, 2, v0")
        A("s_waitcnt lgkmcnt(8)\nv_readfirstlane_b32 s78, v1\ns_cmp_lg_u32 s78, 3\ns_cbranch_scc1 L_e_wait")
        stamp(2, 7)
        A(f"s_waitcnt lgkmcnt(4)\nv_max3_f32 v22, v{K}, v{K+2}, v{K+4}\nv_max_f32 v22, v22, v{K+6}")
        for c in range(4): A(f"v_sub_f32 v{K+2*c}, v{K+2*c}, v22")
        for c in range(4): A(f"v_exp_f32 v{K+2*c}, v{K+2*c}")
        A(f"s_waitcnt lgkmcnt(3)")
        for i in range(4): A(f"v_mul_f32 v{O+i}, v{K}, v{V+i}")
        for c in range(1, 4):
            A(f"s_waitcnt lgkmcnt({3-c})")
            for i in range(4): A(f"v_fmac_f32 v{O+i}, v{K+2*c}, v{V+4*c+i}")
        for i in range(4): tagput(O + i)
        A(f"buffer_store_dwordx4 {vr(O)}, v4, {rWS}, s82 offen {P['hs']}")
        A(f"v_mul_f32 v23, v{K}, v{K+1}")
        for c in range(1, 4): A(f"v_fmac_f32 v23, v{K+2*c}, v{K+2*c+1}")
        tagput(22); tagput(23)
        A("s_mov_b32 exec_lo, 0x01010101\ns_mov_b32 exec_hi, 0x01010101")
        A(f"buffer_store_dwordx2 v[22:23], v2, {rWS}, s83 offen {P['hs']}\ns_mov_b64 exec, -1")
        stamp(6, 7)
        if P["gate"]:
            A(f"v_mov_b32 v1, 1\nds_write_b32 v{VZ}, v1 offset:{L_QFLAG+12}\ns_branch L_e_l1")
            A(f"L_e_wait:\nds_read_b32 v1, v{VZ} offset:{L_QFLAG+12}\ns_waitcnt lgkmcnt(0)\nv_cmp_ne_u32 vcc, 0, v1\ns_cbranch_vccnz L_e_l1")
            spin("L_e_wait")
        else:
            A("L_e_wait:")
    A("L_e_l1:\ns_waitcnt lgkmcnt(0)")
    stamp(6); stamp(6, 5)
    A(f"s_sub_u32 s78, {sI}, 1\ns_cmp_gt_u32 s78, 8\ns_cbranch_scc1 L_e_done")
    A("v_and_b32 v4, 15, v0\nv_lshlrev_b32 v4, 6, v4\nv_lshrrev_b32 v5, 5, v0\nv_lshl_add_u32 v4, v5, 3, v4")
    if P["solo"]:
        A(f"s_cmp_eq_u32 {sI}, 1\ns_cbranch_scc1 L_solo\ns_sleep 127\nL_solo:")
    acc = (S, S + 1, S + 2, S + 3)
    def l1_issue(b, ml):
        A(f"buffer_load_dwordx2 {vr(ml, 2)}, v4, {rWS}, s77 offen {P['hl']}")
        for p in range(16): A(f"buffer_load_dword v{b+p}, v6, {rWS}, s76 offen offset:{256*p} {P['hl']}")
    def l1_check(b, ml, behind):
        A(f"s_waitcnt vmcnt({behind+16})\nv_mov_b32 v7, v{ml}")
        tagchk(1, (ml, ml + 1), True)
        if P["early"]: A("v_and_b32 v2, 0xff, v1\nv_cmp_ne_u32 vcc, 0, v2\ns_cbranch_vccnz L_l1_again")
        for i, r in enumerate((8, 4, 2, 1)):
            A(f"v_mov_b32 v{acc[i]}, 0" + ("" if i == 0 else "\ns_nop 0"))
            A(f"v_max_f32_dpp v7, v7, v7 row_ror:{r} row_mask:0xf bank_mask:0xf")
        A(f"v_sub_f32 v22, v{ml}, v7\nv_exp_f32 v22, v22\ns_nop 0\nv_mul_f32 v23, v22, v{ml+1}")
        for p in range(0, 16, 2):
            A(f"s_waitcnt vmcnt({behind+14-p})")
            tagchk(1, (b + p, b + p + 1))
            if p < 8: A(f"v_add_f32_dpp v23, v23, v23 row_ror:{8 >> (p // 2)} row_mask:0xf bank_mask:0xf")
            if p == 8: A("v_rcp_f32 v23, v23")
            for x in (p, p + 1): A(f"v_fmac_f32_dpp v{acc[x&3]}, v22, v{b+x} row_newbcast:{x} row_mask:0xf bank_mask:0xf")
        tagtest(1)
        A(f"v_add_f32 v2, v{S}, v{S+1}\nv_add_f32 v3, v{S+2}, v{S+3}\ns_cbranch_vccz L_l1_ok")
    if P["l1pipe"]:
        l1_issue(RG, RG + 32)
        A(f"s_sleep {P['l1pipe']}\nL_l1_poll:")
        l1_issue(RG + 16, RG + 34); l1_check(RG, RG + 32, 17); l1_issue(RG, RG + 32); l1_check(RG + 16, RG + 34, 17)
    else:
        A("L_l1_poll:")
        l1_issue(RG, RG + 32); l1_check(RG, RG + 32, 0)
    A("L_l1_again:")
    if P["psleep"]: A(f"s_sleep {P['psleep']}")
    spin("L_l1_poll")
    A("L_l1_ok:")
    stamp(3, 5)
    A("v_add_f32 v1, v2, v3\nv_mul_f32 v1, v1, v23\nv_cvt_pk_bf16_f32 v1, v1, v1\ns_nop 1")
    for t in range(8): A(f"v_mov_b32_dpp v{V+t}, v1 row_newbcast:{t} row_mask:0xf bank_mask:0x3")
    for t in range(8): A(f"v_mov_b32_dpp v{V+t}, v1 row_newbcast:{8+t} row_mask:0xf bank_mask:0xc")
    for t in range(8):
        for v in range(4): A(f"v_and_b32 v{B+4*(t&3)+v}, v{V+t}, v{M+v}")
        if t > 0: mfma(S, WO + 4 * (t - 1), B + 4 * ((t - 1) & 3), "0" if t == 1 else None)
    A("s_nop 0")
    mfma(S, WO + 28, B + 12)
    stamp(5, 5)
    A(f"s_lshl_b32 s82, {sC}, 9\nv_lshrrev_b32 v4, 5, v0\nv_lshl_add_u32 v4, v4, 8, v{VPL}\nv_add_u32 v4, s82, v4\nv_mov_b32 v1, 1")
    exec_valid()
    A(f"s_lshl_b32 s82, s78, 12\ns_lshl_b32 s83, {sH}, 8\ns_add_u32 s82, s82, s83\ns_add_u32 s82, s82, {WS_Y}")
    A(f"ds_write_b128 v4, {vr(S)} offset:{L_Y}\ns_mov_b64 exec, 1")
    A(f"ds_add_rtn_u32 v1, v{VZ}, v1 offset:{L_QFLAG+8}\ns_mov_b64 exec, -1")
    for i in range(8): A(f"ds_read_b32 v{K+i}, v6 offset:{L_Y + 256*i}")
    A("s_waitcnt lgkmcnt(8)\nv_readfirstlane_b32 s78, v1\ns_cmp_lg_u32 s78, 3\ns_cbranch_scc1 L_e_done")
    A(f"s_waitcnt lgkmcnt(4)\nv_add_f32 v{K}, v{K}, v{K+1}\nv_add_f32 v{K+2}, v{K+2}, v{K+3}")
    A(f"s_waitcnt lgkmcnt(0)\nv_add_f32 v{K+4}, v{K+4}, v{K+5}\nv_add_f32 v{K+6}, v{K+6}, v{K+7}")
    A(f"v_add_f32 v{K}, v{K}, v{K+2}\nv_add_f32 v{K+4}, v{K+4}, v{K+6}\nv_add_f32 v22, v{K}, v{K+4}")
    tagput(22)
    A(f"buffer_store_dword v22, v6, {rWS}, s82 offen {P['hs']}")
    A("L_e_done:")
    stamp(7); stamp(7, 5)
    dump_stamps()
    A("L_end:\ns_endpgm")

    A("L_ffn:")
    ACC, DG, DU = 28, 64, 68
    FS = RING0 + 24576
    for i in range(36): A(f"v_mov_b32 v{ACC+i}, 0")
    A(f"s_and_b32 s73, {sH}, 1\ns_lshr_b32 s74, {sC}, 2\ns_and_b32 s74, s74, s73\ns_cbranch_scc1 L_ffn_out")
    A(f"s_mul_i32 s73, s73, 5\ns_lshr_b32 s74, {sH}, 1\ns_mul_i32 s74, s74, 9\ns_add_u32 s73, s73, s74\ns_add_u32 s73, s73, {sC}")
    srd(rWG, 16, 576 * 9216); srd(rWU, 18, 576 * 9216); srd(rWD, 20, 4608 * 1152)
    A("v_lshrrev_b32 v4, 3, v0\nv_and_b32 v5, 7, v0\nv_lshlrev_b32 v5, 4, v5")
    A("v_mul_u32_u24 v2, 0x2400, v4\nv_add_u32 v2, v2, v5\nv_mul_u32_u24 v3, 0x480, v4\nv_add_u32 v3, v3, v5")
    for i in range(8): A(f"v_mov_b32 v{DG+i}, 0")
    A("s_lshl_b32 s74, s73, 7")
    assert FW % 2 == 0
    def gu_load(n):
        A(f"buffer_load_dwordx4 {vr(RG+4*(n%16))}, v2, {rWU if n & 1 else rWG}, s74 offen {wpol}")
        if n & 1: A(f"s_add_u32 s74, s74, {8*9216}")
    for n in range(FW): gu_load(n)
    A("s_mov_b32 s75, 0\nL_ffn_gu:")
    for t in range(8):
        bbuild(X, t, B + 4 * (t & 1))
        for m in range(2):
            n = 2 * t + m
            A(f"s_waitcnt vmcnt({FW-1})")
            gu_load(n + FW)
            mfma(DU if m else DG, RG + 4 * n, B + 4 * (t & 1))
    for k in range(8): A(f"v_mov_b32 v{X+k}, v{X+k+1}")
    A("s_add_u32 s75, s75, 1\ns_cmp_lt_u32 s75, 9\ns_cbranch_scc1 L_ffn_gu")
    A(f"s_mul_i32 s74, s73, {64*1152}")
    def wd_load(n):
        t, ct = divmod(n, 9)
        A(f"buffer_load_dwordx4 {vr(RG+4*(n%16))}, v3, {rWD}, s74 offen offset:{ct*128} {wpol}")
        if ct == 8: A(f"s_add_u32 s74, s74, {8*1152}")
    A("s_waitcnt vmcnt(0)")
    for n in range(FW): wd_load(n)
    A(f"s_lshl_b32 s75, {sC}, 10\ns_add_u32 s75, s75, {FS + 32768}")
    A(f"v_lshrrev_b32 v4, 5, v0\nv_lshl_add_u32 v4, v4, 8, v{VPL}\nv_add_u32 v4, s75, v4")
    exec_valid()
    A(f"ds_write_b128 v4, {vr(DG)}\nds_write_b128 v4, {vr(DU)} offset:512\ns_mov_b64 exec, -1")
    A("v_bfe_u32 v4, v0, 2, 1\nv_lshrrev_b32 v5, 3, v0\nv_lshl_add_u32 v4, v4, 3, v5\nv_and_b32 v5, 3, v0\nv_lshl_add_u32 v4, v4, 2, v5")
    A("v_lshlrev_b32 v4, 2, v4\nv_add_u32 v4, s75, v4\ns_waitcnt lgkmcnt(0)")
    A("ds_read_b32 v64, v4\nds_read_b32 v65, v4 offset:256\nds_read_b32 v66, v4 offset:512\nds_read_b32 v67, v4 offset:768")
    A("s_waitcnt lgkmcnt(0)\nv_add_f32 v64, v64, v65\nv_add_f32 v66, v66, v67")
    rbf(64, 64); rbf(66, 66)
    A(f"v_mul_f32 v64, {hex(LOG2E ^ 0x80000000)}, v64\nv_exp_f32 v64, v64\ns_nop 0\nv_add_f32 v64, 1.0, v64\nv_rcp_f32 v64, v64\ns_nop 0")
    rbf(64, 64)
    A(f"v_mul_f32 v64, v64, v66\nv_cvt_pk_bf16_f32 v{X}, v64, v64\ns_nop 1")
    for n in range(72):
        t, ct = divmod(n, 9)
        if ct == 0: bbuild(X, t, B + 4 * (t & 1))
        A(f"s_waitcnt vmcnt({min(FW-1, 71-n)})")
        if n + FW < 72: wd_load(n + FW)
        else: A("s_nop 0")
        mfma(ACC + 4 * ct, RG + 4 * (n % 16), B + 4 * (t & 1))
    A("L_ffn_out:")
    A(f"s_mul_i32 s75, {sC}, 4608\ns_add_u32 s75, s75, {FS}")
    A(f"v_lshrrev_b32 v4, 5, v0\nv_mul_u32_u24 v4, 0x900, v4\nv_add3_u32 v4, v4, v{VPL}, s75\ns_nop 4")
    exec_valid()
    for ct in range(9): A(f"ds_write_b128 v4, {vr(ACC+4*ct)} offset:{ct*256}")
    A("s_mov_b64 exec, -1\ns_waitcnt lgkmcnt(0)\ns_barrier")
    A(f"s_cmp_gt_u32 {sC}, 2\ns_cbranch_scc1 L_ffn_done")
    A(f"s_lshl_b32 s75, {sC}, 6\nv_add_u32 v4, s75, v0\nv_cmp_gt_u32 vcc, 0x90, v4\ns_and_saveexec_b64 s[82:83], vcc")
    A(f"v_lshlrev_b32 v5, 4, v4\nv_add_u32 v5, {FS}, v5")
    for s_ in range(10): A(f"ds_read_b128 {vr(ACC+4*s_)}, v5 offset:{s_*2304}")
    A(f"v_lshrrev_b32 v5, 4, v4\nv_and_b32 v4, 15, v4\nv_lshlrev_b32 v4, 4, v4\nv_lshl_add_u32 v4, v5, 12, v4")
    A(f"s_lshl_b32 s75, {sH}, 8\ns_add_u32 s75, s75, {WS_F}\ns_waitcnt lgkmcnt(0)")
    tagprep()
    for s_ in range(1, 10):
        for i in range(4): A(f"v_add_f32 v{ACC+i}, v{ACC+i}, v{ACC+4*s_+i}")
    for i in range(4): tagput(ACC + i)
    A(f"buffer_store_dwordx4 {vr(ACC)}, v4, {rWS}, s75 offen sc1")
    A("s_mov_b64 exec, -1")
    A("L_ffn_done:")
    A("s_barrier")
    stamp(3)
    A(f"s_cmp_eq_u32 {sW}, 5\ns_cbranch_scc1 L_qgather\ns_branch L_cons_main")

    A("L_code_end:")
    errs = hazard.check(L)
    if errs:
        print("\n".join(errs)); raise SystemExit("hazards found")
    lds = RING0 + NS * 8192
    body = "\n".join(x if x.endswith(":") else "    " + x for x in L)
    head = HEADER.replace("@LAUNCH@", f"; @launch grid=(256,1,1) block=({64*NW},1,1) lds={lds}")
    tail = f"""
.section .rodata,"a"
.p2align 6
.amdhsa_kernel {NAME}_kernel
  .amdhsa_next_free_vgpr 228
  .amdhsa_next_free_sgpr 102
  .amdhsa_accum_offset 228
  .amdhsa_group_segment_fixed_size 0
  .amdhsa_kernarg_size 96
  .amdhsa_user_sgpr_count 2
  .amdhsa_user_sgpr_kernarg_segment_ptr 1
  .amdhsa_system_sgpr_workgroup_id_x 1
  .amdhsa_float_denorm_mode_32 3
.end_amdhsa_kernel
"""
    return head + body + tail, lds

if __name__ == "__main__":
    out = sys.argv[1]
    kw = eval("dict(" + (sys.argv[2] if len(sys.argv) > 2 else "") + ")")
    txt, lds = build(**kw)
    open(out, "w").write(txt)
    import subprocess
    r = subprocess.run([sys.executable, "cdna_unwritten_srd_check.py", out], capture_output=True, text=True)
    print(r.stdout.strip()[:1500])
```

```python
import sys, os
sys.path.insert(0, os.path.dirname(os.path.abspath(__file__)))
import hazard

NAME = "recurrent_scan__gqa_block_cached__glu_gated_glu__decode"
HEADER = open(os.path.join(os.path.dirname(os.path.abspath(__file__)), "header.txt")).read()

WS_QP, WS_P, WS_ML, WS_Y, WS_CNT, WS_EPOCH, WS_F, WS_DIAG = 0x0, 0x20000, 0x60000, 0x70000, 0x7a000, 0x7c000, 0x80000, 0x100000
L_FULL, L_DONE, L_QFLAG, L_QUE, L_Q, L_GU, L_SC, L_MO, L_MML, L_Y, RING0 = 0, 512, 528, 640, 1024, 1536, 2560, 2560, 6656, 8704, 18944
LOG2E = 0x3FB8AA3B
SCALE = 0x3DB504F3
VALID = "0xff00ff00", "0x00ff00ff"
NW = 6

DEF = dict(F=21, Fd=24, NSL=34, FW=6, pol="nt", wpol="nt", diag=False, spin=0x200000, AH=5, AHA=8, qdelay=14,
           segs=((8, 12), (8, 6)), own=(10, 11, 14, 15), pcs=(12, 13), R=248, X=20, Fh=None, rot=4, pre=True, cpf=True)

def build(**kw):
    P = dict(DEF); P.update(kw)
    F, Fd, NSL, FW, pol, wpol, diag = P["F"], P["Fd"], P["NSL"], P["FW"], P["pol"], P["wpol"], P["diag"]
    P.update(hl="sc1", hs="sc1", apol="sc0")
    L = []
    def A(s):
        for x in s.strip("\n").split("\n"):
            L.append(x.strip())
    sW, sH, sI, sC, sT, sK, sS = "s28", "s29", "s30", "s31", "s100", "s14", "s15"
    rK, rV, rWS, rX, rWQ, rWO, rWG, rWU, rWD, rOUT = ("s[32:35]", "s[36:39]", "s[40:43]", "s[44:47]", "s[48:51]",
                                                    "s[52:55]", "s[56:59]", "s[60:63]", "s[64:67]", "s[68:71]")
    def srd(r, ptr, n):
        b = int(r[2:r.index(":")])
        A(f"s_mov_b64 s[{b}:{b+1}], s[{ptr}:{ptr+1}]\ns_mov_b32 s{b+2}, {n}\ns_mov_b32 s{b+3}, 0x20000")
    def vr(b, n=4): return f"v[{b}:{b+n-1}]"
    M, KA, VA, VZ, Vm, VmL, Vl, VDA = 8, 12, 16, 17, 18, 19, 20, 21
    O, Q, K, V, S, PP, B, AD, WO, X, XR, RG, DQ = 24, 28, 44, 60, 76, 80, 84, 100, 108, 140, 149, 152, 224
    VPL = 105
    def stamp(k, set_=1):
        if diag and (diag == set_ or (k in (0, 1, 2, 4) and set_ == 1)) and not (diag == 3 and k == 4):
            A(f"s_memrealtime s[{84+2*k}:{85+2*k}]\ns_waitcnt lgkmcnt(0)")
    def dump_stamps():
        if diag:
            A(f"s_mul_i32 s76, s2, {NW}\ns_add_u32 s76, s76, {sW}\ns_lshl_b32 s76, s76, 5\ns_add_u32 s76, s76, {WS_DIAG}")
            A("s_mov_b64 exec, 1\nv_mov_b32 v1, s76")
            for k in range(8):
                A(f"v_mov_b32 v2, s{84+2*k}\nglobal_store_dword v1, v2, s[26:27] offset:{4*k}")
            A("s_mov_b64 exec, -1")
    npf = [0]
    def code_prefetch(r):
        npf[0] += 1
        A(f"s_getpc_b64 s[64:65]\nL_pc{npf[0]}:\ns_sub_u32 s64, s64, L_pc{npf[0]}-{NAME}_kernel\ns_subb_u32 s65, s65, 0")
        A(f"v_lshlrev_b32 v{r}, 7, v0\nv_add_u32 v{r+1}, 0x2000, v{r}\nv_min_u32 v{r+1}, L_code_end-{NAME}_kernel-4, v{r+1}")
        A(f"global_load_dword v{r+2}, v{r}, s[64:65]\nglobal_load_dword v{r+3}, v{r+1}, s[64:65]")
    def spin(lbl):
        A(f"s_sub_u32 s3, s3, 1\ns_cbranch_scc0 {lbl}\ns_endpgm")
    def wave_sum(v, t):
        for r in (8, 4, 2, 1):
            A(f"s_nop 1\nv_add_f32_dpp v{v}, v{v}, v{v} row_ror:{r} row_mask:0xf bank_mask:0xf")
        for op in ("v_permlane16_swap_b32", "v_permlane32_swap_b32"):
            A(f"v_mov_b32 v{t}, v{v}\ns_nop 1\n{op} v{t}, v{v}\nv_add_f32 v{v}, v{v}, v{t}")
    def rbf(d, s):
        A(f"v_cvt_pk_bf16_f32 v{d}, 0, v{s}")
    def bbuild(src, t, b):
        A(f"v_mov_b32_dpp v7, v{src} row_newbcast:{t} row_mask:0xf bank_mask:0x3\ns_nop 1")
        A(f"v_mov_b32_dpp v7, v{src} row_newbcast:{8+t} row_mask:0xf bank_mask:0xc")
        for v in range(4):
            A(f"v_and_b32 v{b+v}, v7, v{M+v}")
    def mfma(d, a, b, c=None):
        A(f"v_mfma_f32_16x16x32_bf16 {vr(d)}, {vr(a)}, {vr(b)}, {vr(d) if c is None else c}")
    def exec_valid():
        A(f"s_mov_b32 exec_lo, {VALID[1]}\ns_mov_b32 exec_hi, {VALID[0]}")
    VT, VFF = 107, 103
    def tagchk(acc, regs, first=False):
        regs = list(regs)
        if first:
            A(f"v_bitop3_b32 v{acc}, v{regs[0]}, v{regs[1]}, v{VT} bitop3:0x7e"); regs = regs[2:]
        for r in regs: A(f"v_bitop3_b32 v{acc}, v{acc}, v{r}, v{VT} bitop3:0xf6")
    def tagtest(acc, dst="vcc"):
        A(f"v_and_b32 v{acc}, 0xff, v{acc}\nv_cmp_ne_u32 {dst}, 0, v{acc}")
    def tagput(r):
        A(f"v_perm_b32 v{r}, v{r}, v{VT}, s101")
    def tagprep():
        A(f"s_add_u32 s82, {sT}, 0x9e3779b9\nv_mov_b32 v{VT}, s82\ns_mov_b32 s101, 0x07060500")

    A(f"{NAME}_kernel:")
    if diag == 6: A("s_memrealtime s[90:91]")
    A("s_cmp_ge_u32 s2, 256\ns_cbranch_scc1 L_end")
    A("s_load_dwordx8 s[4:11], s[0:1], 0\ns_load_dwordx2 s[12:13], s[0:1], 32\ns_load_dwordx4 s[16:19], s[0:1], 48\ns_load_dwordx8 s[20:27], s[0:1], 64")
    if diag and diag != 6:
        for k in range(8): A(f"s_mov_b32 s{84+2*k}, 0")
    A("v_lshrrev_b32 v1, 6, v0\nv_and_b32 v0, 63, v0")
    A(f"v_readfirstlane_b32 {sW}, v1")
    A(f"s_lshr_b32 {sH}, s2, 4\ns_and_b32 {sI}, s2, 15")
    A(f"s_mul_i32 {sK}, {sH}, 3\ns_add_u32 {sK}, {sK}, {sI}\ns_and_b32 {sK}, {sK}, 15")
    A(f"s_movk_i32 {sS}, {P['R']}\ns_cmp_ge_u32 {sK}, 11\ns_cselect_b32 {sS}, {P['R'] - P['X']}, {sS}")
    A(f"v_mov_b32 v{VZ}, 0\ns_mov_b32 s3, {P['spin']}")
    A(f"s_sub_u32 {sC}, {sW}, 1")
    A(f"s_cmp_lg_u32 {sW}, 0\ns_cbranch_scc1 L_other")
    own, pb, SN = P["own"], P["pcs"], P["R"]
    rest = [b for b in range(10, 24) if b not in own and b not in pb]
    RM = sum(1 << b for b in rest)
    dep = lambda v, bs: sum(((v >> i) & 1) << b for i, b in enumerate(bs))
    piece = sorted(dep(k, pb) for k in range(4))
    XD = P["X"]
    assert SN % 4 == 0 and XD % 4 == 0 and NSL % 2 == 0 and L_SC + 64 * SN <= RING0 and list(own) == sorted(own)
    dt = (3 + max(F, Fd, P['Fh'] or 0)) // 4
    RINGE = RING0 + NSL * 4096
    def sdep(dst, src, bs, tmp):
        i = 0; first = True
        while i < len(bs):
            k = i
            while k + 1 < len(bs) and bs[k + 1] == bs[k] + 1: k += 1
            A(f"s_and_b32 {tmp}, {src}, {((1 << (k - i + 1)) - 1) << i}\ns_lshl_b32 {dst if first else tmp}, {tmp}, {bs[i] - i}")
            if not first: A(f"s_or_b32 {dst}, {dst}, {tmp}")
            first = False; i = k + 1
    assert rest == sorted(rest)
    OM = sum(1 << b for b in own[:P["rot"]])
    def count_in(r, mask):
        A(f"s_or_b32 {r}, {r}, {~mask & 0xffffffff}\ns_add_u32 {r}, {r}, 1\ns_and_b32 {r}, {r}, {mask}")
    LV, LG, rC = 20, 28, "s[44:47]"
    A("s_setprio 3")
    A(f"v_lshrrev_b32 v1, 4, v0\nv_xor_b32 v4, v1, v0\nv_and_b32 v4, 15, v4\nv_lshl_add_u32 v4, v1, 4, v4\nv_lshlrev_b32 v{LG}, 4, v4")
    for j in range(1, 4): A(f"v_xor_b32 v{LG+j}, {64*j + piece[j] - 1024*j}, v{LG}")
    A(f"v_lshlrev_b32 v6, 3, v0\nv_mov_b32 v24, {-dt}\nv_bfrev_b32 v25, -2")
    A(f"ds_write_b64 v6, v[24:25] offset:{L_FULL}")
    A(f"v_lshlrev_b32 v1, 2, v0\nds_write_b32 v1, v{VZ} offset:{L_DONE}")
    A(f"ds_read_b128 v[8:11], v{VZ} offset:{L_DONE}")
    sdep("s72", sI, own, "s82")
    A(f"s_lshl_b32 s69, {sH}, 24\ns_or_b32 s72, s72, s69\ns_mov_b32 s76, 0\ns_mov_b32 s77, 0\ns_mov_b32 s70, 0")
    A(f"s_mov_b32 s79, 0\ns_mov_b32 s80, {RING0}\ns_mov_b32 s81, {2 - NSL}")
    A("s_waitcnt lgkmcnt(0)")
    srd(rC, 6, 0x10000000)
    stamp(0)
    def pair(f, lanes, srds, offs, bar=None):
        jp = min(j for j in range(4) if j - f >= 3 - 4 * dt)
        for j in range(8):
            if j == 4: A("s_add_u32 m0, s80, 0x1000")
            if bar is not None and j == min(f - 16, 7): A(f"s_cmp_eq_u32 s81, {6 - NSL}\ns_cbranch_scc1 L_ld_bar{bar}\nL_ld_barx{bar}:")
            A(f"s_waitcnt vmcnt({f-1})")
            A(f"buffer_load_dwordx4 v{lanes[j>>2]+(j&3)}, {srds[j>>2]}, {offs[j>>2]} offen offset:{(j&3)*1024} {pol} lds")
            if j & 3 == jp: A(f"v_add_u32 v24, 1, v24\nds_write_b64 v6, v[24:25] offset:{L_FULL}")
        A(f"s_add_u32 s80, s80, 0x2000\ns_cmp_eq_u32 s80, {RINGE}\ns_cselect_b32 s80, {RING0}, s80\ns_add_u32 s81, s81, 2")
    def static_loop(sfx, f):
        A(f"L_ld_loop{sfx}:")
        A("s_waitcnt lgkmcnt(0)\nv_min3_u32 v4, v8, v9, v10\nv_min_u32 v4, v4, v11")
        A("s_mov_b32 m0, s80\nv_readfirstlane_b32 s82, v4")
        A(f"ds_read_b128 v[8:11], v{VZ} offset:{L_DONE}")
        A(f"s_cmp_lt_i32 s82, s81\ns_cbranch_scc1 L_ld_full{sfx}")
        for r in ("s75", "s74"):
            A(f"s_or_b32 {r}, s76, s72")
            count_in("s76", RM)
            if OM:
                A(f"s_xor_b32 {r}, {r}, s77")
                count_in("s77", OM)
        pair(f, (LG, LG), (rC, rC), ("s75", "s74"), sfx)
        A(f"s_add_u32 s79, s79, 2\ns_cmp_lt_u32 s79, {sS}\ns_cbranch_scc1 L_ld_loop{sfx}")
    if P["Fh"]:
        A(f"s_cmp_lt_u32 {sK}, 11\ns_cbranch_scc1 L_ld_loop")
        static_loop("h", P["Fh"])
        A("s_branch L_ld_pass2")
    static_loop("", F)
    A("s_cmp_lg_u32 s70, 0\ns_cbranch_scc1 L_ld_send\nL_ld_pass2:")
    stamp(4, 8)
    for j in range(4): A(f"v_mov_b32 v{KA+j}, v{LG+j}")
    A(f"v_lshlrev_b32 v{LG}, 4, v0")
    for j in range(1, 4): A(f"v_or_b32 v{LG+j}, {piece[j] - 1024*j}, v{LG}")
    srd(rK, 6, 0x10000000); srd(rC, 8, 0x10000000)
    A("s_mov_b32 s76, 0\ns_mov_b32 s77, 0\ns_mov_b32 s70, 1\ns_mov_b32 s79, 0\ns_branch L_ld_loop")
    A("L_ld_send:")
    def que_read(n):
        A(f"s_and_b32 s83, {n}, 31\ns_lshl_b32 s83, s83, 2\nv_mov_b32 v5, s83\nds_read_b32 v7, v5 offset:{L_QUE}")
    stamp(3)
    A("L_ld_dre:")
    que_read("s79")
    A("L_ld_dyn:")
    A("s_waitcnt lgkmcnt(0)\nv_min3_u32 v4, v8, v9, v10\nv_min_u32 v4, v4, v11\nv_readfirstlane_b32 s73, v7")
    A("s_mov_b32 m0, s80\nv_readfirstlane_b32 s82, v4")
    A(f"ds_read_b128 v[8:11], v{VZ} offset:{L_DONE}")
    A("s_add_u32 s74, s79, 1\ns_lshr_b32 s75, s73, 16\ns_cmp_lg_u32 s75, s74\ns_cbranch_scc1 L_ld_dfull")
    A("s_cmp_lt_i32 s82, s81\ns_cbranch_scc1 L_ld_dfull")
    A("s_and_b32 s73, s73, 0xffff\ns_cmp_ge_u32 s73, 0x4000\ns_cbranch_scc1 L_ld_drain")
    A("s_lshl_b32 s75, s73, 10\ns_or_b32 s75, s75, s69\ns_mov_b32 s79, s74")
    que_read("s79")
    pair(Fd, (KA, LG), (rK, rC), ("s75", "s75"))
    A("s_branch L_ld_dyn")
    A("L_ld_drain:")
    stamp(1)
    A("s_lshl_b32 s82, s79, 1\nv_mov_b32 v25, s82")
    for r in range(dt - 1, -1, -1):
        A(f"s_waitcnt vmcnt({4*r})\nv_add_u32 v24, 1, v24\nds_write_b64 v6, v[24:25] offset:{L_FULL}")
    stamp(2)
    if diag and diag != 6: A(f"s_mov_b32 s94, s79\ns_sub_u32 s96, {P['spin']}, s3")
    dump_stamps()
    A("s_endpgm")
    for sfx in ("", "h") if P["Fh"] else ("",):
        A(f"L_ld_full{sfx}:")
        spin(f"L_ld_loop{sfx}")
        A(f"L_ld_bar{sfx}:\ns_waitcnt lgkmcnt(0)\ns_barrier\ns_branch L_ld_barx{sfx}")
    A("L_ld_dfull:")
    spin("L_ld_dre")

    A("L_other:")
    if P["cpf"]:
        A(f"s_cmp_lg_u32 {sW}, 4\ns_cbranch_scc1 L_nopf")
        code_prefetch(220)
        A("L_nopf:")
    A("s_waitcnt lgkmcnt(0)")
    srd(rX, 4, 1152); srd(rWS, 26, 0x400000 if diag else 0x100000)
    A(f"s_load_dword {sT}, s[26:27], {WS_EPOCH}")
    stamp(0)
    A(f"s_cmp_lg_u32 {sW}, 5\ns_cbranch_scc1 L_pre_done")
    A("v_and_b32 v1, 7, v0\nv_lshrrev_b32 v4, 3, v0\nv_lshl_add_u32 v5, v1, 3, v4\nv_lshlrev_b32 v5, 1, v5")
    for k in range(9): A(f"buffer_load_ushort v{X+k}, v5, {rX}, 0 offen offset:{128*k}")
    A(f"s_and_b32 s82, {sI}, 3\ns_mul_i32 s82, s82, 288")
    for k in range(3): A(f"buffer_load_ushort v{XR+k}, v5, {rX}, s82 offen offset:{128*k}")
    srd(rWQ, 10, 576 * 8192)
    A("v_lshlrev_b32 v5, 4, v1\nv_lshl_add_u32 v5, v4, 13, v5")
    A(f"s_lshl_b32 s82, s82, 12\ns_lshl_b32 s83, {sH}, 9\ns_add_u32 s82, s82, s83")
    A(f"s_lshr_b32 s83, {sI}, 2\ns_lshl_b32 s83, s83, 7\ns_add_u32 s82, s82, s83")
    for p in range(18):
        A(f"buffer_load_dwordx4 {vr(RG+4*p)}, v5, {rWQ}, s82 offen {wpol}")
        if p < 17: A("s_add_u32 s82, s82, 0x10000")
    A(f"s_cmp_lg_u32 {sI}, 0\ns_cbranch_scc1 L_pre_done\ns_mov_b64 exec, 1")
    A(f"s_lshl_b32 s82, {sH}, 8\ns_add_u32 s82, s82, {WS_CNT}\nbuffer_store_dword v{VZ}, v{VZ}, {rWS}, s82 offen sc1")
    A("s_mov_b64 exec, -1")
    VWO = 104 + 2
    def wo_prep():
        srd(rWO, 12, 4096 * 1152)
        A(f"s_sub_u32 s82, {sI}, 1\ns_cmp_gt_u32 s82, 8\ns_cselect_b32 s54, 0, s54")
        A("v_lshrrev_b32 v2, 5, v0\nv_lshlrev_b32 v2, 7, v2\nv_bfe_u32 v3, v0, 3, 2\nv_lshl_add_u32 v2, v3, 1, v2")
        A(f"v_mul_u32_u24 v2, 0x480, v2\nv_and_b32 v3, 7, v0\nv_lshl_add_u32 v{VWO}, v3, 4, v2")
        A(f"s_lshl_b32 s82, s82, 7\ns_lshl_b32 s83, {sH}, 3\ns_add_u32 s83, s83, {sC}\ns_mul_i32 s83, s83, {32*1152}\ns_add_u32 s48, s82, s83")
        for t in range(1, 4): A(f"s_add_u32 s{48+t}, s48, {8*t*1152}")
    def wo_loads():
        for t in range(8):
            A(f"buffer_load_dwordx4 {vr(WO+4*t)}, v{VWO}, {rWO}, s{48+(t&3)} offen offset:{(t>>2)*1152} {wpol}")
    A("L_pre_done:")
    A("s_barrier")
    A("v_and_b32 v1, 1, v0\nv_lshlrev_b32 v1, 4, v1\nv_mov_b32 v4, 0xffff\nv_lshlrev_b32 v4, v1, v4\nv_bfe_u32 v5, v0, 1, 2")
    for v in range(4):
        A(f"v_cmp_eq_u32 vcc, {v}, v5\ns_nop 1\nv_cndmask_b32 v{M+v}, 0, v4, vcc")
    A(f"v_bfe_u32 v4, v0, 4, 1\nv_and_b32 v5, 7, v0\nv_lshl_add_u32 v4, v4, 3, v5\nv_lshlrev_b32 v{VPL}, 4, v4")
    A(f"s_cmp_lg_u32 {sW}, 5\ns_cbranch_scc1 L_cons_main")
    stamp(3, 2)
    A("s_waitcnt vmcnt(21)")
    stamp(5, 2)
    for k in range(9): A(f"v_lshlrev_b32 v{X+k}, 16, v{X+k}")
    A(f"v_add_f32 v1, v{X}, v{X+1}")
    for k in range(2, 9): A(f"v_add_f32 v1, v1, v{X+k}")
    wave_sum(1, 2)
    A("s_mov_b32 s82, 0x3ae38e39\ns_mov_b32 s83, 0x44100000")
    def div576(v):
        A(f"v_mul_f32 v2, s82, v{v}\nv_fma_f32 v3, -v2, s83, v{v}\nv_fma_f32 v{v}, v3, s82, v2")
    div576(1)
    A(f"v_sub_f32 v2, v{X}, v1\nv_mul_f32 v4, v2, v2")
    for k in range(1, 9): A(f"v_sub_f32 v2, v{X+k}, v1\nv_fmac_f32 v4, v2, v2")
    wave_sum(4, 2)
    div576(4)
    rbf(1, 1); rbf(4, 4)
    A("v_add_f32 v4, 0x3727c5ac, v4"); rbf(4, 4)
    A("v_sqrt_f32 v5, v4\ns_nop 0\nv_rcp_f32 v6, v5\nv_fma_f32 v3, -v5, v5, v4\nv_mul_f32 v6, 0.5, v6\nv_fma_f32 v5, v3, v6, v5")
    rbf(5, 5)
    A("v_rcp_f32 v6, v5")
    def norm(r):
        A(f"v_sub_f32 v2, v{r}, v1"); rbf(2, 2)
        A(f"v_mul_f32 v3, v2, v6\nv_fma_f32 v4, -v3, v5, v2\nv_fma_f32 v3, v4, v6, v3\nv_cvt_pk_bf16_f32 v{r}, v3, v3")
    A("v_mov_b32 v100, v1\nv_mov_b32 v101, v5\nv_mov_b32 v102, v6\ns_waitcnt vmcnt(18)")
    for k in range(3):
        A(f"v_lshlrev_b32 v{XR+k}, 16, v{XR+k}"); norm(XR + k)
    A("s_nop 0")
    stamp(6, 2)
    for p in range(18):
        bbuild(XR + p // 8, p % 8, B + 4 * (p & 1))
        A(f"s_waitcnt vmcnt({17 - p})\ns_nop 0")
        mfma(DQ, RG + 4 * p, B + 4 * (p & 1), "0" if p == 0 else None)
    A("s_waitcnt lgkmcnt(0)")
    tagprep()
    A(f"s_lshl_b32 s82, {sH}, 12\ns_and_b32 s83, {sI}, 3\ns_lshl_b32 s83, s83, 10\ns_add_u32 s82, s82, s83")
    A(f"s_lshr_b32 s83, {sI}, 2\ns_lshl_b32 s83, s83, 8\ns_add_u32 s82, s82, s83")
    for i in range(4): A(f"v_mov_b32_dpp v{V+i}, v{DQ+i} row_ror:8 row_mask:0xf bank_mask:0xf")
    A("s_nop 0")
    for i in range(4): A(f"v_permlane32_swap_b32 v{V+i}, v{V+4+i}")
    for i in range(4): A(f"v_add_f32 v{K+i}, v{DQ+i}, v{V+4+i}")
    for i in range(4): A(f"v_bfi_b32 v{K+i}, 15, v{VT}, v{K+i}")
    stamp(7, 2)
    A("s_mov_b64 exec, 0x00ff00ff\ns_waitcnt vmcnt(0)")
    A(f"buffer_store_dwordx4 {vr(K)}, v{VPL}, {rWS}, s82 offen sc1")
    A("s_mov_b64 exec, -1")
    stamp(1)
    A("L_qgather:")
    A(f"v_lshlrev_b32 v4, 4, v0\ns_lshl_b32 s82, {sH}, 12")
    if P["qdelay"] is not None:
        A(f"L_qdel:\nds_read_b32 v1, v{VZ} offset:{L_FULL}\ns_waitcnt lgkmcnt(0)\nv_cmp_le_i32 vcc, {P['qdelay']}, v1\ns_cbranch_vccnz L_qdel_ok")
        A("s_sleep 2")
        spin("L_qdel")
        A("L_qdel_ok:")
    A("L_qpoll:")
    for p in range(4): A(f"buffer_load_dwordx4 {vr(RG+4*p)}, v4, {rWS}, s82 offen offset:{p*1024} sc1")
    for p in range(4):
        A(f"s_waitcnt vmcnt({3-p})")
        tagchk(1, range(RG + 4 * p, RG + 4 * p + 4), p == 0)
    A("v_and_b32 v1, 15, v1\nv_cmp_ne_u32 vcc, 0, v1")
    A("s_cbranch_vccz L_qready\ns_sleep 2")
    spin("L_qpoll")
    A("L_qready:")
    stamp(2)
    for i in range(4): A(f"v_add_f32 v{RG+i}, v{RG+i}, v{RG+4+i}\nv_add_f32 v{RG+8+i}, v{RG+8+i}, v{RG+12+i}")
    for i in range(4): A(f"v_add_f32 v{RG+i}, v{RG+i}, v{RG+8+i}")
    A("v_lshrrev_b32 v4, 3, v0\nv_and_b32 v5, 7, v0\nv_lshl_add_u32 v4, v4, 5, v5\nv_lshlrev_b32 v4, 1, v4")
    A(f"v_cvt_pk_bf16_f32 v{RG}, v{RG}, v{RG+1}\nv_cvt_pk_bf16_f32 v{RG+4}, v{RG+2}, v{RG+3}")
    A(f"ds_write_b16 v4, v{RG} offset:{L_Q}\nds_write_b16_d16_hi v4, v{RG} offset:{L_Q+16}")
    A(f"ds_write_b16 v4, v{RG+4} offset:{L_Q+32}\nds_write_b16_d16_hi v4, v{RG+4} offset:{L_Q+48}")
    A(f"v_mov_b32 v5, 1\ns_waitcnt lgkmcnt(0)\nds_write_b32 v{VZ}, v5 offset:{L_QFLAG}")
    A(f"s_cmp_ge_u32 {sK}, 11\ns_cbranch_scc1 L_ffn\nL_ffn_done:")
    if P["pre"]:
        A("v_lshrrev_b32 v5, 4, v0\nv_and_b32 v6, 15, v0\nv_lshlrev_b32 v6, 4, v6\nv_lshl_add_u32 v5, v5, 12, v6")
        A(f"s_lshl_b32 s82, {sH}, 14\ns_lshl_b32 s83, {sI}, 8\ns_add_u32 s82, s82, s83\ns_add_u32 s82, s82, {WS_P}")
        A(f"s_lshl_b32 s80, {sH}, 12\ns_lshl_b32 s83, {sI}, 6\ns_add_u32 s80, s80, s83\ns_add_u32 s80, s80, {WS_ML}")
        A(f"s_lshl_b32 s81, {sI}, 12\ns_lshl_b32 s83, {sH}, 8\ns_add_u32 s81, s81, s83\ns_add_u32 s81, s81, {WS_Y - 4096}")
        A("v_lshlrev_b32 v4, 10, v0")
        A(f"buffer_load_dwordx4 v[24:27], v5, {rWS}, s82 offen\ns_mov_b64 exec, 15\nbuffer_load_dwordx4 v[28:31], v4, {rWS}, s80 offen")
        A(f"s_mov_b64 exec, 0xffff\nbuffer_load_dwordx4 v[32:35], v6, {rWS}, s81 offen")
        A("s_mov_b64 exec, -1\ns_waitcnt vmcnt(0)")
    A(f"s_mov_b32 s79, {sS}\ns_mul_i32 s72, {sH}, 3\ns_sub_u32 s72, 11, s72")
    A(f"s_lshl_b32 s78, {sH}, 8\ns_add_u32 s78, s78, {WS_CNT}\nv_mov_b32 v4, s78\nv_mov_b32 v5, 1\ns_mov_b64 exec, 1")
    def que_write(val):
        if val == "s80":
            A(f"s_mul_i32 s73, s80, 52429\ns_lshr_b32 s73, s73, 18\ns_mul_i32 s71, s73, 5\ns_sub_u32 s71, s80, s71\ns_add_u32 s71, s71, s72\ns_add_u32 s73, s73, {SN - XD}")
            A(f"s_add_u32 s74, s80, {16*SN - 5*XD}\ns_lshr_b32 s75, s74, 4\ns_cmp_lt_u32 s80, {5*XD}\ns_cselect_b32 s73, s73, s75\ns_cselect_b32 s71, s71, s74")
            if OM: A(f"s_and_b32 s74, s73, {(1 << P['rot']) - 1}\ns_xor_b32 s71, s71, s74")
            sdep("s74", "s73", [b - 10 for b in rest], "s75")
            sdep("s73", "s71", [b - 10 for b in own], "s75")
            A("s_or_b32 s74, s74, s73"); val = "s74"
        A(f"s_and_b32 s82, s79, 31\ns_lshl_b32 s82, s82, 2\ns_add_u32 s79, s79, 1\ns_lshl_b32 s83, s79, 16\ns_or_b32 s83, s83, {val}")
        A(f"v_mov_b32 v1, s82\nv_mov_b32 v2, s83\nds_write_b32 v1, v2 offset:{L_QUE}")
    def demand(lbl, n, ahead):
        A(f"{lbl}:\nds_read_b32 v1, v{VZ} offset:{L_FULL}\ns_waitcnt lgkmcnt(0)\nv_readfirstlane_b32 s78, v1")
        A(f"s_add_u32 s78, s78, {dt + 2*ahead}\ns_ashr_i32 s78, s78, 1\ns_cmp_le_i32 {n}, s78\ns_cbranch_scc1 {lbl}_go\ns_sleep 2")
        spin(lbl)
        A(f"{lbl}_go:")
    npool = 5 * XD + 16 * (256 - SN)
    c0 = 0; t0 = 0; chain = []
    for cnt, sz in P["segs"]:
        chain.append((c0, t0, sz)); c0 += cnt; t0 += cnt * sz
        assert sz + P["AHA"] + 2 < 32
    nclaim = c0 + npool - t0
    assert t0 < npool and P["AH"] >= 3
    demand("L_ca", "s79", P["AHA"])
    A(f"global_atomic_add v20, v4, v5, s[26:27] {P['apol']}\ns_waitcnt vmcnt(0)\nv_readfirstlane_b32 s78, v20")
    A(f"s_cmp_ge_u32 s78, {c0}\ns_cbranch_scc1 L_ca_one")
    for i, (c, t, sz) in enumerate(chain):
        if i == 0: A(f"s_movk_i32 s80, {t - c*sz}\ns_mov_b32 s81, {sz}")
        else: A(f"s_cmp_ge_u32 s78, {c}\ns_cselect_b32 s80, {t - c*sz}, s80\ns_cselect_b32 s81, {sz}, s81")
    A("s_mul_i32 s78, s78, s81\ns_add_u32 s80, s80, s78\nL_ca_put:")
    que_write("s80")
    A("s_add_u32 s80, s80, 1\ns_sub_u32 s81, s81, 1\ns_cmp_lg_u32 s81, 0\ns_cbranch_scc1 L_ca_put\ns_branch L_ca")
    A(f"L_ca_one:\ns_cmp_ge_u32 s78, {nclaim}\ns_cbranch_scc1 L_cl_end\ns_add_u32 s80, s78, {t0 - c0}")
    que_write("s80")
    A("s_mov_b32 s76, s79\ns_add_u32 s77, s76, 4")
    for k in range(4):
        demand(f"L_cl_{k}", "s76", P["AH"])
        A(f"global_atomic_add v{20+k}, v4, v5, s[26:27] {P['apol']}")
        A(f"s_add_u32 s76, s76, 1\ns_cmp_lt_u32 s76, s77\ns_cbranch_scc1 L_cl_{(k+1)%4}")
        A(f"s_waitcnt vmcnt(3)\nv_readfirstlane_b32 s80, v{20+(k+1)%4}")
        A(f"s_cmp_ge_u32 s80, {nclaim}\ns_cbranch_scc1 L_cl_end\ns_add_u32 s80, s80, {t0 - c0}")
        que_write("s80")
    A("s_branch L_cl_0")
    A("L_cl_end:")
    que_write("0xffff")
    A("s_mov_b64 exec, -1")
    A(f"s_cmp_lg_u32 {sI}, 10\ns_cbranch_scc1 L_e_done\ns_cmp_gt_u32 {sH}, 8\ns_cbranch_scc1 L_e_done")
    srd(rOUT, 22, 1152)
    A("v_lshrrev_b32 v4, 5, v0\nv_and_b32 v5, 3, v0\nv_lshl_add_u32 v4, v4, 2, v5\nv_bfe_u32 v5, v0, 2, 3\nv_lshl_add_u32 v4, v4, 3, v5")
    A(f"v_lshlrev_b32 v2, 1, v4\ns_lshl_b32 s79, {sH}, 7")
    A(f"buffer_load_ushort v3, v2, {rX}, s79 offen")
    A(f"v_lshlrev_b32 v4, 2, v0\ns_lshl_b32 s82, {sH}, 12")
    def issue(b):
        for p in range(16): A(f"buffer_load_dword v{b+p}, v4, {rWS}, s80 offen offset:{256*p} {P['hl']}")
    def check(b, dst, behind, ok):
        for p in range(0, 16, 2):
            A(f"s_waitcnt vmcnt({behind+14-p})")
            tagchk(1, (b + p, b + p + 1), p == 0)
            if p == 0: A(f"v_add_f32 v{dst}, v{b}, v{b+1}")
            else: A(f"v_add_f32 v{dst}, v{dst}, v{b+p}\nv_add_f32 v{dst}, v{dst}, v{b+p+1}")
        tagtest(1)
        A(f"s_cbranch_vccz {ok}")
    A(f"s_mul_i32 s81, {sH}, {72*256}\ns_add_u32 s81, s81, {WS_F}")
    A("L_f_ffn:\ns_mov_b32 s80, s81\nv_mov_b32 v22, 0")
    def f_load(p):
        A(f"buffer_load_dword v{RG+p}, v4, {rWS}, s80 offen offset:{256*(p&15)} sc1")
        if p & 15 == 15: A("s_add_u32 s80, s80, 0x1000")
    for p in range(48): f_load(p)
    for p in range(0, 72, 2):
        A(f"s_waitcnt vmcnt({min(46, 70 - p)})")
        if p + 48 < 72: f_load(p + 48); f_load(p + 49)
        tagchk(1, (RG + p, RG + p + 1), p == 0)
        A(f"v_add_f32 v22, v22, v{RG+p}\nv_add_f32 v22, v22, v{RG+p+1}")
    tagtest(1)
    A("s_cbranch_vccz L_f_ffn_ok\ns_sleep 16")
    spin("L_f_ffn")
    A("L_f_ffn_ok:")
    rbf(22, 22)
    A(f"v_mul_f32 v5, {hex(LOG2E ^ 0x80000000)}, v22\nv_exp_f32 v5, v5\ns_nop 0\nv_add_f32 v5, 1.0, v5\nv_rcp_f32 v5, v5\ns_nop 0\nv_mul_f32 v22, v22, v5")
    rbf(22, 22)
    A("v_lshlrev_b32 v3, 16, v3")
    A(f"L_f_wait:\nds_read_b64 v[24:25], v{VZ} offset:{L_FULL}\ns_waitcnt lgkmcnt(0)\nv_cmp_ge_i32 vcc, v24, v25\ns_cbranch_vccnz L_f_go\ns_sleep 4")
    spin("L_f_wait")
    A("L_f_go:")
    A(f"s_add_u32 s80, s82, {WS_Y}")
    issue(RG)
    A("s_sleep 4\nL_f_att:")
    issue(RG + 16); check(RG, 23, 16, "L_f_att_ok"); issue(RG); check(RG + 16, 23, 16, "L_f_att_ok")
    spin("L_f_att")
    A("L_f_att_ok:")
    rbf(23, 23)
    A("v_mul_f32 v23, v23, v22"); rbf(23, 23)
    A(f"v_add_f32 v23, v23, v3\nv_cvt_pk_bf16_f32 v23, v23, v23\nbuffer_store_short v23, v2, {rOUT}, s79 offen")
    A(f"s_cmp_lg_u32 {sH}, 0\ns_cbranch_scc1 L_e_done")
    A(f"s_mov_b64 exec, 1\nv_mov_b32 v4, {WS_EPOCH}\nglobal_store_dword v4, v{VT}, s[26:27] sc1\ns_mov_b64 exec, -1\ns_branch L_e_done")

    A("L_cons_main:")
    VSC = 148
    A("v_and_b32 v1, 15, v0\nv_lshrrev_b32 v4, 4, v0\nv_xor_b32 v5, v1, v4\nv_lshlrev_b32 v5, 4, v5")
    A(f"v_lshl_add_u32 v{KA}, v1, 8, v5")
    for ks in range(1, 4): A(f"v_xor_b32 v{KA+ks}, {64*ks}, v{KA}")
    A(f"v_lshlrev_b32 v5, 4, v1\nv_lshl_add_u32 v{VA}, v4, 10, v5")
    A(f"v_mov_b32 v{Vm}, 0xff800000\nv_mov_b32 v{VmL}, 0xff800000\nv_mov_b32 v{Vl}, 0")
    for i in range(4): A(f"v_mov_b32 v{O+i}, 0")
    A(f"s_lshl_b32 s82, {sC}, 2\nv_mov_b32 v{VDA}, s82")
    if diag == 3:
        for i in range(3): A(f"v_mov_b32 v{225+i}, 0")
        A("s_mov_b32 s86, 0")
    A(f"v_lshrrev_b32 v2, 3, v0\nv_lshlrev_b32 v2, 3, v2\ns_lshl_b32 s82, {sC}, 6\nv_add_u32 v{VSC}, s82, v2")
    A("v_bfe_u32 v5, v0, 3, 1\nv_lshlrev_b32 v5, 8, v5\nv_lshl_add_u32 v5, v4, 4, v5")
    A(f"s_mov_b32 s72, {hex(SCALE)}\ns_mov_b32 s73, {hex(LOG2E)}\ns_mov_b32 s74, 0xffff0000")
    A(f"s_mov_b32 s76, {sC}\ns_lshl_b32 s77, {sC}, 12\ns_add_u32 s77, s77, {RING0}\ns_mov_b32 s78, 0")
    A(f"s_mov_b32 s60, {sS}\ns_lshl_b32 s61, {sS}, 1")
    assert L_SC + 64 * (SN - XD - NSL - 8) >= L_Y + 2048
    wo_prep()
    MA, MRG = X, RG
    for i in range(1, 4):
        A(f"s_add_u32 s82, {sC}, {i}\ns_and_b32 s82, s82, 3\ns_lshl_b32 s83, s82, 9\ns_lshl_b32 s82, s82, 10")
        A(f"v_lshl_add_u32 v{MA+2*i-2}, v0, 3, s83\nv_lshl_add_u32 v{MA+2*i-1}, v0, 4, s82")
    A(f"v_lshrrev_b32 v2, 4, v0\nv_and_b32 v3, 15, v0\nv_lshlrev_b32 v3, 4, v3\nv_lshl_add_u32 v{MA+6}, v2, 12, v3")
    A(f"v_and_b32 v3, 8, v0\nv_lshl_add_u32 v{MA+7}, v2, 10, v3")
    A(f"s_lshl_b32 s56, {sH}, 14\ns_add_u32 s56, s56, {WS_P}\ns_lshl_b32 s83, {sI}, 8\ns_add_u32 s58, s56, s83")
    A(f"s_lshl_b32 s83, {sC}, 12\ns_add_u32 s56, s56, s83")
    A(f"s_lshl_b32 s57, {sH}, 12\ns_add_u32 s57, s57, {WS_ML}\ns_lshl_b32 s83, {sI}, 6\ns_add_u32 s59, s83, s57")
    A(f"s_lshl_b32 s83, {sC}, 10\ns_add_u32 s57, s57, s83\ns_mov_b32 s70, -1\ns_brev_b32 s75, -2")
    def merge_reads():
        A(f"ds_read_b32 v{MRG+18}, v{VZ} offset:{L_QFLAG+4}")
        for i in range(3): A(f"ds_read_b64 {vr(MRG+12+2*i, 2)}, v{MA+2*i} offset:{L_MML}")
        for i in range(3): A(f"ds_read_b128 {vr(MRG+4*i)}, v{MA+2*i+1} offset:{L_MO}")
    A(f"L_qwait:\nds_read_b32 v1, v{VZ} offset:{L_QFLAG}\ns_waitcnt lgkmcnt(0)\nv_readfirstlane_b32 s79, v1")
    A("s_cmp_lg_u32 s79, 0\ns_cbranch_scc1 L_qgo\ns_sleep 1")
    spin("L_qwait")
    A("L_qgo:")
    tagprep()
    for ks in range(4): A(f"ds_read_b128 {vr(Q+4*ks)}, v5 offset:{L_Q + 64*ks}")
    A("s_waitcnt lgkmcnt(0)")
    stamp(4)
    def landed(lbl, item):
        A(f"s_cmp_lt_i32 {item}, s78\ns_cbranch_scc1 {lbl}_go")
        A(f"{lbl}_poll:\nds_read_b32 v22, v{VZ} offset:{L_FULL}\ns_waitcnt lgkmcnt(0)\nv_readfirstlane_b32 s78, v22")
        A(f"s_cmp_lt_i32 {item}, s78\ns_cbranch_scc1 {lbl}_go")
        spin(f"{lbl}_poll")
        A(f"{lbl}_go:")
    ntr = [0]
    def trace():
        if diag == 3:
            ntr[0] += 1; n = ntr[0]
            A(f"s_memrealtime s[84:85]\ns_waitcnt lgkmcnt(0)\ns_and_b32 m0, s86, 63\ns_cmp_lt_u32 s86, 64\ns_cbranch_scc0 L_tr{n}a")
            A(f"v_writelane_b32 v225, s84, m0\ns_branch L_tr{n}c\nL_tr{n}a:\ns_cmp_lt_u32 s86, 128\ns_cbranch_scc0 L_tr{n}b\nv_writelane_b32 v226, s84, m0\ns_branch L_tr{n}c")
            A(f"L_tr{n}b:\nv_writelane_b32 v227, s84, m0\nL_tr{n}c:\ns_add_u32 s86, s86, 1")
    def slot_next(step):
        A(f"s_add_u32 s77, s77, {step}\ns_sub_u32 s79, s77, {NSL*4096}\ns_cmp_ge_u32 s77, {RINGE}\ns_cselect_b32 s77, s79, s77")
    def k_reads():
        for ks in range(4): A(f"v_add_u32 v{AD+ks}, s77, v{KA+ks}\nds_read_b128 {vr(K+4*ks)}, v{AD+ks}")
    def qk():
        for ks in range(4):
            A(f"s_waitcnt lgkmcnt({3-ks})")
            mfma(S, K + 4 * ks, Q + 4 * ks, "0" if ks == 0 else None)
    def v_reads(off):
        for r in range(4): A(f"ds_read_b128 {vr(V+4*r)}, v{AD+4} offset:{off + 256*r}")
    def softmax(lbl):
        A(f"v_max3_f32 v22, v{S}, v{S+1}, v{S+2}\nv_max_f32 v22, v22, v{S+3}")
        A(f"v_cmp_gt_f32 vcc, v22, v{Vm}\ns_cbranch_vccnz {lbl}_rescale\n{lbl}_cont:")
        for i in range(4): A(f"v_fma_f32 v{PP+i}, v{S+i}, s73, -v{VmL}")
        for i in range(4): A(f"v_exp_f32 v{PP+i}, v{PP+i}")
        A(f"s_waitcnt lgkmcnt(0)\nds_write_b32 v{VDA}, v{AD} offset:{L_DONE}")
    def pv():
        for i in range(4):
            A(f"v_cvt_pk_bf16_f32 v22, v{PP+i}, v{PP+i}")
            for v in range(4): A(f"v_and_b32 v{B+4*i+v}, v22, v{M+v}")
            A(f"v_add_f32 v{Vl}, v{Vl}, v{PP+i}")
            if i > 0: mfma(O, V + 4 * (i - 1), B + 4 * (i - 1))
        A("s_nop 0")
        mfma(O, V + 12, B + 12)
    def rescale(lbl):
        A(f"{lbl}_rescale:")
        for op in ("v_permlane16_swap_b32", "v_permlane32_swap_b32"):
            A(f"v_mov_b32 v23, v22\ns_nop 1\n{op} v23, v22\nv_max_f32 v22, v22, v23")
        A(f"v_max_f32 v{Vm}, v{Vm}, v22\nv_mul_f32 v22, s73, v{Vm}\nv_sub_f32 v23, v{VmL}, v22\nv_exp_f32 v23, v23\nv_mov_b32 v{VmL}, v22")
        A(f"v_mul_f32 v{Vl}, v{Vl}, v23")
        for i in range(4): A(f"v_mul_f32 v{O+i}, v{O+i}, v23")
        A(f"s_branch {lbl}_cont")
    A("L_k:")
    landed("L_k", "s76")
    trace()
    k_reads()
    slot_next(0x4000)
    A(f"s_add_u32 s76, s76, 1\nv_mov_b32 v22, s76\ns_add_u32 s76, s76, 3")
    qk()
    A(f"ds_write_b32 v{VDA}, v22 offset:{L_DONE}\ns_mov_b32 exec_lo, 0x01010101\ns_mov_b32 exec_hi, 0x01010101\ns_nop 4")
    for i in range(4): A(f"v_cvt_pk_bf16_f32 v{S+i}, 0, v{S+i}")
    for i in range(4): A(f"v_mul_f32 v{S+i}, s72, v{S+i}")
    A(f"v_cvt_pk_bf16_f32 v22, v{S}, v{S+1}\nv_cvt_pk_bf16_f32 v23, v{S+2}, v{S+3}")
    A(f"ds_write_b64 v{VSC}, v[22:23] offset:{L_SC}\ns_mov_b64 exec, -1\nv_add_u32 v{VSC}, 0x100, v{VSC}")
    A("s_cmp_lt_u32 s76, s60\ns_cbranch_scc1 L_k")
    A(f"s_lshl_b32 s82, s60, 6\nv_subrev_u32 v{VSC}, s82, v{VSC}")
    A("L_v:")
    landed("L_v", "s76")
    trace()
    A(f"ds_read_b64 v[22:23], v{VSC} offset:{L_SC}\nv_add_u32 v{AD+4}, s77, v{VA}")
    v_reads(0)
    slot_next(0x4000)
    A(f"v_add_u32 v{VSC}, 0x100, v{VSC}\ns_add_u32 s76, s76, 1\nv_mov_b32 v{AD}, s76\ns_add_u32 s76, s76, 3")
    A(f"s_waitcnt lgkmcnt(4)\nv_lshlrev_b32 v{S}, 16, v22\nv_and_b32 v{S+1}, s74, v22\nv_lshlrev_b32 v{S+2}, 16, v23\nv_and_b32 v{S+3}, s74, v23")
    softmax("L_v"); pv()
    A("s_cmp_lt_u32 s76, s61\ns_cbranch_scc1 L_v")
    A(f"s_add_u32 s76, s76, {sC}\ns_lshl_b32 s82, {sC}, 12")
    slot_next("s82")
    A("L_c_top:\ns_cmp_lt_i32 s76, s78\ns_cbranch_scc1 L_c_go\ns_cmp_ge_i32 s76, s75\ns_cbranch_scc1 L_c_exit")
    A(f"L_c_poll:\nds_read_b64 v[22:23], v{VZ} offset:{L_FULL}\ns_waitcnt lgkmcnt(0)")
    A("v_readfirstlane_b32 s78, v22\nv_readfirstlane_b32 s75, v23\ns_add_u32 s70, s75, 6")
    A("s_cmp_lt_i32 s76, s78\ns_cbranch_scc1 L_c_go\ns_cmp_ge_i32 s76, s75\ns_cbranch_scc1 L_c_exit")
    spin("L_c_poll")
    A("L_c_vwait:")
    A(f"ds_read_b64 v[22:23], v{VZ} offset:{L_FULL}\ns_waitcnt lgkmcnt(0)\nv_readfirstlane_b32 s78, v22\nv_readfirstlane_b32 s75, v23")
    A("s_add_u32 s70, s75, 6\ns_cmp_lt_i32 s82, s78\ns_cbranch_scc1 L_c_v")
    spin("L_c_vwait")
    rescale("L_v"); rescale("L_c")
    A("L_c_go:")
    trace(); trace()
    k_reads()
    A(f"v_add_u32 v{AD+4}, s77, v{VA}")
    slot_next(0x8000)
    qk()
    A("s_add_u32 s82, s76, 1\ns_cmp_lt_i32 s82, s78\ns_cbranch_scc0 L_c_vwait\nL_c_v:")
    v_reads(4096)
    A(f"s_add_u32 s76, s76, 2\nv_mov_b32 v{AD}, s76\ns_add_u32 s76, s76, 6")
    for i in range(4): A(f"v_cvt_pk_bf16_f32 v{S+i}, 0, v{S+i}")
    for i in range(4): A(f"v_mul_f32 v{S+i}, s72, v{S+i}")
    for i in range(4): A(f"v_cvt_pk_bf16_f32 v{S+i}, 0, v{S+i}")
    softmax("L_c")
    A("s_cmp_lg_u32 s76, s70\ns_cbranch_scc1 L_c_pvb\ns_mov_b32 s61, 0")
    merge_reads()
    A("L_c_pvb:")
    pv()
    A("s_branch L_c_top")
    A("L_c_exit:")
    if diag == 3:
        A(f"s_lshl_b32 s84, s2, 2\ns_add_u32 s84, s84, {sC}\ns_lshl_b32 s84, s84, 10\ns_add_u32 s84, s84, {WS_DIAG + 0x20000}\nv_lshlrev_b32 v1, 2, v0")
        for i in range(3): A(f"buffer_store_dword v{225+i}, v1, {rWS}, s84 offen offset:{256*i}")
        A(f"buffer_store_dword v{VZ}, v1, {rWS}, s84 offen offset:768")
    stamp(5)
    for op in ("v_permlane16_swap_b32", "v_permlane32_swap_b32"):
        A(f"v_mov_b32 v23, v{Vl}\ns_nop 1\n{op} v23, v{Vl}\nv_add_f32 v{Vl}, v{Vl}, v23")
    A("s_cmp_eq_u32 s61, 0\ns_cbranch_scc1 L_e_dir")
    A(f"s_lshr_b32 s82, s75, 1\ns_sub_u32 s82, s82, 1\ns_and_b32 s82, s82, 3\ns_cmp_eq_u32 s82, {sC}\ns_cbranch_scc1 L_e_re")
    A(f"s_lshl_b32 s82, {sC}, 10\nv_lshl_add_u32 v4, v0, 4, s82\nds_write_b128 v4, {vr(O)} offset:{L_MO}")
    A(f"s_lshl_b32 s82, {sC}, 9\nv_lshl_add_u32 v4, v0, 3, s82\nv_mov_b32 v22, v{VmL}\nv_mov_b32 v23, v{Vl}\nds_write_b64 v4, v[22:23] offset:{L_MML}")
    A(f"v_mov_b32 v1, 1\ns_mov_b64 exec, 1\nds_add_u32 v{VZ}, v1 offset:{L_QFLAG+4}\ns_mov_b64 exec, -1")
    wo_loads()
    A(f"L_e_wait:\nds_read_b32 v1, v{VZ} offset:{L_QFLAG+12}\ns_waitcnt lgkmcnt(0)\nv_cmp_ne_u32 vcc, 0, v1\ns_cbranch_vccnz L_e_l1p")
    spin("L_e_wait")
    A("L_e_re:")
    merge_reads()
    A(f"L_e_dir:\ns_waitcnt lgkmcnt(3)\nv_cmp_ne_u32 vcc, 3, v{MRG+18}\nv_max3_f32 v22, v{MRG+12}, v{MRG+14}, v{MRG+16}\ns_cbranch_vccz L_e_go")
    spin("L_e_re")
    A(f"L_e_go:\nv_max_f32 v22, v22, v{VmL}")
    A(f"v_sub_f32 v{VmL}, v{VmL}, v22")
    for c in range(3): A(f"v_sub_f32 v{MRG+12+2*c}, v{MRG+12+2*c}, v22")
    A(f"v_exp_f32 v{VmL}, v{VmL}")
    for c in range(3): A(f"v_exp_f32 v{MRG+12+2*c}, v{MRG+12+2*c}")
    for i in range(4): A(f"v_mul_f32 v{O+i}, v{VmL}, v{O+i}")
    A("s_waitcnt lgkmcnt(0)")
    for c in range(3):
        for i in range(4): A(f"v_fmac_f32 v{O+i}, v{MRG+12+2*c}, v{MRG+4*c+i}")
    for i in range(4): tagput(O + i)
    A(f"buffer_store_dwordx4 {vr(O)}, v{MA+6}, {rWS}, s58 offen {P['hs']}")
    A(f"v_mul_f32 v23, v{VmL}, v{Vl}")
    for c in range(3): A(f"v_fmac_f32 v23, v{MRG+12+2*c}, v{MRG+13+2*c}")
    tagput(22); tagput(23)
    A("s_mov_b32 exec_lo, 0x01010101\ns_mov_b32 exec_hi, 0x01010101")
    A(f"buffer_store_dwordx2 v[22:23], v{MA+7}, {rWS}, s59 offen {P['hs']}\ns_mov_b64 exec, -1")
    A(f"v_mov_b32 v1, 1\nds_write_b32 v{VZ}, v1 offset:{L_QFLAG+12}")
    wo_loads()
    A("L_e_l1p:\ns_mov_b32 s76, s56\ns_mov_b32 s77, s57\nv_lshlrev_b32 v6, 2, v0")
    A("L_e_l1:\ns_waitcnt lgkmcnt(0)")
    stamp(6); stamp(6, 5)
    A(f"s_sub_u32 s78, {sI}, 1\ns_cmp_gt_u32 s78, 8\ns_cbranch_scc1 L_e_done")
    A("v_and_b32 v4, 15, v0\nv_lshlrev_b32 v4, 6, v4\nv_lshrrev_b32 v5, 5, v0\nv_lshl_add_u32 v4, v5, 3, v4")
    acc = (S, S + 1, S + 2, S + 3)
    def l1_issue(b, ml):
        A(f"buffer_load_dwordx2 {vr(ml, 2)}, v4, {rWS}, s77 offen {P['hl']}")
        for p in range(16): A(f"buffer_load_dword v{b+p}, v6, {rWS}, s76 offen offset:{256*p} {P['hl']}")
    def l1_check(b, ml, behind):
        A(f"s_waitcnt vmcnt({behind+16})\nv_mov_b32 v7, v{ml}")
        tagchk(1, (ml, ml + 1), True)
        A("v_and_b32 v2, 0xff, v1\nv_cmp_ne_u32 vcc, 0, v2\ns_cbranch_vccnz L_l1_again")
        for i, r in enumerate((8, 4, 2, 1)):
            A(f"v_mov_b32 v{acc[i]}, 0" + ("" if i == 0 else "\ns_nop 0"))
            A(f"v_max_f32_dpp v7, v7, v7 row_ror:{r} row_mask:0xf bank_mask:0xf")
        A(f"v_sub_f32 v22, v{ml}, v7\nv_exp_f32 v22, v22\ns_nop 0\nv_mul_f32 v23, v22, v{ml+1}")
        for p in range(0, 16, 2):
            A(f"s_waitcnt vmcnt({behind+14-p})")
            tagchk(1, (b + p, b + p + 1))
            if p < 8: A(f"v_add_f32_dpp v23, v23, v23 row_ror:{8 >> (p // 2)} row_mask:0xf bank_mask:0xf")
            if p == 8: A("v_rcp_f32 v23, v23")
            for x in (p, p + 1): A(f"v_fmac_f32_dpp v{acc[x&3]}, v22, v{b+x} row_newbcast:{x} row_mask:0xf bank_mask:0xf")
        tagtest(1)
        A(f"v_add_f32 v2, v{S}, v{S+1}\nv_add_f32 v3, v{S+2}, v{S+3}\ns_cbranch_vccz L_l1_ok")
    A("L_l1_poll:")
    l1_issue(RG, RG + 32); l1_check(RG, RG + 32, 0)
    A("L_l1_again:")
    spin("L_l1_poll")
    A("L_l1_ok:")
    stamp(3, 5)
    A("v_add_f32 v1, v2, v3\nv_mul_f32 v1, v1, v23\nv_cvt_pk_bf16_f32 v1, v1, v1\ns_nop 1")
    for t in range(8): A(f"v_mov_b32_dpp v{V+t}, v1 row_newbcast:{t} row_mask:0xf bank_mask:0x3")
    for t in range(8): A(f"v_mov_b32_dpp v{V+t}, v1 row_newbcast:{8+t} row_mask:0xf bank_mask:0xc")
    for t in range(8):
        for v in range(4): A(f"v_and_b32 v{B+4*(t&3)+v}, v{V+t}, v{M+v}")
        if t > 0: mfma(S, WO + 4 * (t - 1), B + 4 * ((t - 1) & 3), "0" if t == 1 else None)
    A("s_nop 0")
    mfma(S, WO + 28, B + 12)
    stamp(5, 5)
    A(f"s_lshl_b32 s82, {sC}, 9\nv_lshrrev_b32 v4, 5, v0\nv_lshl_add_u32 v4, v4, 8, v{VPL}\nv_add_u32 v4, s82, v4\nv_mov_b32 v1, 1")
    exec_valid()
    A(f"s_lshl_b32 s82, s78, 12\ns_lshl_b32 s83, {sH}, 8\ns_add_u32 s82, s82, s83\ns_add_u32 s82, s82, {WS_Y}")
    A(f"ds_write_b128 v4, {vr(S)} offset:{L_Y}\ns_mov_b64 exec, 1")
    A(f"ds_add_rtn_u32 v1, v{VZ}, v1 offset:{L_QFLAG+8}\ns_mov_b64 exec, -1")
    for i in range(8): A(f"ds_read_b32 v{K+i}, v6 offset:{L_Y + 256*i}")
    A("s_waitcnt lgkmcnt(8)\nv_readfirstlane_b32 s78, v1\ns_cmp_lg_u32 s78, 3\ns_cbranch_scc1 L_e_done")
    A(f"s_waitcnt lgkmcnt(4)\nv_add_f32 v{K}, v{K}, v{K+1}\nv_add_f32 v{K+2}, v{K+2}, v{K+3}")
    A(f"s_waitcnt lgkmcnt(0)\nv_add_f32 v{K+4}, v{K+4}, v{K+5}\nv_add_f32 v{K+6}, v{K+6}, v{K+7}")
    A(f"v_add_f32 v{K}, v{K}, v{K+2}\nv_add_f32 v{K+4}, v{K+4}, v{K+6}\nv_add_f32 v22, v{K}, v{K+4}")
    tagput(22)
    A(f"buffer_store_dword v22, v6, {rWS}, s82 offen {P['hs']}")
    A("L_e_done:")
    stamp(7); stamp(7, 5)
    dump_stamps()
    A("L_end:\ns_endpgm")

    A("L_ffn:")
    ACC, DG, DU = 28, 64, 68
    A(f"s_lshl_b32 s73, {sH}, 2\ns_add_u32 s73, s73, {sK}\ns_sub_u32 s73, s73, 11\ns_cmp_lt_u32 {sK}, 15\ns_cbranch_scc1 L_ffn_go")
    A(f"s_bitcmp1_b32 {sH}, 0\ns_cbranch_scc1 L_ffn_done\ns_lshr_b32 s73, {sH}, 1\ns_add_u32 s73, s73, 64\nL_ffn_go:")
    A("v_mov_b32 v1, v100\nv_mov_b32 v5, v101\nv_mov_b32 v6, v102")
    for k in range(9): norm(X + k)
    for i in range(36): A(f"v_mov_b32 v{ACC+i}, 0")
    srd(rWG, 16, 576 * 9216); srd(rWU, 18, 576 * 9216); srd(rWD, 20, 4608 * 1152)
    A("v_lshrrev_b32 v4, 3, v0\nv_and_b32 v5, 7, v0\nv_lshlrev_b32 v5, 4, v5")
    A("v_mul_u32_u24 v2, 0x2400, v4\nv_add_u32 v2, v2, v5\nv_mul_u32_u24 v3, 0x480, v4\nv_add_u32 v3, v3, v5")
    for i in range(8): A(f"v_mov_b32 v{DG+i}, 0")
    A("s_lshl_b32 s74, s73, 7")
    assert FW % 2 == 0
    def gu_load(n):
        A(f"buffer_load_dwordx4 {vr(RG+4*(n%16))}, v2, {rWU if n & 1 else rWG}, s74 offen {wpol}")
        if n & 1: A(f"s_add_u32 s74, s74, {8*9216}")
    for n in range(FW): gu_load(n)
    A("s_mov_b32 s75, 0\nL_ffn_gu:")
    for t in range(8):
        bbuild(X, t, B + 4 * (t & 1))
        for m in range(2):
            n = 2 * t + m
            A(f"s_waitcnt vmcnt({FW-1})")
            gu_load(n + FW)
            mfma(DU if m else DG, RG + 4 * n, B + 4 * (t & 1))
    for k in range(8): A(f"v_mov_b32 v{X+k}, v{X+k+1}")
    A("s_add_u32 s75, s75, 1\ns_cmp_lt_u32 s75, 9\ns_cbranch_scc1 L_ffn_gu")
    A(f"s_mul_i32 s74, s73, {64*1152}")
    def wd_load(n):
        t, ct = divmod(n, 9)
        A(f"buffer_load_dwordx4 {vr(RG+4*(n%16))}, v3, {rWD}, s74 offen offset:{ct*128} {wpol}")
        if ct == 8: A(f"s_add_u32 s74, s74, {8*1152}")
    A("s_waitcnt vmcnt(0)")
    for n in range(FW): wd_load(n)
    A(f"v_lshrrev_b32 v4, 5, v0\nv_lshl_add_u32 v4, v4, 8, v{VPL}")
    exec_valid()
    A(f"ds_write_b128 v4, {vr(DG)} offset:{L_GU}\nds_write_b128 v4, {vr(DU)} offset:{L_GU+512}\ns_mov_b64 exec, -1")
    A("v_bfe_u32 v4, v0, 2, 1\nv_lshrrev_b32 v5, 3, v0\nv_lshl_add_u32 v4, v4, 3, v5\nv_and_b32 v5, 3, v0\nv_lshl_add_u32 v4, v4, 2, v5")
    A("v_lshlrev_b32 v4, 2, v4\ns_waitcnt lgkmcnt(0)")
    for i in range(4): A(f"ds_read_b32 v{64+i}, v4 offset:{L_GU + 256*i}")
    A("s_waitcnt lgkmcnt(0)\nv_add_f32 v64, v64, v65\nv_add_f32 v66, v66, v67")
    rbf(64, 64); rbf(66, 66)
    A(f"v_mul_f32 v64, {hex(LOG2E ^ 0x80000000)}, v64\nv_exp_f32 v64, v64\ns_nop 0\nv_add_f32 v64, 1.0, v64\nv_rcp_f32 v64, v64\ns_nop 0")
    rbf(64, 64)
    A(f"v_mul_f32 v64, v64, v66\nv_cvt_pk_bf16_f32 v{X}, v64, v64\ns_nop 1")
    for n in range(72):
        t, ct = divmod(n, 9)
        if ct == 0: bbuild(X, t, B + 4 * (t & 1))
        A(f"s_waitcnt vmcnt({min(FW-1, 71-n)})")
        if n + FW < 72: wd_load(n + FW)
        else: A("s_nop 0")
        mfma(ACC + 4 * ct, RG + 4 * (n % 16), B + 4 * (t & 1))
    A(f"s_lshl_b32 s75, s73, 8\ns_add_u32 s75, s75, {WS_F}\ns_nop 4")
    for ct in range(9):
        for i in range(4): A(f"v_mov_b32_dpp v{V+8+i}, v{ACC+4*ct+i} row_ror:8 row_mask:0xf bank_mask:0xf")
        A("s_nop 0")
        for i in range(4): A(f"v_permlane32_swap_b32 v{V+8+i}, v{V+12+i}")
        for i in range(4): A(f"v_add_f32 v{ACC+4*ct+i}, v{ACC+4*ct+i}, v{V+12+i}")
        for i in range(4): tagput(ACC + 4 * ct + i)
    A("s_mov_b64 exec, 0x00ff00ff")
    for ct in range(9):
        A(f"buffer_store_dwordx4 {vr(ACC+4*ct)}, v{VPL}, {rWS}, s75 offen sc1")
        if ct < 8: A(f"s_add_u32 s75, s75, {72*256}")
    A("s_mov_b64 exec, -1")
    stamp(3)
    A("s_branch L_ffn_done")

    A("L_code_end:")
    errs = hazard.check(L)
    if errs:
        print("\n".join(errs)); raise SystemExit("hazards found")
    lds = RINGE
    body = "\n".join(x if x.endswith(":") else "    " + x for x in L)
    head = HEADER.replace("@LAUNCH@", f"; @launch grid=(256,1,1) block=({64*NW},1,1) lds={lds}")
    tail = f"""
.section .rodata,"a"
.p2align 6
.amdhsa_kernel {NAME}_kernel
  .amdhsa_next_free_vgpr 228
  .amdhsa_next_free_sgpr 102
  .amdhsa_accum_offset 228
  .amdhsa_group_segment_fixed_size 0
  .amdhsa_kernarg_size 96
  .amdhsa_user_sgpr_count 2
  .amdhsa_user_sgpr_kernarg_segment_ptr 1
  .amdhsa_system_sgpr_workgroup_id_x 1
  .amdhsa_float_denorm_mode_32 3
.end_amdhsa_kernel
"""
    return head + body + tail, lds

if __name__ == "__main__":
    out = sys.argv[1]
    kw = eval("dict(" + (sys.argv[2] if len(sys.argv) > 2 else "") + ")")
    txt, lds = build(**kw)
    open(out, "w").write(txt)
    import subprocess
    r = subprocess.run([sys.executable, "cdna_unwritten_srd_check.py", out], capture_output=True, text=True)
    print(r.stdout.strip()[:1500])
```

```python
import sys, os
sys.path.insert(0, os.path.dirname(os.path.abspath(__file__)))
import hazard

NAME = "recurrent_scan__gqa_block_cached__glu_gated_glu__decode"
HEADER = open(os.path.join(os.path.dirname(os.path.abspath(__file__)), "header.txt")).read()

WS_QP, WS_P, WS_ML, WS_Y, WS_CNT, WS_EPOCH, WS_F, WS_DIAG = 0x0, 0x20000, 0x60000, 0x70000, 0x7a000, 0x7c000, 0x80000, 0x100000
L_FULL, L_DONE, L_QFLAG, L_QUE, L_Q, L_GU, L_SC, L_MO, L_MML, L_Y, RING0 = 0, 512, 528, 640, 1024, 1536, 2560, 2560, 6656, 8704, 18944
LOG2E = 0x3FB8AA3B
SCALE = 0x3DB504F3
VALID = "0xff00ff00", "0x00ff00ff"
NW = 6

DESC = """;
"""

DEF = dict(F=21, Fd=21, NSL=34, FW=12, pol="nt", wpol="nt", diag=False, spin=0x800000, AH=5, AHA=8, qdelay=14,
           segs=((8, 14), (8, 6)), own=(10, 11, 14, 15), pcs=(12, 13), R=248, X=28, rot=4, pre=False, cpf=True, opol='sc1')

def build(**kw):
    P = dict(DEF); P.update(kw)
    F, Fd, NSL, FW, pol, wpol, diag = P["F"], P["Fd"], P["NSL"], P["FW"], P["pol"], P["wpol"], P["diag"]
    P.update(hl="sc1", hs="sc1", apol="sc0")
    L = []
    def A(s):
        for x in s.strip("\n").split("\n"):
            L.append(x.strip())
    sW, sH, sI, sC, sT, sK, sS = "s28", "s29", "s30", "s31", "s100", "s14", "s15"
    rK, rV, rWS, rX, rWQ, rWO, rWG, rWU, rWD, rOUT = ("s[32:35]", "s[36:39]", "s[40:43]", "s[44:47]", "s[48:51]",
                                                    "s[52:55]", "s[56:59]", "s[60:63]", "s[64:67]", "s[68:71]")
    def srd(r, ptr, n):
        b = int(r[2:r.index(":")])
        A(f"s_mov_b64 s[{b}:{b+1}], s[{ptr}:{ptr+1}]\ns_mov_b32 s{b+2}, {n}\ns_mov_b32 s{b+3}, 0x20000")
    def vr(b, n=4): return f"v[{b}:{b+n-1}]"
    M, KA, VA, VZ, Vm, VmL, Vl, VDA = 8, 12, 16, 17, 18, 19, 20, 21
    O, Q, K, V, S, PP, B, AD, WO, X, XR, RG, DQ = 24, 28, 44, 60, 76, 80, 84, 100, 108, 140, 149, 152, 224
    VPL = 105
    def stamp(k, set_=1):
        if diag and (diag == set_ or (k in (0, 1, 2, 4) and set_ == 1)) and not (diag == 3 and k == 4):
            A(f"s_memrealtime s[{84+2*k}:{85+2*k}]\ns_waitcnt lgkmcnt(0)")
    def dump_stamps():
        if diag:
            A(f"s_mul_i32 s76, s2, {NW}\ns_add_u32 s76, s76, {sW}\ns_lshl_b32 s76, s76, 5\ns_add_u32 s76, s76, {WS_DIAG}")
            A("s_mov_b64 exec, 1\nv_mov_b32 v1, s76")
            for k in range(8):
                A(f"v_mov_b32 v2, s{84+2*k}\nglobal_store_dword v1, v2, s[26:27] offset:{4*k}")
            A("s_mov_b64 exec, -1")
    npf = [0]
    def code_prefetch(r):
        npf[0] += 1
        A(f"s_getpc_b64 s[64:65]\nL_pc{npf[0]}:\ns_sub_u32 s64, s64, L_pc{npf[0]}-{NAME}_kernel\ns_subb_u32 s65, s65, 0")
        A(f"v_lshlrev_b32 v{r}, 7, v0\nv_add_u32 v{r+1}, 0x2000, v{r}\nv_min_u32 v{r+1}, L_code_end-{NAME}_kernel-4, v{r+1}")
        A(f"global_load_dword v{r+2}, v{r}, s[64:65]\nglobal_load_dword v{r+3}, v{r+1}, s[64:65]")
    def spin(lbl):
        A(f"s_sub_u32 s3, s3, 1\ns_cbranch_scc0 {lbl}\ns_endpgm")
    def wave_sum(v, t):
        for r in (8, 4, 2, 1):
            A(f"s_nop 1\nv_add_f32_dpp v{v}, v{v}, v{v} row_ror:{r} row_mask:0xf bank_mask:0xf")
        for op in ("v_permlane16_swap_b32", "v_permlane32_swap_b32"):
            A(f"v_mov_b32 v{t}, v{v}\ns_nop 1\n{op} v{t}, v{v}\nv_add_f32 v{v}, v{v}, v{t}")
    def rbf(d, s):
        A(f"v_cvt_pk_bf16_f32 v{d}, 0, v{s}")
    def bbuild(src, t, b):
        A(f"v_mov_b32_dpp v7, v{src} row_newbcast:{t} row_mask:0xf bank_mask:0x3\ns_nop 1")
        A(f"v_mov_b32_dpp v7, v{src} row_newbcast:{8+t} row_mask:0xf bank_mask:0xc")
        for v in range(4):
            A(f"v_and_b32 v{b+v}, v7, v{M+v}")
    def mfma(d, a, b, c=None):
        A(f"v_mfma_f32_16x16x32_bf16 {vr(d)}, {vr(a)}, {vr(b)}, {vr(d) if c is None else c}")
    def exec_valid():
        A(f"s_mov_b32 exec_lo, {VALID[1]}\ns_mov_b32 exec_hi, {VALID[0]}")
    VT, VFF = 107, 103
    def tagchk(acc, regs, first=False):
        regs = list(regs)
        if first:
            A(f"v_bitop3_b32 v{acc}, v{regs[0]}, v{regs[1]}, v{VT} bitop3:0x7e"); regs = regs[2:]
        for r in regs: A(f"v_bitop3_b32 v{acc}, v{acc}, v{r}, v{VT} bitop3:0xf6")
    def tagtest(acc, dst="vcc"):
        A(f"v_and_b32 v{acc}, 0xff, v{acc}\nv_cmp_ne_u32 {dst}, 0, v{acc}")
    def tagput(r):
        A(f"v_perm_b32 v{r}, v{r}, v{VT}, s101")
    def tagprep():
        A(f"s_add_u32 s82, {sT}, 0x9e3779b9\nv_mov_b32 v{VT}, s82\ns_mov_b32 s101, 0x07060500")

    A('; entry')
    A(f"{NAME}_kernel:")
    if diag == 6: A("s_memrealtime s[90:91]")
    A("s_cmp_ge_u32 s2, 256\ns_cbranch_scc1 L_end")
    A("s_load_dwordx8 s[4:11], s[0:1], 0\ns_load_dwordx2 s[12:13], s[0:1], 32\ns_load_dwordx4 s[16:19], s[0:1], 48\ns_load_dwordx8 s[20:27], s[0:1], 64")
    if diag and diag != 6:
        for k in range(8): A(f"s_mov_b32 s{84+2*k}, 0")
    A("v_lshrrev_b32 v1, 6, v0\nv_and_b32 v0, 63, v0")
    A(f"v_readfirstlane_b32 {sW}, v1")
    A(f"s_lshr_b32 {sH}, s2, 4\ns_and_b32 {sI}, s2, 15")
    A(f"s_mul_i32 {sK}, {sH}, 3\ns_add_u32 {sK}, {sK}, {sI}\ns_and_b32 {sK}, {sK}, 15")
    A(f"s_movk_i32 {sS}, {P['R']}\ns_cmp_ge_u32 {sK}, 11\ns_cselect_b32 {sS}, {P['R'] - P['X']}, {sS}")
    A(f"v_mov_b32 v{VZ}, 0\ns_mov_b32 s3, {P['spin']}")
    A(f"s_sub_u32 {sC}, {sW}, 1")
    A(f"s_cmp_lg_u32 {sW}, 0\ns_cbranch_scc1 L_other")
    A('; loader')
    own, pb, SN = P["own"], P["pcs"], P["R"]
    rest = [b for b in range(10, 24) if b not in own and b not in pb]
    RM = sum(1 << b for b in rest)
    dep = lambda v, bs: sum(((v >> i) & 1) << b for i, b in enumerate(bs))
    piece = sorted(dep(k, pb) for k in range(4))
    XD = P["X"]
    assert SN % 4 == 0 and XD % 4 == 0 and NSL % 2 == 0 and L_SC + 64 * SN <= RING0 and list(own) == sorted(own)
    dt = (3 + max(F, Fd)) // 4
    RINGE = RING0 + NSL * 4096
    def sdep(dst, src, bs, tmp):
        i = 0; first = True
        while i < len(bs):
            k = i
            while k + 1 < len(bs) and bs[k + 1] == bs[k] + 1: k += 1
            A(f"s_and_b32 {tmp}, {src}, {((1 << (k - i + 1)) - 1) << i}\ns_lshl_b32 {dst if first else tmp}, {tmp}, {bs[i] - i}")
            if not first: A(f"s_or_b32 {dst}, {dst}, {tmp}")
            first = False; i = k + 1
    assert rest == sorted(rest)
    OM = sum(1 << b for b in own[:P["rot"]])
    def count_in(r, mask):
        if mask == RM and rest[-1] - rest[0] == len(rest) - 1:
            A(f"s_add_u32 {r}, {r}, {1 << rest[0]}"); return
        A(f"s_or_b32 {r}, {r}, {~mask & 0xffffffff}\ns_add_u32 {r}, {r}, 1\ns_and_b32 {r}, {r}, {mask}")
    LV, LG, rC = 20, 28, "s[44:47]"
    A("s_setprio 3")
    A(f"v_lshrrev_b32 v1, 4, v0\nv_xor_b32 v4, v1, v0\nv_and_b32 v4, 15, v4\nv_lshl_add_u32 v4, v1, 4, v4\nv_lshlrev_b32 v{LG}, 4, v4")
    for j in range(1, 4): A(f"v_xor_b32 v{LG+j}, {64*j + piece[j] - 1024*j}, v{LG}")
    A(f"v_lshlrev_b32 v6, 3, v0\nv_mov_b32 v24, {-dt}\nv_bfrev_b32 v25, -2")
    A(f"ds_write_b64 v6, v[24:25] offset:{L_FULL}")
    A(f"v_lshlrev_b32 v1, 2, v0\nds_write_b32 v1, v{VZ} offset:{L_DONE}")
    A(f"ds_read_b128 v[8:11], v{VZ} offset:{L_DONE}")
    sdep("s72", sI, own, "s82")
    A(f"s_lshl_b32 s69, {sH}, 24\ns_or_b32 s72, s72, s69\ns_mov_b32 s76, 0\ns_mov_b32 s77, 0\ns_mov_b32 s70, 0")
    A(f"s_mov_b32 s79, 0\ns_mov_b32 s80, {RING0}\ns_mov_b32 s81, {2 - NSL}")
    A("s_waitcnt lgkmcnt(0)")
    srd(rC, 6, 0x10000000)
    stamp(0)
    def pair(f, lanes, srds, offs, bar=None):
        jp = min(j for j in range(4) if j - f >= 3 - 4 * dt)
        for j in range(8):
            if j == 4: A("s_add_u32 m0, s80, 0x1000")
            if bar is not None and j == min(f - 16, 7): A(f"s_cmp_eq_u32 s81, {6 - NSL}\ns_cbranch_scc1 L_ld_bar{bar}\nL_ld_barx{bar}:")
            A(f"s_waitcnt vmcnt({f-1})")
            A(f"buffer_load_dwordx4 v{lanes[j>>2]+(j&3)}, {srds[j>>2]}, {offs[j>>2]} offen offset:{(j&3)*1024} {pol} lds")
            if j & 3 == jp: A(f"v_add_u32 v24, 1, v24\nds_write_b64 v6, v[24:25] offset:{L_FULL}")
        A(f"s_add_u32 s80, s80, 0x2000\ns_cmp_eq_u32 s80, {RINGE}\ns_cselect_b32 s80, {RING0}, s80\ns_add_u32 s81, s81, 2")
    def static_loop(sfx, f, end=sS, bar=True):
        A(f"L_ld_loop{sfx}:")
        A("s_waitcnt lgkmcnt(0)\nv_min3_u32 v4, v8, v9, v10\nv_min_u32 v4, v4, v11")
        A("s_mov_b32 m0, s80\nv_readfirstlane_b32 s82, v4")
        A(f"ds_read_b128 v[8:11], v{VZ} offset:{L_DONE}")
        A(f"s_cmp_lt_i32 s82, s81\ns_cbranch_scc1 L_ld_full{sfx}")
        for r in ("s75", "s74"):
            A(f"s_or_b32 {r}, s76, s72")
            count_in("s76", RM)
            if OM:
                A(f"s_xor_b32 {r}, {r}, s77")
                count_in("s77", OM)
        pair(f, (LG, LG), (rC, rC), ("s75", "s74"), sfx if bar else None)
        A(f"s_add_u32 s79, s79, 2\ns_cmp_lt_u32 s79, {end}\ns_cbranch_scc1 L_ld_loop{sfx}")
    static_loop("", F)
    A("s_cmp_lg_u32 s70, 0\ns_cbranch_scc1 L_ld_send")
    stamp(4, 8)
    for j in range(4): A(f"v_mov_b32 v{KA+j}, v{LG+j}")
    A(f"v_lshlrev_b32 v{LG}, 4, v0")
    for j in range(1, 4): A(f"v_or_b32 v{LG+j}, {piece[j] - 1024*j}, v{LG}")
    srd(rK, 6, 0x10000000); srd(rC, 8, 0x10000000)
    A("s_mov_b32 s76, 0\ns_mov_b32 s77, 0\ns_mov_b32 s70, 1\ns_mov_b32 s79, 0\ns_branch L_ld_loop")
    A("L_ld_send:")
    def que_read(n):
        A(f"s_and_b32 s83, {n}, 31\ns_lshl_b32 s83, s83, 2\nv_mov_b32 v5, s83\nds_read_b32 v7, v5 offset:{L_QUE}")
    stamp(3)
    A("L_ld_dre:")
    que_read("s79")
    A("L_ld_dyn:")
    A("s_waitcnt lgkmcnt(0)\nv_min3_u32 v4, v8, v9, v10\nv_min_u32 v4, v4, v11\nv_readfirstlane_b32 s73, v7")
    A("s_mov_b32 m0, s80\nv_readfirstlane_b32 s82, v4")
    A(f"ds_read_b128 v[8:11], v{VZ} offset:{L_DONE}")
    A("s_add_u32 s74, s79, 1\ns_lshr_b32 s75, s73, 16\ns_cmp_lg_u32 s75, s74\ns_cbranch_scc1 L_ld_dfull")
    A("s_cmp_lt_i32 s82, s81\ns_cbranch_scc1 L_ld_dfull")
    A("s_and_b32 s73, s73, 0xffff\ns_cmp_ge_u32 s73, 0x4000\ns_cbranch_scc1 L_ld_drain")
    A("s_lshl_b32 s75, s73, 10\ns_or_b32 s75, s75, s69\ns_mov_b32 s79, s74")
    que_read("s79")
    pair(Fd, (KA, LG), (rK, rC), ("s75", "s75"))
    A("s_branch L_ld_dyn")
    A("L_ld_drain:")
    stamp(1)
    A("s_lshl_b32 s82, s79, 1\nv_mov_b32 v25, s82")
    for r in range(dt - 1, -1, -1):
        A(f"s_waitcnt vmcnt({4*r})\nv_add_u32 v24, 1, v24\nds_write_b64 v6, v[24:25] offset:{L_FULL}")
    stamp(2)
    if diag and diag != 6: A(f"s_mov_b32 s94, s79\ns_sub_u32 s96, {P['spin']}, s3")
    dump_stamps()
    A("s_endpgm")
    A("L_ld_full:")
    spin("L_ld_loop")
    A("L_ld_bar:\ns_waitcnt lgkmcnt(0)\ns_barrier\ns_branch L_ld_barx")
    A("L_ld_dfull:")
    spin("L_ld_dre")

    A("L_other:")
    if P["cpf"]:
        A(f"s_cmp_lg_u32 {sW}, 4\ns_cbranch_scc1 L_nopf")
        code_prefetch(220)
        A("L_nopf:")
    A("s_waitcnt lgkmcnt(0)")
    srd(rX, 4, 1152); srd(rWS, 26, 0x400000 if diag else 0x100000)
    A(f"s_load_dword {sT}, s[26:27], {WS_EPOCH}")
    stamp(0)
    A(f"s_cmp_lg_u32 {sW}, 5\ns_cbranch_scc1 L_pre_done")
    A("v_and_b32 v1, 7, v0\nv_lshrrev_b32 v4, 3, v0\nv_lshl_add_u32 v5, v1, 3, v4\nv_lshlrev_b32 v5, 1, v5")
    for k in range(9): A(f"buffer_load_ushort v{X+k}, v5, {rX}, 0 offen offset:{128*k}")
    A(f"s_and_b32 s82, {sI}, 3\ns_mul_i32 s82, s82, 288")
    for k in range(3): A(f"buffer_load_ushort v{XR+k}, v5, {rX}, s82 offen offset:{128*k}")
    srd(rWQ, 10, 576 * 8192)
    A("v_lshlrev_b32 v5, 4, v1\nv_lshl_add_u32 v5, v4, 13, v5")
    A(f"s_lshl_b32 s82, s82, 12\ns_lshl_b32 s83, {sH}, 9\ns_add_u32 s82, s82, s83")
    A(f"s_lshr_b32 s83, {sI}, 2\ns_lshl_b32 s83, s83, 7\ns_add_u32 s82, s82, s83")
    for p in range(18):
        A(f"buffer_load_dwordx4 {vr(RG+4*p)}, v5, {rWQ}, s82 offen {wpol}")
        if p < 17: A("s_add_u32 s82, s82, 0x10000")
    A(f"s_cmp_lg_u32 {sI}, 0\ns_cbranch_scc1 L_pre_done\ns_mov_b64 exec, 1")
    A(f"s_lshl_b32 s82, {sH}, 8\ns_add_u32 s82, s82, {WS_CNT}\nbuffer_store_dword v{VZ}, v{VZ}, {rWS}, s82 offen sc1")
    A("s_mov_b64 exec, -1")
    VWO = 104 + 2
    def wo_prep():
        srd(rWO, 12, 4096 * 1152)
        A(f"s_sub_u32 s82, {sI}, 1\ns_cmp_gt_u32 s82, 8\ns_cselect_b32 s54, 0, s54")
        A("v_lshrrev_b32 v2, 5, v0\nv_lshlrev_b32 v2, 7, v2\nv_bfe_u32 v3, v0, 3, 2\nv_lshl_add_u32 v2, v3, 1, v2")
        A(f"v_mul_u32_u24 v2, 0x480, v2\nv_and_b32 v3, 7, v0\nv_lshl_add_u32 v{VWO}, v3, 4, v2")
        A(f"s_lshl_b32 s82, s82, 7\ns_lshl_b32 s83, {sH}, 3\ns_add_u32 s83, s83, {sC}\ns_mul_i32 s83, s83, {32*1152}\ns_add_u32 s48, s82, s83")
        for t in range(1, 4): A(f"s_add_u32 s{48+t}, s48, {8*t*1152}")
    def wo_loads():
        for t in range(8):
            A(f"buffer_load_dwordx4 {vr(WO+4*t)}, v{VWO}, {rWO}, s{48+(t&3)} offen offset:{(t>>2)*1152} {wpol}")
    A("L_pre_done:")
    A("s_barrier")
    A("v_and_b32 v1, 1, v0\nv_lshlrev_b32 v1, 4, v1\nv_mov_b32 v4, 0xffff\nv_lshlrev_b32 v4, v1, v4\nv_bfe_u32 v5, v0, 1, 2")
    for v in range(4):
        A(f"v_cmp_eq_u32 vcc, {v}, v5\ns_nop 1\nv_cndmask_b32 v{M+v}, 0, v4, vcc")
    A(f"v_bfe_u32 v4, v0, 4, 1\nv_and_b32 v5, 7, v0\nv_lshl_add_u32 v4, v4, 3, v5\nv_lshlrev_b32 v{VPL}, 4, v4")
    A(f"s_cmp_lg_u32 {sW}, 5\ns_cbranch_scc1 L_cons_main")
    stamp(3, 2)
    A("s_waitcnt vmcnt(21)")
    stamp(5, 2)
    for k in range(9): A(f"v_lshlrev_b32 v{X+k}, 16, v{X+k}")
    A(f"v_add_f32 v1, v{X}, v{X+1}")
    for k in range(2, 9): A(f"v_add_f32 v1, v1, v{X+k}")
    wave_sum(1, 2)
    A("s_mov_b32 s82, 0x3ae38e39\ns_mov_b32 s83, 0x44100000")
    def div576(v):
        A(f"v_mul_f32 v2, s82, v{v}\nv_fma_f32 v3, -v2, s83, v{v}\nv_fma_f32 v{v}, v3, s82, v2")
    div576(1)
    A(f"v_sub_f32 v2, v{X}, v1\nv_mul_f32 v4, v2, v2")
    for k in range(1, 9): A(f"v_sub_f32 v2, v{X+k}, v1\nv_fmac_f32 v4, v2, v2")
    wave_sum(4, 2)
    div576(4)
    rbf(1, 1); rbf(4, 4)
    A("v_add_f32 v4, 0x3727c5ac, v4"); rbf(4, 4)
    A("v_sqrt_f32 v5, v4\ns_nop 0\nv_rcp_f32 v6, v5\nv_fma_f32 v3, -v5, v5, v4\nv_mul_f32 v6, 0.5, v6\nv_fma_f32 v5, v3, v6, v5")
    rbf(5, 5)
    A("v_rcp_f32 v6, v5")
    def norm(r):
        A(f"v_sub_f32 v2, v{r}, v1"); rbf(2, 2)
        A(f"v_mul_f32 v3, v2, v6\nv_fma_f32 v4, -v3, v5, v2\nv_fma_f32 v3, v4, v6, v3\nv_cvt_pk_bf16_f32 v{r}, v3, v3")
    A("v_mov_b32 v100, v1\nv_mov_b32 v101, v5\nv_mov_b32 v102, v6\ns_waitcnt vmcnt(18)")
    for k in range(3):
        A(f"v_lshlrev_b32 v{XR+k}, 16, v{XR+k}"); norm(XR + k)
    A("s_nop 0")
    stamp(6, 2)
    for p in range(18):
        bbuild(XR + p // 8, p % 8, B + 4 * (p & 1))
        A(f"s_waitcnt vmcnt({17 - p})\ns_nop 0")
        mfma(DQ, RG + 4 * p, B + 4 * (p & 1), "0" if p == 0 else None)
    A("s_waitcnt lgkmcnt(0)")
    tagprep()
    A(f"s_lshl_b32 s82, {sH}, 12\ns_and_b32 s83, {sI}, 3\ns_lshl_b32 s83, s83, 10\ns_add_u32 s82, s82, s83")
    A(f"s_lshr_b32 s83, {sI}, 2\ns_lshl_b32 s83, s83, 8\ns_add_u32 s82, s82, s83")
    for i in range(4): A(f"v_mov_b32_dpp v{V+i}, v{DQ+i} row_ror:8 row_mask:0xf bank_mask:0xf")
    A("s_nop 0")
    for i in range(4): A(f"v_permlane32_swap_b32 v{V+i}, v{V+4+i}")
    for i in range(4): A(f"v_add_f32 v{K+i}, v{DQ+i}, v{V+4+i}")
    for i in range(4): A(f"v_bfi_b32 v{K+i}, 15, v{VT}, v{K+i}")
    stamp(7, 2)
    A("s_mov_b64 exec, 0x00ff00ff\ns_waitcnt vmcnt(0)")
    A(f"buffer_store_dwordx4 {vr(K)}, v{VPL}, {rWS}, s82 offen sc1")
    A("s_mov_b64 exec, -1")
    stamp(1)
    A("L_qgather:")
    A(f"v_lshlrev_b32 v4, 4, v0\ns_lshl_b32 s82, {sH}, 12")
    if P["qdelay"] is not None:
        A(f"L_qdel:\nds_read_b32 v1, v{VZ} offset:{L_FULL}\ns_waitcnt lgkmcnt(0)\nv_cmp_le_i32 vcc, {P['qdelay']}, v1\ns_cbranch_vccnz L_qdel_ok")
        A("s_sleep 2")
        spin("L_qdel")
        A("L_qdel_ok:")
    A("L_qpoll:")
    for p in range(4): A(f"buffer_load_dwordx4 {vr(RG+4*p)}, v4, {rWS}, s82 offen offset:{p*1024} sc1")
    for p in range(4):
        A(f"s_waitcnt vmcnt({3-p})")
        tagchk(1, range(RG + 4 * p, RG + 4 * p + 4), p == 0)
    A("v_and_b32 v1, 15, v1\nv_cmp_ne_u32 vcc, 0, v1")
    A("s_cbranch_vccz L_qready\ns_sleep 2")
    spin("L_qpoll")
    A("L_qready:")
    stamp(2)
    for i in range(4): A(f"v_add_f32 v{RG+i}, v{RG+i}, v{RG+4+i}\nv_add_f32 v{RG+8+i}, v{RG+8+i}, v{RG+12+i}")
    for i in range(4): A(f"v_add_f32 v{RG+i}, v{RG+i}, v{RG+8+i}")
    A("v_lshrrev_b32 v4, 3, v0\nv_and_b32 v5, 7, v0\nv_lshl_add_u32 v4, v4, 5, v5\nv_lshlrev_b32 v4, 1, v4")
    A(f"v_cvt_pk_bf16_f32 v{RG}, v{RG}, v{RG+1}\nv_cvt_pk_bf16_f32 v{RG+4}, v{RG+2}, v{RG+3}")
    A(f"ds_write_b16 v4, v{RG} offset:{L_Q}\nds_write_b16_d16_hi v4, v{RG} offset:{L_Q+16}")
    A(f"ds_write_b16 v4, v{RG+4} offset:{L_Q+32}\nds_write_b16_d16_hi v4, v{RG+4} offset:{L_Q+48}")
    A(f"v_mov_b32 v5, 1\ns_waitcnt lgkmcnt(0)\nds_write_b32 v{VZ}, v5 offset:{L_QFLAG}")
    A(f"s_cmp_ge_u32 {sK}, 11\ns_cbranch_scc1 L_ffn\nL_ffn_done:")
    if P["pre"]:
        A('; one plain read of the lines this workgroup publishes at the end')
        A("v_lshrrev_b32 v5, 4, v0\nv_and_b32 v6, 15, v0\nv_lshlrev_b32 v6, 4, v6\nv_lshl_add_u32 v5, v5, 12, v6")
        A(f"s_lshl_b32 s82, {sH}, 14\ns_lshl_b32 s83, {sI}, 8\ns_add_u32 s82, s82, s83\ns_add_u32 s82, s82, {WS_P}")
        A(f"s_lshl_b32 s80, {sH}, 12\ns_lshl_b32 s83, {sI}, 6\ns_add_u32 s80, s80, s83\ns_add_u32 s80, s80, {WS_ML}")
        A(f"s_lshl_b32 s81, {sI}, 12\ns_lshl_b32 s83, {sH}, 8\ns_add_u32 s81, s81, s83\ns_add_u32 s81, s81, {WS_Y - 4096}")
        A("v_lshlrev_b32 v4, 10, v0")
        A(f"buffer_load_dwordx4 v[24:27], v5, {rWS}, s82 offen\ns_mov_b64 exec, 15\nbuffer_load_dwordx4 v[28:31], v4, {rWS}, s80 offen")
        A(f"s_mov_b64 exec, 0xffff\nbuffer_load_dwordx4 v[32:35], v6, {rWS}, s81 offen")
        A("s_mov_b64 exec, -1\ns_waitcnt vmcnt(0)")
    A(f"s_mov_b32 s79, {sS}\ns_mul_i32 s72, {sH}, 3\ns_sub_u32 s72, 11, s72")
    A(f"s_lshl_b32 s78, {sH}, 8\ns_add_u32 s78, s78, {WS_CNT}\nv_mov_b32 v4, s78\nv_mov_b32 v5, 1\ns_mov_b64 exec, 1")
    def que_write(val):
        if val == "s80":
            A('; pool position -> (row s73, column s71): the donated rows of five columns, then the last rows of all sixteen')
            A(f"s_mul_i32 s73, s80, 52429\ns_lshr_b32 s73, s73, 18\ns_mul_i32 s71, s73, 5\ns_sub_u32 s71, s80, s71\ns_add_u32 s71, s71, s72\ns_add_u32 s73, s73, {SN - XD}")
            A(f"s_add_u32 s74, s80, {16*SN - 5*XD}\ns_lshr_b32 s75, s74, 4\ns_cmp_lt_u32 s80, {5*XD}\ns_cselect_b32 s73, s73, s75\ns_cselect_b32 s71, s71, s74")
            if OM: A(f"s_and_b32 s74, s73, {(1 << P['rot']) - 1}\ns_xor_b32 s71, s71, s74")
            sdep("s74", "s73", [b - 10 for b in rest], "s75")
            sdep("s73", "s71", [b - 10 for b in own], "s75")
            A("s_or_b32 s74, s74, s73"); val = "s74"
        A(f"s_and_b32 s82, s79, 31\ns_lshl_b32 s82, s82, 2\ns_add_u32 s79, s79, 1\ns_lshl_b32 s83, s79, 16\ns_or_b32 s83, s83, {val}")
        A(f"v_mov_b32 v1, s82\nv_mov_b32 v2, s83\nds_write_b32 v1, v2 offset:{L_QUE}")
    def demand(lbl, n, ahead):
        A(f"{lbl}:\nds_read_b32 v1, v{VZ} offset:{L_FULL}\ns_waitcnt lgkmcnt(0)\nv_readfirstlane_b32 s78, v1")
        A(f"s_add_u32 s78, s78, {dt + 2*ahead}\ns_ashr_i32 s78, s78, 1\ns_cmp_le_i32 {n}, s78\ns_cbranch_scc1 {lbl}_go\ns_sleep 2")
        spin(lbl)
        A(f"{lbl}_go:")
    npool = 5 * XD + 16 * (256 - SN)
    c0 = 0; t0 = 0; chain = []
    for cnt, sz in P["segs"]:
        chain.append((c0, t0, sz)); c0 += cnt; t0 += cnt * sz
        assert sz + P["AHA"] + 2 < 32
    nclaim = c0 + npool - t0
    assert t0 < npool and P["AH"] >= 3
    demand("L_ca", "s79", P["AHA"])
    A(f"global_atomic_add v20, v4, v5, s[26:27] {P['apol']}\ns_waitcnt vmcnt(0)\nv_readfirstlane_b32 s78, v20")
    A(f"s_cmp_ge_u32 s78, {c0}\ns_cbranch_scc1 L_ca_one")
    for i, (c, t, sz) in enumerate(chain):
        if i == 0: A(f"s_movk_i32 s80, {t - c*sz}\ns_mov_b32 s81, {sz}")
        else: A(f"s_cmp_ge_u32 s78, {c}\ns_cselect_b32 s80, {t - c*sz}, s80\ns_cselect_b32 s81, {sz}, s81")
    A("s_mul_i32 s78, s78, s81\ns_add_u32 s80, s80, s78\nL_ca_put:")
    que_write("s80")
    A("s_add_u32 s80, s80, 1\ns_sub_u32 s81, s81, 1\ns_cmp_lg_u32 s81, 0\ns_cbranch_scc1 L_ca_put\ns_branch L_ca")
    A(f"L_ca_one:\ns_cmp_ge_u32 s78, {nclaim}\ns_cbranch_scc1 L_cl_end\ns_add_u32 s80, s78, {t0 - c0}")
    que_write("s80")
    A("s_mov_b32 s76, s79\ns_add_u32 s77, s76, 4")
    for k in range(4):
        demand(f"L_cl_{k}", "s76", P["AH"])
        A(f"global_atomic_add v{20+k}, v4, v5, s[26:27] {P['apol']}")
        A(f"s_add_u32 s76, s76, 1\ns_cmp_lt_u32 s76, s77\ns_cbranch_scc1 L_cl_{(k+1)%4}")
        A(f"s_waitcnt vmcnt(3)\nv_readfirstlane_b32 s80, v{20+(k+1)%4}")
        A(f"s_cmp_ge_u32 s80, {nclaim}\ns_cbranch_scc1 L_cl_end\ns_add_u32 s80, s80, {t0 - c0}")
        que_write("s80")
    A("s_branch L_cl_0")
    A("L_cl_end:")
    que_write("0xffff")
    A("s_mov_b64 exec, -1")
    A(f"s_cmp_lg_u32 {sI}, 10\ns_cbranch_scc1 L_e_done\ns_cmp_gt_u32 {sH}, 8\ns_cbranch_scc1 L_e_done")
    srd(rOUT, 22, 1152)
    A("v_lshrrev_b32 v4, 5, v0\nv_and_b32 v5, 3, v0\nv_lshl_add_u32 v4, v4, 2, v5\nv_bfe_u32 v5, v0, 2, 3\nv_lshl_add_u32 v4, v4, 3, v5")
    A(f"v_lshlrev_b32 v2, 1, v4\ns_lshl_b32 s79, {sH}, 7")
    A(f"buffer_load_ushort v3, v2, {rX}, s79 offen")
    A(f"v_lshlrev_b32 v4, 2, v0\ns_lshl_b32 s82, {sH}, 12")
    def issue(b):
        for p in range(16): A(f"buffer_load_dword v{b+p}, v4, {rWS}, s80 offen offset:{256*p} {P['hl']}")
    def check(b, dst, behind, ok):
        for p in range(0, 16, 2):
            A(f"s_waitcnt vmcnt({behind+14-p})")
            tagchk(1, (b + p, b + p + 1), p == 0)
            if p == 0: A(f"v_add_f32 v{dst}, v{b}, v{b+1}")
            else: A(f"v_add_f32 v{dst}, v{dst}, v{b+p}\nv_add_f32 v{dst}, v{dst}, v{b+p+1}")
        tagtest(1)
        A(f"s_cbranch_vccz {ok}")
    A(f"s_mul_i32 s81, {sH}, {72*256}\ns_add_u32 s81, s81, {WS_F}")
    A("L_f_ffn:\ns_mov_b32 s80, s81\nv_mov_b32 v22, 0")
    def f_load(p):
        A(f"buffer_load_dword v{RG+p}, v4, {rWS}, s80 offen offset:{256*(p&15)} sc1")
        if p & 15 == 15: A("s_add_u32 s80, s80, 0x1000")
    for p in range(48): f_load(p)
    for p in range(0, 72, 2):
        A(f"s_waitcnt vmcnt({min(46, 70 - p)})")
        if p + 48 < 72: f_load(p + 48); f_load(p + 49)
        tagchk(1, (RG + p, RG + p + 1), p == 0)
        A(f"v_add_f32 v22, v22, v{RG+p}\nv_add_f32 v22, v22, v{RG+p+1}")
    tagtest(1)
    A("s_cbranch_vccz L_f_ffn_ok\ns_sleep 16")
    spin("L_f_ffn")
    A("L_f_ffn_ok:")
    rbf(22, 22)
    A(f"v_mul_f32 v5, {hex(LOG2E ^ 0x80000000)}, v22\nv_exp_f32 v5, v5\ns_nop 0\nv_add_f32 v5, 1.0, v5\nv_rcp_f32 v5, v5\ns_nop 0\nv_mul_f32 v22, v22, v5")
    rbf(22, 22)
    A("v_lshlrev_b32 v3, 16, v3")
    A(f"L_f_wait:\nds_read_b64 v[24:25], v{VZ} offset:{L_FULL}\ns_waitcnt lgkmcnt(0)\nv_cmp_ge_i32 vcc, v24, v25\ns_cbranch_vccnz L_f_go\ns_sleep 4")
    spin("L_f_wait")
    A("L_f_go:")
    A(f"s_add_u32 s80, s82, {WS_Y}")
    issue(RG)
    A("L_f_att:")
    issue(RG + 16); check(RG, 23, 16, "L_f_att_ok"); issue(RG); check(RG + 16, 23, 16, "L_f_att_ok")
    spin("L_f_att")
    A("L_f_att_ok:")
    rbf(23, 23)
    A("v_mul_f32 v23, v23, v22"); rbf(23, 23)
    A(f"v_add_f32 v23, v23, v3\nv_cvt_pk_bf16_f32 v23, v23, v23\nbuffer_store_short v23, v2, {rOUT}, s79 offen {P['opol']}")
    A(f"s_cmp_lg_u32 {sH}, 0\ns_cbranch_scc1 L_e_done")
    A(f"s_mov_b64 exec, 1\nv_mov_b32 v4, {WS_EPOCH}\nglobal_store_dword v4, v{VT}, s[26:27] sc1\ns_mov_b64 exec, -1\ns_branch L_e_done")

    A('; consumers')
    A("L_cons_main:")
    VSC = 148
    A("v_and_b32 v1, 15, v0\nv_lshrrev_b32 v4, 4, v0\nv_xor_b32 v5, v1, v4\nv_lshlrev_b32 v5, 4, v5")
    A(f"v_lshl_add_u32 v{KA}, v1, 8, v5")
    for ks in range(1, 4): A(f"v_xor_b32 v{KA+ks}, {64*ks}, v{KA}")
    A(f"v_lshlrev_b32 v5, 4, v1\nv_lshl_add_u32 v{VA}, v4, 10, v5")
    A(f"v_mov_b32 v{Vm}, 0xff800000\nv_mov_b32 v{VmL}, 0xff800000\nv_mov_b32 v{Vl}, 0")
    for i in range(4): A(f"v_mov_b32 v{O+i}, 0")
    A(f"s_lshl_b32 s82, {sC}, 2\nv_mov_b32 v{VDA}, s82")
    if diag == 3:
        for i in range(3): A(f"v_mov_b32 v{225+i}, 0")
        A("s_mov_b32 s86, 0")
    A(f"v_lshrrev_b32 v2, 3, v0\nv_lshlrev_b32 v2, 3, v2\ns_lshl_b32 s82, {sC}, 6\nv_add_u32 v{VSC}, s82, v2")
    A("v_bfe_u32 v5, v0, 3, 1\nv_lshlrev_b32 v5, 8, v5\nv_lshl_add_u32 v5, v4, 4, v5")
    A(f"s_mov_b32 s72, {hex(SCALE)}\ns_mov_b32 s73, {hex(LOG2E)}\ns_mov_b32 s74, 0xffff0000")
    A(f"s_mov_b32 s76, {sC}\ns_lshl_b32 s77, {sC}, 12\ns_add_u32 s77, s77, {RING0}\ns_mov_b32 s78, 0")
    A(f"s_mov_b32 s60, {sS}\ns_lshl_b32 s61, {sS}, 1")
    assert L_SC + 64 * (SN - XD - NSL - 8) >= L_Y + 2048
    wo_prep()
    MA, MRG = X, RG
    for i in range(1, 4):
        A(f"s_add_u32 s82, {sC}, {i}\ns_and_b32 s82, s82, 3\ns_lshl_b32 s83, s82, 9\ns_lshl_b32 s82, s82, 10")
        A(f"v_lshl_add_u32 v{MA+2*i-2}, v0, 3, s83\nv_lshl_add_u32 v{MA+2*i-1}, v0, 4, s82")
    A(f"v_lshrrev_b32 v2, 4, v0\nv_and_b32 v3, 15, v0\nv_lshlrev_b32 v3, 4, v3\nv_lshl_add_u32 v{MA+6}, v2, 12, v3")
    A(f"v_and_b32 v3, 8, v0\nv_lshl_add_u32 v{MA+7}, v2, 10, v3")
    A(f"s_lshl_b32 s56, {sH}, 14\ns_add_u32 s56, s56, {WS_P}\ns_lshl_b32 s83, {sI}, 8\ns_add_u32 s58, s56, s83")
    A(f"s_lshl_b32 s83, {sC}, 12\ns_add_u32 s56, s56, s83")
    A(f"s_lshl_b32 s57, {sH}, 12\ns_add_u32 s57, s57, {WS_ML}\ns_lshl_b32 s83, {sI}, 6\ns_add_u32 s59, s83, s57")
    A(f"s_lshl_b32 s83, {sC}, 10\ns_add_u32 s57, s57, s83\ns_mov_b32 s70, -1\ns_brev_b32 s75, -2")
    def merge_reads():
        A(f"ds_read_b32 v{MRG+18}, v{VZ} offset:{L_QFLAG+4}")
        for i in range(3): A(f"ds_read_b64 {vr(MRG+12+2*i, 2)}, v{MA+2*i} offset:{L_MML}")
        for i in range(3): A(f"ds_read_b128 {vr(MRG+4*i)}, v{MA+2*i+1} offset:{L_MO}")
    A(f"L_qwait:\nds_read_b32 v1, v{VZ} offset:{L_QFLAG}\ns_waitcnt lgkmcnt(0)\nv_readfirstlane_b32 s79, v1")
    A("s_cmp_lg_u32 s79, 0\ns_cbranch_scc1 L_qgo\ns_sleep 1")
    spin("L_qwait")
    A("L_qgo:")
    tagprep()
    for ks in range(4): A(f"ds_read_b128 {vr(Q+4*ks)}, v5 offset:{L_Q + 64*ks}")
    A("s_waitcnt lgkmcnt(0)")
    stamp(4)
    def landed(lbl, item):
        A(f"s_cmp_lt_i32 {item}, s78\ns_cbranch_scc1 {lbl}_go")
        A(f"{lbl}_poll:\nds_read_b32 v22, v{VZ} offset:{L_FULL}\ns_waitcnt lgkmcnt(0)\nv_readfirstlane_b32 s78, v22")
        A(f"s_cmp_lt_i32 {item}, s78\ns_cbranch_scc1 {lbl}_go")
        spin(f"{lbl}_poll")
        A(f"{lbl}_go:")
    ntr = [0]
    def trace():
        if diag == 3:
            ntr[0] += 1; n = ntr[0]
            A(f"s_memrealtime s[84:85]\ns_waitcnt lgkmcnt(0)\ns_and_b32 m0, s86, 63\ns_cmp_lt_u32 s86, 64\ns_cbranch_scc0 L_tr{n}a")
            A(f"v_writelane_b32 v225, s84, m0\ns_branch L_tr{n}c\nL_tr{n}a:\ns_cmp_lt_u32 s86, 128\ns_cbranch_scc0 L_tr{n}b\nv_writelane_b32 v226, s84, m0\ns_branch L_tr{n}c")
            A(f"L_tr{n}b:\nv_writelane_b32 v227, s84, m0\nL_tr{n}c:\ns_add_u32 s86, s86, 1")
    def slot_next(step):
        A(f"s_add_u32 s77, s77, {step}\ns_sub_u32 s79, s77, {NSL*4096}\ns_cmp_ge_u32 s77, {RINGE}\ns_cselect_b32 s77, s79, s77")
    def k_reads():
        for ks in range(4): A(f"v_add_u32 v{AD+ks}, s77, v{KA+ks}\nds_read_b128 {vr(K+4*ks)}, v{AD+ks}")
    def qk():
        for ks in range(4):
            A(f"s_waitcnt lgkmcnt({3-ks})")
            mfma(S, K + 4 * ks, Q + 4 * ks, "0" if ks == 0 else None)
    def v_reads(off):
        for r in range(4): A(f"ds_read_b128 {vr(V+4*r)}, v{AD+4} offset:{off + 256*r}")
    def softmax(lbl):
        A(f"v_max3_f32 v22, v{S}, v{S+1}, v{S+2}\nv_max_f32 v22, v22, v{S+3}")
        A(f"v_cmp_gt_f32 vcc, v22, v{Vm}\ns_cbranch_vccnz {lbl}_rescale\n{lbl}_cont:")
        for i in range(4): A(f"v_fma_f32 v{PP+i}, v{S+i}, s73, -v{VmL}")
        for i in range(4): A(f"v_exp_f32 v{PP+i}, v{PP+i}")
        A(f"s_waitcnt lgkmcnt(0)\nds_write_b32 v{VDA}, v{AD} offset:{L_DONE}")
    def pv():
        for i in range(4):
            A(f"v_cvt_pk_bf16_f32 v22, v{PP+i}, v{PP+i}")
            for v in range(4): A(f"v_and_b32 v{B+4*i+v}, v22, v{M+v}")
            A(f"v_add_f32 v{Vl}, v{Vl}, v{PP+i}")
            if i > 0: mfma(O, V + 4 * (i - 1), B + 4 * (i - 1))
        A("s_nop 0")
        mfma(O, V + 12, B + 12)
    def rescale(lbl):
        A(f"{lbl}_rescale:")
        for op in ("v_permlane16_swap_b32", "v_permlane32_swap_b32"):
            A(f"v_mov_b32 v23, v22\ns_nop 1\n{op} v23, v22\nv_max_f32 v22, v22, v23")
        A(f"v_max_f32 v{Vm}, v{Vm}, v22\nv_mul_f32 v22, s73, v{Vm}\nv_sub_f32 v23, v{VmL}, v22\nv_exp_f32 v23, v23\nv_mov_b32 v{VmL}, v22")
        A(f"v_mul_f32 v{Vl}, v{Vl}, v23")
        for i in range(4): A(f"v_mul_f32 v{O+i}, v{O+i}, v23")
        A(f"s_branch {lbl}_cont")
    A("L_k:")
    landed("L_k", "s76")
    trace()
    k_reads()
    slot_next(0x4000)
    A(f"s_add_u32 s76, s76, 1\nv_mov_b32 v22, s76\ns_add_u32 s76, s76, 3")
    qk()
    A(f"ds_write_b32 v{VDA}, v22 offset:{L_DONE}\ns_mov_b32 exec_lo, 0x01010101\ns_mov_b32 exec_hi, 0x01010101\ns_nop 4")
    for i in range(4): A(f"v_cvt_pk_bf16_f32 v{S+i}, 0, v{S+i}")
    for i in range(4): A(f"v_mul_f32 v{S+i}, s72, v{S+i}")
    A(f"v_cvt_pk_bf16_f32 v22, v{S}, v{S+1}\nv_cvt_pk_bf16_f32 v23, v{S+2}, v{S+3}")
    A(f"ds_write_b64 v{VSC}, v[22:23] offset:{L_SC}\ns_mov_b64 exec, -1\nv_add_u32 v{VSC}, 0x100, v{VSC}")
    A("s_cmp_lt_u32 s76, s60\ns_cbranch_scc1 L_k")
    A(f"s_lshl_b32 s82, s60, 6\nv_subrev_u32 v{VSC}, s82, v{VSC}")
    A("L_v:")
    landed("L_v", "s76")
    trace()
    A(f"ds_read_b64 v[22:23], v{VSC} offset:{L_SC}\nv_add_u32 v{AD+4}, s77, v{VA}")
    v_reads(0)
    slot_next(0x4000)
    A(f"v_add_u32 v{VSC}, 0x100, v{VSC}\ns_add_u32 s76, s76, 1\nv_mov_b32 v{AD}, s76\ns_add_u32 s76, s76, 3")
    A(f"s_waitcnt lgkmcnt(4)\nv_lshlrev_b32 v{S}, 16, v22\nv_and_b32 v{S+1}, s74, v22\nv_lshlrev_b32 v{S+2}, 16, v23\nv_and_b32 v{S+3}, s74, v23")
    softmax("L_v"); pv()
    A("s_cmp_lt_u32 s76, s61\ns_cbranch_scc1 L_v")
    A(f"s_add_u32 s76, s76, {sC}\ns_lshl_b32 s82, {sC}, 12")
    slot_next("s82")
    A("L_c_top:\ns_cmp_lt_i32 s76, s78\ns_cbranch_scc1 L_c_go\ns_cmp_ge_i32 s76, s75\ns_cbranch_scc1 L_c_exit")
    A(f"L_c_poll:\nds_read_b64 v[22:23], v{VZ} offset:{L_FULL}\ns_waitcnt lgkmcnt(0)")
    A("v_readfirstlane_b32 s78, v22\nv_readfirstlane_b32 s75, v23\ns_add_u32 s70, s75, 6")
    A("s_cmp_lt_i32 s76, s78\ns_cbranch_scc1 L_c_go\ns_cmp_ge_i32 s76, s75\ns_cbranch_scc1 L_c_exit")
    spin("L_c_poll")
    A("L_c_vwait:")
    A(f"ds_read_b64 v[22:23], v{VZ} offset:{L_FULL}\ns_waitcnt lgkmcnt(0)\nv_readfirstlane_b32 s78, v22\nv_readfirstlane_b32 s75, v23")
    A("s_add_u32 s70, s75, 6\ns_cmp_lt_i32 s82, s78\ns_cbranch_scc1 L_c_v")
    spin("L_c_vwait")
    rescale("L_v"); rescale("L_c")
    A("L_c_go:")
    trace(); trace()
    k_reads()
    A(f"v_add_u32 v{AD+4}, s77, v{VA}")
    slot_next(0x8000)
    qk()
    A("s_add_u32 s82, s76, 1\ns_cmp_lt_i32 s82, s78\ns_cbranch_scc0 L_c_vwait\nL_c_v:")
    v_reads(4096)
    A(f"s_add_u32 s76, s76, 2\nv_mov_b32 v{AD}, s76\ns_add_u32 s76, s76, 6")
    for i in range(4): A(f"v_cvt_pk_bf16_f32 v{S+i}, 0, v{S+i}")
    for i in range(4): A(f"v_mul_f32 v{S+i}, s72, v{S+i}")
    for i in range(4): A(f"v_cvt_pk_bf16_f32 v{S+i}, 0, v{S+i}")
    softmax("L_c")
    A("s_cmp_lg_u32 s76, s70\ns_cbranch_scc1 L_c_pvb\ns_mov_b32 s61, 0")
    merge_reads()
    A("L_c_pvb:")
    pv()
    A("s_branch L_c_top")
    A("L_c_exit:")
    if diag == 3:
        A(f"s_lshl_b32 s84, s2, 2\ns_add_u32 s84, s84, {sC}\ns_lshl_b32 s84, s84, 10\ns_add_u32 s84, s84, {WS_DIAG + 0x20000}\nv_lshlrev_b32 v1, 2, v0")
        for i in range(3): A(f"buffer_store_dword v{225+i}, v1, {rWS}, s84 offen offset:{256*i}")
        A(f"buffer_store_dword v{VZ}, v1, {rWS}, s84 offen offset:768")
    stamp(5)
    for op in ("v_permlane16_swap_b32", "v_permlane32_swap_b32"):
        A(f"v_mov_b32 v23, v{Vl}\ns_nop 1\n{op} v23, v{Vl}\nv_add_f32 v{Vl}, v{Vl}, v23")
    A("s_cmp_eq_u32 s61, 0\ns_cbranch_scc1 L_e_dir")
    A(f"s_lshr_b32 s82, s75, 1\ns_sub_u32 s82, s82, 1\ns_and_b32 s82, s82, 3\ns_cmp_eq_u32 s82, {sC}\ns_cbranch_scc1 L_e_re")
    A(f"s_lshl_b32 s82, {sC}, 10\nv_lshl_add_u32 v4, v0, 4, s82\nds_write_b128 v4, {vr(O)} offset:{L_MO}")
    A(f"s_lshl_b32 s82, {sC}, 9\nv_lshl_add_u32 v4, v0, 3, s82\nv_mov_b32 v22, v{VmL}\nv_mov_b32 v23, v{Vl}\nds_write_b64 v4, v[22:23] offset:{L_MML}")
    A(f"v_mov_b32 v1, 1\ns_mov_b64 exec, 1\nds_add_u32 v{VZ}, v1 offset:{L_QFLAG+4}\ns_mov_b64 exec, -1")
    wo_loads()
    A(f"L_e_wait:\nds_read_b32 v1, v{VZ} offset:{L_QFLAG+12}\ns_waitcnt lgkmcnt(0)\nv_cmp_ne_u32 vcc, 0, v1\ns_cbranch_vccnz L_e_l1p")
    spin("L_e_wait")
    A("L_e_re:")
    merge_reads()
    A(f"L_e_dir:\ns_waitcnt lgkmcnt(3)\nv_cmp_ne_u32 vcc, 3, v{MRG+18}\nv_max3_f32 v22, v{MRG+12}, v{MRG+14}, v{MRG+16}\ns_cbranch_vccz L_e_go")
    spin("L_e_re")
    A(f"L_e_go:\nv_max_f32 v22, v22, v{VmL}")
    A(f"v_sub_f32 v{VmL}, v{VmL}, v22")
    for c in range(3): A(f"v_sub_f32 v{MRG+12+2*c}, v{MRG+12+2*c}, v22")
    A(f"v_exp_f32 v{VmL}, v{VmL}")
    for c in range(3): A(f"v_exp_f32 v{MRG+12+2*c}, v{MRG+12+2*c}")
    for i in range(4): A(f"v_mul_f32 v{O+i}, v{VmL}, v{O+i}")
    A("s_waitcnt lgkmcnt(0)")
    for c in range(3):
        for i in range(4): A(f"v_fmac_f32 v{O+i}, v{MRG+12+2*c}, v{MRG+4*c+i}")
    for i in range(4): tagput(O + i)
    A(f"buffer_store_dwordx4 {vr(O)}, v{MA+6}, {rWS}, s58 offen {P['hs']}")
    A(f"v_mul_f32 v23, v{VmL}, v{Vl}")
    for c in range(3): A(f"v_fmac_f32 v23, v{MRG+12+2*c}, v{MRG+13+2*c}")
    tagput(22); tagput(23)
    A("s_mov_b32 exec_lo, 0x01010101\ns_mov_b32 exec_hi, 0x01010101")
    A(f"buffer_store_dwordx2 v[22:23], v{MA+7}, {rWS}, s59 offen {P['hs']}\ns_mov_b64 exec, -1")
    A(f"v_mov_b32 v1, 1\nds_write_b32 v{VZ}, v1 offset:{L_QFLAG+12}")
    wo_loads()
    A("L_e_l1p:\ns_mov_b32 s76, s56\ns_mov_b32 s77, s57\nv_lshlrev_b32 v6, 2, v0")
    A("L_e_l1:\ns_waitcnt lgkmcnt(0)")
    stamp(6); stamp(6, 5)
    A(f"s_sub_u32 s78, {sI}, 1\ns_cmp_gt_u32 s78, 8\ns_cbranch_scc1 L_e_done")
    A("v_and_b32 v4, 15, v0\nv_lshlrev_b32 v4, 6, v4\nv_lshrrev_b32 v5, 5, v0\nv_lshl_add_u32 v4, v5, 3, v4")
    acc = (S, S + 1, S + 2, S + 3)
    def l1_issue(b, ml):
        A(f"buffer_load_dwordx2 {vr(ml, 2)}, v4, {rWS}, s77 offen {P['hl']}")
        for p in range(16): A(f"buffer_load_dword v{b+p}, v6, {rWS}, s76 offen offset:{256*p} {P['hl']}")
    def l1_check(b, ml, behind):
        A(f"s_waitcnt vmcnt({behind+16})\nv_mov_b32 v7, v{ml}")
        tagchk(1, (ml, ml + 1), True)
        A("v_and_b32 v2, 0xff, v1\nv_cmp_ne_u32 vcc, 0, v2\ns_cbranch_vccnz L_l1_again")
        for i, r in enumerate((8, 4, 2, 1)):
            A(f"v_mov_b32 v{acc[i]}, 0" + ("" if i == 0 else "\ns_nop 0"))
            A(f"v_max_f32_dpp v7, v7, v7 row_ror:{r} row_mask:0xf bank_mask:0xf")
        A(f"v_sub_f32 v22, v{ml}, v7\nv_exp_f32 v22, v22\ns_nop 0\nv_mul_f32 v23, v22, v{ml+1}")
        for p in range(0, 16, 2):
            A(f"s_waitcnt vmcnt({behind+14-p})")
            tagchk(1, (b + p, b + p + 1))
            if p < 8: A(f"v_add_f32_dpp v23, v23, v23 row_ror:{8 >> (p // 2)} row_mask:0xf bank_mask:0xf")
            if p == 8: A("v_rcp_f32 v23, v23")
            for x in (p, p + 1): A(f"v_fmac_f32_dpp v{acc[x&3]}, v22, v{b+x} row_newbcast:{x} row_mask:0xf bank_mask:0xf")
        tagtest(1)
        A(f"v_add_f32 v2, v{S}, v{S+1}\nv_add_f32 v3, v{S+2}, v{S+3}\ns_cbranch_vccz L_l1_ok")
    A("L_l1_poll:")
    l1_issue(RG, RG + 32); l1_check(RG, RG + 32, 0)
    A("L_l1_again:")
    spin("L_l1_poll")
    A("L_l1_ok:")
    stamp(3, 5)
    A("v_add_f32 v1, v2, v3\nv_mul_f32 v1, v1, v23\nv_cvt_pk_bf16_f32 v1, v1, v1\ns_nop 1")
    for t in range(8): A(f"v_mov_b32_dpp v{V+t}, v1 row_newbcast:{t} row_mask:0xf bank_mask:0x3")
    for t in range(8): A(f"v_mov_b32_dpp v{V+t}, v1 row_newbcast:{8+t} row_mask:0xf bank_mask:0xc")
    for t in range(8):
        for v in range(4): A(f"v_and_b32 v{B+4*(t&3)+v}, v{V+t}, v{M+v}")
        if t > 0: mfma(S, WO + 4 * (t - 1), B + 4 * ((t - 1) & 3), "0" if t == 1 else None)
    A("s_nop 0")
    mfma(S, WO + 28, B + 12)
    stamp(5, 5)
    A(f"s_lshl_b32 s82, {sC}, 9\nv_lshrrev_b32 v4, 5, v0\nv_lshl_add_u32 v4, v4, 8, v{VPL}\nv_add_u32 v4, s82, v4\nv_mov_b32 v1, 1")
    exec_valid()
    A(f"s_lshl_b32 s82, s78, 12\ns_lshl_b32 s83, {sH}, 8\ns_add_u32 s82, s82, s83\ns_add_u32 s82, s82, {WS_Y}")
    A(f"ds_write_b128 v4, {vr(S)} offset:{L_Y}\ns_mov_b64 exec, 1")
    A(f"ds_add_rtn_u32 v1, v{VZ}, v1 offset:{L_QFLAG+8}\ns_mov_b64 exec, -1")
    for i in range(8): A(f"ds_read_b32 v{K+i}, v6 offset:{L_Y + 256*i}")
    A("s_waitcnt lgkmcnt(8)\nv_readfirstlane_b32 s78, v1\ns_cmp_lg_u32 s78, 3\ns_cbranch_scc1 L_e_done")
    A(f"s_waitcnt lgkmcnt(4)\nv_add_f32 v{K}, v{K}, v{K+1}\nv_add_f32 v{K+2}, v{K+2}, v{K+3}")
    A(f"s_waitcnt lgkmcnt(0)\nv_add_f32 v{K+4}, v{K+4}, v{K+5}\nv_add_f32 v{K+6}, v{K+6}, v{K+7}")
    A(f"v_add_f32 v{K}, v{K}, v{K+2}\nv_add_f32 v{K+4}, v{K+4}, v{K+6}\nv_add_f32 v22, v{K}, v{K+4}")
    tagput(22)
    A(f"buffer_store_dword v22, v6, {rWS}, s82 offen {P['hs']}")
    A("L_e_done:")
    stamp(7); stamp(7, 5)
    dump_stamps()
    A("L_end:\ns_endpgm")

    A("L_ffn:")
    ACC, DG, DU = 28, 64, 68
    A(f"s_lshl_b32 s73, {sH}, 2\ns_add_u32 s73, s73, {sK}\ns_sub_u32 s73, s73, 11\ns_cmp_lt_u32 {sK}, 15\ns_cbranch_scc1 L_ffn_go")
    A(f"s_bitcmp1_b32 {sH}, 0\ns_cbranch_scc1 L_ffn_done\ns_lshr_b32 s73, {sH}, 1\ns_add_u32 s73, s73, 64\nL_ffn_go:")
    A("v_mov_b32 v1, v100\nv_mov_b32 v5, v101\nv_mov_b32 v6, v102")
    for k in range(9): norm(X + k)
    for i in range(36): A(f"v_mov_b32 v{ACC+i}, 0")
    srd(rWG, 16, 576 * 9216); srd(rWU, 18, 576 * 9216); srd(rWD, 20, 4608 * 1152)
    A("v_lshrrev_b32 v4, 3, v0\nv_and_b32 v5, 7, v0\nv_lshlrev_b32 v5, 4, v5")
    A("v_mul_u32_u24 v2, 0x2400, v4\nv_add_u32 v2, v2, v5\nv_mul_u32_u24 v3, 0x480, v4\nv_add_u32 v3, v3, v5")
    for i in range(8): A(f"v_mov_b32 v{DG+i}, 0")
    A("s_lshl_b32 s74, s73, 7")
    assert FW % 2 == 0
    def gu_load(n):
        A(f"buffer_load_dwordx4 {vr(RG+4*(n%16))}, v2, {rWU if n & 1 else rWG}, s74 offen {wpol}")
        if n & 1: A(f"s_add_u32 s74, s74, {8*9216}")
    for n in range(FW): gu_load(n)
    A("s_mov_b32 s75, 0\nL_ffn_gu:")
    for t in range(8):
        bbuild(X, t, B + 4 * (t & 1))
        for m in range(2):
            n = 2 * t + m
            A(f"s_waitcnt vmcnt({FW-1})")
            gu_load(n + FW)
            mfma(DU if m else DG, RG + 4 * n, B + 4 * (t & 1))
    for k in range(8): A(f"v_mov_b32 v{X+k}, v{X+k+1}")
    A("s_add_u32 s75, s75, 1\ns_cmp_lt_u32 s75, 9\ns_cbranch_scc1 L_ffn_gu")
    A(f"s_mul_i32 s74, s73, {64*1152}")
    def wd_load(n):
        t, ct = divmod(n, 9)
        A(f"buffer_load_dwordx4 {vr(RG+4*(n%16))}, v3, {rWD}, s74 offen offset:{ct*128} {wpol}")
        if ct == 8: A(f"s_add_u32 s74, s74, {8*1152}")
    A("s_waitcnt vmcnt(0)")
    for n in range(FW): wd_load(n)
    A(f"v_lshrrev_b32 v4, 5, v0\nv_lshl_add_u32 v4, v4, 8, v{VPL}")
    exec_valid()
    A(f"ds_write_b128 v4, {vr(DG)} offset:{L_GU}\nds_write_b128 v4, {vr(DU)} offset:{L_GU+512}\ns_mov_b64 exec, -1")
    A("v_bfe_u32 v4, v0, 2, 1\nv_lshrrev_b32 v5, 3, v0\nv_lshl_add_u32 v4, v4, 3, v5\nv_and_b32 v5, 3, v0\nv_lshl_add_u32 v4, v4, 2, v5")
    A("v_lshlrev_b32 v4, 2, v4\ns_waitcnt lgkmcnt(0)")
    for i in range(4): A(f"ds_read_b32 v{64+i}, v4 offset:{L_GU + 256*i}")
    A("s_waitcnt lgkmcnt(0)\nv_add_f32 v64, v64, v65\nv_add_f32 v66, v66, v67")
    rbf(64, 64); rbf(66, 66)
    A(f"v_mul_f32 v64, {hex(LOG2E ^ 0x80000000)}, v64\nv_exp_f32 v64, v64\ns_nop 0\nv_add_f32 v64, 1.0, v64\nv_rcp_f32 v64, v64\ns_nop 0")
    rbf(64, 64)
    A(f"v_mul_f32 v64, v64, v66\nv_cvt_pk_bf16_f32 v{X}, v64, v64\ns_nop 1")
    for n in range(72):
        t, ct = divmod(n, 9)
        if ct == 0: bbuild(X, t, B + 4 * (t & 1))
        A(f"s_waitcnt vmcnt({min(FW-1, 71-n)})")
        if n + FW < 72: wd_load(n + FW)
        else: A("s_nop 0")
        mfma(ACC + 4 * ct, RG + 4 * (n % 16), B + 4 * (t & 1))
    A(f"s_lshl_b32 s75, s73, 8\ns_add_u32 s75, s75, {WS_F}\ns_nop 4")
    for ct in range(9):
        for i in range(4): A(f"v_mov_b32_dpp v{V+8+i}, v{ACC+4*ct+i} row_ror:8 row_mask:0xf bank_mask:0xf")
        A("s_nop 0")
        for i in range(4): A(f"v_permlane32_swap_b32 v{V+8+i}, v{V+12+i}")
        for i in range(4): A(f"v_add_f32 v{ACC+4*ct+i}, v{ACC+4*ct+i}, v{V+12+i}")
        for i in range(4): tagput(ACC + 4 * ct + i)
    A("s_mov_b64 exec, 0x00ff00ff")
    for ct in range(9):
        A(f"buffer_store_dwordx4 {vr(ACC+4*ct)}, v{VPL}, {rWS}, s75 offen sc1")
        if ct < 8: A(f"s_add_u32 s75, s75, {72*256}")
    A("s_mov_b64 exec, -1")
    stamp(3)
    A("s_branch L_ffn_done")

    A("L_code_end:")
    errs = hazard.check(L)
    if errs:
        print("\n".join(errs)); raise SystemExit("hazards found")
    lds = RINGE
    body = "\n".join(x if x.endswith(":") and not x.startswith(";") else "    " + x for x in L)
    head = HEADER.replace("@LAUNCH@", f"; @launch grid=(256,1,1) block=({64*NW},1,1) lds={lds}\n" + DESC.rstrip("\n"))
    tail = f"""
.section .rodata,"a"
.p2align 6
.amdhsa_kernel {NAME}_kernel
  .amdhsa_next_free_vgpr 228
  .amdhsa_next_free_sgpr 102
  .amdhsa_accum_offset 228
  .amdhsa_group_segment_fixed_size 0
  .amdhsa_kernarg_size 96
  .amdhsa_user_sgpr_count 2
  .amdhsa_user_sgpr_kernarg_segment_ptr 1
  .amdhsa_system_sgpr_workgroup_id_x 1
  .amdhsa_float_denorm_mode_32 3
.end_amdhsa_kernel
"""
    return head + body + tail, lds

if __name__ == "__main__":
    out = sys.argv[1]
    kw = eval("dict(" + (sys.argv[2] if len(sys.argv) > 2 else "") + ")")
    txt, lds = build(**kw)
    open(out, "w").write(txt)
    import subprocess
    r = subprocess.run([sys.executable, "cdna_unwritten_srd_check.py", out], capture_output=True, text=True)
    print(r.stdout.strip()[:1500])
```

```python
import sys, os
sys.path.insert(0, os.path.dirname(os.path.abspath(__file__)))
import hazard

NAME = "recurrent_scan__gqa_block_cached__glu_gated_glu__decode"
HEADER = open(os.path.join(os.path.dirname(os.path.abspath(__file__)), "header.txt")).read()

WS_QP, WS_P, WS_ML, WS_Y, WS_CNT, WS_EPOCH, WS_F, WS_DIAG = 0x0, 0x20000, 0x60000, 0x70000, 0x7a000, 0x7c000, 0x80000, 0x100000
L_FULL, L_DONE, L_QFLAG, L_QUE, L_Q, L_GU, L_SC, L_MO, L_MML, L_Y, RING0 = 0, 512, 528, 640, 1024, 1536, 2560, 2560, 6656, 8704, 18944
LOG2E = 0x3FB8AA3B
SCALE = 0x3DB504F3
VALID = "0xff00ff00", "0x00ff00ff"
NW = 6

DESC = """;
"""

DEF = dict(F=21, Fd=21, NSL=34, FW=12, pol="nt", wpol="nt", diag=False, spin=0x800000, AH=5, AHA=8, qdelay=14,
           segs=((8, 14), (8, 6)), own=(10, 11, 14, 15), pcs=(17, 21), R=248, X=28, rot=4, pre=False, cpf=True, opol='sc1', split=0, mlfull=1, l1d=0, wok=0, f3=0)

def build(**kw):
    P = dict(DEF); P.update(kw)
    F, Fd, NSL, FW, pol, wpol, diag = P["F"], P["Fd"], P["NSL"], P["FW"], P["pol"], P["wpol"], P["diag"]
    P.update(hl="sc1", hs="sc1", apol="sc0")
    L = []
    def A(s):
        for x in s.strip("\n").split("\n"):
            L.append(x.strip())
    sW, sH, sI, sC, sT, sK, sS = "s28", "s29", "s30", "s31", "s100", "s14", "s15"
    rK, rV, rWS, rX, rWQ, rWO, rWG, rWU, rWD, rOUT = ("s[32:35]", "s[36:39]", "s[40:43]", "s[44:47]", "s[48:51]",
                                                    "s[52:55]", "s[56:59]", "s[60:63]", "s[64:67]", "s[68:71]")
    def srd(r, ptr, n):
        b = int(r[2:r.index(":")])
        A(f"s_mov_b64 s[{b}:{b+1}], s[{ptr}:{ptr+1}]\ns_mov_b32 s{b+2}, {n}\ns_mov_b32 s{b+3}, 0x20000")
    def vr(b, n=4): return f"v[{b}:{b+n-1}]"
    M, KA, VA, VZ, Vm, VmL, Vl, VDA = 8, 12, 16, 17, 18, 19, 20, 21
    O, Q, K, V, S, PP, B, AD, WO, X, XR, RG, DQ = 24, 28, 44, 60, 76, 80, 84, 100, 108, 140, 149, 152, 224
    VPL = 105
    def stamp(k, set_=1):
        if diag and (diag == set_ or (k in (0, 1, 2, 4) and set_ == 1)) and not (diag == 3 and k == 4):
            A(f"s_memrealtime s[{84+2*k}:{85+2*k}]\ns_waitcnt lgkmcnt(0)")
    def dump_stamps():
        if diag:
            A(f"s_mul_i32 s76, s2, {NW}\ns_add_u32 s76, s76, {sW}\ns_lshl_b32 s76, s76, 5\ns_add_u32 s76, s76, {WS_DIAG}")
            A("s_mov_b64 exec, 1\nv_mov_b32 v1, s76")
            for k in range(8):
                A(f"v_mov_b32 v2, s{84+2*k}\nglobal_store_dword v1, v2, s[26:27] offset:{4*k}")
            A("s_mov_b64 exec, -1")
    npf = [0]
    def code_prefetch(r):
        npf[0] += 1
        A(f"s_getpc_b64 s[64:65]\nL_pc{npf[0]}:\ns_sub_u32 s64, s64, L_pc{npf[0]}-{NAME}_kernel\ns_subb_u32 s65, s65, 0")
        A(f"v_lshlrev_b32 v{r}, 7, v0\nv_add_u32 v{r+1}, 0x2000, v{r}\nv_min_u32 v{r+1}, L_code_end-{NAME}_kernel-4, v{r+1}")
        A(f"global_load_dword v{r+2}, v{r}, s[64:65]\nglobal_load_dword v{r+3}, v{r+1}, s[64:65]")
    def spin(lbl):
        A(f"s_sub_u32 s3, s3, 1\ns_cbranch_scc0 {lbl}\ns_endpgm")
    def wave_sum(v, t):
        for r in (8, 4, 2, 1):
            A(f"s_nop 1\nv_add_f32_dpp v{v}, v{v}, v{v} row_ror:{r} row_mask:0xf bank_mask:0xf")
        for op in ("v_permlane16_swap_b32", "v_permlane32_swap_b32"):
            A(f"v_mov_b32 v{t}, v{v}\ns_nop 1\n{op} v{t}, v{v}\nv_add_f32 v{v}, v{v}, v{t}")
    def rbf(d, s):
        A(f"v_cvt_pk_bf16_f32 v{d}, 0, v{s}")
    def bbuild(src, t, b):
        A(f"v_mov_b32_dpp v7, v{src} row_newbcast:{t} row_mask:0xf bank_mask:0x3\ns_nop 1")
        A(f"v_mov_b32_dpp v7, v{src} row_newbcast:{8+t} row_mask:0xf bank_mask:0xc")
        for v in range(4):
            A(f"v_and_b32 v{b+v}, v7, v{M+v}")
    def mfma(d, a, b, c=None):
        A(f"v_mfma_f32_16x16x32_bf16 {vr(d)}, {vr(a)}, {vr(b)}, {vr(d) if c is None else c}")
    def exec_valid():
        A(f"s_mov_b32 exec_lo, {VALID[1]}\ns_mov_b32 exec_hi, {VALID[0]}")
    VT, VFF = 107, 103
    def tagchk(acc, regs, first=False):
        regs = list(regs)
        if first:
            A(f"v_bitop3_b32 v{acc}, v{regs[0]}, v{regs[1]}, v{VT} bitop3:0x7e"); regs = regs[2:]
        for r in regs: A(f"v_bitop3_b32 v{acc}, v{acc}, v{r}, v{VT} bitop3:0xf6")
    def tagtest(acc, dst="vcc"):
        A(f"v_and_b32 v{acc}, 0xff, v{acc}\nv_cmp_ne_u32 {dst}, 0, v{acc}")
    def tagput(r):
        A(f"v_perm_b32 v{r}, v{r}, v{VT}, s101")
    def tagprep():
        A(f"s_add_u32 s82, {sT}, 0x9e3779b9\nv_mov_b32 v{VT}, s82\ns_mov_b32 s101, 0x07060500")

    A('; entry')
    A(f"{NAME}_kernel:")
    if diag == 6: A("s_memrealtime s[90:91]")
    A("s_cmp_ge_u32 s2, 256\ns_cbranch_scc1 L_end")
    A("s_load_dwordx8 s[4:11], s[0:1], 0\ns_load_dwordx2 s[12:13], s[0:1], 32\ns_load_dwordx4 s[16:19], s[0:1], 48\ns_load_dwordx8 s[20:27], s[0:1], 64")
    if diag and diag != 6:
        for k in range(8): A(f"s_mov_b32 s{84+2*k}, 0")
    A("v_lshrrev_b32 v1, 6, v0\nv_and_b32 v0, 63, v0")
    A(f"v_readfirstlane_b32 {sW}, v1")
    A(f"s_lshr_b32 {sH}, s2, 4\ns_and_b32 {sI}, s2, 15")
    A(f"s_mul_i32 {sK}, {sH}, 3\ns_add_u32 {sK}, {sK}, {sI}\ns_and_b32 {sK}, {sK}, 15")
    A(f"s_movk_i32 {sS}, {P['R']}\ns_cmp_ge_u32 {sK}, 11\ns_cselect_b32 {sS}, {P['R'] - P['X']}, {sS}")
    A(f"v_mov_b32 v{VZ}, 0\ns_mov_b32 s3, {P['spin']}")
    A(f"s_sub_u32 {sC}, {sW}, 1")
    A(f"s_cmp_lg_u32 {sW}, 0\ns_cbranch_scc1 L_other")
    A('; loader')
    own, pb, SN = P["own"], P["pcs"], P["R"]
    rest = [b for b in range(10, 24) if b not in own and b not in pb]
    RM = sum(1 << b for b in rest)
    dep = lambda v, bs: sum(((v >> i) & 1) << b for i, b in enumerate(bs))
    piece = sorted(dep(k, pb) for k in range(4))
    XD = P["X"]
    assert SN % 4 == 0 and XD % 4 == 0 and NSL % 2 == 0 and L_SC + 64 * SN <= RING0 and list(own) == sorted(own)
    dt = (3 + max(F, Fd)) // 4
    RINGE = RING0 + NSL * 4096
    def sdep(dst, src, bs, tmp):
        i = 0; first = True
        while i < len(bs):
            k = i
            while k + 1 < len(bs) and bs[k + 1] == bs[k] + 1: k += 1
            A(f"s_and_b32 {tmp}, {src}, {((1 << (k - i + 1)) - 1) << i}\ns_lshl_b32 {dst if first else tmp}, {tmp}, {bs[i] - i}")
            if not first: A(f"s_or_b32 {dst}, {dst}, {tmp}")
            first = False; i = k + 1
    assert rest == sorted(rest)
    OM = sum(1 << b for b in own[:P["rot"]])
    def count_in(r, mask):
        if mask == RM and rest[-1] - rest[0] == len(rest) - 1:
            A(f"s_add_u32 {r}, {r}, {1 << rest[0]}"); return
        A(f"s_or_b32 {r}, {r}, {~mask & 0xffffffff}\ns_add_u32 {r}, {r}, 1\ns_and_b32 {r}, {r}, {mask}")
    LV, LG, rC = 20, 28, "s[44:47]"
    A("s_setprio 3")
    A(f"v_lshrrev_b32 v1, 4, v0\nv_xor_b32 v4, v1, v0\nv_and_b32 v4, 15, v4\nv_lshl_add_u32 v4, v1, 4, v4\nv_lshlrev_b32 v{LG}, 4, v4")
    for j in range(1, 4): A(f"v_xor_b32 v{LG+j}, {64*j + piece[j] - 1024*j}, v{LG}")
    A(f"v_lshlrev_b32 v6, 3, v0\nv_mov_b32 v24, {-dt}\nv_bfrev_b32 v25, -2")
    A(f"ds_write_b64 v6, v[24:25] offset:{L_FULL}")
    A(f"v_lshlrev_b32 v1, 2, v0\nds_write_b32 v1, v{VZ} offset:{L_DONE}")
    A(f"ds_read_b128 v[8:11], v{VZ} offset:{L_DONE}")
    sdep("s72", sI, own, "s82")
    A(f"s_lshl_b32 s69, {sH}, 24\ns_or_b32 s72, s72, s69\ns_mov_b32 s76, 0\ns_mov_b32 s77, 0\ns_mov_b32 s70, 0")
    A(f"s_mov_b32 s79, 0\ns_mov_b32 s80, {RING0}\ns_mov_b32 s81, {2 - NSL}")
    A("s_waitcnt lgkmcnt(0)")
    srd(rC, 6, 0x10000000)
    stamp(0)
    if diag == 1: A("s_memtime s[66:67]\ns_waitcnt lgkmcnt(0)")
    def pair(f, lanes, srds, offs, bar=None):
        jp = min(j for j in range(4) if j - f >= 3 - 4 * dt)
        for j in range(8):
            if j == 4: A("s_add_u32 m0, s80, 0x1000")
            if bar is not None and j == min(f - 16, 7): A(f"s_cmp_eq_u32 s81, {6 - NSL}\ns_cbranch_scc1 L_ld_bar{bar}\nL_ld_barx{bar}:")
            A(f"s_waitcnt vmcnt({f-1})")
            A(f"buffer_load_dwordx4 v{lanes[j>>2]+(j&3)}, {srds[j>>2]}, {offs[j>>2]} offen offset:{(j&3)*1024} {pol} lds")
            if j & 3 == jp: A(f"v_add_u32 v24, 1, v24\nds_write_b64 v6, v[24:25] offset:{L_FULL}")
        A(f"s_add_u32 s80, s80, 0x2000\ns_cmp_eq_u32 s80, {RINGE}\ns_cselect_b32 s80, {RING0}, s80\ns_add_u32 s81, s81, 2")
    def static_loop(sfx, f, end=sS, bar=True):
        A(f"L_ld_loop{sfx}:")
        A("s_waitcnt lgkmcnt(0)\nv_min3_u32 v4, v8, v9, v10\nv_min_u32 v4, v4, v11")
        A("s_mov_b32 m0, s80\nv_readfirstlane_b32 s82, v4")
        A(f"ds_read_b128 v[8:11], v{VZ} offset:{L_DONE}")
        A(f"s_cmp_lt_i32 s82, s81\ns_cbranch_scc1 L_ld_full{sfx}")
        for r in ("s75", "s74"):
            A(f"s_or_b32 {r}, s76, s72")
            count_in("s76", RM)
            if OM:
                A(f"s_xor_b32 {r}, {r}, s77")
                count_in("s77", OM)
        pair(f, (LG, LG), (rC, rC), ("s75", "s74"), sfx if bar else None)
        A(f"s_add_u32 s79, s79, 2\ns_cmp_lt_u32 s79, {end}\ns_cbranch_scc1 L_ld_loop{sfx}")
    static_loop("", F)
    A("s_cmp_lg_u32 s70, 0\ns_cbranch_scc1 L_ld_send")
    stamp(4, 8)
    for j in range(4): A(f"v_mov_b32 v{KA+j}, v{LG+j}")
    A(f"v_lshlrev_b32 v{LG}, 4, v0")
    for j in range(1, 4): A(f"v_or_b32 v{LG+j}, {piece[j] - 1024*j}, v{LG}")
    srd(rK, 6, 0x10000000); srd(rC, 8, 0x10000000)
    A("s_mov_b32 s76, 0\ns_mov_b32 s77, 0\ns_mov_b32 s70, 1\ns_mov_b32 s79, 0\ns_branch L_ld_loop")
    A("L_ld_send:")
    def que_read(n):
        A(f"s_and_b32 s83, {n}, 31\ns_lshl_b32 s83, s83, 2\nv_mov_b32 v5, s83\nds_read_b32 v7, v5 offset:{L_QUE}")
    stamp(3)
    A("L_ld_dre:")
    que_read("s79")
    A("L_ld_dyn:")
    A("s_waitcnt lgkmcnt(0)\nv_min3_u32 v4, v8, v9, v10\nv_min_u32 v4, v4, v11\nv_readfirstlane_b32 s73, v7")
    A("s_mov_b32 m0, s80\nv_readfirstlane_b32 s82, v4")
    A(f"ds_read_b128 v[8:11], v{VZ} offset:{L_DONE}")
    A("s_add_u32 s74, s79, 1\ns_lshr_b32 s75, s73, 16\ns_cmp_lg_u32 s75, s74\ns_cbranch_scc1 L_ld_dfull")
    A("s_cmp_lt_i32 s82, s81\ns_cbranch_scc1 L_ld_dfull")
    A("s_and_b32 s73, s73, 0xffff\ns_cmp_ge_u32 s73, 0x4000\ns_cbranch_scc1 L_ld_drain")
    A("s_lshl_b32 s75, s73, 10\ns_or_b32 s75, s75, s69\ns_mov_b32 s79, s74")
    que_read("s79")
    pair(Fd, (KA, LG), (rK, rC), ("s75", "s75"))
    A("s_branch L_ld_dyn")
    A("L_ld_drain:")
    stamp(1)
    A("s_lshl_b32 s82, s79, 1\nv_mov_b32 v25, s82")
    for r in range(dt - 1, -1, -1):
        A(f"s_waitcnt vmcnt({4*r})\nv_add_u32 v24, 1, v24\nds_write_b64 v6, v[24:25] offset:{L_FULL}")
    stamp(2)
    if diag and diag != 6: A(f"s_mov_b32 s94, s79\ns_sub_u32 s96, {P['spin']}, s3")
    if diag == 1: A("s_memtime s[64:65]\ns_waitcnt lgkmcnt(0)\ns_sub_u32 s98, s64, s66")
    dump_stamps()
    A("s_endpgm")
    A("L_ld_full:")
    spin("L_ld_loop")
    A("L_ld_bar:\ns_waitcnt lgkmcnt(0)\ns_barrier\ns_branch L_ld_barx")
    A("L_ld_dfull:")
    spin("L_ld_dre")

    A("L_other:")
    if P["cpf"]:
        A(f"s_cmp_lg_u32 {sW}, 4\ns_cbranch_scc1 L_nopf")
        code_prefetch(220)
        A("L_nopf:")
    A("s_waitcnt lgkmcnt(0)")
    srd(rX, 4, 1152); srd(rWS, 26, 0x400000 if diag else 0x100000)
    A(f"s_load_dword {sT}, s[26:27], {WS_EPOCH}")
    stamp(0)
    A(f"s_cmp_lg_u32 {sW}, 5\ns_cbranch_scc1 L_pre_done")
    A("v_and_b32 v1, 7, v0\nv_lshrrev_b32 v4, 3, v0\nv_lshl_add_u32 v5, v1, 3, v4\nv_lshlrev_b32 v5, 1, v5")
    for k in range(9): A(f"buffer_load_ushort v{X+k}, v5, {rX}, 0 offen offset:{128*k}")
    A(f"s_and_b32 s82, {sI}, 3\ns_mul_i32 s82, s82, 288")
    for k in range(3): A(f"buffer_load_ushort v{XR+k}, v5, {rX}, s82 offen offset:{128*k}")
    srd(rWQ, 10, 576 * 8192)
    A("v_lshlrev_b32 v5, 4, v1\nv_lshl_add_u32 v5, v4, 13, v5")
    A(f"s_lshl_b32 s82, s82, 12\ns_lshl_b32 s83, {sH}, 9\ns_add_u32 s82, s82, s83")
    A(f"s_lshr_b32 s83, {sI}, 2\ns_lshl_b32 s83, s83, 7\ns_add_u32 s82, s82, s83")
    for p in range(18):
        A(f"buffer_load_dwordx4 {vr(RG+4*p)}, v5, {rWQ}, s82 offen {wpol}")
        if p < 17: A("s_add_u32 s82, s82, 0x10000")
    A(f"s_cmp_lg_u32 {sI}, 0\ns_cbranch_scc1 L_pre_done\ns_mov_b64 exec, 1")
    A(f"s_lshl_b32 s82, {sH}, 8\ns_add_u32 s82, s82, {WS_CNT}\nbuffer_store_dword v{VZ}, v{VZ}, {rWS}, s82 offen sc1")
    A("s_mov_b64 exec, -1")
    VWO = 104 + 2
    def wo_prep():
        srd(rWO, 12, 4096 * 1152)
        A(f"s_sub_u32 s82, {sI}, 1\ns_cmp_gt_u32 s82, 8\ns_cselect_b32 s54, 0, s54")
        A("v_lshrrev_b32 v2, 5, v0\nv_lshlrev_b32 v2, 7, v2\nv_bfe_u32 v3, v0, 3, 2\nv_lshl_add_u32 v2, v3, 1, v2")
        A(f"v_mul_u32_u24 v2, 0x480, v2\nv_and_b32 v3, 7, v0\nv_lshl_add_u32 v{VWO}, v3, 4, v2")
        A(f"s_lshl_b32 s82, s82, 7\ns_lshl_b32 s83, {sH}, 3\ns_add_u32 s83, s83, {sC}\ns_mul_i32 s83, s83, {32*1152}\ns_add_u32 s48, s82, s83")
        for t in range(1, 4): A(f"s_add_u32 s{48+t}, s48, {8*t*1152}")
    def wo_loads():
        for t in range(8):
            A(f"buffer_load_dwordx4 {vr(WO+4*t)}, v{VWO}, {rWO}, s{48+(t&3)} offen offset:{(t>>2)*1152} {wpol}")
    A("L_pre_done:")
    A("s_barrier")
    A("v_and_b32 v1, 1, v0\nv_lshlrev_b32 v1, 4, v1\nv_mov_b32 v4, 0xffff\nv_lshlrev_b32 v4, v1, v4\nv_bfe_u32 v5, v0, 1, 2")
    for v in range(4):
        A(f"v_cmp_eq_u32 vcc, {v}, v5\ns_nop 1\nv_cndmask_b32 v{M+v}, 0, v4, vcc")
    A(f"v_bfe_u32 v4, v0, 4, 1\nv_and_b32 v5, 7, v0\nv_lshl_add_u32 v4, v4, 3, v5\nv_lshlrev_b32 v{VPL}, 4, v4")
    A(f"s_cmp_lg_u32 {sW}, 5\ns_cbranch_scc1 L_cons_main")
    stamp(3, 2)
    A("s_waitcnt vmcnt(21)")
    stamp(5, 2)
    for k in range(9): A(f"v_lshlrev_b32 v{X+k}, 16, v{X+k}")
    A(f"v_add_f32 v1, v{X}, v{X+1}")
    for k in range(2, 9): A(f"v_add_f32 v1, v1, v{X+k}")
    wave_sum(1, 2)
    A("s_mov_b32 s82, 0x3ae38e39\ns_mov_b32 s83, 0x44100000")
    def div576(v):
        A(f"v_mul_f32 v2, s82, v{v}\nv_fma_f32 v3, -v2, s83, v{v}\nv_fma_f32 v{v}, v3, s82, v2")
    div576(1)
    A(f"v_sub_f32 v2, v{X}, v1\nv_mul_f32 v4, v2, v2")
    for k in range(1, 9): A(f"v_sub_f32 v2, v{X+k}, v1\nv_fmac_f32 v4, v2, v2")
    wave_sum(4, 2)
    div576(4)
    rbf(1, 1); rbf(4, 4)
    A("v_add_f32 v4, 0x3727c5ac, v4"); rbf(4, 4)
    A("v_sqrt_f32 v5, v4\ns_nop 0\nv_rcp_f32 v6, v5\nv_fma_f32 v3, -v5, v5, v4\nv_mul_f32 v6, 0.5, v6\nv_fma_f32 v5, v3, v6, v5")
    rbf(5, 5)
    A("v_rcp_f32 v6, v5")
    def norm(r):
        A(f"v_sub_f32 v2, v{r}, v1"); rbf(2, 2)
        A(f"v_mul_f32 v3, v2, v6\nv_fma_f32 v4, -v3, v5, v2\nv_fma_f32 v3, v4, v6, v3\nv_cvt_pk_bf16_f32 v{r}, v3, v3")
    A("v_mov_b32 v100, v1\nv_mov_b32 v101, v5\nv_mov_b32 v102, v6\ns_waitcnt vmcnt(18)")
    for k in range(3):
        A(f"v_lshlrev_b32 v{XR+k}, 16, v{XR+k}"); norm(XR + k)
    A("s_nop 0")
    stamp(6, 2)
    for p in range(18):
        bbuild(XR + p // 8, p % 8, B + 4 * (p & 1))
        A(f"s_waitcnt vmcnt({17 - p})\ns_nop 0")
        mfma(DQ, RG + 4 * p, B + 4 * (p & 1), "0" if p == 0 else None)
    A("s_waitcnt lgkmcnt(0)")
    tagprep()
    A(f"s_lshl_b32 s82, {sH}, 12\ns_and_b32 s83, {sI}, 3\ns_lshl_b32 s83, s83, 10\ns_add_u32 s82, s82, s83")
    A(f"s_lshr_b32 s83, {sI}, 2\ns_lshl_b32 s83, s83, 8\ns_add_u32 s82, s82, s83")
    for i in range(4): A(f"v_mov_b32_dpp v{V+i}, v{DQ+i} row_ror:8 row_mask:0xf bank_mask:0xf")
    A("s_nop 0")
    for i in range(4): A(f"v_permlane32_swap_b32 v{V+i}, v{V+4+i}")
    for i in range(4): A(f"v_add_f32 v{K+i}, v{DQ+i}, v{V+4+i}")
    for i in range(4): A(f"v_bfi_b32 v{K+i}, 15, v{VT}, v{K+i}")
    stamp(7, 2)
    A("s_mov_b64 exec, 0x00ff00ff\ns_waitcnt vmcnt(0)")
    A(f"buffer_store_dwordx4 {vr(K)}, v{VPL}, {rWS}, s82 offen sc1")
    A("s_mov_b64 exec, -1")
    stamp(1)
    A("L_qgather:")
    A(f"v_lshlrev_b32 v4, 4, v0\ns_lshl_b32 s82, {sH}, 12")
    if P["qdelay"] is not None:
        A(f"L_qdel:\nds_read_b32 v1, v{VZ} offset:{L_FULL}\ns_waitcnt lgkmcnt(0)\nv_cmp_le_i32 vcc, {P['qdelay']}, v1\ns_cbranch_vccnz L_qdel_ok")
        A("s_sleep 2")
        spin("L_qdel")
        A("L_qdel_ok:")
    A("L_qpoll:")
    for p in range(4): A(f"buffer_load_dwordx4 {vr(RG+4*p)}, v4, {rWS}, s82 offen offset:{p*1024} sc1")
    for p in range(4):
        A(f"s_waitcnt vmcnt({3-p})")
        tagchk(1, range(RG + 4 * p, RG + 4 * p + 4), p == 0)
    A("v_and_b32 v1, 15, v1\nv_cmp_ne_u32 vcc, 0, v1")
    A("s_cbranch_vccz L_qready\ns_sleep 2")
    spin("L_qpoll")
    A("L_qready:")
    stamp(2)
    for i in range(4): A(f"v_add_f32 v{RG+i}, v{RG+i}, v{RG+4+i}\nv_add_f32 v{RG+8+i}, v{RG+8+i}, v{RG+12+i}")
    for i in range(4): A(f"v_add_f32 v{RG+i}, v{RG+i}, v{RG+8+i}")
    A("v_lshrrev_b32 v4, 3, v0\nv_and_b32 v5, 7, v0\nv_lshl_add_u32 v4, v4, 5, v5\nv_lshlrev_b32 v4, 1, v4")
    A(f"v_cvt_pk_bf16_f32 v{RG}, v{RG}, v{RG+1}\nv_cvt_pk_bf16_f32 v{RG+4}, v{RG+2}, v{RG+3}")
    A(f"ds_write_b16 v4, v{RG} offset:{L_Q}\nds_write_b16_d16_hi v4, v{RG} offset:{L_Q+16}")
    A(f"ds_write_b16 v4, v{RG+4} offset:{L_Q+32}\nds_write_b16_d16_hi v4, v{RG+4} offset:{L_Q+48}")
    A(f"v_mov_b32 v5, 1\ns_waitcnt lgkmcnt(0)\nds_write_b32 v{VZ}, v5 offset:{L_QFLAG}")
    A(f"s_cmp_ge_u32 {sK}, 11\ns_cbranch_scc1 L_ffn\nL_ffn_done:")
    if P["pre"]:
        A('; one plain read of the lines this workgroup publishes at the end')
        A("v_lshrrev_b32 v5, 4, v0\nv_and_b32 v6, 15, v0\nv_lshlrev_b32 v6, 4, v6\nv_lshl_add_u32 v5, v5, 12, v6")
        A(f"s_lshl_b32 s82, {sH}, 14\ns_lshl_b32 s83, {sI}, 8\ns_add_u32 s82, s82, s83\ns_add_u32 s82, s82, {WS_P}")
        A(f"s_lshl_b32 s80, {sH}, 12\ns_lshl_b32 s83, {sI}, 6\ns_add_u32 s80, s80, s83\ns_add_u32 s80, s80, {WS_ML}")
        A(f"s_lshl_b32 s81, {sI}, 12\ns_lshl_b32 s83, {sH}, 8\ns_add_u32 s81, s81, s83\ns_add_u32 s81, s81, {WS_Y - 4096}")
        A("v_lshlrev_b32 v4, 10, v0")
        A(f"buffer_load_dwordx4 v[24:27], v5, {rWS}, s82 offen\ns_mov_b64 exec, 15\nbuffer_load_dwordx4 v[28:31], v4, {rWS}, s80 offen")
        A(f"s_mov_b64 exec, 0xffff\nbuffer_load_dwordx4 v[32:35], v6, {rWS}, s81 offen")
        A("s_mov_b64 exec, -1\ns_waitcnt vmcnt(0)")
    A(f"s_mov_b32 s79, {sS}\ns_mul_i32 s72, {sH}, 3\ns_sub_u32 s72, 11, s72")
    A(f"s_lshl_b32 s78, {sH}, 8\ns_add_u32 s78, s78, {WS_CNT}\nv_mov_b32 v4, s78\nv_mov_b32 v5, 1\ns_mov_b64 exec, 1")
    def que_write(val):
        if val == "s80":
            A('; pool position -> (row s73, column s71): the donated rows of five columns, then the last rows of all sixteen')
            A(f"s_mul_i32 s73, s80, 52429\ns_lshr_b32 s73, s73, 18\ns_mul_i32 s71, s73, 5\ns_sub_u32 s71, s80, s71\ns_add_u32 s71, s71, s72\ns_add_u32 s73, s73, {SN - XD}")
            A(f"s_add_u32 s74, s80, {16*SN - 5*XD}\ns_lshr_b32 s75, s74, 4\ns_cmp_lt_u32 s80, {5*XD}\ns_cselect_b32 s73, s73, s75\ns_cselect_b32 s71, s71, s74")
            if OM: A(f"s_and_b32 s74, s73, {(1 << P['rot']) - 1}\ns_xor_b32 s71, s71, s74")
            sdep("s74", "s73", [b - 10 for b in rest], "s75")
            sdep("s73", "s71", [b - 10 for b in own], "s75")
            A("s_or_b32 s74, s74, s73"); val = "s74"
        A(f"s_and_b32 s82, s79, 31\ns_lshl_b32 s82, s82, 2\ns_add_u32 s79, s79, 1\ns_lshl_b32 s83, s79, 16\ns_or_b32 s83, s83, {val}")
        A(f"v_mov_b32 v1, s82\nv_mov_b32 v2, s83\nds_write_b32 v1, v2 offset:{L_QUE}")
    def demand(lbl, n, ahead):
        A(f"{lbl}:\nds_read_b32 v1, v{VZ} offset:{L_FULL}\ns_waitcnt lgkmcnt(0)\nv_readfirstlane_b32 s78, v1")
        A(f"s_add_u32 s78, s78, {dt + 2*ahead}\ns_ashr_i32 s78, s78, 1\ns_cmp_le_i32 {n}, s78\ns_cbranch_scc1 {lbl}_go\ns_sleep 2")
        spin(lbl)
        A(f"{lbl}_go:")
    npool = 5 * XD + 16 * (256 - SN)
    c0 = 0; t0 = 0; chain = []
    for cnt, sz in P["segs"]:
        chain.append((c0, t0, sz)); c0 += cnt; t0 += cnt * sz
        assert sz + P["AHA"] + 2 < 32
    nclaim = c0 + npool - t0
    assert t0 < npool and P["AH"] >= 3
    demand("L_ca", "s79", P["AHA"])
    A(f"global_atomic_add v20, v4, v5, s[26:27] {P['apol']}\ns_waitcnt vmcnt(0)\nv_readfirstlane_b32 s78, v20")
    A(f"s_cmp_ge_u32 s78, {c0}\ns_cbranch_scc1 L_ca_one")
    for i, (c, t, sz) in enumerate(chain):
        if i == 0: A(f"s_movk_i32 s80, {t - c*sz}\ns_mov_b32 s81, {sz}")
        else: A(f"s_cmp_ge_u32 s78, {c}\ns_cselect_b32 s80, {t - c*sz}, s80\ns_cselect_b32 s81, {sz}, s81")
    A("s_mul_i32 s78, s78, s81\ns_add_u32 s80, s80, s78\nL_ca_put:")
    que_write("s80")
    A("s_add_u32 s80, s80, 1\ns_sub_u32 s81, s81, 1\ns_cmp_lg_u32 s81, 0\ns_cbranch_scc1 L_ca_put\ns_branch L_ca")
    A(f"L_ca_one:\ns_cmp_ge_u32 s78, {nclaim}\ns_cbranch_scc1 L_cl_end\ns_add_u32 s80, s78, {t0 - c0}")
    que_write("s80")
    A("s_mov_b32 s76, s79\ns_add_u32 s77, s76, 4")
    for k in range(4):
        demand(f"L_cl_{k}", "s76", P["AH"])
        A(f"global_atomic_add v{20+k}, v4, v5, s[26:27] {P['apol']}")
        A(f"s_add_u32 s76, s76, 1\ns_cmp_lt_u32 s76, s77\ns_cbranch_scc1 L_cl_{(k+1)%4}")
        A(f"s_waitcnt vmcnt(3)\nv_readfirstlane_b32 s80, v{20+(k+1)%4}")
        A(f"s_cmp_ge_u32 s80, {nclaim}\ns_cbranch_scc1 L_cl_end\ns_add_u32 s80, s80, {t0 - c0}")
        que_write("s80")
    A("s_branch L_cl_0")
    A("L_cl_end:")
    que_write("0xffff")
    A("s_mov_b64 exec, -1")
    A(f"s_cmp_lg_u32 {sI}, 10\ns_cbranch_scc1 L_e_done\ns_cmp_gt_u32 {sH}, 8\ns_cbranch_scc1 L_e_done")
    srd(rOUT, 22, 1152)
    A("v_lshrrev_b32 v4, 5, v0\nv_and_b32 v5, 3, v0\nv_lshl_add_u32 v4, v4, 2, v5\nv_bfe_u32 v5, v0, 2, 3\nv_lshl_add_u32 v4, v4, 3, v5")
    A(f"v_lshlrev_b32 v2, 1, v4\ns_lshl_b32 s79, {sH}, 7")
    A(f"buffer_load_ushort v3, v2, {rX}, s79 offen")
    A(f"v_lshlrev_b32 v4, 2, v0\ns_lshl_b32 s82, {sH}, 12")
    def issue(b):
        for p in range(16): A(f"buffer_load_dword v{b+p}, v4, {rWS}, s80 offen offset:{256*p} {P['hl']}")
    def check(b, dst, behind, ok):
        for p in range(0, 16, 2):
            A(f"s_waitcnt vmcnt({behind+14-p})")
            tagchk(1, (b + p, b + p + 1), p == 0)
            if p == 0: A(f"v_add_f32 v{dst}, v{b}, v{b+1}")
            else: A(f"v_add_f32 v{dst}, v{dst}, v{b+p}\nv_add_f32 v{dst}, v{dst}, v{b+p+1}")
        tagtest(1)
        A(f"s_cbranch_vccz {ok}")
    A(f"s_mul_i32 s81, {sH}, {72*256}\ns_add_u32 s81, s81, {WS_F}")
    A("L_f_ffn:\ns_mov_b32 s80, s81\nv_mov_b32 v22, 0")
    def f_load(p):
        A(f"buffer_load_dword v{RG+p}, v4, {rWS}, s80 offen offset:{256*(p&15)} sc1")
        if p & 15 == 15: A("s_add_u32 s80, s80, 0x1000")
    for p in range(48): f_load(p)
    for p in range(0, 72, 2):
        A(f"s_waitcnt vmcnt({min(46, 70 - p)})")
        if p + 48 < 72: f_load(p + 48); f_load(p + 49)
        tagchk(1, (RG + p, RG + p + 1), p == 0)
        A(f"v_add_f32 v22, v22, v{RG+p}\nv_add_f32 v22, v22, v{RG+p+1}")
    tagtest(1)
    A("s_cbranch_vccz L_f_ffn_ok\ns_sleep 16")
    spin("L_f_ffn")
    A("L_f_ffn_ok:")
    rbf(22, 22)
    A(f"v_mul_f32 v5, {hex(LOG2E ^ 0x80000000)}, v22\nv_exp_f32 v5, v5\ns_nop 0\nv_add_f32 v5, 1.0, v5\nv_rcp_f32 v5, v5\ns_nop 0\nv_mul_f32 v22, v22, v5")
    rbf(22, 22)
    A("v_lshlrev_b32 v3, 16, v3")
    A(f"L_f_wait:\nds_read_b64 v[24:25], v{VZ} offset:{L_FULL}\ns_waitcnt lgkmcnt(0)\nv_cmp_ge_i32 vcc, v24, v25\ns_cbranch_vccnz L_f_go\ns_sleep 4")
    spin("L_f_wait")
    A("L_f_go:")
    A(f"s_add_u32 s80, s82, {WS_Y}")
    issue(RG)
    if P["f3"]:
        issue(RG + 16)
        A("L_f_att:")
        for i in range(3): issue(RG + 16 * ((i + 2) % 3)); check(RG + 16 * i, 23, 32, "L_f_att_ok")
    else:
        A("L_f_att:")
        issue(RG + 16); check(RG, 23, 16, "L_f_att_ok"); issue(RG); check(RG + 16, 23, 16, "L_f_att_ok")
    spin("L_f_att")
    A("L_f_att_ok:")
    rbf(23, 23)
    A("v_mul_f32 v23, v23, v22"); rbf(23, 23)
    A(f"v_add_f32 v23, v23, v3\nv_cvt_pk_bf16_f32 v23, v23, v23\nbuffer_store_short v23, v2, {rOUT}, s79 offen {P['opol']}")
    A(f"s_cmp_lg_u32 {sH}, 0\ns_cbranch_scc1 L_e_done")
    A(f"s_mov_b64 exec, 1\nv_mov_b32 v4, {WS_EPOCH}\nglobal_store_dword v4, v{VT}, s[26:27] sc1\ns_mov_b64 exec, -1\ns_branch L_e_done")

    A('; consumers')
    A("L_cons_main:")
    VSC = 148
    A("v_and_b32 v1, 15, v0\nv_lshrrev_b32 v4, 4, v0\nv_xor_b32 v5, v1, v4\nv_lshlrev_b32 v5, 4, v5")
    A(f"v_lshl_add_u32 v{KA}, v1, 8, v5")
    for ks in range(1, 4): A(f"v_xor_b32 v{KA+ks}, {64*ks}, v{KA}")
    A(f"v_lshlrev_b32 v5, 4, v1\nv_lshl_add_u32 v{VA}, v4, 10, v5")
    A(f"v_mov_b32 v{Vm}, 0xff800000\nv_mov_b32 v{VmL}, 0xff800000\nv_mov_b32 v{Vl}, 0")
    for i in range(4): A(f"v_mov_b32 v{O+i}, 0")
    A(f"s_lshl_b32 s82, {sC}, 2\nv_mov_b32 v{VDA}, s82")
    if diag == 3:
        for i in range(3): A(f"v_mov_b32 v{225+i}, 0")
        A("s_mov_b32 s86, 0")
    A(f"v_lshrrev_b32 v2, 3, v0\nv_lshlrev_b32 v2, 3, v2\ns_lshl_b32 s82, {sC}, 6\nv_add_u32 v{VSC}, s82, v2")
    A("v_bfe_u32 v5, v0, 3, 1\nv_lshlrev_b32 v5, 8, v5\nv_lshl_add_u32 v5, v4, 4, v5")
    A(f"s_mov_b32 s72, {hex(SCALE)}\ns_mov_b32 s73, {hex(LOG2E)}\ns_mov_b32 s74, 0xffff0000")
    A(f"s_mov_b32 s76, {sC}\ns_lshl_b32 s77, {sC}, 12\ns_add_u32 s77, s77, {RING0}\ns_mov_b32 s78, 0")
    A(f"s_mov_b32 s60, {sS}\ns_lshl_b32 s61, {sS}, 1")
    assert L_SC + 64 * (SN - XD - NSL - 8) >= L_Y + 2048
    wo_prep()
    MA, MRG = X, RG
    for i in range(1, 4):
        A(f"s_add_u32 s82, {sC}, {i}\ns_and_b32 s82, s82, 3\ns_lshl_b32 s83, s82, 9\ns_lshl_b32 s82, s82, 10")
        A(f"v_lshl_add_u32 v{MA+2*i-2}, v0, 3, s83\nv_lshl_add_u32 v{MA+2*i-1}, v0, 4, s82")
    A(f"v_lshrrev_b32 v2, 4, v0\nv_and_b32 v3, 15, v0\nv_lshlrev_b32 v3, 4, v3\nv_lshl_add_u32 v{MA+6}, v2, 12, v3")
    A(f"v_lshl_add_u32 v{MA+7}, v2, 10, v3" if P["mlfull"] else f"v_and_b32 v3, 8, v0\nv_lshl_add_u32 v{MA+7}, v2, 10, v3")
    A(f"s_lshl_b32 s56, {sH}, 14\ns_add_u32 s56, s56, {WS_P}\ns_lshl_b32 s83, {sI}, 8\ns_add_u32 s58, s56, s83")
    A(f"s_lshl_b32 s83, {sC}, 12\ns_add_u32 s56, s56, s83")
    A(f"s_lshl_b32 s57, {sH}, 12\ns_add_u32 s57, s57, {WS_ML}\ns_lshl_b32 s83, {sI}, 6\ns_add_u32 s59, s83, s57")
    A(f"s_lshl_b32 s83, {sC}, 10\ns_add_u32 s57, s57, s83\ns_mov_b32 s70, -1\ns_brev_b32 s75, -2")
    if P["wok"]: A("s_mov_b32 s62, 1")
    def merge_reads():
        A(f"ds_read_b32 v{MRG+18}, v{VZ} offset:{L_QFLAG+4}")
        for i in range(3): A(f"ds_read_b64 {vr(MRG+12+2*i, 2)}, v{MA+2*i} offset:{L_MML}")
        for i in range(3): A(f"ds_read_b128 {vr(MRG+4*i)}, v{MA+2*i+1} offset:{L_MO}")
    A(f"L_qwait:\nds_read_b32 v1, v{VZ} offset:{L_QFLAG}\ns_waitcnt lgkmcnt(0)\nv_readfirstlane_b32 s79, v1")
    A("s_cmp_lg_u32 s79, 0\ns_cbranch_scc1 L_qgo\ns_sleep 1")
    spin("L_qwait")
    A("L_qgo:")
    tagprep()
    for ks in range(4): A(f"ds_read_b128 {vr(Q+4*ks)}, v5 offset:{L_Q + 64*ks}")
    A("s_waitcnt lgkmcnt(0)")
    stamp(4)
    def landed(lbl, item):
        A(f"s_cmp_lt_i32 {item}, s78\ns_cbranch_scc1 {lbl}_go")
        A(f"{lbl}_poll:\nds_read_b32 v22, v{VZ} offset:{L_FULL}\ns_waitcnt lgkmcnt(0)\nv_readfirstlane_b32 s78, v22")
        A(f"s_cmp_lt_i32 {item}, s78\ns_cbranch_scc1 {lbl}_go")
        spin(f"{lbl}_poll")
        A(f"{lbl}_go:")
    ntr = [0]
    def trace():
        if diag == 3:
            ntr[0] += 1; n = ntr[0]
            A(f"s_memrealtime s[84:85]\ns_waitcnt lgkmcnt(0)\ns_and_b32 m0, s86, 63\ns_cmp_lt_u32 s86, 64\ns_cbranch_scc0 L_tr{n}a")
            A(f"v_writelane_b32 v225, s84, m0\ns_branch L_tr{n}c\nL_tr{n}a:\ns_cmp_lt_u32 s86, 128\ns_cbranch_scc0 L_tr{n}b\nv_writelane_b32 v226, s84, m0\ns_branch L_tr{n}c")
            A(f"L_tr{n}b:\nv_writelane_b32 v227, s84, m0\nL_tr{n}c:\ns_add_u32 s86, s86, 1")
    def slot_next(step):
        A(f"s_add_u32 s77, s77, {step}\ns_sub_u32 s79, s77, {NSL*4096}\ns_cmp_ge_u32 s77, {RINGE}\ns_cselect_b32 s77, s79, s77")
    def k_reads():
        for ks in range(4): A(f"v_add_u32 v{AD+ks}, s77, v{KA+ks}\nds_read_b128 {vr(K+4*ks)}, v{AD+ks}")
    def qk():
        for ks in range(4):
            A(f"s_waitcnt lgkmcnt({3-ks})")
            mfma(S, K + 4 * ks, Q + 4 * ks, "0" if ks == 0 else None)
    def v_reads(off):
        for r in range(4): A(f"ds_read_b128 {vr(V+4*r)}, v{AD+4} offset:{off + 256*r}")
    def softmax(lbl):
        A(f"v_max3_f32 v22, v{S}, v{S+1}, v{S+2}\nv_max_f32 v22, v22, v{S+3}")
        A(f"v_cmp_gt_f32 vcc, v22, v{Vm}\ns_cbranch_vccnz {lbl}_rescale\n{lbl}_cont:")
        for i in range(4): A(f"v_fma_f32 v{PP+i}, v{S+i}, s73, -v{VmL}")
        for i in range(4): A(f"v_exp_f32 v{PP+i}, v{PP+i}")
        A(f"s_waitcnt lgkmcnt(0)\nds_write_b32 v{VDA}, v{AD} offset:{L_DONE}")
    def pv():
        for i in range(4):
            A(f"v_cvt_pk_bf16_f32 v22, v{PP+i}, v{PP+i}")
            for v in range(4): A(f"v_and_b32 v{B+4*i+v}, v22, v{M+v}")
            A(f"v_add_f32 v{Vl}, v{Vl}, v{PP+i}")
            if i > 0: mfma(O, V + 4 * (i - 1), B + 4 * (i - 1))
        A("s_nop 0")
        mfma(O, V + 12, B + 12)
    def rescale(lbl):
        A(f"{lbl}_rescale:")
        for op in ("v_permlane16_swap_b32", "v_permlane32_swap_b32"):
            A(f"v_mov_b32 v23, v22\ns_nop 1\n{op} v23, v22\nv_max_f32 v22, v22, v23")
        A(f"v_max_f32 v{Vm}, v{Vm}, v22\nv_mul_f32 v22, s73, v{Vm}\nv_sub_f32 v23, v{VmL}, v22\nv_exp_f32 v23, v23\nv_mov_b32 v{VmL}, v22")
        A(f"v_mul_f32 v{Vl}, v{Vl}, v23")
        for i in range(4): A(f"v_mul_f32 v{O+i}, v{O+i}, v23")
        A(f"s_branch {lbl}_cont")
    A("L_k:")
    landed("L_k", "s76")
    trace()
    k_reads()
    slot_next(0x4000)
    A(f"s_add_u32 s76, s76, 1\nv_mov_b32 v22, s76\ns_add_u32 s76, s76, 3")
    qk()
    A(f"ds_write_b32 v{VDA}, v22 offset:{L_DONE}\ns_mov_b32 exec_lo, 0x01010101\ns_mov_b32 exec_hi, 0x01010101\ns_nop 4")
    for i in range(4): A(f"v_cvt_pk_bf16_f32 v{S+i}, 0, v{S+i}")
    for i in range(4): A(f"v_mul_f32 v{S+i}, s72, v{S+i}")
    A(f"v_cvt_pk_bf16_f32 v22, v{S}, v{S+1}\nv_cvt_pk_bf16_f32 v23, v{S+2}, v{S+3}")
    A(f"ds_write_b64 v{VSC}, v[22:23] offset:{L_SC}\ns_mov_b64 exec, -1\nv_add_u32 v{VSC}, 0x100, v{VSC}")
    A("s_cmp_lt_u32 s76, s60\ns_cbranch_scc1 L_k")
    A(f"s_lshl_b32 s82, s60, 6\nv_subrev_u32 v{VSC}, s82, v{VSC}")
    A("L_v:")
    landed("L_v", "s76")
    trace()
    A(f"ds_read_b64 v[22:23], v{VSC} offset:{L_SC}\nv_add_u32 v{AD+4}, s77, v{VA}")
    v_reads(0)
    slot_next(0x4000)
    A(f"v_add_u32 v{VSC}, 0x100, v{VSC}\ns_add_u32 s76, s76, 1\nv_mov_b32 v{AD}, s76\ns_add_u32 s76, s76, 3")
    A(f"s_waitcnt lgkmcnt(4)\nv_lshlrev_b32 v{S}, 16, v22\nv_and_b32 v{S+1}, s74, v22\nv_lshlrev_b32 v{S+2}, 16, v23\nv_and_b32 v{S+3}, s74, v23")
    softmax("L_v"); pv()
    A("s_cmp_lt_u32 s76, s61\ns_cbranch_scc1 L_v")
    A(f"s_add_u32 s76, s76, {sC}\ns_lshl_b32 s82, {sC}, 12")
    slot_next("s82")
    A("L_c_top:\ns_cmp_lt_i32 s76, s78\ns_cbranch_scc1 L_c_go\ns_cmp_ge_i32 s76, s75\ns_cbranch_scc1 L_c_exit")
    A(f"L_c_poll:\nds_read_b64 v[22:23], v{VZ} offset:{L_FULL}\ns_waitcnt lgkmcnt(0)")
    A("v_readfirstlane_b32 s78, v22\nv_readfirstlane_b32 s75, v23\ns_add_u32 s70, s75, 6")
    A("s_cmp_lt_i32 s76, s78\ns_cbranch_scc1 L_c_go\ns_cmp_ge_i32 s76, s75\ns_cbranch_scc1 L_c_exit")
    spin("L_c_poll")
    A("L_c_vwait:")
    A(f"ds_read_b64 v[22:23], v{VZ} offset:{L_FULL}\ns_waitcnt lgkmcnt(0)\nv_readfirstlane_b32 s78, v22\nv_readfirstlane_b32 s75, v23")
    A("s_add_u32 s70, s75, 6\ns_cmp_lt_i32 s82, s78\ns_cbranch_scc1 L_c_v")
    spin("L_c_vwait")
    rescale("L_v"); rescale("L_c")
    A("L_c_go:")
    trace(); trace()
    k_reads()
    A(f"v_add_u32 v{AD+4}, s77, v{VA}")
    slot_next(0x8000)
    qk()
    if P["wok"]:
        A("s_add_u32 s82, s76, 8\ns_cmp_lg_u32 s82, s70\ns_cbranch_scc1 L_c_nowo\ns_mov_b32 s62, 0")
        wo_loads()
        A("L_c_nowo:")
    A("s_add_u32 s82, s76, 1\ns_cmp_lt_i32 s82, s78\ns_cbranch_scc0 L_c_vwait\nL_c_v:")
    v_reads(4096)
    A(f"s_add_u32 s76, s76, 2\nv_mov_b32 v{AD}, s76\ns_add_u32 s76, s76, 6")
    for i in range(4): A(f"v_cvt_pk_bf16_f32 v{S+i}, 0, v{S+i}")
    for i in range(4): A(f"v_mul_f32 v{S+i}, s72, v{S+i}")
    for i in range(4): A(f"v_cvt_pk_bf16_f32 v{S+i}, 0, v{S+i}")
    softmax("L_c")
    A("s_cmp_lg_u32 s76, s70\ns_cbranch_scc1 L_c_pvb\ns_mov_b32 s61, 0")
    merge_reads()
    A("L_c_pvb:")
    pv()
    A("s_branch L_c_top")
    A("L_c_exit:")
    if diag == 3:
        A(f"s_lshl_b32 s84, s2, 2\ns_add_u32 s84, s84, {sC}\ns_lshl_b32 s84, s84, 10\ns_add_u32 s84, s84, {WS_DIAG + 0x20000}\nv_lshlrev_b32 v1, 2, v0")
        for i in range(3): A(f"buffer_store_dword v{225+i}, v1, {rWS}, s84 offen offset:{256*i}")
        A(f"buffer_store_dword v{VZ}, v1, {rWS}, s84 offen offset:768")
    stamp(5)
    for op in ("v_permlane16_swap_b32", "v_permlane32_swap_b32"):
        A(f"v_mov_b32 v23, v{Vl}\ns_nop 1\n{op} v23, v{Vl}\nv_add_f32 v{Vl}, v{Vl}, v23")
    A("s_cmp_eq_u32 s61, 0\ns_cbranch_scc1 L_e_dir")
    A(f"s_lshr_b32 s82, s75, 1\ns_sub_u32 s82, s82, 1\ns_and_b32 s82, s82, 3\ns_cmp_eq_u32 s82, {sC}\ns_cbranch_scc1 L_e_re")
    A(f"s_lshl_b32 s82, {sC}, 10\nv_lshl_add_u32 v4, v0, 4, s82\nds_write_b128 v4, {vr(O)} offset:{L_MO}")
    A(f"s_lshl_b32 s82, {sC}, 9\nv_lshl_add_u32 v4, v0, 3, s82\nv_mov_b32 v22, v{VmL}\nv_mov_b32 v23, v{Vl}\nds_write_b64 v4, v[22:23] offset:{L_MML}")
    A(f"v_mov_b32 v1, 1\ns_mov_b64 exec, 1\nds_add_u32 v{VZ}, v1 offset:{L_QFLAG+4}\ns_mov_b64 exec, -1")
    wo_loads()
    A(f"L_e_wait:\nds_read_b32 v1, v{VZ} offset:{L_QFLAG+12}\ns_waitcnt lgkmcnt(0)\nv_cmp_ne_u32 vcc, 0, v1\ns_cbranch_vccnz L_e_l1p")
    spin("L_e_wait")
    A("L_e_re:")
    merge_reads()
    A(f"L_e_dir:\ns_waitcnt lgkmcnt(3)\nv_cmp_ne_u32 vcc, 3, v{MRG+18}\nv_max3_f32 v22, v{MRG+12}, v{MRG+14}, v{MRG+16}\ns_cbranch_vccz L_e_go")
    spin("L_e_re")
    A(f"L_e_go:\nv_max_f32 v22, v22, v{VmL}")
    A(f"v_sub_f32 v{VmL}, v{VmL}, v22")
    for c in range(3): A(f"v_sub_f32 v{MRG+12+2*c}, v{MRG+12+2*c}, v22")
    A(f"v_exp_f32 v{VmL}, v{VmL}")
    for c in range(3): A(f"v_exp_f32 v{MRG+12+2*c}, v{MRG+12+2*c}")
    for i in range(4): A(f"v_mul_f32 v{O+i}, v{VmL}, v{O+i}")
    A("s_waitcnt lgkmcnt(0)")
    for c in range(3):
        for i in range(4): A(f"v_fmac_f32 v{O+i}, v{MRG+12+2*c}, v{MRG+4*c+i}")
    for i in range(4): tagput(O + i)
    A(f"buffer_store_dwordx4 {vr(O)}, v{MA+6}, {rWS}, s58 offen {P['hs']}")
    A(f"v_mul_f32 v23, v{VmL}, v{Vl}")
    for c in range(3): A(f"v_fmac_f32 v23, v{MRG+12+2*c}, v{MRG+13+2*c}")
    if P["mlfull"]:
        A(f"v_perm_b32 v{K}, v22, v{VT}, s101\nv_perm_b32 v{K+1}, v23, v{VT}, s101\ns_nop 0")
        A(f"v_mov_b32_dpp v{K+2}, v{K} row_ror:8 row_mask:0xf bank_mask:0xf\nv_mov_b32_dpp v{K+3}, v{K+1} row_ror:8 row_mask:0xf bank_mask:0xf")
        A("s_mov_b32 exec_lo, 0x000f000f\ns_mov_b32 exec_hi, 0x000f000f")
        A(f"buffer_store_dwordx4 {vr(K)}, v{MA+7}, {rWS}, s59 offen {P['hs']}\ns_mov_b64 exec, -1")
    else:
        tagput(22); tagput(23)
        A("s_mov_b32 exec_lo, 0x01010101\ns_mov_b32 exec_hi, 0x01010101")
        A(f"buffer_store_dwordx2 v[22:23], v{MA+7}, {rWS}, s59 offen {P['hs']}\ns_mov_b64 exec, -1")
    A(f"v_mov_b32 v1, 1\nds_write_b32 v{VZ}, v1 offset:{L_QFLAG+12}")
    if P["wok"]: A("s_cmp_eq_u32 s62, 0\ns_cbranch_scc1 L_e_l1p")
    wo_loads()
    A("L_e_l1p:\ns_mov_b32 s76, s56\ns_mov_b32 s77, s57\nv_lshlrev_b32 v6, 2, v0")
    A("L_e_l1:\ns_waitcnt lgkmcnt(0)")
    stamp(6); stamp(6, 5)
    A(f"s_sub_u32 s78, {sI}, 1\ns_cmp_gt_u32 s78, 8\ns_cbranch_scc1 L_e_done")
    A("v_and_b32 v4, 15, v0\nv_lshlrev_b32 v4, 6, v4\nv_lshrrev_b32 v5, 5, v0\nv_lshl_add_u32 v4, v5, 3, v4")
    acc = (S, S + 1, S + 2, S + 3)
    def l1_issue(b, ml):
        A(f"buffer_load_dwordx2 {vr(ml, 2)}, v4, {rWS}, s77 offen {P['hl']}")
        for p in range(16): A(f"buffer_load_dword v{b+p}, v6, {rWS}, s76 offen offset:{256*p} {P['hl']}")
    def l1_check(b, ml, behind):
        A(f"s_waitcnt vmcnt({behind+16})\nv_mov_b32 v7, v{ml}")
        tagchk(1, (ml, ml + 1), True)
        A("v_and_b32 v2, 0xff, v1\nv_cmp_ne_u32 vcc, 0, v2\ns_cbranch_vccnz L_l1_again")
        for i, r in enumerate((8, 4, 2, 1)):
            A(f"v_mov_b32 v{acc[i]}, 0" + ("" if i == 0 else "\ns_nop 0"))
            A(f"v_max_f32_dpp v7, v7, v7 row_ror:{r} row_mask:0xf bank_mask:0xf")
        A(f"v_sub_f32 v22, v{ml}, v7\nv_exp_f32 v22, v22\ns_nop 0\nv_mul_f32 v23, v22, v{ml+1}")
        for p in range(0, 16, 2):
            A(f"s_waitcnt vmcnt({behind+14-p})")
            tagchk(1, (b + p, b + p + 1))
            if p < 8: A(f"v_add_f32_dpp v23, v23, v23 row_ror:{8 >> (p // 2)} row_mask:0xf bank_mask:0xf")
            if p == 8: A("v_rcp_f32 v23, v23")
            for x in (p, p + 1): A(f"v_fmac_f32_dpp v{acc[x&3]}, v22, v{b+x} row_newbcast:{x} row_mask:0xf bank_mask:0xf")
        tagtest(1)
        A(f"v_add_f32 v2, v{S}, v{S+1}\nv_add_f32 v3, v{S+2}, v{S+3}\ns_cbranch_vccz L_l1_ok")
    if P["l1d"]: A(f"s_sleep {P['l1d']}")
    A("L_l1_poll:")
    l1_issue(RG, RG + 32); l1_check(RG, RG + 32, 0)
    A("L_l1_again:")
    spin("L_l1_poll")
    A("L_l1_ok:")
    stamp(3, 5)
    A("v_add_f32 v1, v2, v3\nv_mul_f32 v1, v1, v23\nv_cvt_pk_bf16_f32 v1, v1, v1\ns_nop 1")
    for t in range(8): A(f"v_mov_b32_dpp v{V+t}, v1 row_newbcast:{t} row_mask:0xf bank_mask:0x3")
    for t in range(8): A(f"v_mov_b32_dpp v{V+t}, v1 row_newbcast:{8+t} row_mask:0xf bank_mask:0xc")
    for t in range(8):
        for v in range(4): A(f"v_and_b32 v{B+4*(t&3)+v}, v{V+t}, v{M+v}")
        if t > 0: mfma(S, WO + 4 * (t - 1), B + 4 * ((t - 1) & 3), "0" if t == 1 else None)
    A("s_nop 0")
    mfma(S, WO + 28, B + 12)
    stamp(5, 5)
    A(f"s_lshl_b32 s82, {sC}, 9\nv_lshrrev_b32 v4, 5, v0\nv_lshl_add_u32 v4, v4, 8, v{VPL}\nv_add_u32 v4, s82, v4\nv_mov_b32 v1, 1")
    exec_valid()
    A(f"s_lshl_b32 s82, s78, 12\ns_lshl_b32 s83, {sH}, 8\ns_add_u32 s82, s82, s83\ns_add_u32 s82, s82, {WS_Y}")
    A(f"ds_write_b128 v4, {vr(S)} offset:{L_Y}\ns_mov_b64 exec, 1")
    A(f"ds_add_rtn_u32 v1, v{VZ}, v1 offset:{L_QFLAG+8}\ns_mov_b64 exec, -1")
    for i in range(8): A(f"ds_read_b32 v{K+i}, v6 offset:{L_Y + 256*i}")
    A("s_waitcnt lgkmcnt(8)\nv_readfirstlane_b32 s78, v1\ns_cmp_lg_u32 s78, 3\ns_cbranch_scc1 L_e_done")
    A(f"s_waitcnt lgkmcnt(4)\nv_add_f32 v{K}, v{K}, v{K+1}\nv_add_f32 v{K+2}, v{K+2}, v{K+3}")
    A(f"s_waitcnt lgkmcnt(0)\nv_add_f32 v{K+4}, v{K+4}, v{K+5}\nv_add_f32 v{K+6}, v{K+6}, v{K+7}")
    A(f"v_add_f32 v{K}, v{K}, v{K+2}\nv_add_f32 v{K+4}, v{K+4}, v{K+6}\nv_add_f32 v22, v{K}, v{K+4}")
    tagput(22)
    A(f"buffer_store_dword v22, v6, {rWS}, s82 offen {P['hs']}")
    A("L_e_done:")
    stamp(7); stamp(7, 5)
    dump_stamps()
    A("L_end:\ns_endpgm")

    A("L_ffn:")
    ACC, DG, DU = 28, 64, 68
    A(f"s_lshl_b32 s73, {sH}, 2\ns_add_u32 s73, s73, {sK}\ns_sub_u32 s73, s73, 11\ns_cmp_lt_u32 {sK}, 15\ns_cbranch_scc1 L_ffn_go")
    A(f"s_bitcmp1_b32 {sH}, 0\ns_cbranch_scc1 L_ffn_done\ns_lshr_b32 s73, {sH}, 1\ns_add_u32 s73, s73, 64\nL_ffn_go:")
    A("v_mov_b32 v1, v100\nv_mov_b32 v5, v101\nv_mov_b32 v6, v102")
    for k in range(9): norm(X + k)
    for i in range(36): A(f"v_mov_b32 v{ACC+i}, 0")
    srd(rWG, 16, 576 * 9216); srd(rWU, 18, 576 * 9216); srd(rWD, 20, 4608 * 1152)
    A("v_lshrrev_b32 v4, 3, v0\nv_and_b32 v5, 7, v0\nv_lshlrev_b32 v5, 4, v5")
    A("v_mul_u32_u24 v2, 0x2400, v4\nv_add_u32 v2, v2, v5\nv_mul_u32_u24 v3, 0x480, v4\nv_add_u32 v3, v3, v5")
    for i in range(8): A(f"v_mov_b32 v{DG+i}, 0")
    A("s_lshl_b32 s74, s73, 7")
    assert FW % 2 == 0
    def gu_load(n):
        A(f"buffer_load_dwordx4 {vr(RG+4*(n%16))}, v2, {rWU if n & 1 else rWG}, s74 offen {wpol}")
        if n & 1: A(f"s_add_u32 s74, s74, {8*9216}")
    for n in range(FW): gu_load(n)
    A("s_mov_b32 s75, 0\nL_ffn_gu:")
    for t in range(8):
        bbuild(X, t, B + 4 * (t & 1))
        for m in range(2):
            n = 2 * t + m
            A(f"s_waitcnt vmcnt({FW-1})")
            gu_load(n + FW)
            mfma(DU if m else DG, RG + 4 * n, B + 4 * (t & 1))
    for k in range(8): A(f"v_mov_b32 v{X+k}, v{X+k+1}")
    if P["split"]:
        A("; the rest of the unit streams during the second pass, so that both passes of this workgroup are slowed alike")
        A(f"s_cmp_lg_u32 s75, {P['split'] - 1}\ns_cbranch_scc1 L_ffn_on")
        A(f"L_ffn_hold:\nds_read_b32 v1, v{VZ} offset:{L_FULL}\ns_waitcnt lgkmcnt(0)\nv_cmp_le_i32 vcc, {sS}, v1\ns_cbranch_vccnz L_ffn_on\ns_sleep 8")
        spin("L_ffn_hold")
        A("L_ffn_on:")
    A("s_add_u32 s75, s75, 1\ns_cmp_lt_u32 s75, 9\ns_cbranch_scc1 L_ffn_gu")
    A(f"s_mul_i32 s74, s73, {64*1152}")
    def wd_load(n):
        t, ct = divmod(n, 9)
        A(f"buffer_load_dwordx4 {vr(RG+4*(n%16))}, v3, {rWD}, s74 offen offset:{ct*128} {wpol}")
        if ct == 8: A(f"s_add_u32 s74, s74, {8*1152}")
    A("s_waitcnt vmcnt(0)")
    for n in range(FW): wd_load(n)
    A(f"v_lshrrev_b32 v4, 5, v0\nv_lshl_add_u32 v4, v4, 8, v{VPL}")
    exec_valid()
    A(f"ds_write_b128 v4, {vr(DG)} offset:{L_GU}\nds_write_b128 v4, {vr(DU)} offset:{L_GU+512}\ns_mov_b64 exec, -1")
    A("v_bfe_u32 v4, v0, 2, 1\nv_lshrrev_b32 v5, 3, v0\nv_lshl_add_u32 v4, v4, 3, v5\nv_and_b32 v5, 3, v0\nv_lshl_add_u32 v4, v4, 2, v5")
    A("v_lshlrev_b32 v4, 2, v4\ns_waitcnt lgkmcnt(0)")
    for i in range(4): A(f"ds_read_b32 v{64+i}, v4 offset:{L_GU + 256*i}")
    A("s_waitcnt lgkmcnt(0)\nv_add_f32 v64, v64, v65\nv_add_f32 v66, v66, v67")
    rbf(64, 64); rbf(66, 66)
    A(f"v_mul_f32 v64, {hex(LOG2E ^ 0x80000000)}, v64\nv_exp_f32 v64, v64\ns_nop 0\nv_add_f32 v64, 1.0, v64\nv_rcp_f32 v64, v64\ns_nop 0")
    rbf(64, 64)
    A(f"v_mul_f32 v64, v64, v66\nv_cvt_pk_bf16_f32 v{X}, v64, v64\ns_nop 1")
    for n in range(72):
        t, ct = divmod(n, 9)
        if ct == 0: bbuild(X, t, B + 4 * (t & 1))
        A(f"s_waitcnt vmcnt({min(FW-1, 71-n)})")
        if n + FW < 72: wd_load(n + FW)
        else: A("s_nop 0")
        mfma(ACC + 4 * ct, RG + 4 * (n % 16), B + 4 * (t & 1))
    A(f"s_lshl_b32 s75, s73, 8\ns_add_u32 s75, s75, {WS_F}\ns_nop 4")
    for ct in range(9):
        for i in range(4): A(f"v_mov_b32_dpp v{V+8+i}, v{ACC+4*ct+i} row_ror:8 row_mask:0xf bank_mask:0xf")
        A("s_nop 0")
        for i in range(4): A(f"v_permlane32_swap_b32 v{V+8+i}, v{V+12+i}")
        for i in range(4): A(f"v_add_f32 v{ACC+4*ct+i}, v{ACC+4*ct+i}, v{V+12+i}")
        for i in range(4): tagput(ACC + 4 * ct + i)
    A("s_mov_b64 exec, 0x00ff00ff")
    for ct in range(9):
        A(f"buffer_store_dwordx4 {vr(ACC+4*ct)}, v{VPL}, {rWS}, s75 offen sc1")
        if ct < 8: A(f"s_add_u32 s75, s75, {72*256}")
    A("s_mov_b64 exec, -1")
    stamp(3)
    A("s_branch L_ffn_done")

    A("L_code_end:")
    errs = hazard.check(L)
    if errs:
        print("\n".join(errs)); raise SystemExit("hazards found")
    lds = RINGE
    body = "\n".join(x if x.endswith(":") and not x.startswith(";") else "    " + x for x in L)
    head = HEADER.replace("@LAUNCH@", f"; @launch grid=(256,1,1) block=({64*NW},1,1) lds={lds}\n" + DESC.rstrip("\n"))
    tail = f"""
.section .rodata,"a"
.p2align 6
.amdhsa_kernel {NAME}_kernel
  .amdhsa_next_free_vgpr 228
  .amdhsa_next_free_sgpr 102
  .amdhsa_accum_offset 228
  .amdhsa_group_segment_fixed_size 0
  .amdhsa_kernarg_size 96
  .amdhsa_user_sgpr_count 2
  .amdhsa_user_sgpr_kernarg_segment_ptr 1
  .amdhsa_system_sgpr_workgroup_id_x 1
  .amdhsa_float_denorm_mode_32 3
.end_amdhsa_kernel
"""
    return head + body + tail, lds

if __name__ == "__main__":
    out = sys.argv[1]
    kw = eval("dict(" + (sys.argv[2] if len(sys.argv) > 2 else "") + ")")
    txt, lds = build(**kw)
    open(out, "w").write(txt)
    import subprocess
    r = subprocess.run([sys.executable, "cdna_unwritten_srd_check.py", out], capture_output=True, text=True)
    print(r.stdout.strip()[:1500])
```

```python
def gen(name, G=256, W=4, D=16, g=4, pattern="wg", pol="", mode="reg", klayout="lin", vlayout="lin", hmap="xcd", rot=0, vgpr=None, F=None, hrot=0, flip=0, alt=None, order=None, nh=1, C=16, spread=None, ways=None):
    assert D % (2 * g) == 0 or (2 * g) % D == 0
    wph = G // 16
    per_wave = (16 << 20) // (wph * W)
    ntiles = per_wave // (g * 1024)
    L = []
    A = L.append
    A(f".globl {name}\n.p2align 8\n.type {name},@function\n{name}:")
    A(f"s_cmp_ge_u32 s2, {G}\ns_cbranch_scc1 {name}_end")
    A("s_load_dwordx4 s[4:7], s[0:1], 8\ns_load_dwordx2 s[20:21], s[0:1], 88")
    A("s_memrealtime s[24:25]")
    A("v_lshrrev_b32 v1, 6, v0\ns_nop 0\nv_readfirstlane_b32 s3, v1")
    A("v_and_b32 v0, 63, v0")
    if hmap == "xcd":
        A("s_and_b32 s16, s2, 7\ns_lshl_b32 s16, s16, 1\ns_lshr_b32 s17, s2, 3\ns_and_b32 s17, s17, 1\ns_or_b32 s16, s16, s17")
        A("s_lshr_b32 s17, s2, 4")
    elif hmap == "mod":
        A("s_and_b32 s16, s2, 15\ns_lshr_b32 s17, s2, 4")
    else:
        A(f"s_lshr_b32 s16, s2, {wph.bit_length()-1}\ns_and_b32 s17, s2, {wph-1}")
    A("s_lshl_b32 s18, s16, 24")
    if pattern == "wave":
        A(f"s_mul_i32 s19, s17, {W}\ns_add_u32 s19, s19, s3\ns_mul_i32 s19, s19, {per_wave}")
        stride = g * 1024
    elif pattern == "wg":
        A(f"s_mul_i32 s19, s17, {W*per_wave}\ns_mul_i32 s22, s3, {g*1024}\ns_add_u32 s19, s19, s22")
        stride = W * g * 1024
    elif pattern == "head":
        A(f"s_mul_i32 s19, s17, {W}\ns_add_u32 s19, s19, s3\ns_mul_i32 s19, s19, {g*1024}")
        stride = wph * W * g * 1024
    elif pattern == "il":
        assert W == 1 and C % g == 0
        A(f"s_lshr_b32 s16, s2, {(wph*nh).bit_length()-1}\ns_and_b32 s17, s2, {wph*nh-1}")
        A(f"s_mul_i32 s18, s16, {nh << 24}\ns_mul_i32 s19, s17, {C*1024}\ns_mov_b32 s37, {wph*nh*C*1024}")
        if ways == 15:
            A(f"s_sub_u32 s19, s17, 1\ns_mul_i32 s19, s19, {C*1024}\ns_mov_b32 s37, {15*C*1024}")
            A(f"s_cmp_eq_u32 s17, 0\ns_cselect_b32 s19, {15 << 20}, s19\ns_cselect_b32 s37, {C*1024}, s37")
        stride = None
    elif pattern == "t15":
        assert W == 1 and g == 4
        spread = [[0, 1, 2, 3]]
        if ways == 16:
            A("s_mov_b32 s38, s17\ns_mov_b32 s37, 16\ns_mov_b32 s19, 0")
        else:
            A("s_sub_u32 s38, s17, 1\ns_mov_b32 s37, 15\ns_cmp_eq_u32 s17, 0\ns_cselect_b32 s38, 3840, s38\ns_cselect_b32 s37, 1, s37\ns_mov_b32 s19, 0")
        stride = None
    elif pattern == "il15":
        assert W == 1
        A(f"s_sub_u32 s19, s17, 1\ns_mul_i32 s19, s19, {g*1024}\ns_mov_b32 s37, {15*g*1024}")
        A(f"s_cmp_eq_u32 s17, 0\ns_cselect_b32 s19, {15 << 20}, s19\ns_cselect_b32 s37, {g*1024}, s37")
        stride = "s37"
    elif pattern == "numa":
        assert W == 1
        A("s_getreg_b32 s36, hwreg(HW_REG_XCC_ID)\ns_bfe_u32 s36, s36, 0x10002")
        A(f"s_xor_b32 s36, s36, {flip}\ns_lshl_b32 s36, s36, 13")
        A("s_and_b32 s19, s17, 3\ns_lshr_b32 s22, s17, 3\ns_lshl_b32 s22, s22, 2\ns_or_b32 s19, s19, s22\ns_lshl_b32 s19, s19, 14")
        stride = 8 * 16384
    elif pattern.startswith("grp"):
        nh = int(pattern[3:])
        A(f"s_lshr_b32 s16, s2, {(wph*nh).bit_length()-1}\ns_and_b32 s17, s2, {wph*nh-1}")
        A(f"s_mul_i32 s18, s16, {nh << 24}")
        A(f"s_mul_i32 s19, s17, {W}\ns_add_u32 s19, s19, s3\ns_mul_i32 s19, s19, {g*1024}")
        stride = wph * nh * W * g * 1024
    A("s_add_u32 s18, s18, s19")
    A("s_waitcnt lgkmcnt(0)")
    A("s_mov_b32 s8, s4\ns_and_b32 s9, s5, 0xffff\ns_mov_b32 s10, 0x10000000\ns_mov_b32 s11, 0x20000")
    A("s_mov_b32 s12, s6\ns_and_b32 s13, s7, 0xffff\ns_mov_b32 s14, 0x10000000\ns_mov_b32 s15, 0x20000")
    def layout(kind, vr):
        if kind == "lin":
            A(f"v_lshlrev_b32 {vr}, 4, v0")
            return [j * 1024 for j in range(g)]
        if kind == "mfma":
            A(f"v_and_b32 {vr}, 15, v0\nv_lshlrev_b32 {vr}, 8, {vr}\nv_lshrrev_b32 v3, 4, v0\nv_lshlrev_b32 v3, 4, v3\nv_add_u32 {vr}, {vr}, v3")
            return [(j // 4) * 4096 + (j % 4) * 64 for j in range(g)]
        if kind == "mfmaq":
            A(f"v_lshrrev_b32 {vr}, 2, v0\nv_lshlrev_b32 {vr}, 8, {vr}\nv_and_b32 v3, 3, v0\nv_lshlrev_b32 v3, 4, v3\nv_add_u32 {vr}, {vr}, v3")
            return [(j // 4) * 4096 + (j % 4) * 64 for j in range(g)]
        if kind == "s128":
            A(f"v_lshrrev_b32 {vr}, 3, v0\nv_lshlrev_b32 {vr}, 8, {vr}\nv_and_b32 v3, 7, v0\nv_lshlrev_b32 v3, 4, v3\nv_add_u32 {vr}, {vr}, v3")
            return [(j // 2) * 2048 + (j % 2) * 128 for j in range(g)]
        if kind == "str4":
            A(f"v_lshrrev_b32 {vr}, 4, v0\nv_lshlrev_b32 {vr}, 10, {vr}\nv_and_b32 v3, 15, v0\nv_lshlrev_b32 v3, 4, v3\nv_add_u32 {vr}, {vr}, v3")
            return [(j // 4) * 4096 + (j % 4) * 256 for j in range(g)]
        if kind == "mfma32":
            A(f"v_and_b32 {vr}, 31, v0\nv_lshlrev_b32 {vr}, 8, {vr}\nv_lshrrev_b32 v3, 5, v0\nv_lshlrev_b32 v3, 4, v3\nv_add_u32 {vr}, {vr}, v3")
            return [(j // 8) * 8192 + (j % 8) * 32 for j in range(g)]
        raise ValueError(kind)
    koff = layout(klayout, "v2")
    voff = layout(vlayout, "v1")
    A(f"s_mul_i32 s26, s2, {rot}\ns_mul_i32 s27, s16, {hrot}\ns_add_u32 s26, s26, s27\ns_and_b32 s26, s26, {ntiles-1}")
    A("s_mov_b32 s27, 0")
    nbuf = max(D // (2 * g), 1)
    ops = []
    def tile_addr():
        if pattern == "t15":
            A("s_and_b32 s28, s38, 0xffc\ns_lshl_b32 s28, s28, 12\ns_and_b32 s29, s38, 3\ns_lshl_b32 s29, s29, 10\ns_add_u32 s28, s28, s29\ns_add_u32 s28, s28, s18\ns_add_u32 s38, s38, s37")
            return
        if pattern == "il":
            c = C // g
            A(f"s_lshr_b32 s28, s26, {c.bit_length()-1}\ns_mul_i32 s28, s28, s37\ns_add_u32 s28, s28, s18")
            if spread:
                n = len(spread) * 4
                A(f"s_and_b32 s29, s26, {(c-1) & ~(n-1)}\ns_mul_i32 s29, s29, 4096\ns_add_u32 s28, s28, s29")
                A(f"s_and_b32 s29, s26, {n-1}\ns_lshr_b32 s29, s29, {len(spread).bit_length()-1}\ns_mul_i32 s29, s29, 1024\ns_add_u32 s28, s28, s29")
            else:
                A(f"s_and_b32 s29, s26, {c-1}\ns_mul_i32 s29, s29, {g*1024}\ns_add_u32 s28, s28, s29")
            A(f"s_add_u32 s26, s26, 1\ns_and_b32 s26, s26, {ntiles-1}")
            return
        if pattern == "numa":
            sub = 8 // g
            A(f"s_lshr_b32 s28, s26, {sub - 1}\ns_mul_i32 s28, s28, {stride}\ns_add_u32 s28, s28, s18")
            A("s_lshr_b32 s29, s28, 8\ns_and_b32 s29, s29, 0x2000\ns_xor_b32 s29, s29, s36\ns_or_b32 s28, s28, s29")
            if sub == 2: A("s_and_b32 s29, s26, 1\ns_lshl_b32 s29, s29, 12\ns_or_b32 s28, s28, s29")
            A(f"s_add_u32 s26, s26, 1\ns_and_b32 s26, s26, {ntiles-1}")
            return
        A(f"s_mul_i32 s28, s26, {stride}\ns_add_u32 s28, s28, s18\ns_add_u32 s26, s26, 1\ns_and_b32 s26, s26, {ntiles-1}")
    def loads(b, wait):
        tile_addr()
        seq = list(range(2 * g))
        if alt:
            blocks = order or list(range(g // alt))
            seq = [x for b_ in blocks for x in list(range(b_ * alt, (b_ + 1) * alt)) + list(range(g + b_ * alt, g + (b_ + 1) * alt))]
        for j in seq:
            srd = "s[8:11]" if j < g else "s[12:15]"
            va = "v2" if j < g else "v1"
            off = koff[j] if j < g else voff[j - g]
            if spread:
                sp = spread[b % len(spread)]
                off = 4096 * (sp[j] if j < g else sp[(j - g + (len(sp) > 4) * 4) % len(sp)])
            so = "s28"
            if off >= 4096:
                A(f"s_add_u32 s29, s28, {off & ~4095}")
                so = "s29"; off &= 4095
            if wait or F:
                A(f"s_waitcnt vmcnt({(F or D)-1})")
            if mode == "reg":
                r = 4 + 4 * ((b * 2 * g + j) % D)
                A(f"buffer_load_dwordx4 v[{r}:{r+3}], {va}, {srd}, {so} offen offset:{off} {pol}")
            else:
                slot = (b * 2 * g + j) % D
                A(f"s_add_u32 m0, s30, {slot*1024 - off + 4096}")
                A("s_nop 0")
                A(f"buffer_load_dwordx4 {va}, {srd}, {so} offen offset:{off} {pol} lds")
    if mode == "lds":
        A(f"s_mul_i32 s30, s3, {D*1024}")
    for b in range(nbuf):
        loads(b, (2 * g) > D)
    A(f"s_mov_b32 s27, {nbuf}")
    A(f"{name}_loop:")
    for b in range(nbuf):
        loads(b, True)
    A(f"s_add_u32 s27, s27, {nbuf}\ns_cmp_lt_u32 s27, {ntiles}\ns_cbranch_scc1 {name}_loop")
    A("s_waitcnt vmcnt(0)")
    A("s_memrealtime s[26:27]\ns_waitcnt lgkmcnt(0)")
    A(f"s_mul_i32 s28, s2, {W}\ns_add_u32 s28, s28, s3\ns_lshl_b32 s28, s28, 4")
    A("s_add_u32 s20, s20, s28\ns_addc_u32 s21, s21, 0")
    A("s_getreg_b32 s25, hwreg(HW_REG_XCC_ID)\ns_getreg_b32 s27, hwreg(HW_REG_HW_ID)")
    A("v_mov_b32 v4, s24\nv_mov_b32 v5, s25\nv_mov_b32 v6, s26\nv_mov_b32 v7, s27\nv_mov_b32 v8, 0")
    A("v_cmp_eq_u32 vcc, 0, v0\ns_and_saveexec_b64 s[30:31], vcc")
    A("global_store_dwordx4 v8, v[4:7], s[20:21]")
    A(f"{name}_end:\ns_endpgm")
    nv = vgpr or (max(4 + 4 * D, 16) if mode == "reg" else 16)
    nv = (nv + 7) // 8 * 8
    kd = f""".section .rodata,"a"
.p2align 6
.amdhsa_kernel {name}
  .amdhsa_next_free_vgpr {nv}
  .amdhsa_next_free_sgpr 40
  .amdhsa_accum_offset {min(nv,256)}
  .amdhsa_group_segment_fixed_size 0
  .amdhsa_kernarg_size 96
  .amdhsa_user_sgpr_count 2
  .amdhsa_user_sgpr_kernarg_segment_ptr 1
  .amdhsa_system_sgpr_workgroup_id_x 1
.end_amdhsa_kernel
.text
"""
    lds = (W * D * 1024 + 4096) if mode == "lds" else 0
    return "\n".join(L) + "\n" + kd, nv, lds
```

```python
import sys, os
sys.path.insert(0, os.path.dirname(os.path.abspath(__file__)))
import hazard

NAME = "recurrent_scan__gqa_block_cached__glu_gated_glu__decode"
HEADER = open(os.path.join(os.path.dirname(os.path.abspath(__file__)), "header.txt")).read()

WS_QP, WS_P, WS_ML, WS_Y, WS_F, WS_CNT, WS_EPOCH, WS_DIAG = 0x0, 0x20000, 0x60000, 0x70000, 0x84000, 0x98000, 0x9c000, 0x100000
L_FULL, L_DONE, L_QFLAG, L_QUE, L_Q, L_SC, L_MO, L_MML, L_Y, RING0 = 0, 512, 528, 640, 1024, 1536, 1536, 5632, 7680, 18432
LOG2E = 0x3FB8AA3B
SCALE = 0x3DB504F3
VALID = "0xff00ff00", "0x00ff00ff"
NW = 6

DEF = dict(F=21, Fd=24, NSL=34, FW=6, pol="nt", wpol="nt", diag=False, spin=0x200000, AH=5, AHA=8, qdelay=14,
           segs=((8, 14), (8, 8)), own=(10, 12, 14, 15), pcs=(13, 20), E=8, R=240, gap=28, pre=True, cpf=True)

def build(**kw):
    P = dict(DEF); P.update(kw)
    F, Fd, NSL, FW, pol, wpol, diag = P["F"], P["Fd"], P["NSL"], P["FW"], P["pol"], P["wpol"], P["diag"]
    P.update(hl="sc1", hs="sc1", apol="sc0")
    L = []
    def A(s):
        for x in s.strip("\n").split("\n"):
            L.append(x.strip())
    sW, sH, sI, sC, sT = "s28", "s29", "s30", "s31", "s100"
    rK, rV, rWS, rX, rWQ, rWO, rWG, rWU, rWD, rOUT = ("s[32:35]", "s[36:39]", "s[40:43]", "s[44:47]", "s[48:51]",
                                                    "s[52:55]", "s[56:59]", "s[60:63]", "s[64:67]", "s[68:71]")
    def srd(r, ptr, n):
        b = int(r[2:r.index(":")])
        A(f"s_mov_b64 s[{b}:{b+1}], s[{ptr}:{ptr+1}]\ns_mov_b32 s{b+2}, {n}\ns_mov_b32 s{b+3}, 0x20000")
    def vr(b, n=4): return f"v[{b}:{b+n-1}]"
    M, KA, VA, VZ, Vm, VmL, Vl, VDA = 8, 12, 16, 17, 18, 19, 20, 21
    O, Q, K, V, S, PP, B, AD, WO, X, XR, RG, DQ = 24, 28, 44, 60, 76, 80, 84, 100, 108, 140, 149, 152, 224
    VPL = 105
    def stamp(k, set_=1):
        if diag and (diag == set_ or (k in (0, 1, 2, 4) and set_ == 1)) and not (diag == 3 and k == 4):
            A(f"s_memrealtime s[{84+2*k}:{85+2*k}]\ns_waitcnt lgkmcnt(0)")
    def dump_stamps():
        if diag:
            A(f"s_mul_i32 s76, s2, {NW}\ns_add_u32 s76, s76, {sW}\ns_lshl_b32 s76, s76, 5\ns_add_u32 s76, s76, {WS_DIAG}")
            A("s_mov_b64 exec, 1\nv_mov_b32 v1, s76")
            for k in range(8):
                A(f"v_mov_b32 v2, s{84+2*k}\nglobal_store_dword v1, v2, s[26:27] offset:{4*k}")
            A("s_mov_b64 exec, -1")
    npf = [0]
    def code_prefetch(r):
        npf[0] += 1
        A(f"s_getpc_b64 s[64:65]\nL_pc{npf[0]}:\ns_sub_u32 s64, s64, L_pc{npf[0]}-{NAME}_kernel\ns_subb_u32 s65, s65, 0")
        A(f"v_lshlrev_b32 v{r}, 7, v0\nv_add_u32 v{r+1}, 0x2000, v{r}\nv_min_u32 v{r+1}, L_code_end-{NAME}_kernel-4, v{r+1}")
        A(f"global_load_dword v{r+2}, v{r}, s[64:65]\nglobal_load_dword v{r+3}, v{r+1}, s[64:65]")
    def spin(lbl):
        A(f"s_sub_u32 s3, s3, 1\ns_cbranch_scc0 {lbl}\ns_endpgm")
    def wave_sum(v, t):
        for r in (8, 4, 2, 1):
            A(f"s_nop 1\nv_add_f32_dpp v{v}, v{v}, v{v} row_ror:{r} row_mask:0xf bank_mask:0xf")
        for op in ("v_permlane16_swap_b32", "v_permlane32_swap_b32"):
            A(f"v_mov_b32 v{t}, v{v}\ns_nop 1\n{op} v{t}, v{v}\nv_add_f32 v{v}, v{v}, v{t}")
    def rbf(d, s):
        A(f"v_cvt_pk_bf16_f32 v{d}, 0, v{s}")
    def bbuild(src, t, b):
        A(f"v_mov_b32_dpp v7, v{src} row_newbcast:{t} row_mask:0xf bank_mask:0x3\ns_nop 1")
        A(f"v_mov_b32_dpp v7, v{src} row_newbcast:{8+t} row_mask:0xf bank_mask:0xc")
        for v in range(4):
            A(f"v_and_b32 v{b+v}, v7, v{M+v}")
    def mfma(d, a, b, c=None):
        A(f"v_mfma_f32_16x16x32_bf16 {vr(d)}, {vr(a)}, {vr(b)}, {vr(d) if c is None else c}")
    def exec_valid():
        A(f"s_mov_b32 exec_lo, {VALID[1]}\ns_mov_b32 exec_hi, {VALID[0]}")
    VT, VFF = 107, 103
    def tagchk(acc, regs, first=False):
        regs = list(regs)
        if first:
            A(f"v_bitop3_b32 v{acc}, v{regs[0]}, v{regs[1]}, v{VT} bitop3:0x7e"); regs = regs[2:]
        for r in regs: A(f"v_bitop3_b32 v{acc}, v{acc}, v{r}, v{VT} bitop3:0xf6")
    def tagtest(acc, dst="vcc"):
        A(f"v_and_b32 v{acc}, 0xff, v{acc}\nv_cmp_ne_u32 {dst}, 0, v{acc}")
    def tagput(r):
        A(f"v_perm_b32 v{r}, v{r}, v{VT}, s101")
    def tagprep():
        A(f"s_add_u32 s82, {sT}, 0x9e3779b9\nv_mov_b32 v{VT}, s82\ns_mov_b32 s101, 0x07060500")

    A(f"{NAME}_kernel:")
    if diag == 6: A("s_memrealtime s[90:91]")
    A("s_cmp_ge_u32 s2, 256\ns_cbranch_scc1 L_end")
    A("s_load_dwordx16 s[4:19], s[0:1], 0\ns_load_dwordx8 s[20:27], s[0:1], 64")
    if diag and diag != 6:
        for k in range(8): A(f"s_mov_b32 s{84+2*k}, 0")
    A("v_lshrrev_b32 v1, 6, v0\nv_and_b32 v0, 63, v0")
    A(f"v_readfirstlane_b32 {sW}, v1")
    A(f"s_lshr_b32 {sH}, s2, 4\ns_and_b32 {sI}, s2, 15")
    A(f"v_mov_b32 v{VZ}, 0\ns_mov_b32 s3, {P['spin']}")
    A(f"s_sub_u32 {sC}, {sW}, 1")
    A(f"s_cmp_lg_u32 {sW}, 0\ns_cbranch_scc1 L_other")
    own, pb, E, gap = P["own"], P["pcs"], P["E"], P["gap"]
    rest = [b for b in range(10, 24) if b not in own and b not in pb]
    RM = sum(1 << b for b in rest)
    dep = lambda v, bs: sum(((v >> i) & 1) << b for i, b in enumerate(bs))
    piece = sorted(dep(k, pb) for k in range(4))
    SN, SA = P["R"] + E, P["R"] - 15 * E
    assert SN % 4 == 0 and SA % 4 == 0 and gap * E <= SN and NSL % 2 == 0 and L_SC + 64 * SN <= RING0
    dt = (3 + max(F, Fd)) // 4
    RINGE = RING0 + NSL * 4096
    def sdep(dst, src, bs, tmp):
        i = 0; first = True
        while i < len(bs):
            k = i
            while k + 1 < len(bs) and bs[k + 1] == bs[k] + 1: k += 1
            A(f"s_and_b32 {tmp}, {src}, {((1 << (k - i + 1)) - 1) << i}\ns_lshl_b32 {dst if first else tmp}, {tmp}, {bs[i] - i}")
            if not first: A(f"s_or_b32 {dst}, {dst}, {tmp}")
            first = False; i = k + 1
    assert rest == sorted(rest)
    def row_next(r):
        A(f"s_or_b32 {r}, {r}, {~RM & 0xffffffff}\ns_add_u32 {r}, {r}, 1\ns_and_b32 {r}, {r}, {RM}")
    LV, LG, rC = 20, 28, "s[44:47]"
    A("s_setprio 3")
    A(f"v_lshrrev_b32 v1, 4, v0\nv_xor_b32 v4, v1, v0\nv_and_b32 v4, 15, v4\nv_lshl_add_u32 v4, v1, 4, v4\nv_lshlrev_b32 v{LG}, 4, v4")
    for j in range(1, 4): A(f"v_xor_b32 v{LG+j}, {64*j + piece[j] - 1024*j}, v{LG}")
    A(f"v_lshlrev_b32 v6, 3, v0\nv_mov_b32 v24, {-dt}\nv_bfrev_b32 v25, -2")
    A(f"ds_write_b64 v6, v[24:25] offset:{L_FULL}")
    A(f"v_lshlrev_b32 v1, 2, v0\nds_write_b32 v1, v{VZ} offset:{L_DONE}")
    A(f"ds_read_b128 v[8:11], v{VZ} offset:{L_DONE}")
    sdep("s72", sI, own, "s82")
    A(f"s_lshl_b32 s69, {sH}, 24\ns_or_b32 s72, s72, s69\ns_mov_b32 s66, 0\ns_mov_b32 s68, {gap - 1}\ns_movk_i32 s78, {SN}")
    A(f"s_sub_u32 s83, {sI}, 1\ns_mul_i32 s83, s83, {E}")
    sdep("s67", "s83", rest, "s82")
    A(f"s_cmp_lg_u32 {sI}, 0\ns_cbranch_scc1 L_ld_sched")
    A(f"s_mov_b32 s66, {dep(15 * E, rest)}\ns_movk_i32 s78, {SA}\ns_movk_i32 s68, 0x7fff\nL_ld_sched:")
    A("s_mov_b32 s76, s66\ns_mov_b32 s77, s67\ns_mov_b32 s71, s68\ns_mov_b32 s70, 0")
    A(f"s_mov_b32 s79, 0\ns_mov_b32 s80, {RING0}\ns_mov_b32 s81, {2 - NSL}")
    A("s_waitcnt lgkmcnt(0)")
    srd(rC, 6, 0x10000000)
    stamp(0)
    def pair(f, lanes, srds, offs, bar=False):
        jp = min(j for j in range(4) if j - f >= 3 - 4 * dt)
        for j in range(8):
            if j == 4: A("s_add_u32 m0, s80, 0x1000")
            if bar and j == min(f - 16, 7): A("s_cmp_eq_u32 s81, " + str(6 - NSL) + "\ns_cbranch_scc1 L_ld_bar\nL_ld_barx:")
            A(f"s_waitcnt vmcnt({f-1})")
            A(f"buffer_load_dwordx4 v{lanes[j>>2]+(j&3)}, {srds[j>>2]}, {offs[j>>2]} offen offset:{(j&3)*1024} {pol} lds")
            if j & 3 == jp: A(f"v_add_u32 v24, 1, v24\nds_write_b64 v6, v[24:25] offset:{L_FULL}")
        A(f"s_add_u32 s80, s80, 0x2000\ns_cmp_eq_u32 s80, {RINGE}\ns_cselect_b32 s80, {RING0}, s80\ns_add_u32 s81, s81, 2")
    A("L_ld_loop:")
    A("s_waitcnt lgkmcnt(0)\nv_min3_u32 v4, v8, v9, v10\nv_min_u32 v4, v4, v11")
    A("s_mov_b32 m0, s80\nv_readfirstlane_b32 s82, v4")
    A(f"ds_read_b128 v[8:11], v{VZ} offset:{L_DONE}")
    A("s_cmp_lt_i32 s82, s81\ns_cbranch_scc1 L_ld_full")
    for i, r in enumerate(("s75", "s74")):
        A(f"s_sub_u32 s71, s71, 1\ns_cbranch_scc1 L_ld_x{i}\ns_or_b32 {r}, s76, s72")
        row_next("s76")
        A(f"L_ld_xr{i}:")
    pair(F, (LG, LG), (rC, rC), ("s75", "s74"), True)
    A("s_add_u32 s79, s79, 2\ns_cmp_lt_u32 s79, s78\ns_cbranch_scc1 L_ld_loop")
    A("s_cmp_lg_u32 s70, 0\ns_cbranch_scc1 L_ld_send")
    stamp(4, 8)
    for j in range(4): A(f"v_mov_b32 v{KA+j}, v{LG+j}")
    A(f"v_lshlrev_b32 v{LG}, 4, v0")
    for j in range(1, 4): A(f"v_or_b32 v{LG+j}, {piece[j] - 1024*j}, v{LG}")
    srd(rK, 6, 0x10000000); srd(rC, 8, 0x10000000)
    A("s_mov_b32 s76, s66\ns_mov_b32 s77, s67\ns_mov_b32 s71, s68\ns_mov_b32 s70, 1\ns_mov_b32 s79, 0\ns_branch L_ld_loop")
    A("L_ld_send:")
    def que_read(n):
        A(f"s_and_b32 s83, {n}, 31\ns_lshl_b32 s83, s83, 2\nv_mov_b32 v5, s83\nds_read_b32 v7, v5 offset:{L_QUE}")
    stamp(3)
    A("L_ld_dre:")
    que_read("s79")
    A("L_ld_dyn:")
    A("s_waitcnt lgkmcnt(0)\nv_min3_u32 v4, v8, v9, v10\nv_min_u32 v4, v4, v11\nv_readfirstlane_b32 s73, v7")
    A("s_mov_b32 m0, s80\nv_readfirstlane_b32 s82, v4")
    A(f"ds_read_b128 v[8:11], v{VZ} offset:{L_DONE}")
    A("s_add_u32 s74, s79, 1\ns_lshr_b32 s75, s73, 16\ns_cmp_lg_u32 s75, s74\ns_cbranch_scc1 L_ld_dfull")
    A("s_cmp_lt_i32 s82, s81\ns_cbranch_scc1 L_ld_dfull")
    A("s_and_b32 s73, s73, 0xffff\ns_cmp_ge_u32 s73, 0x4000\ns_cbranch_scc1 L_ld_drain")
    A("s_lshl_b32 s75, s73, 10\ns_or_b32 s75, s75, s69\ns_mov_b32 s79, s74")
    que_read("s79")
    pair(Fd, (KA, LG), (rK, rC), ("s75", "s75"))
    A("s_branch L_ld_dyn")
    A("L_ld_drain:")
    stamp(1)
    A("s_lshl_b32 s82, s79, 1\nv_mov_b32 v25, s82")
    for r in range(dt - 1, -1, -1):
        A(f"s_waitcnt vmcnt({4*r})\nv_add_u32 v24, 1, v24\nds_write_b64 v6, v[24:25] offset:{L_FULL}")
    stamp(2)
    if diag and diag != 6: A(f"s_mov_b32 s94, s79\ns_sub_u32 s96, {P['spin']}, s3")
    dump_stamps()
    A("s_endpgm")
    A("L_ld_full:")
    spin("L_ld_loop")
    A("L_ld_dfull:")
    spin("L_ld_dre")
    for i, r in enumerate(("s75", "s74")):
        A(f"L_ld_x{i}:\ns_or_b32 {r}, s77, s69")
        row_next("s77")
        A(f"s_cmp_lt_u32 s79, {gap * E - 1 - i}\ns_cselect_b32 s71, {gap - 1}, 0x7fff\ns_branch L_ld_xr{i}")
    A("L_ld_bar:")
    stamp(5, 6)
    A("s_waitcnt lgkmcnt(0)\ns_barrier")
    stamp(6, 6)
    A(f"s_cmp_lg_u32 {sI}, 0\ns_cbranch_scc1 L_ld_barx\ns_barrier\ns_barrier\ns_branch L_ld_barx")

    A("L_other:")
    if P["cpf"]:
        A(f"s_cmp_lg_u32 {sW}, 4\ns_cbranch_scc1 L_nopf")
        code_prefetch(220)
        A("L_nopf:")
    A("s_waitcnt lgkmcnt(0)")
    srd(rX, 4, 1152); srd(rWS, 26, 0x400000 if diag else 0x100000)
    A(f"s_load_dword {sT}, s[26:27], {WS_EPOCH}")
    stamp(0)
    A(f"s_cmp_eq_u32 {sW}, 5\ns_cbranch_scc1 L_xload")
    A(f"s_cmp_lg_u32 {sI}, 0\ns_cbranch_scc1 L_pre_done")
    A("L_xload:")
    A("v_and_b32 v1, 7, v0\nv_lshrrev_b32 v4, 3, v0\nv_lshl_add_u32 v5, v1, 3, v4\nv_lshlrev_b32 v5, 1, v5")
    for k in range(9): A(f"buffer_load_ushort v{X+k}, v5, {rX}, 0 offen offset:{128*k}")
    A(f"s_cmp_lg_u32 {sW}, 5\ns_cbranch_scc1 L_pre_done")
    A(f"s_and_b32 s82, {sI}, 3\ns_mul_i32 s82, s82, 288")
    for k in range(3): A(f"buffer_load_ushort v{XR+k}, v5, {rX}, s82 offen offset:{128*k}")
    srd(rWQ, 10, 576 * 8192)
    A("v_lshlrev_b32 v5, 4, v1\nv_lshl_add_u32 v5, v4, 13, v5")
    A(f"s_lshl_b32 s82, s82, 12\ns_lshl_b32 s83, {sH}, 9\ns_add_u32 s82, s82, s83")
    A(f"s_lshr_b32 s83, {sI}, 2\ns_lshl_b32 s83, s83, 7\ns_add_u32 s82, s82, s83")
    for p in range(18):
        A(f"buffer_load_dwordx4 {vr(RG+4*p)}, v5, {rWQ}, s82 offen {wpol}")
        if p < 17: A("s_add_u32 s82, s82, 0x10000")
    A(f"s_cmp_lg_u32 {sI}, 0\ns_cbranch_scc1 L_pre_done\ns_mov_b64 exec, 1")
    A(f"s_lshl_b32 s82, {sH}, 8\ns_add_u32 s82, s82, {WS_CNT}\nbuffer_store_dword v{VZ}, v{VZ}, {rWS}, s82 offen sc1")
    A("s_mov_b64 exec, -1")
    VWO = 104 + 2
    def wo_prep():
        srd(rWO, 12, 4096 * 1152)
        A(f"s_sub_u32 s82, {sI}, 1\ns_cmp_gt_u32 s82, 8\ns_cselect_b32 s54, 0, s54")
        A("v_lshrrev_b32 v2, 5, v0\nv_lshlrev_b32 v2, 7, v2\nv_bfe_u32 v3, v0, 3, 2\nv_lshl_add_u32 v2, v3, 1, v2")
        A(f"v_mul_u32_u24 v2, 0x480, v2\nv_and_b32 v3, 7, v0\nv_lshl_add_u32 v{VWO}, v3, 4, v2")
        A(f"s_lshl_b32 s82, s82, 7\ns_lshl_b32 s83, {sH}, 3\ns_add_u32 s83, s83, {sC}\ns_mul_i32 s83, s83, {32*1152}\ns_add_u32 s48, s82, s83")
        for t in range(1, 4): A(f"s_add_u32 s{48+t}, s48, {8*t*1152}")
    def wo_loads():
        for t in range(8):
            A(f"buffer_load_dwordx4 {vr(WO+4*t)}, v{VWO}, {rWO}, s{48+(t&3)} offen offset:{(t>>2)*1152} {wpol}")
    A("L_pre_done:")
    A("s_barrier")
    A("v_and_b32 v1, 1, v0\nv_lshlrev_b32 v1, 4, v1\nv_mov_b32 v4, 0xffff\nv_lshlrev_b32 v4, v1, v4\nv_bfe_u32 v5, v0, 1, 2")
    for v in range(4):
        A(f"v_cmp_eq_u32 vcc, {v}, v5\ns_nop 1\nv_cndmask_b32 v{M+v}, 0, v4, vcc")
    A(f"v_bfe_u32 v4, v0, 4, 1\nv_and_b32 v5, 7, v0\nv_lshl_add_u32 v4, v4, 3, v5\nv_lshlrev_b32 v{VPL}, 4, v4")
    A(f"s_cmp_eq_u32 {sW}, 5\ns_cbranch_scc1 L_ln")
    A(f"s_cmp_lg_u32 {sI}, 0\ns_cbranch_scc1 L_cons_main\ns_waitcnt vmcnt(0)")
    A("L_ln:")
    stamp(3, 2)
    A("s_waitcnt vmcnt(21)")
    stamp(5, 2)
    for k in range(9): A(f"v_lshlrev_b32 v{X+k}, 16, v{X+k}")
    A(f"v_add_f32 v1, v{X}, v{X+1}")
    for k in range(2, 9): A(f"v_add_f32 v1, v1, v{X+k}")
    wave_sum(1, 2)
    A("s_mov_b32 s82, 0x3ae38e39\ns_mov_b32 s83, 0x44100000")
    def div576(v):
        A(f"v_mul_f32 v2, s82, v{v}\nv_fma_f32 v3, -v2, s83, v{v}\nv_fma_f32 v{v}, v3, s82, v2")
    div576(1)
    A(f"v_sub_f32 v2, v{X}, v1\nv_mul_f32 v4, v2, v2")
    for k in range(1, 9): A(f"v_sub_f32 v2, v{X+k}, v1\nv_fmac_f32 v4, v2, v2")
    wave_sum(4, 2)
    div576(4)
    rbf(1, 1); rbf(4, 4)
    A("v_add_f32 v4, 0x3727c5ac, v4"); rbf(4, 4)
    A("v_sqrt_f32 v5, v4\ns_nop 0\nv_rcp_f32 v6, v5\nv_fma_f32 v3, -v5, v5, v4\nv_mul_f32 v6, 0.5, v6\nv_fma_f32 v5, v3, v6, v5")
    rbf(5, 5)
    A("v_rcp_f32 v6, v5")
    def norm(r):
        A(f"v_sub_f32 v2, v{r}, v1"); rbf(2, 2)
        A(f"v_mul_f32 v3, v2, v6\nv_fma_f32 v4, -v3, v5, v2\nv_fma_f32 v3, v4, v6, v3\nv_cvt_pk_bf16_f32 v{r}, v3, v3")
    A(f"s_cmp_lg_u32 {sI}, 0\ns_cbranch_scc1 L_ln_xr")
    for k in range(9): norm(X + k)
    A(f"s_cmp_lg_u32 {sW}, 5\ns_cbranch_scc1 L_ffn")
    A("L_ln_xr:\ns_waitcnt vmcnt(18)")
    for k in range(3):
        A(f"v_lshlrev_b32 v{XR+k}, 16, v{XR+k}"); norm(XR + k)
    A("s_nop 0")
    stamp(6, 2)
    for p in range(18):
        bbuild(XR + p // 8, p % 8, B + 4 * (p & 1))
        A(f"s_waitcnt vmcnt({17 - p})\ns_nop 0")
        mfma(DQ, RG + 4 * p, B + 4 * (p & 1), "0" if p == 0 else None)
    A("s_waitcnt lgkmcnt(0)")
    tagprep()
    A(f"s_lshl_b32 s82, {sH}, 12\ns_and_b32 s83, {sI}, 3\ns_lshl_b32 s83, s83, 10\ns_add_u32 s82, s82, s83")
    A(f"s_lshr_b32 s83, {sI}, 2\ns_lshl_b32 s83, s83, 8\ns_add_u32 s82, s82, s83")
    for i in range(4): A(f"v_mov_b32_dpp v{V+i}, v{DQ+i} row_ror:8 row_mask:0xf bank_mask:0xf")
    A("s_nop 0")
    for i in range(4): A(f"v_permlane32_swap_b32 v{V+i}, v{V+4+i}")
    for i in range(4): A(f"v_add_f32 v{K+i}, v{DQ+i}, v{V+4+i}")
    for i in range(4): A(f"v_bfi_b32 v{K+i}, 15, v{VT}, v{K+i}")
    stamp(7, 2)
    A("s_mov_b64 exec, 0x00ff00ff\ns_waitcnt vmcnt(0)")
    A(f"buffer_store_dwordx4 {vr(K)}, v{VPL}, {rWS}, s82 offen sc1")
    A("s_mov_b64 exec, -1")
    stamp(1)
    A(f"s_cmp_eq_u32 {sI}, 0\ns_cbranch_scc1 L_ffn")
    A("L_qgather:")
    A(f"v_lshlrev_b32 v4, 4, v0\ns_lshl_b32 s82, {sH}, 12")
    if P["qdelay"] is not None:
        A(f"L_qdel:\nds_read_b32 v1, v{VZ} offset:{L_FULL}\ns_waitcnt lgkmcnt(0)\nv_cmp_le_i32 vcc, {P['qdelay']}, v1\ns_cbranch_vccnz L_qdel_ok")
        A(f"s_cmp_eq_u32 {sI}, 0\ns_cbranch_scc1 L_qdel_ok\ns_sleep 2")
        spin("L_qdel")
        A("L_qdel_ok:")
    A("L_qpoll:")
    for p in range(4): A(f"buffer_load_dwordx4 {vr(RG+4*p)}, v4, {rWS}, s82 offen offset:{p*1024} sc1")
    for p in range(4):
        A(f"s_waitcnt vmcnt({3-p})")
        tagchk(1, range(RG + 4 * p, RG + 4 * p + 4), p == 0)
    A("v_and_b32 v1, 15, v1\nv_cmp_ne_u32 vcc, 0, v1")
    A("s_cbranch_vccz L_qready\ns_sleep 2")
    spin("L_qpoll")
    A("L_qready:")
    stamp(2)
    for i in range(4): A(f"v_add_f32 v{RG+i}, v{RG+i}, v{RG+4+i}\nv_add_f32 v{RG+8+i}, v{RG+8+i}, v{RG+12+i}")
    for i in range(4): A(f"v_add_f32 v{RG+i}, v{RG+i}, v{RG+8+i}")
    A("v_lshrrev_b32 v4, 3, v0\nv_and_b32 v5, 7, v0\nv_lshl_add_u32 v4, v4, 5, v5\nv_lshlrev_b32 v4, 1, v4")
    A(f"v_cvt_pk_bf16_f32 v{RG}, v{RG}, v{RG+1}\nv_cvt_pk_bf16_f32 v{RG+4}, v{RG+2}, v{RG+3}")
    A(f"ds_write_b16 v4, v{RG} offset:{L_Q}\nds_write_b16_d16_hi v4, v{RG} offset:{L_Q+16}")
    A(f"ds_write_b16 v4, v{RG+4} offset:{L_Q+32}\nds_write_b16_d16_hi v4, v{RG+4} offset:{L_Q+48}")
    A(f"v_mov_b32 v5, 1\ns_waitcnt lgkmcnt(0)\nds_write_b32 v{VZ}, v5 offset:{L_QFLAG}")
    if P["pre"]:
        A("v_lshrrev_b32 v5, 4, v0\nv_and_b32 v6, 15, v0\nv_lshlrev_b32 v6, 4, v6\nv_lshl_add_u32 v5, v5, 12, v6")
        A(f"s_lshl_b32 s82, {sH}, 14\ns_lshl_b32 s83, {sI}, 8\ns_add_u32 s82, s82, s83\ns_add_u32 s82, s82, {WS_P}")
        A(f"s_lshl_b32 s80, {sH}, 12\ns_lshl_b32 s83, {sI}, 6\ns_add_u32 s80, s80, s83\ns_add_u32 s80, s80, {WS_ML}")
        A(f"s_lshl_b32 s81, {sI}, 12\ns_lshl_b32 s83, {sH}, 8\ns_add_u32 s81, s81, s83\ns_add_u32 s81, s81, {WS_Y - 4096}")
        A("v_lshlrev_b32 v4, 10, v0")
        A(f"buffer_load_dwordx4 v[24:27], v5, {rWS}, s82 offen\ns_mov_b64 exec, 15\nbuffer_load_dwordx4 v[28:31], v4, {rWS}, s80 offen")
        A(f"s_mov_b64 exec, 0xffff\nbuffer_load_dwordx4 v[32:35], v6, {rWS}, s81 offen")
        A("s_mov_b64 exec, -1\ns_waitcnt vmcnt(0)")
    A(f"s_movk_i32 s79, {SN}\ns_cmp_eq_u32 {sI}, 0\ns_cselect_b32 s79, {SA}, s79")
    A(f"s_lshl_b32 s78, {sH}, 8\ns_add_u32 s78, s78, {WS_CNT}\nv_mov_b32 v4, s78\nv_mov_b32 v5, 1\ns_mov_b64 exec, 1")
    def que_write(val):
        if val == "s80":
            A("s_lshr_b32 s73, s80, 4")
            sdep("s74", "s73", [b - 10 for b in rest], "s75")
            sdep("s73", "s80", [b - 10 for b in own], "s75")
            A("s_or_b32 s74, s74, s73"); val = "s74"
        A(f"s_and_b32 s82, s79, 31\ns_lshl_b32 s82, s82, 2\ns_add_u32 s79, s79, 1\ns_lshl_b32 s83, s79, 16\ns_or_b32 s83, s83, {val}")
        A(f"v_mov_b32 v1, s82\nv_mov_b32 v2, s83\nds_write_b32 v1, v2 offset:{L_QUE}")
    def demand(lbl, n, ahead):
        A(f"{lbl}:\nds_read_b32 v1, v{VZ} offset:{L_FULL}\ns_waitcnt lgkmcnt(0)\nv_readfirstlane_b32 s78, v1")
        A(f"s_add_u32 s78, s78, {dt + 2*ahead}\ns_ashr_i32 s78, s78, 1\ns_cmp_le_i32 {n}, s78\ns_cbranch_scc1 {lbl}_go\ns_sleep 2")
        spin(lbl)
        A(f"{lbl}_go:")
    c0 = 0; t0 = 16 * P["R"]; chain = []
    for cnt, sz in P["segs"]:
        chain.append((c0, t0, sz)); c0 += cnt; t0 += cnt * sz
        assert sz + P["AHA"] + 2 < 32
    nclaim = c0 + 4096 - t0
    assert t0 < 4096 and P["AH"] >= 3
    demand("L_ca", "s79", P["AHA"])
    A(f"global_atomic_add v20, v4, v5, s[26:27] {P['apol']}\ns_waitcnt vmcnt(0)\nv_readfirstlane_b32 s78, v20")
    A(f"s_cmp_ge_u32 s78, {c0}\ns_cbranch_scc1 L_ca_one")
    for i, (c, t, sz) in enumerate(chain):
        if i == 0: A(f"s_movk_i32 s80, {t - c*sz}\ns_mov_b32 s81, {sz}")
        else: A(f"s_cmp_ge_u32 s78, {c}\ns_cselect_b32 s80, {t - c*sz}, s80\ns_cselect_b32 s81, {sz}, s81")
    A("s_mul_i32 s78, s78, s81\ns_add_u32 s80, s80, s78\nL_ca_put:")
    que_write("s80")
    A("s_add_u32 s80, s80, 1\ns_sub_u32 s81, s81, 1\ns_cmp_lg_u32 s81, 0\ns_cbranch_scc1 L_ca_put\ns_branch L_ca")
    A(f"L_ca_one:\ns_cmp_ge_u32 s78, {nclaim}\ns_cbranch_scc1 L_cl_end\ns_add_u32 s80, s78, {t0 - c0}")
    que_write("s80")
    A("s_mov_b32 s76, s79\ns_add_u32 s77, s76, 4")
    for k in range(4):
        demand(f"L_cl_{k}", "s76", P["AH"])
        A(f"global_atomic_add v{20+k}, v4, v5, s[26:27] {P['apol']}")
        A(f"s_add_u32 s76, s76, 1\ns_cmp_lt_u32 s76, s77\ns_cbranch_scc1 L_cl_{(k+1)%4}")
        A(f"s_waitcnt vmcnt(3)\nv_readfirstlane_b32 s80, v{20+(k+1)%4}")
        A(f"s_cmp_ge_u32 s80, {nclaim}\ns_cbranch_scc1 L_cl_end\ns_add_u32 s80, s80, {t0 - c0}")
        que_write("s80")
    A("s_branch L_cl_0")
    A("L_cl_end:")
    que_write("0xffff")
    A("s_mov_b64 exec, -1")
    A(f"s_cmp_lg_u32 {sI}, 10\ns_cbranch_scc1 L_e_done\ns_cmp_gt_u32 {sH}, 8\ns_cbranch_scc1 L_e_done")
    srd(rOUT, 22, 1152)
    A("v_lshrrev_b32 v4, 5, v0\nv_and_b32 v5, 3, v0\nv_lshl_add_u32 v4, v4, 2, v5\nv_bfe_u32 v5, v0, 2, 3\nv_lshl_add_u32 v4, v4, 3, v5")
    A(f"v_lshlrev_b32 v2, 1, v4\ns_lshl_b32 s79, {sH}, 7")
    A(f"buffer_load_ushort v3, v2, {rX}, s79 offen")
    A(f"v_lshlrev_b32 v4, 2, v0\ns_lshl_b32 s82, {sH}, 12")
    def issue(b):
        for p in range(16): A(f"buffer_load_dword v{b+p}, v4, {rWS}, s80 offen offset:{256*p} {P['hl']}")
    def check(b, dst, behind, ok):
        for p in range(0, 16, 2):
            A(f"s_waitcnt vmcnt({behind+14-p})")
            tagchk(1, (b + p, b + p + 1), p == 0)
            if p == 0: A(f"v_add_f32 v{dst}, v{b}, v{b+1}")
            else: A(f"v_add_f32 v{dst}, v{dst}, v{b+p}\nv_add_f32 v{dst}, v{dst}, v{b+p+1}")
        tagtest(1)
        A(f"s_cbranch_vccz {ok}")
    def gather_sum(lbl, base, dst, slp):
        A(f"s_add_u32 s80, s82, {base}\n{lbl}:")
        issue(RG); check(RG, dst, 0, lbl + "_ok")
        if slp: A(f"s_sleep {slp}")
        spin(lbl)
        A(f"{lbl}_ok:")
    gather_sum("L_f_ffn", WS_F, 22, 16)
    rbf(22, 22)
    A(f"v_mul_f32 v5, {hex(LOG2E ^ 0x80000000)}, v22\nv_exp_f32 v5, v5\ns_nop 0\nv_add_f32 v5, 1.0, v5\nv_rcp_f32 v5, v5\ns_nop 0\nv_mul_f32 v22, v22, v5")
    rbf(22, 22)
    A("v_lshlrev_b32 v3, 16, v3")
    A(f"L_f_wait:\nds_read_b64 v[24:25], v{VZ} offset:{L_FULL}\ns_waitcnt lgkmcnt(0)\nv_cmp_ge_i32 vcc, v24, v25\ns_cbranch_vccnz L_f_go\ns_sleep 4")
    spin("L_f_wait")
    A("L_f_go:")
    A(f"s_add_u32 s80, s82, {WS_Y}")
    issue(RG)
    A("s_sleep 4\nL_f_att:")
    issue(RG + 16); check(RG, 23, 16, "L_f_att_ok"); issue(RG); check(RG + 16, 23, 16, "L_f_att_ok")
    spin("L_f_att")
    A("L_f_att_ok:")
    rbf(23, 23)
    A("v_mul_f32 v23, v23, v22"); rbf(23, 23)
    A(f"v_add_f32 v23, v23, v3\nv_cvt_pk_bf16_f32 v23, v23, v23\nbuffer_store_short v23, v2, {rOUT}, s79 offen")
    A(f"s_cmp_lg_u32 {sH}, 0\ns_cbranch_scc1 L_e_done")
    A(f"s_mov_b64 exec, 1\nv_mov_b32 v4, {WS_EPOCH}\nglobal_store_dword v4, v{VT}, s[26:27] sc1\ns_mov_b64 exec, -1\ns_branch L_e_done")

    A("L_cons_main:")
    VSC = 148
    A("v_and_b32 v1, 15, v0\nv_lshrrev_b32 v4, 4, v0\nv_xor_b32 v5, v1, v4\nv_lshlrev_b32 v5, 4, v5")
    A(f"v_lshl_add_u32 v{KA}, v1, 8, v5")
    for ks in range(1, 4): A(f"v_xor_b32 v{KA+ks}, {64*ks}, v{KA}")
    A(f"v_lshlrev_b32 v5, 4, v1\nv_lshl_add_u32 v{VA}, v4, 10, v5")
    A(f"v_mov_b32 v{Vm}, 0xff800000\nv_mov_b32 v{VmL}, 0xff800000\nv_mov_b32 v{Vl}, 0")
    for i in range(4): A(f"v_mov_b32 v{O+i}, 0")
    A(f"s_lshl_b32 s82, {sC}, 2\nv_mov_b32 v{VDA}, s82")
    if diag == 3:
        for i in range(3): A(f"v_mov_b32 v{225+i}, 0")
        A("s_mov_b32 s86, 0")
    A(f"v_lshrrev_b32 v2, 3, v0\nv_lshlrev_b32 v2, 3, v2\ns_lshl_b32 s82, {sC}, 6\nv_add_u32 v{VSC}, s82, v2")
    A("v_bfe_u32 v5, v0, 3, 1\nv_lshlrev_b32 v5, 8, v5\nv_lshl_add_u32 v5, v4, 4, v5")
    A(f"s_mov_b32 s72, {hex(SCALE)}\ns_mov_b32 s73, {hex(LOG2E)}\ns_mov_b32 s74, 0xffff0000")
    A(f"s_mov_b32 s76, {sC}\ns_lshl_b32 s77, {sC}, 12\ns_add_u32 s77, s77, {RING0}\ns_mov_b32 s78, 0")
    A(f"s_movk_i32 s60, {SN}\ns_cmp_eq_u32 {sI}, 0\ns_cselect_b32 s60, {SA}, s60\ns_lshl_b32 s61, s60, 1")
    A(f"s_sub_u32 s82, {SN}, s60\ns_lshl_b32 s82, s82, 6\nv_add_u32 v{VSC}, s82, v{VSC}")
    assert L_SC + 64 * (SN - SA) >= L_Y + 2048 and L_SC + 64 * (SN - NSL - 8) >= L_Y + 2048
    wo_prep()
    MA, MRG = X, RG
    for i in range(1, 4):
        A(f"s_add_u32 s82, {sC}, {i}\ns_and_b32 s82, s82, 3\ns_lshl_b32 s83, s82, 9\ns_lshl_b32 s82, s82, 10")
        A(f"v_lshl_add_u32 v{MA+2*i-2}, v0, 3, s83\nv_lshl_add_u32 v{MA+2*i-1}, v0, 4, s82")
    A(f"v_lshrrev_b32 v2, 4, v0\nv_and_b32 v3, 15, v0\nv_lshlrev_b32 v3, 4, v3\nv_lshl_add_u32 v{MA+6}, v2, 12, v3")
    A(f"v_and_b32 v3, 8, v0\nv_lshl_add_u32 v{MA+7}, v2, 10, v3")
    A(f"s_lshl_b32 s56, {sH}, 14\ns_add_u32 s56, s56, {WS_P}\ns_lshl_b32 s83, {sI}, 8\ns_add_u32 s58, s56, s83")
    A(f"s_lshl_b32 s83, {sC}, 12\ns_add_u32 s56, s56, s83")
    A(f"s_lshl_b32 s57, {sH}, 12\ns_add_u32 s57, s57, {WS_ML}\ns_lshl_b32 s83, {sI}, 6\ns_add_u32 s59, s83, s57")
    A(f"s_lshl_b32 s83, {sC}, 10\ns_add_u32 s57, s57, s83\ns_mov_b32 s70, -1\ns_brev_b32 s75, -2")
    def merge_reads():
        A(f"ds_read_b32 v{MRG+18}, v{VZ} offset:{L_QFLAG+4}")
        for i in range(3): A(f"ds_read_b64 {vr(MRG+12+2*i, 2)}, v{MA+2*i} offset:{L_MML}")
        for i in range(3): A(f"ds_read_b128 {vr(MRG+4*i)}, v{MA+2*i+1} offset:{L_MO}")
    A(f"L_qwait:\nds_read_b32 v1, v{VZ} offset:{L_QFLAG}\ns_waitcnt lgkmcnt(0)\nv_readfirstlane_b32 s79, v1")
    A("s_cmp_lg_u32 s79, 0\ns_cbranch_scc1 L_qgo\ns_sleep 1")
    spin("L_qwait")
    A("L_qgo:")
    tagprep()
    for ks in range(4): A(f"ds_read_b128 {vr(Q+4*ks)}, v5 offset:{L_Q + 64*ks}")
    A("s_waitcnt lgkmcnt(0)")
    stamp(4)
    def landed(lbl, item):
        A(f"s_cmp_lt_i32 {item}, s78\ns_cbranch_scc1 {lbl}_go")
        A(f"{lbl}_poll:\nds_read_b32 v22, v{VZ} offset:{L_FULL}\ns_waitcnt lgkmcnt(0)\nv_readfirstlane_b32 s78, v22")
        A(f"s_cmp_lt_i32 {item}, s78\ns_cbranch_scc1 {lbl}_go")
        spin(f"{lbl}_poll")
        A(f"{lbl}_go:")
    ntr = [0]
    def trace():
        if diag == 3:
            ntr[0] += 1; n = ntr[0]
            A(f"s_memrealtime s[84:85]\ns_waitcnt lgkmcnt(0)\ns_and_b32 m0, s86, 63\ns_cmp_lt_u32 s86, 64\ns_cbranch_scc0 L_tr{n}a")
            A(f"v_writelane_b32 v225, s84, m0\ns_branch L_tr{n}c\nL_tr{n}a:\ns_cmp_lt_u32 s86, 128\ns_cbranch_scc0 L_tr{n}b\nv_writelane_b32 v226, s84, m0\ns_branch L_tr{n}c")
            A(f"L_tr{n}b:\nv_writelane_b32 v227, s84, m0\nL_tr{n}c:\ns_add_u32 s86, s86, 1")
    def slot_next(step):
        A(f"s_add_u32 s77, s77, {step}\ns_sub_u32 s79, s77, {NSL*4096}\ns_cmp_ge_u32 s77, {RINGE}\ns_cselect_b32 s77, s79, s77")
    def k_reads():
        for ks in range(4): A(f"v_add_u32 v{AD+ks}, s77, v{KA+ks}\nds_read_b128 {vr(K+4*ks)}, v{AD+ks}")
    def qk():
        for ks in range(4):
            A(f"s_waitcnt lgkmcnt({3-ks})")
            mfma(S, K + 4 * ks, Q + 4 * ks, "0" if ks == 0 else None)
    def v_reads(off):
        for r in range(4): A(f"ds_read_b128 {vr(V+4*r)}, v{AD+4} offset:{off + 256*r}")
    def softmax(lbl):
        A(f"v_max3_f32 v22, v{S}, v{S+1}, v{S+2}\nv_max_f32 v22, v22, v{S+3}")
        A(f"v_cmp_gt_f32 vcc, v22, v{Vm}\ns_cbranch_vccnz {lbl}_rescale\n{lbl}_cont:")
        for i in range(4): A(f"v_fma_f32 v{PP+i}, v{S+i}, s73, -v{VmL}")
        for i in range(4): A(f"v_exp_f32 v{PP+i}, v{PP+i}")
        A(f"s_waitcnt lgkmcnt(0)\nds_write_b32 v{VDA}, v{AD} offset:{L_DONE}")
    def pv():
        for i in range(4):
            A(f"v_cvt_pk_bf16_f32 v22, v{PP+i}, v{PP+i}")
            for v in range(4): A(f"v_and_b32 v{B+4*i+v}, v22, v{M+v}")
            A(f"v_add_f32 v{Vl}, v{Vl}, v{PP+i}")
            if i > 0: mfma(O, V + 4 * (i - 1), B + 4 * (i - 1))
        A("s_nop 0")
        mfma(O, V + 12, B + 12)
    def rescale(lbl):
        A(f"{lbl}_rescale:")
        for op in ("v_permlane16_swap_b32", "v_permlane32_swap_b32"):
            A(f"v_mov_b32 v23, v22\ns_nop 1\n{op} v23, v22\nv_max_f32 v22, v22, v23")
        A(f"v_max_f32 v{Vm}, v{Vm}, v22\nv_mul_f32 v22, s73, v{Vm}\nv_sub_f32 v23, v{VmL}, v22\nv_exp_f32 v23, v23\nv_mov_b32 v{VmL}, v22")
        A(f"v_mul_f32 v{Vl}, v{Vl}, v23")
        for i in range(4): A(f"v_mul_f32 v{O+i}, v{O+i}, v23")
        A(f"s_branch {lbl}_cont")
    A("L_k:")
    landed("L_k", "s76")
    trace()
    k_reads()
    slot_next(0x4000)
    A(f"s_add_u32 s76, s76, 1\nv_mov_b32 v22, s76\ns_add_u32 s76, s76, 3")
    qk()
    A(f"ds_write_b32 v{VDA}, v22 offset:{L_DONE}\ns_mov_b32 exec_lo, 0x01010101\ns_mov_b32 exec_hi, 0x01010101\ns_nop 4")
    for i in range(4): A(f"v_cvt_pk_bf16_f32 v{S+i}, 0, v{S+i}")
    for i in range(4): A(f"v_mul_f32 v{S+i}, s72, v{S+i}")
    A(f"v_cvt_pk_bf16_f32 v22, v{S}, v{S+1}\nv_cvt_pk_bf16_f32 v23, v{S+2}, v{S+3}")
    A(f"ds_write_b64 v{VSC}, v[22:23] offset:{L_SC}\ns_mov_b64 exec, -1\nv_add_u32 v{VSC}, 0x100, v{VSC}")
    A("s_cmp_lt_u32 s76, s60\ns_cbranch_scc1 L_k")
    A(f"s_lshl_b32 s82, s60, 6\nv_subrev_u32 v{VSC}, s82, v{VSC}")
    A("L_v:")
    landed("L_v", "s76")
    trace()
    A(f"ds_read_b64 v[22:23], v{VSC} offset:{L_SC}\nv_add_u32 v{AD+4}, s77, v{VA}")
    v_reads(0)
    slot_next(0x4000)
    A(f"v_add_u32 v{VSC}, 0x100, v{VSC}\ns_add_u32 s76, s76, 1\nv_mov_b32 v{AD}, s76\ns_add_u32 s76, s76, 3")
    A(f"s_waitcnt lgkmcnt(4)\nv_lshlrev_b32 v{S}, 16, v22\nv_and_b32 v{S+1}, s74, v22\nv_lshlrev_b32 v{S+2}, 16, v23\nv_and_b32 v{S+3}, s74, v23")
    softmax("L_v"); pv()
    A("s_cmp_lt_u32 s76, s61\ns_cbranch_scc1 L_v")
    A(f"s_add_u32 s76, s76, {sC}\ns_lshl_b32 s82, {sC}, 12")
    slot_next("s82")
    A("L_c_top:\ns_cmp_lt_i32 s76, s78\ns_cbranch_scc1 L_c_go\ns_cmp_ge_i32 s76, s75\ns_cbranch_scc1 L_c_exit")
    A(f"L_c_poll:\nds_read_b64 v[22:23], v{VZ} offset:{L_FULL}\ns_waitcnt lgkmcnt(0)")
    A("v_readfirstlane_b32 s78, v22\nv_readfirstlane_b32 s75, v23\ns_add_u32 s70, s75, 6")
    A("s_cmp_lt_i32 s76, s78\ns_cbranch_scc1 L_c_go\ns_cmp_ge_i32 s76, s75\ns_cbranch_scc1 L_c_exit")
    spin("L_c_poll")
    A("L_c_vwait:")
    A(f"ds_read_b64 v[22:23], v{VZ} offset:{L_FULL}\ns_waitcnt lgkmcnt(0)\nv_readfirstlane_b32 s78, v22\nv_readfirstlane_b32 s75, v23")
    A("s_add_u32 s70, s75, 6\ns_cmp_lt_i32 s82, s78\ns_cbranch_scc1 L_c_v")
    spin("L_c_vwait")
    rescale("L_v"); rescale("L_c")
    A("L_c_go:")
    trace(); trace()
    k_reads()
    A(f"v_add_u32 v{AD+4}, s77, v{VA}")
    slot_next(0x8000)
    qk()
    A("s_add_u32 s82, s76, 1\ns_cmp_lt_i32 s82, s78\ns_cbranch_scc0 L_c_vwait\nL_c_v:")
    v_reads(4096)
    A(f"s_add_u32 s76, s76, 2\nv_mov_b32 v{AD}, s76\ns_add_u32 s76, s76, 6")
    for i in range(4): A(f"v_cvt_pk_bf16_f32 v{S+i}, 0, v{S+i}")
    for i in range(4): A(f"v_mul_f32 v{S+i}, s72, v{S+i}")
    for i in range(4): A(f"v_cvt_pk_bf16_f32 v{S+i}, 0, v{S+i}")
    softmax("L_c")
    A("s_cmp_lg_u32 s76, s70\ns_cbranch_scc1 L_c_pvb\ns_mov_b32 s61, 0")
    merge_reads()
    A("L_c_pvb:")
    pv()
    A("s_branch L_c_top")
    A("L_c_exit:")
    if diag == 3:
        A(f"s_lshl_b32 s84, s2, 2\ns_add_u32 s84, s84, {sC}\ns_lshl_b32 s84, s84, 10\ns_add_u32 s84, s84, {WS_DIAG + 0x20000}\nv_lshlrev_b32 v1, 2, v0")
        for i in range(3): A(f"buffer_store_dword v{225+i}, v1, {rWS}, s84 offen offset:{256*i}")
        A(f"buffer_store_dword v{VZ}, v1, {rWS}, s84 offen offset:768")
    stamp(5)
    for op in ("v_permlane16_swap_b32", "v_permlane32_swap_b32"):
        A(f"v_mov_b32 v23, v{Vl}\ns_nop 1\n{op} v23, v{Vl}\nv_add_f32 v{Vl}, v{Vl}, v23")
    A("s_cmp_eq_u32 s61, 0\ns_cbranch_scc1 L_e_dir")
    A(f"s_lshr_b32 s82, s75, 1\ns_sub_u32 s82, s82, 1\ns_and_b32 s82, s82, 3\ns_cmp_eq_u32 s82, {sC}\ns_cbranch_scc1 L_e_re")
    A(f"s_lshl_b32 s82, {sC}, 10\nv_lshl_add_u32 v4, v0, 4, s82\nds_write_b128 v4, {vr(O)} offset:{L_MO}")
    A(f"s_lshl_b32 s82, {sC}, 9\nv_lshl_add_u32 v4, v0, 3, s82\nv_mov_b32 v22, v{VmL}\nv_mov_b32 v23, v{Vl}\nds_write_b64 v4, v[22:23] offset:{L_MML}")
    A(f"v_mov_b32 v1, 1\ns_mov_b64 exec, 1\nds_add_u32 v{VZ}, v1 offset:{L_QFLAG+4}\ns_mov_b64 exec, -1")
    wo_loads()
    A(f"L_e_wait:\nds_read_b32 v1, v{VZ} offset:{L_QFLAG+12}\ns_waitcnt lgkmcnt(0)\nv_cmp_ne_u32 vcc, 0, v1\ns_cbranch_vccnz L_e_l1p")
    spin("L_e_wait")
    A("L_e_re:")
    merge_reads()
    A(f"L_e_dir:\ns_waitcnt lgkmcnt(3)\nv_cmp_ne_u32 vcc, 3, v{MRG+18}\nv_max3_f32 v22, v{MRG+12}, v{MRG+14}, v{MRG+16}\ns_cbranch_vccz L_e_go")
    spin("L_e_re")
    A(f"L_e_go:\nv_max_f32 v22, v22, v{VmL}")
    A(f"v_sub_f32 v{VmL}, v{VmL}, v22")
    for c in range(3): A(f"v_sub_f32 v{MRG+12+2*c}, v{MRG+12+2*c}, v22")
    A(f"v_exp_f32 v{VmL}, v{VmL}")
    for c in range(3): A(f"v_exp_f32 v{MRG+12+2*c}, v{MRG+12+2*c}")
    for i in range(4): A(f"v_mul_f32 v{O+i}, v{VmL}, v{O+i}")
    A("s_waitcnt lgkmcnt(0)")
    for c in range(3):
        for i in range(4): A(f"v_fmac_f32 v{O+i}, v{MRG+12+2*c}, v{MRG+4*c+i}")
    for i in range(4): tagput(O + i)
    A(f"buffer_store_dwordx4 {vr(O)}, v{MA+6}, {rWS}, s58 offen {P['hs']}")
    A(f"v_mul_f32 v23, v{VmL}, v{Vl}")
    for c in range(3): A(f"v_fmac_f32 v23, v{MRG+12+2*c}, v{MRG+13+2*c}")
    tagput(22); tagput(23)
    A("s_mov_b32 exec_lo, 0x01010101\ns_mov_b32 exec_hi, 0x01010101")
    A(f"buffer_store_dwordx2 v[22:23], v{MA+7}, {rWS}, s59 offen {P['hs']}\ns_mov_b64 exec, -1")
    A(f"v_mov_b32 v1, 1\nds_write_b32 v{VZ}, v1 offset:{L_QFLAG+12}")
    wo_loads()
    A("L_e_l1p:\ns_mov_b32 s76, s56\ns_mov_b32 s77, s57\nv_lshlrev_b32 v6, 2, v0")
    A("L_e_l1:\ns_waitcnt lgkmcnt(0)")
    stamp(6); stamp(6, 5)
    A(f"s_sub_u32 s78, {sI}, 1\ns_cmp_gt_u32 s78, 8\ns_cbranch_scc1 L_e_done")
    A("v_and_b32 v4, 15, v0\nv_lshlrev_b32 v4, 6, v4\nv_lshrrev_b32 v5, 5, v0\nv_lshl_add_u32 v4, v5, 3, v4")
    acc = (S, S + 1, S + 2, S + 3)
    def l1_issue(b, ml):
        A(f"buffer_load_dwordx2 {vr(ml, 2)}, v4, {rWS}, s77 offen {P['hl']}")
        for p in range(16): A(f"buffer_load_dword v{b+p}, v6, {rWS}, s76 offen offset:{256*p} {P['hl']}")
    def l1_check(b, ml, behind):
        A(f"s_waitcnt vmcnt({behind+16})\nv_mov_b32 v7, v{ml}")
        tagchk(1, (ml, ml + 1), True)
        A("v_and_b32 v2, 0xff, v1\nv_cmp_ne_u32 vcc, 0, v2\ns_cbranch_vccnz L_l1_again")
        for i, r in enumerate((8, 4, 2, 1)):
            A(f"v_mov_b32 v{acc[i]}, 0" + ("" if i == 0 else "\ns_nop 0"))
            A(f"v_max_f32_dpp v7, v7, v7 row_ror:{r} row_mask:0xf bank_mask:0xf")
        A(f"v_sub_f32 v22, v{ml}, v7\nv_exp_f32 v22, v22\ns_nop 0\nv_mul_f32 v23, v22, v{ml+1}")
        for p in range(0, 16, 2):
            A(f"s_waitcnt vmcnt({behind+14-p})")
            tagchk(1, (b + p, b + p + 1))
            if p < 8: A(f"v_add_f32_dpp v23, v23, v23 row_ror:{8 >> (p // 2)} row_mask:0xf bank_mask:0xf")
            if p == 8: A("v_rcp_f32 v23, v23")
            for x in (p, p + 1): A(f"v_fmac_f32_dpp v{acc[x&3]}, v22, v{b+x} row_newbcast:{x} row_mask:0xf bank_mask:0xf")
        tagtest(1)
        A(f"v_add_f32 v2, v{S}, v{S+1}\nv_add_f32 v3, v{S+2}, v{S+3}\ns_cbranch_vccz L_l1_ok")
    A("L_l1_poll:")
    l1_issue(RG, RG + 32); l1_check(RG, RG + 32, 0)
    A("L_l1_again:")
    spin("L_l1_poll")
    A("L_l1_ok:")
    stamp(3, 5)
    A("v_add_f32 v1, v2, v3\nv_mul_f32 v1, v1, v23\nv_cvt_pk_bf16_f32 v1, v1, v1\ns_nop 1")
    for t in range(8): A(f"v_mov_b32_dpp v{V+t}, v1 row_newbcast:{t} row_mask:0xf bank_mask:0x3")
    for t in range(8): A(f"v_mov_b32_dpp v{V+t}, v1 row_newbcast:{8+t} row_mask:0xf bank_mask:0xc")
    for t in range(8):
        for v in range(4): A(f"v_and_b32 v{B+4*(t&3)+v}, v{V+t}, v{M+v}")
        if t > 0: mfma(S, WO + 4 * (t - 1), B + 4 * ((t - 1) & 3), "0" if t == 1 else None)
    A("s_nop 0")
    mfma(S, WO + 28, B + 12)
    stamp(5, 5)
    A(f"s_lshl_b32 s82, {sC}, 9\nv_lshrrev_b32 v4, 5, v0\nv_lshl_add_u32 v4, v4, 8, v{VPL}\nv_add_u32 v4, s82, v4\nv_mov_b32 v1, 1")
    exec_valid()
    A(f"s_lshl_b32 s82, s78, 12\ns_lshl_b32 s83, {sH}, 8\ns_add_u32 s82, s82, s83\ns_add_u32 s82, s82, {WS_Y}")
    A(f"ds_write_b128 v4, {vr(S)} offset:{L_Y}\ns_mov_b64 exec, 1")
    A(f"ds_add_rtn_u32 v1, v{VZ}, v1 offset:{L_QFLAG+8}\ns_mov_b64 exec, -1")
    for i in range(8): A(f"ds_read_b32 v{K+i}, v6 offset:{L_Y + 256*i}")
    A("s_waitcnt lgkmcnt(8)\nv_readfirstlane_b32 s78, v1\ns_cmp_lg_u32 s78, 3\ns_cbranch_scc1 L_e_done")
    A(f"s_waitcnt lgkmcnt(4)\nv_add_f32 v{K}, v{K}, v{K+1}\nv_add_f32 v{K+2}, v{K+2}, v{K+3}")
    A(f"s_waitcnt lgkmcnt(0)\nv_add_f32 v{K+4}, v{K+4}, v{K+5}\nv_add_f32 v{K+6}, v{K+6}, v{K+7}")
    A(f"v_add_f32 v{K}, v{K}, v{K+2}\nv_add_f32 v{K+4}, v{K+4}, v{K+6}\nv_add_f32 v22, v{K}, v{K+4}")
    tagput(22)
    A(f"buffer_store_dword v22, v6, {rWS}, s82 offen {P['hs']}")
    A("L_e_done:")
    stamp(7); stamp(7, 5)
    dump_stamps()
    A("L_end:\ns_endpgm")

    A("L_ffn:")
    ACC, DG, DU = 28, 64, 68
    FS = RING0 + 24576
    for i in range(36): A(f"v_mov_b32 v{ACC+i}, 0")
    A(f"s_and_b32 s73, {sH}, 1\ns_lshr_b32 s74, {sC}, 2\ns_and_b32 s74, s74, s73\ns_cbranch_scc1 L_ffn_out")
    A(f"s_mul_i32 s73, s73, 5\ns_lshr_b32 s74, {sH}, 1\ns_mul_i32 s74, s74, 9\ns_add_u32 s73, s73, s74\ns_add_u32 s73, s73, {sC}")
    srd(rWG, 16, 576 * 9216); srd(rWU, 18, 576 * 9216); srd(rWD, 20, 4608 * 1152)
    A("v_lshrrev_b32 v4, 3, v0\nv_and_b32 v5, 7, v0\nv_lshlrev_b32 v5, 4, v5")
    A("v_mul_u32_u24 v2, 0x2400, v4\nv_add_u32 v2, v2, v5\nv_mul_u32_u24 v3, 0x480, v4\nv_add_u32 v3, v3, v5")
    for i in range(8): A(f"v_mov_b32 v{DG+i}, 0")
    A("s_lshl_b32 s74, s73, 7")
    assert FW % 2 == 0
    def gu_load(n):
        A(f"buffer_load_dwordx4 {vr(RG+4*(n%16))}, v2, {rWU if n & 1 else rWG}, s74 offen {wpol}")
        if n & 1: A(f"s_add_u32 s74, s74, {8*9216}")
    for n in range(FW): gu_load(n)
    A("s_mov_b32 s75, 0\nL_ffn_gu:")
    for t in range(8):
        bbuild(X, t, B + 4 * (t & 1))
        for m in range(2):
            n = 2 * t + m
            A(f"s_waitcnt vmcnt({FW-1})")
            gu_load(n + FW)
            mfma(DU if m else DG, RG + 4 * n, B + 4 * (t & 1))
    for k in range(8): A(f"v_mov_b32 v{X+k}, v{X+k+1}")
    A("s_add_u32 s75, s75, 1\ns_cmp_lt_u32 s75, 9\ns_cbranch_scc1 L_ffn_gu")
    A(f"s_mul_i32 s74, s73, {64*1152}")
    def wd_load(n):
        t, ct = divmod(n, 9)
        A(f"buffer_load_dwordx4 {vr(RG+4*(n%16))}, v3, {rWD}, s74 offen offset:{ct*128} {wpol}")
        if ct == 8: A(f"s_add_u32 s74, s74, {8*1152}")
    A("s_waitcnt vmcnt(0)")
    for n in range(FW): wd_load(n)
    A(f"s_lshl_b32 s75, {sC}, 10\ns_add_u32 s75, s75, {FS + 32768}")
    A(f"v_lshrrev_b32 v4, 5, v0\nv_lshl_add_u32 v4, v4, 8, v{VPL}\nv_add_u32 v4, s75, v4")
    exec_valid()
    A(f"ds_write_b128 v4, {vr(DG)}\nds_write_b128 v4, {vr(DU)} offset:512\ns_mov_b64 exec, -1")
    A("v_bfe_u32 v4, v0, 2, 1\nv_lshrrev_b32 v5, 3, v0\nv_lshl_add_u32 v4, v4, 3, v5\nv_and_b32 v5, 3, v0\nv_lshl_add_u32 v4, v4, 2, v5")
    A("v_lshlrev_b32 v4, 2, v4\nv_add_u32 v4, s75, v4\ns_waitcnt lgkmcnt(0)")
    A("ds_read_b32 v64, v4\nds_read_b32 v65, v4 offset:256\nds_read_b32 v66, v4 offset:512\nds_read_b32 v67, v4 offset:768")
    A("s_waitcnt lgkmcnt(0)\nv_add_f32 v64, v64, v65\nv_add_f32 v66, v66, v67")
    rbf(64, 64); rbf(66, 66)
    A(f"v_mul_f32 v64, {hex(LOG2E ^ 0x80000000)}, v64\nv_exp_f32 v64, v64\ns_nop 0\nv_add_f32 v64, 1.0, v64\nv_rcp_f32 v64, v64\ns_nop 0")
    rbf(64, 64)
    A(f"v_mul_f32 v64, v64, v66\nv_cvt_pk_bf16_f32 v{X}, v64, v64\ns_nop 1")
    for n in range(72):
        t, ct = divmod(n, 9)
        if ct == 0: bbuild(X, t, B + 4 * (t & 1))
        A(f"s_waitcnt vmcnt({min(FW-1, 71-n)})")
        if n + FW < 72: wd_load(n + FW)
        else: A("s_nop 0")
        mfma(ACC + 4 * ct, RG + 4 * (n % 16), B + 4 * (t & 1))
    A("L_ffn_out:")
    A(f"s_mul_i32 s75, {sC}, 4608\ns_add_u32 s75, s75, {FS}")
    A(f"v_lshrrev_b32 v4, 5, v0\nv_mul_u32_u24 v4, 0x900, v4\nv_add3_u32 v4, v4, v{VPL}, s75\ns_nop 4")
    exec_valid()
    for ct in range(9): A(f"ds_write_b128 v4, {vr(ACC+4*ct)} offset:{ct*256}")
    A("s_mov_b64 exec, -1\ns_waitcnt lgkmcnt(0)\ns_barrier")
    A(f"s_cmp_gt_u32 {sC}, 2\ns_cbranch_scc1 L_ffn_done")
    A(f"s_lshl_b32 s75, {sC}, 6\nv_add_u32 v4, s75, v0\nv_cmp_gt_u32 vcc, 0x90, v4\ns_and_saveexec_b64 s[82:83], vcc")
    A(f"v_lshlrev_b32 v5, 4, v4\nv_add_u32 v5, {FS}, v5")
    for s_ in range(10): A(f"ds_read_b128 {vr(ACC+4*s_)}, v5 offset:{s_*2304}")
    A(f"v_lshrrev_b32 v5, 4, v4\nv_and_b32 v4, 15, v4\nv_lshlrev_b32 v4, 4, v4\nv_lshl_add_u32 v4, v5, 12, v4")
    A(f"s_lshl_b32 s75, {sH}, 8\ns_add_u32 s75, s75, {WS_F}\ns_waitcnt lgkmcnt(0)")
    tagprep()
    for s_ in range(1, 10):
        for i in range(4): A(f"v_add_f32 v{ACC+i}, v{ACC+i}, v{ACC+4*s_+i}")
    for i in range(4): tagput(ACC + i)
    A(f"buffer_store_dwordx4 {vr(ACC)}, v4, {rWS}, s75 offen sc1")
    A("s_mov_b64 exec, -1")
    A("L_ffn_done:")
    A("s_barrier")
    stamp(3)
    A(f"s_cmp_eq_u32 {sW}, 5\ns_cbranch_scc1 L_qgather\ns_branch L_cons_main")

    A("L_code_end:")
    errs = hazard.check(L)
    if errs:
        print("\n".join(errs)); raise SystemExit("hazards found")
    lds = RINGE
    body = "\n".join(x if x.endswith(":") else "    " + x for x in L)
    head = HEADER.replace("@LAUNCH@", f"; @launch grid=(256,1,1) block=({64*NW},1,1) lds={lds}")
    tail = f"""
.section .rodata,"a"
.p2align 6
.amdhsa_kernel {NAME}_kernel
  .amdhsa_next_free_vgpr 228
  .amdhsa_next_free_sgpr 102
  .amdhsa_accum_offset 228
  .amdhsa_group_segment_fixed_size 0
  .amdhsa_kernarg_size 96
  .amdhsa_user_sgpr_count 2
  .amdhsa_user_sgpr_kernarg_segment_ptr 1
  .amdhsa_system_sgpr_workgroup_id_x 1
  .amdhsa_float_denorm_mode_32 3
.end_amdhsa_kernel
"""
    return head + body + tail, lds

if __name__ == "__main__":
    out = sys.argv[1]
    kw = eval("dict(" + (sys.argv[2] if len(sys.argv) > 2 else "") + ")")
    txt, lds = build(**kw)
    open(out, "w").write(txt)
    import subprocess
    r = subprocess.run([sys.executable, "cdna_unwritten_srd_check.py", out], capture_output=True, text=True)
    print(r.stdout.strip()[:1500])
```

```python
import sys, os
sys.path.insert(0, os.path.dirname(os.path.abspath(__file__)))
import hazard

NAME = "recurrent_scan__gqa_block_cached__glu_gated_glu__decode"
HEADER = open(os.path.join(os.path.dirname(os.path.abspath(__file__)), "header.txt")).read()

WS_QP, WS_P, WS_ML, WS_Y, WS_CNT, WS_EPOCH, WS_F, WS_DIAG = 0x0, 0x20000, 0x60000, 0x70000, 0x7a000, 0x7c000, 0x80000, 0x100000
L_FULL, L_DONE, L_QFLAG, L_QUE, L_Q, L_GU, L_SC, L_MO, L_MML, L_Y, RING0 = 0, 512, 528, 640, 1024, 1536, 2560, 2560, 6656, 8704, 18944
LOG2E = 0x3FB8AA3B
SCALE = 0x3DB504F3
VALID = "0xff00ff00", "0x00ff00ff"
NW = 6

DEF = dict(F=21, Fd=24, NSL=34, FW=12, pol="nt", wpol="nt", diag=False, spin=0x200000, AH=5, AHA=8, qdelay=14,
           segs=((8, 12), (8, 6)), own=(10, 11, 14, 15), pcs=(12, 13), R=248, X=24, Fh=None, rot=4, burst=0, Ft=None, Nt=24, fst=4, pre=True, cpf=True)

def build(**kw):
    P = dict(DEF); P.update(kw)
    F, Fd, NSL, FW, pol, wpol, diag = P["F"], P["Fd"], P["NSL"], P["FW"], P["pol"], P["wpol"], P["diag"]
    P.update(hl="sc1", hs="sc1", apol="sc0")
    L = []
    def A(s):
        for x in s.strip("\n").split("\n"):
            L.append(x.strip())
    sW, sH, sI, sC, sT, sK, sS = "s28", "s29", "s30", "s31", "s100", "s14", "s15"
    rK, rV, rWS, rX, rWQ, rWO, rWG, rWU, rWD, rOUT = ("s[32:35]", "s[36:39]", "s[40:43]", "s[44:47]", "s[48:51]",
                                                    "s[52:55]", "s[56:59]", "s[60:63]", "s[64:67]", "s[68:71]")
    def srd(r, ptr, n):
        b = int(r[2:r.index(":")])
        A(f"s_mov_b64 s[{b}:{b+1}], s[{ptr}:{ptr+1}]\ns_mov_b32 s{b+2}, {n}\ns_mov_b32 s{b+3}, 0x20000")
    def vr(b, n=4): return f"v[{b}:{b+n-1}]"
    M, KA, VA, VZ, Vm, VmL, Vl, VDA = 8, 12, 16, 17, 18, 19, 20, 21
    O, Q, K, V, S, PP, B, AD, WO, X, XR, RG, DQ = 24, 28, 44, 60, 76, 80, 84, 100, 108, 140, 149, 152, 224
    VPL = 105
    def stamp(k, set_=1):
        if diag and (diag == set_ or (k in (0, 1, 2, 4) and set_ == 1)) and not (diag == 3 and k == 4):
            A(f"s_memrealtime s[{84+2*k}:{85+2*k}]\ns_waitcnt lgkmcnt(0)")
    def dump_stamps():
        if diag:
            A(f"s_mul_i32 s76, s2, {NW}\ns_add_u32 s76, s76, {sW}\ns_lshl_b32 s76, s76, 5\ns_add_u32 s76, s76, {WS_DIAG}")
            A("s_mov_b64 exec, 1\nv_mov_b32 v1, s76")
            for k in range(8):
                A(f"v_mov_b32 v2, s{84+2*k}\nglobal_store_dword v1, v2, s[26:27] offset:{4*k}")
            A("s_mov_b64 exec, -1")
    npf = [0]
    def code_prefetch(r):
        npf[0] += 1
        A(f"s_getpc_b64 s[64:65]\nL_pc{npf[0]}:\ns_sub_u32 s64, s64, L_pc{npf[0]}-{NAME}_kernel\ns_subb_u32 s65, s65, 0")
        A(f"v_lshlrev_b32 v{r}, 7, v0\nv_add_u32 v{r+1}, 0x2000, v{r}\nv_min_u32 v{r+1}, L_code_end-{NAME}_kernel-4, v{r+1}")
        A(f"global_load_dword v{r+2}, v{r}, s[64:65]\nglobal_load_dword v{r+3}, v{r+1}, s[64:65]")
    def spin(lbl):
        A(f"s_sub_u32 s3, s3, 1\ns_cbranch_scc0 {lbl}\ns_endpgm")
    def wave_sum(v, t):
        for r in (8, 4, 2, 1):
            A(f"s_nop 1\nv_add_f32_dpp v{v}, v{v}, v{v} row_ror:{r} row_mask:0xf bank_mask:0xf")
        for op in ("v_permlane16_swap_b32", "v_permlane32_swap_b32"):
            A(f"v_mov_b32 v{t}, v{v}\ns_nop 1\n{op} v{t}, v{v}\nv_add_f32 v{v}, v{v}, v{t}")
    def rbf(d, s):
        A(f"v_cvt_pk_bf16_f32 v{d}, 0, v{s}")
    def bbuild(src, t, b):
        A(f"v_mov_b32_dpp v7, v{src} row_newbcast:{t} row_mask:0xf bank_mask:0x3\ns_nop 1")
        A(f"v_mov_b32_dpp v7, v{src} row_newbcast:{8+t} row_mask:0xf bank_mask:0xc")
        for v in range(4):
            A(f"v_and_b32 v{b+v}, v7, v{M+v}")
    def mfma(d, a, b, c=None):
        A(f"v_mfma_f32_16x16x32_bf16 {vr(d)}, {vr(a)}, {vr(b)}, {vr(d) if c is None else c}")
    def exec_valid():
        A(f"s_mov_b32 exec_lo, {VALID[1]}\ns_mov_b32 exec_hi, {VALID[0]}")
    VT, VFF = 107, 103
    def tagchk(acc, regs, first=False):
        regs = list(regs)
        if first:
            A(f"v_bitop3_b32 v{acc}, v{regs[0]}, v{regs[1]}, v{VT} bitop3:0x7e"); regs = regs[2:]
        for r in regs: A(f"v_bitop3_b32 v{acc}, v{acc}, v{r}, v{VT} bitop3:0xf6")
    def tagtest(acc, dst="vcc"):
        A(f"v_and_b32 v{acc}, 0xff, v{acc}\nv_cmp_ne_u32 {dst}, 0, v{acc}")
    def tagput(r):
        A(f"v_perm_b32 v{r}, v{r}, v{VT}, s101")
    def tagprep():
        A(f"s_add_u32 s82, {sT}, 0x9e3779b9\nv_mov_b32 v{VT}, s82\ns_mov_b32 s101, 0x07060500")

    A(f"{NAME}_kernel:")
    if diag == 6: A("s_memrealtime s[90:91]")
    A("s_cmp_ge_u32 s2, 256\ns_cbranch_scc1 L_end")
    A("s_load_dwordx8 s[4:11], s[0:1], 0\ns_load_dwordx2 s[12:13], s[0:1], 32\ns_load_dwordx4 s[16:19], s[0:1], 48\ns_load_dwordx8 s[20:27], s[0:1], 64")
    if diag and diag != 6:
        for k in range(8): A(f"s_mov_b32 s{84+2*k}, 0")
    A("v_lshrrev_b32 v1, 6, v0\nv_and_b32 v0, 63, v0")
    A(f"v_readfirstlane_b32 {sW}, v1")
    A(f"s_lshr_b32 {sH}, s2, 4\ns_and_b32 {sI}, s2, 15")
    A(f"s_mul_i32 {sK}, {sH}, 3\ns_add_u32 {sK}, {sK}, {sI}\ns_and_b32 {sK}, {sK}, 15")
    A(f"s_movk_i32 {sS}, {P['R']}\ns_cmp_ge_u32 {sK}, 11\ns_cselect_b32 {sS}, {P['R'] - P['X']}, {sS}")
    A(f"v_mov_b32 v{VZ}, 0\ns_mov_b32 s3, {P['spin']}")
    A(f"s_sub_u32 {sC}, {sW}, 1")
    A(f"s_cmp_lg_u32 {sW}, 0\ns_cbranch_scc1 L_other")
    own, pb, SN = P["own"], P["pcs"], P["R"]
    rest = [b for b in range(10, 24) if b not in own and b not in pb]
    RM = sum(1 << b for b in rest)
    dep = lambda v, bs: sum(((v >> i) & 1) << b for i, b in enumerate(bs))
    piece = sorted(dep(k, pb) for k in range(4))
    XD = P["X"]
    assert SN % 4 == 0 and XD % 4 == 0 and NSL % 2 == 0 and L_SC + 64 * SN <= RING0 and list(own) == sorted(own)
    dt = (3 + max(F, Fd, P['Fh'] or 0, P['Ft'] or 0)) // 4
    RINGE = RING0 + NSL * 4096
    def sdep(dst, src, bs, tmp):
        i = 0; first = True
        while i < len(bs):
            k = i
            while k + 1 < len(bs) and bs[k + 1] == bs[k] + 1: k += 1
            A(f"s_and_b32 {tmp}, {src}, {((1 << (k - i + 1)) - 1) << i}\ns_lshl_b32 {dst if first else tmp}, {tmp}, {bs[i] - i}")
            if not first: A(f"s_or_b32 {dst}, {dst}, {tmp}")
            first = False; i = k + 1
    assert rest == sorted(rest)
    OM = sum(1 << b for b in own[:P["rot"]])
    def count_in(r, mask):
        A(f"s_or_b32 {r}, {r}, {~mask & 0xffffffff}\ns_add_u32 {r}, {r}, 1\ns_and_b32 {r}, {r}, {mask}")
    LV, LG, rC = 20, 28, "s[44:47]"
    A("s_setprio 3")
    A(f"v_lshrrev_b32 v1, 4, v0\nv_xor_b32 v4, v1, v0\nv_and_b32 v4, 15, v4\nv_lshl_add_u32 v4, v1, 4, v4\nv_lshlrev_b32 v{LG}, 4, v4")
    for j in range(1, 4): A(f"v_xor_b32 v{LG+j}, {64*j + piece[j] - 1024*j}, v{LG}")
    A(f"v_lshlrev_b32 v6, 3, v0\nv_mov_b32 v24, {-dt}\nv_bfrev_b32 v25, -2")
    A(f"ds_write_b64 v6, v[24:25] offset:{L_FULL}")
    A(f"v_lshlrev_b32 v1, 2, v0\nds_write_b32 v1, v{VZ} offset:{L_DONE}")
    A(f"ds_read_b128 v[8:11], v{VZ} offset:{L_DONE}")
    sdep("s72", sI, own, "s82")
    A(f"s_lshl_b32 s69, {sH}, 24\ns_or_b32 s72, s72, s69\ns_mov_b32 s76, 0\ns_mov_b32 s77, 0\ns_mov_b32 s70, 0")
    if P["Ft"]: A(f"s_sub_u32 s71, {sS}, {P['Nt']}")
    A(f"s_mov_b32 s79, 0\ns_mov_b32 s80, {RING0}\ns_mov_b32 s81, {2 - NSL}")
    A("s_waitcnt lgkmcnt(0)")
    srd(rC, 6, 0x10000000)
    stamp(0)
    def pair(f, lanes, srds, offs, bar=None):
        jp = min(j for j in range(4) if j - f >= 3 - 4 * dt)
        for j in range(8):
            if j == 4: A("s_add_u32 m0, s80, 0x1000")
            if bar is not None and j == min(f - 16, 7): A(f"s_cmp_eq_u32 s81, {6 - NSL}\ns_cbranch_scc1 L_ld_bar{bar}\nL_ld_barx{bar}:")
            A(f"s_waitcnt vmcnt({f-1})")
            A(f"buffer_load_dwordx4 v{lanes[j>>2]+(j&3)}, {srds[j>>2]}, {offs[j>>2]} offen offset:{(j&3)*1024} {pol} lds")
            if j & 3 == jp: A(f"v_add_u32 v24, 1, v24\nds_write_b64 v6, v[24:25] offset:{L_FULL}")
        A(f"s_add_u32 s80, s80, 0x2000\ns_cmp_eq_u32 s80, {RINGE}\ns_cselect_b32 s80, {RING0}, s80\ns_add_u32 s81, s81, 2")
    def static_loop(sfx, f, end=sS, bar=True):
        A(f"L_ld_loop{sfx}:")
        A("s_waitcnt lgkmcnt(0)\nv_min3_u32 v4, v8, v9, v10\nv_min_u32 v4, v4, v11")
        A("s_mov_b32 m0, s80\nv_readfirstlane_b32 s82, v4")
        A(f"ds_read_b128 v[8:11], v{VZ} offset:{L_DONE}")
        A(f"s_cmp_lt_i32 s82, s81\ns_cbranch_scc1 L_ld_full{sfx}")
        for r in ("s75", "s74"):
            A(f"s_or_b32 {r}, s76, s72")
            count_in("s76", RM)
            if OM:
                A(f"s_xor_b32 {r}, {r}, s77")
                count_in("s77", OM)
        pair(f, (LG, LG), (rC, rC), ("s75", "s74"), sfx if bar else None)
        A(f"s_add_u32 s79, s79, 2\ns_cmp_lt_u32 s79, {end}\ns_cbranch_scc1 L_ld_loop{sfx}")
    if P["Fh"]:
        A(f"s_cmp_lt_u32 {sK}, 11\ns_cbranch_scc1 L_ld_loop")
        static_loop("h", P["Fh"])
        A("s_branch L_ld_pass2")
    if P["Ft"]:
        static_loop("", F, "s71")
        A("s_cmp_lg_u32 s70, 0\ns_cbranch_scc1 L_ld_send")
        static_loop("t", P["Ft"], sS, False)
        A(f"s_mov_b32 s71, {sS}\nL_ld_pass2:")
    else:
        static_loop("", F)
        A("s_cmp_lg_u32 s70, 0\ns_cbranch_scc1 L_ld_send\nL_ld_pass2:")
    stamp(4, 8)
    for j in range(4): A(f"v_mov_b32 v{KA+j}, v{LG+j}")
    A(f"v_lshlrev_b32 v{LG}, 4, v0")
    for j in range(1, 4): A(f"v_or_b32 v{LG+j}, {piece[j] - 1024*j}, v{LG}")
    srd(rK, 6, 0x10000000); srd(rC, 8, 0x10000000)
    A("s_mov_b32 s76, 0\ns_mov_b32 s77, 0\ns_mov_b32 s70, 1\ns_mov_b32 s79, 0\ns_branch L_ld_loop")
    A("L_ld_send:")
    def que_read(n):
        A(f"s_and_b32 s83, {n}, 31\ns_lshl_b32 s83, s83, 2\nv_mov_b32 v5, s83\nds_read_b32 v7, v5 offset:{L_QUE}")
    stamp(3)
    A("L_ld_dre:")
    que_read("s79")
    A("L_ld_dyn:")
    A("s_waitcnt lgkmcnt(0)\nv_min3_u32 v4, v8, v9, v10\nv_min_u32 v4, v4, v11\nv_readfirstlane_b32 s73, v7")
    A("s_mov_b32 m0, s80\nv_readfirstlane_b32 s82, v4")
    A(f"ds_read_b128 v[8:11], v{VZ} offset:{L_DONE}")
    A("s_add_u32 s74, s79, 1\ns_lshr_b32 s75, s73, 16\ns_cmp_lg_u32 s75, s74\ns_cbranch_scc1 L_ld_dfull")
    A("s_cmp_lt_i32 s82, s81\ns_cbranch_scc1 L_ld_dfull")
    A("s_and_b32 s73, s73, 0xffff\ns_cmp_ge_u32 s73, 0x4000\ns_cbranch_scc1 L_ld_drain")
    A("s_lshl_b32 s75, s73, 10\ns_or_b32 s75, s75, s69\ns_mov_b32 s79, s74")
    que_read("s79")
    pair(Fd, (KA, LG), (rK, rC), ("s75", "s75"))
    A("s_branch L_ld_dyn")
    A("L_ld_drain:")
    stamp(1)
    A("s_lshl_b32 s82, s79, 1\nv_mov_b32 v25, s82")
    for r in range(dt - 1, -1, -1):
        A(f"s_waitcnt vmcnt({4*r})\nv_add_u32 v24, 1, v24\nds_write_b64 v6, v[24:25] offset:{L_FULL}")
    stamp(2)
    if diag and diag != 6: A(f"s_mov_b32 s94, s79\ns_sub_u32 s96, {P['spin']}, s3")
    dump_stamps()
    A("s_endpgm")
    for sfx in ("", "h") if P["Fh"] else ("",):
        A(f"L_ld_full{sfx}:")
        spin(f"L_ld_loop{sfx}")
        A(f"L_ld_bar{sfx}:\ns_waitcnt lgkmcnt(0)\ns_barrier")
        if P["burst"]:
            A(f"s_cmp_lt_u32 {sK}, 11\ns_cbranch_scc1 L_ld_barx{sfx}")
            A(f"L_ld_hold{sfx}:\nds_read_b32 v4, v{VZ} offset:{L_QFLAG+16}\ns_waitcnt lgkmcnt(0)\nv_cmp_ne_u32 vcc, 0, v4\ns_cbranch_vccnz L_ld_barx{sfx}\ns_sleep 2")
            spin(f"L_ld_hold{sfx}")
        else:
            A(f"s_branch L_ld_barx{sfx}")
    if P["Ft"]:
        A("L_ld_fullt:")
        spin("L_ld_loopt")
    A("L_ld_dfull:")
    spin("L_ld_dre")

    A("L_other:")
    if P["cpf"]:
        A(f"s_cmp_lg_u32 {sW}, 4\ns_cbranch_scc1 L_nopf")
        code_prefetch(220)
        A("L_nopf:")
    A("s_waitcnt lgkmcnt(0)")
    srd(rX, 4, 1152); srd(rWS, 26, 0x400000 if diag else 0x100000)
    A(f"s_load_dword {sT}, s[26:27], {WS_EPOCH}")
    stamp(0)
    A(f"s_cmp_lg_u32 {sW}, 5\ns_cbranch_scc1 L_pre_done")
    A("v_and_b32 v1, 7, v0\nv_lshrrev_b32 v4, 3, v0\nv_lshl_add_u32 v5, v1, 3, v4\nv_lshlrev_b32 v5, 1, v5")
    for k in range(9): A(f"buffer_load_ushort v{X+k}, v5, {rX}, 0 offen offset:{128*k}")
    A(f"s_and_b32 s82, {sI}, 3\ns_mul_i32 s82, s82, 288")
    for k in range(3): A(f"buffer_load_ushort v{XR+k}, v5, {rX}, s82 offen offset:{128*k}")
    srd(rWQ, 10, 576 * 8192)
    A("v_lshlrev_b32 v5, 4, v1\nv_lshl_add_u32 v5, v4, 13, v5")
    A(f"s_lshl_b32 s82, s82, 12\ns_lshl_b32 s83, {sH}, 9\ns_add_u32 s82, s82, s83")
    A(f"s_lshr_b32 s83, {sI}, 2\ns_lshl_b32 s83, s83, 7\ns_add_u32 s82, s82, s83")
    for p in range(18):
        A(f"buffer_load_dwordx4 {vr(RG+4*p)}, v5, {rWQ}, s82 offen {wpol}")
        if p < 17: A("s_add_u32 s82, s82, 0x10000")
    A(f"s_cmp_lg_u32 {sI}, 0\ns_cbranch_scc1 L_pre_done\ns_mov_b64 exec, 1")
    A(f"s_lshl_b32 s82, {sH}, 8\ns_add_u32 s82, s82, {WS_CNT}\nbuffer_store_dword v{VZ}, v{VZ}, {rWS}, s82 offen sc1")
    A("s_mov_b64 exec, -1")
    VWO = 104 + 2
    def wo_prep():
        srd(rWO, 12, 4096 * 1152)
        A(f"s_sub_u32 s82, {sI}, 1\ns_cmp_gt_u32 s82, 8\ns_cselect_b32 s54, 0, s54")
        A("v_lshrrev_b32 v2, 5, v0\nv_lshlrev_b32 v2, 7, v2\nv_bfe_u32 v3, v0, 3, 2\nv_lshl_add_u32 v2, v3, 1, v2")
        A(f"v_mul_u32_u24 v2, 0x480, v2\nv_and_b32 v3, 7, v0\nv_lshl_add_u32 v{VWO}, v3, 4, v2")
        A(f"s_lshl_b32 s82, s82, 7\ns_lshl_b32 s83, {sH}, 3\ns_add_u32 s83, s83, {sC}\ns_mul_i32 s83, s83, {32*1152}\ns_add_u32 s48, s82, s83")
        for t in range(1, 4): A(f"s_add_u32 s{48+t}, s48, {8*t*1152}")
    def wo_loads():
        for t in range(8):
            A(f"buffer_load_dwordx4 {vr(WO+4*t)}, v{VWO}, {rWO}, s{48+(t&3)} offen offset:{(t>>2)*1152} {wpol}")
    A("L_pre_done:")
    A("s_barrier")
    A("v_and_b32 v1, 1, v0\nv_lshlrev_b32 v1, 4, v1\nv_mov_b32 v4, 0xffff\nv_lshlrev_b32 v4, v1, v4\nv_bfe_u32 v5, v0, 1, 2")
    for v in range(4):
        A(f"v_cmp_eq_u32 vcc, {v}, v5\ns_nop 1\nv_cndmask_b32 v{M+v}, 0, v4, vcc")
    A(f"v_bfe_u32 v4, v0, 4, 1\nv_and_b32 v5, 7, v0\nv_lshl_add_u32 v4, v4, 3, v5\nv_lshlrev_b32 v{VPL}, 4, v4")
    A(f"s_cmp_lg_u32 {sW}, 5\ns_cbranch_scc1 L_cons_main")
    stamp(3, 2)
    A("s_waitcnt vmcnt(21)")
    stamp(5, 2)
    for k in range(9): A(f"v_lshlrev_b32 v{X+k}, 16, v{X+k}")
    A(f"v_add_f32 v1, v{X}, v{X+1}")
    for k in range(2, 9): A(f"v_add_f32 v1, v1, v{X+k}")
    wave_sum(1, 2)
    A("s_mov_b32 s82, 0x3ae38e39\ns_mov_b32 s83, 0x44100000")
    def div576(v):
        A(f"v_mul_f32 v2, s82, v{v}\nv_fma_f32 v3, -v2, s83, v{v}\nv_fma_f32 v{v}, v3, s82, v2")
    div576(1)
    A(f"v_sub_f32 v2, v{X}, v1\nv_mul_f32 v4, v2, v2")
    for k in range(1, 9): A(f"v_sub_f32 v2, v{X+k}, v1\nv_fmac_f32 v4, v2, v2")
    wave_sum(4, 2)
    div576(4)
    rbf(1, 1); rbf(4, 4)
    A("v_add_f32 v4, 0x3727c5ac, v4"); rbf(4, 4)
    A("v_sqrt_f32 v5, v4\ns_nop 0\nv_rcp_f32 v6, v5\nv_fma_f32 v3, -v5, v5, v4\nv_mul_f32 v6, 0.5, v6\nv_fma_f32 v5, v3, v6, v5")
    rbf(5, 5)
    A("v_rcp_f32 v6, v5")
    def norm(r):
        A(f"v_sub_f32 v2, v{r}, v1"); rbf(2, 2)
        A(f"v_mul_f32 v3, v2, v6\nv_fma_f32 v4, -v3, v5, v2\nv_fma_f32 v3, v4, v6, v3\nv_cvt_pk_bf16_f32 v{r}, v3, v3")
    A("v_mov_b32 v100, v1\nv_mov_b32 v101, v5\nv_mov_b32 v102, v6\ns_waitcnt vmcnt(18)")
    for k in range(3):
        A(f"v_lshlrev_b32 v{XR+k}, 16, v{XR+k}"); norm(XR + k)
    A("s_nop 0")
    stamp(6, 2)
    for p in range(18):
        bbuild(XR + p // 8, p % 8, B + 4 * (p & 1))
        A(f"s_waitcnt vmcnt({17 - p})\ns_nop 0")
        mfma(DQ, RG + 4 * p, B + 4 * (p & 1), "0" if p == 0 else None)
    A("s_waitcnt lgkmcnt(0)")
    tagprep()
    A(f"s_lshl_b32 s82, {sH}, 12\ns_and_b32 s83, {sI}, 3\ns_lshl_b32 s83, s83, 10\ns_add_u32 s82, s82, s83")
    A(f"s_lshr_b32 s83, {sI}, 2\ns_lshl_b32 s83, s83, 8\ns_add_u32 s82, s82, s83")
    for i in range(4): A(f"v_mov_b32_dpp v{V+i}, v{DQ+i} row_ror:8 row_mask:0xf bank_mask:0xf")
    A("s_nop 0")
    for i in range(4): A(f"v_permlane32_swap_b32 v{V+i}, v{V+4+i}")
    for i in range(4): A(f"v_add_f32 v{K+i}, v{DQ+i}, v{V+4+i}")
    for i in range(4): A(f"v_bfi_b32 v{K+i}, 15, v{VT}, v{K+i}")
    stamp(7, 2)
    A("s_mov_b64 exec, 0x00ff00ff\ns_waitcnt vmcnt(0)")
    A(f"buffer_store_dwordx4 {vr(K)}, v{VPL}, {rWS}, s82 offen sc1")
    A("s_mov_b64 exec, -1")
    stamp(1)
    if P["burst"]:
        A(f"s_cmp_ge_u32 {sK}, 11\ns_cbranch_scc1 L_ffn\nL_ffn_done:\nv_mov_b32 v1, 1\nds_write_b32 v{VZ}, v1 offset:{L_QFLAG+16}")
    A("L_qgather:")
    A(f"v_lshlrev_b32 v4, 4, v0\ns_lshl_b32 s82, {sH}, 12")
    if P["qdelay"] is not None:
        A(f"L_qdel:\nds_read_b32 v1, v{VZ} offset:{L_FULL}\ns_waitcnt lgkmcnt(0)\nv_cmp_le_i32 vcc, {P['qdelay']}, v1\ns_cbranch_vccnz L_qdel_ok")
        if P["burst"]: A(f"s_cmp_ge_u32 {sK}, 11\ns_cbranch_scc1 L_qdel_ok")
        A("s_sleep 2")
        spin("L_qdel")
        A("L_qdel_ok:")
    A("L_qpoll:")
    for p in range(4): A(f"buffer_load_dwordx4 {vr(RG+4*p)}, v4, {rWS}, s82 offen offset:{p*1024} sc1")
    for p in range(4):
        A(f"s_waitcnt vmcnt({3-p})")
        tagchk(1, range(RG + 4 * p, RG + 4 * p + 4), p == 0)
    A("v_and_b32 v1, 15, v1\nv_cmp_ne_u32 vcc, 0, v1")
    A("s_cbranch_vccz L_qready\ns_sleep 2")
    spin("L_qpoll")
    A("L_qready:")
    stamp(2)
    for i in range(4): A(f"v_add_f32 v{RG+i}, v{RG+i}, v{RG+4+i}\nv_add_f32 v{RG+8+i}, v{RG+8+i}, v{RG+12+i}")
    for i in range(4): A(f"v_add_f32 v{RG+i}, v{RG+i}, v{RG+8+i}")
    A("v_lshrrev_b32 v4, 3, v0\nv_and_b32 v5, 7, v0\nv_lshl_add_u32 v4, v4, 5, v5\nv_lshlrev_b32 v4, 1, v4")
    A(f"v_cvt_pk_bf16_f32 v{RG}, v{RG}, v{RG+1}\nv_cvt_pk_bf16_f32 v{RG+4}, v{RG+2}, v{RG+3}")
    A(f"ds_write_b16 v4, v{RG} offset:{L_Q}\nds_write_b16_d16_hi v4, v{RG} offset:{L_Q+16}")
    A(f"ds_write_b16 v4, v{RG+4} offset:{L_Q+32}\nds_write_b16_d16_hi v4, v{RG+4} offset:{L_Q+48}")
    A(f"v_mov_b32 v5, 1\ns_waitcnt lgkmcnt(0)\nds_write_b32 v{VZ}, v5 offset:{L_QFLAG}")
    if not P["burst"]: A(f"s_cmp_ge_u32 {sK}, 11\ns_cbranch_scc1 L_ffn\nL_ffn_done:")
    if P["pre"]:
        A("v_lshrrev_b32 v5, 4, v0\nv_and_b32 v6, 15, v0\nv_lshlrev_b32 v6, 4, v6\nv_lshl_add_u32 v5, v5, 12, v6")
        A(f"s_lshl_b32 s82, {sH}, 14\ns_lshl_b32 s83, {sI}, 8\ns_add_u32 s82, s82, s83\ns_add_u32 s82, s82, {WS_P}")
        A(f"s_lshl_b32 s80, {sH}, 12\ns_lshl_b32 s83, {sI}, 6\ns_add_u32 s80, s80, s83\ns_add_u32 s80, s80, {WS_ML}")
        A(f"s_lshl_b32 s81, {sI}, 12\ns_lshl_b32 s83, {sH}, 8\ns_add_u32 s81, s81, s83\ns_add_u32 s81, s81, {WS_Y - 4096}")
        A("v_lshlrev_b32 v4, 10, v0")
        A(f"buffer_load_dwordx4 v[24:27], v5, {rWS}, s82 offen\ns_mov_b64 exec, 15\nbuffer_load_dwordx4 v[28:31], v4, {rWS}, s80 offen")
        A(f"s_mov_b64 exec, 0xffff\nbuffer_load_dwordx4 v[32:35], v6, {rWS}, s81 offen")
        A("s_mov_b64 exec, -1\ns_waitcnt vmcnt(0)")
    A(f"s_mov_b32 s79, {sS}\ns_mul_i32 s72, {sH}, 3\ns_sub_u32 s72, 11, s72")
    A(f"s_lshl_b32 s78, {sH}, 8\ns_add_u32 s78, s78, {WS_CNT}\nv_mov_b32 v4, s78\nv_mov_b32 v5, 1\ns_mov_b64 exec, 1")
    def que_write(val):
        if val == "s80":
            A(f"s_mul_i32 s73, s80, 52429\ns_lshr_b32 s73, s73, 18\ns_mul_i32 s71, s73, 5\ns_sub_u32 s71, s80, s71\ns_add_u32 s71, s71, s72\ns_add_u32 s73, s73, {SN - XD}")
            A(f"s_add_u32 s74, s80, {16*SN - 5*XD}\ns_lshr_b32 s75, s74, 4\ns_cmp_lt_u32 s80, {5*XD}\ns_cselect_b32 s73, s73, s75\ns_cselect_b32 s71, s71, s74")
            if OM: A(f"s_and_b32 s74, s73, {(1 << P['rot']) - 1}\ns_xor_b32 s71, s71, s74")
            sdep("s74", "s73", [b - 10 for b in rest], "s75")
            sdep("s73", "s71", [b - 10 for b in own], "s75")
            A("s_or_b32 s74, s74, s73"); val = "s74"
        A(f"s_and_b32 s82, s79, 31\ns_lshl_b32 s82, s82, 2\ns_add_u32 s79, s79, 1\ns_lshl_b32 s83, s79, 16\ns_or_b32 s83, s83, {val}")
        A(f"v_mov_b32 v1, s82\nv_mov_b32 v2, s83\nds_write_b32 v1, v2 offset:{L_QUE}")
    def demand(lbl, n, ahead):
        A(f"{lbl}:\nds_read_b32 v1, v{VZ} offset:{L_FULL}\ns_waitcnt lgkmcnt(0)\nv_readfirstlane_b32 s78, v1")
        A(f"s_add_u32 s78, s78, {dt + 2*ahead}\ns_ashr_i32 s78, s78, 1\ns_cmp_le_i32 {n}, s78\ns_cbranch_scc1 {lbl}_go\ns_sleep 2")
        spin(lbl)
        A(f"{lbl}_go:")
    npool = 5 * XD + 16 * (256 - SN)
    c0 = 0; t0 = 0; chain = []
    for cnt, sz in P["segs"]:
        chain.append((c0, t0, sz)); c0 += cnt; t0 += cnt * sz
        assert sz + P["AHA"] + 2 < 32
    nclaim = c0 + npool - t0
    assert t0 < npool and P["AH"] >= 3
    demand("L_ca", "s79", P["AHA"])
    A(f"global_atomic_add v20, v4, v5, s[26:27] {P['apol']}\ns_waitcnt vmcnt(0)\nv_readfirstlane_b32 s78, v20")
    A(f"s_cmp_ge_u32 s78, {c0}\ns_cbranch_scc1 L_ca_one")
    for i, (c, t, sz) in enumerate(chain):
        if i == 0: A(f"s_movk_i32 s80, {t - c*sz}\ns_mov_b32 s81, {sz}")
        else: A(f"s_cmp_ge_u32 s78, {c}\ns_cselect_b32 s80, {t - c*sz}, s80\ns_cselect_b32 s81, {sz}, s81")
    A("s_mul_i32 s78, s78, s81\ns_add_u32 s80, s80, s78\nL_ca_put:")
    que_write("s80")
    A("s_add_u32 s80, s80, 1\ns_sub_u32 s81, s81, 1\ns_cmp_lg_u32 s81, 0\ns_cbranch_scc1 L_ca_put\ns_branch L_ca")
    A(f"L_ca_one:\ns_cmp_ge_u32 s78, {nclaim}\ns_cbranch_scc1 L_cl_end\ns_add_u32 s80, s78, {t0 - c0}")
    que_write("s80")
    A("s_mov_b32 s76, s79\ns_add_u32 s77, s76, 4")
    for k in range(4):
        demand(f"L_cl_{k}", "s76", P["AH"])
        A(f"global_atomic_add v{20+k}, v4, v5, s[26:27] {P['apol']}")
        A(f"s_add_u32 s76, s76, 1\ns_cmp_lt_u32 s76, s77\ns_cbranch_scc1 L_cl_{(k+1)%4}")
        A(f"s_waitcnt vmcnt(3)\nv_readfirstlane_b32 s80, v{20+(k+1)%4}")
        A(f"s_cmp_ge_u32 s80, {nclaim}\ns_cbranch_scc1 L_cl_end\ns_add_u32 s80, s80, {t0 - c0}")
        que_write("s80")
    A("s_branch L_cl_0")
    A("L_cl_end:")
    que_write("0xffff")
    A("s_mov_b64 exec, -1")
    A(f"s_cmp_lg_u32 {sI}, 10\ns_cbranch_scc1 L_e_done\ns_cmp_gt_u32 {sH}, 8\ns_cbranch_scc1 L_e_done")
    srd(rOUT, 22, 1152)
    A("v_lshrrev_b32 v4, 5, v0\nv_and_b32 v5, 3, v0\nv_lshl_add_u32 v4, v4, 2, v5\nv_bfe_u32 v5, v0, 2, 3\nv_lshl_add_u32 v4, v4, 3, v5")
    A(f"v_lshlrev_b32 v2, 1, v4\ns_lshl_b32 s79, {sH}, 7")
    A(f"buffer_load_ushort v3, v2, {rX}, s79 offen")
    A(f"v_lshlrev_b32 v4, 2, v0\ns_lshl_b32 s82, {sH}, 12")
    def issue(b):
        for p in range(16): A(f"buffer_load_dword v{b+p}, v4, {rWS}, s80 offen offset:{256*p} {P['hl']}")
    def check(b, dst, behind, ok):
        for p in range(0, 16, 2):
            A(f"s_waitcnt vmcnt({behind+14-p})")
            tagchk(1, (b + p, b + p + 1), p == 0)
            if p == 0: A(f"v_add_f32 v{dst}, v{b}, v{b+1}")
            else: A(f"v_add_f32 v{dst}, v{dst}, v{b+p}\nv_add_f32 v{dst}, v{dst}, v{b+p+1}")
        tagtest(1)
        A(f"s_cbranch_vccz {ok}")
    A(f"s_mul_i32 s81, {sH}, {72*256}\ns_add_u32 s81, s81, {WS_F}")
    A("L_f_ffn:\ns_mov_b32 s80, s81\nv_mov_b32 v22, 0")
    def f_load(p):
        A(f"buffer_load_dword v{RG+p}, v4, {rWS}, s80 offen offset:{256*(p&15)} sc1")
        if p & 15 == 15: A("s_add_u32 s80, s80, 0x1000")
    for p in range(48): f_load(p)
    for p in range(0, 72, 2):
        A(f"s_waitcnt vmcnt({min(46, 70 - p)})")
        if p + 48 < 72: f_load(p + 48); f_load(p + 49)
        tagchk(1, (RG + p, RG + p + 1), p == 0)
        A(f"v_add_f32 v22, v22, v{RG+p}\nv_add_f32 v22, v22, v{RG+p+1}")
    tagtest(1)
    A("s_cbranch_vccz L_f_ffn_ok\ns_sleep 16")
    spin("L_f_ffn")
    A("L_f_ffn_ok:")
    rbf(22, 22)
    A(f"v_mul_f32 v5, {hex(LOG2E ^ 0x80000000)}, v22\nv_exp_f32 v5, v5\ns_nop 0\nv_add_f32 v5, 1.0, v5\nv_rcp_f32 v5, v5\ns_nop 0\nv_mul_f32 v22, v22, v5")
    rbf(22, 22)
    A("v_lshlrev_b32 v3, 16, v3")
    A(f"L_f_wait:\nds_read_b64 v[24:25], v{VZ} offset:{L_FULL}\ns_waitcnt lgkmcnt(0)\nv_cmp_ge_i32 vcc, v24, v25\ns_cbranch_vccnz L_f_go\ns_sleep 4")
    spin("L_f_wait")
    A("L_f_go:")
    A(f"s_add_u32 s80, s82, {WS_Y}")
    issue(RG)
    A((f"s_sleep {P['fst']}\n" if P["fst"] else "") + "L_f_att:")
    issue(RG + 16); check(RG, 23, 16, "L_f_att_ok"); issue(RG); check(RG + 16, 23, 16, "L_f_att_ok")
    spin("L_f_att")
    A("L_f_att_ok:")
    rbf(23, 23)
    A("v_mul_f32 v23, v23, v22"); rbf(23, 23)
    A(f"v_add_f32 v23, v23, v3\nv_cvt_pk_bf16_f32 v23, v23, v23\nbuffer_store_short v23, v2, {rOUT}, s79 offen")
    A(f"s_cmp_lg_u32 {sH}, 0\ns_cbranch_scc1 L_e_done")
    A(f"s_mov_b64 exec, 1\nv_mov_b32 v4, {WS_EPOCH}\nglobal_store_dword v4, v{VT}, s[26:27] sc1\ns_mov_b64 exec, -1\ns_branch L_e_done")

    A("L_cons_main:")
    VSC = 148
    A("v_and_b32 v1, 15, v0\nv_lshrrev_b32 v4, 4, v0\nv_xor_b32 v5, v1, v4\nv_lshlrev_b32 v5, 4, v5")
    A(f"v_lshl_add_u32 v{KA}, v1, 8, v5")
    for ks in range(1, 4): A(f"v_xor_b32 v{KA+ks}, {64*ks}, v{KA}")
    A(f"v_lshlrev_b32 v5, 4, v1\nv_lshl_add_u32 v{VA}, v4, 10, v5")
    A(f"v_mov_b32 v{Vm}, 0xff800000\nv_mov_b32 v{VmL}, 0xff800000\nv_mov_b32 v{Vl}, 0")
    for i in range(4): A(f"v_mov_b32 v{O+i}, 0")
    A(f"s_lshl_b32 s82, {sC}, 2\nv_mov_b32 v{VDA}, s82")
    if diag == 3:
        for i in range(3): A(f"v_mov_b32 v{225+i}, 0")
        A("s_mov_b32 s86, 0")
    A(f"v_lshrrev_b32 v2, 3, v0\nv_lshlrev_b32 v2, 3, v2\ns_lshl_b32 s82, {sC}, 6\nv_add_u32 v{VSC}, s82, v2")
    A("v_bfe_u32 v5, v0, 3, 1\nv_lshlrev_b32 v5, 8, v5\nv_lshl_add_u32 v5, v4, 4, v5")
    A(f"s_mov_b32 s72, {hex(SCALE)}\ns_mov_b32 s73, {hex(LOG2E)}\ns_mov_b32 s74, 0xffff0000")
    A(f"s_mov_b32 s76, {sC}\ns_lshl_b32 s77, {sC}, 12\ns_add_u32 s77, s77, {RING0}\ns_mov_b32 s78, 0")
    A(f"s_mov_b32 s60, {sS}\ns_lshl_b32 s61, {sS}, 1")
    assert L_SC + 64 * (SN - XD - NSL - 8) >= L_Y + 2048
    wo_prep()
    MA, MRG = X, RG
    for i in range(1, 4):
        A(f"s_add_u32 s82, {sC}, {i}\ns_and_b32 s82, s82, 3\ns_lshl_b32 s83, s82, 9\ns_lshl_b32 s82, s82, 10")
        A(f"v_lshl_add_u32 v{MA+2*i-2}, v0, 3, s83\nv_lshl_add_u32 v{MA+2*i-1}, v0, 4, s82")
    A(f"v_lshrrev_b32 v2, 4, v0\nv_and_b32 v3, 15, v0\nv_lshlrev_b32 v3, 4, v3\nv_lshl_add_u32 v{MA+6}, v2, 12, v3")
    A(f"v_and_b32 v3, 8, v0\nv_lshl_add_u32 v{MA+7}, v2, 10, v3")
    A(f"s_lshl_b32 s56, {sH}, 14\ns_add_u32 s56, s56, {WS_P}\ns_lshl_b32 s83, {sI}, 8\ns_add_u32 s58, s56, s83")
    A(f"s_lshl_b32 s83, {sC}, 12\ns_add_u32 s56, s56, s83")
    A(f"s_lshl_b32 s57, {sH}, 12\ns_add_u32 s57, s57, {WS_ML}\ns_lshl_b32 s83, {sI}, 6\ns_add_u32 s59, s83, s57")
    A(f"s_lshl_b32 s83, {sC}, 10\ns_add_u32 s57, s57, s83\ns_mov_b32 s70, -1\ns_brev_b32 s75, -2")
    def merge_reads():
        A(f"ds_read_b32 v{MRG+18}, v{VZ} offset:{L_QFLAG+4}")
        for i in range(3): A(f"ds_read_b64 {vr(MRG+12+2*i, 2)}, v{MA+2*i} offset:{L_MML}")
        for i in range(3): A(f"ds_read_b128 {vr(MRG+4*i)}, v{MA+2*i+1} offset:{L_MO}")
    A(f"L_qwait:\nds_read_b32 v1, v{VZ} offset:{L_QFLAG}\ns_waitcnt lgkmcnt(0)\nv_readfirstlane_b32 s79, v1")
    A("s_cmp_lg_u32 s79, 0\ns_cbranch_scc1 L_qgo\ns_sleep 1")
    spin("L_qwait")
    A("L_qgo:")
    tagprep()
    for ks in range(4): A(f"ds_read_b128 {vr(Q+4*ks)}, v5 offset:{L_Q + 64*ks}")
    A("s_waitcnt lgkmcnt(0)")
    stamp(4)
    def landed(lbl, item):
        A(f"s_cmp_lt_i32 {item}, s78\ns_cbranch_scc1 {lbl}_go")
        A(f"{lbl}_poll:\nds_read_b32 v22, v{VZ} offset:{L_FULL}\ns_waitcnt lgkmcnt(0)\nv_readfirstlane_b32 s78, v22")
        A(f"s_cmp_lt_i32 {item}, s78\ns_cbranch_scc1 {lbl}_go")
        spin(f"{lbl}_poll")
        A(f"{lbl}_go:")
    ntr = [0]
    def trace():
        if diag == 3:
            ntr[0] += 1; n = ntr[0]
            A(f"s_memrealtime s[84:85]\ns_waitcnt lgkmcnt(0)\ns_and_b32 m0, s86, 63\ns_cmp_lt_u32 s86, 64\ns_cbranch_scc0 L_tr{n}a")
            A(f"v_writelane_b32 v225, s84, m0\ns_branch L_tr{n}c\nL_tr{n}a:\ns_cmp_lt_u32 s86, 128\ns_cbranch_scc0 L_tr{n}b\nv_writelane_b32 v226, s84, m0\ns_branch L_tr{n}c")
            A(f"L_tr{n}b:\nv_writelane_b32 v227, s84, m0\nL_tr{n}c:\ns_add_u32 s86, s86, 1")
    def slot_next(step):
        A(f"s_add_u32 s77, s77, {step}\ns_sub_u32 s79, s77, {NSL*4096}\ns_cmp_ge_u32 s77, {RINGE}\ns_cselect_b32 s77, s79, s77")
    def k_reads():
        for ks in range(4): A(f"v_add_u32 v{AD+ks}, s77, v{KA+ks}\nds_read_b128 {vr(K+4*ks)}, v{AD+ks}")
    def qk():
        for ks in range(4):
            A(f"s_waitcnt lgkmcnt({3-ks})")
            mfma(S, K + 4 * ks, Q + 4 * ks, "0" if ks == 0 else None)
    def v_reads(off):
        for r in range(4): A(f"ds_read_b128 {vr(V+4*r)}, v{AD+4} offset:{off + 256*r}")
    def softmax(lbl):
        A(f"v_max3_f32 v22, v{S}, v{S+1}, v{S+2}\nv_max_f32 v22, v22, v{S+3}")
        A(f"v_cmp_gt_f32 vcc, v22, v{Vm}\ns_cbranch_vccnz {lbl}_rescale\n{lbl}_cont:")
        for i in range(4): A(f"v_fma_f32 v{PP+i}, v{S+i}, s73, -v{VmL}")
        for i in range(4): A(f"v_exp_f32 v{PP+i}, v{PP+i}")
        A(f"s_waitcnt lgkmcnt(0)\nds_write_b32 v{VDA}, v{AD} offset:{L_DONE}")
    def pv():
        for i in range(4):
            A(f"v_cvt_pk_bf16_f32 v22, v{PP+i}, v{PP+i}")
            for v in range(4): A(f"v_and_b32 v{B+4*i+v}, v22, v{M+v}")
            A(f"v_add_f32 v{Vl}, v{Vl}, v{PP+i}")
            if i > 0: mfma(O, V + 4 * (i - 1), B + 4 * (i - 1))
        A("s_nop 0")
        mfma(O, V + 12, B + 12)
    def rescale(lbl):
        A(f"{lbl}_rescale:")
        for op in ("v_permlane16_swap_b32", "v_permlane32_swap_b32"):
            A(f"v_mov_b32 v23, v22\ns_nop 1\n{op} v23, v22\nv_max_f32 v22, v22, v23")
        A(f"v_max_f32 v{Vm}, v{Vm}, v22\nv_mul_f32 v22, s73, v{Vm}\nv_sub_f32 v23, v{VmL}, v22\nv_exp_f32 v23, v23\nv_mov_b32 v{VmL}, v22")
        A(f"v_mul_f32 v{Vl}, v{Vl}, v23")
        for i in range(4): A(f"v_mul_f32 v{O+i}, v{O+i}, v23")
        A(f"s_branch {lbl}_cont")
    A("L_k:")
    landed("L_k", "s76")
    trace()
    k_reads()
    slot_next(0x4000)
    A(f"s_add_u32 s76, s76, 1\nv_mov_b32 v22, s76\ns_add_u32 s76, s76, 3")
    qk()
    A(f"ds_write_b32 v{VDA}, v22 offset:{L_DONE}\ns_mov_b32 exec_lo, 0x01010101\ns_mov_b32 exec_hi, 0x01010101\ns_nop 4")
    for i in range(4): A(f"v_cvt_pk_bf16_f32 v{S+i}, 0, v{S+i}")
    for i in range(4): A(f"v_mul_f32 v{S+i}, s72, v{S+i}")
    A(f"v_cvt_pk_bf16_f32 v22, v{S}, v{S+1}\nv_cvt_pk_bf16_f32 v23, v{S+2}, v{S+3}")
    A(f"ds_write_b64 v{VSC}, v[22:23] offset:{L_SC}\ns_mov_b64 exec, -1\nv_add_u32 v{VSC}, 0x100, v{VSC}")
    A("s_cmp_lt_u32 s76, s60\ns_cbranch_scc1 L_k")
    A(f"s_lshl_b32 s82, s60, 6\nv_subrev_u32 v{VSC}, s82, v{VSC}")
    A("L_v:")
    landed("L_v", "s76")
    trace()
    A(f"ds_read_b64 v[22:23], v{VSC} offset:{L_SC}\nv_add_u32 v{AD+4}, s77, v{VA}")
    v_reads(0)
    slot_next(0x4000)
    A(f"v_add_u32 v{VSC}, 0x100, v{VSC}\ns_add_u32 s76, s76, 1\nv_mov_b32 v{AD}, s76\ns_add_u32 s76, s76, 3")
    A(f"s_waitcnt lgkmcnt(4)\nv_lshlrev_b32 v{S}, 16, v22\nv_and_b32 v{S+1}, s74, v22\nv_lshlrev_b32 v{S+2}, 16, v23\nv_and_b32 v{S+3}, s74, v23")
    softmax("L_v"); pv()
    A("s_cmp_lt_u32 s76, s61\ns_cbranch_scc1 L_v")
    A(f"s_add_u32 s76, s76, {sC}\ns_lshl_b32 s82, {sC}, 12")
    slot_next("s82")
    A("L_c_top:\ns_cmp_lt_i32 s76, s78\ns_cbranch_scc1 L_c_go\ns_cmp_ge_i32 s76, s75\ns_cbranch_scc1 L_c_exit")
    A(f"L_c_poll:\nds_read_b64 v[22:23], v{VZ} offset:{L_FULL}\ns_waitcnt lgkmcnt(0)")
    A("v_readfirstlane_b32 s78, v22\nv_readfirstlane_b32 s75, v23\ns_add_u32 s70, s75, 6")
    A("s_cmp_lt_i32 s76, s78\ns_cbranch_scc1 L_c_go\ns_cmp_ge_i32 s76, s75\ns_cbranch_scc1 L_c_exit")
    spin("L_c_poll")
    A("L_c_vwait:")
    A(f"ds_read_b64 v[22:23], v{VZ} offset:{L_FULL}\ns_waitcnt lgkmcnt(0)\nv_readfirstlane_b32 s78, v22\nv_readfirstlane_b32 s75, v23")
    A("s_add_u32 s70, s75, 6\ns_cmp_lt_i32 s82, s78\ns_cbranch_scc1 L_c_v")
    spin("L_c_vwait")
    rescale("L_v"); rescale("L_c")
    A("L_c_go:")
    trace(); trace()
    k_reads()
    A(f"v_add_u32 v{AD+4}, s77, v{VA}")
    slot_next(0x8000)
    qk()
    A("s_add_u32 s82, s76, 1\ns_cmp_lt_i32 s82, s78\ns_cbranch_scc0 L_c_vwait\nL_c_v:")
    v_reads(4096)
    A(f"s_add_u32 s76, s76, 2\nv_mov_b32 v{AD}, s76\ns_add_u32 s76, s76, 6")
    for i in range(4): A(f"v_cvt_pk_bf16_f32 v{S+i}, 0, v{S+i}")
    for i in range(4): A(f"v_mul_f32 v{S+i}, s72, v{S+i}")
    for i in range(4): A(f"v_cvt_pk_bf16_f32 v{S+i}, 0, v{S+i}")
    softmax("L_c")
    A("s_cmp_lg_u32 s76, s70\ns_cbranch_scc1 L_c_pvb\ns_mov_b32 s61, 0")
    merge_reads()
    A("L_c_pvb:")
    pv()
    A("s_branch L_c_top")
    A("L_c_exit:")
    if diag == 3:
        A(f"s_lshl_b32 s84, s2, 2\ns_add_u32 s84, s84, {sC}\ns_lshl_b32 s84, s84, 10\ns_add_u32 s84, s84, {WS_DIAG + 0x20000}\nv_lshlrev_b32 v1, 2, v0")
        for i in range(3): A(f"buffer_store_dword v{225+i}, v1, {rWS}, s84 offen offset:{256*i}")
        A(f"buffer_store_dword v{VZ}, v1, {rWS}, s84 offen offset:768")
    stamp(5)
    for op in ("v_permlane16_swap_b32", "v_permlane32_swap_b32"):
        A(f"v_mov_b32 v23, v{Vl}\ns_nop 1\n{op} v23, v{Vl}\nv_add_f32 v{Vl}, v{Vl}, v23")
    A("s_cmp_eq_u32 s61, 0\ns_cbranch_scc1 L_e_dir")
    A(f"s_lshr_b32 s82, s75, 1\ns_sub_u32 s82, s82, 1\ns_and_b32 s82, s82, 3\ns_cmp_eq_u32 s82, {sC}\ns_cbranch_scc1 L_e_re")
    A(f"s_lshl_b32 s82, {sC}, 10\nv_lshl_add_u32 v4, v0, 4, s82\nds_write_b128 v4, {vr(O)} offset:{L_MO}")
    A(f"s_lshl_b32 s82, {sC}, 9\nv_lshl_add_u32 v4, v0, 3, s82\nv_mov_b32 v22, v{VmL}\nv_mov_b32 v23, v{Vl}\nds_write_b64 v4, v[22:23] offset:{L_MML}")
    A(f"v_mov_b32 v1, 1\ns_mov_b64 exec, 1\nds_add_u32 v{VZ}, v1 offset:{L_QFLAG+4}\ns_mov_b64 exec, -1")
    wo_loads()
    A(f"L_e_wait:\nds_read_b32 v1, v{VZ} offset:{L_QFLAG+12}\ns_waitcnt lgkmcnt(0)\nv_cmp_ne_u32 vcc, 0, v1\ns_cbranch_vccnz L_e_l1p")
    spin("L_e_wait")
    A("L_e_re:")
    merge_reads()
    A(f"L_e_dir:\ns_waitcnt lgkmcnt(3)\nv_cmp_ne_u32 vcc, 3, v{MRG+18}\nv_max3_f32 v22, v{MRG+12}, v{MRG+14}, v{MRG+16}\ns_cbranch_vccz L_e_go")
    spin("L_e_re")
    A(f"L_e_go:\nv_max_f32 v22, v22, v{VmL}")
    A(f"v_sub_f32 v{VmL}, v{VmL}, v22")
    for c in range(3): A(f"v_sub_f32 v{MRG+12+2*c}, v{MRG+12+2*c}, v22")
    A(f"v_exp_f32 v{VmL}, v{VmL}")
    for c in range(3): A(f"v_exp_f32 v{MRG+12+2*c}, v{MRG+12+2*c}")
    for i in range(4): A(f"v_mul_f32 v{O+i}, v{VmL}, v{O+i}")
    A("s_waitcnt lgkmcnt(0)")
    for c in range(3):
        for i in range(4): A(f"v_fmac_f32 v{O+i}, v{MRG+12+2*c}, v{MRG+4*c+i}")
    for i in range(4): tagput(O + i)
    A(f"buffer_store_dwordx4 {vr(O)}, v{MA+6}, {rWS}, s58 offen {P['hs']}")
    A(f"v_mul_f32 v23, v{VmL}, v{Vl}")
    for c in range(3): A(f"v_fmac_f32 v23, v{MRG+12+2*c}, v{MRG+13+2*c}")
    tagput(22); tagput(23)
    A("s_mov_b32 exec_lo, 0x01010101\ns_mov_b32 exec_hi, 0x01010101")
    A(f"buffer_store_dwordx2 v[22:23], v{MA+7}, {rWS}, s59 offen {P['hs']}\ns_mov_b64 exec, -1")
    A(f"v_mov_b32 v1, 1\nds_write_b32 v{VZ}, v1 offset:{L_QFLAG+12}")
    wo_loads()
    A("L_e_l1p:\ns_mov_b32 s76, s56\ns_mov_b32 s77, s57\nv_lshlrev_b32 v6, 2, v0")
    A("L_e_l1:\ns_waitcnt lgkmcnt(0)")
    stamp(6); stamp(6, 5)
    A(f"s_sub_u32 s78, {sI}, 1\ns_cmp_gt_u32 s78, 8\ns_cbranch_scc1 L_e_done")
    A("v_and_b32 v4, 15, v0\nv_lshlrev_b32 v4, 6, v4\nv_lshrrev_b32 v5, 5, v0\nv_lshl_add_u32 v4, v5, 3, v4")
    acc = (S, S + 1, S + 2, S + 3)
    def l1_issue(b, ml):
        A(f"buffer_load_dwordx2 {vr(ml, 2)}, v4, {rWS}, s77 offen {P['hl']}")
        for p in range(16): A(f"buffer_load_dword v{b+p}, v6, {rWS}, s76 offen offset:{256*p} {P['hl']}")
    def l1_check(b, ml, behind):
        A(f"s_waitcnt vmcnt({behind+16})\nv_mov_b32 v7, v{ml}")
        tagchk(1, (ml, ml + 1), True)
        A("v_and_b32 v2, 0xff, v1\nv_cmp_ne_u32 vcc, 0, v2\ns_cbranch_vccnz L_l1_again")
        for i, r in enumerate((8, 4, 2, 1)):
            A(f"v_mov_b32 v{acc[i]}, 0" + ("" if i == 0 else "\ns_nop 0"))
            A(f"v_max_f32_dpp v7, v7, v7 row_ror:{r} row_mask:0xf bank_mask:0xf")
        A(f"v_sub_f32 v22, v{ml}, v7\nv_exp_f32 v22, v22\ns_nop 0\nv_mul_f32 v23, v22, v{ml+1}")
        for p in range(0, 16, 2):
            A(f"s_waitcnt vmcnt({behind+14-p})")
            tagchk(1, (b + p, b + p + 1))
            if p < 8: A(f"v_add_f32_dpp v23, v23, v23 row_ror:{8 >> (p // 2)} row_mask:0xf bank_mask:0xf")
            if p == 8: A("v_rcp_f32 v23, v23")
            for x in (p, p + 1): A(f"v_fmac_f32_dpp v{acc[x&3]}, v22, v{b+x} row_newbcast:{x} row_mask:0xf bank_mask:0xf")
        tagtest(1)
        A(f"v_add_f32 v2, v{S}, v{S+1}\nv_add_f32 v3, v{S+2}, v{S+3}\ns_cbranch_vccz L_l1_ok")
    A("L_l1_poll:")
    l1_issue(RG, RG + 32); l1_check(RG, RG + 32, 0)
    A("L_l1_again:")
    spin("L_l1_poll")
    A("L_l1_ok:")
    stamp(3, 5)
    A("v_add_f32 v1, v2, v3\nv_mul_f32 v1, v1, v23\nv_cvt_pk_bf16_f32 v1, v1, v1\ns_nop 1")
    for t in range(8): A(f"v_mov_b32_dpp v{V+t}, v1 row_newbcast:{t} row_mask:0xf bank_mask:0x3")
    for t in range(8): A(f"v_mov_b32_dpp v{V+t}, v1 row_newbcast:{8+t} row_mask:0xf bank_mask:0xc")
    for t in range(8):
        for v in range(4): A(f"v_and_b32 v{B+4*(t&3)+v}, v{V+t}, v{M+v}")
        if t > 0: mfma(S, WO + 4 * (t - 1), B + 4 * ((t - 1) & 3), "0" if t == 1 else None)
    A("s_nop 0")
    mfma(S, WO + 28, B + 12)
    stamp(5, 5)
    A(f"s_lshl_b32 s82, {sC}, 9\nv_lshrrev_b32 v4, 5, v0\nv_lshl_add_u32 v4, v4, 8, v{VPL}\nv_add_u32 v4, s82, v4\nv_mov_b32 v1, 1")
    exec_valid()
    A(f"s_lshl_b32 s82, s78, 12\ns_lshl_b32 s83, {sH}, 8\ns_add_u32 s82, s82, s83\ns_add_u32 s82, s82, {WS_Y}")
    A(f"ds_write_b128 v4, {vr(S)} offset:{L_Y}\ns_mov_b64 exec, 1")
    A(f"ds_add_rtn_u32 v1, v{VZ}, v1 offset:{L_QFLAG+8}\ns_mov_b64 exec, -1")
    for i in range(8): A(f"ds_read_b32 v{K+i}, v6 offset:{L_Y + 256*i}")
    A("s_waitcnt lgkmcnt(8)\nv_readfirstlane_b32 s78, v1\ns_cmp_lg_u32 s78, 3\ns_cbranch_scc1 L_e_done")
    A(f"s_waitcnt lgkmcnt(4)\nv_add_f32 v{K}, v{K}, v{K+1}\nv_add_f32 v{K+2}, v{K+2}, v{K+3}")
    A(f"s_waitcnt lgkmcnt(0)\nv_add_f32 v{K+4}, v{K+4}, v{K+5}\nv_add_f32 v{K+6}, v{K+6}, v{K+7}")
    A(f"v_add_f32 v{K}, v{K}, v{K+2}\nv_add_f32 v{K+4}, v{K+4}, v{K+6}\nv_add_f32 v22, v{K}, v{K+4}")
    tagput(22)
    A(f"buffer_store_dword v22, v6, {rWS}, s82 offen {P['hs']}")
    A("L_e_done:")
    stamp(7); stamp(7, 5)
    dump_stamps()
    A("L_end:\ns_endpgm")

    A("L_ffn:")
    ACC, DG, DU = 28, 64, 68
    A(f"s_lshl_b32 s73, {sH}, 2\ns_add_u32 s73, s73, {sK}\ns_sub_u32 s73, s73, 11\ns_cmp_lt_u32 {sK}, 15\ns_cbranch_scc1 L_ffn_go")
    A(f"s_bitcmp1_b32 {sH}, 0\ns_cbranch_scc1 L_ffn_done\ns_lshr_b32 s73, {sH}, 1\ns_add_u32 s73, s73, 64\nL_ffn_go:")
    A("v_mov_b32 v1, v100\nv_mov_b32 v5, v101\nv_mov_b32 v6, v102")
    for k in range(9): norm(X + k)
    for i in range(36): A(f"v_mov_b32 v{ACC+i}, 0")
    srd(rWG, 16, 576 * 9216); srd(rWU, 18, 576 * 9216); srd(rWD, 20, 4608 * 1152)
    A("v_lshrrev_b32 v4, 3, v0\nv_and_b32 v5, 7, v0\nv_lshlrev_b32 v5, 4, v5")
    A("v_mul_u32_u24 v2, 0x2400, v4\nv_add_u32 v2, v2, v5\nv_mul_u32_u24 v3, 0x480, v4\nv_add_u32 v3, v3, v5")
    for i in range(8): A(f"v_mov_b32 v{DG+i}, 0")
    A("s_lshl_b32 s74, s73, 7")
    assert FW % 2 == 0
    def gu_load(n):
        A(f"buffer_load_dwordx4 {vr(RG+4*(n%16))}, v2, {rWU if n & 1 else rWG}, s74 offen {wpol}")
        if n & 1: A(f"s_add_u32 s74, s74, {8*9216}")
    for n in range(FW): gu_load(n)
    A("s_mov_b32 s75, 0\nL_ffn_gu:")
    for t in range(8):
        bbuild(X, t, B + 4 * (t & 1))
        for m in range(2):
            n = 2 * t + m
            A(f"s_waitcnt vmcnt({FW-1})")
            gu_load(n + FW)
            mfma(DU if m else DG, RG + 4 * n, B + 4 * (t & 1))
    for k in range(8): A(f"v_mov_b32 v{X+k}, v{X+k+1}")
    A("s_add_u32 s75, s75, 1\ns_cmp_lt_u32 s75, 9\ns_cbranch_scc1 L_ffn_gu")
    A(f"s_mul_i32 s74, s73, {64*1152}")
    def wd_load(n):
        t, ct = divmod(n, 9)
        A(f"buffer_load_dwordx4 {vr(RG+4*(n%16))}, v3, {rWD}, s74 offen offset:{ct*128} {wpol}")
        if ct == 8: A(f"s_add_u32 s74, s74, {8*1152}")
    A("s_waitcnt vmcnt(0)")
    for n in range(FW): wd_load(n)
    A(f"v_lshrrev_b32 v4, 5, v0\nv_lshl_add_u32 v4, v4, 8, v{VPL}")
    exec_valid()
    A(f"ds_write_b128 v4, {vr(DG)} offset:{L_GU}\nds_write_b128 v4, {vr(DU)} offset:{L_GU+512}\ns_mov_b64 exec, -1")
    A("v_bfe_u32 v4, v0, 2, 1\nv_lshrrev_b32 v5, 3, v0\nv_lshl_add_u32 v4, v4, 3, v5\nv_and_b32 v5, 3, v0\nv_lshl_add_u32 v4, v4, 2, v5")
    A("v_lshlrev_b32 v4, 2, v4\ns_waitcnt lgkmcnt(0)")
    for i in range(4): A(f"ds_read_b32 v{64+i}, v4 offset:{L_GU + 256*i}")
    A("s_waitcnt lgkmcnt(0)\nv_add_f32 v64, v64, v65\nv_add_f32 v66, v66, v67")
    rbf(64, 64); rbf(66, 66)
    A(f"v_mul_f32 v64, {hex(LOG2E ^ 0x80000000)}, v64\nv_exp_f32 v64, v64\ns_nop 0\nv_add_f32 v64, 1.0, v64\nv_rcp_f32 v64, v64\ns_nop 0")
    rbf(64, 64)
    A(f"v_mul_f32 v64, v64, v66\nv_cvt_pk_bf16_f32 v{X}, v64, v64\ns_nop 1")
    for n in range(72):
        t, ct = divmod(n, 9)
        if ct == 0: bbuild(X, t, B + 4 * (t & 1))
        A(f"s_waitcnt vmcnt({min(FW-1, 71-n)})")
        if n + FW < 72: wd_load(n + FW)
        else: A("s_nop 0")
        mfma(ACC + 4 * ct, RG + 4 * (n % 16), B + 4 * (t & 1))
    A(f"s_lshl_b32 s75, s73, 8\ns_add_u32 s75, s75, {WS_F}\ns_nop 4")
    for ct in range(9):
        for i in range(4): A(f"v_mov_b32_dpp v{V+8+i}, v{ACC+4*ct+i} row_ror:8 row_mask:0xf bank_mask:0xf")
        A("s_nop 0")
        for i in range(4): A(f"v_permlane32_swap_b32 v{V+8+i}, v{V+12+i}")
        for i in range(4): A(f"v_add_f32 v{ACC+4*ct+i}, v{ACC+4*ct+i}, v{V+12+i}")
        for i in range(4): tagput(ACC + 4 * ct + i)
    A("s_mov_b64 exec, 0x00ff00ff")
    for ct in range(9):
        A(f"buffer_store_dwordx4 {vr(ACC+4*ct)}, v{VPL}, {rWS}, s75 offen sc1")
        if ct < 8: A(f"s_add_u32 s75, s75, {72*256}")
    A("s_mov_b64 exec, -1")
    stamp(3)
    A("s_branch L_ffn_done")

    A("L_code_end:")
    errs = hazard.check(L)
    if errs:
        print("\n".join(errs)); raise SystemExit("hazards found")
    lds = RINGE
    body = "\n".join(x if x.endswith(":") else "    " + x for x in L)
    head = HEADER.replace("@LAUNCH@", f"; @launch grid=(256,1,1) block=({64*NW},1,1) lds={lds}")
    tail = f"""
.section .rodata,"a"
.p2align 6
.amdhsa_kernel {NAME}_kernel
  .amdhsa_next_free_vgpr 228
  .amdhsa_next_free_sgpr 102
  .amdhsa_accum_offset 228
  .amdhsa_group_segment_fixed_size 0
  .amdhsa_kernarg_size 96
  .amdhsa_user_sgpr_count 2
  .amdhsa_user_sgpr_kernarg_segment_ptr 1
  .amdhsa_system_sgpr_workgroup_id_x 1
  .amdhsa_float_denorm_mode_32 3
.end_amdhsa_kernel
"""
    return head + body + tail, lds

if __name__ == "__main__":
    out = sys.argv[1]
    kw = eval("dict(" + (sys.argv[2] if len(sys.argv) > 2 else "") + ")")
    txt, lds = build(**kw)
    open(out, "w").write(txt)
    import subprocess
    r = subprocess.run([sys.executable, "cdna_unwritten_srd_check.py", out], capture_output=True, text=True)
    print(r.stdout.strip()[:1500])
```

```python
import sys, os
sys.path.insert(0, os.path.dirname(os.path.abspath(__file__)))
import hazard

NAME = "recurrent_scan__gqa_block_cached__glu_gated_glu__decode"
HEADER = open(os.path.join(os.path.dirname(os.path.abspath(__file__)), "header.txt")).read()

WS_QP, WS_P, WS_ML, WS_Y, WS_CNT, WS_EPOCH, WS_F, WS_G, WS_DIAG = 0x0, 0x20000, 0x60000, 0x70000, 0x7a000, 0x7c000, 0x80000, 0xb0000, 0x100000
L_FULL, L_DONE, L_QFLAG, L_QUE, L_Q, L_GU, L_SC, L_MO, L_MML, L_Y, RING0 = 0, 512, 528, 640, 1024, 1536, 2560, 2560, 6656, 8704, 18944
LOG2E = 0x3FB8AA3B
SCALE = 0x3DB504F3
VALID = "0xff00ff00", "0x00ff00ff"
NW = 6

DESC = """;
"""

DEF = dict(F=21, Fd=21, NSL=34, FW=12, pol="nt", wpol="nt", diag=False, spin=0x800000, AH=5, AHA=8, qdelay=4,
           segs=((8, 12), (8, 8)), own=(10, 11, 12, 15), pcs=(20, 21), R=244, X=12, early=8, dn=24, FG=8, FD=18, Ft=None, Nt=24, Nv=0, rot=4, pre=False, cpf=True, opol='sc1', split=0, mlfull=1, l1d=0, wok=0, f3=0)

def build(**kw):
    P = dict(DEF); P.update(kw)
    F, Fd, NSL, FW, pol, wpol, diag = P["F"], P["Fd"], P["NSL"], P["FW"], P["pol"], P["wpol"], P["diag"]
    P.update(hl="sc1", hs="sc1", apol="sc0")
    L = []
    def A(s):
        for x in s.strip("\n").split("\n"):
            L.append(x.strip())
    sW, sH, sI, sC, sT, sK, sS, sU, sG = "s28", "s29", "s30", "s31", "s100", "s14", "s15", "s63", "s62"
    rK, rV, rWS, rX, rWQ, rWO, rWG, rWU, rWD, rOUT = ("s[32:35]", "s[36:39]", "s[40:43]", "s[44:47]", "s[48:51]",
                                                    "s[52:55]", "s[56:59]", "s[56:59]", "s[64:67]", "s[68:71]")
    def srd(r, ptr, n):
        b = int(r[2:r.index(":")])
        A(f"s_mov_b64 s[{b}:{b+1}], s[{ptr}:{ptr+1}]\ns_mov_b32 s{b+2}, {n}\ns_mov_b32 s{b+3}, 0x20000")
    def vr(b, n=4): return f"v[{b}:{b+n-1}]"
    M, KA, VA, VZ, Vm, VmL, Vl, VDA = 8, 12, 16, 17, 18, 19, 20, 21
    O, Q, K, V, S, PP, B, AD, WO, X, XR, RG, DQ = 24, 28, 44, 60, 76, 80, 84, 100, 108, 140, 149, 152, 224
    VPL = 105
    def stamp(k, set_=1):
        if diag and (diag == set_ or (k in (0, 1, 2, 4) and set_ == 1)) and not (diag == 3 and k == 4):
            A(f"s_memrealtime s[{84+2*k}:{85+2*k}]\ns_waitcnt lgkmcnt(0)")
    def dump_stamps():
        if diag:
            A(f"s_mul_i32 s76, s2, {NW}\ns_add_u32 s76, s76, {sW}\ns_lshl_b32 s76, s76, 5\ns_add_u32 s76, s76, {WS_DIAG}")
            A("s_mov_b64 exec, 1\nv_mov_b32 v1, s76")
            for k in range(8):
                A(f"v_mov_b32 v2, s{84+2*k}\nglobal_store_dword v1, v2, s[26:27] offset:{4*k}")
            A("s_mov_b64 exec, -1")
    npf = [0]
    def code_prefetch(r):
        npf[0] += 1
        A(f"s_getpc_b64 s[64:65]\nL_pc{npf[0]}:\ns_sub_u32 s64, s64, L_pc{npf[0]}-{NAME}_kernel\ns_subb_u32 s65, s65, 0")
        A(f"v_lshlrev_b32 v{r}, 7, v0\nv_add_u32 v{r+1}, 0x2000, v{r}\nv_min_u32 v{r+1}, L_code_end-{NAME}_kernel-4, v{r+1}")
        A(f"global_load_dword v{r+2}, v{r}, s[64:65]\nglobal_load_dword v{r+3}, v{r+1}, s[64:65]")
    def spin(lbl):
        A(f"s_sub_u32 s3, s3, 1\ns_cbranch_scc0 {lbl}\ns_endpgm")
    def wave_sum(v, t):
        for r in (8, 4, 2, 1):
            A(f"s_nop 1\nv_add_f32_dpp v{v}, v{v}, v{v} row_ror:{r} row_mask:0xf bank_mask:0xf")
        for op in ("v_permlane16_swap_b32", "v_permlane32_swap_b32"):
            A(f"v_mov_b32 v{t}, v{v}\ns_nop 1\n{op} v{t}, v{v}\nv_add_f32 v{v}, v{v}, v{t}")
    def rbf(d, s):
        A(f"v_cvt_pk_bf16_f32 v{d}, 0, v{s}")
    def bbuild(src, t, b):
        A(f"v_mov_b32_dpp v7, v{src} row_newbcast:{t} row_mask:0xf bank_mask:0x3\ns_nop 1")
        A(f"v_mov_b32_dpp v7, v{src} row_newbcast:{8+t} row_mask:0xf bank_mask:0xc")
        for v in range(4):
            A(f"v_and_b32 v{b+v}, v7, v{M+v}")
    def mfma(d, a, b, c=None):
        A(f"v_mfma_f32_16x16x32_bf16 {vr(d)}, {vr(a)}, {vr(b)}, {vr(d) if c is None else c}")
    def exec_valid():
        A(f"s_mov_b32 exec_lo, {VALID[1]}\ns_mov_b32 exec_hi, {VALID[0]}")
    VT, VFF = 107, 103
    def tagchk(acc, regs, first=False):
        regs = list(regs)
        if first:
            A(f"v_bitop3_b32 v{acc}, v{regs[0]}, v{regs[1]}, v{VT} bitop3:0x7e"); regs = regs[2:]
        for r in regs: A(f"v_bitop3_b32 v{acc}, v{acc}, v{r}, v{VT} bitop3:0xf6")
    def tagtest(acc, dst="vcc"):
        A(f"v_and_b32 v{acc}, 0xff, v{acc}\nv_cmp_ne_u32 {dst}, 0, v{acc}")
    def tagput(r):
        A(f"v_perm_b32 v{r}, v{r}, v{VT}, s101")
    def tagprep():
        A(f"s_add_u32 s82, {sT}, 0x9e3779b9\nv_mov_b32 v{VT}, s82\ns_mov_b32 s101, 0x07060500")

    A('; entry')
    A(f"{NAME}_kernel:")
    if diag == 6: A("s_memrealtime s[90:91]")
    A("s_cmp_ge_u32 s2, 256\ns_cbranch_scc1 L_end")
    A("s_load_dwordx8 s[4:11], s[0:1], 0\ns_load_dwordx2 s[12:13], s[0:1], 32\ns_load_dwordx4 s[16:19], s[0:1], 48\ns_load_dwordx8 s[20:27], s[0:1], 64")
    if diag and diag != 6:
        for k in range(8): A(f"s_mov_b32 s{84+2*k}, 0")
    A("v_lshrrev_b32 v1, 6, v0\nv_and_b32 v0, 63, v0")
    A(f"v_readfirstlane_b32 {sW}, v1")
    A(f"s_lshr_b32 {sH}, s2, 4\ns_and_b32 {sI}, s2, 15")
    A(f"s_mul_i32 {sK}, {sH}, 3\ns_add_u32 {sK}, {sK}, {sI}\ns_and_b32 {sK}, {sK}, 15")
    A(f"s_movk_i32 {sS}, {P['R']}\ns_cmp_ge_u32 {sK}, 11\ns_cselect_b32 {sS}, {P['R'] - P['X']}, {sS}")
    A(f"v_mov_b32 v{VZ}, 0\ns_mov_b32 s3, {P['spin']}")
    A(f"s_sub_u32 {sC}, {sW}, 1")
    A(f"s_cmp_lg_u32 {sW}, 0\ns_cbranch_scc1 L_other")
    A('; loader')
    own, pb, SN = P["own"], P["pcs"], P["R"]
    rest = [b for b in range(10, 24) if b not in own and b not in pb]
    RM = sum(1 << b for b in rest)
    dep = lambda v, bs: sum(((v >> i) & 1) << b for i, b in enumerate(bs))
    piece = sorted(dep(k, pb) for k in range(4))
    XD = P["X"]
    assert SN % 4 == 0 and XD % 4 == 0 and NSL % 2 == 0 and L_SC + 64 * SN <= RING0 and list(own) == sorted(own)
    dt = (3 + max(F, Fd, P['Ft'] or 0)) // 4
    RINGE = RING0 + NSL * 4096
    def sdep(dst, src, bs, tmp):
        i = 0; first = True
        while i < len(bs):
            k = i
            while k + 1 < len(bs) and bs[k + 1] == bs[k] + 1: k += 1
            A(f"s_and_b32 {tmp}, {src}, {((1 << (k - i + 1)) - 1) << i}\ns_lshl_b32 {dst if first else tmp}, {tmp}, {bs[i] - i}")
            if not first: A(f"s_or_b32 {dst}, {dst}, {tmp}")
            first = False; i = k + 1
    assert rest == sorted(rest)
    OM = sum(1 << b for b in own[:P["rot"]])
    def count_in(r, mask):
        if mask == RM and rest[-1] - rest[0] == len(rest) - 1:
            A(f"s_add_u32 {r}, {r}, {1 << rest[0]}"); return
        A(f"s_or_b32 {r}, {r}, {~mask & 0xffffffff}\ns_add_u32 {r}, {r}, 1\ns_and_b32 {r}, {r}, {mask}")
    LV, LG, rC = 20, 28, "s[44:47]"
    A("s_setprio 3")
    A(f"v_lshrrev_b32 v1, 4, v0\nv_xor_b32 v4, v1, v0\nv_and_b32 v4, 15, v4\nv_lshl_add_u32 v4, v1, 4, v4\nv_lshlrev_b32 v{LG}, 4, v4")
    for j in range(1, 4): A(f"v_xor_b32 v{LG+j}, {64*j + piece[j] - 1024*j}, v{LG}")
    A(f"v_lshlrev_b32 v6, 3, v0\nv_mov_b32 v24, {-dt}\nv_bfrev_b32 v25, -2")
    A(f"ds_write_b64 v6, v[24:25] offset:{L_FULL}")
    A(f"v_lshlrev_b32 v1, 2, v0\nds_write_b32 v1, v{VZ} offset:{L_DONE}")
    A(f"ds_read_b128 v[8:11], v{VZ} offset:{L_DONE}")
    sdep("s72", sI, own, "s82")
    A(f"s_lshl_b32 s69, {sH}, 24\ns_or_b32 s72, s72, s69\ns_mov_b32 s76, 0\ns_mov_b32 s77, 0\ns_mov_b32 s70, 0")
    if P["Ft"]: A(f"s_sub_u32 s71, {sS}, {P['Nt']}")
    A(f"s_mov_b32 s79, 0\ns_mov_b32 s80, {RING0}\ns_mov_b32 s81, {2 - NSL}")
    A("s_waitcnt lgkmcnt(0)")
    srd(rC, 6, 0x10000000)
    stamp(0)
    if diag == 1: A("s_memtime s[66:67]\ns_waitcnt lgkmcnt(0)")
    def pair(f, lanes, srds, offs, bar=None):
        jp = min(j for j in range(4) if j - f >= 3 - 4 * dt)
        for j in range(8):
            if j == 4: A("s_add_u32 m0, s80, 0x1000")
            if bar is not None and j == P["early"] % 8: A(f"s_cmp_eq_u32 s81, {2 + 2 * (P['early'] // 8) - NSL}\ns_cbranch_scc1 L_ld_bar{bar}\nL_ld_barx{bar}:")
            A(f"s_waitcnt vmcnt({f-1})")
            A(f"buffer_load_dwordx4 v{lanes[j>>2]+(j&3)}, {srds[j>>2]}, {offs[j>>2]} offen offset:{(j&3)*1024} {pol} lds")
            if j & 3 == jp: A(f"v_add_u32 v24, 1, v24\nds_write_b64 v6, v[24:25] offset:{L_FULL}")
        A(f"s_add_u32 s80, s80, 0x2000\ns_cmp_eq_u32 s80, {RINGE}\ns_cselect_b32 s80, {RING0}, s80\ns_add_u32 s81, s81, 2")
    def static_loop(sfx, f, end=sS, bar=True):
        A(f"L_ld_loop{sfx}:")
        A("s_waitcnt lgkmcnt(0)\nv_min3_u32 v4, v8, v9, v10\nv_min_u32 v4, v4, v11")
        A("s_mov_b32 m0, s80\nv_readfirstlane_b32 s82, v4")
        A(f"ds_read_b128 v[8:11], v{VZ} offset:{L_DONE}")
        A(f"s_cmp_lt_i32 s82, s81\ns_cbranch_scc1 L_ld_full{sfx}")
        for r in ("s75", "s74"):
            A(f"s_or_b32 {r}, s76, s72")
            count_in("s76", RM)
            if OM:
                A(f"s_xor_b32 {r}, {r}, s77")
                count_in("s77", OM)
        pair(f, (LG, LG), (rC, rC), ("s75", "s74"), sfx if bar else None)
        A(f"s_add_u32 s79, s79, 2\ns_cmp_lt_u32 s79, {end}\ns_cbranch_scc1 L_ld_loop{sfx}")
    if P["Ft"]:
        static_loop("", F, "s71")
        A("s_cmp_lg_u32 s70, 0\ns_cbranch_scc1 L_ld_send")
        static_loop("t", P["Ft"], sS, False)
        A(f"s_mov_b32 s71, {sS}")
    else:
        static_loop("", F)
        A("s_cmp_lg_u32 s70, 0\ns_cbranch_scc1 L_ld_send")
    if diag == 1: A("s_memrealtime s[92:93]\ns_waitcnt lgkmcnt(0)")
    for j in range(4): A(f"v_mov_b32 v{KA+j}, v{LG+j}")
    A(f"v_lshlrev_b32 v{LG}, 4, v0")
    for j in range(1, 4): A(f"v_or_b32 v{LG+j}, {piece[j] - 1024*j}, v{LG}")
    srd(rK, 6, 0x10000000); srd(rC, 8, 0x10000000)
    A("s_mov_b32 s76, 0\ns_mov_b32 s77, 0\ns_mov_b32 s70, 1\ns_mov_b32 s79, 0\ns_branch L_ld_loop")
    A("L_ld_send:")
    def que_read(n):
        A(f"s_and_b32 s83, {n}, 31\ns_lshl_b32 s83, s83, 2\nv_mov_b32 v5, s83\nds_read_b32 v7, v5 offset:{L_QUE}")
    stamp(3)
    A("L_ld_dre:")
    que_read("s79")
    A("L_ld_dyn:")
    A("s_waitcnt lgkmcnt(0)\nv_min3_u32 v4, v8, v9, v10\nv_min_u32 v4, v4, v11\nv_readfirstlane_b32 s73, v7")
    A("s_mov_b32 m0, s80\nv_readfirstlane_b32 s82, v4")
    A(f"ds_read_b128 v[8:11], v{VZ} offset:{L_DONE}")
    A("s_add_u32 s74, s79, 1\ns_lshr_b32 s75, s73, 16\ns_cmp_lg_u32 s75, s74\ns_cbranch_scc1 L_ld_dfull")
    A("s_cmp_lt_i32 s82, s81\ns_cbranch_scc1 L_ld_dfull")
    A("s_and_b32 s73, s73, 0xffff\ns_cmp_ge_u32 s73, 0x4000\ns_cbranch_scc1 L_ld_drain")
    A("s_lshl_b32 s75, s73, 10\ns_or_b32 s75, s75, s69\ns_mov_b32 s79, s74")
    que_read("s79")
    pair(Fd, (KA, LG), (rK, rC), ("s75", "s75"))
    A("s_branch L_ld_dyn")
    A("L_ld_drain:")
    stamp(1)
    A("s_lshl_b32 s82, s79, 1\nv_mov_b32 v25, s82")
    for r in range(dt - 1, -1, -1):
        A(f"s_waitcnt vmcnt({4*r})\nv_add_u32 v24, 1, v24\nds_write_b64 v6, v[24:25] offset:{L_FULL}")
    stamp(2)
    if diag and diag != 6: A(f"s_mov_b32 s94, s79\ns_sub_u32 s96, {P['spin']}, s3")
    if diag == 1: A("s_memtime s[64:65]\ns_waitcnt lgkmcnt(0)\ns_sub_u32 s98, s64, s66")
    dump_stamps()
    A("s_endpgm")
    A("L_ld_full:")
    spin("L_ld_loop")
    A("L_ld_bar:\ns_waitcnt lgkmcnt(0)\ns_barrier")
    A(f"L_ld_hold:\nds_read_b32 v4, v{VZ} offset:{L_QFLAG+20}\ns_waitcnt lgkmcnt(0)\nv_cmp_eq_u32 vcc, 4, v4\ns_cbranch_vccnz L_ld_barx")
    spin("L_ld_hold")
    if P["Ft"]:
        A("L_ld_fullt:")
        spin("L_ld_loopt")
    A("L_ld_dfull:")
    spin("L_ld_dre")

    A("L_other:")
    if P["cpf"]:
        A(f"s_cmp_lg_u32 {sW}, 4\ns_cbranch_scc1 L_nopf")
        code_prefetch(220)
        A("L_nopf:")
    A("s_waitcnt lgkmcnt(0)")
    srd(rX, 4, 1152); srd(rWS, 26, 0x400000 if diag else 0x100000)
    A(f"s_load_dword {sT}, s[26:27], {WS_EPOCH}")
    stamp(0)
    A(f"s_cmp_lg_u32 {sW}, 5\ns_cbranch_scc1 L_pre_done")
    A("v_and_b32 v1, 7, v0\nv_lshrrev_b32 v4, 3, v0\nv_lshl_add_u32 v5, v1, 3, v4\nv_lshlrev_b32 v5, 1, v5")
    for k in range(9): A(f"buffer_load_ushort v{X+k}, v5, {rX}, 0 offen offset:{128*k}")
    A(f"s_and_b32 s82, {sI}, 3\ns_mul_i32 s82, s82, 288")
    for k in range(3): A(f"buffer_load_ushort v{XR+k}, v5, {rX}, s82 offen offset:{128*k}")
    srd(rWQ, 10, 576 * 8192)
    A("v_lshlrev_b32 v5, 4, v1\nv_lshl_add_u32 v5, v4, 13, v5")
    A(f"s_lshl_b32 s82, s82, 12\ns_lshl_b32 s83, {sH}, 9\ns_add_u32 s82, s82, s83")
    A(f"s_lshr_b32 s83, {sI}, 2\ns_lshl_b32 s83, s83, 7\ns_add_u32 s82, s82, s83")
    for p in range(18):
        A(f"buffer_load_dwordx4 {vr(RG+4*p)}, v5, {rWQ}, s82 offen {wpol}")
        if p < 17: A("s_add_u32 s82, s82, 0x10000")
    A(f"s_cmp_lg_u32 {sI}, 0\ns_cbranch_scc1 L_pre_done\ns_mov_b64 exec, 1")
    A(f"s_lshl_b32 s82, {sH}, 8\ns_add_u32 s82, s82, {WS_CNT}\nbuffer_store_dword v{VZ}, v{VZ}, {rWS}, s82 offen sc1")
    A("s_mov_b64 exec, -1")
    VWO = 104 + 2
    def wo_prep():
        srd(rWO, 12, 4096 * 1152)
        A(f"s_sub_u32 s82, {sI}, 1\ns_cmp_gt_u32 s82, 8\ns_cselect_b32 s54, 0, s54")
        A("v_lshrrev_b32 v2, 5, v0\nv_lshlrev_b32 v2, 7, v2\nv_bfe_u32 v3, v0, 3, 2\nv_lshl_add_u32 v2, v3, 1, v2")
        A(f"v_mul_u32_u24 v2, 0x480, v2\nv_and_b32 v3, 7, v0\nv_lshl_add_u32 v{VWO}, v3, 4, v2")
        A(f"s_lshl_b32 s82, s82, 7\ns_lshl_b32 s83, {sH}, 3\ns_add_u32 s83, s83, {sC}\ns_mul_i32 s83, s83, {32*1152}\ns_add_u32 s48, s82, s83")
        for t in range(1, 4): A(f"s_add_u32 s{48+t}, s48, {8*t*1152}")
    def wo_loads():
        for t in range(8):
            A(f"buffer_load_dwordx4 {vr(WO+4*t)}, v{VWO}, {rWO}, s{48+(t&3)} offen offset:{(t>>2)*1152} {wpol}")
    A("L_pre_done:")
    A(f"s_barrier\ns_cmp_lg_u32 {sW}, 5\ns_cbranch_scc1 L_c_pre\nL_consts:")
    A("v_and_b32 v1, 1, v0\nv_lshlrev_b32 v1, 4, v1\nv_mov_b32 v4, 0xffff\nv_lshlrev_b32 v4, v1, v4\nv_bfe_u32 v5, v0, 1, 2")
    for v in range(4):
        A(f"v_cmp_eq_u32 vcc, {v}, v5\ns_nop 1\nv_cndmask_b32 v{M+v}, 0, v4, vcc")
    A(f"v_bfe_u32 v4, v0, 4, 1\nv_and_b32 v5, 7, v0\nv_lshl_add_u32 v4, v4, 3, v5\nv_lshlrev_b32 v{VPL}, 4, v4")
    A(f"s_cmp_lg_u32 {sW}, 5\ns_cbranch_scc1 L_c_ffn")
    stamp(3, 2)
    A("s_waitcnt vmcnt(21)")
    stamp(5, 2)
    for k in range(9): A(f"v_lshlrev_b32 v{X+k}, 16, v{X+k}")
    A(f"v_add_f32 v1, v{X}, v{X+1}")
    for k in range(2, 9): A(f"v_add_f32 v1, v1, v{X+k}")
    wave_sum(1, 2)
    A("s_mov_b32 s82, 0x3ae38e39\ns_mov_b32 s83, 0x44100000")
    def div576(v):
        A(f"v_mul_f32 v2, s82, v{v}\nv_fma_f32 v3, -v2, s83, v{v}\nv_fma_f32 v{v}, v3, s82, v2")
    div576(1)
    A(f"v_sub_f32 v2, v{X}, v1\nv_mul_f32 v4, v2, v2")
    for k in range(1, 9): A(f"v_sub_f32 v2, v{X+k}, v1\nv_fmac_f32 v4, v2, v2")
    wave_sum(4, 2)
    div576(4)
    rbf(1, 1); rbf(4, 4)
    A("v_add_f32 v4, 0x3727c5ac, v4"); rbf(4, 4)
    A("v_sqrt_f32 v5, v4\ns_nop 0\nv_rcp_f32 v6, v5\nv_fma_f32 v3, -v5, v5, v4\nv_mul_f32 v6, 0.5, v6\nv_fma_f32 v5, v3, v6, v5")
    rbf(5, 5)
    A("v_rcp_f32 v6, v5")
    def norm(r):
        A(f"v_sub_f32 v2, v{r}, v1"); rbf(2, 2)
        A(f"v_mul_f32 v3, v2, v6\nv_fma_f32 v4, -v3, v5, v2\nv_fma_f32 v3, v4, v6, v3\nv_cvt_pk_bf16_f32 v{r}, v3, v3")
    A("s_waitcnt vmcnt(18)")
    for k in range(3):
        A(f"v_lshlrev_b32 v{XR+k}, 16, v{XR+k}"); norm(XR + k)
    A("v_lshlrev_b32 v4, 2, v0\nv_mov_b32 v5, 1")
    for k in range(3): A(f"ds_write_b32 v4, v{XR+k} offset:{L_GU + 256*k}")
    A(f"ds_write_b32 v{VZ}, v5 offset:{L_QFLAG+16}")
    A("s_nop 0")
    stamp(6, 2)
    for p in range(18):
        bbuild(XR + p // 8, p % 8, B + 4 * (p & 1))
        A(f"s_waitcnt vmcnt({17 - p})\ns_nop 0")
        mfma(DQ, RG + 4 * p, B + 4 * (p & 1), "0" if p == 0 else None)
    A("s_waitcnt lgkmcnt(0)")
    tagprep()
    A(f"s_lshl_b32 s82, {sH}, 12\ns_and_b32 s83, {sI}, 3\ns_lshl_b32 s83, s83, 10\ns_add_u32 s82, s82, s83")
    A(f"s_lshr_b32 s83, {sI}, 2\ns_lshl_b32 s83, s83, 8\ns_add_u32 s82, s82, s83")
    for i in range(4): A(f"v_mov_b32_dpp v{V+i}, v{DQ+i} row_ror:8 row_mask:0xf bank_mask:0xf")
    A("s_nop 0")
    for i in range(4): A(f"v_permlane32_swap_b32 v{V+i}, v{V+4+i}")
    for i in range(4): A(f"v_add_f32 v{K+i}, v{DQ+i}, v{V+4+i}")
    for i in range(4): A(f"v_bfi_b32 v{K+i}, 15, v{VT}, v{K+i}")
    stamp(7, 2)
    A("s_mov_b64 exec, 0x00ff00ff\ns_waitcnt vmcnt(0)")
    A(f"buffer_store_dwordx4 {vr(K)}, v{VPL}, {rWS}, s82 offen sc1")
    A("s_mov_b64 exec, -1")
    stamp(1)
    A("L_qgather:")
    A(f"v_lshlrev_b32 v4, 4, v0\ns_lshl_b32 s82, {sH}, 12")
    if P["qdelay"] is not None:
        A(f"L_qdel:\nds_read_b32 v1, v{VZ} offset:{L_FULL}\ns_waitcnt lgkmcnt(0)\nv_cmp_le_i32 vcc, {P['qdelay']}, v1\ns_cbranch_vccnz L_qdel_ok")
        A("s_sleep 2")
        spin("L_qdel")
        A("L_qdel_ok:")
    A("L_qpoll:")
    for p in range(4): A(f"buffer_load_dwordx4 {vr(RG+4*p)}, v4, {rWS}, s82 offen offset:{p*1024} sc1")
    for p in range(4):
        A(f"s_waitcnt vmcnt({3-p})")
        tagchk(1, range(RG + 4 * p, RG + 4 * p + 4), p == 0)
    A("v_and_b32 v1, 15, v1\nv_cmp_ne_u32 vcc, 0, v1")
    A("s_cbranch_vccz L_qready\ns_sleep 2")
    spin("L_qpoll")
    A("L_qready:")
    stamp(2)
    for i in range(4): A(f"v_add_f32 v{RG+i}, v{RG+i}, v{RG+4+i}\nv_add_f32 v{RG+8+i}, v{RG+8+i}, v{RG+12+i}")
    for i in range(4): A(f"v_add_f32 v{RG+i}, v{RG+i}, v{RG+8+i}")
    A("v_lshrrev_b32 v4, 3, v0\nv_and_b32 v5, 7, v0\nv_lshl_add_u32 v4, v4, 5, v5\nv_lshlrev_b32 v4, 1, v4")
    A(f"v_cvt_pk_bf16_f32 v{RG}, v{RG}, v{RG+1}\nv_cvt_pk_bf16_f32 v{RG+4}, v{RG+2}, v{RG+3}")
    A(f"ds_write_b16 v4, v{RG} offset:{L_Q}\nds_write_b16_d16_hi v4, v{RG} offset:{L_Q+16}")
    A(f"ds_write_b16 v4, v{RG+4} offset:{L_Q+32}\nds_write_b16_d16_hi v4, v{RG+4} offset:{L_Q+48}")
    A(f"v_mov_b32 v5, 1\ns_waitcnt lgkmcnt(0)\nds_write_b32 v{VZ}, v5 offset:{L_QFLAG}")
    if P["pre"]:
        A('; one plain read of the lines this workgroup publishes at the end')
        A("v_lshrrev_b32 v5, 4, v0\nv_and_b32 v6, 15, v0\nv_lshlrev_b32 v6, 4, v6\nv_lshl_add_u32 v5, v5, 12, v6")
        A(f"s_lshl_b32 s82, {sH}, 14\ns_lshl_b32 s83, {sI}, 8\ns_add_u32 s82, s82, s83\ns_add_u32 s82, s82, {WS_P}")
        A(f"s_lshl_b32 s80, {sH}, 12\ns_lshl_b32 s83, {sI}, 6\ns_add_u32 s80, s80, s83\ns_add_u32 s80, s80, {WS_ML}")
        A(f"s_lshl_b32 s81, {sI}, 12\ns_lshl_b32 s83, {sH}, 8\ns_add_u32 s81, s81, s83\ns_add_u32 s81, s81, {WS_Y - 4096}")
        A("v_lshlrev_b32 v4, 10, v0")
        A(f"buffer_load_dwordx4 v[24:27], v5, {rWS}, s82 offen\ns_mov_b64 exec, 15\nbuffer_load_dwordx4 v[28:31], v4, {rWS}, s80 offen")
        A(f"s_mov_b64 exec, 0xffff\nbuffer_load_dwordx4 v[32:35], v6, {rWS}, s81 offen")
        A("s_mov_b64 exec, -1\ns_waitcnt vmcnt(0)")
    A(f"s_mov_b32 s79, {sS}\ns_mul_i32 s72, {sH}, 3\ns_sub_u32 s72, 11, s72")
    A(f"s_lshl_b32 s78, {sH}, 8\ns_add_u32 s78, s78, {WS_CNT}\nv_mov_b32 v4, s78\nv_mov_b32 v5, 1\ns_mov_b64 exec, 1")
    def que_write(val):
        if val == "s80":
            A('; pool position -> (row s73, column s71): the donated rows of five columns, then the last rows of all sixteen')
            A(f"s_mul_i32 s73, s80, 52429\ns_lshr_b32 s73, s73, 18\ns_mul_i32 s71, s73, 5\ns_sub_u32 s71, s80, s71\ns_add_u32 s71, s71, s72\ns_add_u32 s73, s73, {SN - XD}")
            A(f"s_add_u32 s74, s80, {16*SN - 5*XD}\ns_lshr_b32 s75, s74, 4\ns_cmp_lt_u32 s80, {5*XD}\ns_cselect_b32 s73, s73, s75\ns_cselect_b32 s71, s71, s74")
            if OM: A(f"s_and_b32 s74, s73, {(1 << P['rot']) - 1}\ns_xor_b32 s71, s71, s74")
            sdep("s74", "s73", [b - 10 for b in rest], "s75")
            sdep("s73", "s71", [b - 10 for b in own], "s75")
            A("s_or_b32 s74, s74, s73"); val = "s74"
        A(f"s_and_b32 s82, s79, 31\ns_lshl_b32 s82, s82, 2\ns_add_u32 s79, s79, 1\ns_lshl_b32 s83, s79, 16\ns_or_b32 s83, s83, {val}")
        A(f"v_mov_b32 v1, s82\nv_mov_b32 v2, s83\nds_write_b32 v1, v2 offset:{L_QUE}")
    def demand(lbl, n, ahead):
        A(f"{lbl}:\nds_read_b32 v1, v{VZ} offset:{L_FULL}\ns_waitcnt lgkmcnt(0)\nv_readfirstlane_b32 s78, v1")
        A(f"s_add_u32 s78, s78, {dt + 2*ahead}\ns_ashr_i32 s78, s78, 1\ns_cmp_le_i32 {n}, s78\ns_cbranch_scc1 {lbl}_go\ns_sleep 2")
        spin(lbl)
        A(f"{lbl}_go:")
    npool = 5 * XD + 16 * (256 - SN)
    c0 = 0; t0 = 0; chain = []
    for cnt, sz in P["segs"]:
        chain.append((c0, t0, sz)); c0 += cnt; t0 += cnt * sz
        assert sz + P["AHA"] + 2 < 32
    nclaim = c0 + npool - t0
    assert t0 < npool and P["AH"] >= 3
    demand("L_ca", "s79", P["AHA"])
    A(f"global_atomic_add v20, v4, v5, s[26:27] {P['apol']}\ns_waitcnt vmcnt(0)\nv_readfirstlane_b32 s78, v20")
    A(f"s_cmp_ge_u32 s78, {c0}\ns_cbranch_scc1 L_ca_one")
    for i, (c, t, sz) in enumerate(chain):
        if i == 0: A(f"s_movk_i32 s80, {t - c*sz}\ns_mov_b32 s81, {sz}")
        else: A(f"s_cmp_ge_u32 s78, {c}\ns_cselect_b32 s80, {t - c*sz}, s80\ns_cselect_b32 s81, {sz}, s81")
    A("s_mul_i32 s78, s78, s81\ns_add_u32 s80, s80, s78\nL_ca_put:")
    que_write("s80")
    A("s_add_u32 s80, s80, 1\ns_sub_u32 s81, s81, 1\ns_cmp_lg_u32 s81, 0\ns_cbranch_scc1 L_ca_put\ns_branch L_ca")
    A(f"L_ca_one:\ns_cmp_ge_u32 s78, {nclaim}\ns_cbranch_scc1 L_cl_end\ns_add_u32 s80, s78, {t0 - c0}")
    que_write("s80")
    A("s_mov_b32 s76, s79\ns_add_u32 s77, s76, 4")
    for k in range(4):
        demand(f"L_cl_{k}", "s76", P["AH"])
        A(f"global_atomic_add v{20+k}, v4, v5, s[26:27] {P['apol']}")
        A(f"s_add_u32 s76, s76, 1\ns_cmp_lt_u32 s76, s77\ns_cbranch_scc1 L_cl_{(k+1)%4}")
        A(f"s_waitcnt vmcnt(3)\nv_readfirstlane_b32 s80, v{20+(k+1)%4}")
        A(f"s_cmp_ge_u32 s80, {nclaim}\ns_cbranch_scc1 L_cl_end\ns_add_u32 s80, s80, {t0 - c0}")
        que_write("s80")
    A("s_branch L_cl_0")
    A("L_cl_end:")
    que_write("0xffff")
    A("s_mov_b64 exec, -1")
    A(f"s_cmp_lg_u32 {sI}, 10\ns_cbranch_scc1 L_e_done\ns_cmp_gt_u32 {sH}, 8\ns_cbranch_scc1 L_e_done")
    srd(rOUT, 22, 1152)
    A("v_lshrrev_b32 v4, 5, v0\nv_and_b32 v5, 3, v0\nv_lshl_add_u32 v4, v4, 2, v5\nv_bfe_u32 v5, v0, 2, 3\nv_lshl_add_u32 v4, v4, 3, v5")
    A(f"v_lshlrev_b32 v2, 1, v4\ns_lshl_b32 s79, {sH}, 7")
    A(f"buffer_load_ushort v3, v2, {rX}, s79 offen")
    A(f"v_lshlrev_b32 v4, 2, v0\ns_lshl_b32 s82, {sH}, 12")
    def issue(b):
        for p in range(16): A(f"buffer_load_dword v{b+p}, v4, {rWS}, s80 offen offset:{256*p} {P['hl']}")
    def check(b, dst, behind, ok):
        for p in range(0, 16, 2):
            A(f"s_waitcnt vmcnt({behind+14-p})")
            tagchk(1, (b + p, b + p + 1), p == 0)
            if p == 0: A(f"v_add_f32 v{dst}, v{b}, v{b+1}")
            else: A(f"v_add_f32 v{dst}, v{dst}, v{b+p}\nv_add_f32 v{dst}, v{dst}, v{b+p+1}")
        tagtest(1)
        A(f"s_cbranch_vccz {ok}")
    A(f"s_mul_i32 s81, {sH}, {72*256}\ns_add_u32 s81, s81, {WS_F}")
    A("L_f_ffn:\ns_mov_b32 s80, s81\nv_mov_b32 v22, 0")
    def f_load(p):
        A(f"buffer_load_dword v{RG+p}, v4, {rWS}, s80 offen offset:{256*(p&15)} sc1")
        if p & 15 == 15: A("s_add_u32 s80, s80, 0x1000")
    for p in range(48): f_load(p)
    for p in range(0, 72, 2):
        A(f"s_waitcnt vmcnt({min(46, 70 - p)})")
        if p + 48 < 72: f_load(p + 48); f_load(p + 49)
        tagchk(1, (RG + p, RG + p + 1), p == 0)
        A(f"v_add_f32 v22, v22, v{RG+p}\nv_add_f32 v22, v22, v{RG+p+1}")
    tagtest(1)
    A("s_cbranch_vccz L_f_ffn_ok\ns_sleep 16")
    spin("L_f_ffn")
    A("L_f_ffn_ok:")
    rbf(22, 22)
    A(f"v_mul_f32 v5, {hex(LOG2E ^ 0x80000000)}, v22\nv_exp_f32 v5, v5\ns_nop 0\nv_add_f32 v5, 1.0, v5\nv_rcp_f32 v5, v5\ns_nop 0\nv_mul_f32 v22, v22, v5")
    rbf(22, 22)
    A("v_lshlrev_b32 v3, 16, v3")
    A(f"L_f_wait:\nds_read_b64 v[24:25], v{VZ} offset:{L_FULL}\ns_waitcnt lgkmcnt(0)\nv_cmp_ge_i32 vcc, v24, v25\ns_cbranch_vccnz L_f_go\ns_sleep 4")
    spin("L_f_wait")
    A("L_f_go:")
    A(f"s_add_u32 s80, s82, {WS_Y}")
    issue(RG)
    if P["f3"]:
        issue(RG + 16)
        A("L_f_att:")
        for i in range(3): issue(RG + 16 * ((i + 2) % 3)); check(RG + 16 * i, 23, 32, "L_f_att_ok")
    else:
        A("L_f_att:")
        issue(RG + 16); check(RG, 23, 16, "L_f_att_ok"); issue(RG); check(RG + 16, 23, 16, "L_f_att_ok")
    spin("L_f_att")
    A("L_f_att_ok:")
    rbf(23, 23)
    A("v_mul_f32 v23, v23, v22"); rbf(23, 23)
    A(f"v_add_f32 v23, v23, v3\nv_cvt_pk_bf16_f32 v23, v23, v23\nbuffer_store_short v23, v2, {rOUT}, s79 offen {P['opol']}")
    A(f"s_cmp_lg_u32 {sH}, 0\ns_cbranch_scc1 L_e_done")
    A(f"s_mov_b64 exec, 1\nv_mov_b32 v4, {WS_EPOCH}\nglobal_store_dword v4, v{VT}, s[26:27] sc1\ns_mov_b64 exec, -1\ns_branch L_e_done")

    A('; consumers')
    A("L_cons_main:")
    VSC = 148
    A("v_and_b32 v1, 15, v0\nv_lshrrev_b32 v4, 4, v0\nv_xor_b32 v5, v1, v4\nv_lshlrev_b32 v5, 4, v5")
    A(f"v_lshl_add_u32 v{KA}, v1, 8, v5")
    for ks in range(1, 4): A(f"v_xor_b32 v{KA+ks}, {64*ks}, v{KA}")
    A(f"v_lshlrev_b32 v5, 4, v1\nv_lshl_add_u32 v{VA}, v4, 10, v5")
    A(f"v_mov_b32 v{Vm}, 0xff800000\nv_mov_b32 v{VmL}, 0xff800000\nv_mov_b32 v{Vl}, 0")
    for i in range(4): A(f"v_mov_b32 v{O+i}, 0")
    A(f"s_lshl_b32 s82, {sC}, 2\nv_mov_b32 v{VDA}, s82")
    if diag == 3:
        for i in range(3): A(f"v_mov_b32 v{225+i}, 0")
        A("s_mov_b32 s86, 0")
    A(f"v_lshrrev_b32 v2, 3, v0\nv_lshlrev_b32 v2, 3, v2\ns_lshl_b32 s82, {sC}, 6\nv_add_u32 v{VSC}, s82, v2")
    A("v_bfe_u32 v5, v0, 3, 1\nv_lshlrev_b32 v5, 8, v5\nv_lshl_add_u32 v5, v4, 4, v5")
    A(f"s_mov_b32 s72, {hex(SCALE)}\ns_mov_b32 s73, {hex(LOG2E)}\ns_mov_b32 s74, 0xffff0000")
    A(f"s_mov_b32 s76, {sC}\ns_lshl_b32 s77, {sC}, 12\ns_add_u32 s77, s77, {RING0}\ns_mov_b32 s78, 0")
    A(f"s_mov_b32 s60, {sS}\ns_lshl_b32 s61, {sS}, 1")
    A(f"s_add_u32 s34, {sC}, {P['dn']}\ns_cmp_lt_i32 {sU}, 0\ns_cselect_b32 s34, -1, s34")
    assert L_SC + 64 * (SN - XD - NSL - 8) >= L_Y + 2048
    wo_prep()
    MA, MRG = X, RG
    for i in range(1, 4):
        A(f"s_add_u32 s82, {sC}, {i}\ns_and_b32 s82, s82, 3\ns_lshl_b32 s83, s82, 9\ns_lshl_b32 s82, s82, 10")
        A(f"v_lshl_add_u32 v{MA+2*i-2}, v0, 3, s83\nv_lshl_add_u32 v{MA+2*i-1}, v0, 4, s82")
    A(f"v_lshrrev_b32 v2, 4, v0\nv_and_b32 v3, 15, v0\nv_lshlrev_b32 v3, 4, v3\nv_lshl_add_u32 v{MA+6}, v2, 12, v3")
    A(f"v_lshl_add_u32 v{MA+7}, v2, 10, v3" if P["mlfull"] else f"v_and_b32 v3, 8, v0\nv_lshl_add_u32 v{MA+7}, v2, 10, v3")
    A(f"s_lshl_b32 s56, {sH}, 14\ns_add_u32 s56, s56, {WS_P}\ns_lshl_b32 s83, {sI}, 8\ns_add_u32 s58, s56, s83")
    A(f"s_lshl_b32 s83, {sC}, 12\ns_add_u32 s56, s56, s83")
    A(f"s_lshl_b32 s57, {sH}, 12\ns_add_u32 s57, s57, {WS_ML}\ns_lshl_b32 s83, {sI}, 6\ns_add_u32 s59, s83, s57")
    A(f"s_lshl_b32 s83, {sC}, 10\ns_add_u32 s57, s57, s83\ns_mov_b32 s70, -1\ns_brev_b32 s75, -2")
    if P["wok"]: A("s_mov_b32 s62, 1")
    def merge_reads():
        A(f"ds_read_b32 v{MRG+18}, v{VZ} offset:{L_QFLAG+4}")
        for i in range(3): A(f"ds_read_b64 {vr(MRG+12+2*i, 2)}, v{MA+2*i} offset:{L_MML}")
        for i in range(3): A(f"ds_read_b128 {vr(MRG+4*i)}, v{MA+2*i+1} offset:{L_MO}")
    A(f"L_qwait:\nds_read_b32 v1, v{VZ} offset:{L_QFLAG}\ns_waitcnt lgkmcnt(0)\nv_readfirstlane_b32 s79, v1")
    A("s_cmp_lg_u32 s79, 0\ns_cbranch_scc1 L_qgo\ns_sleep 1")
    spin("L_qwait")
    A("L_qgo:")
    tagprep()
    for ks in range(4): A(f"ds_read_b128 {vr(Q+4*ks)}, v5 offset:{L_Q + 64*ks}")
    A("s_waitcnt lgkmcnt(0)")
    stamp(4)
    def landed(lbl, item):
        A(f"s_cmp_lt_i32 {item}, s78\ns_cbranch_scc1 {lbl}_go")
        A(f"{lbl}_poll:\nds_read_b32 v22, v{VZ} offset:{L_FULL}\ns_waitcnt lgkmcnt(0)\nv_readfirstlane_b32 s78, v22")
        A(f"s_cmp_lt_i32 {item}, s78\ns_cbranch_scc1 {lbl}_go")
        spin(f"{lbl}_poll")
        A(f"{lbl}_go:")
    ntr = [0]
    def trace():
        if diag == 3:
            ntr[0] += 1; n = ntr[0]
            A(f"s_memrealtime s[84:85]\ns_waitcnt lgkmcnt(0)\ns_and_b32 m0, s86, 63\ns_cmp_lt_u32 s86, 64\ns_cbranch_scc0 L_tr{n}a")
            A(f"v_writelane_b32 v225, s84, m0\ns_branch L_tr{n}c\nL_tr{n}a:\ns_cmp_lt_u32 s86, 128\ns_cbranch_scc0 L_tr{n}b\nv_writelane_b32 v226, s84, m0\ns_branch L_tr{n}c")
            A(f"L_tr{n}b:\nv_writelane_b32 v227, s84, m0\nL_tr{n}c:\ns_add_u32 s86, s86, 1")
    def slot_next(step):
        A(f"s_add_u32 s77, s77, {step}\ns_sub_u32 s79, s77, {NSL*4096}\ns_cmp_ge_u32 s77, {RINGE}\ns_cselect_b32 s77, s79, s77")
    def k_reads():
        for ks in range(4): A(f"v_add_u32 v{AD+ks}, s77, v{KA+ks}\nds_read_b128 {vr(K+4*ks)}, v{AD+ks}")
    def qk():
        for ks in range(4):
            A(f"s_waitcnt lgkmcnt({3-ks})")
            mfma(S, K + 4 * ks, Q + 4 * ks, "0" if ks == 0 else None)
    def v_reads(off):
        for r in range(4): A(f"ds_read_b128 {vr(V+4*r)}, v{AD+4} offset:{off + 256*r}")
    def softmax(lbl):
        A(f"v_max3_f32 v22, v{S}, v{S+1}, v{S+2}\nv_max_f32 v22, v22, v{S+3}")
        A(f"v_cmp_gt_f32 vcc, v22, v{Vm}\ns_cbranch_vccnz {lbl}_rescale\n{lbl}_cont:")
        for i in range(4): A(f"v_fma_f32 v{PP+i}, v{S+i}, s73, -v{VmL}")
        for i in range(4): A(f"v_exp_f32 v{PP+i}, v{PP+i}")
        A(f"s_waitcnt lgkmcnt(0)\nds_write_b32 v{VDA}, v{AD} offset:{L_DONE}")
    def pv():
        for i in range(4):
            A(f"v_cvt_pk_bf16_f32 v22, v{PP+i}, v{PP+i}")
            for v in range(4): A(f"v_and_b32 v{B+4*i+v}, v22, v{M+v}")
            A(f"v_add_f32 v{Vl}, v{Vl}, v{PP+i}")
            if i > 0: mfma(O, V + 4 * (i - 1), B + 4 * (i - 1))
        A("s_nop 0")
        mfma(O, V + 12, B + 12)
    def rescale(lbl):
        A(f"{lbl}_rescale:")
        for op in ("v_permlane16_swap_b32", "v_permlane32_swap_b32"):
            A(f"v_mov_b32 v23, v22\ns_nop 1\n{op} v23, v22\nv_max_f32 v22, v22, v23")
        A(f"v_max_f32 v{Vm}, v{Vm}, v22\nv_mul_f32 v22, s73, v{Vm}\nv_sub_f32 v23, v{VmL}, v22\nv_exp_f32 v23, v23\nv_mov_b32 v{VmL}, v22")
        A(f"v_mul_f32 v{Vl}, v{Vl}, v23")
        for i in range(4): A(f"v_mul_f32 v{O+i}, v{O+i}, v23")
        A(f"s_branch {lbl}_cont")
    A(f"v_mov_b32 v150, v23\ns_cmp_ge_i32 {sU}, 0\ns_cbranch_scc1 L_c_wd")
    A("L_k:")
    landed("L_k", "s76")
    trace()
    k_reads()
    slot_next(0x4000)
    A(f"s_add_u32 s76, s76, 1\nv_mov_b32 v22, s76\ns_add_u32 s76, s76, 3")
    qk()
    A(f"ds_write_b32 v{VDA}, v22 offset:{L_DONE}\ns_mov_b32 exec_lo, 0x01010101\ns_mov_b32 exec_hi, 0x01010101\ns_nop 4")
    for i in range(4): A(f"v_cvt_pk_bf16_f32 v{S+i}, 0, v{S+i}")
    for i in range(4): A(f"v_mul_f32 v{S+i}, s72, v{S+i}")
    A(f"v_cvt_pk_bf16_f32 v22, v{S}, v{S+1}\nv_cvt_pk_bf16_f32 v23, v{S+2}, v{S+3}")
    A(f"ds_write_b64 v{VSC}, v[22:23] offset:{L_SC}\ns_mov_b64 exec, -1\nv_add_u32 v{VSC}, 0x100, v{VSC}")
    A("s_cmp_eq_u32 s76, s34\ns_cbranch_scc1 L_c_down\nL_k_on:\ns_cmp_lt_u32 s76, s60\ns_cbranch_scc1 L_k")
    A(f"s_lshl_b32 s82, s60, 6\nv_subrev_u32 v{VSC}, s82, v{VSC}")
    A("L_v:")
    landed("L_v", "s76")
    trace()
    A(f"ds_read_b64 v[22:23], v{VSC} offset:{L_SC}\nv_add_u32 v{AD+4}, s77, v{VA}")
    v_reads(0)
    slot_next(0x4000)
    A(f"v_add_u32 v{VSC}, 0x100, v{VSC}\ns_add_u32 s76, s76, 1\nv_mov_b32 v{AD}, s76\ns_add_u32 s76, s76, 3")
    A(f"s_waitcnt lgkmcnt(4)\nv_lshlrev_b32 v{S}, 16, v22\nv_and_b32 v{S+1}, s74, v22\nv_lshlrev_b32 v{S+2}, 16, v23\nv_and_b32 v{S+3}, s74, v23")
    softmax("L_v"); pv()
    A("s_cmp_lt_u32 s76, s61\ns_cbranch_scc1 L_v")
    A(f"s_add_u32 s76, s76, {sC}\ns_lshl_b32 s82, {sC}, 12")
    slot_next("s82")
    A("L_c_top:\ns_cmp_lt_i32 s76, s78\ns_cbranch_scc1 L_c_go\ns_cmp_ge_i32 s76, s75\ns_cbranch_scc1 L_c_exit")
    A(f"L_c_poll:\nds_read_b64 v[22:23], v{VZ} offset:{L_FULL}\ns_waitcnt lgkmcnt(0)")
    A("v_readfirstlane_b32 s78, v22\nv_readfirstlane_b32 s75, v23\ns_add_u32 s70, s75, 6")
    A("s_cmp_lt_i32 s76, s78\ns_cbranch_scc1 L_c_go\ns_cmp_ge_i32 s76, s75\ns_cbranch_scc1 L_c_exit")
    spin("L_c_poll")
    A("L_c_vwait:")
    A(f"ds_read_b64 v[22:23], v{VZ} offset:{L_FULL}\ns_waitcnt lgkmcnt(0)\nv_readfirstlane_b32 s78, v22\nv_readfirstlane_b32 s75, v23")
    A("s_add_u32 s70, s75, 6\ns_cmp_lt_i32 s82, s78\ns_cbranch_scc1 L_c_v")
    spin("L_c_vwait")
    rescale("L_v"); rescale("L_c")
    A("L_c_go:")
    trace(); trace()
    k_reads()
    A(f"v_add_u32 v{AD+4}, s77, v{VA}")
    slot_next(0x8000)
    qk()
    if P["wok"]:
        A("s_add_u32 s82, s76, 8\ns_cmp_lg_u32 s82, s70\ns_cbranch_scc1 L_c_nowo\ns_mov_b32 s62, 0")
        wo_loads()
        A("L_c_nowo:")
    A("s_add_u32 s82, s76, 1\ns_cmp_lt_i32 s82, s78\ns_cbranch_scc0 L_c_vwait\nL_c_v:")
    v_reads(4096)
    A(f"s_add_u32 s76, s76, 2\nv_mov_b32 v{AD}, s76\ns_add_u32 s76, s76, 6")
    for i in range(4): A(f"v_cvt_pk_bf16_f32 v{S+i}, 0, v{S+i}")
    for i in range(4): A(f"v_mul_f32 v{S+i}, s72, v{S+i}")
    for i in range(4): A(f"v_cvt_pk_bf16_f32 v{S+i}, 0, v{S+i}")
    softmax("L_c")
    A("s_cmp_lg_u32 s76, s70\ns_cbranch_scc1 L_c_pvb\ns_mov_b32 s61, 0")
    merge_reads()
    A("L_c_pvb:")
    pv()
    A("s_branch L_c_top")
    A("L_c_exit:")
    if diag == 3:
        A(f"s_lshl_b32 s84, s2, 2\ns_add_u32 s84, s84, {sC}\ns_lshl_b32 s84, s84, 10\ns_add_u32 s84, s84, {WS_DIAG + 0x20000}\nv_lshlrev_b32 v1, 2, v0")
        for i in range(3): A(f"buffer_store_dword v{225+i}, v1, {rWS}, s84 offen offset:{256*i}")
        A(f"buffer_store_dword v{VZ}, v1, {rWS}, s84 offen offset:768")
    stamp(5)
    for op in ("v_permlane16_swap_b32", "v_permlane32_swap_b32"):
        A(f"v_mov_b32 v23, v{Vl}\ns_nop 1\n{op} v23, v{Vl}\nv_add_f32 v{Vl}, v{Vl}, v23")
    A("s_cmp_eq_u32 s61, 0\ns_cbranch_scc1 L_e_dir")
    A(f"s_lshr_b32 s82, s75, 1\ns_sub_u32 s82, s82, 1\ns_and_b32 s82, s82, 3\ns_cmp_eq_u32 s82, {sC}\ns_cbranch_scc1 L_e_re")
    A(f"s_lshl_b32 s82, {sC}, 10\nv_lshl_add_u32 v4, v0, 4, s82\nds_write_b128 v4, {vr(O)} offset:{L_MO}")
    A(f"s_lshl_b32 s82, {sC}, 9\nv_lshl_add_u32 v4, v0, 3, s82\nv_mov_b32 v22, v{VmL}\nv_mov_b32 v23, v{Vl}\nds_write_b64 v4, v[22:23] offset:{L_MML}")
    A(f"v_mov_b32 v1, 1\ns_mov_b64 exec, 1\nds_add_u32 v{VZ}, v1 offset:{L_QFLAG+4}\ns_mov_b64 exec, -1")
    wo_loads()
    A(f"L_e_wait:\nds_read_b32 v1, v{VZ} offset:{L_QFLAG+12}\ns_waitcnt lgkmcnt(0)\nv_cmp_ne_u32 vcc, 0, v1\ns_cbranch_vccnz L_e_l1p")
    spin("L_e_wait")
    A("L_e_re:")
    merge_reads()
    A(f"L_e_dir:\ns_waitcnt lgkmcnt(3)\nv_cmp_ne_u32 vcc, 3, v{MRG+18}\nv_max3_f32 v22, v{MRG+12}, v{MRG+14}, v{MRG+16}\ns_cbranch_vccz L_e_go")
    spin("L_e_re")
    A(f"L_e_go:\nv_max_f32 v22, v22, v{VmL}")
    A(f"v_sub_f32 v{VmL}, v{VmL}, v22")
    for c in range(3): A(f"v_sub_f32 v{MRG+12+2*c}, v{MRG+12+2*c}, v22")
    A(f"v_exp_f32 v{VmL}, v{VmL}")
    for c in range(3): A(f"v_exp_f32 v{MRG+12+2*c}, v{MRG+12+2*c}")
    for i in range(4): A(f"v_mul_f32 v{O+i}, v{VmL}, v{O+i}")
    A("s_waitcnt lgkmcnt(0)")
    for c in range(3):
        for i in range(4): A(f"v_fmac_f32 v{O+i}, v{MRG+12+2*c}, v{MRG+4*c+i}")
    for i in range(4): tagput(O + i)
    A(f"buffer_store_dwordx4 {vr(O)}, v{MA+6}, {rWS}, s58 offen {P['hs']}")
    A(f"v_mul_f32 v23, v{VmL}, v{Vl}")
    for c in range(3): A(f"v_fmac_f32 v23, v{MRG+12+2*c}, v{MRG+13+2*c}")
    if P["mlfull"]:
        A(f"v_perm_b32 v{K}, v22, v{VT}, s101\nv_perm_b32 v{K+1}, v23, v{VT}, s101\ns_nop 0")
        A(f"v_mov_b32_dpp v{K+2}, v{K} row_ror:8 row_mask:0xf bank_mask:0xf\nv_mov_b32_dpp v{K+3}, v{K+1} row_ror:8 row_mask:0xf bank_mask:0xf")
        A("s_mov_b32 exec_lo, 0x000f000f\ns_mov_b32 exec_hi, 0x000f000f")
        A(f"buffer_store_dwordx4 {vr(K)}, v{MA+7}, {rWS}, s59 offen {P['hs']}\ns_mov_b64 exec, -1")
    else:
        tagput(22); tagput(23)
        A("s_mov_b32 exec_lo, 0x01010101\ns_mov_b32 exec_hi, 0x01010101")
        A(f"buffer_store_dwordx2 v[22:23], v{MA+7}, {rWS}, s59 offen {P['hs']}\ns_mov_b64 exec, -1")
    A(f"v_mov_b32 v1, 1\nds_write_b32 v{VZ}, v1 offset:{L_QFLAG+12}")
    if P["wok"]: A("s_cmp_eq_u32 s62, 0\ns_cbranch_scc1 L_e_l1p")
    wo_loads()
    A("L_e_l1p:\ns_mov_b32 s76, s56\ns_mov_b32 s77, s57\nv_lshlrev_b32 v6, 2, v0")
    A("L_e_l1:\ns_waitcnt lgkmcnt(0)")
    stamp(6); stamp(6, 5)
    A(f"s_sub_u32 s78, {sI}, 1\ns_cmp_gt_u32 s78, 8\ns_cbranch_scc1 L_e_done")
    A("v_and_b32 v4, 15, v0\nv_lshlrev_b32 v4, 6, v4\nv_lshrrev_b32 v5, 5, v0\nv_lshl_add_u32 v4, v5, 3, v4")
    acc = (S, S + 1, S + 2, S + 3)
    def l1_issue(b, ml):
        A(f"buffer_load_dwordx2 {vr(ml, 2)}, v4, {rWS}, s77 offen {P['hl']}")
        for p in range(16): A(f"buffer_load_dword v{b+p}, v6, {rWS}, s76 offen offset:{256*p} {P['hl']}")
    def l1_check(b, ml, behind):
        A(f"s_waitcnt vmcnt({behind+16})\nv_mov_b32 v7, v{ml}")
        tagchk(1, (ml, ml + 1), True)
        A("v_and_b32 v2, 0xff, v1\nv_cmp_ne_u32 vcc, 0, v2\ns_cbranch_vccnz L_l1_again")
        for i, r in enumerate((8, 4, 2, 1)):
            A(f"v_mov_b32 v{acc[i]}, 0" + ("" if i == 0 else "\ns_nop 0"))
            A(f"v_max_f32_dpp v7, v7, v7 row_ror:{r} row_mask:0xf bank_mask:0xf")
        A(f"v_sub_f32 v22, v{ml}, v7\nv_exp_f32 v22, v22\ns_nop 0\nv_mul_f32 v23, v22, v{ml+1}")
        for p in range(0, 16, 2):
            A(f"s_waitcnt vmcnt({behind+14-p})")
            tagchk(1, (b + p, b + p + 1))
            if p < 8: A(f"v_add_f32_dpp v23, v23, v23 row_ror:{8 >> (p // 2)} row_mask:0xf bank_mask:0xf")
            if p == 8: A("v_rcp_f32 v23, v23")
            for x in (p, p + 1): A(f"v_fmac_f32_dpp v{acc[x&3]}, v22, v{b+x} row_newbcast:{x} row_mask:0xf bank_mask:0xf")
        tagtest(1)
        A(f"v_add_f32 v2, v{S}, v{S+1}\nv_add_f32 v3, v{S+2}, v{S+3}\ns_cbranch_vccz L_l1_ok")
    if P["l1d"]: A(f"s_sleep {P['l1d']}")
    A("L_l1_poll:")
    l1_issue(RG, RG + 32); l1_check(RG, RG + 32, 0)
    A("L_l1_again:")
    spin("L_l1_poll")
    A("L_l1_ok:")
    stamp(3, 5)
    A("v_add_f32 v1, v2, v3\nv_mul_f32 v1, v1, v23\nv_cvt_pk_bf16_f32 v1, v1, v1\ns_nop 1")
    for t in range(8): A(f"v_mov_b32_dpp v{V+t}, v1 row_newbcast:{t} row_mask:0xf bank_mask:0x3")
    for t in range(8): A(f"v_mov_b32_dpp v{V+t}, v1 row_newbcast:{8+t} row_mask:0xf bank_mask:0xc")
    for t in range(8):
        for v in range(4): A(f"v_and_b32 v{B+4*(t&3)+v}, v{V+t}, v{M+v}")
        if t > 0: mfma(S, WO + 4 * (t - 1), B + 4 * ((t - 1) & 3), "0" if t == 1 else None)
    A("s_nop 0")
    mfma(S, WO + 28, B + 12)
    stamp(5, 5)
    A(f"s_lshl_b32 s82, {sC}, 9\nv_lshrrev_b32 v4, 5, v0\nv_lshl_add_u32 v4, v4, 8, v{VPL}\nv_add_u32 v4, s82, v4\nv_mov_b32 v1, 1")
    exec_valid()
    A(f"s_lshl_b32 s82, s78, 12\ns_lshl_b32 s83, {sH}, 8\ns_add_u32 s82, s82, s83\ns_add_u32 s82, s82, {WS_Y}")
    A(f"ds_write_b128 v4, {vr(S)} offset:{L_Y}\ns_mov_b64 exec, 1")
    A(f"ds_add_rtn_u32 v1, v{VZ}, v1 offset:{L_QFLAG+8}\ns_mov_b64 exec, -1")
    for i in range(8): A(f"ds_read_b32 v{K+i}, v6 offset:{L_Y + 256*i}")
    A("s_waitcnt lgkmcnt(8)\nv_readfirstlane_b32 s78, v1\ns_cmp_lg_u32 s78, 3\ns_cbranch_scc1 L_e_done")
    A(f"s_waitcnt lgkmcnt(4)\nv_add_f32 v{K}, v{K}, v{K+1}\nv_add_f32 v{K+2}, v{K+2}, v{K+3}")
    A(f"s_waitcnt lgkmcnt(0)\nv_add_f32 v{K+4}, v{K+4}, v{K+5}\nv_add_f32 v{K+6}, v{K+6}, v{K+7}")
    A(f"v_add_f32 v{K}, v{K}, v{K+2}\nv_add_f32 v{K+4}, v{K+4}, v{K+6}\nv_add_f32 v22, v{K}, v{K+4}")
    tagput(22)
    A(f"buffer_store_dword v22, v6, {rWS}, s82 offen {P['hs']}")
    A("L_e_done:")
    stamp(7); stamp(7, 5)
    dump_stamps()
    A("L_end:\ns_endpgm")

    GU = [28 + 4 * i for i in range(14)] + [108 + 4 * i for i in range(4)]; DG, GR = 92, 44
    ACC = [108 + 4 * i for i in range(8)] + [92]
    FS = RING0 - 4 * 2304
    assert L_SC + 64 * (P["dn"] + NSL + 12) <= FS and P["dn"] % 4 == 0
    def wd_loads():
        for n in range(18):
            t, ct = divmod(n, 9)
            if n >= P["FD"]: A(f"s_waitcnt vmcnt({P['FD'] - 1})")
            A(f"buffer_load_dwordx4 {vr(RG+4*n)}, v150, {rWD}, {'s33' if t else 's32'} offen offset:{ct*128} {wpol}")
    def join(off, lbl, n):
        A(f"{lbl}:\nds_read_b32 v1, v{VZ} offset:{off}\ns_waitcnt lgkmcnt(0)\nv_cmp_eq_u32 vcc, {n}, v1\ns_cbranch_vccnz {lbl}_ok")
        spin(lbl)
        A(f"{lbl}_ok:")
    A("L_c_pre:")
    A(f"s_lshl_b32 {sU}, {sH}, 2\ns_add_u32 {sU}, {sU}, {sK}\ns_sub_u32 {sU}, {sU}, 11\ns_lshr_b32 s82, {sH}, 1\ns_add_u32 s82, s82, 64")
    A(f"s_bitcmp1_b32 {sH}, 0\ns_cselect_b32 s83, -1, s82\ns_cselect_b32 s82, s82, -1")
    A(f"s_cmp_eq_u32 {sK}, 15\ns_cselect_b32 {sU}, s83, {sU}\ns_cmp_lt_u32 {sK}, 11\ns_cselect_b32 {sU}, -1, {sU}")
    A(f"s_lshr_b32 s83, {sI}, 2\ns_cmp_eq_u32 s83, 0\ns_cselect_b32 s82, s82, -1")
    A(f"s_lshl_b32 {sG}, {sH}, 2\ns_add_u32 {sG}, {sG}, s83\ns_cmp_ge_u32 {sC}, 2\ns_cselect_b32 {sG}, s82, {sG}")
    A(f"s_bitcmp1_b32 {sC}, 0\ns_cselect_b64 s[56:57], s[18:19], s[16:17]\ns_mov_b32 s58, {576*9216}\ns_mov_b32 s59, 0x20000")
    srd(rWD, 20, 4608 * 1152)
    A("v_lshrrev_b32 v4, 3, v0\nv_and_b32 v5, 7, v0\nv_lshlrev_b32 v5, 4, v5")
    A("v_mul_u32_u24 v22, 0x2400, v4\nv_add_u32 v22, v22, v5\nv_mul_u32_u24 v23, 0x480, v4\nv_add_u32 v23, v23, v5")
    A(f"s_lshl_b32 s32, {sU}, 2\ns_add_u32 s32, s32, {sC}\ns_mul_i32 s32, s32, {16*1152}\ns_add_u32 s33, s32, {8*1152}")
    A(f"s_cmp_lt_i32 {sG}, 0\ns_cbranch_scc1 L_c_pre_x")
    A(f"s_and_b32 s82, {sI}, 3\ns_mul_i32 s82, s82, {144*9216}\ns_lshl_b32 s83, {sG}, 7\ns_add_u32 s82, s82, s83")
    for p in range(18):
        if p >= P["FG"]: A(f"s_waitcnt vmcnt({P['FG'] - 1})")
        A(f"buffer_load_dwordx4 {vr(GU[p])}, v22, {rWG}, s82 offen {wpol}")
        if p < 17: A(f"s_add_u32 s82, s82, {8*9216}")
    A(f"L_c_pre_x:\ns_mov_b64 exec, 1\nv_mov_b32 v1, 1\nds_add_u32 v{VZ}, v1 offset:{L_QFLAG+20}\ns_mov_b64 exec, -1\ns_branch L_consts")
    A(f"L_c_ffn:\ns_waitcnt lgkmcnt(0)")
    tagprep()
    A(f"s_cmp_lt_i32 {sG}, 0\ns_cbranch_scc1 L_cons_main")
    join(L_QFLAG + 16, "L_gu_x", 1)
    A("v_lshlrev_b32 v4, 2, v0")
    for k in range(3): A(f"ds_read_b32 v{XR+k}, v4 offset:{L_GU + 256*k}")
    A("s_waitcnt lgkmcnt(0)")
    for p in range(18):
        bbuild(XR + p // 8, p % 8, B + 4 * (p & 1))
        A(f"s_waitcnt vmcnt({17 - p})\ns_nop 0")
        mfma(DG, GU[p], B + 4 * (p & 1), "0" if p == 0 else None)
    A(f"s_lshl_b32 s82, {sG}, 11\ns_and_b32 s83, {sI}, 3\ns_lshl_b32 s83, s83, 9\ns_add_u32 s82, s82, s83")
    A(f"s_and_b32 s83, {sC}, 1\ns_lshl_b32 s83, s83, 8\ns_add_u32 s82, s82, s83\ns_add_u32 s82, s82, {WS_G}")
    for i in range(4): A(f"v_mov_b32_dpp v{GR+i}, v{DG+i} row_ror:8 row_mask:0xf bank_mask:0xf")
    A("s_nop 0")
    for i in range(4): A(f"v_permlane32_swap_b32 v{GR+i}, v{GR+4+i}")
    for i in range(4): A(f"v_add_f32 v{DG+i}, v{DG+i}, v{GR+4+i}")
    for i in range(4): A(f"v_bfi_b32 v{DG+i}, 15, v{VT}, v{DG+i}")
    A(f"s_mov_b64 exec, 0x00ff00ff\nbuffer_store_dwordx4 {vr(DG)}, v{VPL}, {rWS}, s82 offen sc1\ns_mov_b64 exec, -1")
    A("s_branch L_cons_main")
    A("L_c_wd:")
    wd_loads()
    A("s_branch L_k")
    A("L_c_down:")
    A(f"v_and_b32 v4, 1, v0\ns_lshl_b32 s82, {sC}, 1\nv_add_u32 v4, s82, v4\nv_lshrrev_b32 v5, 2, v4\nv_and_b32 v4, 3, v4\nv_lshl_add_u32 v4, v5, 5, v4")
    A(f"v_lshrrev_b32 v5, 3, v0\nv_lshl_add_u32 v4, v5, 2, v4\nv_lshlrev_b32 v4, 2, v4\ns_lshl_b32 s82, {sU}, 11\ns_add_u32 s82, s82, {WS_G}")
    A("L_dn_poll:")
    for i in range(8): A(f"buffer_load_dword v{GR+i}, v4, {rWS}, s82 offen offset:{256*i} sc1")
    A("s_waitcnt vmcnt(0)")
    tagchk(1, range(GR, GR + 8), True)
    A("v_and_b32 v1, 15, v1\nv_cmp_ne_u32 vcc, 0, v1\ns_cbranch_vccz L_dn_ok\ns_sleep 2")
    spin("L_dn_poll")
    A("L_dn_ok:")
    for m in range(2):
        A(f"v_add_f32 v{GR+m}, v{GR+m}, v{GR+2+m}\nv_add_f32 v{GR+4+m}, v{GR+4+m}, v{GR+6+m}\nv_add_f32 v{GR+m}, v{GR+m}, v{GR+4+m}")
    rbf(GR, GR); rbf(GR + 1, GR + 1)
    A(f"v_mul_f32 v{GR}, {hex(LOG2E ^ 0x80000000)}, v{GR}\nv_exp_f32 v{GR}, v{GR}\ns_nop 0\nv_add_f32 v{GR}, 1.0, v{GR}\nv_rcp_f32 v{GR}, v{GR}\ns_nop 0")
    rbf(GR, GR)
    A(f"v_mul_f32 v{GR}, v{GR}, v{GR+1}\nv_cvt_pk_bf16_f32 v{XR}, v{GR}, v{GR}\ns_nop 1")
    for n in range(18):
        t, ct = divmod(n, 9)
        if ct == 0:
            bbuild(XR, t, B + 4 * t)
            A("s_nop 1")
        mfma(ACC[ct], RG + 4 * n, B + 4 * t, "0" if t == 0 else None)
    A(f"s_mul_i32 s82, {sC}, 2304\ns_add_u32 s82, s82, {FS}\nv_add_u32 v4, s82, v{VPL}")
    for ct in range(9):
        for i in range(4): A(f"v_mov_b32_dpp v{GR+i}, v{ACC[ct]+i} row_ror:8 row_mask:0xf bank_mask:0xf")
        A("s_nop 0")
        for i in range(4): A(f"v_permlane32_swap_b32 v{GR+i}, v{GR+4+i}")
        for i in range(4): A(f"v_add_f32 v{ACC[ct]+i}, v{ACC[ct]+i}, v{GR+4+i}")
    A("s_mov_b64 exec, 0x00ff00ff")
    for ct in range(9): A(f"ds_write_b128 v4, {vr(ACC[ct])} offset:{ct*256}")
    A(f"s_mov_b64 exec, 1\nv_mov_b32 v1, 1\nds_add_u32 v{VZ}, v1 offset:{L_QFLAG+24}\ns_mov_b64 exec, -1")
    A(f"s_cmp_eq_u32 {sC}, 3\ns_cbranch_scc1 L_k_on")
    join(L_QFLAG + 24, "L_dn_j", 4)
    A(f"s_lshl_b32 s64, {sC}, 6\nv_add_u32 v4, s64, v0\nv_cmp_gt_u32 vcc, 0x90, v4\ns_and_saveexec_b64 s[82:83], vcc")
    A(f"v_lshlrev_b32 v5, 4, v4\nv_add_u32 v5, {FS}, v5")
    for i in range(4): A(f"ds_read_b128 {vr(GR+4*i)}, v5 offset:{i*2304}")
    A(f"v_lshrrev_b32 v5, 4, v4\nv_mul_u32_u24 v5, {72*256}, v5\nv_and_b32 v4, 15, v4\nv_lshl_add_u32 v4, v4, 4, v5")
    A(f"s_lshl_b32 s64, {sU}, 8\ns_add_u32 s64, s64, {WS_F}\ns_waitcnt lgkmcnt(0)")
    for k in range(1, 4):
        for i in range(4): A(f"v_add_f32 v{GR+i}, v{GR+i}, v{GR+4*k+i}")
    for i in range(4): tagput(GR + i)
    A(f"buffer_store_dwordx4 {vr(GR)}, v4, {rWS}, s64 offen sc1\ns_mov_b64 exec, -1")
    stamp(3)
    A("s_branch L_k_on")

    A("L_code_end:")
    errs = hazard.check(L)
    if errs:
        print("\n".join(errs)); raise SystemExit("hazards found")
    lds = RINGE
    body = "\n".join(x if x.endswith(":") and not x.startswith(";") else "    " + x for x in L)
    head = HEADER.replace("@LAUNCH@", f"; @launch grid=(256,1,1) block=({64*NW},1,1) lds={lds}\n" + DESC.rstrip("\n"))
    tail = f"""
.section .rodata,"a"
.p2align 6
.amdhsa_kernel {NAME}_kernel
  .amdhsa_next_free_vgpr 228
  .amdhsa_next_free_sgpr 102
  .amdhsa_accum_offset 228
  .amdhsa_group_segment_fixed_size 0
  .amdhsa_kernarg_size 96
  .amdhsa_user_sgpr_count 2
  .amdhsa_user_sgpr_kernarg_segment_ptr 1
  .amdhsa_system_sgpr_workgroup_id_x 1
  .amdhsa_float_denorm_mode_32 3
.end_amdhsa_kernel
"""
    return head + body + tail, lds

if __name__ == "__main__":
    out = sys.argv[1]
    kw = eval("dict(" + (sys.argv[2] if len(sys.argv) > 2 else "") + ")")
    txt, lds = build(**kw)
    open(out, "w").write(txt)
    import subprocess
    r = subprocess.run([sys.executable, "cdna_unwritten_srd_check.py", out], capture_output=True, text=True)
    print(r.stdout.strip()[:1500])
```

```python
import sys, os
sys.path.insert(0, os.path.dirname(os.path.abspath(__file__)))
import hazard

NAME = "recurrent_scan__gqa_block_cached__glu_gated_glu__decode"
HEADER = open(os.path.join(os.path.dirname(os.path.abspath(__file__)), "header.txt")).read()

WS_QP, WS_P, WS_ML, WS_Y, WS_CNT, WS_EPOCH, WS_F, WS_G, WS_DIAG = 0x0, 0x20000, 0x60000, 0x70000, 0x7a000, 0x7c000, 0x80000, 0xb0000, 0x100000
L_FULL, L_DONE, L_QFLAG, L_QUE, L_Q, L_GU, L_SC, L_MO, L_MML, L_Y, RING0 = 0, 512, 528, 640, 1024, 1536, 2560, 2560, 6656, 8704, 19456
L_MID = 768
LOG2E = 0x3FB8AA3B
SCALE = 0x3DB504F3
VALID = "0xff00ff00", "0x00ff00ff"
NW = 6

DESC = """;
"""

DEF = dict(F=21, Fd=21, NSL=34, FW=12, pol="nt", wpol="nt", diag=False, spin=0x800000, AH=5, AHA=8, qdelay=4,
           segs=((5, 12), (4, 8), (4, 4), (3, 0)), own=(10, 11, 12, 15), pcs=(20, 21), R=240, X=8, AHM=12, early=8, dn=24, FG=8, FD=18, Ft=None, Nt=24, Nv=0, rot=4, pre=False, cpf=True, opol='sc1', split=0, mlfull=1, l1d=0, wok=0, f3=0)

def build(**kw):
    P = dict(DEF); P.update(kw)
    F, Fd, NSL, FW, pol, wpol, diag = P["F"], P["Fd"], P["NSL"], P["FW"], P["pol"], P["wpol"], P["diag"]
    P.update(hl="sc1", hs="sc1", apol="sc0")
    L = []
    def A(s):
        for x in s.strip("\n").split("\n"):
            L.append(x.strip())
    sW, sH, sI, sC, sT, sK, sS, sU, sG = "s28", "s29", "s30", "s31", "s100", "s14", "s15", "s63", "s62"
    rK, rV, rWS, rX, rWQ, rWO, rWG, rWU, rWD, rOUT = ("s[32:35]", "s[36:39]", "s[40:43]", "s[44:47]", "s[48:51]",
                                                    "s[52:55]", "s[56:59]", "s[56:59]", "s[64:67]", "s[68:71]")
    def srd(r, ptr, n):
        b = int(r[2:r.index(":")])
        A(f"s_mov_b64 s[{b}:{b+1}], s[{ptr}:{ptr+1}]\ns_mov_b32 s{b+2}, {n}\ns_mov_b32 s{b+3}, 0x20000")
    def vr(b, n=4): return f"v[{b}:{b+n-1}]"
    M, KA, VA, VZ, Vm, VmL, Vl, VDA = 8, 12, 16, 17, 18, 19, 20, 21
    O, Q, K, V, S, PP, B, AD, WO, X, XR, RG, DQ = 24, 28, 44, 60, 76, 80, 84, 100, 108, 140, 149, 152, 224
    VPL = 105
    def stamp(k, set_=1):
        if diag and (diag == set_ or (k in (0, 1, 2, 4) and set_ == 1)) and not (diag == 3 and k == 4):
            A(f"s_memrealtime s[{84+2*k}:{85+2*k}]\ns_waitcnt lgkmcnt(0)")
    def dump_stamps():
        if diag:
            A(f"s_mul_i32 s76, s2, {NW}\ns_add_u32 s76, s76, {sW}\ns_lshl_b32 s76, s76, 5\ns_add_u32 s76, s76, {WS_DIAG}")
            A("s_mov_b64 exec, 1\nv_mov_b32 v1, s76")
            for k in range(8):
                A(f"v_mov_b32 v2, s{84+2*k}\nglobal_store_dword v1, v2, s[26:27] offset:{4*k}")
            A("s_mov_b64 exec, -1")
    npf = [0]
    def code_prefetch(r):
        npf[0] += 1
        A(f"s_getpc_b64 s[64:65]\nL_pc{npf[0]}:\ns_sub_u32 s64, s64, L_pc{npf[0]}-{NAME}_kernel\ns_subb_u32 s65, s65, 0")
        A(f"v_lshlrev_b32 v{r}, 7, v0\nv_add_u32 v{r+1}, 0x2000, v{r}\nv_min_u32 v{r+1}, L_code_end-{NAME}_kernel-4, v{r+1}")
        A(f"global_load_dword v{r+2}, v{r}, s[64:65]\nglobal_load_dword v{r+3}, v{r+1}, s[64:65]")
    def spin(lbl):
        A(f"s_sub_u32 s3, s3, 1\ns_cbranch_scc0 {lbl}\ns_endpgm")
    def wave_sum(v, t):
        for r in (8, 4, 2, 1):
            A(f"s_nop 1\nv_add_f32_dpp v{v}, v{v}, v{v} row_ror:{r} row_mask:0xf bank_mask:0xf")
        for op in ("v_permlane16_swap_b32", "v_permlane32_swap_b32"):
            A(f"v_mov_b32 v{t}, v{v}\ns_nop 1\n{op} v{t}, v{v}\nv_add_f32 v{v}, v{v}, v{t}")
    def rbf(d, s):
        A(f"v_cvt_pk_bf16_f32 v{d}, 0, v{s}")
    def bbuild(src, t, b):
        A(f"v_mov_b32_dpp v7, v{src} row_newbcast:{t} row_mask:0xf bank_mask:0x3\ns_nop 1")
        A(f"v_mov_b32_dpp v7, v{src} row_newbcast:{8+t} row_mask:0xf bank_mask:0xc")
        for v in range(4):
            A(f"v_and_b32 v{b+v}, v7, v{M+v}")
    def mfma(d, a, b, c=None):
        A(f"v_mfma_f32_16x16x32_bf16 {vr(d)}, {vr(a)}, {vr(b)}, {vr(d) if c is None else c}")
    def exec_valid():
        A(f"s_mov_b32 exec_lo, {VALID[1]}\ns_mov_b32 exec_hi, {VALID[0]}")
    VT, VFF = 107, 103
    def tagchk(acc, regs, first=False):
        regs = list(regs)
        if first:
            A(f"v_bitop3_b32 v{acc}, v{regs[0]}, v{regs[1]}, v{VT} bitop3:0x7e"); regs = regs[2:]
        for r in regs: A(f"v_bitop3_b32 v{acc}, v{acc}, v{r}, v{VT} bitop3:0xf6")
    def tagtest(acc, dst="vcc"):
        A(f"v_and_b32 v{acc}, 0xff, v{acc}\nv_cmp_ne_u32 {dst}, 0, v{acc}")
    def tagput(r):
        A(f"v_perm_b32 v{r}, v{r}, v{VT}, s101")
    def tagprep():
        A(f"s_add_u32 s82, {sT}, 0x9e3779b9\nv_mov_b32 v{VT}, s82\ns_mov_b32 s101, 0x07060500")

    A('; entry')
    A(f"{NAME}_kernel:")
    if diag == 6: A("s_memrealtime s[90:91]")
    A("s_cmp_ge_u32 s2, 256\ns_cbranch_scc1 L_end")
    A("s_load_dwordx8 s[4:11], s[0:1], 0\ns_load_dwordx2 s[12:13], s[0:1], 32\ns_load_dwordx4 s[16:19], s[0:1], 48\ns_load_dwordx8 s[20:27], s[0:1], 64")
    if diag and diag != 6:
        for k in range(8): A(f"s_mov_b32 s{84+2*k}, 0")
    A("v_lshrrev_b32 v1, 6, v0\nv_and_b32 v0, 63, v0")
    A(f"v_readfirstlane_b32 {sW}, v1")
    A(f"s_lshr_b32 {sH}, s2, 4\ns_and_b32 {sI}, s2, 15")
    A(f"s_mul_i32 {sK}, {sH}, 3\ns_add_u32 {sK}, {sK}, {sI}\ns_and_b32 {sK}, {sK}, 15")
    A(f"s_movk_i32 {sS}, {P['R']}\ns_cmp_ge_u32 {sK}, 11\ns_cselect_b32 {sS}, {P['R'] - P['X']}, {sS}")
    A(f"v_mov_b32 v{VZ}, 0\ns_mov_b32 s3, {P['spin']}")
    A(f"s_sub_u32 {sC}, {sW}, 1")
    A(f"s_cmp_lg_u32 {sW}, 0\ns_cbranch_scc1 L_other")
    A('; loader')
    own, pb, SN = P["own"], P["pcs"], P["R"]
    rest = [b for b in range(10, 24) if b not in own and b not in pb]
    RM = sum(1 << b for b in rest)
    dep = lambda v, bs: sum(((v >> i) & 1) << b for i, b in enumerate(bs))
    piece = sorted(dep(k, pb) for k in range(4))
    XD = P["X"]
    assert SN % 4 == 0 and XD % 4 == 0 and NSL % 2 == 0 and L_SC + 64 * (SN + max(z for _, z in P["segs"])) <= RING0 and list(own) == sorted(own)
    dt = (3 + max(F, Fd)) // 4
    RINGE = RING0 + NSL * 4096
    def sdep(dst, src, bs, tmp):
        i = 0; first = True
        while i < len(bs):
            k = i
            while k + 1 < len(bs) and bs[k + 1] == bs[k] + 1: k += 1
            A(f"s_and_b32 {tmp}, {src}, {((1 << (k - i + 1)) - 1) << i}\ns_lshl_b32 {dst if first else tmp}, {tmp}, {bs[i] - i}")
            if not first: A(f"s_or_b32 {dst}, {dst}, {tmp}")
            first = False; i = k + 1
    assert rest == sorted(rest)
    OM = sum(1 << b for b in own[:P["rot"]])
    def count_in(r, mask):
        if mask == RM and rest[-1] - rest[0] == len(rest) - 1:
            A(f"s_add_u32 {r}, {r}, {1 << rest[0]}"); return
        A(f"s_or_b32 {r}, {r}, {~mask & 0xffffffff}\ns_add_u32 {r}, {r}, 1\ns_and_b32 {r}, {r}, {mask}")
    LV, LG, rC = 20, 28, "s[44:47]"
    A("s_setprio 3")
    A(f"v_lshrrev_b32 v1, 4, v0\nv_xor_b32 v4, v1, v0\nv_and_b32 v4, 15, v4\nv_lshl_add_u32 v4, v1, 4, v4\nv_lshlrev_b32 v{LG}, 4, v4")
    for j in range(1, 4): A(f"v_xor_b32 v{LG+j}, {64*j + piece[j] - 1024*j}, v{LG}")
    A(f"v_lshlrev_b32 v6, 3, v0\nv_mov_b32 v24, {-dt}\nv_bfrev_b32 v25, -2")
    A(f"ds_write_b64 v6, v[24:25] offset:{L_FULL}")
    A(f"v_lshlrev_b32 v1, 2, v0\nds_write_b32 v1, v{VZ} offset:{L_DONE}")
    A(f"ds_read_b128 v[8:11], v{VZ} offset:{L_DONE}")
    sdep("s72", sI, own, "s82")
    A(f"s_lshl_b32 s69, {sH}, 24\ns_or_b32 s72, s72, s69\ns_mov_b32 s76, 0\ns_mov_b32 s77, 0\ns_mov_b32 s70, 0")
    A(f"s_mov_b32 s79, 0\ns_mov_b32 s80, {RING0}\ns_mov_b32 s81, {2 - NSL}")
    A("s_waitcnt lgkmcnt(0)")
    srd(rC, 6, 0x10000000)
    stamp(0)
    if diag == 1: A("s_memtime s[66:67]\ns_waitcnt lgkmcnt(0)")
    def pair(f, lanes, srds, offs, bar=None):
        jp = min(j for j in range(4) if j - f >= 3 - 4 * dt)
        for j in range(8):
            if j == 4: A("s_add_u32 m0, s80, 0x1000")
            if bar is not None and j == P["early"] % 8: A(f"s_cmp_eq_u32 s81, {2 + 2 * (P['early'] // 8) - NSL}\ns_cbranch_scc1 L_ld_bar{bar}\nL_ld_barx{bar}:")
            A(f"s_waitcnt vmcnt({f-1})")
            A(f"buffer_load_dwordx4 v{lanes[j>>2]+(j&3)}, {srds[j>>2]}, {offs[j>>2]} offen offset:{(j&3)*1024} {pol} lds")
            if j & 3 == jp: A(f"v_add_u32 v24, 1, v24\nds_write_b64 v6, v[24:25] offset:{L_FULL}")
        A(f"s_add_u32 s80, s80, 0x2000\ns_cmp_eq_u32 s80, {RINGE}\ns_cselect_b32 s80, {RING0}, s80\ns_add_u32 s81, s81, 2")
    def static_loop(sfx, f, end=sS, bar=True):
        A(f"L_ld_loop{sfx}:")
        A("s_waitcnt lgkmcnt(0)\nv_min3_u32 v4, v8, v9, v10\nv_min_u32 v4, v4, v11")
        A("s_mov_b32 m0, s80\nv_readfirstlane_b32 s82, v4")
        A(f"ds_read_b128 v[8:11], v{VZ} offset:{L_DONE}")
        A(f"s_cmp_lt_i32 s82, s81\ns_cbranch_scc1 L_ld_full{sfx}")
        for r in ("s75", "s74"):
            A(f"s_or_b32 {r}, s76, s72")
            count_in("s76", RM)
            if OM:
                A(f"s_xor_b32 {r}, {r}, s77")
                count_in("s77", OM)
        pair(f, (LG, LG), (rC, rC), ("s75", "s74"), sfx if bar else None)
        A(f"s_add_u32 s79, s79, 2\ns_cmp_lt_u32 s79, {end}\ns_cbranch_scc1 L_ld_loop{sfx}")
    static_loop("", F)
    A(f"L_ld_nm:\nds_read_b32 v7, v{VZ} offset:{L_QFLAG+28}\ns_waitcnt lgkmcnt(0)\nv_readfirstlane_b32 s71, v7")
    A(f"v_mov_b32 v5, 0\ns_sub_u32 s71, s71, 1\ns_cbranch_scc1 L_ld_nmw\ns_add_u32 s79, s79, s71\ns_cmp_eq_u32 s71, 0\ns_cbranch_scc1 L_ld_midx")
    A(f"L_ld_mid:\nds_read_b64 v[26:27], v5 offset:{L_MID}")
    A("s_waitcnt lgkmcnt(0)\nv_min3_u32 v4, v8, v9, v10\nv_min_u32 v4, v4, v11\nv_readfirstlane_b32 s75, v26")
    A("v_readfirstlane_b32 s74, v27\nv_readfirstlane_b32 s82, v4\ns_mov_b32 m0, s80")
    A(f"ds_read_b128 v[8:11], v{VZ} offset:{L_DONE}")
    A("s_cmp_lt_i32 s82, s81\ns_cbranch_scc1 L_ld_fullm\nv_add_u32 v5, 8, v5")
    pair(F, (LG, LG), (rC, rC), ("s75", "s74"))
    A("s_sub_u32 s71, s71, 2\ns_cmp_lg_u32 s71, 0\ns_cbranch_scc1 L_ld_mid\nL_ld_midx:")
    A("s_cmp_lg_u32 s70, 0\ns_cbranch_scc1 L_ld_send")
    if diag == 1: A("s_memrealtime s[92:93]\ns_waitcnt lgkmcnt(0)")
    for j in range(4): A(f"v_mov_b32 v{KA+j}, v{LG+j}")
    A(f"v_lshlrev_b32 v{LG}, 4, v0")
    for j in range(1, 4): A(f"v_or_b32 v{LG+j}, {piece[j] - 1024*j}, v{LG}")
    srd(rK, 6, 0x10000000); srd(rC, 8, 0x10000000)
    A("s_mov_b32 s76, 0\ns_mov_b32 s77, 0\ns_mov_b32 s70, 1\ns_mov_b32 s79, 0\ns_branch L_ld_loop")
    A("L_ld_send:")
    def que_read(n):
        A(f"s_and_b32 s83, {n}, 31\ns_lshl_b32 s83, s83, 2\nv_mov_b32 v5, s83\nds_read_b32 v7, v5 offset:{L_QUE}")
    stamp(3)
    A("L_ld_dre:")
    que_read("s79")
    A("L_ld_dyn:")
    A("s_waitcnt lgkmcnt(0)\nv_min3_u32 v4, v8, v9, v10\nv_min_u32 v4, v4, v11\nv_readfirstlane_b32 s73, v7")
    A("s_mov_b32 m0, s80\nv_readfirstlane_b32 s82, v4")
    A(f"ds_read_b128 v[8:11], v{VZ} offset:{L_DONE}")
    A("s_add_u32 s74, s79, 1\ns_lshr_b32 s75, s73, 16\ns_cmp_lg_u32 s75, s74\ns_cbranch_scc1 L_ld_dfull")
    A("s_cmp_lt_i32 s82, s81\ns_cbranch_scc1 L_ld_dfull")
    A("s_and_b32 s73, s73, 0xffff\ns_cmp_ge_u32 s73, 0x4000\ns_cbranch_scc1 L_ld_drain")
    A("s_lshl_b32 s75, s73, 10\ns_or_b32 s75, s75, s69\ns_mov_b32 s79, s74")
    que_read("s79")
    pair(Fd, (KA, LG), (rK, rC), ("s75", "s75"))
    A("s_branch L_ld_dyn")
    A("L_ld_drain:")
    stamp(1)
    A("s_lshl_b32 s82, s79, 1\nv_mov_b32 v25, s82")
    for r in range(dt - 1, -1, -1):
        A(f"s_waitcnt vmcnt({4*r})\nv_add_u32 v24, 1, v24\nds_write_b64 v6, v[24:25] offset:{L_FULL}")
    stamp(2)
    if diag and diag != 6: A(f"s_mov_b32 s94, s79\ns_sub_u32 s96, {P['spin']}, s3")
    if diag == 1: A("s_memtime s[64:65]\ns_waitcnt lgkmcnt(0)\ns_sub_u32 s98, s64, s66")
    dump_stamps()
    A("s_endpgm")
    A("L_ld_full:")
    spin("L_ld_loop")
    A("L_ld_bar:\ns_waitcnt lgkmcnt(0)\ns_barrier")
    A(f"L_ld_hold:\nds_read_b32 v4, v{VZ} offset:{L_QFLAG+20}\ns_waitcnt lgkmcnt(0)\nv_cmp_eq_u32 vcc, 4, v4\ns_cbranch_vccnz L_ld_barx")
    spin("L_ld_hold")
    A("L_ld_nmw:")
    spin("L_ld_nm")
    A("L_ld_fullm:")
    spin("L_ld_mid")
    A("L_ld_dfull:")
    spin("L_ld_dre")

    A("L_other:")
    if P["cpf"]:
        A(f"s_cmp_lg_u32 {sW}, 4\ns_cbranch_scc1 L_nopf")
        code_prefetch(220)
        A("L_nopf:")
    A("s_waitcnt lgkmcnt(0)")
    srd(rX, 4, 1152); srd(rWS, 26, 0x400000 if diag else 0x100000)
    A(f"s_load_dword {sT}, s[26:27], {WS_EPOCH}")
    stamp(0)
    A(f"s_cmp_lg_u32 {sW}, 5\ns_cbranch_scc1 L_pre_done")
    A("v_and_b32 v1, 7, v0\nv_lshrrev_b32 v4, 3, v0\nv_lshl_add_u32 v5, v1, 3, v4\nv_lshlrev_b32 v5, 1, v5")
    for k in range(9): A(f"buffer_load_ushort v{X+k}, v5, {rX}, 0 offen offset:{128*k}")
    A(f"s_and_b32 s82, {sI}, 3\ns_mul_i32 s82, s82, 288")
    for k in range(3): A(f"buffer_load_ushort v{XR+k}, v5, {rX}, s82 offen offset:{128*k}")
    srd(rWQ, 10, 576 * 8192)
    A("v_lshlrev_b32 v5, 4, v1\nv_lshl_add_u32 v5, v4, 13, v5")
    A(f"s_lshl_b32 s82, s82, 12\ns_lshl_b32 s83, {sH}, 9\ns_add_u32 s82, s82, s83")
    A(f"s_lshr_b32 s83, {sI}, 2\ns_lshl_b32 s83, s83, 7\ns_add_u32 s82, s82, s83")
    for p in range(18):
        A(f"buffer_load_dwordx4 {vr(RG+4*p)}, v5, {rWQ}, s82 offen {wpol}")
        if p < 17: A("s_add_u32 s82, s82, 0x10000")
    A(f"s_cmp_lg_u32 {sI}, 0\ns_cbranch_scc1 L_pre_done\ns_mov_b64 exec, 1")
    A(f"s_lshl_b32 s82, {sH}, 8\ns_add_u32 s82, s82, {WS_CNT}\nv_mov_b32 v24, 0\nv_mov_b32 v25, 0\nbuffer_store_dwordx2 v[24:25], v{VZ}, {rWS}, s82 offen sc1")
    A("s_mov_b64 exec, -1")
    VWO = 104 + 2
    def wo_prep():
        srd(rWO, 12, 4096 * 1152)
        A(f"s_sub_u32 s82, {sI}, 1\ns_cmp_gt_u32 s82, 8\ns_cselect_b32 s54, 0, s54")
        A("v_lshrrev_b32 v2, 5, v0\nv_lshlrev_b32 v2, 7, v2\nv_bfe_u32 v3, v0, 3, 2\nv_lshl_add_u32 v2, v3, 1, v2")
        A(f"v_mul_u32_u24 v2, 0x480, v2\nv_and_b32 v3, 7, v0\nv_lshl_add_u32 v{VWO}, v3, 4, v2")
        A(f"s_lshl_b32 s82, s82, 7\ns_lshl_b32 s83, {sH}, 3\ns_add_u32 s83, s83, {sC}\ns_mul_i32 s83, s83, {32*1152}\ns_add_u32 s48, s82, s83")
        for t in range(1, 4): A(f"s_add_u32 s{48+t}, s48, {8*t*1152}")
    def wo_loads():
        for t in range(8):
            A(f"buffer_load_dwordx4 {vr(WO+4*t)}, v{VWO}, {rWO}, s{48+(t&3)} offen offset:{(t>>2)*1152} {wpol}")
    A("L_pre_done:")
    A(f"s_barrier\ns_cmp_lg_u32 {sW}, 5\ns_cbranch_scc1 L_c_pre\nL_consts:")
    A("v_and_b32 v1, 1, v0\nv_lshlrev_b32 v1, 4, v1\nv_mov_b32 v4, 0xffff\nv_lshlrev_b32 v4, v1, v4\nv_bfe_u32 v5, v0, 1, 2")
    for v in range(4):
        A(f"v_cmp_eq_u32 vcc, {v}, v5\ns_nop 1\nv_cndmask_b32 v{M+v}, 0, v4, vcc")
    A(f"v_bfe_u32 v4, v0, 4, 1\nv_and_b32 v5, 7, v0\nv_lshl_add_u32 v4, v4, 3, v5\nv_lshlrev_b32 v{VPL}, 4, v4")
    A(f"s_cmp_lg_u32 {sW}, 5\ns_cbranch_scc1 L_c_ffn")
    stamp(3, 2)
    A("s_waitcnt vmcnt(21)")
    stamp(5, 2)
    for k in range(9): A(f"v_lshlrev_b32 v{X+k}, 16, v{X+k}")
    A(f"v_add_f32 v1, v{X}, v{X+1}")
    for k in range(2, 9): A(f"v_add_f32 v1, v1, v{X+k}")
    wave_sum(1, 2)
    A("s_mov_b32 s82, 0x3ae38e39\ns_mov_b32 s83, 0x44100000")
    def div576(v):
        A(f"v_mul_f32 v2, s82, v{v}\nv_fma_f32 v3, -v2, s83, v{v}\nv_fma_f32 v{v}, v3, s82, v2")
    div576(1)
    A(f"v_sub_f32 v2, v{X}, v1\nv_mul_f32 v4, v2, v2")
    for k in range(1, 9): A(f"v_sub_f32 v2, v{X+k}, v1\nv_fmac_f32 v4, v2, v2")
    wave_sum(4, 2)
    div576(4)
    rbf(1, 1); rbf(4, 4)
    A("v_add_f32 v4, 0x3727c5ac, v4"); rbf(4, 4)
    A("v_sqrt_f32 v5, v4\ns_nop 0\nv_rcp_f32 v6, v5\nv_fma_f32 v3, -v5, v5, v4\nv_mul_f32 v6, 0.5, v6\nv_fma_f32 v5, v3, v6, v5")
    rbf(5, 5)
    A("v_rcp_f32 v6, v5")
    def norm(r):
        A(f"v_sub_f32 v2, v{r}, v1"); rbf(2, 2)
        A(f"v_mul_f32 v3, v2, v6\nv_fma_f32 v4, -v3, v5, v2\nv_fma_f32 v3, v4, v6, v3\nv_cvt_pk_bf16_f32 v{r}, v3, v3")
    A("s_waitcnt vmcnt(18)")
    for k in range(3):
        A(f"v_lshlrev_b32 v{XR+k}, 16, v{XR+k}"); norm(XR + k)
    A("v_lshlrev_b32 v4, 2, v0\nv_mov_b32 v5, 1")
    for k in range(3): A(f"ds_write_b32 v4, v{XR+k} offset:{L_GU + 256*k}")
    A(f"ds_write_b32 v{VZ}, v5 offset:{L_QFLAG+16}")
    A("s_nop 0")
    stamp(6, 2)
    for p in range(18):
        bbuild(XR + p // 8, p % 8, B + 4 * (p & 1))
        A(f"s_waitcnt vmcnt({17 - p})\ns_nop 0")
        mfma(DQ, RG + 4 * p, B + 4 * (p & 1), "0" if p == 0 else None)
    A("s_waitcnt lgkmcnt(0)")
    tagprep()
    A(f"s_lshl_b32 s82, {sH}, 12\ns_and_b32 s83, {sI}, 3\ns_lshl_b32 s83, s83, 10\ns_add_u32 s82, s82, s83")
    A(f"s_lshr_b32 s83, {sI}, 2\ns_lshl_b32 s83, s83, 8\ns_add_u32 s82, s82, s83")
    for i in range(4): A(f"v_mov_b32_dpp v{V+i}, v{DQ+i} row_ror:8 row_mask:0xf bank_mask:0xf")
    A("s_nop 0")
    for i in range(4): A(f"v_permlane32_swap_b32 v{V+i}, v{V+4+i}")
    for i in range(4): A(f"v_add_f32 v{K+i}, v{DQ+i}, v{V+4+i}")
    for i in range(4): A(f"v_bfi_b32 v{K+i}, 15, v{VT}, v{K+i}")
    stamp(7, 2)
    A("s_mov_b64 exec, 0x00ff00ff\ns_waitcnt vmcnt(0)")
    A(f"buffer_store_dwordx4 {vr(K)}, v{VPL}, {rWS}, s82 offen sc1")
    A("s_mov_b64 exec, -1")
    stamp(1)
    A("L_qgather:")
    A(f"v_lshlrev_b32 v4, 4, v0\ns_lshl_b32 s82, {sH}, 12")
    if P["qdelay"] is not None:
        A(f"L_qdel:\nds_read_b32 v1, v{VZ} offset:{L_FULL}\ns_waitcnt lgkmcnt(0)\nv_cmp_le_i32 vcc, {P['qdelay']}, v1\ns_cbranch_vccnz L_qdel_ok")
        A("s_sleep 2")
        spin("L_qdel")
        A("L_qdel_ok:")
    A("L_qpoll:")
    for p in range(4): A(f"buffer_load_dwordx4 {vr(RG+4*p)}, v4, {rWS}, s82 offen offset:{p*1024} sc1")
    for p in range(4):
        A(f"s_waitcnt vmcnt({3-p})")
        tagchk(1, range(RG + 4 * p, RG + 4 * p + 4), p == 0)
    A("v_and_b32 v1, 15, v1\nv_cmp_ne_u32 vcc, 0, v1")
    A("s_cbranch_vccz L_qready\ns_sleep 2")
    spin("L_qpoll")
    A("L_qready:")
    stamp(2)
    for i in range(4): A(f"v_add_f32 v{RG+i}, v{RG+i}, v{RG+4+i}\nv_add_f32 v{RG+8+i}, v{RG+8+i}, v{RG+12+i}")
    for i in range(4): A(f"v_add_f32 v{RG+i}, v{RG+i}, v{RG+8+i}")
    A("v_lshrrev_b32 v4, 3, v0\nv_and_b32 v5, 7, v0\nv_lshl_add_u32 v4, v4, 5, v5\nv_lshlrev_b32 v4, 1, v4")
    A(f"v_cvt_pk_bf16_f32 v{RG}, v{RG}, v{RG+1}\nv_cvt_pk_bf16_f32 v{RG+4}, v{RG+2}, v{RG+3}")
    A(f"ds_write_b16 v4, v{RG} offset:{L_Q}\nds_write_b16_d16_hi v4, v{RG} offset:{L_Q+16}")
    A(f"ds_write_b16 v4, v{RG+4} offset:{L_Q+32}\nds_write_b16_d16_hi v4, v{RG+4} offset:{L_Q+48}")
    A(f"v_mov_b32 v5, 1\ns_waitcnt lgkmcnt(0)\nds_write_b32 v{VZ}, v5 offset:{L_QFLAG}")
    if P["pre"]:
        A('; one plain read of the lines this workgroup publishes at the end')
        A("v_lshrrev_b32 v5, 4, v0\nv_and_b32 v6, 15, v0\nv_lshlrev_b32 v6, 4, v6\nv_lshl_add_u32 v5, v5, 12, v6")
        A(f"s_lshl_b32 s82, {sH}, 14\ns_lshl_b32 s83, {sI}, 8\ns_add_u32 s82, s82, s83\ns_add_u32 s82, s82, {WS_P}")
        A(f"s_lshl_b32 s80, {sH}, 12\ns_lshl_b32 s83, {sI}, 6\ns_add_u32 s80, s80, s83\ns_add_u32 s80, s80, {WS_ML}")
        A(f"s_lshl_b32 s81, {sI}, 12\ns_lshl_b32 s83, {sH}, 8\ns_add_u32 s81, s81, s83\ns_add_u32 s81, s81, {WS_Y - 4096}")
        A("v_lshlrev_b32 v4, 10, v0")
        A(f"buffer_load_dwordx4 v[24:27], v5, {rWS}, s82 offen\ns_mov_b64 exec, 15\nbuffer_load_dwordx4 v[28:31], v4, {rWS}, s80 offen")
        A(f"s_mov_b64 exec, 0xffff\nbuffer_load_dwordx4 v[32:35], v6, {rWS}, s81 offen")
        A("s_mov_b64 exec, -1\ns_waitcnt vmcnt(0)")
    A(f"s_mov_b32 s79, {sS}\ns_mul_i32 s72, {sH}, 3\ns_sub_u32 s72, 11, s72")
    A(f"s_lshl_b32 s78, {sH}, 8\ns_add_u32 s78, s78, {WS_CNT}\nv_mov_b32 v4, s78\nv_mov_b32 v5, 1\ns_mov_b64 exec, 1")
    def que_write(val, mid=False):
        if val == "s80":
            A('; pool position -> (row s73, column s71): the donated rows of five columns, then the last rows of all sixteen')
            A(f"s_mul_i32 s73, s80, 52429\ns_lshr_b32 s73, s73, 18\ns_mul_i32 s71, s73, 5\ns_sub_u32 s71, s80, s71\ns_add_u32 s71, s71, s72\ns_add_u32 s73, s73, {SN - XD}")
            A(f"s_add_u32 s74, s80, {16*SN - 5*XD}\ns_lshr_b32 s75, s74, 4\ns_cmp_lt_u32 s80, {5*XD}\ns_cselect_b32 s73, s73, s75\ns_cselect_b32 s71, s71, s74")
            if OM: A(f"s_and_b32 s74, s73, {(1 << P['rot']) - 1}\ns_xor_b32 s71, s71, s74")
            sdep("s74", "s73", [b - 10 for b in rest], "s75")
            sdep("s73", "s71", [b - 10 for b in own], "s75")
            A("s_or_b32 s74, s74, s73"); val = "s74"
        if mid:
            A(f"s_lshl_b32 s74, s74, 10\ns_lshl_b32 s75, {sH}, 24\ns_or_b32 s74, s74, s75\nv_mov_b32 v2, s74\nds_write_b32 v1, v2 offset:{L_MID}\nv_add_u32 v1, 4, v1")
            return
        A(f"s_and_b32 s82, s79, 31\ns_lshl_b32 s82, s82, 2\ns_add_u32 s79, s79, 1\ns_lshl_b32 s83, s79, 16\ns_or_b32 s83, s83, {val}")
        A(f"v_mov_b32 v1, s82\nv_mov_b32 v2, s83\nds_write_b32 v1, v2 offset:{L_QUE}")
    def demand(lbl, n, ahead):
        A(f"{lbl}:\nds_read_b32 v1, v{VZ} offset:{L_FULL}\ns_waitcnt lgkmcnt(0)\nv_readfirstlane_b32 s78, v1")
        A(f"s_add_u32 s78, s78, {dt + 2*ahead}\ns_ashr_i32 s78, s78, 1\ns_cmp_le_i32 {n}, s78\ns_cbranch_scc1 {lbl}_go\ns_sleep 2")
        spin(lbl)
        A(f"{lbl}_go:")
    npool = 5 * XD + 16 * (256 - SN)
    c0 = 0; t0 = 0; chain = []
    for cnt, sz in P["segs"]:
        chain.append((c0, t0, sz)); c0 += cnt; t0 += cnt * sz
        assert sz % 4 == 0 and sz <= 32
    nclaim = npool - t0
    assert c0 == 16 and t0 < npool and P["AH"] >= 3
    A(f"s_sub_u32 s81, {sS}, {dt + P['AHM']}")
    A(f"L_ca:\nds_read_b32 v1, v{VZ} offset:{L_FULL}\ns_waitcnt lgkmcnt(0)\nv_cmp_le_i32 vcc, s81, v1\ns_cbranch_vccnz L_ca_go\ns_sleep 2")
    spin("L_ca")
    A(f"L_ca_go:\nglobal_atomic_add v20, v4, v5, s[26:27] offset:4 {P['apol']}\ns_waitcnt vmcnt(0)\nv_readfirstlane_b32 s78, v20")
    for i, (c, t, sz) in enumerate(chain):
        if i == 0: A(f"s_movk_i32 s80, {t - c*sz}\ns_mov_b32 s81, {sz}")
        else: A(f"s_cmp_ge_u32 s78, {c}\ns_cselect_b32 s80, {t - c*sz}, s80\ns_cselect_b32 s81, {sz}, s81")
    A("s_mul_i32 s78, s78, s81\ns_add_u32 s80, s80, s78\ns_add_u32 s79, s79, s81\ns_add_u32 s77, s81, 1\nv_mov_b32 v1, 0")
    A("s_cmp_eq_u32 s81, 0\ns_cbranch_scc1 L_ca_done\nL_ca_put:")
    que_write("s80", True)
    A("s_add_u32 s80, s80, 1\ns_sub_u32 s81, s81, 1\ns_cmp_lg_u32 s81, 0\ns_cbranch_scc1 L_ca_put")
    A(f"L_ca_done:\nv_mov_b32 v2, s77\nds_write_b32 v{VZ}, v2 offset:{L_QFLAG+28}")
    A("s_mov_b32 s76, s79\ns_add_u32 s77, s76, 4")
    for k in range(4):
        demand(f"L_cl_{k}", "s76", P["AH"])
        A(f"global_atomic_add v{20+k}, v4, v5, s[26:27] {P['apol']}")
        A(f"s_add_u32 s76, s76, 1\ns_cmp_lt_u32 s76, s77\ns_cbranch_scc1 L_cl_{(k+1)%4}")
        A(f"s_waitcnt vmcnt(3)\nv_readfirstlane_b32 s80, v{20+(k+1)%4}")
        A(f"s_cmp_ge_u32 s80, {nclaim}\ns_cbranch_scc1 L_cl_end\ns_add_u32 s80, s80, {t0}")
        que_write("s80")
    A("s_branch L_cl_0")
    A("L_cl_end:")
    que_write("0xffff")
    A("s_mov_b64 exec, -1")
    A(f"s_cmp_lg_u32 {sI}, 10\ns_cbranch_scc1 L_e_done\ns_cmp_gt_u32 {sH}, 8\ns_cbranch_scc1 L_e_done")
    srd(rOUT, 22, 1152)
    A("v_lshrrev_b32 v4, 5, v0\nv_and_b32 v5, 3, v0\nv_lshl_add_u32 v4, v4, 2, v5\nv_bfe_u32 v5, v0, 2, 3\nv_lshl_add_u32 v4, v4, 3, v5")
    A(f"v_lshlrev_b32 v2, 1, v4\ns_lshl_b32 s79, {sH}, 7")
    A(f"buffer_load_ushort v3, v2, {rX}, s79 offen")
    A(f"v_lshlrev_b32 v4, 2, v0\ns_lshl_b32 s82, {sH}, 12")
    def issue(b):
        for p in range(16): A(f"buffer_load_dword v{b+p}, v4, {rWS}, s80 offen offset:{256*p} {P['hl']}")
    def check(b, dst, behind, ok):
        for p in range(0, 16, 2):
            A(f"s_waitcnt vmcnt({behind+14-p})")
            tagchk(1, (b + p, b + p + 1), p == 0)
            if p == 0: A(f"v_add_f32 v{dst}, v{b}, v{b+1}")
            else: A(f"v_add_f32 v{dst}, v{dst}, v{b+p}\nv_add_f32 v{dst}, v{dst}, v{b+p+1}")
        tagtest(1)
        A(f"s_cbranch_vccz {ok}")
    A(f"s_mul_i32 s81, {sH}, {72*256}\ns_add_u32 s81, s81, {WS_F}")
    A("L_f_ffn:\ns_mov_b32 s80, s81\nv_mov_b32 v22, 0")
    def f_load(p):
        A(f"buffer_load_dword v{RG+p}, v4, {rWS}, s80 offen offset:{256*(p&15)} sc1")
        if p & 15 == 15: A("s_add_u32 s80, s80, 0x1000")
    for p in range(48): f_load(p)
    for p in range(0, 72, 2):
        A(f"s_waitcnt vmcnt({min(46, 70 - p)})")
        if p + 48 < 72: f_load(p + 48); f_load(p + 49)
        tagchk(1, (RG + p, RG + p + 1), p == 0)
        A(f"v_add_f32 v22, v22, v{RG+p}\nv_add_f32 v22, v22, v{RG+p+1}")
    tagtest(1)
    A("s_cbranch_vccz L_f_ffn_ok\ns_sleep 16")
    spin("L_f_ffn")
    A("L_f_ffn_ok:")
    rbf(22, 22)
    A(f"v_mul_f32 v5, {hex(LOG2E ^ 0x80000000)}, v22\nv_exp_f32 v5, v5\ns_nop 0\nv_add_f32 v5, 1.0, v5\nv_rcp_f32 v5, v5\ns_nop 0\nv_mul_f32 v22, v22, v5")
    rbf(22, 22)
    A("v_lshlrev_b32 v3, 16, v3")
    A(f"L_f_wait:\nds_read_b64 v[24:25], v{VZ} offset:{L_FULL}\ns_waitcnt lgkmcnt(0)\nv_cmp_ge_i32 vcc, v24, v25\ns_cbranch_vccnz L_f_go\ns_sleep 4")
    spin("L_f_wait")
    A("L_f_go:")
    A(f"s_add_u32 s80, s82, {WS_Y}")
    issue(RG)
    if P["f3"]:
        issue(RG + 16)
        A("L_f_att:")
        for i in range(3): issue(RG + 16 * ((i + 2) % 3)); check(RG + 16 * i, 23, 32, "L_f_att_ok")
    else:
        A("L_f_att:")
        issue(RG + 16); check(RG, 23, 16, "L_f_att_ok"); issue(RG); check(RG + 16, 23, 16, "L_f_att_ok")
    spin("L_f_att")
    A("L_f_att_ok:")
    rbf(23, 23)
    A("v_mul_f32 v23, v23, v22"); rbf(23, 23)
    A(f"v_add_f32 v23, v23, v3\nv_cvt_pk_bf16_f32 v23, v23, v23\nbuffer_store_short v23, v2, {rOUT}, s79 offen {P['opol']}")
    A(f"s_cmp_lg_u32 {sH}, 0\ns_cbranch_scc1 L_e_done")
    A(f"s_mov_b64 exec, 1\nv_mov_b32 v4, {WS_EPOCH}\nglobal_store_dword v4, v{VT}, s[26:27] sc1\ns_mov_b64 exec, -1\ns_branch L_e_done")

    A('; consumers')
    A("L_cons_main:")
    VSC = 148
    A("v_and_b32 v1, 15, v0\nv_lshrrev_b32 v4, 4, v0\nv_xor_b32 v5, v1, v4\nv_lshlrev_b32 v5, 4, v5")
    A(f"v_lshl_add_u32 v{KA}, v1, 8, v5")
    for ks in range(1, 4): A(f"v_xor_b32 v{KA+ks}, {64*ks}, v{KA}")
    A(f"v_lshlrev_b32 v5, 4, v1\nv_lshl_add_u32 v{VA}, v4, 10, v5")
    A(f"v_mov_b32 v{Vm}, 0xff800000\nv_mov_b32 v{VmL}, 0xff800000\nv_mov_b32 v{Vl}, 0")
    for i in range(4): A(f"v_mov_b32 v{O+i}, 0")
    A(f"s_lshl_b32 s82, {sC}, 2\nv_mov_b32 v{VDA}, s82")
    if diag == 3:
        for i in range(3): A(f"v_mov_b32 v{225+i}, 0")
        A("s_mov_b32 s86, 0")
    A(f"v_lshrrev_b32 v2, 3, v0\nv_lshlrev_b32 v2, 3, v2\ns_lshl_b32 s82, {sC}, 6\nv_add_u32 v{VSC}, s82, v2")
    A("v_bfe_u32 v5, v0, 3, 1\nv_lshlrev_b32 v5, 8, v5\nv_lshl_add_u32 v5, v4, 4, v5")
    A(f"s_mov_b32 s72, {hex(SCALE)}\ns_mov_b32 s73, {hex(LOG2E)}\ns_mov_b32 s74, 0xffff0000")
    A(f"s_mov_b32 s76, {sC}\ns_lshl_b32 s77, {sC}, 12\ns_add_u32 s77, s77, {RING0}\ns_mov_b32 s78, 0")
    A(f"s_mov_b32 s60, {sS}\ns_mov_b32 s61, 0")
    A(f"s_add_u32 s34, {sC}, {P['dn']}\ns_cmp_lt_i32 {sU}, 0\ns_cselect_b32 s34, -1, s34")
    assert L_SC + 64 * (SN - XD - NSL - 8) >= L_Y + 2048
    wo_prep()
    MA, MRG = X, RG
    for i in range(1, 4):
        A(f"s_add_u32 s82, {sC}, {i}\ns_and_b32 s82, s82, 3\ns_lshl_b32 s83, s82, 9\ns_lshl_b32 s82, s82, 10")
        A(f"v_lshl_add_u32 v{MA+2*i-2}, v0, 3, s83\nv_lshl_add_u32 v{MA+2*i-1}, v0, 4, s82")
    A(f"v_lshrrev_b32 v2, 4, v0\nv_and_b32 v3, 15, v0\nv_lshlrev_b32 v3, 4, v3\nv_lshl_add_u32 v{MA+6}, v2, 12, v3")
    A(f"v_lshl_add_u32 v{MA+7}, v2, 10, v3" if P["mlfull"] else f"v_and_b32 v3, 8, v0\nv_lshl_add_u32 v{MA+7}, v2, 10, v3")
    A(f"s_lshl_b32 s56, {sH}, 14\ns_add_u32 s56, s56, {WS_P}\ns_lshl_b32 s83, {sI}, 8\ns_add_u32 s58, s56, s83")
    A(f"s_lshl_b32 s83, {sC}, 12\ns_add_u32 s56, s56, s83")
    A(f"s_lshl_b32 s57, {sH}, 12\ns_add_u32 s57, s57, {WS_ML}\ns_lshl_b32 s83, {sI}, 6\ns_add_u32 s59, s83, s57")
    A(f"s_lshl_b32 s83, {sC}, 10\ns_add_u32 s57, s57, s83\ns_mov_b32 s70, -1\ns_brev_b32 s75, -2")
    if P["wok"]: A("s_mov_b32 s62, 1")
    def merge_reads():
        A(f"ds_read_b32 v{MRG+18}, v{VZ} offset:{L_QFLAG+4}")
        for i in range(3): A(f"ds_read_b64 {vr(MRG+12+2*i, 2)}, v{MA+2*i} offset:{L_MML}")
        for i in range(3): A(f"ds_read_b128 {vr(MRG+4*i)}, v{MA+2*i+1} offset:{L_MO}")
    A(f"L_qwait:\nds_read_b32 v1, v{VZ} offset:{L_QFLAG}\ns_waitcnt lgkmcnt(0)\nv_readfirstlane_b32 s79, v1")
    A("s_cmp_lg_u32 s79, 0\ns_cbranch_scc1 L_qgo\ns_sleep 1")
    spin("L_qwait")
    A("L_qgo:")
    tagprep()
    for ks in range(4): A(f"ds_read_b128 {vr(Q+4*ks)}, v5 offset:{L_Q + 64*ks}")
    A("s_waitcnt lgkmcnt(0)")
    stamp(4)
    def landed(lbl, item):
        A(f"s_cmp_lt_i32 {item}, s78\ns_cbranch_scc1 {lbl}_go")
        A(f"{lbl}_poll:\nds_read_b32 v22, v{VZ} offset:{L_FULL}\ns_waitcnt lgkmcnt(0)\nv_readfirstlane_b32 s78, v22")
        A(f"s_cmp_lt_i32 {item}, s78\ns_cbranch_scc1 {lbl}_go")
        spin(f"{lbl}_poll")
        A(f"{lbl}_go:")
    ntr = [0]
    def trace():
        if diag == 3:
            ntr[0] += 1; n = ntr[0]
            A(f"s_memrealtime s[84:85]\ns_waitcnt lgkmcnt(0)\ns_and_b32 m0, s86, 63\ns_cmp_lt_u32 s86, 64\ns_cbranch_scc0 L_tr{n}a")
            A(f"v_writelane_b32 v225, s84, m0\ns_branch L_tr{n}c\nL_tr{n}a:\ns_cmp_lt_u32 s86, 128\ns_cbranch_scc0 L_tr{n}b\nv_writelane_b32 v226, s84, m0\ns_branch L_tr{n}c")
            A(f"L_tr{n}b:\nv_writelane_b32 v227, s84, m0\nL_tr{n}c:\ns_add_u32 s86, s86, 1")
    def slot_next(step):
        A(f"s_add_u32 s77, s77, {step}\ns_sub_u32 s79, s77, {NSL*4096}\ns_cmp_ge_u32 s77, {RINGE}\ns_cselect_b32 s77, s79, s77")
    def k_reads():
        for ks in range(4): A(f"v_add_u32 v{AD+ks}, s77, v{KA+ks}\nds_read_b128 {vr(K+4*ks)}, v{AD+ks}")
    def qk():
        for ks in range(4):
            A(f"s_waitcnt lgkmcnt({3-ks})")
            mfma(S, K + 4 * ks, Q + 4 * ks, "0" if ks == 0 else None)
    def v_reads(off):
        for r in range(4): A(f"ds_read_b128 {vr(V+4*r)}, v{AD+4} offset:{off + 256*r}")
    def softmax(lbl):
        A(f"v_max3_f32 v22, v{S}, v{S+1}, v{S+2}\nv_max_f32 v22, v22, v{S+3}")
        A(f"v_cmp_gt_f32 vcc, v22, v{Vm}\ns_cbranch_vccnz {lbl}_rescale\n{lbl}_cont:")
        for i in range(4): A(f"v_fma_f32 v{PP+i}, v{S+i}, s73, -v{VmL}")
        for i in range(4): A(f"v_exp_f32 v{PP+i}, v{PP+i}")
        A(f"s_waitcnt lgkmcnt(0)\nds_write_b32 v{VDA}, v{AD} offset:{L_DONE}")
    def pv():
        for i in range(4):
            A(f"v_cvt_pk_bf16_f32 v22, v{PP+i}, v{PP+i}")
            for v in range(4): A(f"v_and_b32 v{B+4*i+v}, v22, v{M+v}")
            A(f"v_add_f32 v{Vl}, v{Vl}, v{PP+i}")
            if i > 0: mfma(O, V + 4 * (i - 1), B + 4 * (i - 1))
        A("s_nop 0")
        mfma(O, V + 12, B + 12)
    def rescale(lbl):
        A(f"{lbl}_rescale:")
        for op in ("v_permlane16_swap_b32", "v_permlane32_swap_b32"):
            A(f"v_mov_b32 v23, v22\ns_nop 1\n{op} v23, v22\nv_max_f32 v22, v22, v23")
        A(f"v_max_f32 v{Vm}, v{Vm}, v22\nv_mul_f32 v22, s73, v{Vm}\nv_sub_f32 v23, v{VmL}, v22\nv_exp_f32 v23, v23\nv_mov_b32 v{VmL}, v22")
        A(f"v_mul_f32 v{Vl}, v{Vl}, v23")
        for i in range(4): A(f"v_mul_f32 v{O+i}, v{O+i}, v23")
        A(f"s_branch {lbl}_cont")
    A(f"v_mov_b32 v150, v23\ns_cmp_ge_i32 {sU}, 0\ns_cbranch_scc1 L_c_wd")
    A("L_k:")
    landed("L_k", "s76")
    trace()
    k_reads()
    slot_next(0x4000)
    A(f"s_add_u32 s76, s76, 1\nv_mov_b32 v22, s76\ns_add_u32 s76, s76, 3")
    qk()
    A(f"ds_write_b32 v{VDA}, v22 offset:{L_DONE}\ns_mov_b32 exec_lo, 0x01010101\ns_mov_b32 exec_hi, 0x01010101\ns_nop 4")
    for i in range(4): A(f"v_cvt_pk_bf16_f32 v{S+i}, 0, v{S+i}")
    for i in range(4): A(f"v_mul_f32 v{S+i}, s72, v{S+i}")
    A(f"v_cvt_pk_bf16_f32 v22, v{S}, v{S+1}\nv_cvt_pk_bf16_f32 v23, v{S+2}, v{S+3}")
    A(f"ds_write_b64 v{VSC}, v[22:23] offset:{L_SC}\ns_mov_b64 exec, -1\nv_add_u32 v{VSC}, 0x100, v{VSC}")
    A("s_cmp_eq_u32 s76, s34\ns_cbranch_scc1 L_c_down\nL_k_on:\ns_cmp_lt_u32 s76, s60\ns_cbranch_scc1 L_k")
    A("s_cmp_lg_u32 s61, 0\ns_cbranch_scc1 L_k_end")
    A(f"L_k_nm:\nds_read_b32 v22, v{VZ} offset:{L_QFLAG+28}\ns_waitcnt lgkmcnt(0)\nv_readfirstlane_b32 s82, v22\ns_sub_u32 s82, s82, 1\ns_cbranch_scc0 L_k_nm_ok")
    spin("L_k_nm")
    A("L_k_nm_ok:\ns_add_u32 s60, s60, s82\ns_lshl_b32 s61, s60, 1\ns_branch L_k_on\nL_k_end:")
    A(f"s_lshl_b32 s82, s60, 6\nv_subrev_u32 v{VSC}, s82, v{VSC}")
    A("L_v:")
    landed("L_v", "s76")
    trace()
    A(f"ds_read_b64 v[22:23], v{VSC} offset:{L_SC}\nv_add_u32 v{AD+4}, s77, v{VA}")
    v_reads(0)
    slot_next(0x4000)
    A(f"v_add_u32 v{VSC}, 0x100, v{VSC}\ns_add_u32 s76, s76, 1\nv_mov_b32 v{AD}, s76\ns_add_u32 s76, s76, 3")
    A(f"s_waitcnt lgkmcnt(4)\nv_lshlrev_b32 v{S}, 16, v22\nv_and_b32 v{S+1}, s74, v22\nv_lshlrev_b32 v{S+2}, 16, v23\nv_and_b32 v{S+3}, s74, v23")
    softmax("L_v"); pv()
    A("s_cmp_lt_u32 s76, s61\ns_cbranch_scc1 L_v")
    A(f"s_add_u32 s76, s76, {sC}\ns_lshl_b32 s82, {sC}, 12")
    slot_next("s82")
    A("L_c_top:\ns_cmp_lt_i32 s76, s78\ns_cbranch_scc1 L_c_go\ns_cmp_ge_i32 s76, s75\ns_cbranch_scc1 L_c_exit")
    A(f"L_c_poll:\nds_read_b64 v[22:23], v{VZ} offset:{L_FULL}\ns_waitcnt lgkmcnt(0)")
    A("v_readfirstlane_b32 s78, v22\nv_readfirstlane_b32 s75, v23\ns_add_u32 s70, s75, 6")
    A("s_cmp_lt_i32 s76, s78\ns_cbranch_scc1 L_c_go\ns_cmp_ge_i32 s76, s75\ns_cbranch_scc1 L_c_exit")
    spin("L_c_poll")
    A("L_c_vwait:")
    A(f"ds_read_b64 v[22:23], v{VZ} offset:{L_FULL}\ns_waitcnt lgkmcnt(0)\nv_readfirstlane_b32 s78, v22\nv_readfirstlane_b32 s75, v23")
    A("s_add_u32 s70, s75, 6\ns_cmp_lt_i32 s82, s78\ns_cbranch_scc1 L_c_v")
    spin("L_c_vwait")
    rescale("L_v"); rescale("L_c")
    A("L_c_go:")
    trace(); trace()
    k_reads()
    A(f"v_add_u32 v{AD+4}, s77, v{VA}")
    slot_next(0x8000)
    qk()
    if P["wok"]:
        A("s_add_u32 s82, s76, 8\ns_cmp_lg_u32 s82, s70\ns_cbranch_scc1 L_c_nowo\ns_mov_b32 s62, 0")
        wo_loads()
        A("L_c_nowo:")
    A("s_add_u32 s82, s76, 1\ns_cmp_lt_i32 s82, s78\ns_cbranch_scc0 L_c_vwait\nL_c_v:")
    v_reads(4096)
    A(f"s_add_u32 s76, s76, 2\nv_mov_b32 v{AD}, s76\ns_add_u32 s76, s76, 6")
    for i in range(4): A(f"v_cvt_pk_bf16_f32 v{S+i}, 0, v{S+i}")
    for i in range(4): A(f"v_mul_f32 v{S+i}, s72, v{S+i}")
    for i in range(4): A(f"v_cvt_pk_bf16_f32 v{S+i}, 0, v{S+i}")
    softmax("L_c")
    A("s_cmp_lg_u32 s76, s70\ns_cbranch_scc1 L_c_pvb\ns_mov_b32 s61, 0")
    merge_reads()
    A("L_c_pvb:")
    pv()
    A("s_branch L_c_top")
    A("L_c_exit:")
    if diag == 3:
        A(f"s_lshl_b32 s84, s2, 2\ns_add_u32 s84, s84, {sC}\ns_lshl_b32 s84, s84, 10\ns_add_u32 s84, s84, {WS_DIAG + 0x20000}\nv_lshlrev_b32 v1, 2, v0")
        for i in range(3): A(f"buffer_store_dword v{225+i}, v1, {rWS}, s84 offen offset:{256*i}")
        A(f"buffer_store_dword v{VZ}, v1, {rWS}, s84 offen offset:768")
    stamp(5)
    for op in ("v_permlane16_swap_b32", "v_permlane32_swap_b32"):
        A(f"v_mov_b32 v23, v{Vl}\ns_nop 1\n{op} v23, v{Vl}\nv_add_f32 v{Vl}, v{Vl}, v23")
    A("s_cmp_eq_u32 s61, 0\ns_cbranch_scc1 L_e_dir")
    A(f"s_lshr_b32 s82, s75, 1\ns_sub_u32 s82, s82, 1\ns_and_b32 s82, s82, 3\ns_cmp_eq_u32 s82, {sC}\ns_cbranch_scc1 L_e_re")
    A(f"s_lshl_b32 s82, {sC}, 10\nv_lshl_add_u32 v4, v0, 4, s82\nds_write_b128 v4, {vr(O)} offset:{L_MO}")
    A(f"s_lshl_b32 s82, {sC}, 9\nv_lshl_add_u32 v4, v0, 3, s82\nv_mov_b32 v22, v{VmL}\nv_mov_b32 v23, v{Vl}\nds_write_b64 v4, v[22:23] offset:{L_MML}")
    A(f"v_mov_b32 v1, 1\ns_mov_b64 exec, 1\nds_add_u32 v{VZ}, v1 offset:{L_QFLAG+4}\ns_mov_b64 exec, -1")
    wo_loads()
    A(f"L_e_wait:\nds_read_b32 v1, v{VZ} offset:{L_QFLAG+12}\ns_waitcnt lgkmcnt(0)\nv_cmp_ne_u32 vcc, 0, v1\ns_cbranch_vccnz L_e_l1p")
    spin("L_e_wait")
    A("L_e_re:")
    merge_reads()
    A(f"L_e_dir:\ns_waitcnt lgkmcnt(3)\nv_cmp_ne_u32 vcc, 3, v{MRG+18}\nv_max3_f32 v22, v{MRG+12}, v{MRG+14}, v{MRG+16}\ns_cbranch_vccz L_e_go")
    spin("L_e_re")
    A(f"L_e_go:\nv_max_f32 v22, v22, v{VmL}")
    A(f"v_sub_f32 v{VmL}, v{VmL}, v22")
    for c in range(3): A(f"v_sub_f32 v{MRG+12+2*c}, v{MRG+12+2*c}, v22")
    A(f"v_exp_f32 v{VmL}, v{VmL}")
    for c in range(3): A(f"v_exp_f32 v{MRG+12+2*c}, v{MRG+12+2*c}")
    for i in range(4): A(f"v_mul_f32 v{O+i}, v{VmL}, v{O+i}")
    A("s_waitcnt lgkmcnt(0)")
    for c in range(3):
        for i in range(4): A(f"v_fmac_f32 v{O+i}, v{MRG+12+2*c}, v{MRG+4*c+i}")
    for i in range(4): tagput(O + i)
    A(f"buffer_store_dwordx4 {vr(O)}, v{MA+6}, {rWS}, s58 offen {P['hs']}")
    A(f"v_mul_f32 v23, v{VmL}, v{Vl}")
    for c in range(3): A(f"v_fmac_f32 v23, v{MRG+12+2*c}, v{MRG+13+2*c}")
    if P["mlfull"]:
        A(f"v_perm_b32 v{K}, v22, v{VT}, s101\nv_perm_b32 v{K+1}, v23, v{VT}, s101\ns_nop 0")
        A(f"v_mov_b32_dpp v{K+2}, v{K} row_ror:8 row_mask:0xf bank_mask:0xf\nv_mov_b32_dpp v{K+3}, v{K+1} row_ror:8 row_mask:0xf bank_mask:0xf")
        A("s_mov_b32 exec_lo, 0x000f000f\ns_mov_b32 exec_hi, 0x000f000f")
        A(f"buffer_store_dwordx4 {vr(K)}, v{MA+7}, {rWS}, s59 offen {P['hs']}\ns_mov_b64 exec, -1")
    else:
        tagput(22); tagput(23)
        A("s_mov_b32 exec_lo, 0x01010101\ns_mov_b32 exec_hi, 0x01010101")
        A(f"buffer_store_dwordx2 v[22:23], v{MA+7}, {rWS}, s59 offen {P['hs']}\ns_mov_b64 exec, -1")
    A(f"v_mov_b32 v1, 1\nds_write_b32 v{VZ}, v1 offset:{L_QFLAG+12}")
    if P["wok"]: A("s_cmp_eq_u32 s62, 0\ns_cbranch_scc1 L_e_l1p")
    wo_loads()
    A("L_e_l1p:\ns_mov_b32 s76, s56\ns_mov_b32 s77, s57\nv_lshlrev_b32 v6, 2, v0")
    A("L_e_l1:\ns_waitcnt lgkmcnt(0)")
    stamp(6); stamp(6, 5)
    A(f"s_sub_u32 s78, {sI}, 1\ns_cmp_gt_u32 s78, 8\ns_cbranch_scc1 L_e_done")
    A("v_and_b32 v4, 15, v0\nv_lshlrev_b32 v4, 6, v4\nv_lshrrev_b32 v5, 5, v0\nv_lshl_add_u32 v4, v5, 3, v4")
    acc = (S, S + 1, S + 2, S + 3)
    def l1_issue(b, ml):
        A(f"buffer_load_dwordx2 {vr(ml, 2)}, v4, {rWS}, s77 offen {P['hl']}")
        for p in range(16): A(f"buffer_load_dword v{b+p}, v6, {rWS}, s76 offen offset:{256*p} {P['hl']}")
    def l1_check(b, ml, behind):
        A(f"s_waitcnt vmcnt({behind+16})\nv_mov_b32 v7, v{ml}")
        tagchk(1, (ml, ml + 1), True)
        A("v_and_b32 v2, 0xff, v1\nv_cmp_ne_u32 vcc, 0, v2\ns_cbranch_vccnz L_l1_again")
        for i, r in enumerate((8, 4, 2, 1)):
            A(f"v_mov_b32 v{acc[i]}, 0" + ("" if i == 0 else "\ns_nop 0"))
            A(f"v_max_f32_dpp v7, v7, v7 row_ror:{r} row_mask:0xf bank_mask:0xf")
        A(f"v_sub_f32 v22, v{ml}, v7\nv_exp_f32 v22, v22\ns_nop 0\nv_mul_f32 v23, v22, v{ml+1}")
        for p in range(0, 16, 2):
            A(f"s_waitcnt vmcnt({behind+14-p})")
            tagchk(1, (b + p, b + p + 1))
            if p < 8: A(f"v_add_f32_dpp v23, v23, v23 row_ror:{8 >> (p // 2)} row_mask:0xf bank_mask:0xf")
            if p == 8: A("v_rcp_f32 v23, v23")
            for x in (p, p + 1): A(f"v_fmac_f32_dpp v{acc[x&3]}, v22, v{b+x} row_newbcast:{x} row_mask:0xf bank_mask:0xf")
        tagtest(1)
        A(f"v_add_f32 v2, v{S}, v{S+1}\nv_add_f32 v3, v{S+2}, v{S+3}\ns_cbranch_vccz L_l1_ok")
    if P["l1d"]: A(f"s_sleep {P['l1d']}")
    A("L_l1_poll:")
    l1_issue(RG, RG + 32); l1_check(RG, RG + 32, 0)
    A("L_l1_again:")
    spin("L_l1_poll")
    A("L_l1_ok:")
    stamp(3, 5)
    A("v_add_f32 v1, v2, v3\nv_mul_f32 v1, v1, v23\nv_cvt_pk_bf16_f32 v1, v1, v1\ns_nop 1")
    for t in range(8): A(f"v_mov_b32_dpp v{V+t}, v1 row_newbcast:{t} row_mask:0xf bank_mask:0x3")
    for t in range(8): A(f"v_mov_b32_dpp v{V+t}, v1 row_newbcast:{8+t} row_mask:0xf bank_mask:0xc")
    for t in range(8):
        for v in range(4): A(f"v_and_b32 v{B+4*(t&3)+v}, v{V+t}, v{M+v}")
        if t > 0: mfma(S, WO + 4 * (t - 1), B + 4 * ((t - 1) & 3), "0" if t == 1 else None)
    A("s_nop 0")
    mfma(S, WO + 28, B + 12)
    stamp(5, 5)
    A(f"s_lshl_b32 s82, {sC}, 9\nv_lshrrev_b32 v4, 5, v0\nv_lshl_add_u32 v4, v4, 8, v{VPL}\nv_add_u32 v4, s82, v4\nv_mov_b32 v1, 1")
    exec_valid()
    A(f"s_lshl_b32 s82, s78, 12\ns_lshl_b32 s83, {sH}, 8\ns_add_u32 s82, s82, s83\ns_add_u32 s82, s82, {WS_Y}")
    A(f"ds_write_b128 v4, {vr(S)} offset:{L_Y}\ns_mov_b64 exec, 1")
    A(f"ds_add_rtn_u32 v1, v{VZ}, v1 offset:{L_QFLAG+8}\ns_mov_b64 exec, -1")
    for i in range(8): A(f"ds_read_b32 v{K+i}, v6 offset:{L_Y + 256*i}")
    A("s_waitcnt lgkmcnt(8)\nv_readfirstlane_b32 s78, v1\ns_cmp_lg_u32 s78, 3\ns_cbranch_scc1 L_e_done")
    A(f"s_waitcnt lgkmcnt(4)\nv_add_f32 v{K}, v{K}, v{K+1}\nv_add_f32 v{K+2}, v{K+2}, v{K+3}")
    A(f"s_waitcnt lgkmcnt(0)\nv_add_f32 v{K+4}, v{K+4}, v{K+5}\nv_add_f32 v{K+6}, v{K+6}, v{K+7}")
    A(f"v_add_f32 v{K}, v{K}, v{K+2}\nv_add_f32 v{K+4}, v{K+4}, v{K+6}\nv_add_f32 v22, v{K}, v{K+4}")
    tagput(22)
    A(f"buffer_store_dword v22, v6, {rWS}, s82 offen {P['hs']}")
    A("L_e_done:")
    stamp(7); stamp(7, 5)
    dump_stamps()
    A("L_end:\ns_endpgm")

    GU = [28 + 4 * i for i in range(14)] + [108 + 4 * i for i in range(4)]; DG, GR = 92, 44
    ACC = [108 + 4 * i for i in range(8)] + [92]
    FS = RING0 - 4 * 2304
    assert L_SC + 64 * (P["dn"] + NSL + 12) <= FS and P["dn"] % 4 == 0
    def wd_loads():
        for n in range(18):
            t, ct = divmod(n, 9)
            if n >= P["FD"]: A(f"s_waitcnt vmcnt({P['FD'] - 1})")
            A(f"buffer_load_dwordx4 {vr(RG+4*n)}, v150, {rWD}, {'s33' if t else 's32'} offen offset:{ct*128} {wpol}")
    def join(off, lbl, n):
        A(f"{lbl}:\nds_read_b32 v1, v{VZ} offset:{off}\ns_waitcnt lgkmcnt(0)\nv_cmp_eq_u32 vcc, {n}, v1\ns_cbranch_vccnz {lbl}_ok")
        spin(lbl)
        A(f"{lbl}_ok:")
    A("L_c_pre:")
    A(f"s_lshl_b32 {sU}, {sH}, 2\ns_add_u32 {sU}, {sU}, {sK}\ns_sub_u32 {sU}, {sU}, 11\ns_lshr_b32 s82, {sH}, 1\ns_add_u32 s82, s82, 64")
    A(f"s_bitcmp1_b32 {sH}, 0\ns_cselect_b32 s83, -1, s82\ns_cselect_b32 s82, s82, -1")
    A(f"s_cmp_eq_u32 {sK}, 15\ns_cselect_b32 {sU}, s83, {sU}\ns_cmp_lt_u32 {sK}, 11\ns_cselect_b32 {sU}, -1, {sU}")
    A(f"s_lshr_b32 s83, {sI}, 2\ns_cmp_eq_u32 s83, 0\ns_cselect_b32 s82, s82, -1")
    A(f"s_lshl_b32 {sG}, {sH}, 2\ns_add_u32 {sG}, {sG}, s83\ns_cmp_ge_u32 {sC}, 2\ns_cselect_b32 {sG}, s82, {sG}")
    A(f"s_bitcmp1_b32 {sC}, 0\ns_cselect_b64 s[56:57], s[18:19], s[16:17]\ns_mov_b32 s58, {576*9216}\ns_mov_b32 s59, 0x20000")
    srd(rWD, 20, 4608 * 1152)
    A("v_lshrrev_b32 v4, 3, v0\nv_and_b32 v5, 7, v0\nv_lshlrev_b32 v5, 4, v5")
    A("v_mul_u32_u24 v22, 0x2400, v4\nv_add_u32 v22, v22, v5\nv_mul_u32_u24 v23, 0x480, v4\nv_add_u32 v23, v23, v5")
    A(f"s_lshl_b32 s32, {sU}, 2\ns_add_u32 s32, s32, {sC}\ns_mul_i32 s32, s32, {16*1152}\ns_add_u32 s33, s32, {8*1152}")
    A(f"s_cmp_lt_i32 {sG}, 0\ns_cbranch_scc1 L_c_pre_x")
    A(f"s_and_b32 s82, {sI}, 3\ns_mul_i32 s82, s82, {144*9216}\ns_lshl_b32 s83, {sG}, 7\ns_add_u32 s82, s82, s83")
    for p in range(18):
        if p >= P["FG"]: A(f"s_waitcnt vmcnt({P['FG'] - 1})")
        A(f"buffer_load_dwordx4 {vr(GU[p])}, v22, {rWG}, s82 offen {wpol}")
        if p < 17: A(f"s_add_u32 s82, s82, {8*9216}")
    A(f"L_c_pre_x:\ns_mov_b64 exec, 1\nv_mov_b32 v1, 1\nds_add_u32 v{VZ}, v1 offset:{L_QFLAG+20}\ns_mov_b64 exec, -1\ns_branch L_consts")
    A(f"L_c_ffn:\ns_waitcnt lgkmcnt(0)")
    tagprep()
    A(f"s_cmp_lt_i32 {sG}, 0\ns_cbranch_scc1 L_cons_main")
    join(L_QFLAG + 16, "L_gu_x", 1)
    A("v_lshlrev_b32 v4, 2, v0")
    for k in range(3): A(f"ds_read_b32 v{XR+k}, v4 offset:{L_GU + 256*k}")
    A("s_waitcnt lgkmcnt(0)")
    for p in range(18):
        bbuild(XR + p // 8, p % 8, B + 4 * (p & 1))
        A(f"s_waitcnt vmcnt({17 - p})\ns_nop 0")
        mfma(DG, GU[p], B + 4 * (p & 1), "0" if p == 0 else None)
    A(f"s_lshl_b32 s82, {sG}, 11\ns_and_b32 s83, {sI}, 3\ns_lshl_b32 s83, s83, 9\ns_add_u32 s82, s82, s83")
    A(f"s_and_b32 s83, {sC}, 1\ns_lshl_b32 s83, s83, 8\ns_add_u32 s82, s82, s83\ns_add_u32 s82, s82, {WS_G}")
    for i in range(4): A(f"v_mov_b32_dpp v{GR+i}, v{DG+i} row_ror:8 row_mask:0xf bank_mask:0xf")
    A("s_nop 0")
    for i in range(4): A(f"v_permlane32_swap_b32 v{GR+i}, v{GR+4+i}")
    for i in range(4): A(f"v_add_f32 v{DG+i}, v{DG+i}, v{GR+4+i}")
    for i in range(4): A(f"v_bfi_b32 v{DG+i}, 15, v{VT}, v{DG+i}")
    A(f"s_mov_b64 exec, 0x00ff00ff\nbuffer_store_dwordx4 {vr(DG)}, v{VPL}, {rWS}, s82 offen sc1\ns_mov_b64 exec, -1")
    A("s_branch L_cons_main")
    A("L_c_wd:")
    wd_loads()
    A("s_branch L_k")
    A("L_c_down:")
    A(f"v_and_b32 v4, 1, v0\ns_lshl_b32 s82, {sC}, 1\nv_add_u32 v4, s82, v4\nv_lshrrev_b32 v5, 2, v4\nv_and_b32 v4, 3, v4\nv_lshl_add_u32 v4, v5, 5, v4")
    A(f"v_lshrrev_b32 v5, 3, v0\nv_lshl_add_u32 v4, v5, 2, v4\nv_lshlrev_b32 v4, 2, v4\ns_lshl_b32 s82, {sU}, 11\ns_add_u32 s82, s82, {WS_G}")
    A("L_dn_poll:")
    for i in range(8): A(f"buffer_load_dword v{GR+i}, v4, {rWS}, s82 offen offset:{256*i} sc1")
    A("s_waitcnt vmcnt(0)")
    tagchk(1, range(GR, GR + 8), True)
    A("v_and_b32 v1, 15, v1\nv_cmp_ne_u32 vcc, 0, v1\ns_cbranch_vccz L_dn_ok\ns_sleep 2")
    spin("L_dn_poll")
    A("L_dn_ok:")
    for m in range(2):
        A(f"v_add_f32 v{GR+m}, v{GR+m}, v{GR+2+m}\nv_add_f32 v{GR+4+m}, v{GR+4+m}, v{GR+6+m}\nv_add_f32 v{GR+m}, v{GR+m}, v{GR+4+m}")
    rbf(GR, GR); rbf(GR + 1, GR + 1)
    A(f"v_mul_f32 v{GR}, {hex(LOG2E ^ 0x80000000)}, v{GR}\nv_exp_f32 v{GR}, v{GR}\ns_nop 0\nv_add_f32 v{GR}, 1.0, v{GR}\nv_rcp_f32 v{GR}, v{GR}\ns_nop 0")
    rbf(GR, GR)
    A(f"v_mul_f32 v{GR}, v{GR}, v{GR+1}\nv_cvt_pk_bf16_f32 v{XR}, v{GR}, v{GR}\ns_nop 1")
    for n in range(18):
        t, ct = divmod(n, 9)
        if ct == 0:
            bbuild(XR, t, B + 4 * t)
            A("s_nop 1")
        mfma(ACC[ct], RG + 4 * n, B + 4 * t, "0" if t == 0 else None)
    A(f"s_mul_i32 s82, {sC}, 2304\ns_add_u32 s82, s82, {FS}\nv_add_u32 v4, s82, v{VPL}")
    for ct in range(9):
        for i in range(4): A(f"v_mov_b32_dpp v{GR+i}, v{ACC[ct]+i} row_ror:8 row_mask:0xf bank_mask:0xf")
        A("s_nop 0")
        for i in range(4): A(f"v_permlane32_swap_b32 v{GR+i}, v{GR+4+i}")
        for i in range(4): A(f"v_add_f32 v{ACC[ct]+i}, v{ACC[ct]+i}, v{GR+4+i}")
    A("s_mov_b64 exec, 0x00ff00ff")
    for ct in range(9): A(f"ds_write_b128 v4, {vr(ACC[ct])} offset:{ct*256}")
    A(f"s_mov_b64 exec, 1\nv_mov_b32 v1, 1\nds_add_u32 v{VZ}, v1 offset:{L_QFLAG+24}\ns_mov_b64 exec, -1")
    A(f"s_cmp_eq_u32 {sC}, 3\ns_cbranch_scc1 L_k_on")
    join(L_QFLAG + 24, "L_dn_j", 4)
    A(f"s_lshl_b32 s64, {sC}, 6\nv_add_u32 v4, s64, v0\nv_cmp_gt_u32 vcc, 0x90, v4\ns_and_saveexec_b64 s[82:83], vcc")
    A(f"v_lshlrev_b32 v5, 4, v4\nv_add_u32 v5, {FS}, v5")
    for i in range(4): A(f"ds_read_b128 {vr(GR+4*i)}, v5 offset:{i*2304}")
    A(f"v_lshrrev_b32 v5, 4, v4\nv_mul_u32_u24 v5, {72*256}, v5\nv_and_b32 v4, 15, v4\nv_lshl_add_u32 v4, v4, 4, v5")
    A(f"s_lshl_b32 s64, {sU}, 8\ns_add_u32 s64, s64, {WS_F}\ns_waitcnt lgkmcnt(0)")
    for k in range(1, 4):
        for i in range(4): A(f"v_add_f32 v{GR+i}, v{GR+i}, v{GR+4*k+i}")
    for i in range(4): tagput(GR + i)
    A(f"buffer_store_dwordx4 {vr(GR)}, v4, {rWS}, s64 offen sc1\ns_mov_b64 exec, -1")
    stamp(3)
    A("s_branch L_k_on")

    A("L_code_end:")
    errs = hazard.check(L)
    if errs:
        print("\n".join(errs)); raise SystemExit("hazards found")
    lds = RINGE
    body = "\n".join(x if x.endswith(":") and not x.startswith(";") else "    " + x for x in L)
    head = HEADER.replace("@LAUNCH@", f"; @launch grid=(256,1,1) block=({64*NW},1,1) lds={lds}\n" + DESC.rstrip("\n"))
    tail = f"""
.section .rodata,"a"
.p2align 6
.amdhsa_kernel {NAME}_kernel
  .amdhsa_next_free_vgpr 228
  .amdhsa_next_free_sgpr 102
  .amdhsa_accum_offset 228
  .amdhsa_group_segment_fixed_size 0
  .amdhsa_kernarg_size 96
  .amdhsa_user_sgpr_count 2
  .amdhsa_user_sgpr_kernarg_segment_ptr 1
  .amdhsa_system_sgpr_workgroup_id_x 1
  .amdhsa_float_denorm_mode_32 3
.end_amdhsa_kernel
"""
    return head + body + tail, lds

if __name__ == "__main__":
    out = sys.argv[1]
    kw = eval("dict(" + (sys.argv[2] if len(sys.argv) > 2 else "") + ")")
    txt, lds = build(**kw)
    open(out, "w").write(txt)
    import subprocess
    r = subprocess.run([sys.executable, "cdna_unwritten_srd_check.py", out], capture_output=True, text=True)
    print(r.stdout.strip()[:1500])
```

```python
import sys, os
sys.path.insert(0, os.path.dirname(os.path.abspath(__file__)))
import hazard

NAME = "recurrent_scan__gqa_block_cached__glu_gated_glu__decode"
HEADER = open(os.path.join(os.path.dirname(os.path.abspath(__file__)), "header.txt")).read()

WS_QP, WS_P, WS_ML, WS_Y, WS_CNT, WS_EPOCH, WS_F, WS_G, WS_DIAG = 0x0, 0x20000, 0x60000, 0x70000, 0x7a000, 0x7c000, 0x80000, 0xb0000, 0x100000
L_FULL, L_DONE, L_QFLAG, L_QUE, L_Q, L_GU, L_SC, L_MO, L_MML, L_Y, RING0 = 0, 512, 528, 640, 1024, 1536, 2560, 2560, 6656, 8704, 19456
L_MID = 768
LOG2E = 0x3FB8AA3B
SCALE = 0x3DB504F3
VALID = "0xff00ff00", "0x00ff00ff"
NW = 6

DESC = """;
"""

DEF = dict(F=21, Fd=21, NSL=34, FW=12, pol="nt", wpol="nt", diag=False, spin=0x800000, AH=5, AHA=8, qdelay=4,
           segs=((5, 12), (4, 8), (4, 4), (3, 0)), own=(10, 11, 12, 15), pcs=(20, 21), R=240, X=8, AHM=12, early=8, dn=24, FG=8, FD=18, Ft=None, Nt=24, Nv=0, rot=4, pre=False, cpf=True, opol='sc1', split=0, mlfull=1, l1d=0, wok=0, f3=0)

def build(**kw):
    P = dict(DEF); P.update(kw)
    F, Fd, NSL, FW, pol, wpol, diag = P["F"], P["Fd"], P["NSL"], P["FW"], P["pol"], P["wpol"], P["diag"]
    P.update(hl="sc1", hs="sc1", apol="sc0")
    L = []
    def A(s):
        for x in s.strip("\n").split("\n"):
            L.append(x.strip())
    sW, sH, sI, sC, sT, sK, sS, sU, sG = "s28", "s29", "s30", "s31", "s100", "s14", "s15", "s63", "s62"
    rK, rV, rWS, rX, rWQ, rWO, rWG, rWU, rWD, rOUT = ("s[32:35]", "s[36:39]", "s[40:43]", "s[44:47]", "s[48:51]",
                                                    "s[52:55]", "s[56:59]", "s[56:59]", "s[64:67]", "s[68:71]")
    def srd(r, ptr, n):
        b = int(r[2:r.index(":")])
        A(f"s_mov_b64 s[{b}:{b+1}], s[{ptr}:{ptr+1}]\ns_mov_b32 s{b+2}, {n}\ns_mov_b32 s{b+3}, 0x20000")
    def vr(b, n=4): return f"v[{b}:{b+n-1}]"
    M, KA, VA, VZ, Vm, VmL, Vl, VDA = 8, 12, 16, 17, 18, 19, 20, 21
    O, Q, K, V, S, PP, B, AD, WO, X, XR, RG, DQ = 24, 28, 44, 60, 76, 80, 84, 100, 108, 140, 149, 152, 224
    VPL = 105
    def stamp(k, set_=1):
        if diag and (diag == set_ or (k in (0, 1, 2, 4) and set_ == 1)) and not (diag == 3 and k == 4):
            A(f"s_memrealtime s[{84+2*k}:{85+2*k}]\ns_waitcnt lgkmcnt(0)")
    def dump_stamps():
        if diag:
            A(f"s_mul_i32 s76, s2, {NW}\ns_add_u32 s76, s76, {sW}\ns_lshl_b32 s76, s76, 5\ns_add_u32 s76, s76, {WS_DIAG}")
            A("s_mov_b64 exec, 1\nv_mov_b32 v1, s76")
            for k in range(8):
                A(f"v_mov_b32 v2, s{84+2*k}\nglobal_store_dword v1, v2, s[26:27] offset:{4*k}")
            A("s_mov_b64 exec, -1")
    npf = [0]
    def code_prefetch(r):
        npf[0] += 1
        A(f"s_getpc_b64 s[64:65]\nL_pc{npf[0]}:\ns_sub_u32 s64, s64, L_pc{npf[0]}-{NAME}_kernel\ns_subb_u32 s65, s65, 0")
        A(f"v_lshlrev_b32 v{r}, 7, v0\nv_add_u32 v{r+1}, 0x2000, v{r}\nv_min_u32 v{r+1}, L_code_end-{NAME}_kernel-4, v{r+1}")
        A(f"global_load_dword v{r+2}, v{r}, s[64:65]\nglobal_load_dword v{r+3}, v{r+1}, s[64:65]")
    def spin(lbl):
        A(f"s_sub_u32 s3, s3, 1\ns_cbranch_scc0 {lbl}\ns_endpgm")
    def wave_sum(v, t):
        for r in (8, 4, 2, 1):
            A(f"s_nop 1\nv_add_f32_dpp v{v}, v{v}, v{v} row_ror:{r} row_mask:0xf bank_mask:0xf")
        for op in ("v_permlane16_swap_b32", "v_permlane32_swap_b32"):
            A(f"v_mov_b32 v{t}, v{v}\ns_nop 1\n{op} v{t}, v{v}\nv_add_f32 v{v}, v{v}, v{t}")
    def rbf(d, s):
        A(f"v_cvt_pk_bf16_f32 v{d}, 0, v{s}")
    def bbuild(src, t, b):
        A(f"v_mov_b32_dpp v7, v{src} row_newbcast:{t} row_mask:0xf bank_mask:0x3\ns_nop 1")
        A(f"v_mov_b32_dpp v7, v{src} row_newbcast:{8+t} row_mask:0xf bank_mask:0xc")
        for v in range(4):
            A(f"v_and_b32 v{b+v}, v7, v{M+v}")
    def mfma(d, a, b, c=None):
        A(f"v_mfma_f32_16x16x32_bf16 {vr(d)}, {vr(a)}, {vr(b)}, {vr(d) if c is None else c}")
    def exec_valid():
        A(f"s_mov_b32 exec_lo, {VALID[1]}\ns_mov_b32 exec_hi, {VALID[0]}")
    VT, VFF = 107, 103
    def tagchk(acc, regs, first=False):
        regs = list(regs)
        if first:
            A(f"v_bitop3_b32 v{acc}, v{regs[0]}, v{regs[1]}, v{VT} bitop3:0x7e"); regs = regs[2:]
        for r in regs: A(f"v_bitop3_b32 v{acc}, v{acc}, v{r}, v{VT} bitop3:0xf6")
    def tagtest(acc, dst="vcc"):
        A(f"v_and_b32 v{acc}, 0xff, v{acc}\nv_cmp_ne_u32 {dst}, 0, v{acc}")
    def tagput(r):
        A(f"v_perm_b32 v{r}, v{r}, v{VT}, s101")
    def tagprep():
        A(f"s_add_u32 s82, {sT}, 0x9e3779b9\nv_mov_b32 v{VT}, s82\ns_mov_b32 s101, 0x07060500")

    A('; entry')
    A(f"{NAME}_kernel:")
    if diag == 6: A("s_memrealtime s[90:91]")
    A("s_cmp_ge_u32 s2, 256\ns_cbranch_scc1 L_end")
    A("s_load_dwordx8 s[4:11], s[0:1], 0\ns_load_dwordx2 s[12:13], s[0:1], 32\ns_load_dwordx4 s[16:19], s[0:1], 48\ns_load_dwordx8 s[20:27], s[0:1], 64")
    if diag and diag != 6:
        for k in range(8): A(f"s_mov_b32 s{84+2*k}, 0")
    A("v_lshrrev_b32 v1, 6, v0\nv_and_b32 v0, 63, v0")
    A(f"v_readfirstlane_b32 {sW}, v1")
    A(f"s_lshr_b32 {sH}, s2, 4\ns_and_b32 {sI}, s2, 15")
    A(f"s_mul_i32 {sK}, {sH}, 3\ns_add_u32 {sK}, {sK}, {sI}\ns_and_b32 {sK}, {sK}, 15")
    A(f"s_movk_i32 {sS}, {P['R']}\ns_cmp_ge_u32 {sK}, 11\ns_cselect_b32 {sS}, {P['R'] - P['X']}, {sS}")
    A(f"v_mov_b32 v{VZ}, 0\ns_mov_b32 s3, {P['spin']}")
    A(f"s_sub_u32 {sC}, {sW}, 1")
    A(f"s_cmp_lg_u32 {sW}, 0\ns_cbranch_scc1 L_other")
    A('; loader')
    own, pb, SN = P["own"], P["pcs"], P["R"]
    rest = [b for b in range(10, 24) if b not in own and b not in pb]
    RM = sum(1 << b for b in rest)
    dep = lambda v, bs: sum(((v >> i) & 1) << b for i, b in enumerate(bs))
    piece = sorted(dep(k, pb) for k in range(4))
    XD = P["X"]
    assert SN % 4 == 0 and XD % 4 == 0 and NSL % 2 == 0 and L_SC + 64 * (SN + max(z for _, z in P["segs"])) <= RING0 and list(own) == sorted(own)
    dt = (3 + max(F, Fd)) // 4
    RINGE = RING0 + NSL * 4096
    def sdep(dst, src, bs, tmp):
        i = 0; first = True
        while i < len(bs):
            k = i
            while k + 1 < len(bs) and bs[k + 1] == bs[k] + 1: k += 1
            A(f"s_and_b32 {tmp}, {src}, {((1 << (k - i + 1)) - 1) << i}\ns_lshl_b32 {dst if first else tmp}, {tmp}, {bs[i] - i}")
            if not first: A(f"s_or_b32 {dst}, {dst}, {tmp}")
            first = False; i = k + 1
    assert rest == sorted(rest)
    OM = sum(1 << b for b in own[:P["rot"]])
    def count_in(r, mask):
        if mask == RM and rest[-1] - rest[0] == len(rest) - 1:
            A(f"s_add_u32 {r}, {r}, {1 << rest[0]}"); return
        A(f"s_or_b32 {r}, {r}, {~mask & 0xffffffff}\ns_add_u32 {r}, {r}, 1\ns_and_b32 {r}, {r}, {mask}")
    LV, LG, rC = 20, 28, "s[44:47]"
    A("s_setprio 3")
    A(f"v_lshrrev_b32 v1, 4, v0\nv_xor_b32 v4, v1, v0\nv_and_b32 v4, 15, v4\nv_lshl_add_u32 v4, v1, 4, v4\nv_lshlrev_b32 v{LG}, 4, v4")
    for j in range(1, 4): A(f"v_xor_b32 v{LG+j}, {64*j + piece[j] - 1024*j}, v{LG}")
    for j in range(4): A(f"v_mov_b32 v{KA+j}, v{LG+j}")
    A(f"v_lshlrev_b32 v6, 3, v0\nv_mov_b32 v24, {-dt}\nv_bfrev_b32 v25, -2")
    A(f"ds_write_b64 v6, v[24:25] offset:{L_FULL}")
    A(f"v_lshlrev_b32 v1, 2, v0\nds_write_b32 v1, v{VZ} offset:{L_DONE}")
    A(f"ds_read_b128 v[8:11], v{VZ} offset:{L_DONE}")
    sdep("s72", sI, own, "s82")
    A(f"s_lshl_b32 s69, {sH}, 24\ns_or_b32 s72, s72, s69\ns_mov_b32 s76, 0\ns_mov_b32 s77, 0\ns_mov_b32 s70, 0")
    A(f"s_mov_b32 s79, 0\ns_mov_b32 s80, {RING0}\ns_mov_b32 s81, {2 - NSL}")
    A("s_waitcnt lgkmcnt(0)")
    srd(rC, 6, 0x10000000); srd(rK, 6, 0x10000000)
    stamp(0)
    if diag == 1: A("s_memtime s[66:67]\ns_waitcnt lgkmcnt(0)")
    def pair(f, lanes, srds, offs, bar=None):
        jp = min(j for j in range(4) if j - f >= 3 - 4 * dt)
        for j in range(8):
            if j == 4: A("s_add_u32 m0, s80, 0x1000")
            if bar is not None and j == P["early"] % 8: A(f"s_cmp_eq_u32 s81, {2 + 2 * (P['early'] // 8) - NSL}\ns_cbranch_scc1 L_ld_bar{bar}\nL_ld_barx{bar}:")
            A(f"s_waitcnt vmcnt({f-1})")
            A(f"buffer_load_dwordx4 v{lanes[j>>2]+(j&3)}, {srds[j>>2]}, {offs[j>>2]} offen offset:{(j&3)*1024} {pol} lds")
            if j & 3 == jp: A(f"v_add_u32 v24, 1, v24\nds_write_b64 v6, v[24:25] offset:{L_FULL}")
        A(f"s_add_u32 s80, s80, 0x2000\ns_cmp_eq_u32 s80, {RINGE}\ns_cselect_b32 s80, {RING0}, s80\ns_add_u32 s81, s81, 2")
    def static_loop(sfx, f, end=sS, bar=True):
        A(f"L_ld_loop{sfx}:")
        A("s_waitcnt lgkmcnt(0)\nv_min3_u32 v4, v8, v9, v10\nv_min_u32 v4, v4, v11")
        A("s_mov_b32 m0, s80\nv_readfirstlane_b32 s82, v4")
        A(f"ds_read_b128 v[8:11], v{VZ} offset:{L_DONE}")
        A(f"s_cmp_lt_i32 s82, s81\ns_cbranch_scc1 L_ld_full{sfx}")
        for r in ("s75", "s74"):
            A(f"s_or_b32 {r}, s76, s72")
            count_in("s76", RM)
            if OM:
                A(f"s_xor_b32 {r}, {r}, s77")
                count_in("s77", OM)
        pair(f, (LG, LG), (rC, rC), ("s75", "s74"), sfx if bar else None)
        A(f"s_add_u32 s79, s79, 2\ns_cmp_lt_u32 s79, {end}\ns_cbranch_scc1 L_ld_loop{sfx}")
    static_loop("", F)
    A(f"L_ld_nm:\nds_read_b32 v7, v{VZ} offset:{L_QFLAG+28}\ns_waitcnt lgkmcnt(0)\nv_readfirstlane_b32 s71, v7")
    A(f"v_mov_b32 v5, 0\ns_sub_u32 s71, s71, 1\ns_cbranch_scc1 L_ld_nmw\ns_add_u32 s79, s79, s71\ns_cmp_eq_u32 s71, 0\ns_cbranch_scc1 L_ld_midx")
    A(f"L_ld_mid:\nds_read_b64 v[26:27], v5 offset:{L_MID}")
    A("s_waitcnt lgkmcnt(0)\nv_min3_u32 v4, v8, v9, v10\nv_min_u32 v4, v4, v11\nv_readfirstlane_b32 s75, v26")
    A("v_readfirstlane_b32 s74, v27\nv_readfirstlane_b32 s82, v4\ns_mov_b32 m0, s80")
    A(f"ds_read_b128 v[8:11], v{VZ} offset:{L_DONE}")
    A("s_cmp_lt_i32 s82, s81\ns_cbranch_scc1 L_ld_fullm\nv_add_u32 v5, 8, v5")
    pair(F, (LG, LG), (rC, rC), ("s75", "s74"))
    A("s_sub_u32 s71, s71, 2\ns_cmp_lg_u32 s71, 0\ns_cbranch_scc1 L_ld_mid\nL_ld_midx:")
    A("s_cmp_lg_u32 s70, 0\ns_cbranch_scc1 L_ld_send")
    if diag == 1: A("s_memrealtime s[92:93]\ns_waitcnt lgkmcnt(0)")
    A(f"v_lshlrev_b32 v{LG}, 4, v0")
    for j in range(1, 4): A(f"v_or_b32 v{LG+j}, {piece[j] - 1024*j}, v{LG}")
    srd(rC, 8, 0x10000000)
    A("s_mov_b32 s76, 0\ns_mov_b32 s77, 0\ns_mov_b32 s70, 1\ns_mov_b32 s79, 0\ns_branch L_ld_loop")
    A("L_ld_send:")
    def que_read(n):
        A(f"s_and_b32 s83, {n}, 31\ns_lshl_b32 s83, s83, 2\nv_mov_b32 v5, s83\nds_read_b32 v7, v5 offset:{L_QUE}")
    stamp(3)
    A("L_ld_dre:")
    que_read("s79")
    A("L_ld_dyn:")
    A("s_waitcnt lgkmcnt(0)\nv_min3_u32 v4, v8, v9, v10\nv_min_u32 v4, v4, v11\nv_readfirstlane_b32 s73, v7")
    A("s_mov_b32 m0, s80\nv_readfirstlane_b32 s82, v4")
    A(f"ds_read_b128 v[8:11], v{VZ} offset:{L_DONE}")
    A("s_add_u32 s74, s79, 1\ns_lshr_b32 s75, s73, 16\ns_cmp_lg_u32 s75, s74\ns_cbranch_scc1 L_ld_dfull")
    A("s_cmp_lt_i32 s82, s81\ns_cbranch_scc1 L_ld_dfull")
    A("s_and_b32 s73, s73, 0xffff\ns_cmp_ge_u32 s73, 0x4000\ns_cbranch_scc1 L_ld_drain")
    A("s_lshl_b32 s75, s73, 10\ns_or_b32 s75, s75, s69\ns_mov_b32 s79, s74")
    que_read("s79")
    pair(Fd, (KA, LG), (rK, rC), ("s75", "s75"))
    A("s_branch L_ld_dyn")
    A("L_ld_drain:")
    stamp(1)
    A("s_lshl_b32 s82, s79, 1\nv_mov_b32 v25, s82")
    for r in range(dt - 1, -1, -1):
        A(f"s_waitcnt vmcnt({4*r})\nv_add_u32 v24, 1, v24\nds_write_b64 v6, v[24:25] offset:{L_FULL}")
    stamp(2)
    if diag and diag != 6: A(f"s_mov_b32 s94, s79\ns_sub_u32 s96, {P['spin']}, s3")
    if diag == 1: A("s_memtime s[64:65]\ns_waitcnt lgkmcnt(0)\ns_sub_u32 s98, s64, s66")
    dump_stamps()
    A("s_endpgm")
    A("L_ld_full:")
    spin("L_ld_loop")
    A("L_ld_bar:\ns_waitcnt lgkmcnt(0)\ns_barrier")
    A(f"L_ld_hold:\nds_read_b32 v4, v{VZ} offset:{L_QFLAG+20}\ns_waitcnt lgkmcnt(0)\nv_cmp_eq_u32 vcc, 4, v4\ns_cbranch_vccnz L_ld_barx")
    spin("L_ld_hold")
    A("L_ld_nmw:")
    spin("L_ld_nm")
    A("L_ld_fullm:")
    spin("L_ld_mid")
    A("L_ld_dfull:")
    spin("L_ld_dre")

    A("L_other:")
    if P["cpf"]:
        A(f"s_cmp_lg_u32 {sW}, 4\ns_cbranch_scc1 L_nopf")
        code_prefetch(220)
        A("L_nopf:")
    A("s_waitcnt lgkmcnt(0)")
    srd(rX, 4, 1152); srd(rWS, 26, 0x400000 if diag else 0x100000)
    A(f"s_load_dword {sT}, s[26:27], {WS_EPOCH}")
    stamp(0)
    A(f"s_cmp_lg_u32 {sW}, 5\ns_cbranch_scc1 L_pre_done")
    A("v_and_b32 v1, 7, v0\nv_lshrrev_b32 v4, 3, v0\nv_lshl_add_u32 v5, v1, 3, v4\nv_lshlrev_b32 v5, 1, v5")
    for k in range(9): A(f"buffer_load_ushort v{X+k}, v5, {rX}, 0 offen offset:{128*k}")
    A(f"s_and_b32 s82, {sI}, 3\ns_mul_i32 s82, s82, 288")
    for k in range(3): A(f"buffer_load_ushort v{XR+k}, v5, {rX}, s82 offen offset:{128*k}")
    srd(rWQ, 10, 576 * 8192)
    A("v_lshlrev_b32 v5, 4, v1\nv_lshl_add_u32 v5, v4, 13, v5")
    A(f"s_lshl_b32 s82, s82, 12\ns_lshl_b32 s83, {sH}, 9\ns_add_u32 s82, s82, s83")
    A(f"s_lshr_b32 s83, {sI}, 2\ns_lshl_b32 s83, s83, 7\ns_add_u32 s82, s82, s83")
    for p in range(18):
        A(f"buffer_load_dwordx4 {vr(RG+4*p)}, v5, {rWQ}, s82 offen {wpol}")
        if p < 17: A("s_add_u32 s82, s82, 0x10000")
    A(f"s_cmp_lg_u32 {sI}, 0\ns_cbranch_scc1 L_pre_done\ns_mov_b64 exec, 1")
    A(f"s_lshl_b32 s82, {sH}, 8\ns_add_u32 s82, s82, {WS_CNT}\nv_mov_b32 v24, 0\nv_mov_b32 v25, 0\nbuffer_store_dwordx2 v[24:25], v{VZ}, {rWS}, s82 offen sc1")
    A("s_mov_b64 exec, -1")
    VWO = 104 + 2
    def wo_prep():
        srd(rWO, 12, 4096 * 1152)
        A(f"s_sub_u32 s82, {sI}, 1\ns_cmp_gt_u32 s82, 8\ns_cselect_b32 s54, 0, s54")
        A("v_lshrrev_b32 v2, 5, v0\nv_lshlrev_b32 v2, 7, v2\nv_bfe_u32 v3, v0, 3, 2\nv_lshl_add_u32 v2, v3, 1, v2")
        A(f"v_mul_u32_u24 v2, 0x480, v2\nv_and_b32 v3, 7, v0\nv_lshl_add_u32 v{VWO}, v3, 4, v2")
        A(f"s_lshl_b32 s82, s82, 7\ns_lshl_b32 s83, {sH}, 3\ns_add_u32 s83, s83, {sC}\ns_mul_i32 s83, s83, {32*1152}\ns_add_u32 s48, s82, s83")
        for t in range(1, 4): A(f"s_add_u32 s{48+t}, s48, {8*t*1152}")
    def wo_loads():
        for t in range(8):
            A(f"buffer_load_dwordx4 {vr(WO+4*t)}, v{VWO}, {rWO}, s{48+(t&3)} offen offset:{(t>>2)*1152} {wpol}")
    A("L_pre_done:")
    A(f"s_barrier\ns_cmp_lg_u32 {sW}, 5\ns_cbranch_scc1 L_c_pre")
    def lane_consts():
        A('; lane masks of the diagonal B operands and the lane offset of a split-row accumulator')
        A("v_and_b32 v1, 1, v0\nv_lshlrev_b32 v1, 4, v1\nv_mov_b32 v4, 0xffff\nv_lshlrev_b32 v4, v1, v4\nv_bfe_u32 v5, v0, 1, 2")
        for v in range(4):
            A(f"v_cmp_eq_u32 vcc, {v}, v5\ns_nop 1\nv_cndmask_b32 v{M+v}, 0, v4, vcc")
        A(f"v_bfe_u32 v4, v0, 4, 1\nv_and_b32 v5, 7, v0\nv_lshl_add_u32 v4, v4, 3, v5\nv_lshlrev_b32 v{VPL}, 4, v4")
    lane_consts()
    stamp(3, 2)
    A("s_waitcnt vmcnt(21)")
    stamp(5, 2)
    for k in range(9): A(f"v_lshlrev_b32 v{X+k}, 16, v{X+k}")
    A(f"v_add_f32 v1, v{X}, v{X+1}")
    for k in range(2, 9): A(f"v_add_f32 v1, v1, v{X+k}")
    wave_sum(1, 2)
    A("s_mov_b32 s82, 0x3ae38e39\ns_mov_b32 s83, 0x44100000")
    def div576(v):
        A(f"v_mul_f32 v2, s82, v{v}\nv_fma_f32 v3, -v2, s83, v{v}\nv_fma_f32 v{v}, v3, s82, v2")
    div576(1)
    A(f"v_sub_f32 v2, v{X}, v1\nv_mul_f32 v4, v2, v2")
    for k in range(1, 9): A(f"v_sub_f32 v2, v{X+k}, v1\nv_fmac_f32 v4, v2, v2")
    wave_sum(4, 2)
    div576(4)
    rbf(1, 1); rbf(4, 4)
    A("v_add_f32 v4, 0x3727c5ac, v4"); rbf(4, 4)
    A("v_sqrt_f32 v5, v4\ns_nop 0\nv_rcp_f32 v6, v5\nv_fma_f32 v3, -v5, v5, v4\nv_mul_f32 v6, 0.5, v6\nv_fma_f32 v5, v3, v6, v5")
    rbf(5, 5)
    A("v_rcp_f32 v6, v5")
    def norm(r):
        A(f"v_sub_f32 v2, v{r}, v1"); rbf(2, 2)
        A(f"v_mul_f32 v3, v2, v6\nv_fma_f32 v4, -v3, v5, v2\nv_fma_f32 v3, v4, v6, v3\nv_cvt_pk_bf16_f32 v{r}, v3, v3")
    A("s_waitcnt vmcnt(18)")
    for k in range(3):
        A(f"v_lshlrev_b32 v{XR+k}, 16, v{XR+k}"); norm(XR + k)
    A("v_lshlrev_b32 v4, 2, v0\nv_mov_b32 v5, 1")
    for k in range(3): A(f"ds_write_b32 v4, v{XR+k} offset:{L_GU + 256*k}")
    A(f"ds_write_b32 v{VZ}, v5 offset:{L_QFLAG+16}")
    A("s_nop 0")
    stamp(6, 2)
    for p in range(18):
        bbuild(XR + p // 8, p % 8, B + 4 * (p & 1))
        A(f"s_waitcnt vmcnt({17 - p})\ns_nop 0")
        mfma(DQ, RG + 4 * p, B + 4 * (p & 1), "0" if p == 0 else None)
    A("s_waitcnt lgkmcnt(0)")
    tagprep()
    A(f"s_lshl_b32 s82, {sH}, 12\ns_and_b32 s83, {sI}, 3\ns_lshl_b32 s83, s83, 10\ns_add_u32 s82, s82, s83")
    A(f"s_lshr_b32 s83, {sI}, 2\ns_lshl_b32 s83, s83, 8\ns_add_u32 s82, s82, s83")
    for i in range(4): A(f"v_mov_b32_dpp v{V+i}, v{DQ+i} row_ror:8 row_mask:0xf bank_mask:0xf")
    A("s_nop 0")
    for i in range(4): A(f"v_permlane32_swap_b32 v{V+i}, v{V+4+i}")
    for i in range(4): A(f"v_add_f32 v{K+i}, v{DQ+i}, v{V+4+i}")
    for i in range(4): A(f"v_bfi_b32 v{K+i}, 15, v{VT}, v{K+i}")
    stamp(7, 2)
    A("s_mov_b64 exec, 0x00ff00ff\ns_waitcnt vmcnt(0)")
    A(f"buffer_store_dwordx4 {vr(K)}, v{VPL}, {rWS}, s82 offen sc1")
    A("s_mov_b64 exec, -1")
    stamp(1)
    A("L_qgather:")
    A(f"v_lshlrev_b32 v4, 4, v0\ns_lshl_b32 s82, {sH}, 12")
    if P["qdelay"] is not None:
        A(f"L_qdel:\nds_read_b32 v1, v{VZ} offset:{L_FULL}\ns_waitcnt lgkmcnt(0)\nv_cmp_le_i32 vcc, {P['qdelay']}, v1\ns_cbranch_vccnz L_qdel_ok")
        A("s_sleep 2")
        spin("L_qdel")
        A("L_qdel_ok:")
    A("L_qpoll:")
    for p in range(4): A(f"buffer_load_dwordx4 {vr(RG+4*p)}, v4, {rWS}, s82 offen offset:{p*1024} sc1")
    for p in range(4):
        A(f"s_waitcnt vmcnt({3-p})")
        tagchk(1, range(RG + 4 * p, RG + 4 * p + 4), p == 0)
    A("v_and_b32 v1, 15, v1\nv_cmp_ne_u32 vcc, 0, v1")
    A("s_cbranch_vccz L_qready\ns_sleep 2")
    spin("L_qpoll")
    A("L_qready:")
    stamp(2)
    for i in range(4): A(f"v_add_f32 v{RG+i}, v{RG+i}, v{RG+4+i}\nv_add_f32 v{RG+8+i}, v{RG+8+i}, v{RG+12+i}")
    for i in range(4): A(f"v_add_f32 v{RG+i}, v{RG+i}, v{RG+8+i}")
    A("v_lshrrev_b32 v4, 3, v0\nv_and_b32 v5, 7, v0\nv_lshl_add_u32 v4, v4, 5, v5\nv_lshlrev_b32 v4, 1, v4")
    A(f"v_cvt_pk_bf16_f32 v{RG}, v{RG}, v{RG+1}\nv_cvt_pk_bf16_f32 v{RG+4}, v{RG+2}, v{RG+3}")
    A(f"ds_write_b16 v4, v{RG} offset:{L_Q}\nds_write_b16_d16_hi v4, v{RG} offset:{L_Q+16}")
    A(f"ds_write_b16 v4, v{RG+4} offset:{L_Q+32}\nds_write_b16_d16_hi v4, v{RG+4} offset:{L_Q+48}")
    A(f"v_mov_b32 v5, 1\ns_waitcnt lgkmcnt(0)\nds_write_b32 v{VZ}, v5 offset:{L_QFLAG}")
    if P["pre"]:
        A('; one plain read of the lines this workgroup publishes at the end')
        A("v_lshrrev_b32 v5, 4, v0\nv_and_b32 v6, 15, v0\nv_lshlrev_b32 v6, 4, v6\nv_lshl_add_u32 v5, v5, 12, v6")
        A(f"s_lshl_b32 s82, {sH}, 14\ns_lshl_b32 s83, {sI}, 8\ns_add_u32 s82, s82, s83\ns_add_u32 s82, s82, {WS_P}")
        A(f"s_lshl_b32 s80, {sH}, 12\ns_lshl_b32 s83, {sI}, 6\ns_add_u32 s80, s80, s83\ns_add_u32 s80, s80, {WS_ML}")
        A(f"s_lshl_b32 s81, {sI}, 12\ns_lshl_b32 s83, {sH}, 8\ns_add_u32 s81, s81, s83\ns_add_u32 s81, s81, {WS_Y - 4096}")
        A("v_lshlrev_b32 v4, 10, v0")
        A(f"buffer_load_dwordx4 v[24:27], v5, {rWS}, s82 offen\ns_mov_b64 exec, 15\nbuffer_load_dwordx4 v[28:31], v4, {rWS}, s80 offen")
        A(f"s_mov_b64 exec, 0xffff\nbuffer_load_dwordx4 v[32:35], v6, {rWS}, s81 offen")
        A("s_mov_b64 exec, -1\ns_waitcnt vmcnt(0)")
    A(f"s_mov_b32 s79, {sS}\ns_mul_i32 s72, {sH}, 3\ns_sub_u32 s72, 11, s72")
    A(f"s_lshl_b32 s78, {sH}, 8\ns_add_u32 s78, s78, {WS_CNT}\nv_mov_b32 v4, s78\nv_mov_b32 v5, 1\ns_mov_b64 exec, 1")
    def que_write(val, mid=False):
        if val == "s80":
            A('; pool position -> (row s73, column s71): the donated rows of five columns, then the last rows of all sixteen')
            A(f"s_mul_i32 s73, s80, 52429\ns_lshr_b32 s73, s73, 18\ns_mul_i32 s71, s73, 5\ns_sub_u32 s71, s80, s71\ns_add_u32 s71, s71, s72\ns_add_u32 s73, s73, {SN - XD}")
            A(f"s_add_u32 s74, s80, {16*SN - 5*XD}\ns_lshr_b32 s75, s74, 4\ns_cmp_lt_u32 s80, {5*XD}\ns_cselect_b32 s73, s73, s75\ns_cselect_b32 s71, s71, s74")
            if OM: A(f"s_and_b32 s74, s73, {(1 << P['rot']) - 1}\ns_xor_b32 s71, s71, s74")
            sdep("s74", "s73", [b - 10 for b in rest], "s75")
            sdep("s73", "s71", [b - 10 for b in own], "s75")
            A("s_or_b32 s74, s74, s73"); val = "s74"
        if mid:
            A(f"s_lshl_b32 s74, s74, 10\ns_lshl_b32 s75, {sH}, 24\ns_or_b32 s74, s74, s75\nv_mov_b32 v2, s74\nds_write_b32 v1, v2 offset:{L_MID}\nv_add_u32 v1, 4, v1")
            return
        A(f"s_and_b32 s82, s79, 31\ns_lshl_b32 s82, s82, 2\ns_add_u32 s79, s79, 1\ns_lshl_b32 s83, s79, 16\ns_or_b32 s83, s83, {val}")
        A(f"v_mov_b32 v1, s82\nv_mov_b32 v2, s83\nds_write_b32 v1, v2 offset:{L_QUE}")
    def demand(lbl, n, ahead):
        A(f"{lbl}:\nds_read_b32 v1, v{VZ} offset:{L_FULL}\ns_waitcnt lgkmcnt(0)\nv_readfirstlane_b32 s78, v1")
        A(f"s_add_u32 s78, s78, {dt + 2*ahead}\ns_ashr_i32 s78, s78, 1\ns_cmp_le_i32 {n}, s78\ns_cbranch_scc1 {lbl}_go\ns_sleep 2")
        spin(lbl)
        A(f"{lbl}_go:")
    npool = 5 * XD + 16 * (256 - SN)
    c0 = 0; t0 = 0; chain = []
    for cnt, sz in P["segs"]:
        chain.append((c0, t0, sz)); c0 += cnt; t0 += cnt * sz
        assert sz % 4 == 0 and sz <= 32
    nclaim = npool - t0
    assert c0 == 16 and t0 < npool and P["AH"] >= 3
    A(f"s_sub_u32 s81, {sS}, {dt + P['AHM']}")
    A(f"L_ca:\nds_read_b32 v1, v{VZ} offset:{L_FULL}\ns_waitcnt lgkmcnt(0)\nv_cmp_le_i32 vcc, s81, v1\ns_cbranch_vccnz L_ca_go\ns_sleep 2")
    spin("L_ca")
    A(f"L_ca_go:\nglobal_atomic_add v20, v4, v5, s[26:27] offset:4 {P['apol']}\ns_waitcnt vmcnt(0)\nv_readfirstlane_b32 s78, v20")
    for i, (c, t, sz) in enumerate(chain):
        if i == 0: A(f"s_movk_i32 s80, {t - c*sz}\ns_mov_b32 s81, {sz}")
        else: A(f"s_cmp_ge_u32 s78, {c}\ns_cselect_b32 s80, {t - c*sz}, s80\ns_cselect_b32 s81, {sz}, s81")
    A("s_mul_i32 s78, s78, s81\ns_add_u32 s80, s80, s78\ns_add_u32 s79, s79, s81\ns_add_u32 s77, s81, 1\nv_mov_b32 v1, 0")
    A("s_cmp_eq_u32 s81, 0\ns_cbranch_scc1 L_ca_done\nL_ca_put:")
    que_write("s80", True)
    A("s_add_u32 s80, s80, 1\ns_sub_u32 s81, s81, 1\ns_cmp_lg_u32 s81, 0\ns_cbranch_scc1 L_ca_put")
    A(f"L_ca_done:\nv_mov_b32 v2, s77\nds_write_b32 v{VZ}, v2 offset:{L_QFLAG+28}")
    A("s_mov_b32 s76, s79\ns_add_u32 s77, s76, 4")
    for k in range(4):
        demand(f"L_cl_{k}", "s76", P["AH"])
        A(f"global_atomic_add v{20+k}, v4, v5, s[26:27] {P['apol']}")
        A(f"s_add_u32 s76, s76, 1\ns_cmp_lt_u32 s76, s77\ns_cbranch_scc1 L_cl_{(k+1)%4}")
        A(f"s_waitcnt vmcnt(3)\nv_readfirstlane_b32 s80, v{20+(k+1)%4}")
        A(f"s_cmp_ge_u32 s80, {nclaim}\ns_cbranch_scc1 L_cl_end\ns_add_u32 s80, s80, {t0}")
        que_write("s80")
    A("s_branch L_cl_0")
    A("L_cl_end:")
    que_write("0xffff")
    A("s_mov_b64 exec, -1")
    A(f"s_cmp_lg_u32 {sI}, 10\ns_cbranch_scc1 L_e_done\ns_cmp_gt_u32 {sH}, 8\ns_cbranch_scc1 L_e_done")
    srd(rOUT, 22, 1152)
    A("v_lshrrev_b32 v4, 5, v0\nv_and_b32 v5, 3, v0\nv_lshl_add_u32 v4, v4, 2, v5\nv_bfe_u32 v5, v0, 2, 3\nv_lshl_add_u32 v4, v4, 3, v5")
    A(f"v_lshlrev_b32 v2, 1, v4\ns_lshl_b32 s79, {sH}, 7")
    A(f"buffer_load_ushort v3, v2, {rX}, s79 offen")
    A(f"v_lshlrev_b32 v4, 2, v0\ns_lshl_b32 s82, {sH}, 12")
    def issue(b):
        for p in range(16): A(f"buffer_load_dword v{b+p}, v4, {rWS}, s80 offen offset:{256*p} {P['hl']}")
    def check(b, dst, behind, ok):
        for p in range(0, 16, 2):
            A(f"s_waitcnt vmcnt({behind+14-p})")
            tagchk(1, (b + p, b + p + 1), p == 0)
            if p == 0: A(f"v_add_f32 v{dst}, v{b}, v{b+1}")
            else: A(f"v_add_f32 v{dst}, v{dst}, v{b+p}\nv_add_f32 v{dst}, v{dst}, v{b+p+1}")
        tagtest(1)
        A(f"s_cbranch_vccz {ok}")
    A(f"s_mul_i32 s81, {sH}, {72*256}\ns_add_u32 s81, s81, {WS_F}")
    A("L_f_ffn:\ns_mov_b32 s80, s81\nv_mov_b32 v22, 0")
    def f_load(p):
        A(f"buffer_load_dword v{RG+p}, v4, {rWS}, s80 offen offset:{256*(p&15)} sc1")
        if p & 15 == 15: A("s_add_u32 s80, s80, 0x1000")
    for p in range(48): f_load(p)
    for p in range(0, 72, 2):
        A(f"s_waitcnt vmcnt({min(46, 70 - p)})")
        if p + 48 < 72: f_load(p + 48); f_load(p + 49)
        tagchk(1, (RG + p, RG + p + 1), p == 0)
        A(f"v_add_f32 v22, v22, v{RG+p}\nv_add_f32 v22, v22, v{RG+p+1}")
    tagtest(1)
    A("s_cbranch_vccz L_f_ffn_ok\ns_sleep 16")
    spin("L_f_ffn")
    A("L_f_ffn_ok:")
    rbf(22, 22)
    A(f"v_mul_f32 v5, {hex(LOG2E ^ 0x80000000)}, v22\nv_exp_f32 v5, v5\ns_nop 0\nv_add_f32 v5, 1.0, v5\nv_rcp_f32 v5, v5\ns_nop 0\nv_mul_f32 v22, v22, v5")
    rbf(22, 22)
    A("v_lshlrev_b32 v3, 16, v3")
    A(f"L_f_wait:\nds_read_b64 v[24:25], v{VZ} offset:{L_FULL}\ns_waitcnt lgkmcnt(0)\nv_cmp_ge_i32 vcc, v24, v25\ns_cbranch_vccnz L_f_go\ns_sleep 4")
    spin("L_f_wait")
    A("L_f_go:")
    A(f"s_add_u32 s80, s82, {WS_Y}")
    issue(RG)
    if P["f3"]:
        issue(RG + 16)
        A("L_f_att:")
        for i in range(3): issue(RG + 16 * ((i + 2) % 3)); check(RG + 16 * i, 23, 32, "L_f_att_ok")
    else:
        A("L_f_att:")
        issue(RG + 16); check(RG, 23, 16, "L_f_att_ok"); issue(RG); check(RG + 16, 23, 16, "L_f_att_ok")
    spin("L_f_att")
    A("L_f_att_ok:")
    rbf(23, 23)
    A("v_mul_f32 v23, v23, v22"); rbf(23, 23)
    A(f"v_add_f32 v23, v23, v3\nv_cvt_pk_bf16_f32 v23, v23, v23\nbuffer_store_short v23, v2, {rOUT}, s79 offen {P['opol']}")
    A(f"s_cmp_lg_u32 {sH}, 0\ns_cbranch_scc1 L_e_done")
    A(f"s_mov_b64 exec, 1\nv_mov_b32 v4, {WS_EPOCH}\nglobal_store_dword v4, v{VT}, s[26:27] sc1\ns_mov_b64 exec, -1\ns_branch L_e_done")

    A('; consumers')
    A("L_cons_main:")
    VSC = 148
    A("v_and_b32 v1, 15, v0\nv_lshrrev_b32 v4, 4, v0\nv_xor_b32 v5, v1, v4\nv_lshlrev_b32 v5, 4, v5")
    A(f"v_lshl_add_u32 v{KA}, v1, 8, v5")
    for ks in range(1, 4): A(f"v_xor_b32 v{KA+ks}, {64*ks}, v{KA}")
    A(f"v_lshlrev_b32 v5, 4, v1\nv_lshl_add_u32 v{VA}, v4, 10, v5")
    A(f"v_mov_b32 v{Vm}, 0xff800000\nv_mov_b32 v{VmL}, 0xff800000\nv_mov_b32 v{Vl}, 0")
    for i in range(4): A(f"v_mov_b32 v{O+i}, 0")
    A(f"s_lshl_b32 s82, {sC}, 2\nv_mov_b32 v{VDA}, s82")
    if diag == 3:
        for i in range(3): A(f"v_mov_b32 v{225+i}, 0")
        A("s_mov_b32 s86, 0")
    A(f"v_lshrrev_b32 v2, 3, v0\nv_lshlrev_b32 v2, 3, v2\ns_lshl_b32 s82, {sC}, 6\nv_add_u32 v{VSC}, s82, v2")
    A("v_bfe_u32 v5, v0, 3, 1\nv_lshlrev_b32 v5, 8, v5\nv_lshl_add_u32 v5, v4, 4, v5")
    A(f"s_mov_b32 s72, {hex(SCALE)}\ns_mov_b32 s73, {hex(LOG2E)}\ns_mov_b32 s74, 0xffff0000")
    A(f"s_mov_b32 s76, {sC}\ns_lshl_b32 s77, {sC}, 12\ns_add_u32 s77, s77, {RING0}\ns_mov_b32 s78, 0")
    A(f"s_mov_b32 s60, {sS}\ns_mov_b32 s61, 0")
    A(f"s_add_u32 s34, {sC}, {P['dn']}\ns_cmp_lt_i32 {sU}, 0\ns_cselect_b32 s34, -1, s34")
    assert L_SC + 64 * (SN - XD - NSL - 8) >= L_Y + 2048
    wo_prep()
    MA, MRG = X, RG
    for i in range(1, 4):
        A(f"s_add_u32 s82, {sC}, {i}\ns_and_b32 s82, s82, 3\ns_lshl_b32 s83, s82, 9\ns_lshl_b32 s82, s82, 10")
        A(f"v_lshl_add_u32 v{MA+2*i-2}, v0, 3, s83\nv_lshl_add_u32 v{MA+2*i-1}, v0, 4, s82")
    A(f"v_lshrrev_b32 v2, 4, v0\nv_and_b32 v3, 15, v0\nv_lshlrev_b32 v3, 4, v3\nv_lshl_add_u32 v{MA+6}, v2, 12, v3")
    A(f"v_lshl_add_u32 v{MA+7}, v2, 10, v3" if P["mlfull"] else f"v_and_b32 v3, 8, v0\nv_lshl_add_u32 v{MA+7}, v2, 10, v3")
    A(f"s_lshl_b32 s56, {sH}, 14\ns_add_u32 s56, s56, {WS_P}\ns_lshl_b32 s83, {sI}, 8\ns_add_u32 s58, s56, s83")
    A(f"s_lshl_b32 s83, {sC}, 12\ns_add_u32 s56, s56, s83")
    A(f"s_lshl_b32 s57, {sH}, 12\ns_add_u32 s57, s57, {WS_ML}\ns_lshl_b32 s83, {sI}, 6\ns_add_u32 s59, s83, s57")
    A(f"s_lshl_b32 s83, {sC}, 10\ns_add_u32 s57, s57, s83\ns_mov_b32 s70, -1\ns_brev_b32 s75, -2")
    if P["wok"]: A("s_mov_b32 s62, 1")
    def merge_reads():
        A(f"ds_read_b32 v{MRG+18}, v{VZ} offset:{L_QFLAG+4}")
        for i in range(3): A(f"ds_read_b64 {vr(MRG+12+2*i, 2)}, v{MA+2*i} offset:{L_MML}")
        for i in range(3): A(f"ds_read_b128 {vr(MRG+4*i)}, v{MA+2*i+1} offset:{L_MO}")
    A(f"L_qwait:\nds_read_b32 v1, v{VZ} offset:{L_QFLAG}\ns_waitcnt lgkmcnt(0)\nv_readfirstlane_b32 s79, v1")
    A("s_cmp_lg_u32 s79, 0\ns_cbranch_scc1 L_qgo\ns_sleep 1")
    spin("L_qwait")
    A("L_qgo:")
    tagprep()
    for ks in range(4): A(f"ds_read_b128 {vr(Q+4*ks)}, v5 offset:{L_Q + 64*ks}")
    A("s_waitcnt lgkmcnt(0)")
    stamp(4)
    def landed(lbl, item):
        A(f"s_cmp_lt_i32 {item}, s78\ns_cbranch_scc1 {lbl}_go")
        A(f"{lbl}_poll:\nds_read_b32 v22, v{VZ} offset:{L_FULL}\ns_waitcnt lgkmcnt(0)\nv_readfirstlane_b32 s78, v22")
        A(f"s_cmp_lt_i32 {item}, s78\ns_cbranch_scc1 {lbl}_go")
        spin(f"{lbl}_poll")
        A(f"{lbl}_go:")
    ntr = [0]
    def trace():
        if diag == 3:
            ntr[0] += 1; n = ntr[0]
            A(f"s_memrealtime s[84:85]\ns_waitcnt lgkmcnt(0)\ns_and_b32 m0, s86, 63\ns_cmp_lt_u32 s86, 64\ns_cbranch_scc0 L_tr{n}a")
            A(f"v_writelane_b32 v225, s84, m0\ns_branch L_tr{n}c\nL_tr{n}a:\ns_cmp_lt_u32 s86, 128\ns_cbranch_scc0 L_tr{n}b\nv_writelane_b32 v226, s84, m0\ns_branch L_tr{n}c")
            A(f"L_tr{n}b:\nv_writelane_b32 v227, s84, m0\nL_tr{n}c:\ns_add_u32 s86, s86, 1")
    def slot_next(step):
        A(f"s_add_u32 s77, s77, {step}\ns_sub_u32 s79, s77, {NSL*4096}\ns_cmp_ge_u32 s77, {RINGE}\ns_cselect_b32 s77, s79, s77")
    def k_reads():
        for ks in range(4): A(f"v_add_u32 v{AD+ks}, s77, v{KA+ks}\nds_read_b128 {vr(K+4*ks)}, v{AD+ks}")
    def qk():
        for ks in range(4):
            A(f"s_waitcnt lgkmcnt({3-ks})")
            mfma(S, K + 4 * ks, Q + 4 * ks, "0" if ks == 0 else None)
    def v_reads(off):
        for r in range(4): A(f"ds_read_b128 {vr(V+4*r)}, v{AD+4} offset:{off + 256*r}")
    def softmax(lbl):
        A(f"v_max3_f32 v22, v{S}, v{S+1}, v{S+2}\nv_max_f32 v22, v22, v{S+3}")
        A(f"v_cmp_gt_f32 vcc, v22, v{Vm}\ns_cbranch_vccnz {lbl}_rescale\n{lbl}_cont:")
        for i in range(4): A(f"v_fma_f32 v{PP+i}, v{S+i}, s73, -v{VmL}")
        for i in range(4): A(f"v_exp_f32 v{PP+i}, v{PP+i}")
        A(f"s_waitcnt lgkmcnt(0)\nds_write_b32 v{VDA}, v{AD} offset:{L_DONE}")
    def pv():
        for i in range(4):
            A(f"v_cvt_pk_bf16_f32 v22, v{PP+i}, v{PP+i}")
            for v in range(4): A(f"v_and_b32 v{B+4*i+v}, v22, v{M+v}")
            A(f"v_add_f32 v{Vl}, v{Vl}, v{PP+i}")
            if i > 0: mfma(O, V + 4 * (i - 1), B + 4 * (i - 1))
        A("s_nop 0")
        mfma(O, V + 12, B + 12)
    def rescale(lbl):
        A(f"{lbl}_rescale:")
        for op in ("v_permlane16_swap_b32", "v_permlane32_swap_b32"):
            A(f"v_mov_b32 v23, v22\ns_nop 1\n{op} v23, v22\nv_max_f32 v22, v22, v23")
        A(f"v_max_f32 v{Vm}, v{Vm}, v22\nv_mul_f32 v22, s73, v{Vm}\nv_sub_f32 v23, v{VmL}, v22\nv_exp_f32 v23, v23\nv_mov_b32 v{VmL}, v22")
        A(f"v_mul_f32 v{Vl}, v{Vl}, v23")
        for i in range(4): A(f"v_mul_f32 v{O+i}, v{O+i}, v23")
        A(f"s_branch {lbl}_cont")
    A(f"v_mov_b32 v150, v23\ns_cmp_ge_i32 {sU}, 0\ns_cbranch_scc1 L_c_wd")
    A("L_k:")
    landed("L_k", "s76")
    trace()
    k_reads()
    slot_next(0x4000)
    A(f"s_add_u32 s76, s76, 1\nv_mov_b32 v22, s76\ns_add_u32 s76, s76, 3")
    qk()
    A(f"ds_write_b32 v{VDA}, v22 offset:{L_DONE}\ns_mov_b32 exec_lo, 0x01010101\ns_mov_b32 exec_hi, 0x01010101\ns_nop 4")
    for i in range(4): A(f"v_cvt_pk_bf16_f32 v{S+i}, 0, v{S+i}")
    for i in range(4): A(f"v_mul_f32 v{S+i}, s72, v{S+i}")
    A(f"v_cvt_pk_bf16_f32 v22, v{S}, v{S+1}\nv_cvt_pk_bf16_f32 v23, v{S+2}, v{S+3}")
    A(f"ds_write_b64 v{VSC}, v[22:23] offset:{L_SC}\ns_mov_b64 exec, -1\nv_add_u32 v{VSC}, 0x100, v{VSC}")
    A("s_cmp_eq_u32 s76, s34\ns_cbranch_scc1 L_c_down\nL_k_on:\ns_cmp_lt_u32 s76, s60\ns_cbranch_scc1 L_k")
    A("s_cmp_lg_u32 s61, 0\ns_cbranch_scc1 L_k_end")
    A(f"L_k_nm:\nds_read_b32 v22, v{VZ} offset:{L_QFLAG+28}\ns_waitcnt lgkmcnt(0)\nv_readfirstlane_b32 s82, v22\ns_sub_u32 s82, s82, 1\ns_cbranch_scc0 L_k_nm_ok")
    spin("L_k_nm")
    A("L_k_nm_ok:\ns_add_u32 s60, s60, s82\ns_lshl_b32 s61, s60, 1\ns_branch L_k_on\nL_k_end:")
    A(f"s_lshl_b32 s82, s60, 6\nv_subrev_u32 v{VSC}, s82, v{VSC}")
    A("L_v:")
    landed("L_v", "s76")
    trace()
    A(f"ds_read_b64 v[22:23], v{VSC} offset:{L_SC}\nv_add_u32 v{AD+4}, s77, v{VA}")
    v_reads(0)
    slot_next(0x4000)
    A(f"v_add_u32 v{VSC}, 0x100, v{VSC}\ns_add_u32 s76, s76, 1\nv_mov_b32 v{AD}, s76\ns_add_u32 s76, s76, 3")
    A(f"s_waitcnt lgkmcnt(4)\nv_lshlrev_b32 v{S}, 16, v22\nv_and_b32 v{S+1}, s74, v22\nv_lshlrev_b32 v{S+2}, 16, v23\nv_and_b32 v{S+3}, s74, v23")
    softmax("L_v"); pv()
    A("s_cmp_lt_u32 s76, s61\ns_cbranch_scc1 L_v")
    A(f"s_add_u32 s76, s76, {sC}\ns_lshl_b32 s82, {sC}, 12")
    slot_next("s82")
    A("L_c_top:\ns_cmp_lt_i32 s76, s78\ns_cbranch_scc1 L_c_go\ns_cmp_ge_i32 s76, s75\ns_cbranch_scc1 L_c_exit")
    A(f"L_c_poll:\nds_read_b64 v[22:23], v{VZ} offset:{L_FULL}\ns_waitcnt lgkmcnt(0)")
    A("v_readfirstlane_b32 s78, v22\nv_readfirstlane_b32 s75, v23\ns_add_u32 s70, s75, 6")
    A("s_cmp_lt_i32 s76, s78\ns_cbranch_scc1 L_c_go\ns_cmp_ge_i32 s76, s75\ns_cbranch_scc1 L_c_exit")
    spin("L_c_poll")
    A("L_c_vwait:")
    A(f"ds_read_b64 v[22:23], v{VZ} offset:{L_FULL}\ns_waitcnt lgkmcnt(0)\nv_readfirstlane_b32 s78, v22\nv_readfirstlane_b32 s75, v23")
    A("s_add_u32 s70, s75, 6\ns_cmp_lt_i32 s82, s78\ns_cbranch_scc1 L_c_v")
    spin("L_c_vwait")
    rescale("L_v"); rescale("L_c")
    A("L_c_go:")
    trace(); trace()
    k_reads()
    A(f"v_add_u32 v{AD+4}, s77, v{VA}")
    slot_next(0x8000)
    qk()
    if P["wok"]:
        A("s_add_u32 s82, s76, 8\ns_cmp_lg_u32 s82, s70\ns_cbranch_scc1 L_c_nowo\ns_mov_b32 s62, 0")
        wo_loads()
        A("L_c_nowo:")
    A("s_add_u32 s82, s76, 1\ns_cmp_lt_i32 s82, s78\ns_cbranch_scc0 L_c_vwait\nL_c_v:")
    v_reads(4096)
    A(f"s_add_u32 s76, s76, 2\nv_mov_b32 v{AD}, s76\ns_add_u32 s76, s76, 6")
    for i in range(4): A(f"v_cvt_pk_bf16_f32 v{S+i}, 0, v{S+i}")
    for i in range(4): A(f"v_mul_f32 v{S+i}, s72, v{S+i}")
    for i in range(4): A(f"v_cvt_pk_bf16_f32 v{S+i}, 0, v{S+i}")
    softmax("L_c")
    A("s_cmp_lg_u32 s76, s70\ns_cbranch_scc1 L_c_pvb\ns_mov_b32 s61, 0")
    merge_reads()
    A("L_c_pvb:")
    pv()
    A("s_branch L_c_top")
    A("L_c_exit:")
    if diag == 3:
        A(f"s_lshl_b32 s84, s2, 2\ns_add_u32 s84, s84, {sC}\ns_lshl_b32 s84, s84, 10\ns_add_u32 s84, s84, {WS_DIAG + 0x20000}\nv_lshlrev_b32 v1, 2, v0")
        for i in range(3): A(f"buffer_store_dword v{225+i}, v1, {rWS}, s84 offen offset:{256*i}")
        A(f"buffer_store_dword v{VZ}, v1, {rWS}, s84 offen offset:768")
    stamp(5)
    for op in ("v_permlane16_swap_b32", "v_permlane32_swap_b32"):
        A(f"v_mov_b32 v23, v{Vl}\ns_nop 1\n{op} v23, v{Vl}\nv_add_f32 v{Vl}, v{Vl}, v23")
    A("s_cmp_eq_u32 s61, 0\ns_cbranch_scc1 L_e_dir")
    A(f"s_lshr_b32 s82, s75, 1\ns_sub_u32 s82, s82, 1\ns_and_b32 s82, s82, 3\ns_cmp_eq_u32 s82, {sC}\ns_cbranch_scc1 L_e_re")
    A(f"s_lshl_b32 s82, {sC}, 10\nv_lshl_add_u32 v4, v0, 4, s82\nds_write_b128 v4, {vr(O)} offset:{L_MO}")
    A(f"s_lshl_b32 s82, {sC}, 9\nv_lshl_add_u32 v4, v0, 3, s82\nv_mov_b32 v22, v{VmL}\nv_mov_b32 v23, v{Vl}\nds_write_b64 v4, v[22:23] offset:{L_MML}")
    A(f"v_mov_b32 v1, 1\ns_mov_b64 exec, 1\nds_add_u32 v{VZ}, v1 offset:{L_QFLAG+4}\ns_mov_b64 exec, -1")
    wo_loads()
    A(f"L_e_wait:\nds_read_b32 v1, v{VZ} offset:{L_QFLAG+12}\ns_waitcnt lgkmcnt(0)\nv_cmp_ne_u32 vcc, 0, v1\ns_cbranch_vccnz L_e_l1p")
    spin("L_e_wait")
    A("L_e_re:")
    merge_reads()
    A(f"L_e_dir:\ns_waitcnt lgkmcnt(3)\nv_cmp_ne_u32 vcc, 3, v{MRG+18}\nv_max3_f32 v22, v{MRG+12}, v{MRG+14}, v{MRG+16}\ns_cbranch_vccz L_e_go")
    spin("L_e_re")
    A(f"L_e_go:\nv_max_f32 v22, v22, v{VmL}")
    A(f"v_sub_f32 v{VmL}, v{VmL}, v22")
    for c in range(3): A(f"v_sub_f32 v{MRG+12+2*c}, v{MRG+12+2*c}, v22")
    A(f"v_exp_f32 v{VmL}, v{VmL}")
    for c in range(3): A(f"v_exp_f32 v{MRG+12+2*c}, v{MRG+12+2*c}")
    for i in range(4): A(f"v_mul_f32 v{O+i}, v{VmL}, v{O+i}")
    A("s_waitcnt lgkmcnt(0)")
    for c in range(3):
        for i in range(4): A(f"v_fmac_f32 v{O+i}, v{MRG+12+2*c}, v{MRG+4*c+i}")
    for i in range(4): tagput(O + i)
    A(f"buffer_store_dwordx4 {vr(O)}, v{MA+6}, {rWS}, s58 offen {P['hs']}")
    A(f"v_mul_f32 v23, v{VmL}, v{Vl}")
    for c in range(3): A(f"v_fmac_f32 v23, v{MRG+12+2*c}, v{MRG+13+2*c}")
    if P["mlfull"]:
        A(f"v_perm_b32 v{K}, v22, v{VT}, s101\nv_perm_b32 v{K+1}, v23, v{VT}, s101\ns_nop 0")
        A(f"v_mov_b32_dpp v{K+2}, v{K} row_ror:8 row_mask:0xf bank_mask:0xf\nv_mov_b32_dpp v{K+3}, v{K+1} row_ror:8 row_mask:0xf bank_mask:0xf")
        A("s_mov_b32 exec_lo, 0x000f000f\ns_mov_b32 exec_hi, 0x000f000f")
        A(f"buffer_store_dwordx4 {vr(K)}, v{MA+7}, {rWS}, s59 offen {P['hs']}\ns_mov_b64 exec, -1")
    else:
        tagput(22); tagput(23)
        A("s_mov_b32 exec_lo, 0x01010101\ns_mov_b32 exec_hi, 0x01010101")
        A(f"buffer_store_dwordx2 v[22:23], v{MA+7}, {rWS}, s59 offen {P['hs']}\ns_mov_b64 exec, -1")
    A(f"v_mov_b32 v1, 1\nds_write_b32 v{VZ}, v1 offset:{L_QFLAG+12}")
    if P["wok"]: A("s_cmp_eq_u32 s62, 0\ns_cbranch_scc1 L_e_l1p")
    wo_loads()
    A("L_e_l1p:\ns_mov_b32 s76, s56\ns_mov_b32 s77, s57\nv_lshlrev_b32 v6, 2, v0")
    A("L_e_l1:\ns_waitcnt lgkmcnt(0)")
    stamp(6); stamp(6, 5)
    A(f"s_sub_u32 s78, {sI}, 1\ns_cmp_gt_u32 s78, 8\ns_cbranch_scc1 L_e_done")
    A("v_and_b32 v4, 15, v0\nv_lshlrev_b32 v4, 6, v4\nv_lshrrev_b32 v5, 5, v0\nv_lshl_add_u32 v4, v5, 3, v4")
    acc = (S, S + 1, S + 2, S + 3)
    def l1_issue(b, ml):
        A(f"buffer_load_dwordx2 {vr(ml, 2)}, v4, {rWS}, s77 offen {P['hl']}")
        for p in range(16): A(f"buffer_load_dword v{b+p}, v6, {rWS}, s76 offen offset:{256*p} {P['hl']}")
    def l1_check(b, ml, behind):
        A(f"s_waitcnt vmcnt({behind+16})\nv_mov_b32 v7, v{ml}")
        tagchk(1, (ml, ml + 1), True)
        A("v_and_b32 v2, 0xff, v1\nv_cmp_ne_u32 vcc, 0, v2\ns_cbranch_vccnz L_l1_again")
        for i, r in enumerate((8, 4, 2, 1)):
            A(f"v_mov_b32 v{acc[i]}, 0" + ("" if i == 0 else "\ns_nop 0"))
            A(f"v_max_f32_dpp v7, v7, v7 row_ror:{r} row_mask:0xf bank_mask:0xf")
        A(f"v_sub_f32 v22, v{ml}, v7\nv_exp_f32 v22, v22\ns_nop 0\nv_mul_f32 v23, v22, v{ml+1}")
        for p in range(0, 16, 2):
            A(f"s_waitcnt vmcnt({behind+14-p})")
            tagchk(1, (b + p, b + p + 1))
            if p < 8: A(f"v_add_f32_dpp v23, v23, v23 row_ror:{8 >> (p // 2)} row_mask:0xf bank_mask:0xf")
            if p == 8: A("v_rcp_f32 v23, v23")
            for x in (p, p + 1): A(f"v_fmac_f32_dpp v{acc[x&3]}, v22, v{b+x} row_newbcast:{x} row_mask:0xf bank_mask:0xf")
        tagtest(1)
        A(f"v_add_f32 v2, v{S}, v{S+1}\nv_add_f32 v3, v{S+2}, v{S+3}\ns_cbranch_vccz L_l1_ok")
    if P["l1d"]: A(f"s_sleep {P['l1d']}")
    A("L_l1_poll:")
    l1_issue(RG, RG + 32); l1_check(RG, RG + 32, 0)
    A("L_l1_again:")
    spin("L_l1_poll")
    A("L_l1_ok:")
    stamp(3, 5)
    A("v_add_f32 v1, v2, v3\nv_mul_f32 v1, v1, v23\nv_cvt_pk_bf16_f32 v1, v1, v1\ns_nop 1")
    for t in range(8): A(f"v_mov_b32_dpp v{V+t}, v1 row_newbcast:{t} row_mask:0xf bank_mask:0x3")
    for t in range(8): A(f"v_mov_b32_dpp v{V+t}, v1 row_newbcast:{8+t} row_mask:0xf bank_mask:0xc")
    for t in range(8):
        for v in range(4): A(f"v_and_b32 v{B+4*(t&3)+v}, v{V+t}, v{M+v}")
        if t > 0: mfma(S, WO + 4 * (t - 1), B + 4 * ((t - 1) & 3), "0" if t == 1 else None)
    A("s_nop 0")
    mfma(S, WO + 28, B + 12)
    stamp(5, 5)
    A(f"s_lshl_b32 s82, {sC}, 9\nv_lshrrev_b32 v4, 5, v0\nv_lshl_add_u32 v4, v4, 8, v{VPL}\nv_add_u32 v4, s82, v4\nv_mov_b32 v1, 1")
    exec_valid()
    A(f"s_lshl_b32 s82, s78, 12\ns_lshl_b32 s83, {sH}, 8\ns_add_u32 s82, s82, s83\ns_add_u32 s82, s82, {WS_Y}")
    A(f"ds_write_b128 v4, {vr(S)} offset:{L_Y}\ns_mov_b64 exec, 1")
    A(f"ds_add_rtn_u32 v1, v{VZ}, v1 offset:{L_QFLAG+8}\ns_mov_b64 exec, -1")
    for i in range(8): A(f"ds_read_b32 v{K+i}, v6 offset:{L_Y + 256*i}")
    A("s_waitcnt lgkmcnt(8)\nv_readfirstlane_b32 s78, v1\ns_cmp_lg_u32 s78, 3\ns_cbranch_scc1 L_e_done")
    A(f"s_waitcnt lgkmcnt(4)\nv_add_f32 v{K}, v{K}, v{K+1}\nv_add_f32 v{K+2}, v{K+2}, v{K+3}")
    A(f"s_waitcnt lgkmcnt(0)\nv_add_f32 v{K+4}, v{K+4}, v{K+5}\nv_add_f32 v{K+6}, v{K+6}, v{K+7}")
    A(f"v_add_f32 v{K}, v{K}, v{K+2}\nv_add_f32 v{K+4}, v{K+4}, v{K+6}\nv_add_f32 v22, v{K}, v{K+4}")
    tagput(22)
    A(f"buffer_store_dword v22, v6, {rWS}, s82 offen {P['hs']}")
    A("L_e_done:")
    stamp(7); stamp(7, 5)
    dump_stamps()
    A("L_end:\ns_endpgm")

    GU = [28 + 4 * i for i in range(14)] + [108 + 4 * i for i in range(4)]; DG, GR = 92, 44
    ACC = [108 + 4 * i for i in range(8)] + [92]
    FS = RING0 - 4 * 2304
    assert L_SC + 64 * (P["dn"] + NSL + 12) <= FS and P["dn"] % 4 == 0
    def wd_loads():
        for n in range(18):
            t, ct = divmod(n, 9)
            if n >= P["FD"]: A(f"s_waitcnt vmcnt({P['FD'] - 1})")
            A(f"buffer_load_dwordx4 {vr(RG+4*n)}, v150, {rWD}, {'s33' if t else 's32'} offen offset:{ct*128} {wpol}")
    def join(off, lbl, n):
        A(f"{lbl}:\nds_read_b32 v1, v{VZ} offset:{off}\ns_waitcnt lgkmcnt(0)\nv_cmp_eq_u32 vcc, {n}, v1\ns_cbranch_vccnz {lbl}_ok")
        spin(lbl)
        A(f"{lbl}_ok:")
    A("L_c_pre:")
    A(f"s_lshl_b32 {sU}, {sH}, 2\ns_add_u32 {sU}, {sU}, {sK}\ns_sub_u32 {sU}, {sU}, 11\ns_lshr_b32 s82, {sH}, 1\ns_add_u32 s82, s82, 64")
    A(f"s_bitcmp1_b32 {sH}, 0\ns_cselect_b32 s83, -1, s82\ns_cselect_b32 s82, s82, -1")
    A(f"s_cmp_eq_u32 {sK}, 15\ns_cselect_b32 {sU}, s83, {sU}\ns_cmp_lt_u32 {sK}, 11\ns_cselect_b32 {sU}, -1, {sU}")
    A(f"s_lshr_b32 s83, {sI}, 2\ns_cmp_eq_u32 s83, 0\ns_cselect_b32 s82, s82, -1")
    A(f"s_lshl_b32 {sG}, {sH}, 2\ns_add_u32 {sG}, {sG}, s83\ns_cmp_ge_u32 {sC}, 2\ns_cselect_b32 {sG}, s82, {sG}")
    A(f"s_bitcmp1_b32 {sC}, 0\ns_cselect_b64 s[56:57], s[18:19], s[16:17]\ns_mov_b32 s58, {576*9216}\ns_mov_b32 s59, 0x20000")
    srd(rWD, 20, 4608 * 1152)
    A("v_lshrrev_b32 v4, 3, v0\nv_and_b32 v5, 7, v0\nv_lshlrev_b32 v5, 4, v5")
    A("v_mul_u32_u24 v22, 0x2400, v4\nv_add_u32 v22, v22, v5\nv_mul_u32_u24 v23, 0x480, v4\nv_add_u32 v23, v23, v5")
    A(f"s_lshl_b32 s32, {sU}, 2\ns_add_u32 s32, s32, {sC}\ns_mul_i32 s32, s32, {16*1152}\ns_add_u32 s33, s32, {8*1152}")
    A(f"s_cmp_lt_i32 {sG}, 0\ns_cbranch_scc1 L_c_pre_x")
    A(f"s_and_b32 s82, {sI}, 3\ns_mul_i32 s82, s82, {144*9216}\ns_lshl_b32 s83, {sG}, 7\ns_add_u32 s82, s82, s83")
    for p in range(18):
        if p >= P["FG"]: A(f"s_waitcnt vmcnt({P['FG'] - 1})")
        A(f"buffer_load_dwordx4 {vr(GU[p])}, v22, {rWG}, s82 offen {wpol}")
        if p < 17: A(f"s_add_u32 s82, s82, {8*9216}")
    A(f"L_c_pre_x:\ns_mov_b64 exec, 1\nv_mov_b32 v1, 1\nds_add_u32 v{VZ}, v1 offset:{L_QFLAG+20}\ns_mov_b64 exec, -1")
    lane_consts()
    A("s_waitcnt lgkmcnt(0)")
    tagprep()
    A(f"s_cmp_lt_i32 {sG}, 0\ns_cbranch_scc1 L_cons_main")
    join(L_QFLAG + 16, "L_gu_x", 1)
    A("v_lshlrev_b32 v4, 2, v0")
    for k in range(3): A(f"ds_read_b32 v{XR+k}, v4 offset:{L_GU + 256*k}")
    A("s_waitcnt lgkmcnt(0)")
    for p in range(18):
        bbuild(XR + p // 8, p % 8, B + 4 * (p & 1))
        A(f"s_waitcnt vmcnt({17 - p})\ns_nop 0")
        mfma(DG, GU[p], B + 4 * (p & 1), "0" if p == 0 else None)
    A(f"s_lshl_b32 s82, {sG}, 11\ns_and_b32 s83, {sI}, 3\ns_lshl_b32 s83, s83, 9\ns_add_u32 s82, s82, s83")
    A(f"s_and_b32 s83, {sC}, 1\ns_lshl_b32 s83, s83, 8\ns_add_u32 s82, s82, s83\ns_add_u32 s82, s82, {WS_G}")
    for i in range(4): A(f"v_mov_b32_dpp v{GR+i}, v{DG+i} row_ror:8 row_mask:0xf bank_mask:0xf")
    A("s_nop 0")
    for i in range(4): A(f"v_permlane32_swap_b32 v{GR+i}, v{GR+4+i}")
    for i in range(4): A(f"v_add_f32 v{DG+i}, v{DG+i}, v{GR+4+i}")
    for i in range(4): A(f"v_bfi_b32 v{DG+i}, 15, v{VT}, v{DG+i}")
    A(f"s_mov_b64 exec, 0x00ff00ff\nbuffer_store_dwordx4 {vr(DG)}, v{VPL}, {rWS}, s82 offen sc1\ns_mov_b64 exec, -1")
    A("s_branch L_cons_main")
    A("L_c_wd:")
    wd_loads()
    A("s_branch L_k")
    A("L_c_down:")
    A(f"v_and_b32 v4, 1, v0\ns_lshl_b32 s82, {sC}, 1\nv_add_u32 v4, s82, v4\nv_lshrrev_b32 v5, 2, v4\nv_and_b32 v4, 3, v4\nv_lshl_add_u32 v4, v5, 5, v4")
    A(f"v_lshrrev_b32 v5, 3, v0\nv_lshl_add_u32 v4, v5, 2, v4\nv_lshlrev_b32 v4, 2, v4\ns_lshl_b32 s82, {sU}, 11\ns_add_u32 s82, s82, {WS_G}")
    A("L_dn_poll:")
    for i in range(8): A(f"buffer_load_dword v{GR+i}, v4, {rWS}, s82 offen offset:{256*i} sc1")
    A("s_waitcnt vmcnt(0)")
    tagchk(1, range(GR, GR + 8), True)
    A("v_and_b32 v1, 15, v1\nv_cmp_ne_u32 vcc, 0, v1\ns_cbranch_vccz L_dn_ok\ns_sleep 2")
    spin("L_dn_poll")
    A("L_dn_ok:")
    for m in range(2):
        A(f"v_add_f32 v{GR+m}, v{GR+m}, v{GR+2+m}\nv_add_f32 v{GR+4+m}, v{GR+4+m}, v{GR+6+m}\nv_add_f32 v{GR+m}, v{GR+m}, v{GR+4+m}")
    rbf(GR, GR); rbf(GR + 1, GR + 1)
    A(f"v_mul_f32 v{GR}, {hex(LOG2E ^ 0x80000000)}, v{GR}\nv_exp_f32 v{GR}, v{GR}\ns_nop 0\nv_add_f32 v{GR}, 1.0, v{GR}\nv_rcp_f32 v{GR}, v{GR}\ns_nop 0")
    rbf(GR, GR)
    A(f"v_mul_f32 v{GR}, v{GR}, v{GR+1}\nv_cvt_pk_bf16_f32 v{XR}, v{GR}, v{GR}\ns_nop 1")
    for n in range(18):
        t, ct = divmod(n, 9)
        if ct == 0:
            bbuild(XR, t, B + 4 * t)
            A("s_nop 1")
        mfma(ACC[ct], RG + 4 * n, B + 4 * t, "0" if t == 0 else None)
    A(f"s_mul_i32 s82, {sC}, 2304\ns_add_u32 s82, s82, {FS}\nv_add_u32 v4, s82, v{VPL}")
    for ct in range(9):
        for i in range(4): A(f"v_mov_b32_dpp v{GR+i}, v{ACC[ct]+i} row_ror:8 row_mask:0xf bank_mask:0xf")
        A("s_nop 0")
        for i in range(4): A(f"v_permlane32_swap_b32 v{GR+i}, v{GR+4+i}")
        for i in range(4): A(f"v_add_f32 v{ACC[ct]+i}, v{ACC[ct]+i}, v{GR+4+i}")
    A("s_mov_b64 exec, 0x00ff00ff")
    for ct in range(9): A(f"ds_write_b128 v4, {vr(ACC[ct])} offset:{ct*256}")
    A(f"s_mov_b64 exec, 1\nv_mov_b32 v1, 1\nds_add_u32 v{VZ}, v1 offset:{L_QFLAG+24}\ns_mov_b64 exec, -1")
    A(f"s_cmp_eq_u32 {sC}, 3\ns_cbranch_scc1 L_k_on")
    join(L_QFLAG + 24, "L_dn_j", 4)
    A(f"s_lshl_b32 s64, {sC}, 6\nv_add_u32 v4, s64, v0\nv_cmp_gt_u32 vcc, 0x90, v4\ns_and_saveexec_b64 s[82:83], vcc")
    A(f"v_lshlrev_b32 v5, 4, v4\nv_add_u32 v5, {FS}, v5")
    for i in range(4): A(f"ds_read_b128 {vr(GR+4*i)}, v5 offset:{i*2304}")
    A(f"v_lshrrev_b32 v5, 4, v4\nv_mul_u32_u24 v5, {72*256}, v5\nv_and_b32 v4, 15, v4\nv_lshl_add_u32 v4, v4, 4, v5")
    A(f"s_lshl_b32 s64, {sU}, 8\ns_add_u32 s64, s64, {WS_F}\ns_waitcnt lgkmcnt(0)")
    for k in range(1, 4):
        for i in range(4): A(f"v_add_f32 v{GR+i}, v{GR+i}, v{GR+4*k+i}")
    for i in range(4): tagput(GR + i)
    A(f"buffer_store_dwordx4 {vr(GR)}, v4, {rWS}, s64 offen sc1\ns_mov_b64 exec, -1")
    stamp(3)
    A("s_branch L_k_on")

    A("L_code_end:")
    errs = hazard.check(L)
    if errs:
        print("\n".join(errs)); raise SystemExit("hazards found")
    lds = RINGE
    body = "\n".join(x if x.endswith(":") and not x.startswith(";") else "    " + x for x in L)
    head = HEADER.replace("@LAUNCH@", f"; @launch grid=(256,1,1) block=({64*NW},1,1) lds={lds}\n" + DESC.rstrip("\n"))
    tail = f"""
.section .rodata,"a"
.p2align 6
.amdhsa_kernel {NAME}_kernel
  .amdhsa_next_free_vgpr 228
  .amdhsa_next_free_sgpr 102
  .amdhsa_accum_offset 228
  .amdhsa_group_segment_fixed_size 0
  .amdhsa_kernarg_size 96
  .amdhsa_user_sgpr_count 2
  .amdhsa_user_sgpr_kernarg_segment_ptr 1
  .amdhsa_system_sgpr_workgroup_id_x 1
  .amdhsa_float_denorm_mode_32 3
.end_amdhsa_kernel
"""
    return head + body + tail, lds

if __name__ == "__main__":
    out = sys.argv[1]
    kw = eval("dict(" + (sys.argv[2] if len(sys.argv) > 2 else "") + ")")
    txt, lds = build(**kw)
    open(out, "w").write(txt)
    import subprocess
    r = subprocess.run([sys.executable, "cdna_unwritten_srd_check.py", out], capture_output=True, text=True)
    print(r.stdout.strip()[:1500])
```

```python
import sys, os
sys.path.insert(0, os.path.dirname(os.path.abspath(__file__)))
import hazard

NAME = "recurrent_scan__gqa_block_cached__glu_gated_glu__decode"
HEADER = open(os.path.join(os.path.dirname(os.path.abspath(__file__)), "header.txt")).read()

WS_QP, WS_P, WS_ML, WS_Y, WS_CNT, WS_EPOCH, WS_F, WS_G, WS_DIAG = 0x0, 0x20000, 0x60000, 0x70000, 0x7a000, 0x7c000, 0x80000, 0xb0000, 0x100000
L_FULL, L_DONE, L_QFLAG, L_QUE, L_Q, L_GU, L_SC, L_MO, L_MML, L_Y, RING0 = 0, 512, 528, 640, 1024, 1536, 2560, 2560, 6656, 8704, 19456
L_MID = 768
LOG2E = 0x3FB8AA3B
SCALE = 0x3DB504F3
VALID = "0xff00ff00", "0x00ff00ff"
NW = 6

DESC = """;
"""

DEF = dict(F=21, Fd=21, NSL=34, FW=12, pol="nt", wpol="nt", diag=False, spin=0x800000, AH=5, AHA=8, qdelay=8,
           segs=((5, 12), (4, 8), (4, 4), (3, 0)), own=(10, 11, 14, 15), pcs=(17, 21), R=240, X=8, AHM=12, early=16, dn=24, FG=8, FD=18, tpf=0, Ft=None, Nt=24, Nv=0, rot=4, pre=False, cpf=True, opol='sc1', split=0, mlfull=1, l1d=0, wok=0, f3=0)

def build(**kw):
    P = dict(DEF); P.update(kw)
    F, Fd, NSL, FW, pol, wpol, diag = P["F"], P["Fd"], P["NSL"], P["FW"], P["pol"], P["wpol"], P["diag"]
    P.update(hl="sc1", hs="sc1", apol="sc0")
    L = []
    def A(s):
        for x in s.strip("\n").split("\n"):
            L.append(x.strip())
    sW, sH, sI, sC, sT, sK, sS, sU, sG = "s28", "s29", "s30", "s31", "s100", "s14", "s15", "s63", "s62"
    rK, rV, rWS, rX, rWQ, rWO, rWG, rWU, rWD, rOUT = ("s[32:35]", "s[36:39]", "s[40:43]", "s[44:47]", "s[48:51]",
                                                    "s[52:55]", "s[56:59]", "s[56:59]", "s[64:67]", "s[68:71]")
    def srd(r, ptr, n):
        b = int(r[2:r.index(":")])
        A(f"s_mov_b64 s[{b}:{b+1}], s[{ptr}:{ptr+1}]\ns_mov_b32 s{b+2}, {n}\ns_mov_b32 s{b+3}, 0x20000")
    def vr(b, n=4): return f"v[{b}:{b+n-1}]"
    M, KA, VA, VZ, Vm, VmL, Vl, VDA = 8, 12, 16, 17, 18, 19, 20, 21
    O, Q, K, V, S, PP, B, AD, WO, X, XR, RG, DQ = 24, 28, 44, 60, 76, 80, 84, 100, 108, 140, 149, 152, 224
    VPL = 105
    def stamp(k, set_=1):
        if diag and (diag == set_ or (k in (0, 1, 2, 4) and set_ == 1)) and not (diag == 3 and k == 4):
            A(f"s_memrealtime s[{84+2*k}:{85+2*k}]\ns_waitcnt lgkmcnt(0)")
    def dump_stamps():
        if diag:
            A(f"s_mul_i32 s76, s2, {NW}\ns_add_u32 s76, s76, {sW}\ns_lshl_b32 s76, s76, 5\ns_add_u32 s76, s76, {WS_DIAG}")
            A("s_mov_b64 exec, 1\nv_mov_b32 v1, s76")
            for k in range(8):
                A(f"v_mov_b32 v2, s{84+2*k}\nglobal_store_dword v1, v2, s[26:27] offset:{4*k}")
            A("s_mov_b64 exec, -1")
    npf = [0]
    def code_prefetch(r):
        npf[0] += 1
        A(f"s_getpc_b64 s[64:65]\nL_pc{npf[0]}:\ns_sub_u32 s64, s64, L_pc{npf[0]}-{NAME}_kernel\ns_subb_u32 s65, s65, 0")
        A(f"v_lshlrev_b32 v{r}, 7, v0\nv_add_u32 v{r+1}, 0x2000, v{r}\nv_min_u32 v{r+1}, L_code_end-{NAME}_kernel-4, v{r+1}")
        A(f"global_load_dword v{r+2}, v{r}, s[64:65]\nglobal_load_dword v{r+3}, v{r+1}, s[64:65]")
    def spin(lbl):
        A(f"s_sub_u32 s3, s3, 1\ns_cbranch_scc0 {lbl}\ns_endpgm")
    def wave_sum(v, t):
        for r in (8, 4, 2, 1):
            A(f"s_nop 1\nv_add_f32_dpp v{v}, v{v}, v{v} row_ror:{r} row_mask:0xf bank_mask:0xf")
        for op in ("v_permlane16_swap_b32", "v_permlane32_swap_b32"):
            A(f"v_mov_b32 v{t}, v{v}\ns_nop 1\n{op} v{t}, v{v}\nv_add_f32 v{v}, v{v}, v{t}")
    def rbf(d, s):
        A(f"v_cvt_pk_bf16_f32 v{d}, 0, v{s}")
    def bbuild(src, t, b):
        A(f"v_mov_b32_dpp v7, v{src} row_newbcast:{t} row_mask:0xf bank_mask:0x3\ns_nop 1")
        A(f"v_mov_b32_dpp v7, v{src} row_newbcast:{8+t} row_mask:0xf bank_mask:0xc")
        for v in range(4):
            A(f"v_and_b32 v{b+v}, v7, v{M+v}")
    def mfma(d, a, b, c=None):
        A(f"v_mfma_f32_16x16x32_bf16 {vr(d)}, {vr(a)}, {vr(b)}, {vr(d) if c is None else c}")
    def exec_valid():
        A(f"s_mov_b32 exec_lo, {VALID[1]}\ns_mov_b32 exec_hi, {VALID[0]}")
    VT, VFF = 107, 103
    def tagchk(acc, regs, first=False):
        regs = list(regs)
        if first:
            A(f"v_bitop3_b32 v{acc}, v{regs[0]}, v{regs[1]}, v{VT} bitop3:0x7e"); regs = regs[2:]
        for r in regs: A(f"v_bitop3_b32 v{acc}, v{acc}, v{r}, v{VT} bitop3:0xf6")
    def tagtest(acc, dst="vcc"):
        A(f"v_and_b32 v{acc}, 0xff, v{acc}\nv_cmp_ne_u32 {dst}, 0, v{acc}")
    def tagput(r):
        A(f"v_perm_b32 v{r}, v{r}, v{VT}, s101")
    def tagprep():
        A(f"s_add_u32 s82, {sT}, 0x9e3779b9\nv_mov_b32 v{VT}, s82\ns_mov_b32 s101, 0x07060500")

    A('; entry')
    A(f"{NAME}_kernel:")
    if diag == 6: A("s_memrealtime s[90:91]")
    A("s_cmp_ge_u32 s2, 256\ns_cbranch_scc1 L_end")
    A("s_load_dwordx8 s[4:11], s[0:1], 0\ns_load_dwordx2 s[12:13], s[0:1], 32\ns_load_dwordx4 s[16:19], s[0:1], 48\ns_load_dwordx8 s[20:27], s[0:1], 64")
    if diag and diag != 6:
        for k in range(8): A(f"s_mov_b32 s{84+2*k}, 0")
    A("v_lshrrev_b32 v1, 6, v0\nv_and_b32 v0, 63, v0")
    A(f"v_readfirstlane_b32 {sW}, v1")
    A(f"s_lshr_b32 {sH}, s2, 4\ns_and_b32 {sI}, s2, 15")
    A(f"s_mul_i32 {sK}, {sH}, 3\ns_add_u32 {sK}, {sK}, {sI}\ns_and_b32 {sK}, {sK}, 15")
    A(f"s_movk_i32 {sS}, {P['R']}\ns_cmp_ge_u32 {sK}, 11\ns_cselect_b32 {sS}, {P['R'] - P['X']}, {sS}")
    A(f"v_mov_b32 v{VZ}, 0\ns_mov_b32 s3, {P['spin']}")
    A(f"s_sub_u32 {sC}, {sW}, 1")
    A(f"s_cmp_lg_u32 {sW}, 0\ns_cbranch_scc1 L_other")
    A('; loader')
    own, pb, SN = P["own"], P["pcs"], P["R"]
    rest = [b for b in range(10, 24) if b not in own and b not in pb]
    RM = sum(1 << b for b in rest)
    dep = lambda v, bs: sum(((v >> i) & 1) << b for i, b in enumerate(bs))
    piece = sorted(dep(k, pb) for k in range(4))
    XD = P["X"]
    assert SN % 4 == 0 and XD % 4 == 0 and NSL % 2 == 0 and L_SC + 64 * (SN + max(z for _, z in P["segs"])) <= RING0 and list(own) == sorted(own)
    dt = (3 + max(F, Fd)) // 4
    RINGE = RING0 + NSL * 4096
    def sdep(dst, src, bs, tmp):
        i = 0; first = True
        while i < len(bs):
            k = i
            while k + 1 < len(bs) and bs[k + 1] == bs[k] + 1: k += 1
            A(f"s_and_b32 {tmp}, {src}, {((1 << (k - i + 1)) - 1) << i}\ns_lshl_b32 {dst if first else tmp}, {tmp}, {bs[i] - i}")
            if not first: A(f"s_or_b32 {dst}, {dst}, {tmp}")
            first = False; i = k + 1
    assert rest == sorted(rest)
    OM = sum(1 << b for b in own[:P["rot"]])
    def count_in(r, mask):
        if mask == RM and rest[-1] - rest[0] == len(rest) - 1:
            A(f"s_add_u32 {r}, {r}, {1 << rest[0]}"); return
        A(f"s_or_b32 {r}, {r}, {~mask & 0xffffffff}\ns_add_u32 {r}, {r}, 1\ns_and_b32 {r}, {r}, {mask}")
    LV, LG, rC = 20, 28, "s[44:47]"
    A("s_setprio 3")
    A(f"v_lshrrev_b32 v1, 4, v0\nv_xor_b32 v4, v1, v0\nv_and_b32 v4, 15, v4\nv_lshl_add_u32 v4, v1, 4, v4\nv_lshlrev_b32 v{LG}, 4, v4")
    for j in range(1, 4): A(f"v_xor_b32 v{LG+j}, {64*j + piece[j] - 1024*j}, v{LG}")
    for j in range(4): A(f"v_mov_b32 v{KA+j}, v{LG+j}")
    A(f"v_lshlrev_b32 v6, 3, v0\nv_mov_b32 v24, {-dt}\nv_bfrev_b32 v25, -2")
    A(f"ds_write_b64 v6, v[24:25] offset:{L_FULL}")
    A(f"v_lshlrev_b32 v1, 2, v0\nds_write_b32 v1, v{VZ} offset:{L_DONE}")
    A(f"ds_read_b128 v[8:11], v{VZ} offset:{L_DONE}")
    sdep("s72", sI, own, "s82")
    A(f"s_lshl_b32 s69, {sH}, 24\ns_or_b32 s72, s72, s69\ns_mov_b32 s76, 0\ns_mov_b32 s77, 0\ns_mov_b32 s70, 0")
    A(f"s_mov_b32 s79, 0\ns_mov_b32 s80, {RING0}\ns_mov_b32 s81, {2 - NSL}")
    A("s_waitcnt lgkmcnt(0)")
    srd(rC, 6, 0x10000000); srd(rK, 6, 0x10000000)
    stamp(0)
    if diag == 1: A("s_memtime s[66:67]\ns_waitcnt lgkmcnt(0)")
    def pair(f, lanes, srds, offs, bar=None):
        jp = min(j for j in range(4) if j - f >= 3 - 4 * dt)
        for j in range(8):
            if j == 4: A("s_add_u32 m0, s80, 0x1000")
            if bar is not None and j == P["early"] % 8: A(f"s_cmp_eq_u32 s81, {2 + 2 * (P['early'] // 8) - NSL}\ns_cbranch_scc1 L_ld_bar{bar}\nL_ld_barx{bar}:")
            A(f"s_waitcnt vmcnt({f-1})")
            A(f"buffer_load_dwordx4 v{lanes[j>>2]+(j&3)}, {srds[j>>2]}, {offs[j>>2]} offen offset:{(j&3)*1024} {pol} lds")
            if j & 3 == jp: A(f"v_add_u32 v24, 1, v24\nds_write_b64 v6, v[24:25] offset:{L_FULL}")
        A(f"s_add_u32 s80, s80, 0x2000\ns_cmp_eq_u32 s80, {RINGE}\ns_cselect_b32 s80, {RING0}, s80\ns_add_u32 s81, s81, 2")
    def static_loop(sfx, f, end=sS, bar=True):
        A(f"L_ld_loop{sfx}:")
        A("s_waitcnt lgkmcnt(0)\nv_min3_u32 v4, v8, v9, v10\nv_min_u32 v4, v4, v11")
        A("s_mov_b32 m0, s80\nv_readfirstlane_b32 s82, v4")
        A(f"ds_read_b128 v[8:11], v{VZ} offset:{L_DONE}")
        A(f"s_cmp_lt_i32 s82, s81\ns_cbranch_scc1 L_ld_full{sfx}")
        for r in ("s75", "s74"):
            A(f"s_or_b32 {r}, s76, s72")
            count_in("s76", RM)
            if OM:
                A(f"s_xor_b32 {r}, {r}, s77")
                count_in("s77", OM)
        pair(f, (LG, LG), (rC, rC), ("s75", "s74"), sfx if bar else None)
        A(f"s_add_u32 s79, s79, 2\ns_cmp_lt_u32 s79, {end}\ns_cbranch_scc1 L_ld_loop{sfx}")
    static_loop("", F)
    A(f"L_ld_nm:\nds_read_b32 v7, v{VZ} offset:{L_QFLAG+28}\ns_waitcnt lgkmcnt(0)\nv_readfirstlane_b32 s71, v7")
    A(f"v_mov_b32 v5, 0\ns_sub_u32 s71, s71, 1\ns_cbranch_scc1 L_ld_nmw\ns_add_u32 s79, s79, s71\ns_cmp_eq_u32 s71, 0\ns_cbranch_scc1 L_ld_midx")
    A(f"L_ld_mid:\nds_read_b64 v[26:27], v5 offset:{L_MID}")
    A("s_waitcnt lgkmcnt(0)\nv_min3_u32 v4, v8, v9, v10\nv_min_u32 v4, v4, v11\nv_readfirstlane_b32 s75, v26")
    A("v_readfirstlane_b32 s74, v27\nv_readfirstlane_b32 s82, v4\ns_mov_b32 m0, s80")
    A(f"ds_read_b128 v[8:11], v{VZ} offset:{L_DONE}")
    A("s_cmp_lt_i32 s82, s81\ns_cbranch_scc1 L_ld_fullm\nv_add_u32 v5, 8, v5")
    pair(F, (LG, LG), (rC, rC), ("s75", "s74"))
    A("s_sub_u32 s71, s71, 2\ns_cmp_lg_u32 s71, 0\ns_cbranch_scc1 L_ld_mid\nL_ld_midx:")
    A("s_cmp_lg_u32 s70, 0\ns_cbranch_scc1 L_ld_send")
    if diag == 1: A("s_memrealtime s[92:93]\ns_waitcnt lgkmcnt(0)")
    A(f"v_lshlrev_b32 v{LG}, 4, v0")
    for j in range(1, 4): A(f"v_or_b32 v{LG+j}, {piece[j] - 1024*j}, v{LG}")
    srd(rC, 8, 0x10000000)
    A("s_mov_b32 s76, 0\ns_mov_b32 s77, 0\ns_mov_b32 s70, 1\ns_mov_b32 s79, 0\ns_branch L_ld_loop")
    A("L_ld_send:")
    def que_read(n):
        A(f"s_and_b32 s83, {n}, 31\ns_lshl_b32 s83, s83, 2\nv_mov_b32 v5, s83\nds_read_b32 v7, v5 offset:{L_QUE}")
    stamp(3)
    A("L_ld_dre:")
    que_read("s79")
    A("L_ld_dyn:")
    A("s_waitcnt lgkmcnt(0)\nv_min3_u32 v4, v8, v9, v10\nv_min_u32 v4, v4, v11\nv_readfirstlane_b32 s73, v7")
    A("s_mov_b32 m0, s80\nv_readfirstlane_b32 s82, v4")
    A(f"ds_read_b128 v[8:11], v{VZ} offset:{L_DONE}")
    A("s_add_u32 s74, s79, 1\ns_lshr_b32 s75, s73, 16\ns_cmp_lg_u32 s75, s74\ns_cbranch_scc1 L_ld_dfull")
    A("s_cmp_lt_i32 s82, s81\ns_cbranch_scc1 L_ld_dfull")
    A("s_and_b32 s73, s73, 0xffff\ns_cmp_ge_u32 s73, 0x4000\ns_cbranch_scc1 L_ld_drain")
    A("s_lshl_b32 s75, s73, 10\ns_or_b32 s75, s75, s69\ns_mov_b32 s79, s74")
    que_read("s79")
    pair(Fd, (KA, LG), (rK, rC), ("s75", "s75"))
    A("s_branch L_ld_dyn")
    A("L_ld_drain:")
    stamp(1)
    A("s_lshl_b32 s82, s79, 1\nv_mov_b32 v25, s82")
    for r in range(dt - 1, -1, -1):
        A(f"s_waitcnt vmcnt({4*r})\nv_add_u32 v24, 1, v24\nds_write_b64 v6, v[24:25] offset:{L_FULL}")
    stamp(2)
    if diag and diag != 6: A(f"s_mov_b32 s94, s79\ns_sub_u32 s96, {P['spin']}, s3")
    if diag == 1: A("s_memtime s[64:65]\ns_waitcnt lgkmcnt(0)\ns_sub_u32 s98, s64, s66")
    dump_stamps()
    A("s_endpgm")
    A("L_ld_full:")
    spin("L_ld_loop")
    A("L_ld_bar:\ns_waitcnt lgkmcnt(0)\ns_barrier")
    A(f"L_ld_hold:\nds_read_b32 v4, v{VZ} offset:{L_QFLAG+20}\ns_waitcnt lgkmcnt(0)\nv_cmp_eq_u32 vcc, 4, v4\ns_cbranch_vccnz L_ld_barx")
    spin("L_ld_hold")
    A("L_ld_nmw:")
    spin("L_ld_nm")
    A("L_ld_fullm:")
    spin("L_ld_mid")
    A("L_ld_dfull:")
    spin("L_ld_dre")

    A("L_other:")
    if P["cpf"]:
        A(f"s_cmp_lg_u32 {sW}, 4\ns_cbranch_scc1 L_nopf")
        code_prefetch(220)
        A("L_nopf:")
    A("s_waitcnt lgkmcnt(0)")
    srd(rX, 4, 1152); srd(rWS, 26, 0x400000 if diag else 0x100000)
    A(f"s_load_dword {sT}, s[26:27], {WS_EPOCH}")
    def tpf_rest():
        A(f"s_lshl_b32 s82, {sH}, 24\ns_add_u32 s83, s82, 0xfffffc\ns_mov_b32 s80, {576*9216 - 4}\ns_mov_b32 s81, {4096*1152 - 4}")
        A("s_load_dword s35, s[20:21], 0\ns_load_dword s35, s[20:21], s80\ns_load_dword s35, s[6:7], s83")
        A("s_load_dword s35, s[8:9], s82\ns_load_dword s35, s[8:9], s83\ns_load_dword s35, s[12:13], 0\ns_load_dword s35, s[12:13], s81")
    if P["tpf"]:
        A("; one scalar read at each end of the ranges used later brings their address translations in early")
        A(f"s_cmp_lg_u32 {sW}, 1\ns_cbranch_scc1 L_tpf_done\ns_mov_b32 s80, {576*9216 - 4}")
        A("s_load_dword s35, s[16:17], 0\ns_load_dword s35, s[18:19], 0\ns_load_dword s35, s[16:17], s80\ns_load_dword s35, s[18:19], s80")
        if P["tpf"] == 1: tpf_rest()
        A("L_tpf_done:")
    stamp(0)
    A(f"s_cmp_lg_u32 {sW}, 5\ns_cbranch_scc1 L_pre_done")
    A("v_and_b32 v1, 7, v0\nv_lshrrev_b32 v4, 3, v0\nv_lshl_add_u32 v5, v1, 3, v4\nv_lshlrev_b32 v5, 1, v5")
    for k in range(9): A(f"buffer_load_ushort v{X+k}, v5, {rX}, 0 offen offset:{128*k}")
    A(f"s_and_b32 s82, {sI}, 3\ns_mul_i32 s82, s82, 288")
    for k in range(3): A(f"buffer_load_ushort v{XR+k}, v5, {rX}, s82 offen offset:{128*k}")
    srd(rWQ, 10, 576 * 8192)
    A("v_lshlrev_b32 v5, 4, v1\nv_lshl_add_u32 v5, v4, 13, v5")
    A(f"s_lshl_b32 s82, s82, 12\ns_lshl_b32 s83, {sH}, 9\ns_add_u32 s82, s82, s83")
    A(f"s_lshr_b32 s83, {sI}, 2\ns_lshl_b32 s83, s83, 7\ns_add_u32 s82, s82, s83")
    for p in range(18):
        A(f"buffer_load_dwordx4 {vr(RG+4*p)}, v5, {rWQ}, s82 offen {wpol}")
        if p < 17: A("s_add_u32 s82, s82, 0x10000")
    A(f"s_cmp_lg_u32 {sI}, 0\ns_cbranch_scc1 L_pre_done\ns_mov_b64 exec, 1")
    A(f"s_lshl_b32 s82, {sH}, 8\ns_add_u32 s82, s82, {WS_CNT}\nv_mov_b32 v24, 0\nv_mov_b32 v25, 0\nbuffer_store_dwordx2 v[24:25], v{VZ}, {rWS}, s82 offen sc1")
    A("s_mov_b64 exec, -1")
    VWO = 104 + 2
    def wo_prep():
        srd(rWO, 12, 4096 * 1152)
        A(f"s_sub_u32 s82, {sI}, 1\ns_cmp_gt_u32 s82, 8\ns_cselect_b32 s54, 0, s54")
        A("v_lshrrev_b32 v2, 5, v0\nv_lshlrev_b32 v2, 7, v2\nv_bfe_u32 v3, v0, 3, 2\nv_lshl_add_u32 v2, v3, 1, v2")
        A(f"v_mul_u32_u24 v2, 0x480, v2\nv_and_b32 v3, 7, v0\nv_lshl_add_u32 v{VWO}, v3, 4, v2")
        A(f"s_lshl_b32 s82, s82, 7\ns_lshl_b32 s83, {sH}, 3\ns_add_u32 s83, s83, {sC}\ns_mul_i32 s83, s83, {32*1152}\ns_add_u32 s48, s82, s83")
        for t in range(1, 4): A(f"s_add_u32 s{48+t}, s48, {8*t*1152}")
    def wo_loads():
        for t in range(8):
            A(f"buffer_load_dwordx4 {vr(WO+4*t)}, v{VWO}, {rWO}, s{48+(t&3)} offen offset:{(t>>2)*1152} {wpol}")
    A("L_pre_done:")
    A(f"s_barrier\ns_cmp_lg_u32 {sW}, 5\ns_cbranch_scc1 L_c_pre")
    def lane_consts():
        A('; lane masks of the diagonal B operands and the lane offset of a split-row accumulator')
        A("v_and_b32 v1, 1, v0\nv_lshlrev_b32 v1, 4, v1\nv_mov_b32 v4, 0xffff\nv_lshlrev_b32 v4, v1, v4\nv_bfe_u32 v5, v0, 1, 2")
        for v in range(4):
            A(f"v_cmp_eq_u32 vcc, {v}, v5\ns_nop 1\nv_cndmask_b32 v{M+v}, 0, v4, vcc")
        A(f"v_bfe_u32 v4, v0, 4, 1\nv_and_b32 v5, 7, v0\nv_lshl_add_u32 v4, v4, 3, v5\nv_lshlrev_b32 v{VPL}, 4, v4")
    lane_consts()
    stamp(3, 2)
    A("s_waitcnt vmcnt(21)")
    stamp(5, 2)
    for k in range(9): A(f"v_lshlrev_b32 v{X+k}, 16, v{X+k}")
    A(f"v_add_f32 v1, v{X}, v{X+1}")
    for k in range(2, 9): A(f"v_add_f32 v1, v1, v{X+k}")
    wave_sum(1, 2)
    A("s_mov_b32 s82, 0x3ae38e39\ns_mov_b32 s83, 0x44100000")
    def div576(v):
        A(f"v_mul_f32 v2, s82, v{v}\nv_fma_f32 v3, -v2, s83, v{v}\nv_fma_f32 v{v}, v3, s82, v2")
    div576(1)
    A(f"v_sub_f32 v2, v{X}, v1\nv_mul_f32 v4, v2, v2")
    for k in range(1, 9): A(f"v_sub_f32 v2, v{X+k}, v1\nv_fmac_f32 v4, v2, v2")
    wave_sum(4, 2)
    div576(4)
    rbf(1, 1); rbf(4, 4)
    A("v_add_f32 v4, 0x3727c5ac, v4"); rbf(4, 4)
    A("v_sqrt_f32 v5, v4\ns_nop 0\nv_rcp_f32 v6, v5\nv_fma_f32 v3, -v5, v5, v4\nv_mul_f32 v6, 0.5, v6\nv_fma_f32 v5, v3, v6, v5")
    rbf(5, 5)
    A("v_rcp_f32 v6, v5")
    def norm(r):
        A(f"v_sub_f32 v2, v{r}, v1"); rbf(2, 2)
        A(f"v_mul_f32 v3, v2, v6\nv_fma_f32 v4, -v3, v5, v2\nv_fma_f32 v3, v4, v6, v3\nv_cvt_pk_bf16_f32 v{r}, v3, v3")
    A("s_waitcnt vmcnt(18)")
    for k in range(3):
        A(f"v_lshlrev_b32 v{XR+k}, 16, v{XR+k}"); norm(XR + k)
    A("v_lshlrev_b32 v4, 2, v0\nv_mov_b32 v5, 1")
    for k in range(3): A(f"ds_write_b32 v4, v{XR+k} offset:{L_GU + 256*k}")
    A(f"ds_write_b32 v{VZ}, v5 offset:{L_QFLAG+16}")
    A("s_nop 0")
    stamp(6, 2)
    for p in range(18):
        bbuild(XR + p // 8, p % 8, B + 4 * (p & 1))
        A(f"s_waitcnt vmcnt({17 - p})\ns_nop 0")
        mfma(DQ, RG + 4 * p, B + 4 * (p & 1), "0" if p == 0 else None)
    A("s_waitcnt lgkmcnt(0)")
    tagprep()
    A(f"s_lshl_b32 s82, {sH}, 12\ns_and_b32 s83, {sI}, 3\ns_lshl_b32 s83, s83, 10\ns_add_u32 s82, s82, s83")
    A(f"s_lshr_b32 s83, {sI}, 2\ns_lshl_b32 s83, s83, 8\ns_add_u32 s82, s82, s83")
    for i in range(4): A(f"v_mov_b32_dpp v{V+i}, v{DQ+i} row_ror:8 row_mask:0xf bank_mask:0xf")
    A("s_nop 0")
    for i in range(4): A(f"v_permlane32_swap_b32 v{V+i}, v{V+4+i}")
    for i in range(4): A(f"v_add_f32 v{K+i}, v{DQ+i}, v{V+4+i}")
    for i in range(4): A(f"v_bfi_b32 v{K+i}, 15, v{VT}, v{K+i}")
    stamp(7, 2)
    A("s_mov_b64 exec, 0x00ff00ff\ns_waitcnt vmcnt(0)")
    A(f"buffer_store_dwordx4 {vr(K)}, v{VPL}, {rWS}, s82 offen sc1")
    A("s_mov_b64 exec, -1")
    stamp(1)
    A("L_qgather:")
    A(f"v_lshlrev_b32 v4, 4, v0\ns_lshl_b32 s82, {sH}, 12")
    if P["qdelay"] is not None:
        A(f"L_qdel:\nds_read_b32 v1, v{VZ} offset:{L_FULL}\ns_waitcnt lgkmcnt(0)\nv_cmp_le_i32 vcc, {P['qdelay']}, v1\ns_cbranch_vccnz L_qdel_ok")
        A("s_sleep 2")
        spin("L_qdel")
        A("L_qdel_ok:")
    A("L_qpoll:")
    for p in range(4): A(f"buffer_load_dwordx4 {vr(RG+4*p)}, v4, {rWS}, s82 offen offset:{p*1024} sc1")
    for p in range(4):
        A(f"s_waitcnt vmcnt({3-p})")
        tagchk(1, range(RG + 4 * p, RG + 4 * p + 4), p == 0)
    A("v_and_b32 v1, 15, v1\nv_cmp_ne_u32 vcc, 0, v1")
    A("s_cbranch_vccz L_qready\ns_sleep 2")
    spin("L_qpoll")
    A("L_qready:")
    stamp(2)
    for i in range(4): A(f"v_add_f32 v{RG+i}, v{RG+i}, v{RG+4+i}\nv_add_f32 v{RG+8+i}, v{RG+8+i}, v{RG+12+i}")
    for i in range(4): A(f"v_add_f32 v{RG+i}, v{RG+i}, v{RG+8+i}")
    A("v_lshrrev_b32 v4, 3, v0\nv_and_b32 v5, 7, v0\nv_lshl_add_u32 v4, v4, 5, v5\nv_lshlrev_b32 v4, 1, v4")
    A(f"v_cvt_pk_bf16_f32 v{RG}, v{RG}, v{RG+1}\nv_cvt_pk_bf16_f32 v{RG+4}, v{RG+2}, v{RG+3}")
    A(f"ds_write_b16 v4, v{RG} offset:{L_Q}\nds_write_b16_d16_hi v4, v{RG} offset:{L_Q+16}")
    A(f"ds_write_b16 v4, v{RG+4} offset:{L_Q+32}\nds_write_b16_d16_hi v4, v{RG+4} offset:{L_Q+48}")
    A(f"v_mov_b32 v5, 1\ns_waitcnt lgkmcnt(0)\nds_write_b32 v{VZ}, v5 offset:{L_QFLAG}")
    if P["pre"]:
        A('; one plain read of the lines this workgroup publishes at the end')
        A("v_lshrrev_b32 v5, 4, v0\nv_and_b32 v6, 15, v0\nv_lshlrev_b32 v6, 4, v6\nv_lshl_add_u32 v5, v5, 12, v6")
        A(f"s_lshl_b32 s82, {sH}, 14\ns_lshl_b32 s83, {sI}, 8\ns_add_u32 s82, s82, s83\ns_add_u32 s82, s82, {WS_P}")
        A(f"s_lshl_b32 s80, {sH}, 12\ns_lshl_b32 s83, {sI}, 6\ns_add_u32 s80, s80, s83\ns_add_u32 s80, s80, {WS_ML}")
        A(f"s_lshl_b32 s81, {sI}, 12\ns_lshl_b32 s83, {sH}, 8\ns_add_u32 s81, s81, s83\ns_add_u32 s81, s81, {WS_Y - 4096}")
        A("v_lshlrev_b32 v4, 10, v0")
        A(f"buffer_load_dwordx4 v[24:27], v5, {rWS}, s82 offen\ns_mov_b64 exec, 15\nbuffer_load_dwordx4 v[28:31], v4, {rWS}, s80 offen")
        A(f"s_mov_b64 exec, 0xffff\nbuffer_load_dwordx4 v[32:35], v6, {rWS}, s81 offen")
        A("s_mov_b64 exec, -1\ns_waitcnt vmcnt(0)")
    A(f"s_mov_b32 s79, {sS}\ns_mul_i32 s72, {sH}, 3\ns_sub_u32 s72, 11, s72")
    A(f"s_lshl_b32 s78, {sH}, 8\ns_add_u32 s78, s78, {WS_CNT}\nv_mov_b32 v4, s78\nv_mov_b32 v5, 1\ns_mov_b64 exec, 1")
    def que_write(val, mid=False):
        if val == "s80":
            A('; pool position -> (row s73, column s71): the donated rows of five columns, then the last rows of all sixteen')
            A(f"s_mul_i32 s73, s80, 52429\ns_lshr_b32 s73, s73, 18\ns_mul_i32 s71, s73, 5\ns_sub_u32 s71, s80, s71\ns_add_u32 s71, s71, s72\ns_add_u32 s73, s73, {SN - XD}")
            A(f"s_add_u32 s74, s80, {16*SN - 5*XD}\ns_lshr_b32 s75, s74, 4\ns_cmp_lt_u32 s80, {5*XD}\ns_cselect_b32 s73, s73, s75\ns_cselect_b32 s71, s71, s74")
            if OM: A(f"s_and_b32 s74, s73, {(1 << P['rot']) - 1}\ns_xor_b32 s71, s71, s74")
            sdep("s74", "s73", [b - 10 for b in rest], "s75")
            sdep("s73", "s71", [b - 10 for b in own], "s75")
            A("s_or_b32 s74, s74, s73"); val = "s74"
        if mid:
            A(f"s_lshl_b32 s74, s74, 10\ns_lshl_b32 s75, {sH}, 24\ns_or_b32 s74, s74, s75\nv_mov_b32 v2, s74\nds_write_b32 v1, v2 offset:{L_MID}\nv_add_u32 v1, 4, v1")
            return
        A(f"s_and_b32 s82, s79, 31\ns_lshl_b32 s82, s82, 2\ns_add_u32 s79, s79, 1\ns_lshl_b32 s83, s79, 16\ns_or_b32 s83, s83, {val}")
        A(f"v_mov_b32 v1, s82\nv_mov_b32 v2, s83\nds_write_b32 v1, v2 offset:{L_QUE}")
    def demand(lbl, n, ahead):
        A(f"{lbl}:\nds_read_b32 v1, v{VZ} offset:{L_FULL}\ns_waitcnt lgkmcnt(0)\nv_readfirstlane_b32 s78, v1")
        A(f"s_add_u32 s78, s78, {dt + 2*ahead}\ns_ashr_i32 s78, s78, 1\ns_cmp_le_i32 {n}, s78\ns_cbranch_scc1 {lbl}_go\ns_sleep 2")
        spin(lbl)
        A(f"{lbl}_go:")
    npool = 5 * XD + 16 * (256 - SN)
    c0 = 0; t0 = 0; chain = []
    for cnt, sz in P["segs"]:
        chain.append((c0, t0, sz)); c0 += cnt; t0 += cnt * sz
        assert sz % 4 == 0 and sz <= 32
    nclaim = npool - t0
    assert c0 == 16 and t0 < npool and P["AH"] >= 3
    A(f"s_sub_u32 s81, {sS}, {dt + P['AHM']}")
    A(f"L_ca:\nds_read_b32 v1, v{VZ} offset:{L_FULL}\ns_waitcnt lgkmcnt(0)\nv_cmp_le_i32 vcc, s81, v1\ns_cbranch_vccnz L_ca_go\ns_sleep 2")
    spin("L_ca")
    A(f"L_ca_go:\nglobal_atomic_add v20, v4, v5, s[26:27] offset:4 {P['apol']}\ns_waitcnt vmcnt(0)\nv_readfirstlane_b32 s78, v20")
    for i, (c, t, sz) in enumerate(chain):
        if i == 0: A(f"s_movk_i32 s80, {t - c*sz}\ns_mov_b32 s81, {sz}")
        else: A(f"s_cmp_ge_u32 s78, {c}\ns_cselect_b32 s80, {t - c*sz}, s80\ns_cselect_b32 s81, {sz}, s81")
    A("s_mul_i32 s78, s78, s81\ns_add_u32 s80, s80, s78\ns_add_u32 s79, s79, s81\ns_add_u32 s77, s81, 1\nv_mov_b32 v1, 0")
    A("s_cmp_eq_u32 s81, 0\ns_cbranch_scc1 L_ca_done\nL_ca_put:")
    que_write("s80", True)
    A("s_add_u32 s80, s80, 1\ns_sub_u32 s81, s81, 1\ns_cmp_lg_u32 s81, 0\ns_cbranch_scc1 L_ca_put")
    A(f"L_ca_done:\nv_mov_b32 v2, s77\nds_write_b32 v{VZ}, v2 offset:{L_QFLAG+28}")
    A("s_mov_b32 s76, s79\ns_add_u32 s77, s76, 4")
    for k in range(4):
        demand(f"L_cl_{k}", "s76", P["AH"])
        A(f"global_atomic_add v{20+k}, v4, v5, s[26:27] {P['apol']}")
        A(f"s_add_u32 s76, s76, 1\ns_cmp_lt_u32 s76, s77\ns_cbranch_scc1 L_cl_{(k+1)%4}")
        A(f"s_waitcnt vmcnt(3)\nv_readfirstlane_b32 s80, v{20+(k+1)%4}")
        A(f"s_cmp_ge_u32 s80, {nclaim}\ns_cbranch_scc1 L_cl_end\ns_add_u32 s80, s80, {t0}")
        que_write("s80")
    A("s_branch L_cl_0")
    A("L_cl_end:")
    que_write("0xffff")
    A("s_mov_b64 exec, -1")
    A(f"s_cmp_lg_u32 {sI}, 10\ns_cbranch_scc1 L_e_done\ns_cmp_gt_u32 {sH}, 8\ns_cbranch_scc1 L_e_done")
    srd(rOUT, 22, 1152)
    A("v_lshrrev_b32 v4, 5, v0\nv_and_b32 v5, 3, v0\nv_lshl_add_u32 v4, v4, 2, v5\nv_bfe_u32 v5, v0, 2, 3\nv_lshl_add_u32 v4, v4, 3, v5")
    A(f"v_lshlrev_b32 v2, 1, v4\ns_lshl_b32 s79, {sH}, 7")
    A(f"buffer_load_ushort v3, v2, {rX}, s79 offen")
    A(f"v_lshlrev_b32 v4, 2, v0\ns_lshl_b32 s82, {sH}, 12")
    def issue(b):
        for p in range(16): A(f"buffer_load_dword v{b+p}, v4, {rWS}, s80 offen offset:{256*p} {P['hl']}")
    def check(b, dst, behind, ok):
        for p in range(0, 16, 2):
            A(f"s_waitcnt vmcnt({behind+14-p})")
            tagchk(1, (b + p, b + p + 1), p == 0)
            if p == 0: A(f"v_add_f32 v{dst}, v{b}, v{b+1}")
            else: A(f"v_add_f32 v{dst}, v{dst}, v{b+p}\nv_add_f32 v{dst}, v{dst}, v{b+p+1}")
        tagtest(1)
        A(f"s_cbranch_vccz {ok}")
    A(f"s_mul_i32 s81, {sH}, {72*256}\ns_add_u32 s81, s81, {WS_F}")
    A("L_f_ffn:\ns_mov_b32 s80, s81\nv_mov_b32 v22, 0")
    def f_load(p):
        A(f"buffer_load_dword v{RG+p}, v4, {rWS}, s80 offen offset:{256*(p&15)} sc1")
        if p & 15 == 15: A("s_add_u32 s80, s80, 0x1000")
    for p in range(48): f_load(p)
    for p in range(0, 72, 2):
        A(f"s_waitcnt vmcnt({min(46, 70 - p)})")
        if p + 48 < 72: f_load(p + 48); f_load(p + 49)
        tagchk(1, (RG + p, RG + p + 1), p == 0)
        A(f"v_add_f32 v22, v22, v{RG+p}\nv_add_f32 v22, v22, v{RG+p+1}")
    tagtest(1)
    A("s_cbranch_vccz L_f_ffn_ok\ns_sleep 16")
    spin("L_f_ffn")
    A("L_f_ffn_ok:")
    rbf(22, 22)
    A(f"v_mul_f32 v5, {hex(LOG2E ^ 0x80000000)}, v22\nv_exp_f32 v5, v5\ns_nop 0\nv_add_f32 v5, 1.0, v5\nv_rcp_f32 v5, v5\ns_nop 0\nv_mul_f32 v22, v22, v5")
    rbf(22, 22)
    A("v_lshlrev_b32 v3, 16, v3")
    A(f"L_f_wait:\nds_read_b64 v[24:25], v{VZ} offset:{L_FULL}\ns_waitcnt lgkmcnt(0)\nv_cmp_ge_i32 vcc, v24, v25\ns_cbranch_vccnz L_f_go\ns_sleep 4")
    spin("L_f_wait")
    A("L_f_go:")
    A(f"s_add_u32 s80, s82, {WS_Y}")
    issue(RG)
    if P["f3"]:
        issue(RG + 16)
        A("L_f_att:")
        for i in range(3): issue(RG + 16 * ((i + 2) % 3)); check(RG + 16 * i, 23, 32, "L_f_att_ok")
    else:
        A("L_f_att:")
        issue(RG + 16); check(RG, 23, 16, "L_f_att_ok"); issue(RG); check(RG + 16, 23, 16, "L_f_att_ok")
    spin("L_f_att")
    A("L_f_att_ok:")
    rbf(23, 23)
    A("v_mul_f32 v23, v23, v22"); rbf(23, 23)
    A(f"v_add_f32 v23, v23, v3\nv_cvt_pk_bf16_f32 v23, v23, v23\nbuffer_store_short v23, v2, {rOUT}, s79 offen {P['opol']}")
    A(f"s_cmp_lg_u32 {sH}, 0\ns_cbranch_scc1 L_e_done")
    A(f"s_mov_b64 exec, 1\nv_mov_b32 v4, {WS_EPOCH}\nglobal_store_dword v4, v{VT}, s[26:27] sc1\ns_mov_b64 exec, -1\ns_branch L_e_done")

    A('; consumers')
    A("L_cons_main:")
    if P["tpf"] == 2:
        A(f"s_cmp_lg_u32 {sW}, 1\ns_cbranch_scc1 L_tpf2_done")
        tpf_rest()
        A("L_tpf2_done:")
    VSC = 148
    A("v_and_b32 v1, 15, v0\nv_lshrrev_b32 v4, 4, v0\nv_xor_b32 v5, v1, v4\nv_lshlrev_b32 v5, 4, v5")
    A(f"v_lshl_add_u32 v{KA}, v1, 8, v5")
    for ks in range(1, 4): A(f"v_xor_b32 v{KA+ks}, {64*ks}, v{KA}")
    A(f"v_lshlrev_b32 v5, 4, v1\nv_lshl_add_u32 v{VA}, v4, 10, v5")
    A(f"v_mov_b32 v{Vm}, 0xff800000\nv_mov_b32 v{VmL}, 0xff800000\nv_mov_b32 v{Vl}, 0")
    for i in range(4): A(f"v_mov_b32 v{O+i}, 0")
    A(f"s_lshl_b32 s82, {sC}, 2\nv_mov_b32 v{VDA}, s82")
    if diag == 3:
        for i in range(3): A(f"v_mov_b32 v{225+i}, 0")
        A("s_mov_b32 s86, 0")
    A(f"v_lshrrev_b32 v2, 3, v0\nv_lshlrev_b32 v2, 3, v2\ns_lshl_b32 s82, {sC}, 6\nv_add_u32 v{VSC}, s82, v2")
    A("v_bfe_u32 v5, v0, 3, 1\nv_lshlrev_b32 v5, 8, v5\nv_lshl_add_u32 v5, v4, 4, v5")
    A(f"s_mov_b32 s72, {hex(SCALE)}\ns_mov_b32 s73, {hex(LOG2E)}\ns_mov_b32 s74, 0xffff0000")
    A(f"s_mov_b32 s76, {sC}\ns_lshl_b32 s77, {sC}, 12\ns_add_u32 s77, s77, {RING0}\ns_mov_b32 s78, 0")
    A(f"s_mov_b32 s60, {sS}\ns_mov_b32 s61, 0")
    A(f"s_add_u32 s34, {sC}, {P['dn']}\ns_cmp_lt_i32 {sU}, 0\ns_cselect_b32 s34, -1, s34")
    assert L_SC + 64 * (SN - XD - NSL - 8) >= L_Y + 2048
    wo_prep()
    MA, MRG = X, RG
    for i in range(1, 4):
        A(f"s_add_u32 s82, {sC}, {i}\ns_and_b32 s82, s82, 3\ns_lshl_b32 s83, s82, 9\ns_lshl_b32 s82, s82, 10")
        A(f"v_lshl_add_u32 v{MA+2*i-2}, v0, 3, s83\nv_lshl_add_u32 v{MA+2*i-1}, v0, 4, s82")
    A(f"v_lshrrev_b32 v2, 4, v0\nv_and_b32 v3, 15, v0\nv_lshlrev_b32 v3, 4, v3\nv_lshl_add_u32 v{MA+6}, v2, 12, v3")
    A(f"v_lshl_add_u32 v{MA+7}, v2, 10, v3" if P["mlfull"] else f"v_and_b32 v3, 8, v0\nv_lshl_add_u32 v{MA+7}, v2, 10, v3")
    A(f"s_lshl_b32 s56, {sH}, 14\ns_add_u32 s56, s56, {WS_P}\ns_lshl_b32 s83, {sI}, 8\ns_add_u32 s58, s56, s83")
    A(f"s_lshl_b32 s83, {sC}, 12\ns_add_u32 s56, s56, s83")
    A(f"s_lshl_b32 s57, {sH}, 12\ns_add_u32 s57, s57, {WS_ML}\ns_lshl_b32 s83, {sI}, 6\ns_add_u32 s59, s83, s57")
    A(f"s_lshl_b32 s83, {sC}, 10\ns_add_u32 s57, s57, s83\ns_mov_b32 s70, -1\ns_brev_b32 s75, -2")
    if P["wok"]: A("s_mov_b32 s62, 1")
    def merge_reads():
        A(f"ds_read_b32 v{MRG+18}, v{VZ} offset:{L_QFLAG+4}")
        for i in range(3): A(f"ds_read_b64 {vr(MRG+12+2*i, 2)}, v{MA+2*i} offset:{L_MML}")
        for i in range(3): A(f"ds_read_b128 {vr(MRG+4*i)}, v{MA+2*i+1} offset:{L_MO}")
    A(f"L_qwait:\nds_read_b32 v1, v{VZ} offset:{L_QFLAG}\ns_waitcnt lgkmcnt(0)\nv_readfirstlane_b32 s79, v1")
    A("s_cmp_lg_u32 s79, 0\ns_cbranch_scc1 L_qgo\ns_sleep 1")
    spin("L_qwait")
    A("L_qgo:")
    tagprep()
    for ks in range(4): A(f"ds_read_b128 {vr(Q+4*ks)}, v5 offset:{L_Q + 64*ks}")
    A("s_waitcnt lgkmcnt(0)")
    stamp(4)
    def landed(lbl, item):
        A(f"s_cmp_lt_i32 {item}, s78\ns_cbranch_scc1 {lbl}_go")
        A(f"{lbl}_poll:\nds_read_b32 v22, v{VZ} offset:{L_FULL}\ns_waitcnt lgkmcnt(0)\nv_readfirstlane_b32 s78, v22")
        A(f"s_cmp_lt_i32 {item}, s78\ns_cbranch_scc1 {lbl}_go")
        spin(f"{lbl}_poll")
        A(f"{lbl}_go:")
    ntr = [0]
    def trace():
        if diag == 3:
            ntr[0] += 1; n = ntr[0]
            A(f"s_memrealtime s[84:85]\ns_waitcnt lgkmcnt(0)\ns_and_b32 m0, s86, 63\ns_cmp_lt_u32 s86, 64\ns_cbranch_scc0 L_tr{n}a")
            A(f"v_writelane_b32 v225, s84, m0\ns_branch L_tr{n}c\nL_tr{n}a:\ns_cmp_lt_u32 s86, 128\ns_cbranch_scc0 L_tr{n}b\nv_writelane_b32 v226, s84, m0\ns_branch L_tr{n}c")
            A(f"L_tr{n}b:\nv_writelane_b32 v227, s84, m0\nL_tr{n}c:\ns_add_u32 s86, s86, 1")
    def slot_next(step):
        A(f"s_add_u32 s77, s77, {step}\ns_sub_u32 s79, s77, {NSL*4096}\ns_cmp_ge_u32 s77, {RINGE}\ns_cselect_b32 s77, s79, s77")
    def k_reads():
        for ks in range(4): A(f"v_add_u32 v{AD+ks}, s77, v{KA+ks}\nds_read_b128 {vr(K+4*ks)}, v{AD+ks}")
    def qk():
        for ks in range(4):
            A(f"s_waitcnt lgkmcnt({3-ks})")
            mfma(S, K + 4 * ks, Q + 4 * ks, "0" if ks == 0 else None)
    def v_reads(off):
        for r in range(4): A(f"ds_read_b128 {vr(V+4*r)}, v{AD+4} offset:{off + 256*r}")
    def softmax(lbl):
        A(f"v_max3_f32 v22, v{S}, v{S+1}, v{S+2}\nv_max_f32 v22, v22, v{S+3}")
        A(f"v_cmp_gt_f32 vcc, v22, v{Vm}\ns_cbranch_vccnz {lbl}_rescale\n{lbl}_cont:")
        for i in range(4): A(f"v_fma_f32 v{PP+i}, v{S+i}, s73, -v{VmL}")
        for i in range(4): A(f"v_exp_f32 v{PP+i}, v{PP+i}")
        A(f"s_waitcnt lgkmcnt(0)\nds_write_b32 v{VDA}, v{AD} offset:{L_DONE}")
    def pv():
        for i in range(4):
            A(f"v_cvt_pk_bf16_f32 v22, v{PP+i}, v{PP+i}")
            for v in range(4): A(f"v_and_b32 v{B+4*i+v}, v22, v{M+v}")
            A(f"v_add_f32 v{Vl}, v{Vl}, v{PP+i}")
            if i > 0: mfma(O, V + 4 * (i - 1), B + 4 * (i - 1))
        A("s_nop 0")
        mfma(O, V + 12, B + 12)
    def rescale(lbl):
        A(f"{lbl}_rescale:")
        for op in ("v_permlane16_swap_b32", "v_permlane32_swap_b32"):
            A(f"v_mov_b32 v23, v22\ns_nop 1\n{op} v23, v22\nv_max_f32 v22, v22, v23")
        A(f"v_max_f32 v{Vm}, v{Vm}, v22\nv_mul_f32 v22, s73, v{Vm}\nv_sub_f32 v23, v{VmL}, v22\nv_exp_f32 v23, v23\nv_mov_b32 v{VmL}, v22")
        A(f"v_mul_f32 v{Vl}, v{Vl}, v23")
        for i in range(4): A(f"v_mul_f32 v{O+i}, v{O+i}, v23")
        A(f"s_branch {lbl}_cont")
    A(f"v_mov_b32 v150, v23\ns_cmp_ge_i32 {sU}, 0\ns_cbranch_scc1 L_c_wd")
    A("L_k:")
    landed("L_k", "s76")
    trace()
    k_reads()
    slot_next(0x4000)
    A(f"s_add_u32 s76, s76, 1\nv_mov_b32 v22, s76\ns_add_u32 s76, s76, 3")
    qk()
    A(f"ds_write_b32 v{VDA}, v22 offset:{L_DONE}\ns_mov_b32 exec_lo, 0x01010101\ns_mov_b32 exec_hi, 0x01010101\ns_nop 4")
    for i in range(4): A(f"v_cvt_pk_bf16_f32 v{S+i}, 0, v{S+i}")
    for i in range(4): A(f"v_mul_f32 v{S+i}, s72, v{S+i}")
    A(f"v_cvt_pk_bf16_f32 v22, v{S}, v{S+1}\nv_cvt_pk_bf16_f32 v23, v{S+2}, v{S+3}")
    A(f"ds_write_b64 v{VSC}, v[22:23] offset:{L_SC}\ns_mov_b64 exec, -1\nv_add_u32 v{VSC}, 0x100, v{VSC}")
    A("s_cmp_eq_u32 s76, s34\ns_cbranch_scc1 L_c_down\nL_k_on:\ns_cmp_lt_u32 s76, s60\ns_cbranch_scc1 L_k")
    A("s_cmp_lg_u32 s61, 0\ns_cbranch_scc1 L_k_end")
    A(f"L_k_nm:\nds_read_b32 v22, v{VZ} offset:{L_QFLAG+28}\ns_waitcnt lgkmcnt(0)\nv_readfirstlane_b32 s82, v22\ns_sub_u32 s82, s82, 1\ns_cbranch_scc0 L_k_nm_ok")
    spin("L_k_nm")
    A("L_k_nm_ok:\ns_add_u32 s60, s60, s82\ns_lshl_b32 s61, s60, 1\ns_branch L_k_on\nL_k_end:")
    A(f"s_lshl_b32 s82, s60, 6\nv_subrev_u32 v{VSC}, s82, v{VSC}")
    A("L_v:")
    landed("L_v", "s76")
    trace()
    A(f"ds_read_b64 v[22:23], v{VSC} offset:{L_SC}\nv_add_u32 v{AD+4}, s77, v{VA}")
    v_reads(0)
    slot_next(0x4000)
    A(f"v_add_u32 v{VSC}, 0x100, v{VSC}\ns_add_u32 s76, s76, 1\nv_mov_b32 v{AD}, s76\ns_add_u32 s76, s76, 3")
    A(f"s_waitcnt lgkmcnt(4)\nv_lshlrev_b32 v{S}, 16, v22\nv_and_b32 v{S+1}, s74, v22\nv_lshlrev_b32 v{S+2}, 16, v23\nv_and_b32 v{S+3}, s74, v23")
    softmax("L_v"); pv()
    A("s_cmp_lt_u32 s76, s61\ns_cbranch_scc1 L_v")
    A(f"s_add_u32 s76, s76, {sC}\ns_lshl_b32 s82, {sC}, 12")
    slot_next("s82")
    A("L_c_top:\ns_cmp_lt_i32 s76, s78\ns_cbranch_scc1 L_c_go\ns_cmp_ge_i32 s76, s75\ns_cbranch_scc1 L_c_exit")
    A(f"L_c_poll:\nds_read_b64 v[22:23], v{VZ} offset:{L_FULL}\ns_waitcnt lgkmcnt(0)")
    A("v_readfirstlane_b32 s78, v22\nv_readfirstlane_b32 s75, v23\ns_add_u32 s70, s75, 6")
    A("s_cmp_lt_i32 s76, s78\ns_cbranch_scc1 L_c_go\ns_cmp_ge_i32 s76, s75\ns_cbranch_scc1 L_c_exit")
    spin("L_c_poll")
    A("L_c_vwait:")
    A(f"ds_read_b64 v[22:23], v{VZ} offset:{L_FULL}\ns_waitcnt lgkmcnt(0)\nv_readfirstlane_b32 s78, v22\nv_readfirstlane_b32 s75, v23")
    A("s_add_u32 s70, s75, 6\ns_cmp_lt_i32 s82, s78\ns_cbranch_scc1 L_c_v")
    spin("L_c_vwait")
    rescale("L_v"); rescale("L_c")
    A("L_c_go:")
    trace(); trace()
    k_reads()
    A(f"v_add_u32 v{AD+4}, s77, v{VA}")
    slot_next(0x8000)
    qk()
    if P["wok"]:
        A("s_add_u32 s82, s76, 8\ns_cmp_lg_u32 s82, s70\ns_cbranch_scc1 L_c_nowo\ns_mov_b32 s62, 0")
        wo_loads()
        A("L_c_nowo:")
    A("s_add_u32 s82, s76, 1\ns_cmp_lt_i32 s82, s78\ns_cbranch_scc0 L_c_vwait\nL_c_v:")
    v_reads(4096)
    A(f"s_add_u32 s76, s76, 2\nv_mov_b32 v{AD}, s76\ns_add_u32 s76, s76, 6")
    for i in range(4): A(f"v_cvt_pk_bf16_f32 v{S+i}, 0, v{S+i}")
    for i in range(4): A(f"v_mul_f32 v{S+i}, s72, v{S+i}")
    for i in range(4): A(f"v_cvt_pk_bf16_f32 v{S+i}, 0, v{S+i}")
    softmax("L_c")
    A("s_cmp_lg_u32 s76, s70\ns_cbranch_scc1 L_c_pvb\ns_mov_b32 s61, 0")
    merge_reads()
    A("L_c_pvb:")
    pv()
    A("s_branch L_c_top")
    A("L_c_exit:")
    if diag == 3:
        A(f"s_lshl_b32 s84, s2, 2\ns_add_u32 s84, s84, {sC}\ns_lshl_b32 s84, s84, 10\ns_add_u32 s84, s84, {WS_DIAG + 0x20000}\nv_lshlrev_b32 v1, 2, v0")
        for i in range(3): A(f"buffer_store_dword v{225+i}, v1, {rWS}, s84 offen offset:{256*i}")
        A(f"buffer_store_dword v{VZ}, v1, {rWS}, s84 offen offset:768")
    stamp(5)
    for op in ("v_permlane16_swap_b32", "v_permlane32_swap_b32"):
        A(f"v_mov_b32 v23, v{Vl}\ns_nop 1\n{op} v23, v{Vl}\nv_add_f32 v{Vl}, v{Vl}, v23")
    A("s_cmp_eq_u32 s61, 0\ns_cbranch_scc1 L_e_dir")
    A(f"s_lshr_b32 s82, s75, 1\ns_sub_u32 s82, s82, 1\ns_and_b32 s82, s82, 3\ns_cmp_eq_u32 s82, {sC}\ns_cbranch_scc1 L_e_re")
    A(f"s_lshl_b32 s82, {sC}, 10\nv_lshl_add_u32 v4, v0, 4, s82\nds_write_b128 v4, {vr(O)} offset:{L_MO}")
    A(f"s_lshl_b32 s82, {sC}, 9\nv_lshl_add_u32 v4, v0, 3, s82\nv_mov_b32 v22, v{VmL}\nv_mov_b32 v23, v{Vl}\nds_write_b64 v4, v[22:23] offset:{L_MML}")
    A(f"v_mov_b32 v1, 1\ns_mov_b64 exec, 1\nds_add_u32 v{VZ}, v1 offset:{L_QFLAG+4}\ns_mov_b64 exec, -1")
    wo_loads()
    A(f"L_e_wait:\nds_read_b32 v1, v{VZ} offset:{L_QFLAG+12}\ns_waitcnt lgkmcnt(0)\nv_cmp_ne_u32 vcc, 0, v1\ns_cbranch_vccnz L_e_l1p")
    spin("L_e_wait")
    A("L_e_re:")
    merge_reads()
    A(f"L_e_dir:\ns_waitcnt lgkmcnt(3)\nv_cmp_ne_u32 vcc, 3, v{MRG+18}\nv_max3_f32 v22, v{MRG+12}, v{MRG+14}, v{MRG+16}\ns_cbranch_vccz L_e_go")
    spin("L_e_re")
    A(f"L_e_go:\nv_max_f32 v22, v22, v{VmL}")
    A(f"v_sub_f32 v{VmL}, v{VmL}, v22")
    for c in range(3): A(f"v_sub_f32 v{MRG+12+2*c}, v{MRG+12+2*c}, v22")
    A(f"v_exp_f32 v{VmL}, v{VmL}")
    for c in range(3): A(f"v_exp_f32 v{MRG+12+2*c}, v{MRG+12+2*c}")
    for i in range(4): A(f"v_mul_f32 v{O+i}, v{VmL}, v{O+i}")
    A("s_waitcnt lgkmcnt(0)")
    for c in range(3):
        for i in range(4): A(f"v_fmac_f32 v{O+i}, v{MRG+12+2*c}, v{MRG+4*c+i}")
    for i in range(4): tagput(O + i)
    A(f"buffer_store_dwordx4 {vr(O)}, v{MA+6}, {rWS}, s58 offen {P['hs']}")
    A(f"v_mul_f32 v23, v{VmL}, v{Vl}")
    for c in range(3): A(f"v_fmac_f32 v23, v{MRG+12+2*c}, v{MRG+13+2*c}")
    if P["mlfull"]:
        A(f"v_perm_b32 v{K}, v22, v{VT}, s101\nv_perm_b32 v{K+1}, v23, v{VT}, s101\ns_nop 0")
        A(f"v_mov_b32_dpp v{K+2}, v{K} row_ror:8 row_mask:0xf bank_mask:0xf\nv_mov_b32_dpp v{K+3}, v{K+1} row_ror:8 row_mask:0xf bank_mask:0xf")
        A("s_mov_b32 exec_lo, 0x000f000f\ns_mov_b32 exec_hi, 0x000f000f")
        A(f"buffer_store_dwordx4 {vr(K)}, v{MA+7}, {rWS}, s59 offen {P['hs']}\ns_mov_b64 exec, -1")
    else:
        tagput(22); tagput(23)
        A("s_mov_b32 exec_lo, 0x01010101\ns_mov_b32 exec_hi, 0x01010101")
        A(f"buffer_store_dwordx2 v[22:23], v{MA+7}, {rWS}, s59 offen {P['hs']}\ns_mov_b64 exec, -1")
    A(f"v_mov_b32 v1, 1\nds_write_b32 v{VZ}, v1 offset:{L_QFLAG+12}")
    if P["wok"]: A("s_cmp_eq_u32 s62, 0\ns_cbranch_scc1 L_e_l1p")
    wo_loads()
    A("L_e_l1p:\ns_mov_b32 s76, s56\ns_mov_b32 s77, s57\nv_lshlrev_b32 v6, 2, v0")
    A("L_e_l1:\ns_waitcnt lgkmcnt(0)")
    stamp(6); stamp(6, 5)
    A(f"s_sub_u32 s78, {sI}, 1\ns_cmp_gt_u32 s78, 8\ns_cbranch_scc1 L_e_done")
    A("v_and_b32 v4, 15, v0\nv_lshlrev_b32 v4, 6, v4\nv_lshrrev_b32 v5, 5, v0\nv_lshl_add_u32 v4, v5, 3, v4")
    acc = (S, S + 1, S + 2, S + 3)
    def l1_issue(b, ml):
        A(f"buffer_load_dwordx2 {vr(ml, 2)}, v4, {rWS}, s77 offen {P['hl']}")
        for p in range(16): A(f"buffer_load_dword v{b+p}, v6, {rWS}, s76 offen offset:{256*p} {P['hl']}")
    def l1_check(b, ml, behind):
        A(f"s_waitcnt vmcnt({behind+16})\nv_mov_b32 v7, v{ml}")
        tagchk(1, (ml, ml + 1), True)
        A("v_and_b32 v2, 0xff, v1\nv_cmp_ne_u32 vcc, 0, v2\ns_cbranch_vccnz L_l1_again")
        for i, r in enumerate((8, 4, 2, 1)):
            A(f"v_mov_b32 v{acc[i]}, 0" + ("" if i == 0 else "\ns_nop 0"))
            A(f"v_max_f32_dpp v7, v7, v7 row_ror:{r} row_mask:0xf bank_mask:0xf")
        A(f"v_sub_f32 v22, v{ml}, v7\nv_exp_f32 v22, v22\ns_nop 0\nv_mul_f32 v23, v22, v{ml+1}")
        for p in range(0, 16, 2):
            A(f"s_waitcnt vmcnt({behind+14-p})")
            tagchk(1, (b + p, b + p + 1))
            if p < 8: A(f"v_add_f32_dpp v23, v23, v23 row_ror:{8 >> (p // 2)} row_mask:0xf bank_mask:0xf")
            if p == 8: A("v_rcp_f32 v23, v23")
            for x in (p, p + 1): A(f"v_fmac_f32_dpp v{acc[x&3]}, v22, v{b+x} row_newbcast:{x} row_mask:0xf bank_mask:0xf")
        tagtest(1)
        A(f"v_add_f32 v2, v{S}, v{S+1}\nv_add_f32 v3, v{S+2}, v{S+3}\ns_cbranch_vccz L_l1_ok")
    if P["l1d"]: A(f"s_sleep {P['l1d']}")
    A("L_l1_poll:")
    l1_issue(RG, RG + 32); l1_check(RG, RG + 32, 0)
    A("L_l1_again:")
    spin("L_l1_poll")
    A("L_l1_ok:")
    stamp(3, 5)
    A("v_add_f32 v1, v2, v3\nv_mul_f32 v1, v1, v23\nv_cvt_pk_bf16_f32 v1, v1, v1\ns_nop 1")
    for t in range(8): A(f"v_mov_b32_dpp v{V+t}, v1 row_newbcast:{t} row_mask:0xf bank_mask:0x3")
    for t in range(8): A(f"v_mov_b32_dpp v{V+t}, v1 row_newbcast:{8+t} row_mask:0xf bank_mask:0xc")
    for t in range(8):
        for v in range(4): A(f"v_and_b32 v{B+4*(t&3)+v}, v{V+t}, v{M+v}")
        if t > 0: mfma(S, WO + 4 * (t - 1), B + 4 * ((t - 1) & 3), "0" if t == 1 else None)
    A("s_nop 0")
    mfma(S, WO + 28, B + 12)
    stamp(5, 5)
    A(f"s_lshl_b32 s82, {sC}, 9\nv_lshrrev_b32 v4, 5, v0\nv_lshl_add_u32 v4, v4, 8, v{VPL}\nv_add_u32 v4, s82, v4\nv_mov_b32 v1, 1")
    exec_valid()
    A(f"s_lshl_b32 s82, s78, 12\ns_lshl_b32 s83, {sH}, 8\ns_add_u32 s82, s82, s83\ns_add_u32 s82, s82, {WS_Y}")
    A(f"ds_write_b128 v4, {vr(S)} offset:{L_Y}\ns_mov_b64 exec, 1")
    A(f"ds_add_rtn_u32 v1, v{VZ}, v1 offset:{L_QFLAG+8}\ns_mov_b64 exec, -1")
    for i in range(8): A(f"ds_read_b32 v{K+i}, v6 offset:{L_Y + 256*i}")
    A("s_waitcnt lgkmcnt(8)\nv_readfirstlane_b32 s78, v1\ns_cmp_lg_u32 s78, 3\ns_cbranch_scc1 L_e_done")
    A(f"s_waitcnt lgkmcnt(4)\nv_add_f32 v{K}, v{K}, v{K+1}\nv_add_f32 v{K+2}, v{K+2}, v{K+3}")
    A(f"s_waitcnt lgkmcnt(0)\nv_add_f32 v{K+4}, v{K+4}, v{K+5}\nv_add_f32 v{K+6}, v{K+6}, v{K+7}")
    A(f"v_add_f32 v{K}, v{K}, v{K+2}\nv_add_f32 v{K+4}, v{K+4}, v{K+6}\nv_add_f32 v22, v{K}, v{K+4}")
    tagput(22)
    A(f"buffer_store_dword v22, v6, {rWS}, s82 offen {P['hs']}")
    A("L_e_done:")
    stamp(7); stamp(7, 5)
    dump_stamps()
    A("L_end:\ns_endpgm")

    GU = [28 + 4 * i for i in range(14)] + [108 + 4 * i for i in range(4)]; DG, GR = 92, 44
    ACC = [108 + 4 * i for i in range(8)] + [92]
    FS = RING0 - 4 * 2304
    assert L_SC + 64 * (P["dn"] + NSL + 12) <= FS and P["dn"] % 4 == 0
    def wd_loads():
        for n in range(18):
            t, ct = divmod(n, 9)
            if n >= P["FD"]: A(f"s_waitcnt vmcnt({P['FD'] - 1})")
            A(f"buffer_load_dwordx4 {vr(RG+4*n)}, v150, {rWD}, {'s33' if t else 's32'} offen offset:{ct*128} {wpol}")
    def join(off, lbl, n):
        A(f"{lbl}:\nds_read_b32 v1, v{VZ} offset:{off}\ns_waitcnt lgkmcnt(0)\nv_cmp_eq_u32 vcc, {n}, v1\ns_cbranch_vccnz {lbl}_ok")
        spin(lbl)
        A(f"{lbl}_ok:")
    A("L_c_pre:")
    A(f"s_lshl_b32 {sU}, {sH}, 2\ns_add_u32 {sU}, {sU}, {sK}\ns_sub_u32 {sU}, {sU}, 11\ns_lshr_b32 s82, {sH}, 1\ns_add_u32 s82, s82, 64")
    A(f"s_bitcmp1_b32 {sH}, 0\ns_cselect_b32 s83, -1, s82\ns_cselect_b32 s82, s82, -1")
    A(f"s_cmp_eq_u32 {sK}, 15\ns_cselect_b32 {sU}, s83, {sU}\ns_cmp_lt_u32 {sK}, 11\ns_cselect_b32 {sU}, -1, {sU}")
    A(f"s_lshr_b32 s83, {sI}, 2\ns_cmp_eq_u32 s83, 0\ns_cselect_b32 s82, s82, -1")
    A(f"s_lshl_b32 {sG}, {sH}, 2\ns_add_u32 {sG}, {sG}, s83\ns_cmp_ge_u32 {sC}, 2\ns_cselect_b32 {sG}, s82, {sG}")
    A(f"s_bitcmp1_b32 {sC}, 0\ns_cselect_b64 s[56:57], s[18:19], s[16:17]\ns_mov_b32 s58, {576*9216}\ns_mov_b32 s59, 0x20000")
    srd(rWD, 20, 4608 * 1152)
    A("v_lshrrev_b32 v4, 3, v0\nv_and_b32 v5, 7, v0\nv_lshlrev_b32 v5, 4, v5")
    A("v_mul_u32_u24 v22, 0x2400, v4\nv_add_u32 v22, v22, v5\nv_mul_u32_u24 v23, 0x480, v4\nv_add_u32 v23, v23, v5")
    A(f"s_lshl_b32 s32, {sU}, 2\ns_add_u32 s32, s32, {sC}\ns_mul_i32 s32, s32, {16*1152}\ns_add_u32 s33, s32, {8*1152}")
    A(f"s_cmp_lt_i32 {sG}, 0\ns_cbranch_scc1 L_c_pre_x")
    A(f"s_and_b32 s82, {sI}, 3\ns_mul_i32 s82, s82, {144*9216}\ns_lshl_b32 s83, {sG}, 7\ns_add_u32 s82, s82, s83")
    for p in range(18):
        if p >= P["FG"]: A(f"s_waitcnt vmcnt({P['FG'] - 1})")
        A(f"buffer_load_dwordx4 {vr(GU[p])}, v22, {rWG}, s82 offen {wpol}")
        if p < 17: A(f"s_add_u32 s82, s82, {8*9216}")
    A(f"L_c_pre_x:\ns_mov_b64 exec, 1\nv_mov_b32 v1, 1\nds_add_u32 v{VZ}, v1 offset:{L_QFLAG+20}\ns_mov_b64 exec, -1")
    lane_consts()
    A("s_waitcnt lgkmcnt(0)")
    tagprep()
    A(f"s_cmp_lt_i32 {sG}, 0\ns_cbranch_scc1 L_cons_main")
    join(L_QFLAG + 16, "L_gu_x", 1)
    A("v_lshlrev_b32 v4, 2, v0")
    for k in range(3): A(f"ds_read_b32 v{XR+k}, v4 offset:{L_GU + 256*k}")
    A("s_waitcnt lgkmcnt(0)")
    for p in range(18):
        bbuild(XR + p // 8, p % 8, B + 4 * (p & 1))
        A(f"s_waitcnt vmcnt({17 - p})\ns_nop 0")
        mfma(DG, GU[p], B + 4 * (p & 1), "0" if p == 0 else None)
    A(f"s_lshl_b32 s82, {sG}, 11\ns_and_b32 s83, {sI}, 3\ns_lshl_b32 s83, s83, 9\ns_add_u32 s82, s82, s83")
    A(f"s_and_b32 s83, {sC}, 1\ns_lshl_b32 s83, s83, 8\ns_add_u32 s82, s82, s83\ns_add_u32 s82, s82, {WS_G}")
    for i in range(4): A(f"v_mov_b32_dpp v{GR+i}, v{DG+i} row_ror:8 row_mask:0xf bank_mask:0xf")
    A("s_nop 0")
    for i in range(4): A(f"v_permlane32_swap_b32 v{GR+i}, v{GR+4+i}")
    for i in range(4): A(f"v_add_f32 v{DG+i}, v{DG+i}, v{GR+4+i}")
    for i in range(4): A(f"v_bfi_b32 v{DG+i}, 15, v{VT}, v{DG+i}")
    A(f"s_mov_b64 exec, 0x00ff00ff\nbuffer_store_dwordx4 {vr(DG)}, v{VPL}, {rWS}, s82 offen sc1\ns_mov_b64 exec, -1")
    A("s_branch L_cons_main")
    A("L_c_wd:")
    wd_loads()
    A("s_branch L_k")
    A("L_c_down:")
    A(f"v_and_b32 v4, 1, v0\ns_lshl_b32 s82, {sC}, 1\nv_add_u32 v4, s82, v4\nv_lshrrev_b32 v5, 2, v4\nv_and_b32 v4, 3, v4\nv_lshl_add_u32 v4, v5, 5, v4")
    A(f"v_lshrrev_b32 v5, 3, v0\nv_lshl_add_u32 v4, v5, 2, v4\nv_lshlrev_b32 v4, 2, v4\ns_lshl_b32 s82, {sU}, 11\ns_add_u32 s82, s82, {WS_G}")
    A("L_dn_poll:")
    for i in range(8): A(f"buffer_load_dword v{GR+i}, v4, {rWS}, s82 offen offset:{256*i} sc1")
    A("s_waitcnt vmcnt(0)")
    tagchk(1, range(GR, GR + 8), True)
    A("v_and_b32 v1, 15, v1\nv_cmp_ne_u32 vcc, 0, v1\ns_cbranch_vccz L_dn_ok\ns_sleep 2")
    spin("L_dn_poll")
    A("L_dn_ok:")
    for m in range(2):
        A(f"v_add_f32 v{GR+m}, v{GR+m}, v{GR+2+m}\nv_add_f32 v{GR+4+m}, v{GR+4+m}, v{GR+6+m}\nv_add_f32 v{GR+m}, v{GR+m}, v{GR+4+m}")
    rbf(GR, GR); rbf(GR + 1, GR + 1)
    A(f"v_mul_f32 v{GR}, {hex(LOG2E ^ 0x80000000)}, v{GR}\nv_exp_f32 v{GR}, v{GR}\ns_nop 0\nv_add_f32 v{GR}, 1.0, v{GR}\nv_rcp_f32 v{GR}, v{GR}\ns_nop 0")
    rbf(GR, GR)
    A(f"v_mul_f32 v{GR}, v{GR}, v{GR+1}\nv_cvt_pk_bf16_f32 v{XR}, v{GR}, v{GR}\ns_nop 1")
    for n in range(18):
        t, ct = divmod(n, 9)
        if ct == 0:
            bbuild(XR, t, B + 4 * t)
            A("s_nop 1")
        mfma(ACC[ct], RG + 4 * n, B + 4 * t, "0" if t == 0 else None)
    A(f"s_mul_i32 s82, {sC}, 2304\ns_add_u32 s82, s82, {FS}\nv_add_u32 v4, s82, v{VPL}")
    for ct in range(9):
        for i in range(4): A(f"v_mov_b32_dpp v{GR+i}, v{ACC[ct]+i} row_ror:8 row_mask:0xf bank_mask:0xf")
        A("s_nop 0")
        for i in range(4): A(f"v_permlane32_swap_b32 v{GR+i}, v{GR+4+i}")
        for i in range(4): A(f"v_add_f32 v{ACC[ct]+i}, v{ACC[ct]+i}, v{GR+4+i}")
    A("s_mov_b64 exec, 0x00ff00ff")
    for ct in range(9): A(f"ds_write_b128 v4, {vr(ACC[ct])} offset:{ct*256}")
    A(f"s_mov_b64 exec, 1\nv_mov_b32 v1, 1\nds_add_u32 v{VZ}, v1 offset:{L_QFLAG+24}\ns_mov_b64 exec, -1")
    A(f"s_cmp_eq_u32 {sC}, 3\ns_cbranch_scc1 L_k_on")
    join(L_QFLAG + 24, "L_dn_j", 4)
    A(f"s_lshl_b32 s64, {sC}, 6\nv_add_u32 v4, s64, v0\nv_cmp_gt_u32 vcc, 0x90, v4\ns_and_saveexec_b64 s[82:83], vcc")
    A(f"v_lshlrev_b32 v5, 4, v4\nv_add_u32 v5, {FS}, v5")
    for i in range(4): A(f"ds_read_b128 {vr(GR+4*i)}, v5 offset:{i*2304}")
    A(f"v_lshrrev_b32 v5, 4, v4\nv_mul_u32_u24 v5, {72*256}, v5\nv_and_b32 v4, 15, v4\nv_lshl_add_u32 v4, v4, 4, v5")
    A(f"s_lshl_b32 s64, {sU}, 8\ns_add_u32 s64, s64, {WS_F}\ns_waitcnt lgkmcnt(0)")
    for k in range(1, 4):
        for i in range(4): A(f"v_add_f32 v{GR+i}, v{GR+i}, v{GR+4*k+i}")
    for i in range(4): tagput(GR + i)
    A(f"buffer_store_dwordx4 {vr(GR)}, v4, {rWS}, s64 offen sc1\ns_mov_b64 exec, -1")
    stamp(3)
    A("s_branch L_k_on")

    A("L_code_end:")
    errs = hazard.check(L)
    if errs:
        print("\n".join(errs)); raise SystemExit("hazards found")
    lds = RINGE
    body = "\n".join(x if x.endswith(":") and not x.startswith(";") else "    " + x for x in L)
    head = HEADER.replace("@LAUNCH@", f"; @launch grid=(256,1,1) block=({64*NW},1,1) lds={lds}\n" + DESC.rstrip("\n"))
    tail = f"""
.section .rodata,"a"
.p2align 6
.amdhsa_kernel {NAME}_kernel
  .amdhsa_next_free_vgpr 228
  .amdhsa_next_free_sgpr 102
  .amdhsa_accum_offset 228
  .amdhsa_group_segment_fixed_size 0
  .amdhsa_kernarg_size 96
  .amdhsa_user_sgpr_count 2
  .amdhsa_user_sgpr_kernarg_segment_ptr 1
  .amdhsa_system_sgpr_workgroup_id_x 1
  .amdhsa_float_denorm_mode_32 3
.end_amdhsa_kernel
"""
    return head + body + tail, lds

if __name__ == "__main__":
    out = sys.argv[1]
    kw = eval("dict(" + (sys.argv[2] if len(sys.argv) > 2 else "") + ")")
    txt, lds = build(**kw)
    open(out, "w").write(txt)
    import subprocess
    r = subprocess.run([sys.executable, "cdna_unwritten_srd_check.py", out], capture_output=True, text=True)
    print(r.stdout.strip()[:1500])
```

```python
import sys, os
sys.path.insert(0, os.path.dirname(os.path.abspath(__file__)))
import hazard

NAME = "recurrent_scan__gqa_block_cached__glu_gated_glu__decode"
HEADER = open(os.path.join(os.path.dirname(os.path.abspath(__file__)), "header.txt")).read()

WS_QP, WS_P, WS_ML, WS_Y, WS_CNT, WS_EPOCH, WS_F, WS_G, WS_DIAG = 0x0, 0x20000, 0x60000, 0x70000, 0x7a000, 0x7c000, 0x80000, 0xb0000, 0x100000
L_FULL, L_DONE, L_QFLAG, L_QUE, L_Q, L_GU, L_SC, L_MO, L_MML, L_Y, RING0 = 0, 512, 528, 640, 1024, 1536, 2560, 2560, 6656, 8704, 19456
L_MID = 768
LOG2E = 0x3FB8AA3B
SCALE = 0x3DB504F3
VALID = "0xff00ff00", "0x00ff00ff"
NW = 6

DESC = """;
"""

DEF = dict(F=21, Fd=21, NSL=34, FW=12, pol="nt", wpol="nt", diag=False, spin=0x800000, AH=5, AHA=8, qdelay=8,
           segs=((5, 12), (4, 8), (4, 4), (3, 0)), own=(10, 11, 14, 15), pcs=(17, 21), R=240, X=8, AHM=12, early=16, dn=24, FG=8, FD=18, tpf=2, hold=1, Ft=None, Nt=24, Nv=0, rot=4, pre=False, cpf=True, opol='sc1', split=0, mlfull=1, l1d=0, wok=0, f3=0)

def build(**kw):
    P = dict(DEF); P.update(kw)
    F, Fd, NSL, FW, pol, wpol, diag = P["F"], P["Fd"], P["NSL"], P["FW"], P["pol"], P["wpol"], P["diag"]
    P.update(hl="sc1", hs="sc1", apol="sc0")
    L = []
    def A(s):
        for x in s.strip("\n").split("\n"):
            L.append(x.strip())
    sW, sH, sI, sC, sT, sK, sS, sU, sG = "s28", "s29", "s30", "s31", "s100", "s14", "s15", "s63", "s62"
    rK, rV, rWS, rX, rWQ, rWO, rWG, rWU, rWD, rOUT = ("s[32:35]", "s[36:39]", "s[40:43]", "s[44:47]", "s[48:51]",
                                                    "s[52:55]", "s[56:59]", "s[56:59]", "s[64:67]", "s[68:71]")
    def srd(r, ptr, n):
        b = int(r[2:r.index(":")])
        A(f"s_mov_b64 s[{b}:{b+1}], s[{ptr}:{ptr+1}]\ns_mov_b32 s{b+2}, {n}\ns_mov_b32 s{b+3}, 0x20000")
    def vr(b, n=4): return f"v[{b}:{b+n-1}]"
    M, KA, VA, VZ, Vm, VmL, Vl, VDA = 8, 12, 16, 17, 18, 19, 20, 21
    O, Q, K, V, S, PP, B, AD, WO, X, XR, RG, DQ = 24, 28, 44, 60, 76, 80, 84, 100, 108, 140, 149, 152, 224
    VPL = 105
    def stamp(k, set_=1):
        if diag and (diag == set_ or (k in (0, 1, 2, 4) and set_ == 1)) and not (diag == 3 and k == 4):
            A(f"s_memrealtime s[{84+2*k}:{85+2*k}]\ns_waitcnt lgkmcnt(0)")
    def dump_stamps():
        if diag:
            A(f"s_mul_i32 s76, s2, {NW}\ns_add_u32 s76, s76, {sW}\ns_lshl_b32 s76, s76, 5\ns_add_u32 s76, s76, {WS_DIAG}")
            A("s_mov_b64 exec, 1\nv_mov_b32 v1, s76")
            for k in range(8):
                A(f"v_mov_b32 v2, s{84+2*k}\nglobal_store_dword v1, v2, s[26:27] offset:{4*k}")
            A("s_mov_b64 exec, -1")
    npf = [0]
    def code_prefetch(r):
        npf[0] += 1
        A(f"s_getpc_b64 s[64:65]\nL_pc{npf[0]}:\ns_sub_u32 s64, s64, L_pc{npf[0]}-{NAME}_kernel\ns_subb_u32 s65, s65, 0")
        A(f"v_lshlrev_b32 v{r}, 7, v0\nv_add_u32 v{r+1}, 0x2000, v{r}\nv_min_u32 v{r+1}, L_code_end-{NAME}_kernel-4, v{r+1}")
        A(f"global_load_dword v{r+2}, v{r}, s[64:65]\nglobal_load_dword v{r+3}, v{r+1}, s[64:65]")
    def spin(lbl):
        A(f"s_sub_u32 s3, s3, 1\ns_cbranch_scc0 {lbl}\ns_endpgm")
    def wave_sum(v, t):
        for r in (8, 4, 2, 1):
            A(f"s_nop 1\nv_add_f32_dpp v{v}, v{v}, v{v} row_ror:{r} row_mask:0xf bank_mask:0xf")
        for op in ("v_permlane16_swap_b32", "v_permlane32_swap_b32"):
            A(f"v_mov_b32 v{t}, v{v}\ns_nop 1\n{op} v{t}, v{v}\nv_add_f32 v{v}, v{v}, v{t}")
    def rbf(d, s):
        A(f"v_cvt_pk_bf16_f32 v{d}, 0, v{s}")
    def bbuild(src, t, b):
        A(f"v_mov_b32_dpp v7, v{src} row_newbcast:{t} row_mask:0xf bank_mask:0x3\ns_nop 1")
        A(f"v_mov_b32_dpp v7, v{src} row_newbcast:{8+t} row_mask:0xf bank_mask:0xc")
        for v in range(4):
            A(f"v_and_b32 v{b+v}, v7, v{M+v}")
    def mfma(d, a, b, c=None):
        A(f"v_mfma_f32_16x16x32_bf16 {vr(d)}, {vr(a)}, {vr(b)}, {vr(d) if c is None else c}")
    def exec_valid():
        A(f"s_mov_b32 exec_lo, {VALID[1]}\ns_mov_b32 exec_hi, {VALID[0]}")
    VT, VFF = 107, 103
    def tagchk(acc, regs, first=False):
        regs = list(regs)
        if first:
            A(f"v_bitop3_b32 v{acc}, v{regs[0]}, v{regs[1]}, v{VT} bitop3:0x7e"); regs = regs[2:]
        for r in regs: A(f"v_bitop3_b32 v{acc}, v{acc}, v{r}, v{VT} bitop3:0xf6")
    def tagtest(acc, dst="vcc"):
        A(f"v_and_b32 v{acc}, 0xff, v{acc}\nv_cmp_ne_u32 {dst}, 0, v{acc}")
    def tagput(r):
        A(f"v_perm_b32 v{r}, v{r}, v{VT}, s101")
    def tagprep():
        A(f"s_add_u32 s82, {sT}, 0x9e3779b9\nv_mov_b32 v{VT}, s82\ns_mov_b32 s101, 0x07060500")

    A('; entry')
    A(f"{NAME}_kernel:")
    if diag == 6: A("s_memrealtime s[90:91]")
    A("s_cmp_ge_u32 s2, 256\ns_cbranch_scc1 L_end")
    A("s_load_dwordx8 s[4:11], s[0:1], 0\ns_load_dwordx2 s[12:13], s[0:1], 32\ns_load_dwordx4 s[16:19], s[0:1], 48\ns_load_dwordx8 s[20:27], s[0:1], 64")
    if diag and diag != 6:
        for k in range(8): A(f"s_mov_b32 s{84+2*k}, 0")
    A("v_lshrrev_b32 v1, 6, v0\nv_and_b32 v0, 63, v0")
    A(f"v_readfirstlane_b32 {sW}, v1")
    A(f"s_lshr_b32 {sH}, s2, 4\ns_and_b32 {sI}, s2, 15")
    A(f"s_mul_i32 {sK}, {sH}, 3\ns_add_u32 {sK}, {sK}, {sI}\ns_and_b32 {sK}, {sK}, 15")
    A(f"s_movk_i32 {sS}, {P['R']}\ns_cmp_ge_u32 {sK}, 11\ns_cselect_b32 {sS}, {P['R'] - P['X']}, {sS}")
    A(f"v_mov_b32 v{VZ}, 0\ns_mov_b32 s3, {P['spin']}")
    A(f"s_sub_u32 {sC}, {sW}, 1")
    A(f"s_cmp_lg_u32 {sW}, 0\ns_cbranch_scc1 L_other")
    A('; loader')
    own, pb, SN = P["own"], P["pcs"], P["R"]
    rest = [b for b in range(10, 24) if b not in own and b not in pb]
    RM = sum(1 << b for b in rest)
    dep = lambda v, bs: sum(((v >> i) & 1) << b for i, b in enumerate(bs))
    piece = sorted(dep(k, pb) for k in range(4))
    XD = P["X"]
    assert SN % 4 == 0 and XD % 4 == 0 and NSL % 2 == 0 and L_SC + 64 * (SN + max(z for _, z in P["segs"])) <= RING0 and list(own) == sorted(own)
    dt = (3 + max(F, Fd)) // 4
    RINGE = RING0 + NSL * 4096
    def sdep(dst, src, bs, tmp):
        i = 0; first = True
        while i < len(bs):
            k = i
            while k + 1 < len(bs) and bs[k + 1] == bs[k] + 1: k += 1
            A(f"s_and_b32 {tmp}, {src}, {((1 << (k - i + 1)) - 1) << i}\ns_lshl_b32 {dst if first else tmp}, {tmp}, {bs[i] - i}")
            if not first: A(f"s_or_b32 {dst}, {dst}, {tmp}")
            first = False; i = k + 1
    assert rest == sorted(rest)
    OM = sum(1 << b for b in own[:P["rot"]])
    def count_in(r, mask):
        if mask == RM and rest[-1] - rest[0] == len(rest) - 1:
            A(f"s_add_u32 {r}, {r}, {1 << rest[0]}"); return
        A(f"s_or_b32 {r}, {r}, {~mask & 0xffffffff}\ns_add_u32 {r}, {r}, 1\ns_and_b32 {r}, {r}, {mask}")
    LV, LG, rC = 20, 28, "s[44:47]"
    A("s_setprio 3")
    A(f"v_lshrrev_b32 v1, 4, v0\nv_xor_b32 v4, v1, v0\nv_and_b32 v4, 15, v4\nv_lshl_add_u32 v4, v1, 4, v4\nv_lshlrev_b32 v{LG}, 4, v4")
    for j in range(1, 4): A(f"v_xor_b32 v{LG+j}, {64*j + piece[j] - 1024*j}, v{LG}")
    for j in range(4): A(f"v_mov_b32 v{KA+j}, v{LG+j}")
    A(f"v_lshlrev_b32 v6, 3, v0\nv_mov_b32 v24, {-dt}\nv_bfrev_b32 v25, -2")
    A(f"ds_write_b64 v6, v[24:25] offset:{L_FULL}")
    A(f"v_lshlrev_b32 v1, 2, v0\nds_write_b32 v1, v{VZ} offset:{L_DONE}")
    A(f"ds_read_b128 v[8:11], v{VZ} offset:{L_DONE}")
    sdep("s72", sI, own, "s82")
    A(f"s_lshl_b32 s69, {sH}, 24\ns_or_b32 s72, s72, s69\ns_mov_b32 s76, 0\ns_mov_b32 s77, 0\ns_mov_b32 s70, 0")
    A(f"s_mov_b32 s79, 0\ns_mov_b32 s80, {RING0}\ns_mov_b32 s81, {2 - NSL}")
    A("s_waitcnt lgkmcnt(0)")
    srd(rC, 6, 0x10000000); srd(rK, 6, 0x10000000)
    stamp(0)
    if diag == 1: A("s_memtime s[66:67]\ns_waitcnt lgkmcnt(0)")
    def pair(f, lanes, srds, offs, bar=None):
        jp = min(j for j in range(4) if j - f >= 3 - 4 * dt)
        for j in range(8):
            if j == 4: A("s_add_u32 m0, s80, 0x1000")
            if bar is not None and j == P["early"] % 8: A(f"s_cmp_eq_u32 s81, {2 + 2 * (P['early'] // 8) - NSL}\ns_cbranch_scc1 L_ld_bar{bar}\nL_ld_barx{bar}:")
            A(f"s_waitcnt vmcnt({f-1})")
            A(f"buffer_load_dwordx4 v{lanes[j>>2]+(j&3)}, {srds[j>>2]}, {offs[j>>2]} offen offset:{(j&3)*1024} {pol} lds")
            if j & 3 == jp: A(f"v_add_u32 v24, 1, v24\nds_write_b64 v6, v[24:25] offset:{L_FULL}")
        A(f"s_add_u32 s80, s80, 0x2000\ns_cmp_eq_u32 s80, {RINGE}\ns_cselect_b32 s80, {RING0}, s80\ns_add_u32 s81, s81, 2")
    def static_loop(sfx, f, end=sS, bar=True):
        A(f"L_ld_loop{sfx}:")
        A("s_waitcnt lgkmcnt(0)\nv_min3_u32 v4, v8, v9, v10\nv_min_u32 v4, v4, v11")
        A("s_mov_b32 m0, s80\nv_readfirstlane_b32 s82, v4")
        A(f"ds_read_b128 v[8:11], v{VZ} offset:{L_DONE}")
        A(f"s_cmp_lt_i32 s82, s81\ns_cbranch_scc1 L_ld_full{sfx}")
        for r in ("s75", "s74"):
            A(f"s_or_b32 {r}, s76, s72")
            count_in("s76", RM)
            if OM:
                A(f"s_xor_b32 {r}, {r}, s77")
                count_in("s77", OM)
        pair(f, (LG, LG), (rC, rC), ("s75", "s74"), sfx if bar else None)
        A(f"s_add_u32 s79, s79, 2\ns_cmp_lt_u32 s79, {end}\ns_cbranch_scc1 L_ld_loop{sfx}")
    static_loop("", F)
    A(f"L_ld_nm:\nds_read_b32 v7, v{VZ} offset:{L_QFLAG+28}\ns_waitcnt lgkmcnt(0)\nv_readfirstlane_b32 s71, v7")
    A(f"v_mov_b32 v5, 0\ns_sub_u32 s71, s71, 1\ns_cbranch_scc1 L_ld_nmw\ns_add_u32 s79, s79, s71\ns_cmp_eq_u32 s71, 0\ns_cbranch_scc1 L_ld_midx")
    A(f"L_ld_mid:\nds_read_b64 v[26:27], v5 offset:{L_MID}")
    A("s_waitcnt lgkmcnt(0)\nv_min3_u32 v4, v8, v9, v10\nv_min_u32 v4, v4, v11\nv_readfirstlane_b32 s75, v26")
    A("v_readfirstlane_b32 s74, v27\nv_readfirstlane_b32 s82, v4\ns_mov_b32 m0, s80")
    A(f"ds_read_b128 v[8:11], v{VZ} offset:{L_DONE}")
    A("s_cmp_lt_i32 s82, s81\ns_cbranch_scc1 L_ld_fullm\nv_add_u32 v5, 8, v5")
    pair(F, (LG, LG), (rC, rC), ("s75", "s74"))
    A("s_sub_u32 s71, s71, 2\ns_cmp_lg_u32 s71, 0\ns_cbranch_scc1 L_ld_mid\nL_ld_midx:")
    A("s_cmp_lg_u32 s70, 0\ns_cbranch_scc1 L_ld_send")
    if diag == 1: A("s_memrealtime s[92:93]\ns_waitcnt lgkmcnt(0)")
    A(f"v_lshlrev_b32 v{LG}, 4, v0")
    for j in range(1, 4): A(f"v_or_b32 v{LG+j}, {piece[j] - 1024*j}, v{LG}")
    srd(rC, 8, 0x10000000)
    A("s_mov_b32 s76, 0\ns_mov_b32 s77, 0\ns_mov_b32 s70, 1\ns_mov_b32 s79, 0\ns_branch L_ld_loop")
    A("L_ld_send:")
    def que_read(n):
        A(f"s_and_b32 s83, {n}, 31\ns_lshl_b32 s83, s83, 2\nv_mov_b32 v5, s83\nds_read_b32 v7, v5 offset:{L_QUE}")
    stamp(3)
    A("L_ld_dre:")
    que_read("s79")
    A("L_ld_dyn:")
    A("s_waitcnt lgkmcnt(0)\nv_min3_u32 v4, v8, v9, v10\nv_min_u32 v4, v4, v11\nv_readfirstlane_b32 s73, v7")
    A("s_mov_b32 m0, s80\nv_readfirstlane_b32 s82, v4")
    A(f"ds_read_b128 v[8:11], v{VZ} offset:{L_DONE}")
    A("s_add_u32 s74, s79, 1\ns_lshr_b32 s75, s73, 16\ns_cmp_lg_u32 s75, s74\ns_cbranch_scc1 L_ld_dfull")
    A("s_cmp_lt_i32 s82, s81\ns_cbranch_scc1 L_ld_dfull")
    A("s_and_b32 s73, s73, 0xffff\ns_cmp_ge_u32 s73, 0x4000\ns_cbranch_scc1 L_ld_drain")
    A("s_lshl_b32 s75, s73, 10\ns_or_b32 s75, s75, s69\ns_mov_b32 s79, s74")
    que_read("s79")
    pair(Fd, (KA, LG), (rK, rC), ("s75", "s75"))
    A("s_branch L_ld_dyn")
    A("L_ld_drain:")
    stamp(1)
    A("s_lshl_b32 s82, s79, 1\nv_mov_b32 v25, s82")
    for r in range(dt - 1, -1, -1):
        A(f"s_waitcnt vmcnt({4*r})\nv_add_u32 v24, 1, v24\nds_write_b64 v6, v[24:25] offset:{L_FULL}")
    stamp(2)
    if diag and diag != 6: A(f"s_mov_b32 s94, s79\ns_sub_u32 s96, {P['spin']}, s3")
    if diag == 1: A("s_memtime s[64:65]\ns_waitcnt lgkmcnt(0)\ns_sub_u32 s98, s64, s66")
    dump_stamps()
    A("s_endpgm")
    A("L_ld_full:")
    spin("L_ld_loop")
    A("L_ld_bar:\ns_waitcnt lgkmcnt(0)\ns_barrier")
    if P["hold"]:
        A(f"L_ld_hold:\nds_read_b32 v4, v{VZ} offset:{L_QFLAG+20}\ns_waitcnt lgkmcnt(0)\nv_cmp_eq_u32 vcc, 4, v4\ns_cbranch_vccnz L_ld_barx")
        spin("L_ld_hold")
    else:
        A("s_branch L_ld_barx")
    A("L_ld_nmw:")
    spin("L_ld_nm")
    A("L_ld_fullm:")
    spin("L_ld_mid")
    A("L_ld_dfull:")
    spin("L_ld_dre")

    A("L_other:")
    if P["cpf"]:
        A(f"s_cmp_lg_u32 {sW}, 4\ns_cbranch_scc1 L_nopf")
        code_prefetch(220)
        A("L_nopf:")
    A("s_waitcnt lgkmcnt(0)")
    srd(rX, 4, 1152); srd(rWS, 26, 0x400000 if diag else 0x100000)
    A(f"s_load_dword {sT}, s[26:27], {WS_EPOCH}")
    def tpf_rest():
        A(f"s_lshl_b32 s82, {sH}, 24\ns_add_u32 s83, s82, 0xfffffc\ns_mov_b32 s80, {576*9216 - 4}\ns_mov_b32 s81, {4096*1152 - 4}")
        A("s_load_dword s35, s[20:21], 0\ns_load_dword s35, s[20:21], s80\ns_load_dword s35, s[6:7], s83")
        A("s_load_dword s35, s[8:9], s82\ns_load_dword s35, s[8:9], s83\ns_load_dword s35, s[12:13], 0\ns_load_dword s35, s[12:13], s81")
    if P["tpf"]:
        A("; one scalar read at each end of the ranges used later brings their address translations in early")
        A(f"s_cmp_lg_u32 {sW}, 1\ns_cbranch_scc1 L_tpf_done\ns_mov_b32 s80, {576*9216 - 4}")
        A("s_load_dword s35, s[16:17], 0\ns_load_dword s35, s[18:19], 0\ns_load_dword s35, s[16:17], s80\ns_load_dword s35, s[18:19], s80")
        if P["tpf"] == 1: tpf_rest()
        A("L_tpf_done:")
    stamp(0)
    A(f"s_cmp_lg_u32 {sW}, 5\ns_cbranch_scc1 L_pre_done")
    A("v_and_b32 v1, 7, v0\nv_lshrrev_b32 v4, 3, v0\nv_lshl_add_u32 v5, v1, 3, v4\nv_lshlrev_b32 v5, 1, v5")
    for k in range(9): A(f"buffer_load_ushort v{X+k}, v5, {rX}, 0 offen offset:{128*k}")
    A(f"s_and_b32 s82, {sI}, 3\ns_mul_i32 s82, s82, 288")
    for k in range(3): A(f"buffer_load_ushort v{XR+k}, v5, {rX}, s82 offen offset:{128*k}")
    srd(rWQ, 10, 576 * 8192)
    A("v_lshlrev_b32 v5, 4, v1\nv_lshl_add_u32 v5, v4, 13, v5")
    A(f"s_lshl_b32 s82, s82, 12\ns_lshl_b32 s83, {sH}, 9\ns_add_u32 s82, s82, s83")
    A(f"s_lshr_b32 s83, {sI}, 2\ns_lshl_b32 s83, s83, 7\ns_add_u32 s82, s82, s83")
    for p in range(18):
        A(f"buffer_load_dwordx4 {vr(RG+4*p)}, v5, {rWQ}, s82 offen {wpol}")
        if p < 17: A("s_add_u32 s82, s82, 0x10000")
    A(f"s_cmp_lg_u32 {sI}, 0\ns_cbranch_scc1 L_pre_done\ns_mov_b64 exec, 1")
    A(f"s_lshl_b32 s82, {sH}, 8\ns_add_u32 s82, s82, {WS_CNT}\nv_mov_b32 v24, 0\nv_mov_b32 v25, 0\nbuffer_store_dwordx2 v[24:25], v{VZ}, {rWS}, s82 offen sc1")
    A("s_mov_b64 exec, -1")
    VWO = 104 + 2
    def wo_prep():
        srd(rWO, 12, 4096 * 1152)
        A(f"s_sub_u32 s82, {sI}, 1\ns_cmp_gt_u32 s82, 8\ns_cselect_b32 s54, 0, s54")
        A("v_lshrrev_b32 v2, 5, v0\nv_lshlrev_b32 v2, 7, v2\nv_bfe_u32 v3, v0, 3, 2\nv_lshl_add_u32 v2, v3, 1, v2")
        A(f"v_mul_u32_u24 v2, 0x480, v2\nv_and_b32 v3, 7, v0\nv_lshl_add_u32 v{VWO}, v3, 4, v2")
        A(f"s_lshl_b32 s82, s82, 7\ns_lshl_b32 s83, {sH}, 3\ns_add_u32 s83, s83, {sC}\ns_mul_i32 s83, s83, {32*1152}\ns_add_u32 s48, s82, s83")
        for t in range(1, 4): A(f"s_add_u32 s{48+t}, s48, {8*t*1152}")
    def wo_loads():
        for t in range(8):
            A(f"buffer_load_dwordx4 {vr(WO+4*t)}, v{VWO}, {rWO}, s{48+(t&3)} offen offset:{(t>>2)*1152} {wpol}")
    A("L_pre_done:")
    A(f"s_barrier\ns_cmp_lg_u32 {sW}, 5\ns_cbranch_scc1 L_c_pre")
    def lane_consts():
        A('; lane masks of the diagonal B operands and the lane offset of a split-row accumulator')
        A("v_and_b32 v1, 1, v0\nv_lshlrev_b32 v1, 4, v1\nv_mov_b32 v4, 0xffff\nv_lshlrev_b32 v4, v1, v4\nv_bfe_u32 v5, v0, 1, 2")
        for v in range(4):
            A(f"v_cmp_eq_u32 vcc, {v}, v5\ns_nop 1\nv_cndmask_b32 v{M+v}, 0, v4, vcc")
        A(f"v_bfe_u32 v4, v0, 4, 1\nv_and_b32 v5, 7, v0\nv_lshl_add_u32 v4, v4, 3, v5\nv_lshlrev_b32 v{VPL}, 4, v4")
    lane_consts()
    stamp(3, 2)
    A("s_waitcnt vmcnt(21)")
    stamp(5, 2)
    for k in range(9): A(f"v_lshlrev_b32 v{X+k}, 16, v{X+k}")
    A(f"v_add_f32 v1, v{X}, v{X+1}")
    for k in range(2, 9): A(f"v_add_f32 v1, v1, v{X+k}")
    wave_sum(1, 2)
    A("s_mov_b32 s82, 0x3ae38e39\ns_mov_b32 s83, 0x44100000")
    def div576(v):
        A(f"v_mul_f32 v2, s82, v{v}\nv_fma_f32 v3, -v2, s83, v{v}\nv_fma_f32 v{v}, v3, s82, v2")
    div576(1)
    A(f"v_sub_f32 v2, v{X}, v1\nv_mul_f32 v4, v2, v2")
    for k in range(1, 9): A(f"v_sub_f32 v2, v{X+k}, v1\nv_fmac_f32 v4, v2, v2")
    wave_sum(4, 2)
    div576(4)
    rbf(1, 1); rbf(4, 4)
    A("v_add_f32 v4, 0x3727c5ac, v4"); rbf(4, 4)
    A("v_sqrt_f32 v5, v4\ns_nop 0\nv_rcp_f32 v6, v5\nv_fma_f32 v3, -v5, v5, v4\nv_mul_f32 v6, 0.5, v6\nv_fma_f32 v5, v3, v6, v5")
    rbf(5, 5)
    A("v_rcp_f32 v6, v5")
    def norm(r):
        A(f"v_sub_f32 v2, v{r}, v1"); rbf(2, 2)
        A(f"v_mul_f32 v3, v2, v6\nv_fma_f32 v4, -v3, v5, v2\nv_fma_f32 v3, v4, v6, v3\nv_cvt_pk_bf16_f32 v{r}, v3, v3")
    A("s_waitcnt vmcnt(18)")
    for k in range(3):
        A(f"v_lshlrev_b32 v{XR+k}, 16, v{XR+k}"); norm(XR + k)
    A("v_lshlrev_b32 v4, 2, v0\nv_mov_b32 v5, 1")
    for k in range(3): A(f"ds_write_b32 v4, v{XR+k} offset:{L_GU + 256*k}")
    A(f"ds_write_b32 v{VZ}, v5 offset:{L_QFLAG+16}")
    A("s_nop 0")
    stamp(6, 2)
    for p in range(18):
        bbuild(XR + p // 8, p % 8, B + 4 * (p & 1))
        A(f"s_waitcnt vmcnt({17 - p})\ns_nop 0")
        mfma(DQ, RG + 4 * p, B + 4 * (p & 1), "0" if p == 0 else None)
    A("s_waitcnt lgkmcnt(0)")
    tagprep()
    A(f"s_lshl_b32 s82, {sH}, 12\ns_and_b32 s83, {sI}, 3\ns_lshl_b32 s83, s83, 10\ns_add_u32 s82, s82, s83")
    A(f"s_lshr_b32 s83, {sI}, 2\ns_lshl_b32 s83, s83, 8\ns_add_u32 s82, s82, s83")
    for i in range(4): A(f"v_mov_b32_dpp v{V+i}, v{DQ+i} row_ror:8 row_mask:0xf bank_mask:0xf")
    A("s_nop 0")
    for i in range(4): A(f"v_permlane32_swap_b32 v{V+i}, v{V+4+i}")
    for i in range(4): A(f"v_add_f32 v{K+i}, v{DQ+i}, v{V+4+i}")
    for i in range(4): A(f"v_bfi_b32 v{K+i}, 15, v{VT}, v{K+i}")
    stamp(7, 2)
    A("s_mov_b64 exec, 0x00ff00ff\ns_waitcnt vmcnt(0)")
    A(f"buffer_store_dwordx4 {vr(K)}, v{VPL}, {rWS}, s82 offen sc1")
    A("s_mov_b64 exec, -1")
    stamp(1)
    A("L_qgather:")
    A(f"v_lshlrev_b32 v4, 4, v0\ns_lshl_b32 s82, {sH}, 12")
    if P["qdelay"] is not None:
        A(f"L_qdel:\nds_read_b32 v1, v{VZ} offset:{L_FULL}\ns_waitcnt lgkmcnt(0)\nv_cmp_le_i32 vcc, {P['qdelay']}, v1\ns_cbranch_vccnz L_qdel_ok")
        A("s_sleep 2")
        spin("L_qdel")
        A("L_qdel_ok:")
    A("L_qpoll:")
    for p in range(4): A(f"buffer_load_dwordx4 {vr(RG+4*p)}, v4, {rWS}, s82 offen offset:{p*1024} sc1")
    for p in range(4):
        A(f"s_waitcnt vmcnt({3-p})")
        tagchk(1, range(RG + 4 * p, RG + 4 * p + 4), p == 0)
    A("v_and_b32 v1, 15, v1\nv_cmp_ne_u32 vcc, 0, v1")
    A("s_cbranch_vccz L_qready\ns_sleep 2")
    spin("L_qpoll")
    A("L_qready:")
    stamp(2)
    for i in range(4): A(f"v_add_f32 v{RG+i}, v{RG+i}, v{RG+4+i}\nv_add_f32 v{RG+8+i}, v{RG+8+i}, v{RG+12+i}")
    for i in range(4): A(f"v_add_f32 v{RG+i}, v{RG+i}, v{RG+8+i}")
    A("v_lshrrev_b32 v4, 3, v0\nv_and_b32 v5, 7, v0\nv_lshl_add_u32 v4, v4, 5, v5\nv_lshlrev_b32 v4, 1, v4")
    A(f"v_cvt_pk_bf16_f32 v{RG}, v{RG}, v{RG+1}\nv_cvt_pk_bf16_f32 v{RG+4}, v{RG+2}, v{RG+3}")
    A(f"ds_write_b16 v4, v{RG} offset:{L_Q}\nds_write_b16_d16_hi v4, v{RG} offset:{L_Q+16}")
    A(f"ds_write_b16 v4, v{RG+4} offset:{L_Q+32}\nds_write_b16_d16_hi v4, v{RG+4} offset:{L_Q+48}")
    A(f"v_mov_b32 v5, 1\ns_waitcnt lgkmcnt(0)\nds_write_b32 v{VZ}, v5 offset:{L_QFLAG}")
    if P["pre"]:
        A('; one plain read of the lines this workgroup publishes at the end')
        A("v_lshrrev_b32 v5, 4, v0\nv_and_b32 v6, 15, v0\nv_lshlrev_b32 v6, 4, v6\nv_lshl_add_u32 v5, v5, 12, v6")
        A(f"s_lshl_b32 s82, {sH}, 14\ns_lshl_b32 s83, {sI}, 8\ns_add_u32 s82, s82, s83\ns_add_u32 s82, s82, {WS_P}")
        A(f"s_lshl_b32 s80, {sH}, 12\ns_lshl_b32 s83, {sI}, 6\ns_add_u32 s80, s80, s83\ns_add_u32 s80, s80, {WS_ML}")
        A(f"s_lshl_b32 s81, {sI}, 12\ns_lshl_b32 s83, {sH}, 8\ns_add_u32 s81, s81, s83\ns_add_u32 s81, s81, {WS_Y - 4096}")
        A("v_lshlrev_b32 v4, 10, v0")
        A(f"buffer_load_dwordx4 v[24:27], v5, {rWS}, s82 offen\ns_mov_b64 exec, 15\nbuffer_load_dwordx4 v[28:31], v4, {rWS}, s80 offen")
        A(f"s_mov_b64 exec, 0xffff\nbuffer_load_dwordx4 v[32:35], v6, {rWS}, s81 offen")
        A("s_mov_b64 exec, -1\ns_waitcnt vmcnt(0)")
    A(f"s_mov_b32 s79, {sS}\ns_mul_i32 s72, {sH}, 3\ns_sub_u32 s72, 11, s72")
    A(f"s_lshl_b32 s78, {sH}, 8\ns_add_u32 s78, s78, {WS_CNT}\nv_mov_b32 v4, s78\nv_mov_b32 v5, 1\ns_mov_b64 exec, 1")
    def que_write(val, mid=False):
        if val == "s80":
            A('; pool position -> (row s73, column s71): the donated rows of five columns, then the last rows of all sixteen')
            A(f"s_mul_i32 s73, s80, 52429\ns_lshr_b32 s73, s73, 18\ns_mul_i32 s71, s73, 5\ns_sub_u32 s71, s80, s71\ns_add_u32 s71, s71, s72\ns_add_u32 s73, s73, {SN - XD}")
            A(f"s_add_u32 s74, s80, {16*SN - 5*XD}\ns_lshr_b32 s75, s74, 4\ns_cmp_lt_u32 s80, {5*XD}\ns_cselect_b32 s73, s73, s75\ns_cselect_b32 s71, s71, s74")
            if OM: A(f"s_and_b32 s74, s73, {(1 << P['rot']) - 1}\ns_xor_b32 s71, s71, s74")
            sdep("s74", "s73", [b - 10 for b in rest], "s75")
            sdep("s73", "s71", [b - 10 for b in own], "s75")
            A("s_or_b32 s74, s74, s73"); val = "s74"
        if mid:
            A(f"s_lshl_b32 s74, s74, 10\ns_lshl_b32 s75, {sH}, 24\ns_or_b32 s74, s74, s75\nv_mov_b32 v2, s74\nds_write_b32 v1, v2 offset:{L_MID}\nv_add_u32 v1, 4, v1")
            return
        A(f"s_and_b32 s82, s79, 31\ns_lshl_b32 s82, s82, 2\ns_add_u32 s79, s79, 1\ns_lshl_b32 s83, s79, 16\ns_or_b32 s83, s83, {val}")
        A(f"v_mov_b32 v1, s82\nv_mov_b32 v2, s83\nds_write_b32 v1, v2 offset:{L_QUE}")
    def demand(lbl, n, ahead):
        A(f"{lbl}:\nds_read_b32 v1, v{VZ} offset:{L_FULL}\ns_waitcnt lgkmcnt(0)\nv_readfirstlane_b32 s78, v1")
        A(f"s_add_u32 s78, s78, {dt + 2*ahead}\ns_ashr_i32 s78, s78, 1\ns_cmp_le_i32 {n}, s78\ns_cbranch_scc1 {lbl}_go\ns_sleep 2")
        spin(lbl)
        A(f"{lbl}_go:")
    npool = 5 * XD + 16 * (256 - SN)
    c0 = 0; t0 = 0; chain = []
    for cnt, sz in P["segs"]:
        chain.append((c0, t0, sz)); c0 += cnt; t0 += cnt * sz
        assert sz % 4 == 0 and sz <= 32
    nclaim = npool - t0
    assert c0 == 16 and t0 < npool and P["AH"] >= 3
    A(f"s_sub_u32 s81, {sS}, {dt + P['AHM']}")
    A(f"L_ca:\nds_read_b32 v1, v{VZ} offset:{L_FULL}\ns_waitcnt lgkmcnt(0)\nv_cmp_le_i32 vcc, s81, v1\ns_cbranch_vccnz L_ca_go\ns_sleep 2")
    spin("L_ca")
    A(f"L_ca_go:\nglobal_atomic_add v20, v4, v5, s[26:27] offset:4 {P['apol']}\ns_waitcnt vmcnt(0)\nv_readfirstlane_b32 s78, v20")
    for i, (c, t, sz) in enumerate(chain):
        if i == 0: A(f"s_movk_i32 s80, {t - c*sz}\ns_mov_b32 s81, {sz}")
        else: A(f"s_cmp_ge_u32 s78, {c}\ns_cselect_b32 s80, {t - c*sz}, s80\ns_cselect_b32 s81, {sz}, s81")
    A("s_mul_i32 s78, s78, s81\ns_add_u32 s80, s80, s78\ns_add_u32 s79, s79, s81\ns_add_u32 s77, s81, 1\nv_mov_b32 v1, 0")
    A("s_cmp_eq_u32 s81, 0\ns_cbranch_scc1 L_ca_done\nL_ca_put:")
    que_write("s80", True)
    A("s_add_u32 s80, s80, 1\ns_sub_u32 s81, s81, 1\ns_cmp_lg_u32 s81, 0\ns_cbranch_scc1 L_ca_put")
    A(f"L_ca_done:\nv_mov_b32 v2, s77\nds_write_b32 v{VZ}, v2 offset:{L_QFLAG+28}")
    A("s_mov_b32 s76, s79\ns_add_u32 s77, s76, 4")
    for k in range(4):
        demand(f"L_cl_{k}", "s76", P["AH"])
        A(f"global_atomic_add v{20+k}, v4, v5, s[26:27] {P['apol']}")
        A(f"s_add_u32 s76, s76, 1\ns_cmp_lt_u32 s76, s77\ns_cbranch_scc1 L_cl_{(k+1)%4}")
        A(f"s_waitcnt vmcnt(3)\nv_readfirstlane_b32 s80, v{20+(k+1)%4}")
        A(f"s_cmp_ge_u32 s80, {nclaim}\ns_cbranch_scc1 L_cl_end\ns_add_u32 s80, s80, {t0}")
        que_write("s80")
    A("s_branch L_cl_0")
    A("L_cl_end:")
    que_write("0xffff")
    A("s_mov_b64 exec, -1")
    A(f"s_cmp_lg_u32 {sI}, 10\ns_cbranch_scc1 L_e_done\ns_cmp_gt_u32 {sH}, 8\ns_cbranch_scc1 L_e_done")
    srd(rOUT, 22, 1152)
    A("v_lshrrev_b32 v4, 5, v0\nv_and_b32 v5, 3, v0\nv_lshl_add_u32 v4, v4, 2, v5\nv_bfe_u32 v5, v0, 2, 3\nv_lshl_add_u32 v4, v4, 3, v5")
    A(f"v_lshlrev_b32 v2, 1, v4\ns_lshl_b32 s79, {sH}, 7")
    A(f"buffer_load_ushort v3, v2, {rX}, s79 offen")
    A(f"v_lshlrev_b32 v4, 2, v0\ns_lshl_b32 s82, {sH}, 12")
    def issue(b):
        for p in range(16): A(f"buffer_load_dword v{b+p}, v4, {rWS}, s80 offen offset:{256*p} {P['hl']}")
    def check(b, dst, behind, ok):
        for p in range(0, 16, 2):
            A(f"s_waitcnt vmcnt({behind+14-p})")
            tagchk(1, (b + p, b + p + 1), p == 0)
            if p == 0: A(f"v_add_f32 v{dst}, v{b}, v{b+1}")
            else: A(f"v_add_f32 v{dst}, v{dst}, v{b+p}\nv_add_f32 v{dst}, v{dst}, v{b+p+1}")
        tagtest(1)
        A(f"s_cbranch_vccz {ok}")
    A(f"s_mul_i32 s81, {sH}, {72*256}\ns_add_u32 s81, s81, {WS_F}")
    A("L_f_ffn:\ns_mov_b32 s80, s81\nv_mov_b32 v22, 0")
    def f_load(p):
        A(f"buffer_load_dword v{RG+p}, v4, {rWS}, s80 offen offset:{256*(p&15)} sc1")
        if p & 15 == 15: A("s_add_u32 s80, s80, 0x1000")
    for p in range(48): f_load(p)
    for p in range(0, 72, 2):
        A(f"s_waitcnt vmcnt({min(46, 70 - p)})")
        if p + 48 < 72: f_load(p + 48); f_load(p + 49)
        tagchk(1, (RG + p, RG + p + 1), p == 0)
        A(f"v_add_f32 v22, v22, v{RG+p}\nv_add_f32 v22, v22, v{RG+p+1}")
    tagtest(1)
    A("s_cbranch_vccz L_f_ffn_ok\ns_sleep 16")
    spin("L_f_ffn")
    A("L_f_ffn_ok:")
    rbf(22, 22)
    A(f"v_mul_f32 v5, {hex(LOG2E ^ 0x80000000)}, v22\nv_exp_f32 v5, v5\ns_nop 0\nv_add_f32 v5, 1.0, v5\nv_rcp_f32 v5, v5\ns_nop 0\nv_mul_f32 v22, v22, v5")
    rbf(22, 22)
    A("v_lshlrev_b32 v3, 16, v3")
    A(f"L_f_wait:\nds_read_b64 v[24:25], v{VZ} offset:{L_FULL}\ns_waitcnt lgkmcnt(0)\nv_cmp_ge_i32 vcc, v24, v25\ns_cbranch_vccnz L_f_go\ns_sleep 4")
    spin("L_f_wait")
    A("L_f_go:")
    A(f"s_add_u32 s80, s82, {WS_Y}")
    issue(RG)
    if P["f3"]:
        issue(RG + 16)
        A("L_f_att:")
        for i in range(3): issue(RG + 16 * ((i + 2) % 3)); check(RG + 16 * i, 23, 32, "L_f_att_ok")
    else:
        A("L_f_att:")
        issue(RG + 16); check(RG, 23, 16, "L_f_att_ok"); issue(RG); check(RG + 16, 23, 16, "L_f_att_ok")
    spin("L_f_att")
    A("L_f_att_ok:")
    rbf(23, 23)
    A("v_mul_f32 v23, v23, v22"); rbf(23, 23)
    A(f"v_add_f32 v23, v23, v3\nv_cvt_pk_bf16_f32 v23, v23, v23\nbuffer_store_short v23, v2, {rOUT}, s79 offen {P['opol']}")
    A(f"s_cmp_lg_u32 {sH}, 0\ns_cbranch_scc1 L_e_done")
    A(f"s_mov_b64 exec, 1\nv_mov_b32 v4, {WS_EPOCH}\nglobal_store_dword v4, v{VT}, s[26:27] sc1\ns_mov_b64 exec, -1\ns_branch L_e_done")

    A('; consumers')
    A("L_cons_main:")
    if P["tpf"] == 2:
        A(f"s_cmp_lg_u32 {sW}, 1\ns_cbranch_scc1 L_tpf2_done")
        tpf_rest()
        A("L_tpf2_done:")
    VSC = 148
    A("v_and_b32 v1, 15, v0\nv_lshrrev_b32 v4, 4, v0\nv_xor_b32 v5, v1, v4\nv_lshlrev_b32 v5, 4, v5")
    A(f"v_lshl_add_u32 v{KA}, v1, 8, v5")
    for ks in range(1, 4): A(f"v_xor_b32 v{KA+ks}, {64*ks}, v{KA}")
    A(f"v_lshlrev_b32 v5, 4, v1\nv_lshl_add_u32 v{VA}, v4, 10, v5")
    A(f"v_mov_b32 v{Vm}, 0xff800000\nv_mov_b32 v{VmL}, 0xff800000\nv_mov_b32 v{Vl}, 0")
    for i in range(4): A(f"v_mov_b32 v{O+i}, 0")
    A(f"s_lshl_b32 s82, {sC}, 2\nv_mov_b32 v{VDA}, s82")
    if diag == 3:
        for i in range(3): A(f"v_mov_b32 v{225+i}, 0")
        A("s_mov_b32 s86, 0")
    A(f"v_lshrrev_b32 v2, 3, v0\nv_lshlrev_b32 v2, 3, v2\ns_lshl_b32 s82, {sC}, 6\nv_add_u32 v{VSC}, s82, v2")
    A("v_bfe_u32 v5, v0, 3, 1\nv_lshlrev_b32 v5, 8, v5\nv_lshl_add_u32 v5, v4, 4, v5")
    A(f"s_mov_b32 s72, {hex(SCALE)}\ns_mov_b32 s73, {hex(LOG2E)}\ns_mov_b32 s74, 0xffff0000")
    A(f"s_mov_b32 s76, {sC}\ns_lshl_b32 s77, {sC}, 12\ns_add_u32 s77, s77, {RING0}\ns_mov_b32 s78, 0")
    A(f"s_mov_b32 s60, {sS}\ns_mov_b32 s61, 0")
    A(f"s_add_u32 s34, {sC}, {P['dn']}\ns_cmp_lt_i32 {sU}, 0\ns_cselect_b32 s34, -1, s34")
    assert L_SC + 64 * (SN - XD - NSL - 8) >= L_Y + 2048
    wo_prep()
    MA, MRG = X, RG
    for i in range(1, 4):
        A(f"s_add_u32 s82, {sC}, {i}\ns_and_b32 s82, s82, 3\ns_lshl_b32 s83, s82, 9\ns_lshl_b32 s82, s82, 10")
        A(f"v_lshl_add_u32 v{MA+2*i-2}, v0, 3, s83\nv_lshl_add_u32 v{MA+2*i-1}, v0, 4, s82")
    A(f"v_lshrrev_b32 v2, 4, v0\nv_and_b32 v3, 15, v0\nv_lshlrev_b32 v3, 4, v3\nv_lshl_add_u32 v{MA+6}, v2, 12, v3")
    A(f"v_lshl_add_u32 v{MA+7}, v2, 10, v3" if P["mlfull"] else f"v_and_b32 v3, 8, v0\nv_lshl_add_u32 v{MA+7}, v2, 10, v3")
    A(f"s_lshl_b32 s56, {sH}, 14\ns_add_u32 s56, s56, {WS_P}\ns_lshl_b32 s83, {sI}, 8\ns_add_u32 s58, s56, s83")
    A(f"s_lshl_b32 s83, {sC}, 12\ns_add_u32 s56, s56, s83")
    A(f"s_lshl_b32 s57, {sH}, 12\ns_add_u32 s57, s57, {WS_ML}\ns_lshl_b32 s83, {sI}, 6\ns_add_u32 s59, s83, s57")
    A(f"s_lshl_b32 s83, {sC}, 10\ns_add_u32 s57, s57, s83\ns_mov_b32 s70, -1\ns_brev_b32 s75, -2")
    if P["wok"]: A("s_mov_b32 s62, 1")
    def merge_reads():
        A(f"ds_read_b32 v{MRG+18}, v{VZ} offset:{L_QFLAG+4}")
        for i in range(3): A(f"ds_read_b64 {vr(MRG+12+2*i, 2)}, v{MA+2*i} offset:{L_MML}")
        for i in range(3): A(f"ds_read_b128 {vr(MRG+4*i)}, v{MA+2*i+1} offset:{L_MO}")
    A(f"L_qwait:\nds_read_b32 v1, v{VZ} offset:{L_QFLAG}\ns_waitcnt lgkmcnt(0)\nv_readfirstlane_b32 s79, v1")
    A("s_cmp_lg_u32 s79, 0\ns_cbranch_scc1 L_qgo\ns_sleep 1")
    spin("L_qwait")
    A("L_qgo:")
    tagprep()
    for ks in range(4): A(f"ds_read_b128 {vr(Q+4*ks)}, v5 offset:{L_Q + 64*ks}")
    A("s_waitcnt lgkmcnt(0)")
    stamp(4)
    def landed(lbl, item):
        A(f"s_cmp_lt_i32 {item}, s78\ns_cbranch_scc1 {lbl}_go")
        A(f"{lbl}_poll:\nds_read_b32 v22, v{VZ} offset:{L_FULL}\ns_waitcnt lgkmcnt(0)\nv_readfirstlane_b32 s78, v22")
        A(f"s_cmp_lt_i32 {item}, s78\ns_cbranch_scc1 {lbl}_go")
        spin(f"{lbl}_poll")
        A(f"{lbl}_go:")
    ntr = [0]
    def trace():
        if diag == 3:
            ntr[0] += 1; n = ntr[0]
            A(f"s_memrealtime s[84:85]\ns_waitcnt lgkmcnt(0)\ns_and_b32 m0, s86, 63\ns_cmp_lt_u32 s86, 64\ns_cbranch_scc0 L_tr{n}a")
            A(f"v_writelane_b32 v225, s84, m0\ns_branch L_tr{n}c\nL_tr{n}a:\ns_cmp_lt_u32 s86, 128\ns_cbranch_scc0 L_tr{n}b\nv_writelane_b32 v226, s84, m0\ns_branch L_tr{n}c")
            A(f"L_tr{n}b:\nv_writelane_b32 v227, s84, m0\nL_tr{n}c:\ns_add_u32 s86, s86, 1")
    def slot_next(step):
        A(f"s_add_u32 s77, s77, {step}\ns_sub_u32 s79, s77, {NSL*4096}\ns_cmp_ge_u32 s77, {RINGE}\ns_cselect_b32 s77, s79, s77")
    def k_reads():
        for ks in range(4): A(f"v_add_u32 v{AD+ks}, s77, v{KA+ks}\nds_read_b128 {vr(K+4*ks)}, v{AD+ks}")
    def qk():
        for ks in range(4):
            A(f"s_waitcnt lgkmcnt({3-ks})")
            mfma(S, K + 4 * ks, Q + 4 * ks, "0" if ks == 0 else None)
    def v_reads(off):
        for r in range(4): A(f"ds_read_b128 {vr(V+4*r)}, v{AD+4} offset:{off + 256*r}")
    def softmax(lbl):
        A(f"v_max3_f32 v22, v{S}, v{S+1}, v{S+2}\nv_max_f32 v22, v22, v{S+3}")
        A(f"v_cmp_gt_f32 vcc, v22, v{Vm}\ns_cbranch_vccnz {lbl}_rescale\n{lbl}_cont:")
        for i in range(4): A(f"v_fma_f32 v{PP+i}, v{S+i}, s73, -v{VmL}")
        for i in range(4): A(f"v_exp_f32 v{PP+i}, v{PP+i}")
        A(f"s_waitcnt lgkmcnt(0)\nds_write_b32 v{VDA}, v{AD} offset:{L_DONE}")
    def pv():
        for i in range(4):
            A(f"v_cvt_pk_bf16_f32 v22, v{PP+i}, v{PP+i}")
            for v in range(4): A(f"v_and_b32 v{B+4*i+v}, v22, v{M+v}")
            A(f"v_add_f32 v{Vl}, v{Vl}, v{PP+i}")
            if i > 0: mfma(O, V + 4 * (i - 1), B + 4 * (i - 1))
        A("s_nop 0")
        mfma(O, V + 12, B + 12)
    def rescale(lbl):
        A(f"{lbl}_rescale:")
        for op in ("v_permlane16_swap_b32", "v_permlane32_swap_b32"):
            A(f"v_mov_b32 v23, v22\ns_nop 1\n{op} v23, v22\nv_max_f32 v22, v22, v23")
        A(f"v_max_f32 v{Vm}, v{Vm}, v22\nv_mul_f32 v22, s73, v{Vm}\nv_sub_f32 v23, v{VmL}, v22\nv_exp_f32 v23, v23\nv_mov_b32 v{VmL}, v22")
        A(f"v_mul_f32 v{Vl}, v{Vl}, v23")
        for i in range(4): A(f"v_mul_f32 v{O+i}, v{O+i}, v23")
        A(f"s_branch {lbl}_cont")
    A(f"v_mov_b32 v150, v23\ns_cmp_ge_i32 {sU}, 0\ns_cbranch_scc1 L_c_wd")
    A("L_k:")
    landed("L_k", "s76")
    trace()
    k_reads()
    slot_next(0x4000)
    A(f"s_add_u32 s76, s76, 1\nv_mov_b32 v22, s76\ns_add_u32 s76, s76, 3")
    qk()
    A(f"ds_write_b32 v{VDA}, v22 offset:{L_DONE}\ns_mov_b32 exec_lo, 0x01010101\ns_mov_b32 exec_hi, 0x01010101\ns_nop 4")
    for i in range(4): A(f"v_cvt_pk_bf16_f32 v{S+i}, 0, v{S+i}")
    for i in range(4): A(f"v_mul_f32 v{S+i}, s72, v{S+i}")
    A(f"v_cvt_pk_bf16_f32 v22, v{S}, v{S+1}\nv_cvt_pk_bf16_f32 v23, v{S+2}, v{S+3}")
    A(f"ds_write_b64 v{VSC}, v[22:23] offset:{L_SC}\ns_mov_b64 exec, -1\nv_add_u32 v{VSC}, 0x100, v{VSC}")
    A("s_cmp_eq_u32 s76, s34\ns_cbranch_scc1 L_c_down\nL_k_on:\ns_cmp_lt_u32 s76, s60\ns_cbranch_scc1 L_k")
    A("s_cmp_lg_u32 s61, 0\ns_cbranch_scc1 L_k_end")
    A(f"L_k_nm:\nds_read_b32 v22, v{VZ} offset:{L_QFLAG+28}\ns_waitcnt lgkmcnt(0)\nv_readfirstlane_b32 s82, v22\ns_sub_u32 s82, s82, 1\ns_cbranch_scc0 L_k_nm_ok")
    spin("L_k_nm")
    A("L_k_nm_ok:\ns_add_u32 s60, s60, s82\ns_lshl_b32 s61, s60, 1\ns_branch L_k_on\nL_k_end:")
    A(f"s_lshl_b32 s82, s60, 6\nv_subrev_u32 v{VSC}, s82, v{VSC}")
    A("L_v:")
    landed("L_v", "s76")
    trace()
    A(f"ds_read_b64 v[22:23], v{VSC} offset:{L_SC}\nv_add_u32 v{AD+4}, s77, v{VA}")
    v_reads(0)
    slot_next(0x4000)
    A(f"v_add_u32 v{VSC}, 0x100, v{VSC}\ns_add_u32 s76, s76, 1\nv_mov_b32 v{AD}, s76\ns_add_u32 s76, s76, 3")
    A(f"s_waitcnt lgkmcnt(4)\nv_lshlrev_b32 v{S}, 16, v22\nv_and_b32 v{S+1}, s74, v22\nv_lshlrev_b32 v{S+2}, 16, v23\nv_and_b32 v{S+3}, s74, v23")
    softmax("L_v"); pv()
    A("s_cmp_lt_u32 s76, s61\ns_cbranch_scc1 L_v")
    A(f"s_add_u32 s76, s76, {sC}\ns_lshl_b32 s82, {sC}, 12")
    slot_next("s82")
    A("L_c_top:\ns_cmp_lt_i32 s76, s78\ns_cbranch_scc1 L_c_go\ns_cmp_ge_i32 s76, s75\ns_cbranch_scc1 L_c_exit")
    A(f"L_c_poll:\nds_read_b64 v[22:23], v{VZ} offset:{L_FULL}\ns_waitcnt lgkmcnt(0)")
    A("v_readfirstlane_b32 s78, v22\nv_readfirstlane_b32 s75, v23\ns_add_u32 s70, s75, 6")
    A("s_cmp_lt_i32 s76, s78\ns_cbranch_scc1 L_c_go\ns_cmp_ge_i32 s76, s75\ns_cbranch_scc1 L_c_exit")
    spin("L_c_poll")
    A("L_c_vwait:")
    A(f"ds_read_b64 v[22:23], v{VZ} offset:{L_FULL}\ns_waitcnt lgkmcnt(0)\nv_readfirstlane_b32 s78, v22\nv_readfirstlane_b32 s75, v23")
    A("s_add_u32 s70, s75, 6\ns_cmp_lt_i32 s82, s78\ns_cbranch_scc1 L_c_v")
    spin("L_c_vwait")
    rescale("L_v"); rescale("L_c")
    A("L_c_go:")
    trace(); trace()
    k_reads()
    A(f"v_add_u32 v{AD+4}, s77, v{VA}")
    slot_next(0x8000)
    qk()
    if P["wok"]:
        A("s_add_u32 s82, s76, 8\ns_cmp_lg_u32 s82, s70\ns_cbranch_scc1 L_c_nowo\ns_mov_b32 s62, 0")
        wo_loads()
        A("L_c_nowo:")
    A("s_add_u32 s82, s76, 1\ns_cmp_lt_i32 s82, s78\ns_cbranch_scc0 L_c_vwait\nL_c_v:")
    v_reads(4096)
    A(f"s_add_u32 s76, s76, 2\nv_mov_b32 v{AD}, s76\ns_add_u32 s76, s76, 6")
    for i in range(4): A(f"v_cvt_pk_bf16_f32 v{S+i}, 0, v{S+i}")
    for i in range(4): A(f"v_mul_f32 v{S+i}, s72, v{S+i}")
    for i in range(4): A(f"v_cvt_pk_bf16_f32 v{S+i}, 0, v{S+i}")
    softmax("L_c")
    A("s_cmp_lg_u32 s76, s70\ns_cbranch_scc1 L_c_pvb\ns_mov_b32 s61, 0")
    merge_reads()
    A("L_c_pvb:")
    pv()
    A("s_branch L_c_top")
    A("L_c_exit:")
    if diag == 3:
        A(f"s_lshl_b32 s84, s2, 2\ns_add_u32 s84, s84, {sC}\ns_lshl_b32 s84, s84, 10\ns_add_u32 s84, s84, {WS_DIAG + 0x20000}\nv_lshlrev_b32 v1, 2, v0")
        for i in range(3): A(f"buffer_store_dword v{225+i}, v1, {rWS}, s84 offen offset:{256*i}")
        A(f"buffer_store_dword v{VZ}, v1, {rWS}, s84 offen offset:768")
    stamp(5)
    for op in ("v_permlane16_swap_b32", "v_permlane32_swap_b32"):
        A(f"v_mov_b32 v23, v{Vl}\ns_nop 1\n{op} v23, v{Vl}\nv_add_f32 v{Vl}, v{Vl}, v23")
    A("s_cmp_eq_u32 s61, 0\ns_cbranch_scc1 L_e_dir")
    A(f"s_lshr_b32 s82, s75, 1\ns_sub_u32 s82, s82, 1\ns_and_b32 s82, s82, 3\ns_cmp_eq_u32 s82, {sC}\ns_cbranch_scc1 L_e_re")
    A(f"s_lshl_b32 s82, {sC}, 10\nv_lshl_add_u32 v4, v0, 4, s82\nds_write_b128 v4, {vr(O)} offset:{L_MO}")
    A(f"s_lshl_b32 s82, {sC}, 9\nv_lshl_add_u32 v4, v0, 3, s82\nv_mov_b32 v22, v{VmL}\nv_mov_b32 v23, v{Vl}\nds_write_b64 v4, v[22:23] offset:{L_MML}")
    A(f"v_mov_b32 v1, 1\ns_mov_b64 exec, 1\nds_add_u32 v{VZ}, v1 offset:{L_QFLAG+4}\ns_mov_b64 exec, -1")
    wo_loads()
    A(f"L_e_wait:\nds_read_b32 v1, v{VZ} offset:{L_QFLAG+12}\ns_waitcnt lgkmcnt(0)\nv_cmp_ne_u32 vcc, 0, v1\ns_cbranch_vccnz L_e_l1p")
    spin("L_e_wait")
    A("L_e_re:")
    merge_reads()
    A(f"L_e_dir:\ns_waitcnt lgkmcnt(3)\nv_cmp_ne_u32 vcc, 3, v{MRG+18}\nv_max3_f32 v22, v{MRG+12}, v{MRG+14}, v{MRG+16}\ns_cbranch_vccz L_e_go")
    spin("L_e_re")
    A(f"L_e_go:\nv_max_f32 v22, v22, v{VmL}")
    A(f"v_sub_f32 v{VmL}, v{VmL}, v22")
    for c in range(3): A(f"v_sub_f32 v{MRG+12+2*c}, v{MRG+12+2*c}, v22")
    A(f"v_exp_f32 v{VmL}, v{VmL}")
    for c in range(3): A(f"v_exp_f32 v{MRG+12+2*c}, v{MRG+12+2*c}")
    for i in range(4): A(f"v_mul_f32 v{O+i}, v{VmL}, v{O+i}")
    A("s_waitcnt lgkmcnt(0)")
    for c in range(3):
        for i in range(4): A(f"v_fmac_f32 v{O+i}, v{MRG+12+2*c}, v{MRG+4*c+i}")
    for i in range(4): tagput(O + i)
    A(f"buffer_store_dwordx4 {vr(O)}, v{MA+6}, {rWS}, s58 offen {P['hs']}")
    A(f"v_mul_f32 v23, v{VmL}, v{Vl}")
    for c in range(3): A(f"v_fmac_f32 v23, v{MRG+12+2*c}, v{MRG+13+2*c}")
    if P["mlfull"]:
        A(f"v_perm_b32 v{K}, v22, v{VT}, s101\nv_perm_b32 v{K+1}, v23, v{VT}, s101\ns_nop 0")
        A(f"v_mov_b32_dpp v{K+2}, v{K} row_ror:8 row_mask:0xf bank_mask:0xf\nv_mov_b32_dpp v{K+3}, v{K+1} row_ror:8 row_mask:0xf bank_mask:0xf")
        A("s_mov_b32 exec_lo, 0x000f000f\ns_mov_b32 exec_hi, 0x000f000f")
        A(f"buffer_store_dwordx4 {vr(K)}, v{MA+7}, {rWS}, s59 offen {P['hs']}\ns_mov_b64 exec, -1")
    else:
        tagput(22); tagput(23)
        A("s_mov_b32 exec_lo, 0x01010101\ns_mov_b32 exec_hi, 0x01010101")
        A(f"buffer_store_dwordx2 v[22:23], v{MA+7}, {rWS}, s59 offen {P['hs']}\ns_mov_b64 exec, -1")
    A(f"v_mov_b32 v1, 1\nds_write_b32 v{VZ}, v1 offset:{L_QFLAG+12}")
    if P["wok"]: A("s_cmp_eq_u32 s62, 0\ns_cbranch_scc1 L_e_l1p")
    wo_loads()
    A("L_e_l1p:\ns_mov_b32 s76, s56\ns_mov_b32 s77, s57\nv_lshlrev_b32 v6, 2, v0")
    A("L_e_l1:\ns_waitcnt lgkmcnt(0)")
    stamp(6); stamp(6, 5)
    A(f"s_sub_u32 s78, {sI}, 1\ns_cmp_gt_u32 s78, 8\ns_cbranch_scc1 L_e_done")
    A("v_and_b32 v4, 15, v0\nv_lshlrev_b32 v4, 6, v4\nv_lshrrev_b32 v5, 5, v0\nv_lshl_add_u32 v4, v5, 3, v4")
    acc = (S, S + 1, S + 2, S + 3)
    def l1_issue(b, ml):
        A(f"buffer_load_dwordx2 {vr(ml, 2)}, v4, {rWS}, s77 offen {P['hl']}")
        for p in range(16): A(f"buffer_load_dword v{b+p}, v6, {rWS}, s76 offen offset:{256*p} {P['hl']}")
    def l1_check(b, ml, behind):
        A(f"s_waitcnt vmcnt({behind+16})\nv_mov_b32 v7, v{ml}")
        tagchk(1, (ml, ml + 1), True)
        A("v_and_b32 v2, 0xff, v1\nv_cmp_ne_u32 vcc, 0, v2\ns_cbranch_vccnz L_l1_again")
        for i, r in enumerate((8, 4, 2, 1)):
            A(f"v_mov_b32 v{acc[i]}, 0" + ("" if i == 0 else "\ns_nop 0"))
            A(f"v_max_f32_dpp v7, v7, v7 row_ror:{r} row_mask:0xf bank_mask:0xf")
        A(f"v_sub_f32 v22, v{ml}, v7\nv_exp_f32 v22, v22\ns_nop 0\nv_mul_f32 v23, v22, v{ml+1}")
        for p in range(0, 16, 2):
            A(f"s_waitcnt vmcnt({behind+14-p})")
            tagchk(1, (b + p, b + p + 1))
            if p < 8: A(f"v_add_f32_dpp v23, v23, v23 row_ror:{8 >> (p // 2)} row_mask:0xf bank_mask:0xf")
            if p == 8: A("v_rcp_f32 v23, v23")
            for x in (p, p + 1): A(f"v_fmac_f32_dpp v{acc[x&3]}, v22, v{b+x} row_newbcast:{x} row_mask:0xf bank_mask:0xf")
        tagtest(1)
        A(f"v_add_f32 v2, v{S}, v{S+1}\nv_add_f32 v3, v{S+2}, v{S+3}\ns_cbranch_vccz L_l1_ok")
    if P["l1d"]: A(f"s_sleep {P['l1d']}")
    A("L_l1_poll:")
    l1_issue(RG, RG + 32); l1_check(RG, RG + 32, 0)
    A("L_l1_again:")
    spin("L_l1_poll")
    A("L_l1_ok:")
    stamp(3, 5)
    A("v_add_f32 v1, v2, v3\nv_mul_f32 v1, v1, v23\nv_cvt_pk_bf16_f32 v1, v1, v1\ns_nop 1")
    for t in range(8): A(f"v_mov_b32_dpp v{V+t}, v1 row_newbcast:{t} row_mask:0xf bank_mask:0x3")
    for t in range(8): A(f"v_mov_b32_dpp v{V+t}, v1 row_newbcast:{8+t} row_mask:0xf bank_mask:0xc")
    for t in range(8):
        for v in range(4): A(f"v_and_b32 v{B+4*(t&3)+v}, v{V+t}, v{M+v}")
        if t > 0: mfma(S, WO + 4 * (t - 1), B + 4 * ((t - 1) & 3), "0" if t == 1 else None)
    A("s_nop 0")
    mfma(S, WO + 28, B + 12)
    stamp(5, 5)
    A(f"s_lshl_b32 s82, {sC}, 9\nv_lshrrev_b32 v4, 5, v0\nv_lshl_add_u32 v4, v4, 8, v{VPL}\nv_add_u32 v4, s82, v4\nv_mov_b32 v1, 1")
    exec_valid()
    A(f"s_lshl_b32 s82, s78, 12\ns_lshl_b32 s83, {sH}, 8\ns_add_u32 s82, s82, s83\ns_add_u32 s82, s82, {WS_Y}")
    A(f"ds_write_b128 v4, {vr(S)} offset:{L_Y}\ns_mov_b64 exec, 1")
    A(f"ds_add_rtn_u32 v1, v{VZ}, v1 offset:{L_QFLAG+8}\ns_mov_b64 exec, -1")
    for i in range(8): A(f"ds_read_b32 v{K+i}, v6 offset:{L_Y + 256*i}")
    A("s_waitcnt lgkmcnt(8)\nv_readfirstlane_b32 s78, v1\ns_cmp_lg_u32 s78, 3\ns_cbranch_scc1 L_e_done")
    A(f"s_waitcnt lgkmcnt(4)\nv_add_f32 v{K}, v{K}, v{K+1}\nv_add_f32 v{K+2}, v{K+2}, v{K+3}")
    A(f"s_waitcnt lgkmcnt(0)\nv_add_f32 v{K+4}, v{K+4}, v{K+5}\nv_add_f32 v{K+6}, v{K+6}, v{K+7}")
    A(f"v_add_f32 v{K}, v{K}, v{K+2}\nv_add_f32 v{K+4}, v{K+4}, v{K+6}\nv_add_f32 v22, v{K}, v{K+4}")
    tagput(22)
    A(f"buffer_store_dword v22, v6, {rWS}, s82 offen {P['hs']}")
    A("L_e_done:")
    stamp(7); stamp(7, 5)
    dump_stamps()
    A("L_end:\ns_endpgm")

    GU = [28 + 4 * i for i in range(14)] + [108 + 4 * i for i in range(4)]; DG, GR = 92, 44
    ACC = [108 + 4 * i for i in range(8)] + [92]
    FS = RING0 - 4 * 2304
    assert L_SC + 64 * (P["dn"] + NSL + 12) <= FS and P["dn"] % 4 == 0
    def wd_loads():
        for n in range(18):
            t, ct = divmod(n, 9)
            if n >= P["FD"]: A(f"s_waitcnt vmcnt({P['FD'] - 1})")
            A(f"buffer_load_dwordx4 {vr(RG+4*n)}, v150, {rWD}, {'s33' if t else 's32'} offen offset:{ct*128} {wpol}")
    def join(off, lbl, n):
        A(f"{lbl}:\nds_read_b32 v1, v{VZ} offset:{off}\ns_waitcnt lgkmcnt(0)\nv_cmp_eq_u32 vcc, {n}, v1\ns_cbranch_vccnz {lbl}_ok")
        spin(lbl)
        A(f"{lbl}_ok:")
    A("L_c_pre:")
    A(f"s_lshl_b32 {sU}, {sH}, 2\ns_add_u32 {sU}, {sU}, {sK}\ns_sub_u32 {sU}, {sU}, 11\ns_lshr_b32 s82, {sH}, 1\ns_add_u32 s82, s82, 64")
    A(f"s_bitcmp1_b32 {sH}, 0\ns_cselect_b32 s83, -1, s82\ns_cselect_b32 s82, s82, -1")
    A(f"s_cmp_eq_u32 {sK}, 15\ns_cselect_b32 {sU}, s83, {sU}\ns_cmp_lt_u32 {sK}, 11\ns_cselect_b32 {sU}, -1, {sU}")
    A(f"s_lshr_b32 s83, {sI}, 2\ns_cmp_eq_u32 s83, 0\ns_cselect_b32 s82, s82, -1")
    A(f"s_lshl_b32 {sG}, {sH}, 2\ns_add_u32 {sG}, {sG}, s83\ns_cmp_ge_u32 {sC}, 2\ns_cselect_b32 {sG}, s82, {sG}")
    A(f"s_bitcmp1_b32 {sC}, 0\ns_cselect_b64 s[56:57], s[18:19], s[16:17]\ns_mov_b32 s58, {576*9216}\ns_mov_b32 s59, 0x20000")
    srd(rWD, 20, 4608 * 1152)
    A("v_lshrrev_b32 v4, 3, v0\nv_and_b32 v5, 7, v0\nv_lshlrev_b32 v5, 4, v5")
    A("v_mul_u32_u24 v22, 0x2400, v4\nv_add_u32 v22, v22, v5\nv_mul_u32_u24 v23, 0x480, v4\nv_add_u32 v23, v23, v5")
    A(f"s_lshl_b32 s32, {sU}, 2\ns_add_u32 s32, s32, {sC}\ns_mul_i32 s32, s32, {16*1152}\ns_add_u32 s33, s32, {8*1152}")
    A(f"s_cmp_lt_i32 {sG}, 0\ns_cbranch_scc1 L_c_pre_x")
    A(f"s_and_b32 s82, {sI}, 3\ns_mul_i32 s82, s82, {144*9216}\ns_lshl_b32 s83, {sG}, 7\ns_add_u32 s82, s82, s83")
    for p in range(18):
        if p >= P["FG"]: A(f"s_waitcnt vmcnt({P['FG'] - 1})")
        A(f"buffer_load_dwordx4 {vr(GU[p])}, v22, {rWG}, s82 offen {wpol}")
        if p < 17: A(f"s_add_u32 s82, s82, {8*9216}")
    A(f"L_c_pre_x:\ns_mov_b64 exec, 1\nv_mov_b32 v1, 1\nds_add_u32 v{VZ}, v1 offset:{L_QFLAG+20}\ns_mov_b64 exec, -1")
    lane_consts()
    A("s_waitcnt lgkmcnt(0)")
    tagprep()
    A(f"s_cmp_lt_i32 {sG}, 0\ns_cbranch_scc1 L_cons_main")
    join(L_QFLAG + 16, "L_gu_x", 1)
    A("v_lshlrev_b32 v4, 2, v0")
    for k in range(3): A(f"ds_read_b32 v{XR+k}, v4 offset:{L_GU + 256*k}")
    A("s_waitcnt lgkmcnt(0)")
    for p in range(18):
        bbuild(XR + p // 8, p % 8, B + 4 * (p & 1))
        A(f"s_waitcnt vmcnt({17 - p})\ns_nop 0")
        mfma(DG, GU[p], B + 4 * (p & 1), "0" if p == 0 else None)
    A(f"s_lshl_b32 s82, {sG}, 11\ns_and_b32 s83, {sI}, 3\ns_lshl_b32 s83, s83, 9\ns_add_u32 s82, s82, s83")
    A(f"s_and_b32 s83, {sC}, 1\ns_lshl_b32 s83, s83, 8\ns_add_u32 s82, s82, s83\ns_add_u32 s82, s82, {WS_G}")
    for i in range(4): A(f"v_mov_b32_dpp v{GR+i}, v{DG+i} row_ror:8 row_mask:0xf bank_mask:0xf")
    A("s_nop 0")
    for i in range(4): A(f"v_permlane32_swap_b32 v{GR+i}, v{GR+4+i}")
    for i in range(4): A(f"v_add_f32 v{DG+i}, v{DG+i}, v{GR+4+i}")
    for i in range(4): A(f"v_bfi_b32 v{DG+i}, 15, v{VT}, v{DG+i}")
    A(f"s_mov_b64 exec, 0x00ff00ff\nbuffer_store_dwordx4 {vr(DG)}, v{VPL}, {rWS}, s82 offen sc1\ns_mov_b64 exec, -1")
    A("s_branch L_cons_main")
    A("L_c_wd:")
    wd_loads()
    A("s_branch L_k")
    A("L_c_down:")
    A(f"v_and_b32 v4, 1, v0\ns_lshl_b32 s82, {sC}, 1\nv_add_u32 v4, s82, v4\nv_lshrrev_b32 v5, 2, v4\nv_and_b32 v4, 3, v4\nv_lshl_add_u32 v4, v5, 5, v4")
    A(f"v_lshrrev_b32 v5, 3, v0\nv_lshl_add_u32 v4, v5, 2, v4\nv_lshlrev_b32 v4, 2, v4\ns_lshl_b32 s82, {sU}, 11\ns_add_u32 s82, s82, {WS_G}")
    A("L_dn_poll:")
    for i in range(8): A(f"buffer_load_dword v{GR+i}, v4, {rWS}, s82 offen offset:{256*i} sc1")
    A("s_waitcnt vmcnt(0)")
    tagchk(1, range(GR, GR + 8), True)
    A("v_and_b32 v1, 15, v1\nv_cmp_ne_u32 vcc, 0, v1\ns_cbranch_vccz L_dn_ok\ns_sleep 2")
    spin("L_dn_poll")
    A("L_dn_ok:")
    for m in range(2):
        A(f"v_add_f32 v{GR+m}, v{GR+m}, v{GR+2+m}\nv_add_f32 v{GR+4+m}, v{GR+4+m}, v{GR+6+m}\nv_add_f32 v{GR+m}, v{GR+m}, v{GR+4+m}")
    rbf(GR, GR); rbf(GR + 1, GR + 1)
    A(f"v_mul_f32 v{GR}, {hex(LOG2E ^ 0x80000000)}, v{GR}\nv_exp_f32 v{GR}, v{GR}\ns_nop 0\nv_add_f32 v{GR}, 1.0, v{GR}\nv_rcp_f32 v{GR}, v{GR}\ns_nop 0")
    rbf(GR, GR)
    A(f"v_mul_f32 v{GR}, v{GR}, v{GR+1}\nv_cvt_pk_bf16_f32 v{XR}, v{GR}, v{GR}\ns_nop 1")
    for n in range(18):
        t, ct = divmod(n, 9)
        if ct == 0:
            bbuild(XR, t, B + 4 * t)
            A("s_nop 1")
        mfma(ACC[ct], RG + 4 * n, B + 4 * t, "0" if t == 0 else None)
    A(f"s_mul_i32 s82, {sC}, 2304\ns_add_u32 s82, s82, {FS}\nv_add_u32 v4, s82, v{VPL}")
    for ct in range(9):
        for i in range(4): A(f"v_mov_b32_dpp v{GR+i}, v{ACC[ct]+i} row_ror:8 row_mask:0xf bank_mask:0xf")
        A("s_nop 0")
        for i in range(4): A(f"v_permlane32_swap_b32 v{GR+i}, v{GR+4+i}")
        for i in range(4): A(f"v_add_f32 v{ACC[ct]+i}, v{ACC[ct]+i}, v{GR+4+i}")
    A("s_mov_b64 exec, 0x00ff00ff")
    for ct in range(9): A(f"ds_write_b128 v4, {vr(ACC[ct])} offset:{ct*256}")
    A(f"s_mov_b64 exec, 1\nv_mov_b32 v1, 1\nds_add_u32 v{VZ}, v1 offset:{L_QFLAG+24}\ns_mov_b64 exec, -1")
    A(f"s_cmp_eq_u32 {sC}, 3\ns_cbranch_scc1 L_k_on")
    join(L_QFLAG + 24, "L_dn_j", 4)
    A(f"s_lshl_b32 s64, {sC}, 6\nv_add_u32 v4, s64, v0\nv_cmp_gt_u32 vcc, 0x90, v4\ns_and_saveexec_b64 s[82:83], vcc")
    A(f"v_lshlrev_b32 v5, 4, v4\nv_add_u32 v5, {FS}, v5")
    for i in range(4): A(f"ds_read_b128 {vr(GR+4*i)}, v5 offset:{i*2304}")
    A(f"v_lshrrev_b32 v5, 4, v4\nv_mul_u32_u24 v5, {72*256}, v5\nv_and_b32 v4, 15, v4\nv_lshl_add_u32 v4, v4, 4, v5")
    A(f"s_lshl_b32 s64, {sU}, 8\ns_add_u32 s64, s64, {WS_F}\ns_waitcnt lgkmcnt(0)")
    for k in range(1, 4):
        for i in range(4): A(f"v_add_f32 v{GR+i}, v{GR+i}, v{GR+4*k+i}")
    for i in range(4): tagput(GR + i)
    A(f"buffer_store_dwordx4 {vr(GR)}, v4, {rWS}, s64 offen sc1\ns_mov_b64 exec, -1")
    stamp(3)
    A("s_branch L_k_on")

    A("L_code_end:")
    errs = hazard.check(L)
    if errs:
        print("\n".join(errs)); raise SystemExit("hazards found")
    lds = RINGE
    body = "\n".join(x if x.endswith(":") and not x.startswith(";") else "    " + x for x in L)
    head = HEADER.replace("@LAUNCH@", f"; @launch grid=(256,1,1) block=({64*NW},1,1) lds={lds}\n" + DESC.rstrip("\n"))
    tail = f"""
.section .rodata,"a"
.p2align 6
.amdhsa_kernel {NAME}_kernel
  .amdhsa_next_free_vgpr 228
  .amdhsa_next_free_sgpr 102
  .amdhsa_accum_offset 228
  .amdhsa_group_segment_fixed_size 0
  .amdhsa_kernarg_size 96
  .amdhsa_user_sgpr_count 2
  .amdhsa_user_sgpr_kernarg_segment_ptr 1
  .amdhsa_system_sgpr_workgroup_id_x 1
  .amdhsa_float_denorm_mode_32 3
.end_amdhsa_kernel
"""
    return head + body + tail, lds

if __name__ == "__main__":
    out = sys.argv[1]
    kw = eval("dict(" + (sys.argv[2] if len(sys.argv) > 2 else "") + ")")
    txt, lds = build(**kw)
    open(out, "w").write(txt)
    import subprocess
    r = subprocess.run([sys.executable, "cdna_unwritten_srd_check.py", out], capture_output=True, text=True)
    print(r.stdout.strip()[:1500])
```

```python
import sys, os
sys.path.insert(0, os.path.dirname(os.path.abspath(__file__)))
import hazard

NAME = "recurrent_scan__gqa_block_cached__glu_gated_glu__decode"
HEADER = open(os.path.join(os.path.dirname(os.path.abspath(__file__)), "header.txt")).read()

WS_QP, WS_P, WS_ML, WS_Y, WS_CNT, WS_EPOCH, WS_F, WS_G, WS_DIAG = 0x0, 0x20000, 0x60000, 0x70000, 0x7a000, 0x7c000, 0x80000, 0xb0000, 0x100000
L_FULL, L_DONE, L_QFLAG, L_QUE, L_Q, L_GU, L_SC, L_MO, L_MML, L_Y, RING0 = 0, 512, 528, 640, 1024, 1536, 2560, 2560, 6656, 8704, 19456
L_MID = 768
LOG2E = 0x3FB8AA3B
SCALE = 0x3DB504F3
VALID = "0xff00ff00", "0x00ff00ff"
NW = 6

DESC = """;
"""

DEF = dict(F=21, Fd=21, NSL=34, FW=12, pol="nt", wpol="nt", diag=False, spin=0x800000, AH=5, AHA=8, qdelay=6,
           segs=((5, 12), (4, 8), (4, 4), (3, 0)), own=(11, 12, 14, 15), pcs=(17, 21), R=240, X=8, AHM=12, early=12, dn=24, FG=8, FD=18, tpf=2, hold=1, seg2=((4, 10), (4, 7), (4, 4), (2, 2), (2, 0)), Ft=None, Nt=24, Nv=0, rot=4, pre=False, cpf=True, opol='sc1', split=0, mlfull=1, l1d=0, wok=0, f3=0)

def build(**kw):
    P = dict(DEF); P.update(kw)
    F, Fd, NSL, FW, pol, wpol, diag = P["F"], P["Fd"], P["NSL"], P["FW"], P["pol"], P["wpol"], P["diag"]
    P.update(hl="sc1", hs="sc1", apol="sc0")
    L = []
    def A(s):
        for x in s.strip("\n").split("\n"):
            L.append(x.strip())
    sW, sH, sI, sC, sT, sK, sS, sU, sG = "s28", "s29", "s30", "s31", "s100", "s14", "s15", "s63", "s62"
    rK, rV, rWS, rX, rWQ, rWO, rWG, rWU, rWD, rOUT = ("s[32:35]", "s[36:39]", "s[40:43]", "s[44:47]", "s[48:51]",
                                                    "s[52:55]", "s[56:59]", "s[56:59]", "s[64:67]", "s[68:71]")
    def srd(r, ptr, n):
        b = int(r[2:r.index(":")])
        A(f"s_mov_b64 s[{b}:{b+1}], s[{ptr}:{ptr+1}]\ns_mov_b32 s{b+2}, {n}\ns_mov_b32 s{b+3}, 0x20000")
    def vr(b, n=4): return f"v[{b}:{b+n-1}]"
    M, KA, VA, VZ, Vm, VmL, Vl, VDA = 8, 12, 16, 17, 18, 19, 20, 21
    O, Q, K, V, S, PP, B, AD, WO, X, XR, RG, DQ = 24, 28, 44, 60, 76, 80, 84, 100, 108, 140, 149, 152, 224
    VPL = 105
    def stamp(k, set_=1):
        if diag and (diag == set_ or (k in (0, 1, 2, 4) and set_ == 1)) and not (diag == 3 and k == 4):
            A(f"s_memrealtime s[{84+2*k}:{85+2*k}]\ns_waitcnt lgkmcnt(0)")
    def dump_stamps():
        if diag:
            A(f"s_mul_i32 s76, s2, {NW}\ns_add_u32 s76, s76, {sW}\ns_lshl_b32 s76, s76, 5\ns_add_u32 s76, s76, {WS_DIAG}")
            A("s_mov_b64 exec, 1\nv_mov_b32 v1, s76")
            for k in range(8):
                A(f"v_mov_b32 v2, s{84+2*k}\nglobal_store_dword v1, v2, s[26:27] offset:{4*k}")
            A("s_mov_b64 exec, -1")
    npf = [0]
    def code_prefetch(r):
        npf[0] += 1
        A(f"s_getpc_b64 s[64:65]\nL_pc{npf[0]}:\ns_sub_u32 s64, s64, L_pc{npf[0]}-{NAME}_kernel\ns_subb_u32 s65, s65, 0")
        A(f"v_lshlrev_b32 v{r}, 7, v0\nv_add_u32 v{r+1}, 0x2000, v{r}\nv_min_u32 v{r+1}, L_code_end-{NAME}_kernel-4, v{r+1}")
        A(f"global_load_dword v{r+2}, v{r}, s[64:65]\nglobal_load_dword v{r+3}, v{r+1}, s[64:65]")
    def spin(lbl):
        A(f"s_sub_u32 s3, s3, 1\ns_cbranch_scc0 {lbl}\ns_endpgm")
    def wave_sum(v, t):
        for r in (8, 4, 2, 1):
            A(f"s_nop 1\nv_add_f32_dpp v{v}, v{v}, v{v} row_ror:{r} row_mask:0xf bank_mask:0xf")
        for op in ("v_permlane16_swap_b32", "v_permlane32_swap_b32"):
            A(f"v_mov_b32 v{t}, v{v}\ns_nop 1\n{op} v{t}, v{v}\nv_add_f32 v{v}, v{v}, v{t}")
    def rbf(d, s):
        A(f"v_cvt_pk_bf16_f32 v{d}, 0, v{s}")
    def bbuild(src, t, b):
        A(f"v_mov_b32_dpp v7, v{src} row_newbcast:{t} row_mask:0xf bank_mask:0x3\ns_nop 1")
        A(f"v_mov_b32_dpp v7, v{src} row_newbcast:{8+t} row_mask:0xf bank_mask:0xc")
        for v in range(4):
            A(f"v_and_b32 v{b+v}, v7, v{M+v}")
    def mfma(d, a, b, c=None):
        A(f"v_mfma_f32_16x16x32_bf16 {vr(d)}, {vr(a)}, {vr(b)}, {vr(d) if c is None else c}")
    def exec_valid():
        A(f"s_mov_b32 exec_lo, {VALID[1]}\ns_mov_b32 exec_hi, {VALID[0]}")
    VT, VFF = 107, 103
    def tagchk(acc, regs, first=False):
        regs = list(regs)
        if first:
            A(f"v_bitop3_b32 v{acc}, v{regs[0]}, v{regs[1]}, v{VT} bitop3:0x7e"); regs = regs[2:]
        for r in regs: A(f"v_bitop3_b32 v{acc}, v{acc}, v{r}, v{VT} bitop3:0xf6")
    def tagtest(acc, dst="vcc"):
        A(f"v_and_b32 v{acc}, 0xff, v{acc}\nv_cmp_ne_u32 {dst}, 0, v{acc}")
    def tagput(r):
        A(f"v_perm_b32 v{r}, v{r}, v{VT}, s101")
    def tagprep():
        A(f"s_add_u32 s82, {sT}, 0x9e3779b9\nv_mov_b32 v{VT}, s82\ns_mov_b32 s101, 0x07060500")

    A('; entry')
    A(f"{NAME}_kernel:")
    if diag == 6: A("s_memrealtime s[90:91]")
    A("s_cmp_ge_u32 s2, 256\ns_cbranch_scc1 L_end")
    A("s_load_dwordx8 s[4:11], s[0:1], 0\ns_load_dwordx2 s[12:13], s[0:1], 32\ns_load_dwordx4 s[16:19], s[0:1], 48\ns_load_dwordx8 s[20:27], s[0:1], 64")
    if diag and diag != 6:
        for k in range(8): A(f"s_mov_b32 s{84+2*k}, 0")
    A("v_lshrrev_b32 v1, 6, v0\nv_and_b32 v0, 63, v0")
    A(f"v_readfirstlane_b32 {sW}, v1")
    A(f"s_lshr_b32 {sH}, s2, 4\ns_and_b32 {sI}, s2, 15")
    A(f"s_mul_i32 {sK}, {sH}, 3\ns_add_u32 {sK}, {sK}, {sI}\ns_and_b32 {sK}, {sK}, 15")
    A(f"s_movk_i32 {sS}, {P['R']}\ns_cmp_ge_u32 {sK}, 11\ns_cselect_b32 {sS}, {P['R'] - P['X']}, {sS}")
    A(f"v_mov_b32 v{VZ}, 0\ns_mov_b32 s3, {P['spin']}")
    A(f"s_sub_u32 {sC}, {sW}, 1")
    A(f"s_cmp_lg_u32 {sW}, 0\ns_cbranch_scc1 L_other")
    A('; loader')
    own, pb, SN = P["own"], P["pcs"], P["R"]
    rest = [b for b in range(10, 24) if b not in own and b not in pb]
    RM = sum(1 << b for b in rest)
    dep = lambda v, bs: sum(((v >> i) & 1) << b for i, b in enumerate(bs))
    piece = sorted(dep(k, pb) for k in range(4))
    XD = P["X"]
    assert SN % 4 == 0 and XD % 4 == 0 and NSL % 2 == 0 and L_SC + 64 * (SN + max(z for _, z in P["segs"])) <= RING0 and list(own) == sorted(own)
    dt = (3 + max(F, Fd)) // 4
    RINGE = RING0 + NSL * 4096
    def sdep(dst, src, bs, tmp):
        i = 0; first = True
        while i < len(bs):
            k = i
            while k + 1 < len(bs) and bs[k + 1] == bs[k] + 1: k += 1
            A(f"s_and_b32 {tmp}, {src}, {((1 << (k - i + 1)) - 1) << i}\ns_lshl_b32 {dst if first else tmp}, {tmp}, {bs[i] - i}")
            if not first: A(f"s_or_b32 {dst}, {dst}, {tmp}")
            first = False; i = k + 1
    assert rest == sorted(rest)
    OM = sum(1 << b for b in own[:P["rot"]])
    def count_in(r, mask):
        if mask == RM and rest[-1] - rest[0] == len(rest) - 1:
            A(f"s_add_u32 {r}, {r}, {1 << rest[0]}"); return
        A(f"s_or_b32 {r}, {r}, {~mask & 0xffffffff}\ns_add_u32 {r}, {r}, 1\ns_and_b32 {r}, {r}, {mask}")
    LV, LG, rC = 20, 28, "s[44:47]"
    A("s_setprio 3")
    A(f"v_lshrrev_b32 v1, 4, v0\nv_xor_b32 v4, v1, v0\nv_and_b32 v4, 15, v4\nv_lshl_add_u32 v4, v1, 4, v4\nv_lshlrev_b32 v{LG}, 4, v4")
    for j in range(1, 4): A(f"v_xor_b32 v{LG+j}, {64*j + piece[j] - 1024*j}, v{LG}")
    for j in range(4): A(f"v_mov_b32 v{KA+j}, v{LG+j}")
    A(f"v_lshlrev_b32 v6, 3, v0\nv_mov_b32 v24, {-dt}\nv_bfrev_b32 v25, -2")
    A(f"ds_write_b64 v6, v[24:25] offset:{L_FULL}")
    A(f"v_lshlrev_b32 v1, 2, v0\nds_write_b32 v1, v{VZ} offset:{L_DONE}")
    A(f"ds_read_b128 v[8:11], v{VZ} offset:{L_DONE}")
    sdep("s72", sI, own, "s82")
    A(f"s_lshl_b32 s69, {sH}, 24\ns_or_b32 s72, s72, s69\ns_mov_b32 s76, 0\ns_mov_b32 s77, 0\ns_mov_b32 s70, 0")
    A(f"s_mov_b32 s79, 0\ns_mov_b32 s80, {RING0}\ns_mov_b32 s81, {2 - NSL}")
    A("s_waitcnt lgkmcnt(0)")
    srd(rC, 6, 0x10000000); srd(rK, 6, 0x10000000)
    stamp(0)
    if diag == 1: A("s_memtime s[66:67]\ns_waitcnt lgkmcnt(0)")
    def pair(f, lanes, srds, offs, bar=None):
        jp = min(j for j in range(4) if j - f >= 3 - 4 * dt)
        for j in range(8):
            if j == 4: A("s_add_u32 m0, s80, 0x1000")
            if bar is not None and j == P["early"] % 8: A(f"s_cmp_eq_u32 s81, {2 + 2 * (P['early'] // 8) - NSL}\ns_cbranch_scc1 L_ld_bar{bar}\nL_ld_barx{bar}:")
            A(f"s_waitcnt vmcnt({f-1})")
            A(f"buffer_load_dwordx4 v{lanes[j>>2]+(j&3)}, {srds[j>>2]}, {offs[j>>2]} offen offset:{(j&3)*1024} {pol} lds")
            if j & 3 == jp: A(f"v_add_u32 v24, 1, v24\nds_write_b64 v6, v[24:25] offset:{L_FULL}")
        A(f"s_add_u32 s80, s80, 0x2000\ns_cmp_eq_u32 s80, {RINGE}\ns_cselect_b32 s80, {RING0}, s80\ns_add_u32 s81, s81, 2")
    def static_loop(sfx, f, end=sS, bar=True):
        A(f"L_ld_loop{sfx}:")
        A("s_waitcnt lgkmcnt(0)\nv_min3_u32 v4, v8, v9, v10\nv_min_u32 v4, v4, v11")
        A("s_mov_b32 m0, s80\nv_readfirstlane_b32 s82, v4")
        A(f"ds_read_b128 v[8:11], v{VZ} offset:{L_DONE}")
        A(f"s_cmp_lt_i32 s82, s81\ns_cbranch_scc1 L_ld_full{sfx}")
        for r in ("s75", "s74"):
            A(f"s_or_b32 {r}, s76, s72")
            count_in("s76", RM)
            if OM:
                A(f"s_xor_b32 {r}, {r}, s77")
                count_in("s77", OM)
        pair(f, (LG, LG), (rC, rC), ("s75", "s74"), sfx if bar else None)
        A(f"s_add_u32 s79, s79, 2\ns_cmp_lt_u32 s79, {end}\ns_cbranch_scc1 L_ld_loop{sfx}")
    static_loop("", F)
    A(f"L_ld_nm:\nds_read_b32 v7, v{VZ} offset:{L_QFLAG+28}\ns_waitcnt lgkmcnt(0)\nv_readfirstlane_b32 s71, v7")
    A(f"v_mov_b32 v5, 0\ns_sub_u32 s71, s71, 1\ns_cbranch_scc1 L_ld_nmw\ns_add_u32 s79, s79, s71\ns_cmp_eq_u32 s71, 0\ns_cbranch_scc1 L_ld_midx")
    A(f"L_ld_mid:\nds_read_b64 v[26:27], v5 offset:{L_MID}")
    A("s_waitcnt lgkmcnt(0)\nv_min3_u32 v4, v8, v9, v10\nv_min_u32 v4, v4, v11\nv_readfirstlane_b32 s75, v26")
    A("v_readfirstlane_b32 s74, v27\nv_readfirstlane_b32 s82, v4\ns_mov_b32 m0, s80")
    A(f"ds_read_b128 v[8:11], v{VZ} offset:{L_DONE}")
    A("s_cmp_lt_i32 s82, s81\ns_cbranch_scc1 L_ld_fullm\nv_add_u32 v5, 8, v5")
    pair(F, (LG, LG), (rC, rC), ("s75", "s74"))
    A("s_sub_u32 s71, s71, 2\ns_cmp_lg_u32 s71, 0\ns_cbranch_scc1 L_ld_mid\nL_ld_midx:")
    A("s_cmp_lg_u32 s70, 0\ns_cbranch_scc1 L_ld_send")
    if diag == 1: A("s_memrealtime s[92:93]\ns_waitcnt lgkmcnt(0)")
    A(f"v_lshlrev_b32 v{LG}, 4, v0")
    for j in range(1, 4): A(f"v_or_b32 v{LG+j}, {piece[j] - 1024*j}, v{LG}")
    srd(rC, 8, 0x10000000)
    A("s_mov_b32 s76, 0\ns_mov_b32 s77, 0\ns_mov_b32 s70, 1\ns_mov_b32 s79, 0\ns_branch L_ld_loop")
    A("L_ld_send:")
    def que_read(n):
        A(f"s_and_b32 s83, {n}, 31\ns_lshl_b32 s83, s83, 2\nv_mov_b32 v5, s83\nds_read_b32 v7, v5 offset:{L_QUE}")
    stamp(3)
    A("L_ld_dre:")
    que_read("s79")
    A("L_ld_dyn:")
    A("s_waitcnt lgkmcnt(0)\nv_min3_u32 v4, v8, v9, v10\nv_min_u32 v4, v4, v11\nv_readfirstlane_b32 s73, v7")
    A("s_mov_b32 m0, s80\nv_readfirstlane_b32 s82, v4")
    A(f"ds_read_b128 v[8:11], v{VZ} offset:{L_DONE}")
    A("s_add_u32 s74, s79, 1\ns_lshr_b32 s75, s73, 16\ns_cmp_lg_u32 s75, s74\ns_cbranch_scc1 L_ld_dfull")
    A("s_cmp_lt_i32 s82, s81\ns_cbranch_scc1 L_ld_dfull")
    A("s_and_b32 s73, s73, 0xffff\ns_cmp_ge_u32 s73, 0x4000\ns_cbranch_scc1 L_ld_drain")
    A("s_lshl_b32 s75, s73, 10\ns_or_b32 s75, s75, s69\ns_mov_b32 s79, s74")
    que_read("s79")
    pair(Fd, (KA, LG), (rK, rC), ("s75", "s75"))
    A("s_branch L_ld_dyn")
    A("L_ld_drain:")
    stamp(1)
    A("s_lshl_b32 s82, s79, 1\nv_mov_b32 v25, s82")
    for r in range(dt - 1, -1, -1):
        A(f"s_waitcnt vmcnt({4*r})\nv_add_u32 v24, 1, v24\nds_write_b64 v6, v[24:25] offset:{L_FULL}")
    stamp(2)
    if diag and diag != 6: A(f"s_mov_b32 s94, s79\ns_sub_u32 s96, {P['spin']}, s3")
    if diag == 1: A("s_memtime s[64:65]\ns_waitcnt lgkmcnt(0)\ns_sub_u32 s98, s64, s66")
    dump_stamps()
    A("s_endpgm")
    A("L_ld_full:")
    spin("L_ld_loop")
    A("L_ld_bar:\ns_waitcnt lgkmcnt(0)\ns_barrier")
    if P["hold"]:
        A(f"L_ld_hold:\nds_read_b32 v4, v{VZ} offset:{L_QFLAG+20}\ns_waitcnt lgkmcnt(0)\nv_cmp_eq_u32 vcc, 4, v4\ns_cbranch_vccnz L_ld_barx")
        spin("L_ld_hold")
    else:
        A("s_branch L_ld_barx")
    A("L_ld_nmw:")
    spin("L_ld_nm")
    A("L_ld_fullm:")
    spin("L_ld_mid")
    A("L_ld_dfull:")
    spin("L_ld_dre")

    A("L_other:")
    if P["cpf"]:
        A(f"s_cmp_lg_u32 {sW}, 4\ns_cbranch_scc1 L_nopf")
        code_prefetch(220)
        A("L_nopf:")
    A("s_waitcnt lgkmcnt(0)")
    srd(rX, 4, 1152); srd(rWS, 26, 0x400000 if diag else 0x100000)
    A(f"s_load_dword {sT}, s[26:27], {WS_EPOCH}")
    def tpf_rest():
        A(f"s_lshl_b32 s82, {sH}, 24\ns_add_u32 s83, s82, 0xfffffc\ns_mov_b32 s80, {576*9216 - 4}\ns_mov_b32 s81, {4096*1152 - 4}")
        A("s_load_dword s35, s[20:21], 0\ns_load_dword s35, s[20:21], s80\ns_load_dword s35, s[6:7], s83")
        A("s_load_dword s35, s[8:9], s82\ns_load_dword s35, s[8:9], s83\ns_load_dword s35, s[12:13], 0\ns_load_dword s35, s[12:13], s81")
    if P["tpf"]:
        A("; one scalar read at each end of the ranges used later brings their address translations in early")
        A(f"s_cmp_lg_u32 {sW}, 1\ns_cbranch_scc1 L_tpf_done\ns_mov_b32 s80, {576*9216 - 4}")
        A("s_load_dword s35, s[16:17], 0\ns_load_dword s35, s[18:19], 0\ns_load_dword s35, s[16:17], s80\ns_load_dword s35, s[18:19], s80")
        if P["tpf"] == 1: tpf_rest()
        A("L_tpf_done:")
    stamp(0)
    A(f"s_cmp_lg_u32 {sW}, 5\ns_cbranch_scc1 L_pre_done")
    A("v_and_b32 v1, 7, v0\nv_lshrrev_b32 v4, 3, v0\nv_lshl_add_u32 v5, v1, 3, v4\nv_lshlrev_b32 v5, 1, v5")
    for k in range(9): A(f"buffer_load_ushort v{X+k}, v5, {rX}, 0 offen offset:{128*k}")
    A(f"s_and_b32 s82, {sI}, 3\ns_mul_i32 s82, s82, 288")
    for k in range(3): A(f"buffer_load_ushort v{XR+k}, v5, {rX}, s82 offen offset:{128*k}")
    srd(rWQ, 10, 576 * 8192)
    A("v_lshlrev_b32 v5, 4, v1\nv_lshl_add_u32 v5, v4, 13, v5")
    A(f"s_lshl_b32 s82, s82, 12\ns_lshl_b32 s83, {sH}, 9\ns_add_u32 s82, s82, s83")
    A(f"s_lshr_b32 s83, {sI}, 2\ns_lshl_b32 s83, s83, 7\ns_add_u32 s82, s82, s83")
    for p in range(18):
        A(f"buffer_load_dwordx4 {vr(RG+4*p)}, v5, {rWQ}, s82 offen {wpol}")
        if p < 17: A("s_add_u32 s82, s82, 0x10000")
    A(f"s_cmp_lg_u32 {sI}, 0\ns_cbranch_scc1 L_pre_done\ns_mov_b64 exec, 1")
    A(f"s_lshl_b32 s82, {sH}, 8\ns_add_u32 s82, s82, {WS_CNT}\nv_mov_b32 v24, 0\nv_mov_b32 v25, 0\nv_mov_b32 v26, 0\nv_mov_b32 v27, 0\nbuffer_store_dwordx4 v[24:27], v{VZ}, {rWS}, s82 offen sc1")
    A("s_mov_b64 exec, -1")
    VWO = 104 + 2
    def wo_prep():
        srd(rWO, 12, 4096 * 1152)
        A(f"s_sub_u32 s82, {sI}, 1\ns_cmp_gt_u32 s82, 8\ns_cselect_b32 s54, 0, s54")
        A("v_lshrrev_b32 v2, 5, v0\nv_lshlrev_b32 v2, 7, v2\nv_bfe_u32 v3, v0, 3, 2\nv_lshl_add_u32 v2, v3, 1, v2")
        A(f"v_mul_u32_u24 v2, 0x480, v2\nv_and_b32 v3, 7, v0\nv_lshl_add_u32 v{VWO}, v3, 4, v2")
        A(f"s_lshl_b32 s82, s82, 7\ns_lshl_b32 s83, {sH}, 3\ns_add_u32 s83, s83, {sC}\ns_mul_i32 s83, s83, {32*1152}\ns_add_u32 s48, s82, s83")
        for t in range(1, 4): A(f"s_add_u32 s{48+t}, s48, {8*t*1152}")
    def wo_loads():
        for t in range(8):
            A(f"buffer_load_dwordx4 {vr(WO+4*t)}, v{VWO}, {rWO}, s{48+(t&3)} offen offset:{(t>>2)*1152} {wpol}")
    A("L_pre_done:")
    A(f"s_barrier\ns_cmp_lg_u32 {sW}, 5\ns_cbranch_scc1 L_c_pre")
    def lane_consts():
        A('; lane masks of the diagonal B operands and the lane offset of a split-row accumulator')
        A("v_and_b32 v1, 1, v0\nv_lshlrev_b32 v1, 4, v1\nv_mov_b32 v4, 0xffff\nv_lshlrev_b32 v4, v1, v4\nv_bfe_u32 v5, v0, 1, 2")
        for v in range(4):
            A(f"v_cmp_eq_u32 vcc, {v}, v5\ns_nop 1\nv_cndmask_b32 v{M+v}, 0, v4, vcc")
        A(f"v_bfe_u32 v4, v0, 4, 1\nv_and_b32 v5, 7, v0\nv_lshl_add_u32 v4, v4, 3, v5\nv_lshlrev_b32 v{VPL}, 4, v4")
    lane_consts()
    stamp(3, 2)
    A("s_waitcnt vmcnt(21)")
    stamp(5, 2)
    for k in range(9): A(f"v_lshlrev_b32 v{X+k}, 16, v{X+k}")
    A(f"v_add_f32 v1, v{X}, v{X+1}")
    for k in range(2, 9): A(f"v_add_f32 v1, v1, v{X+k}")
    wave_sum(1, 2)
    A("s_mov_b32 s82, 0x3ae38e39\ns_mov_b32 s83, 0x44100000")
    def div576(v):
        A(f"v_mul_f32 v2, s82, v{v}\nv_fma_f32 v3, -v2, s83, v{v}\nv_fma_f32 v{v}, v3, s82, v2")
    div576(1)
    A(f"v_sub_f32 v2, v{X}, v1\nv_mul_f32 v4, v2, v2")
    for k in range(1, 9): A(f"v_sub_f32 v2, v{X+k}, v1\nv_fmac_f32 v4, v2, v2")
    wave_sum(4, 2)
    div576(4)
    rbf(1, 1); rbf(4, 4)
    A("v_add_f32 v4, 0x3727c5ac, v4"); rbf(4, 4)
    A("v_sqrt_f32 v5, v4\ns_nop 0\nv_rcp_f32 v6, v5\nv_fma_f32 v3, -v5, v5, v4\nv_mul_f32 v6, 0.5, v6\nv_fma_f32 v5, v3, v6, v5")
    rbf(5, 5)
    A("v_rcp_f32 v6, v5")
    def norm(r):
        A(f"v_sub_f32 v2, v{r}, v1"); rbf(2, 2)
        A(f"v_mul_f32 v3, v2, v6\nv_fma_f32 v4, -v3, v5, v2\nv_fma_f32 v3, v4, v6, v3\nv_cvt_pk_bf16_f32 v{r}, v3, v3")
    A("s_waitcnt vmcnt(18)")
    for k in range(3):
        A(f"v_lshlrev_b32 v{XR+k}, 16, v{XR+k}"); norm(XR + k)
    A("v_lshlrev_b32 v4, 2, v0\nv_mov_b32 v5, 1")
    for k in range(3): A(f"ds_write_b32 v4, v{XR+k} offset:{L_GU + 256*k}")
    A(f"ds_write_b32 v{VZ}, v5 offset:{L_QFLAG+16}")
    A("s_nop 0")
    stamp(6, 2)
    for p in range(18):
        bbuild(XR + p // 8, p % 8, B + 4 * (p & 1))
        A(f"s_waitcnt vmcnt({17 - p})\ns_nop 0")
        mfma(DQ, RG + 4 * p, B + 4 * (p & 1), "0" if p == 0 else None)
    A("s_waitcnt lgkmcnt(0)")
    tagprep()
    A(f"s_lshl_b32 s82, {sH}, 12\ns_and_b32 s83, {sI}, 3\ns_lshl_b32 s83, s83, 10\ns_add_u32 s82, s82, s83")
    A(f"s_lshr_b32 s83, {sI}, 2\ns_lshl_b32 s83, s83, 8\ns_add_u32 s82, s82, s83")
    for i in range(4): A(f"v_mov_b32_dpp v{V+i}, v{DQ+i} row_ror:8 row_mask:0xf bank_mask:0xf")
    A("s_nop 0")
    for i in range(4): A(f"v_permlane32_swap_b32 v{V+i}, v{V+4+i}")
    for i in range(4): A(f"v_add_f32 v{K+i}, v{DQ+i}, v{V+4+i}")
    for i in range(4): A(f"v_bfi_b32 v{K+i}, 15, v{VT}, v{K+i}")
    stamp(7, 2)
    A("s_mov_b64 exec, 0x00ff00ff\ns_waitcnt vmcnt(0)")
    A(f"buffer_store_dwordx4 {vr(K)}, v{VPL}, {rWS}, s82 offen sc1")
    A("s_mov_b64 exec, -1")
    stamp(1)
    A("L_qgather:")
    A(f"v_lshlrev_b32 v4, 4, v0\ns_lshl_b32 s82, {sH}, 12")
    if P["qdelay"] is not None:
        A(f"L_qdel:\nds_read_b32 v1, v{VZ} offset:{L_FULL}\ns_waitcnt lgkmcnt(0)\nv_cmp_le_i32 vcc, {P['qdelay']}, v1\ns_cbranch_vccnz L_qdel_ok")
        A("s_sleep 2")
        spin("L_qdel")
        A("L_qdel_ok:")
    A("L_qpoll:")
    for p in range(4): A(f"buffer_load_dwordx4 {vr(RG+4*p)}, v4, {rWS}, s82 offen offset:{p*1024} sc1")
    for p in range(4):
        A(f"s_waitcnt vmcnt({3-p})")
        tagchk(1, range(RG + 4 * p, RG + 4 * p + 4), p == 0)
    A("v_and_b32 v1, 15, v1\nv_cmp_ne_u32 vcc, 0, v1")
    A("s_cbranch_vccz L_qready\ns_sleep 2")
    spin("L_qpoll")
    A("L_qready:")
    stamp(2)
    for i in range(4): A(f"v_add_f32 v{RG+i}, v{RG+i}, v{RG+4+i}\nv_add_f32 v{RG+8+i}, v{RG+8+i}, v{RG+12+i}")
    for i in range(4): A(f"v_add_f32 v{RG+i}, v{RG+i}, v{RG+8+i}")
    A("v_lshrrev_b32 v4, 3, v0\nv_and_b32 v5, 7, v0\nv_lshl_add_u32 v4, v4, 5, v5\nv_lshlrev_b32 v4, 1, v4")
    A(f"v_cvt_pk_bf16_f32 v{RG}, v{RG}, v{RG+1}\nv_cvt_pk_bf16_f32 v{RG+4}, v{RG+2}, v{RG+3}")
    A(f"ds_write_b16 v4, v{RG} offset:{L_Q}\nds_write_b16_d16_hi v4, v{RG} offset:{L_Q+16}")
    A(f"ds_write_b16 v4, v{RG+4} offset:{L_Q+32}\nds_write_b16_d16_hi v4, v{RG+4} offset:{L_Q+48}")
    A(f"v_mov_b32 v5, 1\ns_waitcnt lgkmcnt(0)\nds_write_b32 v{VZ}, v5 offset:{L_QFLAG}")
    if P["pre"]:
        A('; one plain read of the lines this workgroup publishes at the end')
        A("v_lshrrev_b32 v5, 4, v0\nv_and_b32 v6, 15, v0\nv_lshlrev_b32 v6, 4, v6\nv_lshl_add_u32 v5, v5, 12, v6")
        A(f"s_lshl_b32 s82, {sH}, 14\ns_lshl_b32 s83, {sI}, 8\ns_add_u32 s82, s82, s83\ns_add_u32 s82, s82, {WS_P}")
        A(f"s_lshl_b32 s80, {sH}, 12\ns_lshl_b32 s83, {sI}, 6\ns_add_u32 s80, s80, s83\ns_add_u32 s80, s80, {WS_ML}")
        A(f"s_lshl_b32 s81, {sI}, 12\ns_lshl_b32 s83, {sH}, 8\ns_add_u32 s81, s81, s83\ns_add_u32 s81, s81, {WS_Y - 4096}")
        A("v_lshlrev_b32 v4, 10, v0")
        A(f"buffer_load_dwordx4 v[24:27], v5, {rWS}, s82 offen\ns_mov_b64 exec, 15\nbuffer_load_dwordx4 v[28:31], v4, {rWS}, s80 offen")
        A(f"s_mov_b64 exec, 0xffff\nbuffer_load_dwordx4 v[32:35], v6, {rWS}, s81 offen")
        A("s_mov_b64 exec, -1\ns_waitcnt vmcnt(0)")
    A(f"s_mov_b32 s79, {sS}\ns_mul_i32 s72, {sH}, 3\ns_sub_u32 s72, 11, s72")
    A(f"s_lshl_b32 s78, {sH}, 8\ns_add_u32 s78, s78, {WS_CNT}\nv_mov_b32 v4, s78\nv_mov_b32 v5, 1\ns_mov_b64 exec, 1")
    def que_write(val, mid=False):
        if val == "s80":
            A('; pool position -> (row s73, column s71): the donated rows of five columns, then the last rows of all sixteen')
            A(f"s_mul_i32 s73, s80, 52429\ns_lshr_b32 s73, s73, 18\ns_mul_i32 s71, s73, 5\ns_sub_u32 s71, s80, s71\ns_add_u32 s71, s71, s72\ns_add_u32 s73, s73, {SN - XD}")
            A(f"s_add_u32 s74, s80, {16*SN - 5*XD}\ns_lshr_b32 s75, s74, 4\ns_cmp_lt_u32 s80, {5*XD}\ns_cselect_b32 s73, s73, s75\ns_cselect_b32 s71, s71, s74")
            if OM: A(f"s_and_b32 s74, s73, {(1 << P['rot']) - 1}\ns_xor_b32 s71, s71, s74")
            sdep("s74", "s73", [b - 10 for b in rest], "s75")
            sdep("s73", "s71", [b - 10 for b in own], "s75")
            A("s_or_b32 s74, s74, s73"); val = "s74"
        if mid:
            A(f"s_lshl_b32 s74, s74, 10\ns_lshl_b32 s75, {sH}, 24\ns_or_b32 s74, s74, s75\nv_mov_b32 v2, s74\nds_write_b32 v1, v2 offset:{L_MID}\nv_add_u32 v1, 4, v1")
            return
        A(f"s_and_b32 s82, s79, 31\ns_lshl_b32 s82, s82, 2\ns_add_u32 s79, s79, 1\ns_lshl_b32 s83, s79, 16\ns_or_b32 s83, s83, {val}")
        A(f"v_mov_b32 v1, s82\nv_mov_b32 v2, s83\nds_write_b32 v1, v2 offset:{L_QUE}")
    def demand(lbl, n, ahead):
        A(f"{lbl}:\nds_read_b32 v1, v{VZ} offset:{L_FULL}\ns_waitcnt lgkmcnt(0)\nv_readfirstlane_b32 s78, v1")
        A(f"s_add_u32 s78, s78, {dt + 2*ahead}\ns_ashr_i32 s78, s78, 1\ns_cmp_le_i32 {n}, s78\ns_cbranch_scc1 {lbl}_go\ns_sleep 2")
        spin(lbl)
        A(f"{lbl}_go:")
    npool = 5 * XD + 16 * (256 - SN)
    c0 = 0; t0 = 0; chain = []
    for cnt, sz in P["segs"]:
        chain.append((c0, t0, sz)); c0 += cnt; t0 += cnt * sz
        assert sz % 4 == 0 and sz <= 32
    chain2 = []; c2 = 0; t1 = t0
    for cnt, sz in P["seg2"] or ():
        chain2.append((c2, t1, sz)); c2 += cnt; t1 += cnt * sz
    assert c2 in (0, 16)
    nclaim = npool - t1
    assert c0 == 16 and t0 < npool and P["AH"] >= 3
    A(f"s_sub_u32 s81, {sS}, {dt + P['AHM']}")
    A(f"L_ca:\nds_read_b32 v1, v{VZ} offset:{L_FULL}\ns_waitcnt lgkmcnt(0)\nv_cmp_le_i32 vcc, s81, v1\ns_cbranch_vccnz L_ca_go\ns_sleep 2")
    spin("L_ca")
    A(f"L_ca_go:\nglobal_atomic_add v20, v4, v5, s[26:27] offset:4 {P['apol']}\ns_waitcnt vmcnt(0)\nv_readfirstlane_b32 s78, v20")
    for i, (c, t, sz) in enumerate(chain):
        if i == 0: A(f"s_movk_i32 s80, {t - c*sz}\ns_mov_b32 s81, {sz}")
        else: A(f"s_cmp_ge_u32 s78, {c}\ns_cselect_b32 s80, {t - c*sz}, s80\ns_cselect_b32 s81, {sz}, s81")
    A("s_mul_i32 s78, s78, s81\ns_add_u32 s80, s80, s78\ns_add_u32 s79, s79, s81\ns_add_u32 s77, s81, 1\nv_mov_b32 v1, 0")
    A("s_cmp_eq_u32 s81, 0\ns_cbranch_scc1 L_ca_done\nL_ca_put:")
    que_write("s80", True)
    A("s_add_u32 s80, s80, 1\ns_sub_u32 s81, s81, 1\ns_cmp_lg_u32 s81, 0\ns_cbranch_scc1 L_ca_put")
    A(f"L_ca_done:\nv_mov_b32 v2, s77\nds_write_b32 v{VZ}, v2 offset:{L_QFLAG+28}")
    if chain2:
        demand("L_cb", "s79", P["AHA"])
        A(f"global_atomic_add v20, v4, v5, s[26:27] offset:8 {P['apol']}\ns_waitcnt vmcnt(0)\nv_readfirstlane_b32 s78, v20")
        for i, (c, t, sz) in enumerate(chain2):
            if i == 0: A(f"s_movk_i32 s80, {t - c*sz}\ns_mov_b32 s81, {sz}")
            else: A(f"s_cmp_ge_u32 s78, {c}\ns_cselect_b32 s80, {t - c*sz}, s80\ns_cselect_b32 s81, {sz}, s81")
        A("s_mul_i32 s78, s78, s81\ns_add_u32 s80, s80, s78\ns_cmp_eq_u32 s81, 0\ns_cbranch_scc1 L_cb_done\nL_cb_put:")
        que_write("s80")
        A("s_add_u32 s80, s80, 1\ns_sub_u32 s81, s81, 1\ns_cmp_lg_u32 s81, 0\ns_cbranch_scc1 L_cb_put\nL_cb_done:")
    A("s_mov_b32 s76, s79\ns_add_u32 s77, s76, 4")
    for k in range(4):
        demand(f"L_cl_{k}", "s76", P["AH"])
        A(f"global_atomic_add v{20+k}, v4, v5, s[26:27] {P['apol']}")
        A(f"s_add_u32 s76, s76, 1\ns_cmp_lt_u32 s76, s77\ns_cbranch_scc1 L_cl_{(k+1)%4}")
        A(f"s_waitcnt vmcnt(3)\nv_readfirstlane_b32 s80, v{20+(k+1)%4}")
        A(f"s_cmp_ge_u32 s80, {nclaim}\ns_cbranch_scc1 L_cl_end\ns_add_u32 s80, s80, {t1}")
        que_write("s80")
    A("s_branch L_cl_0")
    A("L_cl_end:")
    que_write("0xffff")
    A("s_mov_b64 exec, -1")
    A(f"s_cmp_lg_u32 {sI}, 10\ns_cbranch_scc1 L_e_done\ns_cmp_gt_u32 {sH}, 8\ns_cbranch_scc1 L_e_done")
    srd(rOUT, 22, 1152)
    A("v_lshrrev_b32 v4, 5, v0\nv_and_b32 v5, 3, v0\nv_lshl_add_u32 v4, v4, 2, v5\nv_bfe_u32 v5, v0, 2, 3\nv_lshl_add_u32 v4, v4, 3, v5")
    A(f"v_lshlrev_b32 v2, 1, v4\ns_lshl_b32 s79, {sH}, 7")
    A(f"buffer_load_ushort v3, v2, {rX}, s79 offen")
    A(f"v_lshlrev_b32 v4, 2, v0\ns_lshl_b32 s82, {sH}, 12")
    def issue(b):
        for p in range(16): A(f"buffer_load_dword v{b+p}, v4, {rWS}, s80 offen offset:{256*p} {P['hl']}")
    def check(b, dst, behind, ok):
        for p in range(0, 16, 2):
            A(f"s_waitcnt vmcnt({behind+14-p})")
            tagchk(1, (b + p, b + p + 1), p == 0)
            if p == 0: A(f"v_add_f32 v{dst}, v{b}, v{b+1}")
            else: A(f"v_add_f32 v{dst}, v{dst}, v{b+p}\nv_add_f32 v{dst}, v{dst}, v{b+p+1}")
        tagtest(1)
        A(f"s_cbranch_vccz {ok}")
    A(f"s_mul_i32 s81, {sH}, {72*256}\ns_add_u32 s81, s81, {WS_F}")
    A("L_f_ffn:\ns_mov_b32 s80, s81\nv_mov_b32 v22, 0")
    def f_load(p):
        A(f"buffer_load_dword v{RG+p}, v4, {rWS}, s80 offen offset:{256*(p&15)} sc1")
        if p & 15 == 15: A("s_add_u32 s80, s80, 0x1000")
    for p in range(48): f_load(p)
    for p in range(0, 72, 2):
        A(f"s_waitcnt vmcnt({min(46, 70 - p)})")
        if p + 48 < 72: f_load(p + 48); f_load(p + 49)
        tagchk(1, (RG + p, RG + p + 1), p == 0)
        A(f"v_add_f32 v22, v22, v{RG+p}\nv_add_f32 v22, v22, v{RG+p+1}")
    tagtest(1)
    A("s_cbranch_vccz L_f_ffn_ok\ns_sleep 16")
    spin("L_f_ffn")
    A("L_f_ffn_ok:")
    rbf(22, 22)
    A(f"v_mul_f32 v5, {hex(LOG2E ^ 0x80000000)}, v22\nv_exp_f32 v5, v5\ns_nop 0\nv_add_f32 v5, 1.0, v5\nv_rcp_f32 v5, v5\ns_nop 0\nv_mul_f32 v22, v22, v5")
    rbf(22, 22)
    A("v_lshlrev_b32 v3, 16, v3")
    A(f"L_f_wait:\nds_read_b64 v[24:25], v{VZ} offset:{L_FULL}\ns_waitcnt lgkmcnt(0)\nv_cmp_ge_i32 vcc, v24, v25\ns_cbranch_vccnz L_f_go\ns_sleep 4")
    spin("L_f_wait")
    A("L_f_go:")
    A(f"s_add_u32 s80, s82, {WS_Y}")
    issue(RG)
    if P["f3"]:
        issue(RG + 16)
        A("L_f_att:")
        for i in range(3): issue(RG + 16 * ((i + 2) % 3)); check(RG + 16 * i, 23, 32, "L_f_att_ok")
    else:
        A("L_f_att:")
        issue(RG + 16); check(RG, 23, 16, "L_f_att_ok"); issue(RG); check(RG + 16, 23, 16, "L_f_att_ok")
    spin("L_f_att")
    A("L_f_att_ok:")
    rbf(23, 23)
    A("v_mul_f32 v23, v23, v22"); rbf(23, 23)
    A(f"v_add_f32 v23, v23, v3\nv_cvt_pk_bf16_f32 v23, v23, v23\nbuffer_store_short v23, v2, {rOUT}, s79 offen {P['opol']}")
    A(f"s_cmp_lg_u32 {sH}, 0\ns_cbranch_scc1 L_e_done")
    A(f"s_mov_b64 exec, 1\nv_mov_b32 v4, {WS_EPOCH}\nglobal_store_dword v4, v{VT}, s[26:27] sc1\ns_mov_b64 exec, -1\ns_branch L_e_done")

    A('; consumers')
    A("L_cons_main:")
    if P["tpf"] == 2:
        A(f"s_cmp_lg_u32 {sW}, 1\ns_cbranch_scc1 L_tpf2_done")
        tpf_rest()
        A("L_tpf2_done:")
    VSC = 148
    A("v_and_b32 v1, 15, v0\nv_lshrrev_b32 v4, 4, v0\nv_xor_b32 v5, v1, v4\nv_lshlrev_b32 v5, 4, v5")
    A(f"v_lshl_add_u32 v{KA}, v1, 8, v5")
    for ks in range(1, 4): A(f"v_xor_b32 v{KA+ks}, {64*ks}, v{KA}")
    A(f"v_lshlrev_b32 v5, 4, v1\nv_lshl_add_u32 v{VA}, v4, 10, v5")
    A(f"v_mov_b32 v{Vm}, 0xff800000\nv_mov_b32 v{VmL}, 0xff800000\nv_mov_b32 v{Vl}, 0")
    for i in range(4): A(f"v_mov_b32 v{O+i}, 0")
    A(f"s_lshl_b32 s82, {sC}, 2\nv_mov_b32 v{VDA}, s82")
    if diag == 3:
        for i in range(3): A(f"v_mov_b32 v{225+i}, 0")
        A("s_mov_b32 s86, 0")
    A(f"v_lshrrev_b32 v2, 3, v0\nv_lshlrev_b32 v2, 3, v2\ns_lshl_b32 s82, {sC}, 6\nv_add_u32 v{VSC}, s82, v2")
    A("v_bfe_u32 v5, v0, 3, 1\nv_lshlrev_b32 v5, 8, v5\nv_lshl_add_u32 v5, v4, 4, v5")
    A(f"s_mov_b32 s72, {hex(SCALE)}\ns_mov_b32 s73, {hex(LOG2E)}\ns_mov_b32 s74, 0xffff0000")
    A(f"s_mov_b32 s76, {sC}\ns_lshl_b32 s77, {sC}, 12\ns_add_u32 s77, s77, {RING0}\ns_mov_b32 s78, 0")
    A(f"s_mov_b32 s60, {sS}\ns_mov_b32 s61, 0")
    A(f"s_add_u32 s34, {sC}, {P['dn']}\ns_cmp_lt_i32 {sU}, 0\ns_cselect_b32 s34, -1, s34")
    assert L_SC + 64 * (SN - XD - NSL - 8) >= L_Y + 2048
    wo_prep()
    MA, MRG = X, RG
    for i in range(1, 4):
        A(f"s_add_u32 s82, {sC}, {i}\ns_and_b32 s82, s82, 3\ns_lshl_b32 s83, s82, 9\ns_lshl_b32 s82, s82, 10")
        A(f"v_lshl_add_u32 v{MA+2*i-2}, v0, 3, s83\nv_lshl_add_u32 v{MA+2*i-1}, v0, 4, s82")
    A(f"v_lshrrev_b32 v2, 4, v0\nv_and_b32 v3, 15, v0\nv_lshlrev_b32 v3, 4, v3\nv_lshl_add_u32 v{MA+6}, v2, 12, v3")
    A(f"v_lshl_add_u32 v{MA+7}, v2, 10, v3" if P["mlfull"] else f"v_and_b32 v3, 8, v0\nv_lshl_add_u32 v{MA+7}, v2, 10, v3")
    A(f"s_lshl_b32 s56, {sH}, 14\ns_add_u32 s56, s56, {WS_P}\ns_lshl_b32 s83, {sI}, 8\ns_add_u32 s58, s56, s83")
    A(f"s_lshl_b32 s83, {sC}, 12\ns_add_u32 s56, s56, s83")
    A(f"s_lshl_b32 s57, {sH}, 12\ns_add_u32 s57, s57, {WS_ML}\ns_lshl_b32 s83, {sI}, 6\ns_add_u32 s59, s83, s57")
    A(f"s_lshl_b32 s83, {sC}, 10\ns_add_u32 s57, s57, s83\ns_mov_b32 s70, -1\ns_brev_b32 s75, -2")
    if P["wok"]: A("s_mov_b32 s62, 1")
    def merge_reads():
        A(f"ds_read_b32 v{MRG+18}, v{VZ} offset:{L_QFLAG+4}")
        for i in range(3): A(f"ds_read_b64 {vr(MRG+12+2*i, 2)}, v{MA+2*i} offset:{L_MML}")
        for i in range(3): A(f"ds_read_b128 {vr(MRG+4*i)}, v{MA+2*i+1} offset:{L_MO}")
    A(f"L_qwait:\nds_read_b32 v1, v{VZ} offset:{L_QFLAG}\ns_waitcnt lgkmcnt(0)\nv_readfirstlane_b32 s79, v1")
    A("s_cmp_lg_u32 s79, 0\ns_cbranch_scc1 L_qgo\ns_sleep 1")
    spin("L_qwait")
    A("L_qgo:")
    tagprep()
    for ks in range(4): A(f"ds_read_b128 {vr(Q+4*ks)}, v5 offset:{L_Q + 64*ks}")
    A("s_waitcnt lgkmcnt(0)")
    stamp(4)
    def landed(lbl, item):
        A(f"s_cmp_lt_i32 {item}, s78\ns_cbranch_scc1 {lbl}_go")
        A(f"{lbl}_poll:\nds_read_b32 v22, v{VZ} offset:{L_FULL}\ns_waitcnt lgkmcnt(0)\nv_readfirstlane_b32 s78, v22")
        A(f"s_cmp_lt_i32 {item}, s78\ns_cbranch_scc1 {lbl}_go")
        spin(f"{lbl}_poll")
        A(f"{lbl}_go:")
    ntr = [0]
    def trace():
        if diag == 3:
            ntr[0] += 1; n = ntr[0]
            A(f"s_memrealtime s[84:85]\ns_waitcnt lgkmcnt(0)\ns_and_b32 m0, s86, 63\ns_cmp_lt_u32 s86, 64\ns_cbranch_scc0 L_tr{n}a")
            A(f"v_writelane_b32 v225, s84, m0\ns_branch L_tr{n}c\nL_tr{n}a:\ns_cmp_lt_u32 s86, 128\ns_cbranch_scc0 L_tr{n}b\nv_writelane_b32 v226, s84, m0\ns_branch L_tr{n}c")
            A(f"L_tr{n}b:\nv_writelane_b32 v227, s84, m0\nL_tr{n}c:\ns_add_u32 s86, s86, 1")
    def slot_next(step):
        A(f"s_add_u32 s77, s77, {step}\ns_sub_u32 s79, s77, {NSL*4096}\ns_cmp_ge_u32 s77, {RINGE}\ns_cselect_b32 s77, s79, s77")
    def k_reads():
        for ks in range(4): A(f"v_add_u32 v{AD+ks}, s77, v{KA+ks}\nds_read_b128 {vr(K+4*ks)}, v{AD+ks}")
    def qk():
        for ks in range(4):
            A(f"s_waitcnt lgkmcnt({3-ks})")
            mfma(S, K + 4 * ks, Q + 4 * ks, "0" if ks == 0 else None)
    def v_reads(off):
        for r in range(4): A(f"ds_read_b128 {vr(V+4*r)}, v{AD+4} offset:{off + 256*r}")
    def softmax(lbl):
        A(f"v_max3_f32 v22, v{S}, v{S+1}, v{S+2}\nv_max_f32 v22, v22, v{S+3}")
        A(f"v_cmp_gt_f32 vcc, v22, v{Vm}\ns_cbranch_vccnz {lbl}_rescale\n{lbl}_cont:")
        for i in range(4): A(f"v_fma_f32 v{PP+i}, v{S+i}, s73, -v{VmL}")
        for i in range(4): A(f"v_exp_f32 v{PP+i}, v{PP+i}")
        A(f"s_waitcnt lgkmcnt(0)\nds_write_b32 v{VDA}, v{AD} offset:{L_DONE}")
    def pv():
        for i in range(4):
            A(f"v_cvt_pk_bf16_f32 v22, v{PP+i}, v{PP+i}")
            for v in range(4): A(f"v_and_b32 v{B+4*i+v}, v22, v{M+v}")
            A(f"v_add_f32 v{Vl}, v{Vl}, v{PP+i}")
            if i > 0: mfma(O, V + 4 * (i - 1), B + 4 * (i - 1))
        A("s_nop 0")
        mfma(O, V + 12, B + 12)
    def rescale(lbl):
        A(f"{lbl}_rescale:")
        for op in ("v_permlane16_swap_b32", "v_permlane32_swap_b32"):
            A(f"v_mov_b32 v23, v22\ns_nop 1\n{op} v23, v22\nv_max_f32 v22, v22, v23")
        A(f"v_max_f32 v{Vm}, v{Vm}, v22\nv_mul_f32 v22, s73, v{Vm}\nv_sub_f32 v23, v{VmL}, v22\nv_exp_f32 v23, v23\nv_mov_b32 v{VmL}, v22")
        A(f"v_mul_f32 v{Vl}, v{Vl}, v23")
        for i in range(4): A(f"v_mul_f32 v{O+i}, v{O+i}, v23")
        A(f"s_branch {lbl}_cont")
    A(f"v_mov_b32 v150, v23\ns_cmp_ge_i32 {sU}, 0\ns_cbranch_scc1 L_c_wd")
    A("L_k:")
    landed("L_k", "s76")
    trace()
    k_reads()
    slot_next(0x4000)
    A(f"s_add_u32 s76, s76, 1\nv_mov_b32 v22, s76\ns_add_u32 s76, s76, 3")
    qk()
    A(f"ds_write_b32 v{VDA}, v22 offset:{L_DONE}\ns_mov_b32 exec_lo, 0x01010101\ns_mov_b32 exec_hi, 0x01010101\ns_nop 4")
    for i in range(4): A(f"v_cvt_pk_bf16_f32 v{S+i}, 0, v{S+i}")
    for i in range(4): A(f"v_mul_f32 v{S+i}, s72, v{S+i}")
    A(f"v_cvt_pk_bf16_f32 v22, v{S}, v{S+1}\nv_cvt_pk_bf16_f32 v23, v{S+2}, v{S+3}")
    A(f"ds_write_b64 v{VSC}, v[22:23] offset:{L_SC}\ns_mov_b64 exec, -1\nv_add_u32 v{VSC}, 0x100, v{VSC}")
    A("s_cmp_eq_u32 s76, s34\ns_cbranch_scc1 L_c_down\nL_k_on:\ns_cmp_lt_u32 s76, s60\ns_cbranch_scc1 L_k")
    A("s_cmp_lg_u32 s61, 0\ns_cbranch_scc1 L_k_end")
    A(f"L_k_nm:\nds_read_b32 v22, v{VZ} offset:{L_QFLAG+28}\ns_waitcnt lgkmcnt(0)\nv_readfirstlane_b32 s82, v22\ns_sub_u32 s82, s82, 1\ns_cbranch_scc0 L_k_nm_ok")
    spin("L_k_nm")
    A("L_k_nm_ok:\ns_add_u32 s60, s60, s82\ns_lshl_b32 s61, s60, 1\ns_branch L_k_on\nL_k_end:")
    A(f"s_lshl_b32 s82, s60, 6\nv_subrev_u32 v{VSC}, s82, v{VSC}")
    A("L_v:")
    landed("L_v", "s76")
    trace()
    A(f"ds_read_b64 v[22:23], v{VSC} offset:{L_SC}\nv_add_u32 v{AD+4}, s77, v{VA}")
    v_reads(0)
    slot_next(0x4000)
    A(f"v_add_u32 v{VSC}, 0x100, v{VSC}\ns_add_u32 s76, s76, 1\nv_mov_b32 v{AD}, s76\ns_add_u32 s76, s76, 3")
    A(f"s_waitcnt lgkmcnt(4)\nv_lshlrev_b32 v{S}, 16, v22\nv_and_b32 v{S+1}, s74, v22\nv_lshlrev_b32 v{S+2}, 16, v23\nv_and_b32 v{S+3}, s74, v23")
    softmax("L_v"); pv()
    A("s_cmp_lt_u32 s76, s61\ns_cbranch_scc1 L_v")
    A(f"s_add_u32 s76, s76, {sC}\ns_lshl_b32 s82, {sC}, 12")
    slot_next("s82")
    A("L_c_top:\ns_cmp_lt_i32 s76, s78\ns_cbranch_scc1 L_c_go\ns_cmp_ge_i32 s76, s75\ns_cbranch_scc1 L_c_exit")
    A(f"L_c_poll:\nds_read_b64 v[22:23], v{VZ} offset:{L_FULL}\ns_waitcnt lgkmcnt(0)")
    A("v_readfirstlane_b32 s78, v22\nv_readfirstlane_b32 s75, v23\ns_add_u32 s70, s75, 6")
    A("s_cmp_lt_i32 s76, s78\ns_cbranch_scc1 L_c_go\ns_cmp_ge_i32 s76, s75\ns_cbranch_scc1 L_c_exit")
    spin("L_c_poll")
    A("L_c_vwait:")
    A(f"ds_read_b64 v[22:23], v{VZ} offset:{L_FULL}\ns_waitcnt lgkmcnt(0)\nv_readfirstlane_b32 s78, v22\nv_readfirstlane_b32 s75, v23")
    A("s_add_u32 s70, s75, 6\ns_cmp_lt_i32 s82, s78\ns_cbranch_scc1 L_c_v")
    spin("L_c_vwait")
    rescale("L_v"); rescale("L_c")
    A("L_c_go:")
    trace(); trace()
    k_reads()
    A(f"v_add_u32 v{AD+4}, s77, v{VA}")
    slot_next(0x8000)
    qk()
    if P["wok"]:
        A("s_add_u32 s82, s76, 8\ns_cmp_lg_u32 s82, s70\ns_cbranch_scc1 L_c_nowo\ns_mov_b32 s62, 0")
        wo_loads()
        A("L_c_nowo:")
    A("s_add_u32 s82, s76, 1\ns_cmp_lt_i32 s82, s78\ns_cbranch_scc0 L_c_vwait\nL_c_v:")
    v_reads(4096)
    A(f"s_add_u32 s76, s76, 2\nv_mov_b32 v{AD}, s76\ns_add_u32 s76, s76, 6")
    for i in range(4): A(f"v_cvt_pk_bf16_f32 v{S+i}, 0, v{S+i}")
    for i in range(4): A(f"v_mul_f32 v{S+i}, s72, v{S+i}")
    for i in range(4): A(f"v_cvt_pk_bf16_f32 v{S+i}, 0, v{S+i}")
    softmax("L_c")
    A("s_cmp_lg_u32 s76, s70\ns_cbranch_scc1 L_c_pvb\ns_mov_b32 s61, 0")
    merge_reads()
    A("L_c_pvb:")
    pv()
    A("s_branch L_c_top")
    A("L_c_exit:")
    if diag == 3:
        A(f"s_lshl_b32 s84, s2, 2\ns_add_u32 s84, s84, {sC}\ns_lshl_b32 s84, s84, 10\ns_add_u32 s84, s84, {WS_DIAG + 0x20000}\nv_lshlrev_b32 v1, 2, v0")
        for i in range(3): A(f"buffer_store_dword v{225+i}, v1, {rWS}, s84 offen offset:{256*i}")
        A(f"buffer_store_dword v{VZ}, v1, {rWS}, s84 offen offset:768")
    stamp(5)
    for op in ("v_permlane16_swap_b32", "v_permlane32_swap_b32"):
        A(f"v_mov_b32 v23, v{Vl}\ns_nop 1\n{op} v23, v{Vl}\nv_add_f32 v{Vl}, v{Vl}, v23")
    A("s_cmp_eq_u32 s61, 0\ns_cbranch_scc1 L_e_dir")
    A(f"s_lshr_b32 s82, s75, 1\ns_sub_u32 s82, s82, 1\ns_and_b32 s82, s82, 3\ns_cmp_eq_u32 s82, {sC}\ns_cbranch_scc1 L_e_re")
    A(f"s_lshl_b32 s82, {sC}, 10\nv_lshl_add_u32 v4, v0, 4, s82\nds_write_b128 v4, {vr(O)} offset:{L_MO}")
    A(f"s_lshl_b32 s82, {sC}, 9\nv_lshl_add_u32 v4, v0, 3, s82\nv_mov_b32 v22, v{VmL}\nv_mov_b32 v23, v{Vl}\nds_write_b64 v4, v[22:23] offset:{L_MML}")
    A(f"v_mov_b32 v1, 1\ns_mov_b64 exec, 1\nds_add_u32 v{VZ}, v1 offset:{L_QFLAG+4}\ns_mov_b64 exec, -1")
    wo_loads()
    A(f"L_e_wait:\nds_read_b32 v1, v{VZ} offset:{L_QFLAG+12}\ns_waitcnt lgkmcnt(0)\nv_cmp_ne_u32 vcc, 0, v1\ns_cbranch_vccnz L_e_l1p")
    spin("L_e_wait")
    A("L_e_re:")
    merge_reads()
    A(f"L_e_dir:\ns_waitcnt lgkmcnt(3)\nv_cmp_ne_u32 vcc, 3, v{MRG+18}\nv_max3_f32 v22, v{MRG+12}, v{MRG+14}, v{MRG+16}\ns_cbranch_vccz L_e_go")
    spin("L_e_re")
    A(f"L_e_go:\nv_max_f32 v22, v22, v{VmL}")
    A(f"v_sub_f32 v{VmL}, v{VmL}, v22")
    for c in range(3): A(f"v_sub_f32 v{MRG+12+2*c}, v{MRG+12+2*c}, v22")
    A(f"v_exp_f32 v{VmL}, v{VmL}")
    for c in range(3): A(f"v_exp_f32 v{MRG+12+2*c}, v{MRG+12+2*c}")
    for i in range(4): A(f"v_mul_f32 v{O+i}, v{VmL}, v{O+i}")
    A("s_waitcnt lgkmcnt(0)")
    for c in range(3):
        for i in range(4): A(f"v_fmac_f32 v{O+i}, v{MRG+12+2*c}, v{MRG+4*c+i}")
    for i in range(4): tagput(O + i)
    A(f"buffer_store_dwordx4 {vr(O)}, v{MA+6}, {rWS}, s58 offen {P['hs']}")
    A(f"v_mul_f32 v23, v{VmL}, v{Vl}")
    for c in range(3): A(f"v_fmac_f32 v23, v{MRG+12+2*c}, v{MRG+13+2*c}")
    if P["mlfull"]:
        A(f"v_perm_b32 v{K}, v22, v{VT}, s101\nv_perm_b32 v{K+1}, v23, v{VT}, s101\ns_nop 0")
        A(f"v_mov_b32_dpp v{K+2}, v{K} row_ror:8 row_mask:0xf bank_mask:0xf\nv_mov_b32_dpp v{K+3}, v{K+1} row_ror:8 row_mask:0xf bank_mask:0xf")
        A("s_mov_b32 exec_lo, 0x000f000f\ns_mov_b32 exec_hi, 0x000f000f")
        A(f"buffer_store_dwordx4 {vr(K)}, v{MA+7}, {rWS}, s59 offen {P['hs']}\ns_mov_b64 exec, -1")
    else:
        tagput(22); tagput(23)
        A("s_mov_b32 exec_lo, 0x01010101\ns_mov_b32 exec_hi, 0x01010101")
        A(f"buffer_store_dwordx2 v[22:23], v{MA+7}, {rWS}, s59 offen {P['hs']}\ns_mov_b64 exec, -1")
    A(f"v_mov_b32 v1, 1\nds_write_b32 v{VZ}, v1 offset:{L_QFLAG+12}")
    if P["wok"]: A("s_cmp_eq_u32 s62, 0\ns_cbranch_scc1 L_e_l1p")
    wo_loads()
    A("L_e_l1p:\ns_mov_b32 s76, s56\ns_mov_b32 s77, s57\nv_lshlrev_b32 v6, 2, v0")
    A("L_e_l1:\ns_waitcnt lgkmcnt(0)")
    stamp(6); stamp(6, 5)
    A(f"s_sub_u32 s78, {sI}, 1\ns_cmp_gt_u32 s78, 8\ns_cbranch_scc1 L_e_done")
    A("v_and_b32 v4, 15, v0\nv_lshlrev_b32 v4, 6, v4\nv_lshrrev_b32 v5, 5, v0\nv_lshl_add_u32 v4, v5, 3, v4")
    acc = (S, S + 1, S + 2, S + 3)
    def l1_issue(b, ml):
        A(f"buffer_load_dwordx2 {vr(ml, 2)}, v4, {rWS}, s77 offen {P['hl']}")
        for p in range(16): A(f"buffer_load_dword v{b+p}, v6, {rWS}, s76 offen offset:{256*p} {P['hl']}")
    def l1_check(b, ml, behind):
        A(f"s_waitcnt vmcnt({behind+16})\nv_mov_b32 v7, v{ml}")
        tagchk(1, (ml, ml + 1), True)
        A("v_and_b32 v2, 0xff, v1\nv_cmp_ne_u32 vcc, 0, v2\ns_cbranch_vccnz L_l1_again")
        for i, r in enumerate((8, 4, 2, 1)):
            A(f"v_mov_b32 v{acc[i]}, 0" + ("" if i == 0 else "\ns_nop 0"))
            A(f"v_max_f32_dpp v7, v7, v7 row_ror:{r} row_mask:0xf bank_mask:0xf")
        A(f"v_sub_f32 v22, v{ml}, v7\nv_exp_f32 v22, v22\ns_nop 0\nv_mul_f32 v23, v22, v{ml+1}")
        for p in range(0, 16, 2):
            A(f"s_waitcnt vmcnt({behind+14-p})")
            tagchk(1, (b + p, b + p + 1))
            if p < 8: A(f"v_add_f32_dpp v23, v23, v23 row_ror:{8 >> (p // 2)} row_mask:0xf bank_mask:0xf")
            if p == 8: A("v_rcp_f32 v23, v23")
            for x in (p, p + 1): A(f"v_fmac_f32_dpp v{acc[x&3]}, v22, v{b+x} row_newbcast:{x} row_mask:0xf bank_mask:0xf")
        tagtest(1)
        A(f"v_add_f32 v2, v{S}, v{S+1}\nv_add_f32 v3, v{S+2}, v{S+3}\ns_cbranch_vccz L_l1_ok")
    if P["l1d"]: A(f"s_sleep {P['l1d']}")
    A("L_l1_poll:")
    l1_issue(RG, RG + 32); l1_check(RG, RG + 32, 0)
    A("L_l1_again:")
    spin("L_l1_poll")
    A("L_l1_ok:")
    stamp(3, 5)
    A("v_add_f32 v1, v2, v3\nv_mul_f32 v1, v1, v23\nv_cvt_pk_bf16_f32 v1, v1, v1\ns_nop 1")
    for t in range(8): A(f"v_mov_b32_dpp v{V+t}, v1 row_newbcast:{t} row_mask:0xf bank_mask:0x3")
    for t in range(8): A(f"v_mov_b32_dpp v{V+t}, v1 row_newbcast:{8+t} row_mask:0xf bank_mask:0xc")
    for t in range(8):
        for v in range(4): A(f"v_and_b32 v{B+4*(t&3)+v}, v{V+t}, v{M+v}")
        if t > 0: mfma(S, WO + 4 * (t - 1), B + 4 * ((t - 1) & 3), "0" if t == 1 else None)
    A("s_nop 0")
    mfma(S, WO + 28, B + 12)
    stamp(5, 5)
    A(f"s_lshl_b32 s82, {sC}, 9\nv_lshrrev_b32 v4, 5, v0\nv_lshl_add_u32 v4, v4, 8, v{VPL}\nv_add_u32 v4, s82, v4\nv_mov_b32 v1, 1")
    exec_valid()
    A(f"s_lshl_b32 s82, s78, 12\ns_lshl_b32 s83, {sH}, 8\ns_add_u32 s82, s82, s83\ns_add_u32 s82, s82, {WS_Y}")
    A(f"ds_write_b128 v4, {vr(S)} offset:{L_Y}\ns_mov_b64 exec, 1")
    A(f"ds_add_rtn_u32 v1, v{VZ}, v1 offset:{L_QFLAG+8}\ns_mov_b64 exec, -1")
    for i in range(8): A(f"ds_read_b32 v{K+i}, v6 offset:{L_Y + 256*i}")
    A("s_waitcnt lgkmcnt(8)\nv_readfirstlane_b32 s78, v1\ns_cmp_lg_u32 s78, 3\ns_cbranch_scc1 L_e_done")
    A(f"s_waitcnt lgkmcnt(4)\nv_add_f32 v{K}, v{K}, v{K+1}\nv_add_f32 v{K+2}, v{K+2}, v{K+3}")
    A(f"s_waitcnt lgkmcnt(0)\nv_add_f32 v{K+4}, v{K+4}, v{K+5}\nv_add_f32 v{K+6}, v{K+6}, v{K+7}")
    A(f"v_add_f32 v{K}, v{K}, v{K+2}\nv_add_f32 v{K+4}, v{K+4}, v{K+6}\nv_add_f32 v22, v{K}, v{K+4}")
    tagput(22)
    A(f"buffer_store_dword v22, v6, {rWS}, s82 offen {P['hs']}")
    A("L_e_done:")
    stamp(7); stamp(7, 5)
    dump_stamps()
    A("L_end:\ns_endpgm")

    GU = [28 + 4 * i for i in range(14)] + [108 + 4 * i for i in range(4)]; DG, GR = 92, 44
    ACC = [108 + 4 * i for i in range(8)] + [92]
    FS = RING0 - 4 * 2304
    assert L_SC + 64 * (P["dn"] + NSL + 12) <= FS and P["dn"] % 4 == 0
    def wd_loads():
        for n in range(18):
            t, ct = divmod(n, 9)
            if n >= P["FD"]: A(f"s_waitcnt vmcnt({P['FD'] - 1})")
            A(f"buffer_load_dwordx4 {vr(RG+4*n)}, v150, {rWD}, {'s33' if t else 's32'} offen offset:{ct*128} {wpol}")
    def join(off, lbl, n):
        A(f"{lbl}:\nds_read_b32 v1, v{VZ} offset:{off}\ns_waitcnt lgkmcnt(0)\nv_cmp_eq_u32 vcc, {n}, v1\ns_cbranch_vccnz {lbl}_ok")
        spin(lbl)
        A(f"{lbl}_ok:")
    A("L_c_pre:")
    A(f"s_lshl_b32 {sU}, {sH}, 2\ns_add_u32 {sU}, {sU}, {sK}\ns_sub_u32 {sU}, {sU}, 11\ns_lshr_b32 s82, {sH}, 1\ns_add_u32 s82, s82, 64")
    A(f"s_bitcmp1_b32 {sH}, 0\ns_cselect_b32 s83, -1, s82\ns_cselect_b32 s82, s82, -1")
    A(f"s_cmp_eq_u32 {sK}, 15\ns_cselect_b32 {sU}, s83, {sU}\ns_cmp_lt_u32 {sK}, 11\ns_cselect_b32 {sU}, -1, {sU}")
    A(f"s_lshr_b32 s83, {sI}, 2\ns_cmp_eq_u32 s83, 0\ns_cselect_b32 s82, s82, -1")
    A(f"s_lshl_b32 {sG}, {sH}, 2\ns_add_u32 {sG}, {sG}, s83\ns_cmp_ge_u32 {sC}, 2\ns_cselect_b32 {sG}, s82, {sG}")
    A(f"s_bitcmp1_b32 {sC}, 0\ns_cselect_b64 s[56:57], s[18:19], s[16:17]\ns_mov_b32 s58, {576*9216}\ns_mov_b32 s59, 0x20000")
    srd(rWD, 20, 4608 * 1152)
    A("v_lshrrev_b32 v4, 3, v0\nv_and_b32 v5, 7, v0\nv_lshlrev_b32 v5, 4, v5")
    A("v_mul_u32_u24 v22, 0x2400, v4\nv_add_u32 v22, v22, v5\nv_mul_u32_u24 v23, 0x480, v4\nv_add_u32 v23, v23, v5")
    A(f"s_lshl_b32 s32, {sU}, 2\ns_add_u32 s32, s32, {sC}\ns_mul_i32 s32, s32, {16*1152}\ns_add_u32 s33, s32, {8*1152}")
    A(f"s_cmp_lt_i32 {sG}, 0\ns_cbranch_scc1 L_c_pre_x")
    A(f"s_and_b32 s82, {sI}, 3\ns_mul_i32 s82, s82, {144*9216}\ns_lshl_b32 s83, {sG}, 7\ns_add_u32 s82, s82, s83")
    for p in range(18):
        if p >= P["FG"]: A(f"s_waitcnt vmcnt({P['FG'] - 1})")
        A(f"buffer_load_dwordx4 {vr(GU[p])}, v22, {rWG}, s82 offen {wpol}")
        if p < 17: A(f"s_add_u32 s82, s82, {8*9216}")
    A(f"L_c_pre_x:\ns_mov_b64 exec, 1\nv_mov_b32 v1, 1\nds_add_u32 v{VZ}, v1 offset:{L_QFLAG+20}\ns_mov_b64 exec, -1")
    lane_consts()
    A("s_waitcnt lgkmcnt(0)")
    tagprep()
    A(f"s_cmp_lt_i32 {sG}, 0\ns_cbranch_scc1 L_cons_main")
    join(L_QFLAG + 16, "L_gu_x", 1)
    A("v_lshlrev_b32 v4, 2, v0")
    for k in range(3): A(f"ds_read_b32 v{XR+k}, v4 offset:{L_GU + 256*k}")
    A("s_waitcnt lgkmcnt(0)")
    for p in range(18):
        bbuild(XR + p // 8, p % 8, B + 4 * (p & 1))
        A(f"s_waitcnt vmcnt({17 - p})\ns_nop 0")
        mfma(DG, GU[p], B + 4 * (p & 1), "0" if p == 0 else None)
    A(f"s_lshl_b32 s82, {sG}, 11\ns_and_b32 s83, {sI}, 3\ns_lshl_b32 s83, s83, 9\ns_add_u32 s82, s82, s83")
    A(f"s_and_b32 s83, {sC}, 1\ns_lshl_b32 s83, s83, 8\ns_add_u32 s82, s82, s83\ns_add_u32 s82, s82, {WS_G}")
    for i in range(4): A(f"v_mov_b32_dpp v{GR+i}, v{DG+i} row_ror:8 row_mask:0xf bank_mask:0xf")
    A("s_nop 0")
    for i in range(4): A(f"v_permlane32_swap_b32 v{GR+i}, v{GR+4+i}")
    for i in range(4): A(f"v_add_f32 v{DG+i}, v{DG+i}, v{GR+4+i}")
    for i in range(4): A(f"v_bfi_b32 v{DG+i}, 15, v{VT}, v{DG+i}")
    A(f"s_mov_b64 exec, 0x00ff00ff\nbuffer_store_dwordx4 {vr(DG)}, v{VPL}, {rWS}, s82 offen sc1\ns_mov_b64 exec, -1")
    A("s_branch L_cons_main")
    A("L_c_wd:")
    wd_loads()
    A("s_branch L_k")
    A("L_c_down:")
    A(f"v_and_b32 v4, 1, v0\ns_lshl_b32 s82, {sC}, 1\nv_add_u32 v4, s82, v4\nv_lshrrev_b32 v5, 2, v4\nv_and_b32 v4, 3, v4\nv_lshl_add_u32 v4, v5, 5, v4")
    A(f"v_lshrrev_b32 v5, 3, v0\nv_lshl_add_u32 v4, v5, 2, v4\nv_lshlrev_b32 v4, 2, v4\ns_lshl_b32 s82, {sU}, 11\ns_add_u32 s82, s82, {WS_G}")
    A("L_dn_poll:")
    for i in range(8): A(f"buffer_load_dword v{GR+i}, v4, {rWS}, s82 offen offset:{256*i} sc1")
    A("s_waitcnt vmcnt(0)")
    tagchk(1, range(GR, GR + 8), True)
    A("v_and_b32 v1, 15, v1\nv_cmp_ne_u32 vcc, 0, v1\ns_cbranch_vccz L_dn_ok\ns_sleep 2")
    spin("L_dn_poll")
    A("L_dn_ok:")
    for m in range(2):
        A(f"v_add_f32 v{GR+m}, v{GR+m}, v{GR+2+m}\nv_add_f32 v{GR+4+m}, v{GR+4+m}, v{GR+6+m}\nv_add_f32 v{GR+m}, v{GR+m}, v{GR+4+m}")
    rbf(GR, GR); rbf(GR + 1, GR + 1)
    A(f"v_mul_f32 v{GR}, {hex(LOG2E ^ 0x80000000)}, v{GR}\nv_exp_f32 v{GR}, v{GR}\ns_nop 0\nv_add_f32 v{GR}, 1.0, v{GR}\nv_rcp_f32 v{GR}, v{GR}\ns_nop 0")
    rbf(GR, GR)
    A(f"v_mul_f32 v{GR}, v{GR}, v{GR+1}\nv_cvt_pk_bf16_f32 v{XR}, v{GR}, v{GR}\ns_nop 1")
    for n in range(18):
        t, ct = divmod(n, 9)
        if ct == 0:
            bbuild(XR, t, B + 4 * t)
            A("s_nop 1")
        mfma(ACC[ct], RG + 4 * n, B + 4 * t, "0" if t == 0 else None)
    A(f"s_mul_i32 s82, {sC}, 2304\ns_add_u32 s82, s82, {FS}\nv_add_u32 v4, s82, v{VPL}")
    for ct in range(9):
        for i in range(4): A(f"v_mov_b32_dpp v{GR+i}, v{ACC[ct]+i} row_ror:8 row_mask:0xf bank_mask:0xf")
        A("s_nop 0")
        for i in range(4): A(f"v_permlane32_swap_b32 v{GR+i}, v{GR+4+i}")
        for i in range(4): A(f"v_add_f32 v{ACC[ct]+i}, v{ACC[ct]+i}, v{GR+4+i}")
    A("s_mov_b64 exec, 0x00ff00ff")
    for ct in range(9): A(f"ds_write_b128 v4, {vr(ACC[ct])} offset:{ct*256}")
    A(f"s_mov_b64 exec, 1\nv_mov_b32 v1, 1\nds_add_u32 v{VZ}, v1 offset:{L_QFLAG+24}\ns_mov_b64 exec, -1")
    A(f"s_cmp_eq_u32 {sC}, 3\ns_cbranch_scc1 L_k_on")
    join(L_QFLAG + 24, "L_dn_j", 4)
    A(f"s_lshl_b32 s64, {sC}, 6\nv_add_u32 v4, s64, v0\nv_cmp_gt_u32 vcc, 0x90, v4\ns_and_saveexec_b64 s[82:83], vcc")
    A(f"v_lshlrev_b32 v5, 4, v4\nv_add_u32 v5, {FS}, v5")
    for i in range(4): A(f"ds_read_b128 {vr(GR+4*i)}, v5 offset:{i*2304}")
    A(f"v_lshrrev_b32 v5, 4, v4\nv_mul_u32_u24 v5, {72*256}, v5\nv_and_b32 v4, 15, v4\nv_lshl_add_u32 v4, v4, 4, v5")
    A(f"s_lshl_b32 s64, {sU}, 8\ns_add_u32 s64, s64, {WS_F}\ns_waitcnt lgkmcnt(0)")
    for k in range(1, 4):
        for i in range(4): A(f"v_add_f32 v{GR+i}, v{GR+i}, v{GR+4*k+i}")
    for i in range(4): tagput(GR + i)
    A(f"buffer_store_dwordx4 {vr(GR)}, v4, {rWS}, s64 offen sc1\ns_mov_b64 exec, -1")
    stamp(3)
    A("s_branch L_k_on")

    A("L_code_end:")
    errs = hazard.check(L)
    if errs:
        print("\n".join(errs)); raise SystemExit("hazards found")
    lds = RINGE
    body = "\n".join(x if x.endswith(":") and not x.startswith(";") else "    " + x for x in L)
    head = HEADER.replace("@LAUNCH@", f"; @launch grid=(256,1,1) block=({64*NW},1,1) lds={lds}\n" + DESC.rstrip("\n"))
    tail = f"""
.section .rodata,"a"
.p2align 6
.amdhsa_kernel {NAME}_kernel
  .amdhsa_next_free_vgpr 228
  .amdhsa_next_free_sgpr 102
  .amdhsa_accum_offset 228
  .amdhsa_group_segment_fixed_size 0
  .amdhsa_kernarg_size 96
  .amdhsa_user_sgpr_count 2
  .amdhsa_user_sgpr_kernarg_segment_ptr 1
  .amdhsa_system_sgpr_workgroup_id_x 1
  .amdhsa_float_denorm_mode_32 3
.end_amdhsa_kernel
"""
    return head + body + tail, lds

if __name__ == "__main__":
    out = sys.argv[1]
    kw = eval("dict(" + (sys.argv[2] if len(sys.argv) > 2 else "") + ")")
    txt, lds = build(**kw)
    open(out, "w").write(txt)
    import subprocess
    r = subprocess.run([sys.executable, "cdna_unwritten_srd_check.py", out], capture_output=True, text=True)
    print(r.stdout.strip()[:1500])
```

```python
import sys, os
sys.path.insert(0, os.path.dirname(os.path.abspath(__file__)))
import hazard

NAME = "recurrent_scan__gqa_block_cached__glu_gated_glu__decode"
HEADER = open(os.path.join(os.path.dirname(os.path.abspath(__file__)), "header.txt")).read()

WS_QP, WS_P, WS_ML, WS_Y, WS_CNT, WS_EPOCH, WS_F, WS_G, WS_DIAG = 0x0, 0x20000, 0x60000, 0x70000, 0x7a000, 0x7c000, 0x80000, 0xb0000, 0x100000
L_FULL, L_DONE, L_QFLAG, L_QUE, L_Q, L_GU, L_SC, L_MO, L_MML, L_Y, RING0 = 0, 512, 528, 640, 1024, 1536, 2560, 2560, 6656, 8704, 19456
L_MID = 768
LOG2E = 0x3FB8AA3B
SCALE = 0x3DB504F3
VALID = "0xff00ff00", "0x00ff00ff"
NW = 6

DESC = """;
"""

DEF = dict(F=21, Fd=21, NSL=34, FW=12, pol="nt", wpol="nt", diag=False, spin=0x800000, AH=5, AHA=8, qdelay=6,
           segs=((5, 12), (4, 8), (4, 4), (3, 0)), own=(11, 12, 14, 15), pcs=(17, 21), R=240, X=8, AHM=12, early=12, dn=24, FG=8, FD=18, tpf=2, hold=1, seg2=((4, 10), (4, 7), (4, 4), (2, 2), (2, 0)), Ft=None, Nt=24, Nv=0, rot=4, pre=False, cpf=1, opol='sc1', split=0, mlfull=1, l1d=0, wok=0, f3=0)

def build(**kw):
    P = dict(DEF); P.update(kw)
    F, Fd, NSL, FW, pol, wpol, diag = P["F"], P["Fd"], P["NSL"], P["FW"], P["pol"], P["wpol"], P["diag"]
    P.update(hl="sc1", hs="sc1", apol="sc0")
    L = []
    def A(s):
        for x in s.strip("\n").split("\n"):
            L.append(x.strip())
    sW, sH, sI, sC, sT, sK, sS, sU, sG = "s28", "s29", "s30", "s31", "s100", "s14", "s15", "s63", "s62"
    rK, rV, rWS, rX, rWQ, rWO, rWG, rWU, rWD, rOUT = ("s[32:35]", "s[36:39]", "s[40:43]", "s[44:47]", "s[48:51]",
                                                    "s[52:55]", "s[56:59]", "s[56:59]", "s[64:67]", "s[68:71]")
    def srd(r, ptr, n):
        b = int(r[2:r.index(":")])
        A(f"s_mov_b64 s[{b}:{b+1}], s[{ptr}:{ptr+1}]\ns_mov_b32 s{b+2}, {n}\ns_mov_b32 s{b+3}, 0x20000")
    def vr(b, n=4): return f"v[{b}:{b+n-1}]"
    M, KA, VA, VZ, Vm, VmL, Vl, VDA = 8, 12, 16, 17, 18, 19, 20, 21
    O, Q, K, V, S, PP, B, AD, WO, X, XR, RG, DQ = 24, 28, 44, 60, 76, 80, 84, 100, 108, 140, 149, 152, 224
    VPL = 105
    def stamp(k, set_=1):
        if diag and (diag == set_ or (k in (0, 1, 2, 4) and set_ == 1)) and not (diag == 3 and k == 4):
            A(f"s_memrealtime s[{84+2*k}:{85+2*k}]\ns_waitcnt lgkmcnt(0)")
    def dump_stamps():
        if diag:
            A(f"s_mul_i32 s76, s2, {NW}\ns_add_u32 s76, s76, {sW}\ns_lshl_b32 s76, s76, 5\ns_add_u32 s76, s76, {WS_DIAG}")
            A("s_mov_b64 exec, 1\nv_mov_b32 v1, s76")
            for k in range(8):
                A(f"v_mov_b32 v2, s{84+2*k}\nglobal_store_dword v1, v2, s[26:27] offset:{4*k}")
            A("s_mov_b64 exec, -1")
    npf = [0]
    def code_prefetch(r):
        npf[0] += 1
        A(f"s_getpc_b64 s[64:65]\nL_pc{npf[0]}:\ns_sub_u32 s64, s64, L_pc{npf[0]}-{NAME}_kernel\ns_subb_u32 s65, s65, 0")
        A(f"v_lshlrev_b32 v{r}, 7, v0\nv_add_u32 v{r+1}, 0x2000, v{r}\nv_min_u32 v{r+1}, L_code_end-{NAME}_kernel-4, v{r+1}")
        A(f"global_load_dword v{r+2}, v{r}, s[64:65]\nglobal_load_dword v{r+3}, v{r+1}, s[64:65]")
    def spin(lbl):
        A(f"s_sub_u32 s3, s3, 1\ns_cbranch_scc0 {lbl}\ns_endpgm")
    def wave_sum(v, t):
        for r in (8, 4, 2, 1):
            A(f"s_nop 1\nv_add_f32_dpp v{v}, v{v}, v{v} row_ror:{r} row_mask:0xf bank_mask:0xf")
        for op in ("v_permlane16_swap_b32", "v_permlane32_swap_b32"):
            A(f"v_mov_b32 v{t}, v{v}\ns_nop 1\n{op} v{t}, v{v}\nv_add_f32 v{v}, v{v}, v{t}")
    def rbf(d, s):
        A(f"v_cvt_pk_bf16_f32 v{d}, 0, v{s}")
    def bbuild(src, t, b):
        A(f"v_mov_b32_dpp v7, v{src} row_newbcast:{t} row_mask:0xf bank_mask:0x3\ns_nop 1")
        A(f"v_mov_b32_dpp v7, v{src} row_newbcast:{8+t} row_mask:0xf bank_mask:0xc")
        for v in range(4):
            A(f"v_and_b32 v{b+v}, v7, v{M+v}")
    def mfma(d, a, b, c=None):
        A(f"v_mfma_f32_16x16x32_bf16 {vr(d)}, {vr(a)}, {vr(b)}, {vr(d) if c is None else c}")
    def exec_valid():
        A(f"s_mov_b32 exec_lo, {VALID[1]}\ns_mov_b32 exec_hi, {VALID[0]}")
    VT, VFF = 107, 103
    def tagchk(acc, regs, first=False):
        regs = list(regs)
        if first:
            A(f"v_bitop3_b32 v{acc}, v{regs[0]}, v{regs[1]}, v{VT} bitop3:0x7e"); regs = regs[2:]
        for r in regs: A(f"v_bitop3_b32 v{acc}, v{acc}, v{r}, v{VT} bitop3:0xf6")
    def tagtest(acc, dst="vcc"):
        A(f"v_and_b32 v{acc}, 0xff, v{acc}\nv_cmp_ne_u32 {dst}, 0, v{acc}")
    def tagput(r):
        A(f"v_perm_b32 v{r}, v{r}, v{VT}, s101")
    def tagprep():
        A(f"s_add_u32 s82, {sT}, 0x9e3779b9\nv_mov_b32 v{VT}, s82\ns_mov_b32 s101, 0x07060500")

    A('; entry')
    A(f"{NAME}_kernel:")
    if diag == 6: A("s_memrealtime s[90:91]")
    A("s_cmp_ge_u32 s2, 256\ns_cbranch_scc1 L_end")
    A("s_load_dwordx8 s[4:11], s[0:1], 0\ns_load_dwordx2 s[12:13], s[0:1], 32\ns_load_dwordx4 s[16:19], s[0:1], 48\ns_load_dwordx8 s[20:27], s[0:1], 64")
    if diag and diag != 6:
        for k in range(8): A(f"s_mov_b32 s{84+2*k}, 0")
    A("v_lshrrev_b32 v1, 6, v0\nv_and_b32 v0, 63, v0")
    A(f"v_readfirstlane_b32 {sW}, v1")
    if P["cpf"] in (2, 3):
        A(f"s_and_b32 s82, s2, {0x18 if P['cpf'] == 2 else 0}\ns_or_b32 s82, s82, {sW}\ns_cmp_lg_u32 s82, 4\ns_cbranch_scc1 L_nopf")
        code_prefetch(220)
        A("L_nopf:")
    A(f"s_lshr_b32 {sH}, s2, 4\ns_and_b32 {sI}, s2, 15")
    A(f"s_mul_i32 {sK}, {sH}, 3\ns_add_u32 {sK}, {sK}, {sI}\ns_and_b32 {sK}, {sK}, 15")
    A(f"s_movk_i32 {sS}, {P['R']}\ns_cmp_ge_u32 {sK}, 11\ns_cselect_b32 {sS}, {P['R'] - P['X']}, {sS}")
    A(f"v_mov_b32 v{VZ}, 0\ns_mov_b32 s3, {P['spin']}")
    A(f"s_sub_u32 {sC}, {sW}, 1")
    A(f"s_cmp_lg_u32 {sW}, 0\ns_cbranch_scc1 L_other")
    A('; loader')
    own, pb, SN = P["own"], P["pcs"], P["R"]
    rest = [b for b in range(10, 24) if b not in own and b not in pb]
    RM = sum(1 << b for b in rest)
    dep = lambda v, bs: sum(((v >> i) & 1) << b for i, b in enumerate(bs))
    piece = sorted(dep(k, pb) for k in range(4))
    XD = P["X"]
    assert SN % 4 == 0 and XD % 4 == 0 and NSL % 2 == 0 and L_SC + 64 * (SN + max(z for _, z in P["segs"])) <= RING0 and list(own) == sorted(own)
    dt = (3 + max(F, Fd)) // 4
    RINGE = RING0 + NSL * 4096
    def sdep(dst, src, bs, tmp):
        i = 0; first = True
        while i < len(bs):
            k = i
            while k + 1 < len(bs) and bs[k + 1] == bs[k] + 1: k += 1
            A(f"s_and_b32 {tmp}, {src}, {((1 << (k - i + 1)) - 1) << i}\ns_lshl_b32 {dst if first else tmp}, {tmp}, {bs[i] - i}")
            if not first: A(f"s_or_b32 {dst}, {dst}, {tmp}")
            first = False; i = k + 1
    assert rest == sorted(rest)
    OM = sum(1 << b for b in own[:P["rot"]])
    def count_in(r, mask):
        if mask == RM and rest[-1] - rest[0] == len(rest) - 1:
            A(f"s_add_u32 {r}, {r}, {1 << rest[0]}"); return
        A(f"s_or_b32 {r}, {r}, {~mask & 0xffffffff}\ns_add_u32 {r}, {r}, 1\ns_and_b32 {r}, {r}, {mask}")
    LV, LG, rC = 20, 28, "s[44:47]"
    A("s_setprio 3")
    A(f"v_lshrrev_b32 v1, 4, v0\nv_xor_b32 v4, v1, v0\nv_and_b32 v4, 15, v4\nv_lshl_add_u32 v4, v1, 4, v4\nv_lshlrev_b32 v{LG}, 4, v4")
    for j in range(1, 4): A(f"v_xor_b32 v{LG+j}, {64*j + piece[j] - 1024*j}, v{LG}")
    for j in range(4): A(f"v_mov_b32 v{KA+j}, v{LG+j}")
    A(f"v_lshlrev_b32 v6, 3, v0\nv_mov_b32 v24, {-dt}\nv_bfrev_b32 v25, -2")
    A(f"ds_write_b64 v6, v[24:25] offset:{L_FULL}")
    A(f"v_lshlrev_b32 v1, 2, v0\nds_write_b32 v1, v{VZ} offset:{L_DONE}")
    A(f"ds_read_b128 v[8:11], v{VZ} offset:{L_DONE}")
    sdep("s72", sI, own, "s82")
    A(f"s_lshl_b32 s69, {sH}, 24\ns_or_b32 s72, s72, s69\ns_mov_b32 s76, 0\ns_mov_b32 s77, 0\ns_mov_b32 s70, 0")
    A(f"s_mov_b32 s79, 0\ns_mov_b32 s80, {RING0}\ns_mov_b32 s81, {2 - NSL}")
    A("s_waitcnt lgkmcnt(0)")
    srd(rC, 6, 0x10000000); srd(rK, 6, 0x10000000)
    stamp(0)
    if diag == 1: A("s_memtime s[66:67]\ns_waitcnt lgkmcnt(0)")
    def pair(f, lanes, srds, offs, bar=None):
        jp = min(j for j in range(4) if j - f >= 3 - 4 * dt)
        for j in range(8):
            if j == 4: A("s_add_u32 m0, s80, 0x1000")
            if bar is not None and j == P["early"] % 8: A(f"s_cmp_eq_u32 s81, {2 + 2 * (P['early'] // 8) - NSL}\ns_cbranch_scc1 L_ld_bar{bar}\nL_ld_barx{bar}:")
            A(f"s_waitcnt vmcnt({f-1})")
            A(f"buffer_load_dwordx4 v{lanes[j>>2]+(j&3)}, {srds[j>>2]}, {offs[j>>2]} offen offset:{(j&3)*1024} {pol} lds")
            if j & 3 == jp: A(f"v_add_u32 v24, 1, v24\nds_write_b64 v6, v[24:25] offset:{L_FULL}")
        A(f"s_add_u32 s80, s80, 0x2000\ns_cmp_eq_u32 s80, {RINGE}\ns_cselect_b32 s80, {RING0}, s80\ns_add_u32 s81, s81, 2")
    def static_loop(sfx, f, end=sS, bar=True):
        A(f"L_ld_loop{sfx}:")
        A("s_waitcnt lgkmcnt(0)\nv_min3_u32 v4, v8, v9, v10\nv_min_u32 v4, v4, v11")
        A("s_mov_b32 m0, s80\nv_readfirstlane_b32 s82, v4")
        A(f"ds_read_b128 v[8:11], v{VZ} offset:{L_DONE}")
        A(f"s_cmp_lt_i32 s82, s81\ns_cbranch_scc1 L_ld_full{sfx}")
        for r in ("s75", "s74"):
            A(f"s_or_b32 {r}, s76, s72")
            count_in("s76", RM)
            if OM:
                A(f"s_xor_b32 {r}, {r}, s77")
                count_in("s77", OM)
        pair(f, (LG, LG), (rC, rC), ("s75", "s74"), sfx if bar else None)
        A(f"s_add_u32 s79, s79, 2\ns_cmp_lt_u32 s79, {end}\ns_cbranch_scc1 L_ld_loop{sfx}")
    static_loop("", F)
    A(f"L_ld_nm:\nds_read_b32 v7, v{VZ} offset:{L_QFLAG+28}\ns_waitcnt lgkmcnt(0)\nv_readfirstlane_b32 s71, v7")
    A(f"v_mov_b32 v5, 0\ns_sub_u32 s71, s71, 1\ns_cbranch_scc1 L_ld_nmw\ns_add_u32 s79, s79, s71\ns_cmp_eq_u32 s71, 0\ns_cbranch_scc1 L_ld_midx")
    A(f"L_ld_mid:\nds_read_b64 v[26:27], v5 offset:{L_MID}")
    A("s_waitcnt lgkmcnt(0)\nv_min3_u32 v4, v8, v9, v10\nv_min_u32 v4, v4, v11\nv_readfirstlane_b32 s75, v26")
    A("v_readfirstlane_b32 s74, v27\nv_readfirstlane_b32 s82, v4\ns_mov_b32 m0, s80")
    A(f"ds_read_b128 v[8:11], v{VZ} offset:{L_DONE}")
    A("s_cmp_lt_i32 s82, s81\ns_cbranch_scc1 L_ld_fullm\nv_add_u32 v5, 8, v5")
    pair(F, (LG, LG), (rC, rC), ("s75", "s74"))
    A("s_sub_u32 s71, s71, 2\ns_cmp_lg_u32 s71, 0\ns_cbranch_scc1 L_ld_mid\nL_ld_midx:")
    A("s_cmp_lg_u32 s70, 0\ns_cbranch_scc1 L_ld_send")
    if diag == 1: A("s_memrealtime s[92:93]\ns_waitcnt lgkmcnt(0)")
    A(f"v_lshlrev_b32 v{LG}, 4, v0")
    for j in range(1, 4): A(f"v_or_b32 v{LG+j}, {piece[j] - 1024*j}, v{LG}")
    srd(rC, 8, 0x10000000)
    A("s_mov_b32 s76, 0\ns_mov_b32 s77, 0\ns_mov_b32 s70, 1\ns_mov_b32 s79, 0\ns_branch L_ld_loop")
    A("L_ld_send:")
    def que_read(n):
        A(f"s_and_b32 s83, {n}, 31\ns_lshl_b32 s83, s83, 2\nv_mov_b32 v5, s83\nds_read_b32 v7, v5 offset:{L_QUE}")
    stamp(3)
    A("L_ld_dre:")
    que_read("s79")
    A("L_ld_dyn:")
    A("s_waitcnt lgkmcnt(0)\nv_min3_u32 v4, v8, v9, v10\nv_min_u32 v4, v4, v11\nv_readfirstlane_b32 s73, v7")
    A("s_mov_b32 m0, s80\nv_readfirstlane_b32 s82, v4")
    A(f"ds_read_b128 v[8:11], v{VZ} offset:{L_DONE}")
    A("s_add_u32 s74, s79, 1\ns_lshr_b32 s75, s73, 16\ns_cmp_lg_u32 s75, s74\ns_cbranch_scc1 L_ld_dfull")
    A("s_cmp_lt_i32 s82, s81\ns_cbranch_scc1 L_ld_dfull")
    A("s_and_b32 s73, s73, 0xffff\ns_cmp_ge_u32 s73, 0x4000\ns_cbranch_scc1 L_ld_drain")
    A("s_lshl_b32 s75, s73, 10\ns_or_b32 s75, s75, s69\ns_mov_b32 s79, s74")
    que_read("s79")
    pair(Fd, (KA, LG), (rK, rC), ("s75", "s75"))
    A("s_branch L_ld_dyn")
    A("L_ld_drain:")
    stamp(1)
    A("s_lshl_b32 s82, s79, 1\nv_mov_b32 v25, s82")
    for r in range(dt - 1, -1, -1):
        A(f"s_waitcnt vmcnt({4*r})\nv_add_u32 v24, 1, v24\nds_write_b64 v6, v[24:25] offset:{L_FULL}")
    stamp(2)
    if diag and diag != 6: A(f"s_mov_b32 s94, s79\ns_sub_u32 s96, {P['spin']}, s3")
    if diag == 1: A("s_memtime s[64:65]\ns_waitcnt lgkmcnt(0)\ns_sub_u32 s98, s64, s66")
    dump_stamps()
    A("s_endpgm")
    A("L_ld_full:")
    spin("L_ld_loop")
    A("L_ld_bar:\ns_waitcnt lgkmcnt(0)\ns_barrier")
    if P["hold"]:
        A(f"L_ld_hold:\nds_read_b32 v4, v{VZ} offset:{L_QFLAG+20}\ns_waitcnt lgkmcnt(0)\nv_cmp_eq_u32 vcc, 4, v4\ns_cbranch_vccnz L_ld_barx")
        spin("L_ld_hold")
    else:
        A("s_branch L_ld_barx")
    A("L_ld_nmw:")
    spin("L_ld_nm")
    A("L_ld_fullm:")
    spin("L_ld_mid")
    A("L_ld_dfull:")
    spin("L_ld_dre")

    A("L_other:")
    if P["cpf"] == 1:
        A(f"s_cmp_lg_u32 {sW}, 4\ns_cbranch_scc1 L_nopf")
        code_prefetch(220)
        A("L_nopf:")
    A("s_waitcnt lgkmcnt(0)")
    srd(rX, 4, 1152); srd(rWS, 26, 0x400000 if diag else 0x100000)
    A(f"s_load_dword {sT}, s[26:27], {WS_EPOCH}")
    def tpf_rest():
        A(f"s_lshl_b32 s82, {sH}, 24\ns_add_u32 s83, s82, 0xfffffc\ns_mov_b32 s80, {576*9216 - 4}\ns_mov_b32 s81, {4096*1152 - 4}")
        A("s_load_dword s35, s[20:21], 0\ns_load_dword s35, s[20:21], s80\ns_load_dword s35, s[6:7], s83")
        A("s_load_dword s35, s[8:9], s82\ns_load_dword s35, s[8:9], s83\ns_load_dword s35, s[12:13], 0\ns_load_dword s35, s[12:13], s81")
    if P["tpf"]:
        A("; one scalar read at each end of the ranges used later brings their address translations in early")
        A(f"s_cmp_lg_u32 {sW}, 1\ns_cbranch_scc1 L_tpf_done\ns_mov_b32 s80, {576*9216 - 4}")
        A("s_load_dword s35, s[16:17], 0\ns_load_dword s35, s[18:19], 0\ns_load_dword s35, s[16:17], s80\ns_load_dword s35, s[18:19], s80")
        if P["tpf"] == 1: tpf_rest()
        A("L_tpf_done:")
    stamp(0)
    A(f"s_cmp_lg_u32 {sW}, 5\ns_cbranch_scc1 L_pre_done")
    A("v_and_b32 v1, 7, v0\nv_lshrrev_b32 v4, 3, v0\nv_lshl_add_u32 v5, v1, 3, v4\nv_lshlrev_b32 v5, 1, v5")
    for k in range(9): A(f"buffer_load_ushort v{X+k}, v5, {rX}, 0 offen offset:{128*k}")
    A(f"s_and_b32 s82, {sI}, 3\ns_mul_i32 s82, s82, 288")
    for k in range(3): A(f"buffer_load_ushort v{XR+k}, v5, {rX}, s82 offen offset:{128*k}")
    srd(rWQ, 10, 576 * 8192)
    A("v_lshlrev_b32 v5, 4, v1\nv_lshl_add_u32 v5, v4, 13, v5")
    A(f"s_lshl_b32 s82, s82, 12\ns_lshl_b32 s83, {sH}, 9\ns_add_u32 s82, s82, s83")
    A(f"s_lshr_b32 s83, {sI}, 2\ns_lshl_b32 s83, s83, 7\ns_add_u32 s82, s82, s83")
    for p in range(18):
        A(f"buffer_load_dwordx4 {vr(RG+4*p)}, v5, {rWQ}, s82 offen {wpol}")
        if p < 17: A("s_add_u32 s82, s82, 0x10000")
    A(f"s_cmp_lg_u32 {sI}, 0\ns_cbranch_scc1 L_pre_done\ns_mov_b64 exec, 1")
    A(f"s_lshl_b32 s82, {sH}, 8\ns_add_u32 s82, s82, {WS_CNT}\nv_mov_b32 v24, 0\nv_mov_b32 v25, 0\nv_mov_b32 v26, 0\nv_mov_b32 v27, 0\nbuffer_store_dwordx4 v[24:27], v{VZ}, {rWS}, s82 offen sc1")
    A("s_mov_b64 exec, -1")
    VWO = 104 + 2
    def wo_prep():
        srd(rWO, 12, 4096 * 1152)
        A(f"s_sub_u32 s82, {sI}, 1\ns_cmp_gt_u32 s82, 8\ns_cselect_b32 s54, 0, s54")
        A("v_lshrrev_b32 v2, 5, v0\nv_lshlrev_b32 v2, 7, v2\nv_bfe_u32 v3, v0, 3, 2\nv_lshl_add_u32 v2, v3, 1, v2")
        A(f"v_mul_u32_u24 v2, 0x480, v2\nv_and_b32 v3, 7, v0\nv_lshl_add_u32 v{VWO}, v3, 4, v2")
        A(f"s_lshl_b32 s82, s82, 7\ns_lshl_b32 s83, {sH}, 3\ns_add_u32 s83, s83, {sC}\ns_mul_i32 s83, s83, {32*1152}\ns_add_u32 s48, s82, s83")
        for t in range(1, 4): A(f"s_add_u32 s{48+t}, s48, {8*t*1152}")
    def wo_loads():
        for t in range(8):
            A(f"buffer_load_dwordx4 {vr(WO+4*t)}, v{VWO}, {rWO}, s{48+(t&3)} offen offset:{(t>>2)*1152} {wpol}")
    A("L_pre_done:")
    A(f"s_barrier\ns_cmp_lg_u32 {sW}, 5\ns_cbranch_scc1 L_c_pre")
    def lane_consts():
        A('; lane masks of the diagonal B operands and the lane offset of a split-row accumulator')
        A("v_and_b32 v1, 1, v0\nv_lshlrev_b32 v1, 4, v1\nv_mov_b32 v4, 0xffff\nv_lshlrev_b32 v4, v1, v4\nv_bfe_u32 v5, v0, 1, 2")
        for v in range(4):
            A(f"v_cmp_eq_u32 vcc, {v}, v5\ns_nop 1\nv_cndmask_b32 v{M+v}, 0, v4, vcc")
        A(f"v_bfe_u32 v4, v0, 4, 1\nv_and_b32 v5, 7, v0\nv_lshl_add_u32 v4, v4, 3, v5\nv_lshlrev_b32 v{VPL}, 4, v4")
    lane_consts()
    stamp(3, 2)
    A("s_waitcnt vmcnt(21)")
    stamp(5, 2)
    for k in range(9): A(f"v_lshlrev_b32 v{X+k}, 16, v{X+k}")
    A(f"v_add_f32 v1, v{X}, v{X+1}")
    for k in range(2, 9): A(f"v_add_f32 v1, v1, v{X+k}")
    wave_sum(1, 2)
    A("s_mov_b32 s82, 0x3ae38e39\ns_mov_b32 s83, 0x44100000")
    def div576(v):
        A(f"v_mul_f32 v2, s82, v{v}\nv_fma_f32 v3, -v2, s83, v{v}\nv_fma_f32 v{v}, v3, s82, v2")
    div576(1)
    A(f"v_sub_f32 v2, v{X}, v1\nv_mul_f32 v4, v2, v2")
    for k in range(1, 9): A(f"v_sub_f32 v2, v{X+k}, v1\nv_fmac_f32 v4, v2, v2")
    wave_sum(4, 2)
    div576(4)
    rbf(1, 1); rbf(4, 4)
    A("v_add_f32 v4, 0x3727c5ac, v4"); rbf(4, 4)
    A("v_sqrt_f32 v5, v4\ns_nop 0\nv_rcp_f32 v6, v5\nv_fma_f32 v3, -v5, v5, v4\nv_mul_f32 v6, 0.5, v6\nv_fma_f32 v5, v3, v6, v5")
    rbf(5, 5)
    A("v_rcp_f32 v6, v5")
    def norm(r):
        A(f"v_sub_f32 v2, v{r}, v1"); rbf(2, 2)
        A(f"v_mul_f32 v3, v2, v6\nv_fma_f32 v4, -v3, v5, v2\nv_fma_f32 v3, v4, v6, v3\nv_cvt_pk_bf16_f32 v{r}, v3, v3")
    A("s_waitcnt vmcnt(18)")
    for k in range(3):
        A(f"v_lshlrev_b32 v{XR+k}, 16, v{XR+k}"); norm(XR + k)
    A("v_lshlrev_b32 v4, 2, v0\nv_mov_b32 v5, 1")
    for k in range(3): A(f"ds_write_b32 v4, v{XR+k} offset:{L_GU + 256*k}")
    A(f"ds_write_b32 v{VZ}, v5 offset:{L_QFLAG+16}")
    A("s_nop 0")
    stamp(6, 2)
    for p in range(18):
        bbuild(XR + p // 8, p % 8, B + 4 * (p & 1))
        A(f"s_waitcnt vmcnt({17 - p})\ns_nop 0")
        mfma(DQ, RG + 4 * p, B + 4 * (p & 1), "0" if p == 0 else None)
    A("s_waitcnt lgkmcnt(0)")
    tagprep()
    A(f"s_lshl_b32 s82, {sH}, 12\ns_and_b32 s83, {sI}, 3\ns_lshl_b32 s83, s83, 10\ns_add_u32 s82, s82, s83")
    A(f"s_lshr_b32 s83, {sI}, 2\ns_lshl_b32 s83, s83, 8\ns_add_u32 s82, s82, s83")
    for i in range(4): A(f"v_mov_b32_dpp v{V+i}, v{DQ+i} row_ror:8 row_mask:0xf bank_mask:0xf")
    A("s_nop 0")
    for i in range(4): A(f"v_permlane32_swap_b32 v{V+i}, v{V+4+i}")
    for i in range(4): A(f"v_add_f32 v{K+i}, v{DQ+i}, v{V+4+i}")
    for i in range(4): A(f"v_bfi_b32 v{K+i}, 15, v{VT}, v{K+i}")
    stamp(7, 2)
    A("s_mov_b64 exec, 0x00ff00ff\ns_waitcnt vmcnt(0)")
    A(f"buffer_store_dwordx4 {vr(K)}, v{VPL}, {rWS}, s82 offen sc1")
    A("s_mov_b64 exec, -1")
    stamp(1)
    A("L_qgather:")
    A(f"v_lshlrev_b32 v4, 4, v0\ns_lshl_b32 s82, {sH}, 12")
    if P["qdelay"] is not None:
        A(f"L_qdel:\nds_read_b32 v1, v{VZ} offset:{L_FULL}\ns_waitcnt lgkmcnt(0)\nv_cmp_le_i32 vcc, {P['qdelay']}, v1\ns_cbranch_vccnz L_qdel_ok")
        A("s_sleep 2")
        spin("L_qdel")
        A("L_qdel_ok:")
    A("L_qpoll:")
    for p in range(4): A(f"buffer_load_dwordx4 {vr(RG+4*p)}, v4, {rWS}, s82 offen offset:{p*1024} sc1")
    for p in range(4):
        A(f"s_waitcnt vmcnt({3-p})")
        tagchk(1, range(RG + 4 * p, RG + 4 * p + 4), p == 0)
    A("v_and_b32 v1, 15, v1\nv_cmp_ne_u32 vcc, 0, v1")
    A("s_cbranch_vccz L_qready\ns_sleep 2")
    spin("L_qpoll")
    A("L_qready:")
    stamp(2)
    for i in range(4): A(f"v_add_f32 v{RG+i}, v{RG+i}, v{RG+4+i}\nv_add_f32 v{RG+8+i}, v{RG+8+i}, v{RG+12+i}")
    for i in range(4): A(f"v_add_f32 v{RG+i}, v{RG+i}, v{RG+8+i}")
    A("v_lshrrev_b32 v4, 3, v0\nv_and_b32 v5, 7, v0\nv_lshl_add_u32 v4, v4, 5, v5\nv_lshlrev_b32 v4, 1, v4")
    A(f"v_cvt_pk_bf16_f32 v{RG}, v{RG}, v{RG+1}\nv_cvt_pk_bf16_f32 v{RG+4}, v{RG+2}, v{RG+3}")
    A(f"ds_write_b16 v4, v{RG} offset:{L_Q}\nds_write_b16_d16_hi v4, v{RG} offset:{L_Q+16}")
    A(f"ds_write_b16 v4, v{RG+4} offset:{L_Q+32}\nds_write_b16_d16_hi v4, v{RG+4} offset:{L_Q+48}")
    A(f"v_mov_b32 v5, 1\ns_waitcnt lgkmcnt(0)\nds_write_b32 v{VZ}, v5 offset:{L_QFLAG}")
    if P["pre"]:
        A('; one plain read of the lines this workgroup publishes at the end')
        A("v_lshrrev_b32 v5, 4, v0\nv_and_b32 v6, 15, v0\nv_lshlrev_b32 v6, 4, v6\nv_lshl_add_u32 v5, v5, 12, v6")
        A(f"s_lshl_b32 s82, {sH}, 14\ns_lshl_b32 s83, {sI}, 8\ns_add_u32 s82, s82, s83\ns_add_u32 s82, s82, {WS_P}")
        A(f"s_lshl_b32 s80, {sH}, 12\ns_lshl_b32 s83, {sI}, 6\ns_add_u32 s80, s80, s83\ns_add_u32 s80, s80, {WS_ML}")
        A(f"s_lshl_b32 s81, {sI}, 12\ns_lshl_b32 s83, {sH}, 8\ns_add_u32 s81, s81, s83\ns_add_u32 s81, s81, {WS_Y - 4096}")
        A("v_lshlrev_b32 v4, 10, v0")
        A(f"buffer_load_dwordx4 v[24:27], v5, {rWS}, s82 offen\ns_mov_b64 exec, 15\nbuffer_load_dwordx4 v[28:31], v4, {rWS}, s80 offen")
        A(f"s_mov_b64 exec, 0xffff\nbuffer_load_dwordx4 v[32:35], v6, {rWS}, s81 offen")
        A("s_mov_b64 exec, -1\ns_waitcnt vmcnt(0)")
    A(f"s_mov_b32 s79, {sS}\ns_mul_i32 s72, {sH}, 3\ns_sub_u32 s72, 11, s72")
    A(f"s_lshl_b32 s78, {sH}, 8\ns_add_u32 s78, s78, {WS_CNT}\nv_mov_b32 v4, s78\nv_mov_b32 v5, 1\ns_mov_b64 exec, 1")
    def que_write(val, mid=False):
        if val == "s80":
            A('; pool position -> (row s73, column s71): the donated rows of five columns, then the last rows of all sixteen')
            A(f"s_mul_i32 s73, s80, 52429\ns_lshr_b32 s73, s73, 18\ns_mul_i32 s71, s73, 5\ns_sub_u32 s71, s80, s71\ns_add_u32 s71, s71, s72\ns_add_u32 s73, s73, {SN - XD}")
            A(f"s_add_u32 s74, s80, {16*SN - 5*XD}\ns_lshr_b32 s75, s74, 4\ns_cmp_lt_u32 s80, {5*XD}\ns_cselect_b32 s73, s73, s75\ns_cselect_b32 s71, s71, s74")
            if OM: A(f"s_and_b32 s74, s73, {(1 << P['rot']) - 1}\ns_xor_b32 s71, s71, s74")
            sdep("s74", "s73", [b - 10 for b in rest], "s75")
            sdep("s73", "s71", [b - 10 for b in own], "s75")
            A("s_or_b32 s74, s74, s73"); val = "s74"
        if mid:
            A(f"s_lshl_b32 s74, s74, 10\ns_lshl_b32 s75, {sH}, 24\ns_or_b32 s74, s74, s75\nv_mov_b32 v2, s74\nds_write_b32 v1, v2 offset:{L_MID}\nv_add_u32 v1, 4, v1")
            return
        A(f"s_and_b32 s82, s79, 31\ns_lshl_b32 s82, s82, 2\ns_add_u32 s79, s79, 1\ns_lshl_b32 s83, s79, 16\ns_or_b32 s83, s83, {val}")
        A(f"v_mov_b32 v1, s82\nv_mov_b32 v2, s83\nds_write_b32 v1, v2 offset:{L_QUE}")
    def demand(lbl, n, ahead):
        A(f"{lbl}:\nds_read_b32 v1, v{VZ} offset:{L_FULL}\ns_waitcnt lgkmcnt(0)\nv_readfirstlane_b32 s78, v1")
        A(f"s_add_u32 s78, s78, {dt + 2*ahead}\ns_ashr_i32 s78, s78, 1\ns_cmp_le_i32 {n}, s78\ns_cbranch_scc1 {lbl}_go\ns_sleep 2")
        spin(lbl)
        A(f"{lbl}_go:")
    npool = 5 * XD + 16 * (256 - SN)
    c0 = 0; t0 = 0; chain = []
    for cnt, sz in P["segs"]:
        chain.append((c0, t0, sz)); c0 += cnt; t0 += cnt * sz
        assert sz % 4 == 0 and sz <= 32
    chain2 = []; c2 = 0; t1 = t0
    for cnt, sz in P["seg2"] or ():
        chain2.append((c2, t1, sz)); c2 += cnt; t1 += cnt * sz
    assert c2 in (0, 16)
    nclaim = npool - t1
    assert c0 == 16 and t0 < npool and P["AH"] >= 3
    A(f"s_sub_u32 s81, {sS}, {dt + P['AHM']}")
    A(f"L_ca:\nds_read_b32 v1, v{VZ} offset:{L_FULL}\ns_waitcnt lgkmcnt(0)\nv_cmp_le_i32 vcc, s81, v1\ns_cbranch_vccnz L_ca_go\ns_sleep 2")
    spin("L_ca")
    A(f"L_ca_go:\nglobal_atomic_add v20, v4, v5, s[26:27] offset:4 {P['apol']}\ns_waitcnt vmcnt(0)\nv_readfirstlane_b32 s78, v20")
    for i, (c, t, sz) in enumerate(chain):
        if i == 0: A(f"s_movk_i32 s80, {t - c*sz}\ns_mov_b32 s81, {sz}")
        else: A(f"s_cmp_ge_u32 s78, {c}\ns_cselect_b32 s80, {t - c*sz}, s80\ns_cselect_b32 s81, {sz}, s81")
    A("s_mul_i32 s78, s78, s81\ns_add_u32 s80, s80, s78\ns_add_u32 s79, s79, s81\ns_add_u32 s77, s81, 1\nv_mov_b32 v1, 0")
    A("s_cmp_eq_u32 s81, 0\ns_cbranch_scc1 L_ca_done\nL_ca_put:")
    que_write("s80", True)
    A("s_add_u32 s80, s80, 1\ns_sub_u32 s81, s81, 1\ns_cmp_lg_u32 s81, 0\ns_cbranch_scc1 L_ca_put")
    A(f"L_ca_done:\nv_mov_b32 v2, s77\nds_write_b32 v{VZ}, v2 offset:{L_QFLAG+28}")
    if chain2:
        demand("L_cb", "s79", P["AHA"])
        A(f"global_atomic_add v20, v4, v5, s[26:27] offset:8 {P['apol']}\ns_waitcnt vmcnt(0)\nv_readfirstlane_b32 s78, v20")
        for i, (c, t, sz) in enumerate(chain2):
            if i == 0: A(f"s_movk_i32 s80, {t - c*sz}\ns_mov_b32 s81, {sz}")
            else: A(f"s_cmp_ge_u32 s78, {c}\ns_cselect_b32 s80, {t - c*sz}, s80\ns_cselect_b32 s81, {sz}, s81")
        A("s_mul_i32 s78, s78, s81\ns_add_u32 s80, s80, s78\ns_cmp_eq_u32 s81, 0\ns_cbranch_scc1 L_cb_done\nL_cb_put:")
        que_write("s80")
        A("s_add_u32 s80, s80, 1\ns_sub_u32 s81, s81, 1\ns_cmp_lg_u32 s81, 0\ns_cbranch_scc1 L_cb_put\nL_cb_done:")
    A("s_mov_b32 s76, s79\ns_add_u32 s77, s76, 4")
    for k in range(4):
        demand(f"L_cl_{k}", "s76", P["AH"])
        A(f"global_atomic_add v{20+k}, v4, v5, s[26:27] {P['apol']}")
        A(f"s_add_u32 s76, s76, 1\ns_cmp_lt_u32 s76, s77\ns_cbranch_scc1 L_cl_{(k+1)%4}")
        A(f"s_waitcnt vmcnt(3)\nv_readfirstlane_b32 s80, v{20+(k+1)%4}")
        A(f"s_cmp_ge_u32 s80, {nclaim}\ns_cbranch_scc1 L_cl_end\ns_add_u32 s80, s80, {t1}")
        que_write("s80")
    A("s_branch L_cl_0")
    A("L_cl_end:")
    que_write("0xffff")
    A("s_mov_b64 exec, -1")
    A(f"s_cmp_lg_u32 {sI}, 10\ns_cbranch_scc1 L_e_done\ns_cmp_gt_u32 {sH}, 8\ns_cbranch_scc1 L_e_done")
    srd(rOUT, 22, 1152)
    A("v_lshrrev_b32 v4, 5, v0\nv_and_b32 v5, 3, v0\nv_lshl_add_u32 v4, v4, 2, v5\nv_bfe_u32 v5, v0, 2, 3\nv_lshl_add_u32 v4, v4, 3, v5")
    A(f"v_lshlrev_b32 v2, 1, v4\ns_lshl_b32 s79, {sH}, 7")
    A(f"buffer_load_ushort v3, v2, {rX}, s79 offen")
    A(f"v_lshlrev_b32 v4, 2, v0\ns_lshl_b32 s82, {sH}, 12")
    def issue(b):
        for p in range(16): A(f"buffer_load_dword v{b+p}, v4, {rWS}, s80 offen offset:{256*p} {P['hl']}")
    def check(b, dst, behind, ok):
        for p in range(0, 16, 2):
            A(f"s_waitcnt vmcnt({behind+14-p})")
            tagchk(1, (b + p, b + p + 1), p == 0)
            if p == 0: A(f"v_add_f32 v{dst}, v{b}, v{b+1}")
            else: A(f"v_add_f32 v{dst}, v{dst}, v{b+p}\nv_add_f32 v{dst}, v{dst}, v{b+p+1}")
        tagtest(1)
        A(f"s_cbranch_vccz {ok}")
    A(f"s_mul_i32 s81, {sH}, {72*256}\ns_add_u32 s81, s81, {WS_F}")
    A("L_f_ffn:\ns_mov_b32 s80, s81\nv_mov_b32 v22, 0")
    def f_load(p):
        A(f"buffer_load_dword v{RG+p}, v4, {rWS}, s80 offen offset:{256*(p&15)} sc1")
        if p & 15 == 15: A("s_add_u32 s80, s80, 0x1000")
    for p in range(48): f_load(p)
    for p in range(0, 72, 2):
        A(f"s_waitcnt vmcnt({min(46, 70 - p)})")
        if p + 48 < 72: f_load(p + 48); f_load(p + 49)
        tagchk(1, (RG + p, RG + p + 1), p == 0)
        A(f"v_add_f32 v22, v22, v{RG+p}\nv_add_f32 v22, v22, v{RG+p+1}")
    tagtest(1)
    A("s_cbranch_vccz L_f_ffn_ok\ns_sleep 16")
    spin("L_f_ffn")
    A("L_f_ffn_ok:")
    rbf(22, 22)
    A(f"v_mul_f32 v5, {hex(LOG2E ^ 0x80000000)}, v22\nv_exp_f32 v5, v5\ns_nop 0\nv_add_f32 v5, 1.0, v5\nv_rcp_f32 v5, v5\ns_nop 0\nv_mul_f32 v22, v22, v5")
    rbf(22, 22)
    A("v_lshlrev_b32 v3, 16, v3")
    A(f"L_f_wait:\nds_read_b64 v[24:25], v{VZ} offset:{L_FULL}\ns_waitcnt lgkmcnt(0)\nv_cmp_ge_i32 vcc, v24, v25\ns_cbranch_vccnz L_f_go\ns_sleep 4")
    spin("L_f_wait")
    A("L_f_go:")
    A(f"s_add_u32 s80, s82, {WS_Y}")
    issue(RG)
    if P["f3"]:
        issue(RG + 16)
        A("L_f_att:")
        for i in range(3): issue(RG + 16 * ((i + 2) % 3)); check(RG + 16 * i, 23, 32, "L_f_att_ok")
    else:
        A("L_f_att:")
        issue(RG + 16); check(RG, 23, 16, "L_f_att_ok"); issue(RG); check(RG + 16, 23, 16, "L_f_att_ok")
    spin("L_f_att")
    A("L_f_att_ok:")
    rbf(23, 23)
    A("v_mul_f32 v23, v23, v22"); rbf(23, 23)
    A(f"v_add_f32 v23, v23, v3\nv_cvt_pk_bf16_f32 v23, v23, v23\nbuffer_store_short v23, v2, {rOUT}, s79 offen {P['opol']}")
    A(f"s_cmp_lg_u32 {sH}, 0\ns_cbranch_scc1 L_e_done")
    A(f"s_mov_b64 exec, 1\nv_mov_b32 v4, {WS_EPOCH}\nglobal_store_dword v4, v{VT}, s[26:27] sc1\ns_mov_b64 exec, -1\ns_branch L_e_done")

    A('; consumers')
    A("L_cons_main:")
    if P["tpf"] == 2:
        A(f"s_cmp_lg_u32 {sW}, 1\ns_cbranch_scc1 L_tpf2_done")
        tpf_rest()
        A("L_tpf2_done:")
    VSC = 148
    A("v_and_b32 v1, 15, v0\nv_lshrrev_b32 v4, 4, v0\nv_xor_b32 v5, v1, v4\nv_lshlrev_b32 v5, 4, v5")
    A(f"v_lshl_add_u32 v{KA}, v1, 8, v5")
    for ks in range(1, 4): A(f"v_xor_b32 v{KA+ks}, {64*ks}, v{KA}")
    A(f"v_lshlrev_b32 v5, 4, v1\nv_lshl_add_u32 v{VA}, v4, 10, v5")
    A(f"v_mov_b32 v{Vm}, 0xff800000\nv_mov_b32 v{VmL}, 0xff800000\nv_mov_b32 v{Vl}, 0")
    for i in range(4): A(f"v_mov_b32 v{O+i}, 0")
    A(f"s_lshl_b32 s82, {sC}, 2\nv_mov_b32 v{VDA}, s82")
    if diag == 3:
        for i in range(3): A(f"v_mov_b32 v{225+i}, 0")
        A("s_mov_b32 s86, 0")
    A(f"v_lshrrev_b32 v2, 3, v0\nv_lshlrev_b32 v2, 3, v2\ns_lshl_b32 s82, {sC}, 6\nv_add_u32 v{VSC}, s82, v2")
    A("v_bfe_u32 v5, v0, 3, 1\nv_lshlrev_b32 v5, 8, v5\nv_lshl_add_u32 v5, v4, 4, v5")
    A(f"s_mov_b32 s72, {hex(SCALE)}\ns_mov_b32 s73, {hex(LOG2E)}\ns_mov_b32 s74, 0xffff0000")
    A(f"s_mov_b32 s76, {sC}\ns_lshl_b32 s77, {sC}, 12\ns_add_u32 s77, s77, {RING0}\ns_mov_b32 s78, 0")
    A(f"s_mov_b32 s60, {sS}\ns_mov_b32 s61, 0")
    A(f"s_add_u32 s34, {sC}, {P['dn']}\ns_cmp_lt_i32 {sU}, 0\ns_cselect_b32 s34, -1, s34")
    assert L_SC + 64 * (SN - XD - NSL - 8) >= L_Y + 2048
    wo_prep()
    MA, MRG = X, RG
    for i in range(1, 4):
        A(f"s_add_u32 s82, {sC}, {i}\ns_and_b32 s82, s82, 3\ns_lshl_b32 s83, s82, 9\ns_lshl_b32 s82, s82, 10")
        A(f"v_lshl_add_u32 v{MA+2*i-2}, v0, 3, s83\nv_lshl_add_u32 v{MA+2*i-1}, v0, 4, s82")
    A(f"v_lshrrev_b32 v2, 4, v0\nv_and_b32 v3, 15, v0\nv_lshlrev_b32 v3, 4, v3\nv_lshl_add_u32 v{MA+6}, v2, 12, v3")
    A(f"v_lshl_add_u32 v{MA+7}, v2, 10, v3" if P["mlfull"] else f"v_and_b32 v3, 8, v0\nv_lshl_add_u32 v{MA+7}, v2, 10, v3")
    A(f"s_lshl_b32 s56, {sH}, 14\ns_add_u32 s56, s56, {WS_P}\ns_lshl_b32 s83, {sI}, 8\ns_add_u32 s58, s56, s83")
    A(f"s_lshl_b32 s83, {sC}, 12\ns_add_u32 s56, s56, s83")
    A(f"s_lshl_b32 s57, {sH}, 12\ns_add_u32 s57, s57, {WS_ML}\ns_lshl_b32 s83, {sI}, 6\ns_add_u32 s59, s83, s57")
    A(f"s_lshl_b32 s83, {sC}, 10\ns_add_u32 s57, s57, s83\ns_mov_b32 s70, -1\ns_brev_b32 s75, -2")
    if P["wok"]: A("s_mov_b32 s62, 1")
    def merge_reads():
        A(f"ds_read_b32 v{MRG+18}, v{VZ} offset:{L_QFLAG+4}")
        for i in range(3): A(f"ds_read_b64 {vr(MRG+12+2*i, 2)}, v{MA+2*i} offset:{L_MML}")
        for i in range(3): A(f"ds_read_b128 {vr(MRG+4*i)}, v{MA+2*i+1} offset:{L_MO}")
    A(f"L_qwait:\nds_read_b32 v1, v{VZ} offset:{L_QFLAG}\ns_waitcnt lgkmcnt(0)\nv_readfirstlane_b32 s79, v1")
    A("s_cmp_lg_u32 s79, 0\ns_cbranch_scc1 L_qgo\ns_sleep 1")
    spin("L_qwait")
    A("L_qgo:")
    tagprep()
    for ks in range(4): A(f"ds_read_b128 {vr(Q+4*ks)}, v5 offset:{L_Q + 64*ks}")
    A("s_waitcnt lgkmcnt(0)")
    stamp(4)
    def landed(lbl, item):
        A(f"s_cmp_lt_i32 {item}, s78\ns_cbranch_scc1 {lbl}_go")
        A(f"{lbl}_poll:\nds_read_b32 v22, v{VZ} offset:{L_FULL}\ns_waitcnt lgkmcnt(0)\nv_readfirstlane_b32 s78, v22")
        A(f"s_cmp_lt_i32 {item}, s78\ns_cbranch_scc1 {lbl}_go")
        spin(f"{lbl}_poll")
        A(f"{lbl}_go:")
    ntr = [0]
    def trace():
        if diag == 3:
            ntr[0] += 1; n = ntr[0]
            A(f"s_memrealtime s[84:85]\ns_waitcnt lgkmcnt(0)\ns_and_b32 m0, s86, 63\ns_cmp_lt_u32 s86, 64\ns_cbranch_scc0 L_tr{n}a")
            A(f"v_writelane_b32 v225, s84, m0\ns_branch L_tr{n}c\nL_tr{n}a:\ns_cmp_lt_u32 s86, 128\ns_cbranch_scc0 L_tr{n}b\nv_writelane_b32 v226, s84, m0\ns_branch L_tr{n}c")
            A(f"L_tr{n}b:\nv_writelane_b32 v227, s84, m0\nL_tr{n}c:\ns_add_u32 s86, s86, 1")
    def slot_next(step):
        A(f"s_add_u32 s77, s77, {step}\ns_sub_u32 s79, s77, {NSL*4096}\ns_cmp_ge_u32 s77, {RINGE}\ns_cselect_b32 s77, s79, s77")
    def k_reads():
        for ks in range(4): A(f"v_add_u32 v{AD+ks}, s77, v{KA+ks}\nds_read_b128 {vr(K+4*ks)}, v{AD+ks}")
    def qk():
        for ks in range(4):
            A(f"s_waitcnt lgkmcnt({3-ks})")
            mfma(S, K + 4 * ks, Q + 4 * ks, "0" if ks == 0 else None)
    def v_reads(off):
        for r in range(4): A(f"ds_read_b128 {vr(V+4*r)}, v{AD+4} offset:{off + 256*r}")
    def softmax(lbl):
        A(f"v_max3_f32 v22, v{S}, v{S+1}, v{S+2}\nv_max_f32 v22, v22, v{S+3}")
        A(f"v_cmp_gt_f32 vcc, v22, v{Vm}\ns_cbranch_vccnz {lbl}_rescale\n{lbl}_cont:")
        for i in range(4): A(f"v_fma_f32 v{PP+i}, v{S+i}, s73, -v{VmL}")
        for i in range(4): A(f"v_exp_f32 v{PP+i}, v{PP+i}")
        A(f"s_waitcnt lgkmcnt(0)\nds_write_b32 v{VDA}, v{AD} offset:{L_DONE}")
    def pv():
        for i in range(4):
            A(f"v_cvt_pk_bf16_f32 v22, v{PP+i}, v{PP+i}")
            for v in range(4): A(f"v_and_b32 v{B+4*i+v}, v22, v{M+v}")
            A(f"v_add_f32 v{Vl}, v{Vl}, v{PP+i}")
            if i > 0: mfma(O, V + 4 * (i - 1), B + 4 * (i - 1))
        A("s_nop 0")
        mfma(O, V + 12, B + 12)
    def rescale(lbl):
        A(f"{lbl}_rescale:")
        for op in ("v_permlane16_swap_b32", "v_permlane32_swap_b32"):
            A(f"v_mov_b32 v23, v22\ns_nop 1\n{op} v23, v22\nv_max_f32 v22, v22, v23")
        A(f"v_max_f32 v{Vm}, v{Vm}, v22\nv_mul_f32 v22, s73, v{Vm}\nv_sub_f32 v23, v{VmL}, v22\nv_exp_f32 v23, v23\nv_mov_b32 v{VmL}, v22")
        A(f"v_mul_f32 v{Vl}, v{Vl}, v23")
        for i in range(4): A(f"v_mul_f32 v{O+i}, v{O+i}, v23")
        A(f"s_branch {lbl}_cont")
    A(f"v_mov_b32 v150, v23\ns_cmp_ge_i32 {sU}, 0\ns_cbranch_scc1 L_c_wd")
    A("L_k:")
    landed("L_k", "s76")
    trace()
    k_reads()
    slot_next(0x4000)
    A(f"s_add_u32 s76, s76, 1\nv_mov_b32 v22, s76\ns_add_u32 s76, s76, 3")
    qk()
    A(f"ds_write_b32 v{VDA}, v22 offset:{L_DONE}\ns_mov_b32 exec_lo, 0x01010101\ns_mov_b32 exec_hi, 0x01010101\ns_nop 4")
    for i in range(4): A(f"v_cvt_pk_bf16_f32 v{S+i}, 0, v{S+i}")
    for i in range(4): A(f"v_mul_f32 v{S+i}, s72, v{S+i}")
    A(f"v_cvt_pk_bf16_f32 v22, v{S}, v{S+1}\nv_cvt_pk_bf16_f32 v23, v{S+2}, v{S+3}")
    A(f"ds_write_b64 v{VSC}, v[22:23] offset:{L_SC}\ns_mov_b64 exec, -1\nv_add_u32 v{VSC}, 0x100, v{VSC}")
    A("s_cmp_eq_u32 s76, s34\ns_cbranch_scc1 L_c_down\nL_k_on:\ns_cmp_lt_u32 s76, s60\ns_cbranch_scc1 L_k")
    A("s_cmp_lg_u32 s61, 0\ns_cbranch_scc1 L_k_end")
    A(f"L_k_nm:\nds_read_b32 v22, v{VZ} offset:{L_QFLAG+28}\ns_waitcnt lgkmcnt(0)\nv_readfirstlane_b32 s82, v22\ns_sub_u32 s82, s82, 1\ns_cbranch_scc0 L_k_nm_ok")
    spin("L_k_nm")
    A("L_k_nm_ok:\ns_add_u32 s60, s60, s82\ns_lshl_b32 s61, s60, 1\ns_branch L_k_on\nL_k_end:")
    A(f"s_lshl_b32 s82, s60, 6\nv_subrev_u32 v{VSC}, s82, v{VSC}")
    A("L_v:")
    landed("L_v", "s76")
    trace()
    A(f"ds_read_b64 v[22:23], v{VSC} offset:{L_SC}\nv_add_u32 v{AD+4}, s77, v{VA}")
    v_reads(0)
    slot_next(0x4000)
    A(f"v_add_u32 v{VSC}, 0x100, v{VSC}\ns_add_u32 s76, s76, 1\nv_mov_b32 v{AD}, s76\ns_add_u32 s76, s76, 3")
    A(f"s_waitcnt lgkmcnt(4)\nv_lshlrev_b32 v{S}, 16, v22\nv_and_b32 v{S+1}, s74, v22\nv_lshlrev_b32 v{S+2}, 16, v23\nv_and_b32 v{S+3}, s74, v23")
    softmax("L_v"); pv()
    A("s_cmp_lt_u32 s76, s61\ns_cbranch_scc1 L_v")
    A(f"s_add_u32 s76, s76, {sC}\ns_lshl_b32 s82, {sC}, 12")
    slot_next("s82")
    A("L_c_top:\ns_cmp_lt_i32 s76, s78\ns_cbranch_scc1 L_c_go\ns_cmp_ge_i32 s76, s75\ns_cbranch_scc1 L_c_exit")
    A(f"L_c_poll:\nds_read_b64 v[22:23], v{VZ} offset:{L_FULL}\ns_waitcnt lgkmcnt(0)")
    A("v_readfirstlane_b32 s78, v22\nv_readfirstlane_b32 s75, v23\ns_add_u32 s70, s75, 6")
    A("s_cmp_lt_i32 s76, s78\ns_cbranch_scc1 L_c_go\ns_cmp_ge_i32 s76, s75\ns_cbranch_scc1 L_c_exit")
    spin("L_c_poll")
    A("L_c_vwait:")
    A(f"ds_read_b64 v[22:23], v{VZ} offset:{L_FULL}\ns_waitcnt lgkmcnt(0)\nv_readfirstlane_b32 s78, v22\nv_readfirstlane_b32 s75, v23")
    A("s_add_u32 s70, s75, 6\ns_cmp_lt_i32 s82, s78\ns_cbranch_scc1 L_c_v")
    spin("L_c_vwait")
    rescale("L_v"); rescale("L_c")
    A("L_c_go:")
    trace(); trace()
    k_reads()
    A(f"v_add_u32 v{AD+4}, s77, v{VA}")
    slot_next(0x8000)
    qk()
    if P["wok"]:
        A("s_add_u32 s82, s76, 8\ns_cmp_lg_u32 s82, s70\ns_cbranch_scc1 L_c_nowo\ns_mov_b32 s62, 0")
        wo_loads()
        A("L_c_nowo:")
    A("s_add_u32 s82, s76, 1\ns_cmp_lt_i32 s82, s78\ns_cbranch_scc0 L_c_vwait\nL_c_v:")
    v_reads(4096)
    A(f"s_add_u32 s76, s76, 2\nv_mov_b32 v{AD}, s76\ns_add_u32 s76, s76, 6")
    for i in range(4): A(f"v_cvt_pk_bf16_f32 v{S+i}, 0, v{S+i}")
    for i in range(4): A(f"v_mul_f32 v{S+i}, s72, v{S+i}")
    for i in range(4): A(f"v_cvt_pk_bf16_f32 v{S+i}, 0, v{S+i}")
    softmax("L_c")
    A("s_cmp_lg_u32 s76, s70\ns_cbranch_scc1 L_c_pvb\ns_mov_b32 s61, 0")
    merge_reads()
    A("L_c_pvb:")
    pv()
    A("s_branch L_c_top")
    A("L_c_exit:")
    if diag == 3:
        A(f"s_lshl_b32 s84, s2, 2\ns_add_u32 s84, s84, {sC}\ns_lshl_b32 s84, s84, 10\ns_add_u32 s84, s84, {WS_DIAG + 0x20000}\nv_lshlrev_b32 v1, 2, v0")
        for i in range(3): A(f"buffer_store_dword v{225+i}, v1, {rWS}, s84 offen offset:{256*i}")
        A(f"buffer_store_dword v{VZ}, v1, {rWS}, s84 offen offset:768")
    stamp(5)
    for op in ("v_permlane16_swap_b32", "v_permlane32_swap_b32"):
        A(f"v_mov_b32 v23, v{Vl}\ns_nop 1\n{op} v23, v{Vl}\nv_add_f32 v{Vl}, v{Vl}, v23")
    A("s_cmp_eq_u32 s61, 0\ns_cbranch_scc1 L_e_dir")
    A(f"s_lshr_b32 s82, s75, 1\ns_sub_u32 s82, s82, 1\ns_and_b32 s82, s82, 3\ns_cmp_eq_u32 s82, {sC}\ns_cbranch_scc1 L_e_re")
    A(f"s_lshl_b32 s82, {sC}, 10\nv_lshl_add_u32 v4, v0, 4, s82\nds_write_b128 v4, {vr(O)} offset:{L_MO}")
    A(f"s_lshl_b32 s82, {sC}, 9\nv_lshl_add_u32 v4, v0, 3, s82\nv_mov_b32 v22, v{VmL}\nv_mov_b32 v23, v{Vl}\nds_write_b64 v4, v[22:23] offset:{L_MML}")
    A(f"v_mov_b32 v1, 1\ns_mov_b64 exec, 1\nds_add_u32 v{VZ}, v1 offset:{L_QFLAG+4}\ns_mov_b64 exec, -1")
    wo_loads()
    A(f"L_e_wait:\nds_read_b32 v1, v{VZ} offset:{L_QFLAG+12}\ns_waitcnt lgkmcnt(0)\nv_cmp_ne_u32 vcc, 0, v1\ns_cbranch_vccnz L_e_l1p")
    spin("L_e_wait")
    A("L_e_re:")
    merge_reads()
    A(f"L_e_dir:\ns_waitcnt lgkmcnt(3)\nv_cmp_ne_u32 vcc, 3, v{MRG+18}\nv_max3_f32 v22, v{MRG+12}, v{MRG+14}, v{MRG+16}\ns_cbranch_vccz L_e_go")
    spin("L_e_re")
    A(f"L_e_go:\nv_max_f32 v22, v22, v{VmL}")
    A(f"v_sub_f32 v{VmL}, v{VmL}, v22")
    for c in range(3): A(f"v_sub_f32 v{MRG+12+2*c}, v{MRG+12+2*c}, v22")
    A(f"v_exp_f32 v{VmL}, v{VmL}")
    for c in range(3): A(f"v_exp_f32 v{MRG+12+2*c}, v{MRG+12+2*c}")
    for i in range(4): A(f"v_mul_f32 v{O+i}, v{VmL}, v{O+i}")
    A("s_waitcnt lgkmcnt(0)")
    for c in range(3):
        for i in range(4): A(f"v_fmac_f32 v{O+i}, v{MRG+12+2*c}, v{MRG+4*c+i}")
    for i in range(4): tagput(O + i)
    A(f"buffer_store_dwordx4 {vr(O)}, v{MA+6}, {rWS}, s58 offen {P['hs']}")
    A(f"v_mul_f32 v23, v{VmL}, v{Vl}")
    for c in range(3): A(f"v_fmac_f32 v23, v{MRG+12+2*c}, v{MRG+13+2*c}")
    if P["mlfull"]:
        A(f"v_perm_b32 v{K}, v22, v{VT}, s101\nv_perm_b32 v{K+1}, v23, v{VT}, s101\ns_nop 0")
        A(f"v_mov_b32_dpp v{K+2}, v{K} row_ror:8 row_mask:0xf bank_mask:0xf\nv_mov_b32_dpp v{K+3}, v{K+1} row_ror:8 row_mask:0xf bank_mask:0xf")
        A("s_mov_b32 exec_lo, 0x000f000f\ns_mov_b32 exec_hi, 0x000f000f")
        A(f"buffer_store_dwordx4 {vr(K)}, v{MA+7}, {rWS}, s59 offen {P['hs']}\ns_mov_b64 exec, -1")
    else:
        tagput(22); tagput(23)
        A("s_mov_b32 exec_lo, 0x01010101\ns_mov_b32 exec_hi, 0x01010101")
        A(f"buffer_store_dwordx2 v[22:23], v{MA+7}, {rWS}, s59 offen {P['hs']}\ns_mov_b64 exec, -1")
    A(f"v_mov_b32 v1, 1\nds_write_b32 v{VZ}, v1 offset:{L_QFLAG+12}")
    if P["wok"]: A("s_cmp_eq_u32 s62, 0\ns_cbranch_scc1 L_e_l1p")
    wo_loads()
    A("L_e_l1p:\ns_mov_b32 s76, s56\ns_mov_b32 s77, s57\nv_lshlrev_b32 v6, 2, v0")
    A("L_e_l1:\ns_waitcnt lgkmcnt(0)")
    stamp(6); stamp(6, 5)
    A(f"s_sub_u32 s78, {sI}, 1\ns_cmp_gt_u32 s78, 8\ns_cbranch_scc1 L_e_done")
    A("v_and_b32 v4, 15, v0\nv_lshlrev_b32 v4, 6, v4\nv_lshrrev_b32 v5, 5, v0\nv_lshl_add_u32 v4, v5, 3, v4")
    acc = (S, S + 1, S + 2, S + 3)
    def l1_issue(b, ml):
        A(f"buffer_load_dwordx2 {vr(ml, 2)}, v4, {rWS}, s77 offen {P['hl']}")
        for p in range(16): A(f"buffer_load_dword v{b+p}, v6, {rWS}, s76 offen offset:{256*p} {P['hl']}")
    def l1_check(b, ml, behind):
        A(f"s_waitcnt vmcnt({behind+16})\nv_mov_b32 v7, v{ml}")
        tagchk(1, (ml, ml + 1), True)
        A("v_and_b32 v2, 0xff, v1\nv_cmp_ne_u32 vcc, 0, v2\ns_cbranch_vccnz L_l1_again")
        for i, r in enumerate((8, 4, 2, 1)):
            A(f"v_mov_b32 v{acc[i]}, 0" + ("" if i == 0 else "\ns_nop 0"))
            A(f"v_max_f32_dpp v7, v7, v7 row_ror:{r} row_mask:0xf bank_mask:0xf")
        A(f"v_sub_f32 v22, v{ml}, v7\nv_exp_f32 v22, v22\ns_nop 0\nv_mul_f32 v23, v22, v{ml+1}")
        for p in range(0, 16, 2):
            A(f"s_waitcnt vmcnt({behind+14-p})")
            tagchk(1, (b + p, b + p + 1))
            if p < 8: A(f"v_add_f32_dpp v23, v23, v23 row_ror:{8 >> (p // 2)} row_mask:0xf bank_mask:0xf")
            if p == 8: A("v_rcp_f32 v23, v23")
            for x in (p, p + 1): A(f"v_fmac_f32_dpp v{acc[x&3]}, v22, v{b+x} row_newbcast:{x} row_mask:0xf bank_mask:0xf")
        tagtest(1)
        A(f"v_add_f32 v2, v{S}, v{S+1}\nv_add_f32 v3, v{S+2}, v{S+3}\ns_cbranch_vccz L_l1_ok")
    if P["l1d"]: A(f"s_sleep {P['l1d']}")
    A("L_l1_poll:")
    l1_issue(RG, RG + 32); l1_check(RG, RG + 32, 0)
    A("L_l1_again:")
    spin("L_l1_poll")
    A("L_l1_ok:")
    stamp(3, 5)
    A("v_add_f32 v1, v2, v3\nv_mul_f32 v1, v1, v23\nv_cvt_pk_bf16_f32 v1, v1, v1\ns_nop 1")
    for t in range(8): A(f"v_mov_b32_dpp v{V+t}, v1 row_newbcast:{t} row_mask:0xf bank_mask:0x3")
    for t in range(8): A(f"v_mov_b32_dpp v{V+t}, v1 row_newbcast:{8+t} row_mask:0xf bank_mask:0xc")
    for t in range(8):
        for v in range(4): A(f"v_and_b32 v{B+4*(t&3)+v}, v{V+t}, v{M+v}")
        if t > 0: mfma(S, WO + 4 * (t - 1), B + 4 * ((t - 1) & 3), "0" if t == 1 else None)
    A("s_nop 0")
    mfma(S, WO + 28, B + 12)
    stamp(5, 5)
    A(f"s_lshl_b32 s82, {sC}, 9\nv_lshrrev_b32 v4, 5, v0\nv_lshl_add_u32 v4, v4, 8, v{VPL}\nv_add_u32 v4, s82, v4\nv_mov_b32 v1, 1")
    exec_valid()
    A(f"s_lshl_b32 s82, s78, 12\ns_lshl_b32 s83, {sH}, 8\ns_add_u32 s82, s82, s83\ns_add_u32 s82, s82, {WS_Y}")
    A(f"ds_write_b128 v4, {vr(S)} offset:{L_Y}\ns_mov_b64 exec, 1")
    A(f"ds_add_rtn_u32 v1, v{VZ}, v1 offset:{L_QFLAG+8}\ns_mov_b64 exec, -1")
    for i in range(8): A(f"ds_read_b32 v{K+i}, v6 offset:{L_Y + 256*i}")
    A("s_waitcnt lgkmcnt(8)\nv_readfirstlane_b32 s78, v1\ns_cmp_lg_u32 s78, 3\ns_cbranch_scc1 L_e_done")
    A(f"s_waitcnt lgkmcnt(4)\nv_add_f32 v{K}, v{K}, v{K+1}\nv_add_f32 v{K+2}, v{K+2}, v{K+3}")
    A(f"s_waitcnt lgkmcnt(0)\nv_add_f32 v{K+4}, v{K+4}, v{K+5}\nv_add_f32 v{K+6}, v{K+6}, v{K+7}")
    A(f"v_add_f32 v{K}, v{K}, v{K+2}\nv_add_f32 v{K+4}, v{K+4}, v{K+6}\nv_add_f32 v22, v{K}, v{K+4}")
    tagput(22)
    A(f"buffer_store_dword v22, v6, {rWS}, s82 offen {P['hs']}")
    A("L_e_done:")
    stamp(7); stamp(7, 5)
    dump_stamps()
    A("L_end:\ns_endpgm")

    GU = [28 + 4 * i for i in range(14)] + [108 + 4 * i for i in range(4)]; DG, GR = 92, 44
    ACC = [108 + 4 * i for i in range(8)] + [92]
    FS = RING0 - 4 * 2304
    assert L_SC + 64 * (P["dn"] + NSL + 12) <= FS and P["dn"] % 4 == 0
    def wd_loads():
        for n in range(18):
            t, ct = divmod(n, 9)
            if n >= P["FD"]: A(f"s_waitcnt vmcnt({P['FD'] - 1})")
            A(f"buffer_load_dwordx4 {vr(RG+4*n)}, v150, {rWD}, {'s33' if t else 's32'} offen offset:{ct*128} {wpol}")
    def join(off, lbl, n):
        A(f"{lbl}:\nds_read_b32 v1, v{VZ} offset:{off}\ns_waitcnt lgkmcnt(0)\nv_cmp_eq_u32 vcc, {n}, v1\ns_cbranch_vccnz {lbl}_ok")
        spin(lbl)
        A(f"{lbl}_ok:")
    A("L_c_pre:")
    A(f"s_lshl_b32 {sU}, {sH}, 2\ns_add_u32 {sU}, {sU}, {sK}\ns_sub_u32 {sU}, {sU}, 11\ns_lshr_b32 s82, {sH}, 1\ns_add_u32 s82, s82, 64")
    A(f"s_bitcmp1_b32 {sH}, 0\ns_cselect_b32 s83, -1, s82\ns_cselect_b32 s82, s82, -1")
    A(f"s_cmp_eq_u32 {sK}, 15\ns_cselect_b32 {sU}, s83, {sU}\ns_cmp_lt_u32 {sK}, 11\ns_cselect_b32 {sU}, -1, {sU}")
    A(f"s_lshr_b32 s83, {sI}, 2\ns_cmp_eq_u32 s83, 0\ns_cselect_b32 s82, s82, -1")
    A(f"s_lshl_b32 {sG}, {sH}, 2\ns_add_u32 {sG}, {sG}, s83\ns_cmp_ge_u32 {sC}, 2\ns_cselect_b32 {sG}, s82, {sG}")
    A(f"s_bitcmp1_b32 {sC}, 0\ns_cselect_b64 s[56:57], s[18:19], s[16:17]\ns_mov_b32 s58, {576*9216}\ns_mov_b32 s59, 0x20000")
    srd(rWD, 20, 4608 * 1152)
    A("v_lshrrev_b32 v4, 3, v0\nv_and_b32 v5, 7, v0\nv_lshlrev_b32 v5, 4, v5")
    A("v_mul_u32_u24 v22, 0x2400, v4\nv_add_u32 v22, v22, v5\nv_mul_u32_u24 v23, 0x480, v4\nv_add_u32 v23, v23, v5")
    A(f"s_lshl_b32 s32, {sU}, 2\ns_add_u32 s32, s32, {sC}\ns_mul_i32 s32, s32, {16*1152}\ns_add_u32 s33, s32, {8*1152}")
    A(f"s_cmp_lt_i32 {sG}, 0\ns_cbranch_scc1 L_c_pre_x")
    A(f"s_and_b32 s82, {sI}, 3\ns_mul_i32 s82, s82, {144*9216}\ns_lshl_b32 s83, {sG}, 7\ns_add_u32 s82, s82, s83")
    for p in range(18):
        if p >= P["FG"]: A(f"s_waitcnt vmcnt({P['FG'] - 1})")
        A(f"buffer_load_dwordx4 {vr(GU[p])}, v22, {rWG}, s82 offen {wpol}")
        if p < 17: A(f"s_add_u32 s82, s82, {8*9216}")
    A(f"L_c_pre_x:\ns_mov_b64 exec, 1\nv_mov_b32 v1, 1\nds_add_u32 v{VZ}, v1 offset:{L_QFLAG+20}\ns_mov_b64 exec, -1")
    lane_consts()
    A("s_waitcnt lgkmcnt(0)")
    tagprep()
    A(f"s_cmp_lt_i32 {sG}, 0\ns_cbranch_scc1 L_cons_main")
    join(L_QFLAG + 16, "L_gu_x", 1)
    A("v_lshlrev_b32 v4, 2, v0")
    for k in range(3): A(f"ds_read_b32 v{XR+k}, v4 offset:{L_GU + 256*k}")
    A("s_waitcnt lgkmcnt(0)")
    for p in range(18):
        bbuild(XR + p // 8, p % 8, B + 4 * (p & 1))
        A(f"s_waitcnt vmcnt({17 - p})\ns_nop 0")
        mfma(DG, GU[p], B + 4 * (p & 1), "0" if p == 0 else None)
    A(f"s_lshl_b32 s82, {sG}, 11\ns_and_b32 s83, {sI}, 3\ns_lshl_b32 s83, s83, 9\ns_add_u32 s82, s82, s83")
    A(f"s_and_b32 s83, {sC}, 1\ns_lshl_b32 s83, s83, 8\ns_add_u32 s82, s82, s83\ns_add_u32 s82, s82, {WS_G}")
    for i in range(4): A(f"v_mov_b32_dpp v{GR+i}, v{DG+i} row_ror:8 row_mask:0xf bank_mask:0xf")
    A("s_nop 0")
    for i in range(4): A(f"v_permlane32_swap_b32 v{GR+i}, v{GR+4+i}")
    for i in range(4): A(f"v_add_f32 v{DG+i}, v{DG+i}, v{GR+4+i}")
    for i in range(4): A(f"v_bfi_b32 v{DG+i}, 15, v{VT}, v{DG+i}")
    A(f"s_mov_b64 exec, 0x00ff00ff\nbuffer_store_dwordx4 {vr(DG)}, v{VPL}, {rWS}, s82 offen sc1\ns_mov_b64 exec, -1")
    A("s_branch L_cons_main")
    A("L_c_wd:")
    wd_loads()
    A("s_branch L_k")
    A("L_c_down:")
    A(f"v_and_b32 v4, 1, v0\ns_lshl_b32 s82, {sC}, 1\nv_add_u32 v4, s82, v4\nv_lshrrev_b32 v5, 2, v4\nv_and_b32 v4, 3, v4\nv_lshl_add_u32 v4, v5, 5, v4")
    A(f"v_lshrrev_b32 v5, 3, v0\nv_lshl_add_u32 v4, v5, 2, v4\nv_lshlrev_b32 v4, 2, v4\ns_lshl_b32 s82, {sU}, 11\ns_add_u32 s82, s82, {WS_G}")
    A("L_dn_poll:")
    for i in range(8): A(f"buffer_load_dword v{GR+i}, v4, {rWS}, s82 offen offset:{256*i} sc1")
    A("s_waitcnt vmcnt(0)")
    tagchk(1, range(GR, GR + 8), True)
    A("v_and_b32 v1, 15, v1\nv_cmp_ne_u32 vcc, 0, v1\ns_cbranch_vccz L_dn_ok\ns_sleep 2")
    spin("L_dn_poll")
    A("L_dn_ok:")
    for m in range(2):
        A(f"v_add_f32 v{GR+m}, v{GR+m}, v{GR+2+m}\nv_add_f32 v{GR+4+m}, v{GR+4+m}, v{GR+6+m}\nv_add_f32 v{GR+m}, v{GR+m}, v{GR+4+m}")
    rbf(GR, GR); rbf(GR + 1, GR + 1)
    A(f"v_mul_f32 v{GR}, {hex(LOG2E ^ 0x80000000)}, v{GR}\nv_exp_f32 v{GR}, v{GR}\ns_nop 0\nv_add_f32 v{GR}, 1.0, v{GR}\nv_rcp_f32 v{GR}, v{GR}\ns_nop 0")
    rbf(GR, GR)
    A(f"v_mul_f32 v{GR}, v{GR}, v{GR+1}\nv_cvt_pk_bf16_f32 v{XR}, v{GR}, v{GR}\ns_nop 1")
    for n in range(18):
        t, ct = divmod(n, 9)
        if ct == 0:
            bbuild(XR, t, B + 4 * t)
            A("s_nop 1")
        mfma(ACC[ct], RG + 4 * n, B + 4 * t, "0" if t == 0 else None)
    A(f"s_mul_i32 s82, {sC}, 2304\ns_add_u32 s82, s82, {FS}\nv_add_u32 v4, s82, v{VPL}")
    for ct in range(9):
        for i in range(4): A(f"v_mov_b32_dpp v{GR+i}, v{ACC[ct]+i} row_ror:8 row_mask:0xf bank_mask:0xf")
        A("s_nop 0")
        for i in range(4): A(f"v_permlane32_swap_b32 v{GR+i}, v{GR+4+i}")
        for i in range(4): A(f"v_add_f32 v{ACC[ct]+i}, v{ACC[ct]+i}, v{GR+4+i}")
    A("s_mov_b64 exec, 0x00ff00ff")
    for ct in range(9): A(f"ds_write_b128 v4, {vr(ACC[ct])} offset:{ct*256}")
    A(f"s_mov_b64 exec, 1\nv_mov_b32 v1, 1\nds_add_u32 v{VZ}, v1 offset:{L_QFLAG+24}\ns_mov_b64 exec, -1")
    A(f"s_cmp_eq_u32 {sC}, 3\ns_cbranch_scc1 L_k_on")
    join(L_QFLAG + 24, "L_dn_j", 4)
    A(f"s_lshl_b32 s64, {sC}, 6\nv_add_u32 v4, s64, v0\nv_cmp_gt_u32 vcc, 0x90, v4\ns_and_saveexec_b64 s[82:83], vcc")
    A(f"v_lshlrev_b32 v5, 4, v4\nv_add_u32 v5, {FS}, v5")
    for i in range(4): A(f"ds_read_b128 {vr(GR+4*i)}, v5 offset:{i*2304}")
    A(f"v_lshrrev_b32 v5, 4, v4\nv_mul_u32_u24 v5, {72*256}, v5\nv_and_b32 v4, 15, v4\nv_lshl_add_u32 v4, v4, 4, v5")
    A(f"s_lshl_b32 s64, {sU}, 8\ns_add_u32 s64, s64, {WS_F}\ns_waitcnt lgkmcnt(0)")
    for k in range(1, 4):
        for i in range(4): A(f"v_add_f32 v{GR+i}, v{GR+i}, v{GR+4*k+i}")
    for i in range(4): tagput(GR + i)
    A(f"buffer_store_dwordx4 {vr(GR)}, v4, {rWS}, s64 offen sc1\ns_mov_b64 exec, -1")
    stamp(3)
    A("s_branch L_k_on")

    A("L_code_end:\ns_endpgm\n.fill 64, 4, 0xbf800000")
    errs = hazard.check(L)
    if errs:
        print("\n".join(errs)); raise SystemExit("hazards found")
    lds = RINGE
    body = "\n".join(x if x.endswith(":") and not x.startswith(";") else "    " + x for x in L)
    head = HEADER.replace("@LAUNCH@", f"; @launch grid=(256,1,1) block=({64*NW},1,1) lds={lds}\n" + DESC.rstrip("\n"))
    tail = f"""
.section .rodata,"a"
.p2align 6
.amdhsa_kernel {NAME}_kernel
  .amdhsa_next_free_vgpr 228
  .amdhsa_next_free_sgpr 102
  .amdhsa_accum_offset 228
  .amdhsa_group_segment_fixed_size 0
  .amdhsa_kernarg_size 96
  .amdhsa_user_sgpr_count 2
  .amdhsa_user_sgpr_kernarg_segment_ptr 1
  .amdhsa_system_sgpr_workgroup_id_x 1
  .amdhsa_float_denorm_mode_32 3
.end_amdhsa_kernel
"""
    return head + body + tail, lds

if __name__ == "__main__":
    out = sys.argv[1]
    kw = eval("dict(" + (sys.argv[2] if len(sys.argv) > 2 else "") + ")")
    txt, lds = build(**kw)
    open(out, "w").write(txt)
    import subprocess
    r = subprocess.run([sys.executable, "cdna_unwritten_srd_check.py", out], capture_output=True, text=True)
    print(r.stdout.strip()[:1500])
```
